```python
import torch

def _softmax(x, axis=-1):
    return torch.softmax(x, dim=axis)

def _gelu(x):
    return torch.nn.functional.gelu(x, approximate='tanh')

def _silu(x):
    return torch.nn.functional.silu(x)

def _sigmoid(x):
    return torch.sigmoid(x)

def _layernorm(x, axis=-1, eps=1e-05):
    m = x.mean(dim=axis, keepdim=True)
    v = x.var(dim=axis, keepdim=True, unbiased=False)
    return (x - m) / torch.sqrt(v + eps)

def _scatter_add(tgt, idx, src, axis=0):
    return tgt.clone().index_add_(axis, idx, src)

def _segment_sum(src, seg, n):
    out = torch.zeros((n,) + src.shape[1:], dtype=src.dtype)
    return out.index_add_(0, seg, src)

def _pad(x, pw):
    flat = tuple((v for pair in reversed(pw) for v in pair))
    return torch.nn.functional.pad(x, flat)
kernel_name = 'interleave_layers__memory_aug_recurrent_mem_tr__grouped_kv_mqa__prompt'

def setup_inputs():

    _w = lambda a: (lambda t: t.to(torch.bfloat16) if t.is_floating_point() else t)(torch.as_tensor(a))

    def _A_setup():
        B, S, Dm = (1, 2048, 448)
        H, Dh = (16, 256)
        M, seg = (8, 32)
        seg = min(seg, S)
        S = S // seg * seg
        return {'x': _w((lambda *s: torch.randn(*s, dtype=torch.bfloat16) * 0.05)(B, S, Dm)), 'mem0': _w((lambda *s: torch.randn(*s, dtype=torch.bfloat16) * 0.2)(B, M, Dm)), 'Wq': _w((lambda *s: torch.randn(*s, dtype=torch.bfloat16) * 1.6)(Dm, H, Dh) * Dm ** (-0.5)), 'Wk': _w((lambda *s: torch.randn(*s, dtype=torch.bfloat16) * 1.6)(Dm, H, Dh) * Dm ** (-0.5)), 'Wv': _w((lambda *s: torch.randn(*s, dtype=torch.bfloat16) * 0.2)(Dm, H, Dh) * Dm ** (-0.5)), 'Wo': _w((lambda *s: torch.randn(*s, dtype=torch.bfloat16) * 0.2)(H, Dh, Dm) * (H * Dh) ** (-0.5)), 'seg_len': seg}
    _A_in = _A_setup()

    def _B_setup():
        B, S, D, H = (1, 2048, 448, 16)
        Dh = D // H
        return {'x': _w((lambda *s: torch.randn(*s, dtype=torch.bfloat16) * 0.05)(B, S, D)), 'wq': _w((lambda *s: torch.randn(*s, dtype=torch.bfloat16) * 0.05)(D, H * Dh)), 'wk': _w((lambda *s: torch.randn(*s, dtype=torch.bfloat16) * 0.05)(D, Dh)), 'wv': _w((lambda *s: torch.randn(*s, dtype=torch.bfloat16) * 0.05)(D, Dh)), 'wo': _w((lambda *s: torch.randn(*s, dtype=torch.bfloat16) * 0.05)(H * Dh, D))}
    _B_in = _B_setup()
    return {'A_x': _A_in['x'], 'A_mem0': _A_in['mem0'], 'A_Wq': _A_in['Wq'], 'A_Wk': _A_in['Wk'], 'A_Wv': _A_in['Wv'], 'A_Wo': _A_in['Wo'], 'A_seg_len': _A_in['seg_len'], 'B_x': _B_in['x'], 'B_wq': _B_in['wq'], 'B_wk': _B_in['wk'], 'B_wv': _B_in['wv'], 'B_wo': _B_in['wo']}

def reference(A_x, A_mem0, A_Wq, A_Wk, A_Wv, A_Wo, A_seg_len, B_x, B_wq, B_wk, B_wv, B_wo):

    def _A_ref(x, mem0, Wq, Wk, Wv, Wo, seg_len):
        B, S, Dm = x.shape
        H, Dh = (Wq.shape[1], Wq.shape[2])
        M = mem0.shape[1]
        scale = Dh ** (-0.5)
        n_seg = S // seg_len
        L = M + seg_len
        idx = torch.arange(L)
        mask = (idx[:, None] < M) | (idx[:, None] >= idx[None, :])
        mem = mem0
        outs = []
        for s in range(n_seg):
            xs = x[:, s * seg_len:(s + 1) * seg_len, :].clone()
            h = torch.concatenate([mem, xs], axis=1)
            q = torch.einsum('btd,dhe->bhte', h, Wq)
            k = torch.einsum('btd,dhe->bhte', h, Wk)
            v = torch.einsum('btd,dhe->bhte', h, Wv)
            scores = torch.einsum('bhqe,bhke->bhqk', q, k) * scale
            scores = torch.where(mask[None, None], scores, -1000000000.0)
            p = _softmax(scores, axis=-1)
            o = torch.einsum('bhqk,bhke->bhqe', p, v)
            o = torch.einsum('bhte,hed->btd', o, Wo)
            mem = o[:, :M, :].clone()
            outs.append(o[:, M:, :])
        return torch.concatenate(outs, axis=1)

    def _B_ref(x, wq, wk, wv, wo):
        B, S, D = x.shape
        H = 16
        Dh = D // H
        q = (lambda x, *d: x.permute(*d))((x @ wq).reshape(B, S, H, Dh), 0, 2, 1, 3)
        k = x @ wk
        v = x @ wv
        scores = torch.einsum('bhqd,bkd->bhqk', q, k) * Dh ** (-0.5)
        p = _softmax(scores, axis=-1)
        o = torch.einsum('bhqk,bkd->bhqd', p, v)
        return (lambda x, *d: x.permute(*d))(o, 0, 2, 1, 3).reshape(B, S, H * Dh) @ wo
    x = A_x
    x = x + _A_ref(_layernorm(x, axis=-1), A_mem0, A_Wq, A_Wk, A_Wv, A_Wo, A_seg_len)
    x = x + _B_ref(_layernorm(x, axis=-1), B_wq, B_wk, B_wv, B_wo)
    x = x + _A_ref(_layernorm(x, axis=-1), A_mem0, A_Wq, A_Wk, A_Wv, A_Wo, A_seg_len)
    x = x + _B_ref(_layernorm(x, axis=-1), B_wq, B_wk, B_wv, B_wo)
    return x
```

```python
import re

class K:
    def __init__(self, name, nvgpr=512, accum=256, nsgpr=96):
        self.name = name; self.lines = []; self.nvgpr = nvgpr; self.accum = accum; self.nsgpr = nsgpr
        self._lab = 0
    def __call__(self, s, *a):
        for l in s.split("\n"):
            l = l.strip()
            if l: self.lines.append(l)
    def label(self, base="L"):
        self._lab += 1
        return f"{base}_{self.name}_{self._lab}"
    def place(self, lab): self.lines.append(lab + ":")
    def c(self, s): self.lines.append("; " + s)

def vr(b, n=1):
    if b >= 256:
        b -= 256
        return f"a{b}" if n == 1 else f"a[{b}:{b+n-1}]"
    assert b + n <= 256, (b, n)
    return f"v{b}" if n == 1 else f"v[{b}:{b+n-1}]"
def sr(b, n=1): return f"s{b}" if n == 1 else f"s[{b}:{b+n-1}]"

_reg = re.compile(r"^(-|abs\(|\|)?([vas])(\d+|\[(\d+):(\d+)\])")
def regs_of(op):
    op = op.strip()
    op = op.replace("-abs(", "").replace("abs(", "").replace(")", "").replace("|", "").lstrip("-")
    if op == "vcc": return {("s", "vcc")}
    if op in ("vcc_lo", "vcc_hi"): return {("s", "vcc")}
    if op == "exec" or op in ("exec_lo", "exec_hi"): return {("s", "exec")}
    if op == "m0": return {("s", "m0")}
    m = re.match(r"^([vas])(\d+)$", op)
    if m:
        t, n = m.group(1), int(m.group(2))
        if t == "a": return {("v", 256 + n)}
        return {(t, n)}
    m = re.match(r"^([vas])\[(\d+):(\d+)\]$", op)
    if m:
        t, a, b = m.group(1), int(m.group(2)), int(m.group(3))
        off = 256 if t == "a" else 0
        tt = "v" if t == "a" else t
        return {(tt, off + i) for i in range(a, b + 1)}
    return set()

TRANS = ("v_exp_f32", "v_log_f32", "v_rcp_f32", "v_rsq_f32", "v_sqrt_f32", "v_sin_f32", "v_cos_f32", "v_rcp_iflag_f32")

class I:
    def __init__(self, text):
        self.text = text
        t = text.split(";")[0].strip()
        self.is_label = t.endswith(":")
        self.is_insn = bool(t) and not self.is_label and not t.startswith(".")
        self.op = ""; self.ops = []; self.w = set(); self.r = set()
        self.kind = None; self.states = 0
        if not self.is_insn: return
        parts = t.split(None, 1)
        self.op = parts[0]
        rest = parts[1] if len(parts) > 1 else ""
        ops = [o.strip() for o in rest.split(",")] if rest else []
        mods = ""
        if ops:
            sp = ops[-1].split(None, 1)
            ops[-1] = sp[0] if sp else ""
            mods = sp[1] if len(sp) > 1 else ""
        self.ops = ops; self.mods = mods
        self.states = 1
        op = self.op
        R = lambda i: regs_of(ops[i]) if i < len(ops) else set()
        if op == "s_nop":
            self.kind = "nop"; self.states = int(ops[0], 0) + 1
        elif op.startswith("v_mfma") or op.startswith("v_smfmac"):
            self.kind = "mfma"
            self.passes = 8 if "32x32" in op else 4
            if "4x4" in op: self.passes = 2
            self.w = R(0); self.a = R(1) | R(2)
            if op.startswith("v_smfmac"):
                self.cin = R(0); self.a |= R(3); self.cop = ops[0]
            else:
                self.cin = R(3); self.cop = ops[3]
            self.dop = ops[0]
            self.r = self.a | self.cin
        elif op.startswith("v_"):
            self.kind = "valu"
            self.trans = any(op.startswith(x) for x in TRANS)
            self.dpp = ("row_" in mods or "quad_perm" in mods or "wave_" in mods or op.endswith("_dpp"))
            self.perm = op.startswith("v_permlane")
            self.rl = op.startswith("v_readfirstlane") or op.startswith("v_readlane")
            if self.perm:
                self.w = R(0) | R(1); self.r = R(0) | R(1)
            elif op.startswith("v_cmpx"):
                self.w = R(0) | {("s", "exec")}; self.r = R(1) | R(2)
            elif op.startswith("v_cmp"):
                self.w = R(0); self.r = R(1) | R(2)
            elif "_co_" in op or op.startswith("v_div_scale") or op.startswith("v_mad_u64"):
                self.w = R(0) | R(1); self.r = set().union(*[R(i) for i in range(2, len(ops))])
            else:
                self.w = R(0); self.r = set().union(*[R(i) for i in range(1, len(ops))]) if len(ops) > 1 else set()
                if op.startswith("v_fmac") or op.startswith("v_pk_fmac") or op.startswith("v_dot2c") or op.startswith("v_writelane") or self.dpp:
                    self.r |= R(0)
                if op.startswith("v_cndmask") and len(ops) == 3: self.r |= {("s", "vcc")}
        elif op.startswith("buffer_") or op.startswith("global_"):
            self.kind = "vmem"
            lds = (" lds" in " " + mods) or op.startswith("global_load_lds")
            self.lds = lds
            allr = set().union(*[R(i) for i in range(len(ops))]) if ops else set()
            self.store = ("store" in op) or ("atomic" in op)
            self.wide = self.store and ("x3" in op or "x4" in op)
            if op in ("buffer_inv", "buffer_wbl2"):
                pass
            elif self.store:
                self.r = allr
                self.data = R(0) if op.startswith("buffer_") else R(1)
                if "atomic" in op and "sc0" in mods and op.startswith("global_"):
                    self.w = R(0); self.data = R(2)
                if "atomic" in op and "sc0" in mods and op.startswith("buffer_"):
                    self.w = R(0)
            elif lds:
                self.r = allr | {("s", "m0")}
            else:
                self.w = R(0); self.r = set().union(*[R(i) for i in range(1, len(ops))])
                if "d16" in op: self.r |= R(0)
        elif op.startswith("ds_"):
            self.kind = "ds"
            if op.startswith("ds_read") or op.startswith("ds_bpermute") or op.startswith("ds_permute") or op.startswith("ds_swizzle") or "_rtn" in op:
                self.w = R(0); self.r = set().union(*[R(i) for i in range(1, len(ops))])
            else:
                self.r = set().union(*[R(i) for i in range(len(ops))])
        elif op.startswith("s_"):
            self.kind = "salu"
            self.branch = op.startswith("s_branch") or op.startswith("s_cbranch")
            if op.startswith("s_cmp") or self.branch or op in ("s_waitcnt", "s_barrier", "s_endpgm", "s_sleep", "s_setprio"):
                self.r = set().union(*[R(i) for i in range(len(ops))]) if ops else set()
            else:
                self.w = R(0); self.r = set().union(*[R(i) for i in range(1, len(ops))]) if len(ops) > 1 else set()
                if "saveexec" in op: self.w |= {("s", "exec")}
        else:
            raise ValueError("unknown op " + text)

def vset(s): return {x for x in s if x[0] == "v"}
def sset(s): return {x for x in s if x[0] == "s"}
_D2V = {2: 5, 4: 8, 8: 12, 16: 20}
_D2C = {2: 4, 4: 6, 8: 10, 16: 18}
_CWAR = {2: 1, 4: 3, 8: 7, 16: 15}

def required(p, c):
    n = 0
    if p.kind == "valu":
        pv = vset(p.w); ps = sset(p.w)
        if c.kind == "mfma":
            if pv & c.r: n = max(n, 2)
            if ("s", "exec") in ps: n = max(n, 4)
        if c.kind == "valu":
            if c.dpp and (pv & regs_of(c.ops[1])): n = max(n, 2)
            if c.dpp and ("s", "exec") in ps: n = max(n, 5)
            if c.perm and (pv & c.r): n = max(n, 2)
            if c.perm and ("s", "exec") in ps: n = max(n, 4)
            if c.rl and (pv & c.r): n = max(n, 1)
            if c.rl and ("s", "exec") in ps: n = max(n, 4)
            if p.trans and not c.trans and (pv & c.r): n = max(n, 1)
            if p.trans and c.trans and (pv & c.r): n = max(n, 1)
            if (ps - {("s", "exec")}) & c.r:
                n = max(n, 4 if (c.op.startswith("v_readlane") or c.op.startswith("v_writelane")) else 2)
            if ("op_sel" in p.mods or "dst_sel" in p.mods) and (pv & (c.r | c.w)): n = max(n, 1)
            if p.perm and (pv & c.r): n = max(n, 1)
        if c.kind == "vmem" and (ps & c.r): n = max(n, 5)
        if c.kind in ("vmem", "ds") and p.trans and (pv & c.r): n = max(n, 1)
        if c.kind == "salu" and (ps & c.r) and not getattr(c, "branch", False): n = max(n, 1)
    elif p.kind == "mfma":
        if c.kind == "mfma":
            if p.w & c.a: n = max(n, _D2V[p.passes])
            if p.w & c.cin:
                if not (p.dop == c.cop and p.passes == c.passes): n = max(n, _D2C[p.passes])
                elif p.passes == 2: n = max(n, 2)
            elif p.w & c.w:
                n = max(n, _D2C[p.passes])
        elif c.kind == "valu":
            if p.w & (c.r | c.w): n = max(n, _D2V[p.passes])
            if p.cin & c.w: n = max(n, _CWAR[p.passes])
        elif c.kind in ("vmem", "ds"):
            if p.w & (c.r | c.w): n = max(n, _D2V[p.passes])
            if p.cin & c.w: n = max(n, _CWAR[p.passes])
    elif p.kind == "vmem":
        if getattr(p, "wide", False) and c.kind in ("valu", "mfma") and (p.data & c.w): n = max(n, 2)
        if getattr(p, "wide", False) and c.kind in ("vmem", "ds") and (p.data & c.w): n = max(n, 1)
    elif p.kind == "ds":
        if p.op in ("ds_write_b128", "ds_write_b96") and c.kind == "valu" and (p.r & c.w): n = max(n, 1)
    elif p.kind == "salu":
        if ("s", "m0") in p.w and c.kind == "vmem" and getattr(c, "lds", False): n = max(n, 1)
    return n

def _times(seq):
    t = 0; last_m = None; out = []
    for c in seq:
        if c.kind == "mfma" and last_m is not None:
            t = max(t, last_m)
        out.append(t)
        if c.kind == "mfma": last_m = t + c.passes - 1
        t += c.states
    return out

def _dist(seq):
    return _times(seq)[-1] - seq[0].states

def _need(hist, c):
    h = [p for p in hist if p.is_insn]
    need = 0
    for i, p in enumerate(h):
        if p.kind == "nop": continue
        r = required(p, c)
        if r:
            if r > _dist(h[i:] + [c]):
                T = _times(h[i:])
                base = T[-1] + h[-1].states - p.states
                need = max(need, r - base)
    return need

def fix_hazards(lines, report=None):
    ins = [I(l) for l in lines]
    WIN = 24
    total = 0
    changed = True
    while changed:
        changed = False
        out = []; hist = []
        for c in ins:
            if c.is_insn:
                if c.kind != "nop":
                    need = _need(hist[-WIN:], c)
                    while need > 0:
                        k = min(need, 16)
                        n = I(f"s_nop {k-1}"); out.append(n); hist.append(n); need -= k; total += 1
                hist.append(c)
                if c.op in ("s_branch", "s_endpgm"): hist = []
            out.append(c)
        ins = out
        labels = {c.text.split(";")[0].strip()[:-1]: i for i, c in enumerate(ins) if c.is_label}
        for i, c in enumerate(ins):
            if c.is_insn and getattr(c, "branch", False):
                tgt = c.ops[0]
                if tgt not in labels: raise ValueError("missing label " + tgt)
                j = labels[tgt]
                hist = []
                for p in reversed(ins[max(0, i - 60):i]):
                    if p.is_insn:
                        if p.op in ("s_branch", "s_endpgm"): break
                        hist.insert(0, p)
                hist = hist[-WIN:] + [c]
                nh = len(hist); bad = 0
                for q in ins[j:j + 60]:
                    if not q.is_insn: continue
                    if len(hist) - nh > WIN: break
                    if q.kind != "nop":
                        for ii, p in enumerate(hist[:nh]):
                            if p.kind == "nop": continue
                            r = required(p, q)
                            if r:
                                d = _dist(hist[ii:] + [q])
                                if r > d: bad = max(bad, r - d)
                    if bad: break
                    hist.append(q)
                    if q.op in ("s_branch", "s_endpgm"): break
                if bad:
                    ins.insert(i, I(f"s_nop {min(bad,16)-1}")); total += 1
                    changed = True
                    break
    if report is not None: report.append(total)
    return [c.text for c in ins]

def emit_file(kernels, launches, header=""):
    out = []
    out.append(header.rstrip("\n"))
    for (name, grid, block, lds) in launches:
        out.append(f"; @launch kernel={name} grid=({grid},1,1) block=({block},1,1) lds={lds}")
    out.append('.amdgcn_target "amdgcn-amd-amdhsa--gfx950"')
    out.append(".text")
    for k in kernels:
        rep = []
        lines = fix_hazards(k.lines, rep)
        out.append(f".globl {k.name}\n.p2align 8\n.type {k.name},@function\n{k.name}:")
        for l in lines:
            out.append(l if l.endswith(":") else "    " + l)
    out.append('.section .rodata,"a"')
    for k in kernels:
        out.append(f""".p2align 6
.amdhsa_kernel {k.name}
  .amdhsa_next_free_vgpr {k.nvgpr}
  .amdhsa_next_free_sgpr {k.nsgpr}
  .amdhsa_accum_offset {k.accum}
  .amdhsa_group_segment_fixed_size 0
  .amdhsa_kernarg_size 120
  .amdhsa_user_sgpr_count 2
  .amdhsa_user_sgpr_kernarg_segment_ptr 1
  .amdhsa_system_sgpr_workgroup_id_x 1
  .amdhsa_float_denorm_mode_32 3
  .amdhsa_float_denorm_mode_16_64 3
.end_amdhsa_kernel""")
    return "\n".join(x for x in out if x != "") + "\n"
```

```python
from gen import *

NEG = hx(f2u(-1e9*L.LOG2E))
NINF = hx(f2u(-3.0e38))
OOB = 0x40000000

def mf16(d, a, b, c): return f"v_mfma_f32_16x16x32_bf16 {vr(d,4)}, {vr(a,4)}, {vr(b,4)}, {'0' if c is None else vr(c,4)}"
def mf32(d, a, b, c): return f"v_mfma_f32_32x32x16_bf16 {vr(d,16)}, {vr(a,4)}, {vr(b,4)}, {'0' if c is None else vr(c,16)}"

def loads(k, regs, vaddr, sbase, stmp, flags=""):
    cur = sbase
    for n, r in enumerate(regs):
        if n % 4 == 0 and n:
            k(f"s_add_u32 s{stmp}, s{cur}, 4096"); cur = stmp
        k(f"buffer_load_dwordx4 {vr(r,4)}, v{vaddr}, {WS}, s{cur} offen offset:{(n%4)*1024}{flags}")

def ln_epilogue(k, acc, nq, XRES, TMP, PK, V_ST, STATS, res_store, xn_store, skip_sreg, last=False):
    def pairs(body):
        for pp in range(4):
            lab = None
            if pp == 3:
                lab = k.label(); k(f"s_cmp_ge_u32 s{S_WAVE}, 2"); k(f"s_cbranch_scc1 {lab}")
            body(pp)
            if lab: k.place(lab)
    SUM = TMP; T = TMP + 4
    for q in range(nq): k(f"v_mov_b32 v{SUM+q}, 0")
    def b1(pp):
        for q in range(nq):
            x = XRES(pp, q)
            for t in range(2):
                a = acc(pp, q, t)
                for h in range(2):
                    k(f"v_lshlrev_b32 v{T}, 16, v{x+2*t+h}"); k(f"v_and_b32 v{T+1}, 0xffff0000, v{x+2*t+h}")
                    k(f"v_add_f32 v{a+2*h}, v{a+2*h}, v{T}"); k(f"v_add_f32 v{a+2*h+1}, v{a+2*h+1}, v{T+1}")
                    k(f"v_cvt_pk_bf16_f32 v{x+2*t+h}, v{a+2*h}, v{a+2*h+1}")
                if not last:
                    k(f"v_add_f32 v{T}, v{a}, v{a+1}"); k(f"v_add_f32 v{T+1}, v{a+2}, v{a+3}")
                    k(f"v_add_f32 v{SUM+q}, v{SUM+q}, v{T}"); k(f"v_add_f32 v{SUM+q}, v{SUM+q}, v{T+1}")
            res_store(pp, q, x)
    pairs(b1)
    if last: return
    def exchange(off):
        for q in range(nq): xreduce_g(k, SUM+q, T, "v_add_f32")
        for q in range(nq): k(f"ds_write_b32 v{V_ST}, v{SUM+q} offset:{STATS+off+q*256}")
        k("s_waitcnt lgkmcnt(0)"); k("s_barrier")
        for q in range(nq): k(f"ds_read_b128 {vr(PK+4*q,4)}, v{V_ST+1} offset:{STATS+off+q*256}")
        k("s_waitcnt lgkmcnt(0)")
        for q in range(nq):
            k(f"v_add_f32 v{PK+4*q}, v{PK+4*q}, v{PK+4*q+1}"); k(f"v_add_f32 v{PK+4*q+2}, v{PK+4*q+2}, v{PK+4*q+3}")
            k(f"v_add_f32 v{SUM+q}, v{PK+4*q}, v{PK+4*q+2}")
    exchange(0)
    MU = TMP + 2
    for q in range(nq):
        k(f"v_mul_f32 v{MU+q}, {hx(f2u(1/448))}, v{SUM+q}"); k(f"v_mov_b32 v{SUM+q}, 0")
    def b2(pp):
        for q in range(nq):
            for t in range(2):
                a = acc(pp, q, t)
                for r in range(4):
                    k(f"v_sub_f32 v{a+r}, v{a+r}, v{MU+q}"); k(f"v_fmac_f32 v{SUM+q}, v{a+r}, v{a+r}")
    pairs(b2)
    exchange(512)
    for q in range(nq):
        k(f"v_mov_b32 v{MU+q}, {hx(f2u(1e-5))}"); k(f"v_fmac_f32 v{MU+q}, {hx(f2u(1/448))}, v{SUM+q}"); k(f"v_rsq_f32 v{MU+q}, v{MU+q}")
    def b3(pp):
        for q in range(nq):
            o = PK + 4*((pp*nq + q) & 1)
            for t in range(2):
                a = acc(pp, q, t)
                for r in range(4): k(f"v_mul_f32 v{a+r}, v{a+r}, v{MU+q}")
                k(f"v_cvt_pk_bf16_f32 v{o+2*t}, v{a}, v{a+1}"); k(f"v_cvt_pk_bf16_f32 v{o+2*t+1}, v{a+2}, v{a+3}")
            xn_store(pp, q, o)
    pairs(b3)

A3_PX = 0; A3_PM = 16384; A3_DUM = 20480; A3_ST = 21504; A3_XL = 22528; A3_LDS = A3_XL + 28*1024

def body_attnA(k, layer):
    XK = 256; MK = 256+112; U1 = 256+168; Q = 64; U2 = 64; XRS = 144; S = 16; P = 16; OUT = 192
    k("v_lshlrev_b32 v1, 4, v0"); k("v_and_b32 v2, 15, v0"); k("v_lshrrev_b32 v3, 4, v0")
    k("v_lshlrev_b32 v4, 2, v3")
    for r in range(4):
        k(f"v_add_u32 v5, {r}, v4"); k(f"v_cmp_le_u32 s[{72+2*r}:{73+2*r}], v5, v2")
    k("v_cmp_gt_u32 s[80:81], 2, v3")
    k("v_bfe_u32 v5, v0, 1, 1"); k("v_lshlrev_b32 v5, 2, v5"); k("v_and_b32 v6, 1, v0"); k("v_lshl_add_u32 v5, v6, 1, v5")
    k("v_bfe_u32 v6, v0, 2, 1"); k("v_add_u32 v5, v5, v6"); k("v_lshlrev_b32 v5, 4, v5"); k("v_lshl_add_u32 v5, v3, 7, v5")
    k(f"s_lshl_b32 s46, s{S_WAVE}, 11"); k("v_add_u32 v6, s46, v1")
    k(f"s_lshl_b32 s46, s{S_WAVE}, 8"); k(f"s_add_u32 s46, s46, {A3_PM}")
    k("v_lshlrev_b32 v7, 4, v2"); k("v_lshl_add_u32 v7, v3, 3, v7"); k("v_add_u32 v7, s46, v7")
    k(f"v_mov_b32 v8, {A3_DUM - 3072}"); k("v_add_u32 v8, 3072, v8"); k("v_cndmask_b32 v7, v8, v7, s[80:81]")
    k(f"s_lshl_b32 s61, s{S_WAVE}, 2"); k(f"s_cmp_eq_u32 s{S_WAVE}, 3"); k("s_cselect_b32 s61, 11, s61")
    if layer == 0: srd(k, 8, P_X, L.XSZ)
    k("v_mul_u32_u24 v8, 896, v2"); k("v_lshl_add_u32 v8, v3, 4, v8")
    k(f"s_mul_i32 s62, s60, {32*896}"); k("s_lshl_b32 s46, s61, 6"); k("s_add_u32 s62, s62, s46")
    k(f"s_lshl_b32 s46, s{S_WAVE}, 2"); k("v_lshlrev_b32 v10, 4, v2"); k("v_add_u32 v9, s46, v10")
    k(f"s_mul_i32 s46, s60, {28*1024}"); k(f"s_add_u32 s46, s46, {L.XTA[layer]}")
    loads(k, [XK+4*i for i in range(28)], 1, 46, 47)
    k(f"s_lshl_b32 s63, s60, 4"); k(f"s_add_u32 s63, s63, s{S_WAVE}"); k(f"s_mul_i32 s63, s63, {28*1024}"); k(f"s_add_u32 s63, s63, {L.QP[layer]}")
    loads(k, [Q+4*i for i in range(28)], 1, 63, 47)
    k(f"s_mul_i32 s64, s60, {16*28*1024}"); k("s_lshl_b32 s46, s61, 11"); k("s_add_u32 s64, s64, s46"); k(f"s_add_u32 s64, s64, {L.UU[layer]}")
    k(f"s_mul_i32 s65, s60, {L.VMSZ}"); k("s_add_u32 s65, s65, s46"); k(f"s_add_u32 s65, s65, {L.VM[layer]}")
    k("FLAGWAIT_MEM")
    k(f"s_mul_i32 s46, s60, {L.MEMSZ}"); k(f"s_add_u32 s46, s46, {L.MEMN[layer]}")
    for ks in range(14):
        if ks == 8: k("s_add_u32 s46, s46, 4096")
        k(f"buffer_load_dwordx4 {vr(MK+4*ks,4)}, v5, {WS}, s46 offen offset:{(ks%8)*512} sc1")
    for i in range(32): k(f"v_mov_b64 {vr(OUT+2*i,2)}, 0")
    def uloads(base, half):
        for hh in range(5):
            if hh < 4: k(f"s_add_u32 s46, s64, {hh*28*1024 + half*4096}")
            else: k(f"s_add_u32 s46, s65, {half*4096}")
            if half == 1:
                k(f"s_cmp_ge_u32 s{S_WAVE}, 2"); k(f"s_cselect_b32 s47, {OOB}, s46")
            for i in range(4):
                so = "s47" if (half == 1 and i >= 2) else "s46"
                k(f"buffer_load_dwordx4 {vr(base+(hh*4+i)*4,4)}, v1, {WS}, {so} offen offset:{i*1024}{' sc1' if hh==4 else ''}")
    k("s_mov_b32 s66, 0")
    loop = k.label("LR"); k.place(loop)
    uloads(U1, 0)
    k("s_waitcnt vmcnt(20)")
    for ks in range(14):
        c = lambda i: None if ks == 0 else S+4*i
        k(mf16(S+0, XK+4*ks, Q+4*ks, c(0)))
        k(mf16(S+8, XK+4*ks, Q+4*(14+ks), c(2)))
        k(mf16(S+12, XK+4*(14+ks), Q+4*(14+ks), c(3)))
        k(mf16(S+4, MK+4*ks, Q+4*ks, c(1)))
        k(mf16(S+16, MK+4*ks, Q+4*(14+ks), c(4)))
    uloads(U2, 1)
    k(f"v_mov_b32 v11, {NEG}"); k(f"v_mov_b32 v12, {NINF}")
    for r in range(4):
        k(f"v_cndmask_b32 v{S+r}, v11, v{S+r}, s[{72+2*r}:{73+2*r}]")
        k(f"v_cndmask_b32 v{S+12+r}, v11, v{S+12+r}, s[{72+2*r}:{73+2*r}]")
        k(f"v_cndmask_b32 v{S+4+r}, v12, v{S+4+r}, s[80:81]")
        k(f"v_cndmask_b32 v{S+16+r}, v12, v{S+16+r}, s[80:81]")
    grp = [list(range(S, S+8)), list(range(S+8, S+20))]
    MX = [36, 37]; T = 38
    for q in range(2):
        g = grp[q]
        k(f"v_max3_f32 v{MX[q]}, v{g[0]}, v{g[1]}, v{g[2]}")
        rest = g[3:]
        while len(rest) >= 2:
            k(f"v_max3_f32 v{MX[q]}, v{MX[q]}, v{rest[0]}, v{rest[1]}"); rest = rest[2:]
        if rest: k(f"v_max_f32 v{MX[q]}, v{MX[q]}, v{rest[0]}")
    for q in range(2): xreduce_g(k, MX[q], T+q, "v_max_f32")
    for q in range(2):
        for x in grp[q]: k(f"v_sub_f32 v{x}, v{x}, v{MX[q]}")
        for x in grp[q]: k(f"v_exp_f32 v{x}, v{x}")
    for q in range(2):
        g = grp[q]
        k(f"v_add_f32 v{MX[q]}, v{g[0]}, v{g[1]}")
        for x in g[2:]: k(f"v_add_f32 v{MX[q]}, v{MX[q]}, v{x}")
    for q in range(2): xreduce_g(k, MX[q], T+q, "v_add_f32")
    for q in range(2): k(f"v_rcp_f32 v{MX[q]}, v{MX[q]}")
    for q in range(2):
        for x in grp[q]: k(f"v_mul_f32 v{x}, v{x}, v{MX[q]}")
    W = 40
    k(f"v_cvt_pk_bf16_f32 v{W}, v{S}, v{S+1}"); k(f"v_cvt_pk_bf16_f32 v{W+1}, v{S+2}, v{S+3}"); k(f"v_mov_b64 {vr(W+2,2)}, 0")
    k(f"v_cvt_pk_bf16_f32 v{W+4}, v{S+8}, v{S+9}"); k(f"v_cvt_pk_bf16_f32 v{W+5}, v{S+10}, v{S+11}")
    k(f"v_cvt_pk_bf16_f32 v{W+6}, v{S+12}, v{S+13}"); k(f"v_cvt_pk_bf16_f32 v{W+7}, v{S+14}, v{S+15}")
    k(f"v_cvt_pk_bf16_f32 v{W+8}, v{S+4}, v{S+5}"); k(f"v_cvt_pk_bf16_f32 v{W+9}, v{S+6}, v{S+7}")
    k(f"v_cvt_pk_bf16_f32 v{W+10}, v{S+16}, v{S+17}"); k(f"v_cvt_pk_bf16_f32 v{W+11}, v{S+18}, v{S+19}")
    k(f"ds_write_b128 v6, {vr(W,4)}"); k(f"ds_write_b128 v6, {vr(W+4,4)} offset:1024")
    k(f"ds_write_b64 v7, {vr(W+8,2)}"); k(f"ds_write_b64 v7, {vr(W+10,2)} offset:1024")
    k("s_and_b32 s46, s66, 1"); k("s_lshl_b32 s47, s46, 13"); k("v_add_u32 v11, s47, v1")
    k("s_lshl_b32 s47, s46, 11"); k("v_add_u32 v12, s47, v1")
    k("v_xor_b32 v6, 8192, v6"); k("v_xor_b32 v7, 2048, v7")
    k("s_waitcnt lgkmcnt(0)"); k("s_barrier")
    for i in range(8): k(f"ds_read_b128 {vr(P+4*i,4)}, v11 offset:{A3_PX+i*1024}")
    for q in range(2): k(f"ds_read_b128 {vr(P+32+4*q,4)}, v12 offset:{A3_PM+q*1024}")
    k("s_waitcnt vmcnt(20) lgkmcnt(0)")
    def pv(base, half):
        for hh in range(5):
            for i in range(4):
                for q in range(2):
                    o = OUT + ((half*4+i)*2 + q)*4
                    k(mf16(o, base+(hh*4+i)*4, P + (hh*2+q)*4, o))
    pv(U1, 0)
    k("s_waitcnt vmcnt(0)")
    pv(U2, 1)
    k(f"s_add_u32 s63, s63, {4*28*1024}"); k(f"s_add_u32 s64, s64, {4*28*1024}"); k(f"s_add_u32 s65, s65, {28*1024}")
    k("s_add_u32 s66, s66, 1")
    fin = k.label("LRf")
    k("s_cmp_eq_u32 s66, 4"); k(f"s_cbranch_scc1 {fin}")
    loads(k, [Q+4*i for i in range(28)], 1, 63, 47)
    k(f"s_branch {loop}")
    k.place(fin)
    rsrd = "s[8:11]" if layer == 0 else WS
    k(f"s_add_u32 s46, s62, {0 if layer == 0 else L.XR[1]}")
    k(f"s_add_u32 s47, s46, {16*896}")
    for pp in range(4):
        for q in range(2):
            k(f"buffer_load_dwordx4 {vr(XRS+(pp*2+q)*4,4)}, v8, {rsrd}, s{46+q} offen offset:{pp*64}")
    k(f"s_cmp_ge_u32 s{S_WAVE}, 2")
    k(f"s_and_b32 s46, s{S_WAVE}, 1"); k(f"s_mul_i32 s46, s46, {14*1024}"); k(f"s_add_u32 s46, s46, {L.WBV}")
    k(f"s_cmp_ge_u32 s{S_WAVE}, 2"); k(f"s_cselect_b32 s46, s46, {L.WBK}")
    loads(k, [XK+4*i for i in range(28)], 1, 46, 47)
    k("s_waitcnt vmcnt(28)")
    k(f"s_add_u32 s67, s62, {L.XR[2*layer]}"); k(f"s_add_u32 s68, s67, {16*896}")
    k(f"s_mul_i32 s69, s60, 28"); k("s_add_u32 s69, s69, s61"); k("s_lshl_b32 s69, s69, 10"); k(f"s_add_u32 s69, s69, {L.XTB[layer]}")
    k(f"s_add_u32 s70, s69, {14*1024}")
    k("s_lshl_b32 s46, s61, 10"); k(f"s_add_u32 s46, s46, {A3_XL}"); k("v_add_u32 v11, s46, v1")
    def res_store(pp, q, r): k(f"buffer_store_dwordx4 {vr(r,4)}, v8, {WS}, s{67+q} offen offset:{pp*64} sc1")
    def xn_store(pp, q, r):
        k(f"buffer_store_dwordx4 {vr(r,4)}, v1, {WS}, s{69+q} offen offset:{pp*1024} sc1")
        k(f"ds_write_b128 v11, {vr(r,4)} offset:{q*14*1024+pp*1024}")
    ln_epilogue(k, lambda pp, q, t: OUT + ((2*pp+t)*2+q)*4, 2, lambda pp, q: XRS+(pp*2+q)*4, 16, 24, 9, A3_ST, res_store, xn_store, None)
    k("s_waitcnt lgkmcnt(0)"); k("s_barrier")
    X = 64
    lv = k.label("LV"); le = k.label("LE")
    k(f"s_lshl_b32 s48, s60, 11")
    k(f"s_cmp_ge_u32 s{S_WAVE}, 2"); k(f"s_cbranch_scc1 {lv}")
    k(f"s_mul_i32 s46, s{S_WAVE}, {14*1024}"); k(f"s_add_u32 s46, s46, {A3_XL}"); k("v_add_u32 v11, s46, v1")
    for ks in range(14): k(f"ds_read_b128 {vr(X+4*ks,4)}, v11 offset:{ks*1024}")
    k("s_waitcnt vmcnt(0) lgkmcnt(0)")
    for ks in range(14):
        for t in range(2): k(mf16(16+4*t, XK+4*(t*14+ks), X+4*ks, None if ks == 0 else 16+4*t))
    k("v_lshrrev_b32 v11, 1, v3"); k("v_lshlrev_b32 v11, 10, v11"); k("v_and_b32 v12, 1, v3"); k("v_lshl_add_u32 v11, v12, 9, v11")
    k("v_lshl_add_u32 v11, v2, 4, v11"); k(f"s_lshl_b32 s46, s{S_WAVE}, 8"); k("s_add_u32 s46, s46, s48"); k(f"s_add_u32 s46, s46, {L.KI[layer]}")
    for j in range(4): k(f"v_cvt_pk_bf16_f32 v{24+j}, v{16+2*j}, v{17+2*j}")
    k(f"buffer_store_dwordx4 v[24:27], v11, {WS}, s46 offen sc1")
    k(f"s_branch {le}")
    k.place(lv)
    k(f"v_add_u32 v11, {A3_XL}, v1")
    for i in range(28): k(f"ds_read_b128 {vr(X+4*i,4)}, v11 offset:{i*1024}")
    k("s_waitcnt vmcnt(0) lgkmcnt(0)")
    for ks in range(14):
        for q in range(2): k(mf16(16+4*q, X+4*(q*14+ks), XK+4*ks, None if ks == 0 else 16+4*q))
    k("v_lshrrev_b32 v11, 1, v3"); k("v_lshlrev_b32 v11, 3, v11"); k("v_and_b32 v12, 1, v3"); k("v_lshl_add_u32 v11, v12, 9, v11")
    k("v_lshl_add_u32 v11, v2, 4, v11"); k(f"s_and_b32 s46, s{S_WAVE}, 1"); k("s_lshl_b32 s46, s46, 8"); k("s_add_u32 s46, s46, s48"); k(f"s_add_u32 s46, s46, {L.VI[layer]}")
    k(f"s_cmp_eq_u32 s{S_WAVE}, 3"); k("s_cselect_b32 s47, 12, 99"); k("v_cmp_eq_u32 vcc, s47, v2"); k("v_mov_b32 v12, 0x3f803f80")
    for j in range(4):
        k(f"v_cvt_pk_bf16_f32 v{24+j}, v{16+2*j}, v{17+2*j}"); k(f"v_cndmask_b32 v{24+j}, v{24+j}, v12, vcc")
    k(f"buffer_store_dwordx2 v[24:25], v11, {WS}, s46 offen sc1")
    k(f"buffer_store_dwordx2 v[26:27], v11, {WS}, s46 offen offset:1024 sc1")
    k.place(le)

def gen_attnA(layer):
    k = K(f"attna{layer}_kernel")
    prologue(k, 64)
    k("s_mov_b32 s60, s2")
    body_attnA(k, layer)
    k.lines = [l for l in k.lines if not l.startswith("FLAGWAIT")]
    epilogue(k)
    return k

def B_lds(R):
    QT = R//2
    QL = 0
    OL = QL + 16*1024
    ST = OL + 16*912 + 512
    ST = (ST + 255)//256*256
    MXL = ST + 1024
    FL = MXL + 4*8*128
    RED = FL + 256
    return dict(QL=QL, OL=OL, ST=ST, MXL=MXL, FL=FL, RED=RED, SIZE=RED + 4*QT*4096)

def stream_gemm(k, ntile, sbase, bop, acc, RING, dummy_from=None):
    pass

def body_attnB(k, layer, R):
    QT = R//2; D = B_lds(R)
    last = layer == 1
    RING = 256
    XB = 16
    k("v_lshlrev_b32 v1, 4, v0"); k("v_and_b32 v2, 15, v0"); k("v_lshrrev_b32 v3, 4, v0")
    def wtile(i, sreg):
        k(f"s_add_u32 s46, s{sreg}, {i*14*1024}")
        loads(k, [RING + ((i % 3)*14 + ks)*4 for ks in range(14)], 1, 46, 47)
    k(f"s_mul_i32 s62, s{S_WAVE}, {7*14*1024}"); k(f"s_add_u32 s62, s62, {L.WBQ}")
    wtile(0, 62); wtile(1, 62)
    k(f"s_mul_i32 s61, s60, {R}")
    k(f"v_min_u32 v4, {R-1}, v2"); k("v_add_u32 v4, s61, v4"); k("v_min_u32 v4, 2047, v4")
    k("v_add_u32 v5, s61, v2"); k(f"v_cmp_gt_u32 vcc, {R}, v2"); k("v_mov_b32 v6, 2048")
    k("v_cmp_lt_u32 s[72:73], v5, v6"); k("s_and_b64 s[72:73], s[72:73], vcc")
    k("v_lshrrev_b32 v5, 4, v4"); k(f"v_mul_u32_u24 v5, {14*1024}, v5"); k("v_and_b32 v6, 15, v4"); k("v_lshl_add_u32 v5, v6, 4, v5"); k("v_lshl_add_u32 v5, v3, 8, v5")
    k("v_mov_b64 v[8:9], 0"); k("v_mov_b64 v[10:11], 0"); k(f"s_lshl_b32 s46, s{S_WAVE}, 12"); k("v_add_u32 v7, s46, v1")
    for i in range(4): k(f"ds_write_b128 v7, v[8:11] offset:{D['QL']+i*1024}")
    k(f"v_mov_b32 v7, {D['FL']}"); k("ds_write_b32 v7, v8")
    k("FLAGWAIT_X")
    k(f"s_mov_b32 s48, {L.XTB[layer]}")
    loads(k, [XB+4*ks for ks in range(14)], 5, 48, 47, " sc1")
    k("s_waitcnt lgkmcnt(0)"); k("s_barrier")
    k(f"s_mul_i32 s63, s{S_WAVE}, 112")
    k("v_lshlrev_b32 v6, 2, v3"); k("v_add_u32 v6, s63, v6")
    k("v_lshlrev_b32 v7, 10, v2")
    k(f"s_mov_b32 s64, {hx(f2u(L.LOG2E/28**0.5))}")
    A0 = 72
    for i in range(7):
        if i + 2 < 7: wtile(i+2, 62)
        k(f"s_waitcnt vmcnt({[14,28,28,28,28,14,0][i]})")
        a = A0 + 4*(i & 1)
        for ks in range(14): k(mf16(a, RING + ((i % 3)*14+ks)*4, XB+4*ks, None if ks == 0 else a))
        k(f"v_add_u32 v8, {16*i}, v6"); k("v_mul_u32_u24 v9, 2341, v8"); k("v_lshrrev_b32 v9, 16, v9")
        k("v_lshl_add_u32 v8, v8, 1, v7"); k("v_lshl_add_u32 v8, v9, 3, v8")
        for r in range(4): k(f"v_mul_f32 v{a+r}, s64, v{a+r}")
        k(f"v_cvt_pk_bf16_f32 v10, v{a}, v{a+1}"); k(f"v_cvt_pk_bf16_f32 v11, v{a+2}, v{a+3}")
        k(f"ds_write_b64 v8, v[10:11] offset:{D['QL']}")
    QO = 16; KV = [QO+8*QT, QO+8*QT+16]; SS = [KV[1]+16, KV[1]+32]; PP = SS[1]+16; O = PP + 8; MX = O + 16*QT
    assert MX + QT + 2 <= 256
    k(f"s_lshl_b32 s65, s{S_WAVE}, 15"); k(f"s_add_u32 s66, s65, {L.VI[layer]}"); k(f"s_add_u32 s65, s65, {L.KI[layer]}")
    k("FLAGWAIT_KV")
    def kvload(b, sk, sv):
        k(f"buffer_load_dwordx4 {vr(KV[b],4)}, v1, {WS}, s{sk} offen sc1"); k(f"buffer_load_dwordx4 {vr(KV[b]+4,4)}, v1, {WS}, s{sk} offen offset:1024 sc1")
        k(f"buffer_load_dwordx4 {vr(KV[b]+8,4)}, v1, {WS}, s{sv} offen sc1"); k(f"buffer_load_dwordx4 {vr(KV[b]+12,4)}, v1, {WS}, s{sv} offen offset:1024 sc1")
        k(f"s_add_u32 s{sk}, s{sk}, 2048"); k(f"s_add_u32 s{sv}, s{sv}, 2048")
    k("s_mov_b32 s67, s65"); k("s_mov_b32 s68, s66")
    kvload(0, 67, 68)
    k(f"s_lshl_b32 s69, s{S_WAVE}, 2"); k(f"s_cmp_eq_u32 s{S_WAVE}, 3"); k("s_cselect_b32 s69, 11, s69")
    k(f"s_mul_i32 s62, s69, {28*1024}"); k(f"s_add_u32 s62, s62, {L.WBO}")
    k("s_waitcnt lgkmcnt(0)"); k("s_barrier")
    k("v_bfe_u32 v6, v0, 4, 1"); k("v_lshlrev_b32 v6, 10, v6"); k("v_lshl_add_u32 v6, v2, 6, v6"); k("v_lshrrev_b32 v7, 5, v0"); k("v_lshl_add_u32 v6, v7, 4, v6")
    for q in range(QT):
        for kk in range(2): k(f"ds_read_b128 {vr(QO+8*q+4*kk,4)}, v6 offset:{D['QL']+q*2048+kk*32}")
    def main_loop(bias):
        for i in range(8*QT): k(f"v_mov_b64 {vr(O+2*i,2)}, 0")
        k("s_mov_b32 s70, 8")
        lp = k.label("LK"); k.place(lp)
        for b in range(2):
            kvload(1-b, 67, 68)
            k("s_waitcnt vmcnt(4) lgkmcnt(0)")
            def smm(q):
                s = SS[q & 1]
                if bias:
                    for r in range(16): k(f"v_sub_f32 v{s+r}, 0, v{MX+q}")
                k(mf32(s, KV[b], QO+8*q, s if bias else None)); k(mf32(s, KV[b]+4, QO+8*q+4, s))
            smm(0)
            for q in range(QT):
                s = SS[q & 1]
                if q + 1 < QT: smm(q+1)
                for h in range(2):
                    for r in range(8*h, 8*h+8): k(f"v_exp_f32 v{s+r}, v{s+r}")
                    for j in range(4): k(f"v_cvt_pk_bf16_f32 v{PP+4*h+j}, v{s+8*h+2*j}, v{s+8*h+2*j+1}")
                    k(mf32(O+16*q, KV[b]+8+4*h, PP+4*h, O+16*q))
        k("s_sub_u32 s70, s70, 1"); k("s_cmp_lg_u32 s70, 0"); k(f"s_cbranch_scc1 {lp}")
    k("s_mov_b32 s78, 0")
    main_loop(False)
    redo = k.label("LBr"); slow = k.label("LBs"); fin = k.label("LBf")
    k.place(redo)
    k("s_waitcnt vmcnt(0)")
    wtile(0, 62); wtile(1, 62)
    k(f"s_mul_i32 s46, s{S_WAVE}, {QT*4096}"); k(f"s_add_u32 s46, s46, {D['RED']}"); k("v_add_u32 v7, s46, v1")
    for q in range(QT):
        for j in range(4): k(f"ds_write_b128 v7, {vr(O+16*q+4*j,4)} offset:{q*4096+j*1024}")
    k("s_waitcnt lgkmcnt(0)"); k("s_barrier")
    T = 16
    k("v_lshrrev_b32 v8, 5, v0")
    k("v_bfe_u32 v9, v0, 4, 1"); k("v_mul_u32_u24 v9, 912, v9"); k("v_mul_u32_u24 v10, 56, v2"); k("v_add_u32 v9, v9, v10"); k("v_lshl_add_u32 v9, v8, 3, v9")
    k(f"v_mov_b32 v11, {D['OL'] + 16*912}"); k("v_cmp_eq_u32 s[74:75], 1, v8")
    for rep in range((QT+3)//4):
        skip = k.label()
        if rep == 1:
            k(f"s_cmp_ge_u32 s{S_WAVE}, {QT-4}"); k(f"s_cbranch_scc1 {skip}")
        k(f"s_add_u32 s46, s{S_WAVE}, {4*rep}"); k("s_lshl_b32 s47, s46, 12"); k(f"s_add_u32 s47, s47, {D['RED']}"); k("v_add_u32 v7, s47, v1")
        for w in range(4):
            if w: k(f"v_add_u32 v7, {QT*4096}, v7")
            for j in range(4): k(f"ds_read_b128 {vr(T+16*w+4*j,4)}, v7 offset:{j*1024}")
        k("s_waitcnt lgkmcnt(0)")
        for i in range(8):
            k(f"v_pk_add_f32 {vr(T+2*i,2)}, {vr(T+2*i,2)}, {vr(T+16+2*i,2)}"); k(f"v_pk_add_f32 {vr(T+32+2*i,2)}, {vr(T+32+2*i,2)}, {vr(T+48+2*i,2)}")
        for i in range(8): k(f"v_pk_add_f32 {vr(T+2*i,2)}, {vr(T+2*i,2)}, {vr(T+32+2*i,2)}")
        k(f"v_mov_b32 v12, v{T+12}"); k(f"v_mov_b32 v13, v{T+12}")
        k("v_permlane32_swap_b32 v12, v13")
        k(f"v_cmp_nle_f32 vcc, {hx(f2u(2.0**-60))}, v13"); k(f"v_mov_b32 v12, {hx(f2u(2.0**60))}")
        k("v_cmp_nle_f32 s[76:77], v13, v12"); k("s_or_b64 vcc, vcc, s[76:77]")
        ok = k.label()
        k(f"s_cbranch_vccz {ok}")
        k(f"v_mov_b32 v12, {D['FL']}"); k("v_mov_b32 v14, 1"); k("ds_write_b32 v12, v14")
        k.place(ok)
        k("v_rcp_f32 v13, v13")
        k("s_mul_i32 s47, s46, 1824"); k(f"s_add_u32 s47, s47, {D['OL']}"); k("v_add_u32 v10, s47, v9")
        for j in range(4):
            for r in range(4): k(f"v_mul_f32 v{T+4*j+r}, v{T+4*j+r}, v13")
            k(f"v_cvt_pk_bf16_f32 v{T+4*j}, v{T+4*j}, v{T+4*j+1}"); k(f"v_cvt_pk_bf16_f32 v{T+4*j+1}, v{T+4*j+2}, v{T+4*j+3}")
            if j == 3:
                k("v_add_u32 v10, 48, v10"); k("v_cndmask_b32 v10, v10, v11, s[74:75]")
                k(f"ds_write_b64 v10, {vr(T+12,2)}")
            else: k(f"ds_write_b64 v10, {vr(T+4*j,2)} offset:{16*j}")
        k.place(skip)
    k("s_waitcnt lgkmcnt(0)"); k("s_barrier")
    k(f"v_mov_b32 v12, {D['FL']}"); k("ds_read_b32 v12, v12")
    k(f"v_min_u32 v7, {R-1}, v2"); k("v_mul_u32_u24 v7, 912, v7"); k("v_lshl_add_u32 v7, v3, 4, v7")
    for ks in range(14): k(f"ds_read_b128 {vr(XB+4*ks,4)}, v7 offset:{D['OL']+ks*64}")
    k("s_waitcnt lgkmcnt(14)")
    k("v_readfirstlane_b32 s46, v12")
    k("s_andn2_b32 s46, s46, s78")
    k("s_cmp_eq_u32 s46, 1"); k(f"s_cbranch_scc1 {slow}")
    OUT = 72; XRS = 104
    k("v_mul_u32_u24 v8, 896, v4"); k("v_lshl_add_u32 v8, v3, 4, v8"); k("s_lshl_b32 s46, s69, 6"); k("v_add_u32 v8, s46, v8")
    k(f"s_mov_b32 s48, {L.XR[2*layer]}")
    k("s_waitcnt lgkmcnt(0)")
    for i in range(8):
        if i == 6:
            pass
        if i + 2 < 8:
            if i + 2 >= 6:
                k(f"s_cmp_ge_u32 s{S_WAVE}, 2"); k(f"s_cselect_b32 s71, {OOB}, s62"); wtile(i+2, 71)
            else: wtile(i+2, 62)
        if i == 5:
            for pp in range(4): k(f"buffer_load_dwordx4 {vr(XRS+4*pp,4)}, v8, {WS}, s48 offen offset:{pp*64} sc1")
        k(f"s_waitcnt vmcnt({[28,28,28,28,28,32,18,4][i]})")
        a = OUT + 4*i
        for ks in range(14): k(mf16(a, RING + ((i % 3)*14+ks)*4, XB+4*ks, None if ks == 0 else a))
    k("v_mov_b32 v9, 0x7fffffff"); k("v_cndmask_b32 v8, v9, v8, s[72:73]")
    k("s_lshl_b32 s46, s69, 10"); k("v_add_u32 v5, s46, v5"); k("v_cndmask_b32 v5, v9, v5, s[72:73]")
    k(f"s_lshl_b32 s46, s{S_WAVE}, 2"); k("v_lshlrev_b32 v11, 4, v2"); k("v_add_u32 v10, s46, v11")
    if last: srd(k, 8, P_OUT, L.XSZ)
    k(f"s_mov_b32 s48, {0 if last else L.XR[1]}"); k(f"s_mov_b32 s49, {L.XTA[1]}")
    k("s_waitcnt vmcnt(0)")
    def res_store(pp, q, r): k(f"buffer_store_dwordx4 {vr(r,4)}, v8, {'s[8:11]' if last else WS}, s48 offen offset:{pp*64}{'' if last else ' sc1'}")
    def xn_store(pp, q, r): k(f"buffer_store_dwordx4 {vr(r,4)}, v5, {WS}, s49 offen offset:{pp*1024} sc1")
    ln_epilogue(k, lambda pp, q, t: OUT + (2*pp+t)*4, 1, lambda pp, q: XRS+4*pp, 16, 24, 10, D['ST'], res_store, xn_store, None, last)
    k(f"s_branch {fin}")
    k.place(slow)
    k("s_waitcnt vmcnt(0) lgkmcnt(0)"); k("s_barrier")
    k("s_mov_b32 s78, 1")
    for q in range(QT):
        for kk in range(2): k(f"ds_read_b128 {vr(QO+8*q+4*kk,4)}, v6 offset:{D['QL']+q*2048+kk*32}")
    for q in range(QT): k(f"v_mov_b32 v{MX+q}, {NINF}")
    k("s_mov_b32 s67, s65"); k("s_mov_b32 s68, s66"); k("s_mov_b32 s70, 16")
    lm = k.label("LM"); k.place(lm)
    kvload(0, 67, 68)
    k("s_waitcnt vmcnt(0) lgkmcnt(0)")
    for q in range(QT):
        s = SS[0]
        k(mf32(s, KV[0], QO+8*q, None)); k(mf32(s, KV[0]+4, QO+8*q+4, s))
        for r in range(0, 16, 2): k(f"v_max3_f32 v{MX+q}, v{MX+q}, v{s+r}, v{s+r+1}")
    k("s_sub_u32 s70, s70, 1"); k("s_cmp_lg_u32 s70, 0"); k(f"s_cbranch_scc1 {lm}")
    k("v_and_b32 v7, 31, v0"); k("v_lshlrev_b32 v7, 2, v7"); k(f"s_lshl_b32 s46, s{S_WAVE}, 10"); k("v_add_u32 v12, s46, v7")
    for q in range(QT):
        k(f"v_mov_b32 v13, v{MX+q}"); k(f"v_permlane32_swap_b32 v{MX+q}, v13"); k(f"v_max_f32 v{MX+q}, v{MX+q}, v13")
        k(f"ds_write_b32 v12, v{MX+q} offset:{D['MXL']+q*128}")
    k("s_waitcnt lgkmcnt(0)"); k("s_barrier")
    for q in range(QT):
        for w in range(4): k(f"ds_read_b32 v{SS[0]+w}, v7 offset:{D['MXL']+w*1024+q*128}")
        k("s_waitcnt lgkmcnt(0)")
        k(f"v_max3_f32 v{MX+q}, v{SS[0]}, v{SS[0]+1}, v{SS[0]+2}"); k(f"v_max_f32 v{MX+q}, v{MX+q}, v{SS[0]+3}")
    k("s_mov_b32 s67, s65"); k("s_mov_b32 s68, s66")
    kvload(0, 67, 68)
    main_loop(True)
    k("GUARDED")
    k(f"s_branch {redo}")
    k.place(fin)

def gen_attnB(layer, R=8):
    k = K(f"attnb{layer}_kernel")
    prologue(k, (2048 + R - 1)//R)
    k("s_mov_b32 s60, s2")
    body_attnB(k, layer, R)
    k.lines = [l for l in k.lines if not (l.startswith("FLAGWAIT") or l.startswith("GUARDED"))]
    epilogue(k)
    return k
```

```python
from gen import *

TIMEOUT = 1 << 21
XNOU = 0
XACK = 0
XSLEEP = 0
XNOEXP = 0
XPOLL = 0
NB = 9
PFD = 2

DIAG = False
DBGOFF = 0xF000000
def stamp(k, i):
    if DIAG == 3: k(f"s_memrealtime s[{72+2*i}:{73+2*i}]")
    elif DIAG: k(f"s_memtime s[{72+2*i}:{73+2*i}]")
def stamp_acc(k, n):
    if not DIAG: return
    k("s_waitcnt lgkmcnt(0)")
    if DIAG == 3:
        for i in range(1, n): k(f"s_add_u32 s{87+i}, s{87+i}, s{72+2*i}")
        return
    for i in range(n-1):
        k(f"s_sub_u32 s71, s{72+2*(i+1)}, s{72+2*i}"); k(f"s_add_u32 s{88+i}, s{88+i}, s71")
T0 = 0
def stamp_init(k):
    if DIAG or T0:
        for i in range(8): k(f"s_mov_b32 s{88+i}, 0")
        k("s_memtime s[72:73]"); k("s_waitcnt lgkmcnt(0)"); k("s_sub_u32 s94, s72, s86"); k("s_mov_b32 s95, s72")
def stamp_out(k):
    if not (DIAG or T0): return
    k("s_memtime s[72:73]"); k("s_waitcnt lgkmcnt(0)"); k("s_sub_u32 s95, s72, s95")
    for i in range(8): k(f"v_mov_b32 v{16+i}, s{88+i}")
    k(f"s_lshl_b32 s46, s59, 2"); k(f"s_add_u32 s46, s46, s{S_WAVE}"); k("s_lshl_b32 s46, s46, 5"); k(f"s_add_u32 s46, s46, {DBGOFF}")
    k("v_mov_b32 v24, 0")
    k(f"buffer_store_dwordx4 v[16:19], v24, {WS}, s46 offen"); k(f"buffer_store_dwordx4 v[20:23], v24, {WS}, s46 offen offset:16")

def interleave(k, main, side):
    for i, m in enumerate(main):
        k(m)
        for s in side.get(i, []): k(s)

def poll_mem(k, s_addr, abort):
    lp = k.label("Lpm")
    k(f"s_mov_b32 s70, {TIMEOUT}")
    k.place(lp)
    k(f"buffer_load_dwordx4 v[44:47], v3, {WS}, s{s_addr} offen sc1")
    k(f"buffer_load_dwordx4 v[48:51], v4, {WS}, s{s_addr} offen sc1")
    k("s_sub_u32 s70, s70, 1")
    k(f"s_cbranch_scc1 {abort}")
    k("s_waitcnt vmcnt(0)")
    k("v_max3_u32 v52, v44, v45, v46")
    k("v_max3_u32 v53, v47, v48, v49")
    k("v_max3_u32 v52, v52, v50, v51")
    k("v_max_u32 v52, v52, v53")
    k("v_cmp_eq_u32 vcc, -1, v52")
    k(f"s_cbranch_vccnz {lp}")
    k("ds_write_b128 v3, v[44:47]")
    k("ds_write_b128 v4, v[48:51]")

def mem_common_setup(k):
    k("v_lshlrev_b32 v1, 4, v0")
    k("v_and_b32 v2, 8, v0")
    k("v_cmp_eq_u32 vcc, 0, v2")
    k("v_mov_b32 v2, 0xeeee")
    k("v_mov_b32 v3, 0x4444")
    k("v_cndmask_b32 v2, v2, v3, vcc")
    k(f"s_mul_i32 s46, s{S_WAVE}, {112*16}")
    k("v_add_u32 v3, s46, v1")
    k("v_add_u32 v4, 1024, v3")
    k(f"v_add_u32 v5, {1024-768}, v3")
    k("v_cmp_gt_u32 vcc, 48, v0")
    k("v_cndmask_b32 v4, v5, v4, vcc")

M = 16
SPW = 8*176
def gen_chain_A(k, layer, st, abort):
    TT = 8192; SP = TT + 4*3584
    def W(i, p):
        o = i*7 + p
        return vr(256 + 8*o, 8) if o < 32 else vr(120 + 8*(o-32), 8)
    ACC = [52, 56, 60]; CV = 114; TB = [64, 68]; XK = 72; MK = 100; SX0, SX1, SM = 44, 48, 116
    def xk(pair, t): return XK + (pair*2 + t)*4
    XS = XK + 24
    def loadx():
        for t in range(2):
            if t == 1: k(f"s_add_u32 s64, s62, {14*1024}")
            so = "s62" if t == 0 else "s64"
            for pr in range(3):
                k(f"buffer_load_dwordx4 {vr(xk(pr,t),4)}, v6, {WS}, {so} offen offset:{pr*1024}")
            k(f"buffer_load_dwordx2 {vr(XS+2*t,2)}, v14, {WS}, {so} offen")
        k(f"s_add_u32 s62, s62, {28*1024}")
    loop = k.label("LA")
    k(f"s_mov_b32 s61, {L.MEM[layer]}")
    k(f"s_mul_i32 s65, s60, 640"); k(f"s_add_u32 s65, s65, {L.PIM[layer]}")
    k(f"s_mov_b32 s62, {L.XTA[layer]}")
    loadx()
    k("s_mov_b32 s67, 63")
    for r in range(2): k(f"v_mov_b64 {vr(ACC[1]+2*r,2)}, 0")
    stamp_init(k)
    k.place(loop)
    stamp(k, 0)
    poll_mem(k, 61, abort)
    stamp(k, 1)
    k(f"s_add_u32 s61, s61, {L.MEMSZ}")
    for r in range(2): k(f"v_mov_b64 {vr(ACC[0]+2*r,2)}, 0")
    k("s_waitcnt lgkmcnt(0)")
    k("s_barrier")
    stamp(k, 2)
    for p in range(7): k(f"ds_read_b128 {vr(M+4*p,4)}, v1 offset:{p*1024}")
    k(f"ds_read2_b32 {vr(MK,2)}, v7 offset0:0 offset1:32"); k(f"ds_read2_b32 {vr(MK+2,2)}, v7 offset0:1 offset1:33")
    for i in range(7):
        a = ACC[i % 3]; z = ACC[(i+1) % 3]; pa = ACC[(i-1) % 3]
        main = [f"v_smfmac_f32_16x16x64_bf16 {vr(a,4)}, {vr(M+4*p,4)}, {W(i,p)}, v2" for p in range(7)]
        side = {}
        if i == 0:
            for p in range(7):
                main[p] = f"s_waitcnt lgkmcnt({8-p})\n" + main[p]
            side[1] = [f"ds_read2_b32 {vr(MK+4,2)}, v7 offset0:128 offset1:160"]
            main[2] = main[2].replace("lgkmcnt(6)", "lgkmcnt(7)")
            side[2] = [f"ds_read2_b32 {vr(MK+6,2)}, v7 offset0:129 offset1:161"]
            for p, n in ((3, 7), (4, 6), (5, 5), (6, 4)):
                main[p] = f"s_waitcnt lgkmcnt({n})\n" + main[p].split("\n")[1]
            side[6] = [f"ds_read2_b32 {vr(MK+8,2)}, v15 offset0:0 offset1:32"]
        else:
            j = i - 1
            side[2] = [f"v_cvt_pk_bf16_f32 v{CV}, v{pa}, v{pa+1}"]
            side[3] = [f"v_cvt_pk_bf16_f32 v{CV+1}, v{pa+2}, v{pa+3}"]
            tb = TB[(j >> 1) & 1] + 2*(j & 1)
            side[4] = [f"ds_write_b64 v8, {vr(CV,2)} offset:{j*512}"]
            side[5] = [f"ds_read_b64_tr_b16 {vr(tb,2)}, v9 offset:{j*512}"]
            side.setdefault(1, [])
            if i < 6:
                side[0] = [f"v_mov_b64 {vr(z,2)}, 0"]; side[1] = [f"v_mov_b64 {vr(z+2,2)}, 0"]
                if i == 1:
                    side[6] = [f"ds_read2_b32 {vr(MK+10,2)}, v15 offset0:1 offset1:33"]
                if i == 2:
                    side[6] = [f"ds_read2_b32 {vr(MK+12,2)}, v5 offset0:0 offset1:32"]
            if i == 3:
                side[2] = side[2] + ["s_waitcnt lgkmcnt(0)",
                    f"v_mfma_f32_16x16x32_bf16 {vr(SX0,4)}, {vr(xk(0,0),4)}, {vr(TB[0],4)}, 0",
                    f"v_mfma_f32_16x16x32_bf16 {vr(SX1,4)}, {vr(xk(0,1),4)}, {vr(TB[0],4)}, 0",
                    f"v_mfma_f32_16x16x32_bf16 {vr(SM,4)}, {vr(MK,4)}, {vr(TB[0],4)}, 0"]
        interleave(k, main, side)
    a = ACC[0]
    stamp(k, 3)
    k("s_waitcnt lgkmcnt(2)")
    k(f"v_mfma_f32_16x16x32_bf16 {vr(SX0,4)}, {vr(xk(1,0),4)}, {vr(TB[1],4)}, {vr(SX0,4)}")
    k(f"v_mfma_f32_16x16x32_bf16 {vr(SX1,4)}, {vr(xk(1,1),4)}, {vr(TB[1],4)}, {vr(SX1,4)}")
    k(f"v_cvt_pk_bf16_f32 v{CV}, v{a}, v{a+1}")
    k(f"v_cvt_pk_bf16_f32 v{CV+1}, v{a+2}, v{a+3}")
    k(f"v_mfma_f32_16x16x32_bf16 {vr(SM,4)}, {vr(MK+4,4)}, {vr(TB[1],4)}, {vr(SM,4)}")
    k(f"ds_write_b64 v8, {vr(CV,2)} offset:{6*512}")
    k(f"ds_read_b64_tr_b16 {vr(CV,2)}, v9 offset:{6*512}")
    k("s_waitcnt lgkmcnt(2)")
    k(f"v_mfma_f32_16x16x32_bf16 {vr(SX0,4)}, {vr(xk(2,0),4)}, {vr(TB[0],4)}, {vr(SX0,4)}")
    k(f"v_mfma_f32_16x16x32_bf16 {vr(SX1,4)}, {vr(xk(2,1),4)}, {vr(TB[0],4)}, {vr(SX1,4)}")
    k(f"v_mfma_f32_16x16x32_bf16 {vr(SM,4)}, {vr(MK+8,4)}, {vr(TB[0],4)}, {vr(SM,4)}")
    for r in range(2): k(f"v_mov_b64 {vr(ACC[1]+2*r,2)}, 0")
    k("s_waitcnt lgkmcnt(0)")
    k(f"v_mfma_f32_16x16x16_bf16 {vr(SX0,4)}, {vr(XS,2)}, {vr(CV,2)}, {vr(SX0,4)}")
    k(f"v_mfma_f32_16x16x16_bf16 {vr(SX1,4)}, {vr(XS+2,2)}, {vr(CV,2)}, {vr(SX1,4)}")
    k(f"v_mfma_f32_16x16x16_bf16 {vr(SM,4)}, {vr(MK+12,2)}, {vr(CV,2)}, {vr(SM,4)}")
    Y = TB[0]
    for r in range(4): k(f"v_add_f32_dpp v{Y+r}, v{SX0+r}, v{SX0+r} row_ror:8 row_mask:0xf bank_mask:0x3")
    for r in range(4): k(f"v_add_f32_dpp v{Y+r}, v{SX1+r}, v{SX1+r} row_ror:8 row_mask:0xf bank_mask:0xc")
    k(f"ds_write_b128 v10, {vr(Y,4)}")
    for r in range(4): k(f"v_add_f32_dpp v{Y+4}, v{SM+r}, v{SM+r} row_ror:8 row_mask:{'0x3' if r<2 else '0xc'} bank_mask:{'0xc' if r&1 else '0x3'}")
    k(f"ds_write_b32 v11, v{Y+4}")
    k("s_waitcnt lgkmcnt(0)")
    k("s_barrier")
    stamp(k, 4)
    R = 16
    for q in range(4): k(f"ds_read_b64 {vr(R+2*q,2)}, v12 offset:{q*SPW}")
    k("s_waitcnt lgkmcnt(2)"); k(f"v_pk_add_f32 {vr(R,2)}, {vr(R,2)}, {vr(R+2,2)}")
    k("s_waitcnt lgkmcnt(0)"); k(f"v_pk_add_f32 {vr(R+4,2)}, {vr(R+4,2)}, {vr(R+6,2)}")
    k(f"v_pk_add_f32 {vr(R,2)}, {vr(R,2)}, {vr(R+4,2)}")
    def allred32(v, t, op):
        for sh in (8, 4, 2, 1):
            k(f"{op}_dpp v{v}, v{v}, v{v} row_ror:{sh} row_mask:0xf bank_mask:0xf")
        k(f"v_mov_b32 v{t}, v{v}")
        k(f"v_permlane16_swap_b32 v{v}, v{t}")
        k(f"{op} v{v}, v{v}, v{t}")
    k(f"v_max_f32 v{R+2}, v{R}, v{R+1}")
    allred32(R+2, R+3, "v_max_f32")
    k(f"v_sub_f32 v{R}, v{R}, v{R+2}"); k(f"v_sub_f32 v{R+1}, v{R+1}, v{R+2}")
    k(f"v_exp_f32 v{R}, v{R}"); k(f"v_exp_f32 v{R+1}, v{R+1}")
    k(f"v_add_f32 v{R+2}, v{R}, v{R+1}")
    allred32(R+2, R+3, "v_add_f32")
    k(f"v_rcp_f32 v{R+2}, v{R+2}")
    k(f"v_mul_f32 v{R}, v{R}, v{R+2}"); k(f"v_mul_f32 v{R+1}, v{R+1}, v{R+2}")
    k(f"v_cvt_pk_bf16_f32 v{R}, v{R}, v{R+1}")
    k(f"v_min_u32 v{R}, -2, v{R}")
    k(f"buffer_store_dword v{R}, v13, {WS}, s65 offen {st}")
    stamp(k, 5)
    if XACK:
        k("s_waitcnt vmcnt(0)"); stamp(k, 6)
    k("s_barrier")
    loadx()
    if not XACK: stamp(k, 6)
    stamp_acc(k, 7)
    k(f"s_add_u32 s65, s65, {L.PSZ}")
    k("s_sub_u32 s67, s67, 1"); k("s_cmp_lg_u32 s67, 0"); k(f"s_cbranch_scc1 {loop}")
    stamp_out(k)

def setup_A(k):
    TT = 8192; SP = TT + 4*3584
    mem_common_setup(k)
    k(f"s_lshr_b32 s46, s{S_WAVE}, 1"); k("s_mul_i32 s46, s46, 7")
    k(f"s_and_b32 s69, s{S_WAVE}, 1")
    k("s_lshl_b32 s66, s69, 2"); k("s_add_u32 s66, s66, s46")
    k("s_add_u32 s68, s46, 3")
    k(f"s_mul_i32 s47, s60, 28"); k("s_lshl_b32 s48, s66, 1"); k("s_add_u32 s48, s48, s47")
    k(f"s_mul_i32 s48, s48, {14*1024}"); k(f"s_add_u32 s48, s48, {L.WQ}")
    k("s_lshl_b32 s49, s68, 1"); k("s_add_u32 s49, s49, s69"); k("s_add_u32 s49, s49, s47")
    k(f"s_mul_i32 s49, s49, {14*1024}"); k(f"s_add_u32 s49, s49, {L.WQ}")
    for n in range(98):
        reg = 256 + 4*n if n < 64 else 120 + 4*(n-64)
        if n == 84: k("s_mov_b32 s48, s49")
        nn = n if n < 84 else n - 84
        if nn % 4 == 0 and nn: k("s_add_u32 s48, s48, 4096")
        k(f"buffer_load_dwordx4 {vr(reg,4)}, v1, {WS}, s48 offen offset:{(nn%4)*1024}")
    k("v_and_b32 v16, 15, v0")
    k("v_lshrrev_b32 v17, 4, v0")
    k("v_bfe_u32 v18, v0, 1, 1"); k("v_lshlrev_b32 v18, 2, v18")
    k("v_and_b32 v19, 1, v0"); k("v_lshl_add_u32 v18, v19, 1, v18")
    k("v_bfe_u32 v19, v0, 2, 1"); k("v_add_u32 v18, v18, v19")
    k("v_lshlrev_b32 v18, 4, v18")
    k("v_lshrrev_b32 v19, 1, v17"); k("v_lshl_add_u32 v18, v19, 8, v18")
    k("v_and_b32 v19, 1, v17"); k("v_lshl_add_u32 v18, v19, 3, v18")
    k("s_lshl_b32 s46, s66, 9"); k("v_add_u32 v7, s46, v18")
    k("v_add_u32 v15, 1024, v7")
    k("s_lshl_b32 s46, s68, 9"); k("s_lshl_b32 s47, s69, 2"); k("s_add_u32 s46, s46, s47")
    k("v_add_u32 v5, s46, v18")
    k(f"s_mul_i32 s46, s{S_WAVE}, 3584"); k(f"s_add_u32 s46, s46, {TT}")
    k("v_lshlrev_b32 v8, 5, v16"); k("v_lshl_add_u32 v8, v17, 3, v8"); k("v_add_u32 v8, s46, v8")
    k("v_lshlrev_b32 v9, 3, v0"); k("v_add_u32 v9, s46, v9")
    k(f"s_mul_i32 s46, s{S_WAVE}, {SPW}"); k(f"s_add_u32 s46, s46, {SP}")
    k("v_and_b32 v19, 7, v0"); k("v_mul_u32_u24 v18, 176, v19"); k("v_add_u32 v18, s46, v18")
    k("v_lshrrev_b32 v19, 3, v16")
    k("v_lshl_add_u32 v10, v17, 5, v18"); k("v_lshl_add_u32 v10, v19, 4, v10")
    k("v_and_b32 v20, 1, v17"); k("v_lshl_add_u32 v11, v20, 4, v18")
    k("v_lshrrev_b32 v20, 1, v17"); k("v_lshl_add_u32 v11, v20, 3, v11")
    k("v_lshl_add_u32 v11, v19, 2, v11"); k("v_add_u32 v11, 128, v11")
    k(f"v_mov_b32 v20, {hx(f2u(-1e30))}"); k("v_mov_b32 v21, v20")
    k("ds_write_b64 v18, v[20:21] offset:160")
    k("v_and_b32 v19, 31, v0"); k("v_lshrrev_b32 v20, 5, v0")
    k(f"s_lshl_b32 s46, s{S_WAVE}, 1"); k("v_add_u32 v20, s46, v20")
    k("v_lshlrev_b32 v21, 3, v19"); k("v_cmp_gt_u32 vcc, 20, v19"); k("v_mov_b32 v22, 160")
    k("v_cndmask_b32 v21, v22, v21, vcc")
    k("v_mul_u32_u24 v22, 176, v20"); k("v_add_u32 v12, v21, v22"); k(f"v_add_u32 v12, {SP}, v12")
    k("v_lshrrev_b32 v21, 2, v19"); k("v_lshl_add_u32 v21, v21, 3, v20"); k("v_lshlrev_b32 v21, 4, v21")
    k("v_and_b32 v22, 3, v19"); k("v_lshl_add_u32 v21, v22, 2, v21")
    k("v_mov_b32 v22, 0x7fffffff"); k("v_cndmask_b32 v13, v22, v21, vcc")
    k("s_lshl_b32 s46, s68, 10"); k("s_lshl_b32 s47, s69, 3"); k("s_add_u32 s46, s46, s47")
    k("v_add_u32 v14, s46, v1")
    k("s_lshl_b32 s46, s66, 10"); k("v_add_u32 v6, s46, v1")
    k("s_waitcnt vmcnt(0) lgkmcnt(0)")

B_TB = 8192
B_OUT = B_TB + 8192
B_LW = B_OUT + 8192
CHAIN_LDS = B_LW + 4*28*1024

def setup_B(k):
    mem_common_setup(k)
    k(f"s_lshl_b32 s46, s{S_WAVE}, 2"); k("s_mul_i32 s46, s46, 28"); k("s_lshl_b32 s47, s60, 1"); k("s_add_u32 s46, s46, s47")
    k(f"s_mul_i32 s46, s46, {14*1024}"); k(f"s_add_u32 s46, s46, {L.WV}")
    k(f"s_mul_i32 s47, s{S_WAVE}, {28*1024}"); k(f"s_add_u32 s47, s47, {B_LW}")
    k("v_add_u32 v15, s47, v1")
    for hh in (3, 0, 1, 2):
        k(f"s_add_u32 s48, s46, {hh*28*14*1024}")
        for n in range(28):
            if hh == 3: reg = 16 + 4*n
            else:
                q = hh*28 + n
                reg = 256 + 4*q if q < 64 else 176 + 4*(q-64)
            if n % 4 == 0 and n: k("s_add_u32 s48, s48, 4096")
            k(f"buffer_load_dwordx4 {vr(reg,4)}, v1, {WS}, s48 offen offset:{(n%4)*1024}")
        if hh == 0:
            k("s_waitcnt vmcnt(28)")
            for n in range(28): k(f"ds_write_b128 v15, {vr(16+4*n,4)} offset:{n*1024}")
    k("s_waitcnt lgkmcnt(0)")
    k("v_and_b32 v16, 15, v0"); k("v_lshrrev_b32 v17, 4, v0"); k("v_and_b32 v18, 7, v0")
    k(f"s_mul_i32 s46, s{S_WAVE}, 2560")
    k("v_lshl_add_u32 v7, v17, 3, v18"); k("v_lshlrev_b32 v7, 4, v7"); k("v_add_u32 v7, s46, v7")
    k("v_lshrrev_b32 v19, 3, v16"); k("v_mul_u32_u24 v19, 640, v19"); k("v_add_u32 v7, v7, v19")
    k("v_mul_u32_u24 v8, 640, v17"); k("v_lshl_add_u32 v8, v18, 4, v8"); k("v_add_u32 v8, s46, v8"); k("v_add_u32 v8, 512, v8")
    k(f"v_mul_u32_u24 v19, {28*1024}, v17"); k("v_lshl_add_u32 v19, v16, 7, v19"); k("v_mov_b32 v20, 0x7fffffff")
    k(f"v_cmp_gt_u32 vcc, {NB}, v16"); k("v_cndmask_b32 v5, v20, v19, vcc")
    k(f"s_lshl_b32 s46, s{S_WAVE}, 11"); k(f"s_add_u32 s47, s46, {B_TB}")
    k("v_lshlrev_b32 v9, 4, v16"); k("v_lshl_add_u32 v9, v17, 2, v9"); k("v_add_u32 v9, s47, v9")
    k("v_add_u32 v10, s47, v1")
    k(f"s_lshl_b32 s46, s{S_WAVE}, 10"); k(f"s_add_u32 s47, s46, {B_OUT}"); k("v_add_u32 v11, s47, v1")
    k("v_bfe_u32 v19, v0, 2, 3"); k("v_lshrrev_b32 v20, 5, v0"); k("v_bfe_u32 v21, v0, 1, 1"); k("v_and_b32 v22, 1, v0")
    k(f"s_lshl_b32 s46, s{S_WAVE}, 1"); k("s_and_b32 s46, s46, 2"); k("v_add_u32 v21, s46, v21")
    k("v_lshl_add_u32 v12, v21, 4, v19"); k("v_lshlrev_b32 v12, 4, v12"); k("v_lshl_add_u32 v12, v22, 7, v12")
    k("v_lshl_add_u32 v12, v20, 3, v12"); k(f"v_add_u32 v12, {B_OUT}, v12")
    k("s_lshl_b32 s47, s60, 9"); k("s_lshl_b32 s48, s46, 7"); k("s_add_u32 s48, s48, s47")
    k("v_lshlrev_b32 v13, 2, v0"); k("v_add_u32 v13, s48, v13")
    k("v_lshlrev_b32 v14, 7, v21"); k("v_lshl_add_u32 v14, v19, 4, v14"); k("v_lshl_add_u32 v14, v22, 3, v14")
    k("v_lshl_add_u32 v14, v20, 2, v14"); k("v_add_u32 v14, s47, v14")
    k("s_waitcnt vmcnt(0)")

def gen_chain_B(k, layer, st, abort):
    ACC = [52, 56, 60]; FT = 64; HOLD = 67; ZA = 68; U = 76; P = 108; LW = 108; DUM = 66
    def W(hh, t, p):
        o = (hh*2 + t)*7 + p
        return vr(256 + 8*o, 8) if o < 32 else vr(176 + 8*(o-32), 8)
    loop = k.label("LB"); done = k.label("LBd"); first = k.label("LBf"); nofin = k.label("LBn")
    k(f"s_mov_b32 s61, {L.MEM[layer]}")
    k(f"s_mov_b32 s65, {L.PIM[layer]}")
    k(f"s_lshl_b32 s62, s{S_WAVE}, 2"); k("s_mul_i32 s62, s62, 28"); k("s_lshl_b32 s46, s60, 1"); k("s_add_u32 s62, s62, s46")
    k("s_lshl_b32 s62, s62, 10"); k(f"s_add_u32 s62, s62, {L.UU[layer]}")
    k(f"s_mul_i32 s63, s{S_WAVE}, 28"); k("s_add_u32 s63, s63, s46"); k("s_lshl_b32 s63, s63, 10"); k(f"s_add_u32 s63, s63, {L.VM[layer]}")
    k(f"s_mov_b32 s66, {L.MEMN[layer]}")
    k("s_mov_b32 s67, 0")
    stamp_init(k)
    k.place(loop)
    stamp(k, 0)
    poll_mem(k, 61, abort)
    stamp(k, 1)
    k(f"s_add_u32 s61, s61, {L.MEMSZ}")
    for r in range(2): k(f"v_mov_b64 {vr(ACC[0]+2*r,2)}, 0")
    k("s_waitcnt lgkmcnt(0)")
    k("s_barrier")
    stamp(k, 2)
    for p in range(7): k(f"ds_read_b128 {vr(M+4*p,4)}, v1 offset:{p*1024}")
    if NB:
        k(f"s_add_u32 s64, s62, {16*28*1024}")
        k(f"buffer_load_dword v{DUM}, v5, {WS}, s64 offen")
    for r in range(2): k(f"v_mov_b64 {vr(ACC[1]+2*r,2)}, 0")
    k("s_cmp_eq_u32 s67, 0"); k(f"s_cbranch_scc1 {first}")
    if XNOEXP: k(f"s_branch {first}")
    k(f"buffer_store_dwordx4 {vr(ZA,4)}, v1, {WS}, s63 offen sc1")
    k(f"buffer_store_dwordx4 {vr(ZA+4,4)}, v1, {WS}, s63 offen offset:1024 sc1")
    k(f"s_add_u32 s63, s63, {L.VMSZ}")
    k(f"s_cmp_ge_u32 s{S_WAVE}, 2"); k(f"s_cbranch_scc1 {first}")
    k(f"buffer_store_dword v{HOLD}, v14, {WS}, s66 offen sc1")
    k.place(first)
    k(f"s_add_u32 s66, s66, {L.MEMSZ}")
    uload = []
    for hh in range(4):
        for t in range(2):
            pre = [f"s_add_u32 s64, s62, {hh*28*1024}"] if (hh and t == 0) else []
            uload.append(pre + [f"buffer_load_dwordx4 {vr(U+(hh*2+t)*4,4)}, v1, {WS}, {'s64' if hh else 's62'} offen offset:{t*1024}"])
    order = [(0,0),(0,1),(1,0),(3,0),(1,1),(2,0),(2,1),(3,1)]
    def fold(j):
        pa = ACC[j % 3]; hh, t = order[j]
        return [[f"v_permlane32_swap_b32 v{pa}, v{pa+1}"], [f"v_permlane32_swap_b32 v{pa+2}, v{pa+3}"],
                [f"v_add_f32 v{FT}, v{pa}, v{pa+1}", f"v_add_f32 v{FT+1}, v{pa+2}, v{pa+3}"],
                [f"v_cvt_pk_bf16_f32 v{FT}, v{FT}, v{FT+1}"], [f"ds_write_b32 v9, v{FT} offset:{t*1024+hh*256}"]]
    lw = [[f"ds_read_b128 {vr(LW+4*(n%14),4)}, v15 offset:{n*1024}" for n in range(14*u, 14*u+14)] for u in range(2)]
    k("s_waitcnt lgkmcnt(0)")
    for i, (hh, t) in enumerate(order):
        a = ACC[i % 3]; z = ACC[(i+1) % 3]
        if hh == 3: k("s_waitcnt lgkmcnt(0)")
        main = [f"v_smfmac_f32_16x16x64_bf16 {vr(a,4)}, {vr(M+4*p,4)}, {W(hh,t,p) if hh<3 else vr(LW+8*p,8)}, v2" for p in range(7)]
        side = {p: [] for p in range(7)}
        if i >= 1:
            f = fold(i-1)
            for q in range(5): side[2+q] += f[q]
            if i < 7:
                side[0] += [f"v_mov_b64 {vr(z,2)}, 0"]
                side[1] += [f"v_mov_b64 {vr(z+2,2)}, 0"]
        if i == 0:
            for p in range(7): side[p] += [lw[0][p]]
        if i in (1, 2):
            for q, p in enumerate((0, 1, 2, 3)):
                n = 7 + (i-1)*4 + q
                if n < 14: side[p] += [lw[0][n]]
        if i in (4, 5, 6):
            for q, p in enumerate((0, 1, 2, 3, 5)):
                n = (i-4)*5 + q
                if n < 14: side[p] += [lw[1][n]]
        if i in (1, 2, 3, 4) and not XNOU:
            side[5] += uload[2*(i-1)]; side[6] += uload[2*(i-1)+1]
        if DIAG == 2 and i == 0: stamp(k, 3)
        interleave(k, main, side)
        if DIAG == 2 and i == 1: stamp(k, 4)
        if DIAG == 2 and i == 3: stamp(k, 5)
    k(f"s_add_u32 s62, s62, {16*28*1024}")
    for f in fold(7):
        for x in f: k(x)
    k(f"ds_read_b128 {vr(ZA,4)}, v10"); k(f"ds_read_b128 {vr(ZA+4,4)}, v10 offset:1024")
    stamp(k, 3 if DIAG != 2 else 6)
    k("s_cmp_eq_u32 s67, 63"); k(f"s_cbranch_scc1 {done}")
    lp = k.label("Lpp"); got = [k.label("Lpg"), k.label("Lpg")]; join = k.label("Lpj")
    PS = [P, P+12]; OUT = P + 24
    def issue(q):
        k(f"buffer_load_dwordx4 {vr(PS[q],4)}, v7, {WS}, s65 offen sc1")
        k(f"buffer_load_dwordx4 {vr(PS[q]+4,4)}, v7, {WS}, s65 offen offset:1280 sc1")
        k(f"buffer_load_dwordx4 {vr(PS[q]+8,4)}, v8, {WS}, s65 offen sc1")
    k(f"s_mov_b32 s70, {TIMEOUT}")
    k("s_waitcnt lgkmcnt(0)")
    if XSLEEP: k(f"s_sleep {XSLEEP}")
    issue(0)
    k.place(lp)
    for q in range(2):
        issue(1-q)
        if q == 0:
            k("s_sub_u32 s70, s70, 1"); k(f"s_cbranch_scc1 {abort}")
        k("s_waitcnt vmcnt(3)")
        k(f"v_max3_u32 v{FT}, v{PS[q]}, v{PS[q]+4}, v{PS[q]+8}")
        k(f"v_cmp_eq_u32 vcc, -1, v{FT}")
        if q == 0: k(f"s_cbranch_vccz {got[0]}")
        else: k(f"s_cbranch_vccnz {lp}")
    for q in (1, 0):
        k.place(got[q])
        if DIAG != 2: stamp(k, 4)
        Q = PS[q]
        rest = [Q+i for i in range(12) if i % 4]
        chk = [f"v_max3_u32 v{FT}, v{rest[0]}, v{rest[1]}, v{rest[2]}"] + [f"v_max3_u32 v{FT}, v{FT}, v{rest[3+2*i]}, v{rest[4+2*i]}" for i in range(3)]
        main = []
        for hh in (0, 1, 2, 3):
            for t in range(2):
                o = OUT + 8*(hh & 1) + 4*t
                main.append(f"v_mfma_f32_16x16x32_bf16 {vr(o,4)}, {vr(U+(hh*2+t)*4,4)}, {vr(Q+4*(hh>>1),4)}, {'0' if hh<2 else vr(o,4)}")
            if hh == 1:
                main.append(f"v_mfma_f32_16x16x32_bf16 {vr(OUT,4)}, {vr(ZA,4)}, {vr(Q+8,4)}, {vr(OUT,4)}")
                main.append(f"v_mfma_f32_16x16x32_bf16 {vr(OUT+4,4)}, {vr(ZA+4,4)}, {vr(Q+8,4)}, {vr(OUT+4,4)}")
        side = {i: [chk[i]] for i in range(4)}
        side[4] = [f"v_cmp_eq_u32 vcc, -1, v{FT}"]
        interleave(k, main, side)
        k(f"s_cbranch_vccnz {lp if q == 1 else lp + 'r'}")
        if q == 1: k(f"s_branch {join}")
    k.place(join)
    Y = ACC[0]
    for r in range(4): k(f"v_add_f32_dpp v{Y+r}, v{OUT+8+r}, v{OUT+r} row_ror:8 row_mask:0xf bank_mask:0x3")
    for r in range(4): k(f"v_add_f32_dpp v{Y+r}, v{OUT+4+r}, v{OUT+12+r} row_ror:8 row_mask:0xf bank_mask:0xc")
    k(f"ds_write_b128 v11, {vr(Y,4)}")
    k(f"s_add_u32 s65, s65, {L.PSZ}")
    k("s_add_u32 s67, s67, 1")
    k("s_waitcnt lgkmcnt(0)")
    k("s_barrier")
    if DIAG != 2: stamp(k, 5)
    k(f"s_cmp_ge_u32 s{S_WAVE}, 2"); k(f"s_cbranch_scc1 {nofin}")
    for q in range(4): k(f"ds_read_b64 {vr(U+2*q,2)}, v12 offset:{q*1024}")
    k("s_waitcnt lgkmcnt(2)"); k(f"v_pk_add_f32 {vr(U,2)}, {vr(U,2)}, {vr(U+2,2)}")
    k("s_waitcnt lgkmcnt(0)"); k(f"v_pk_add_f32 {vr(U+4,2)}, {vr(U+4,2)}, {vr(U+6,2)}")
    k(f"v_pk_add_f32 {vr(U,2)}, {vr(U,2)}, {vr(U+4,2)}")
    k(f"v_cvt_pk_bf16_f32 v{HOLD}, v{U}, v{U+1}")
    k(f"v_min_u32 v{U}, -2, v{HOLD}")
    k(f"buffer_store_dword v{U}, v13, {WS}, s61 offen {st}")
    if DIAG != 2: stamp(k, 6)
    stamp_acc(k, 7)
    k.place(nofin)
    k("s_barrier")
    k(f"s_branch {loop}")
    k.place(lp + "r")
    issue(0)
    k(f"s_branch {lp}")
    k.place(done)
    k("s_waitcnt lgkmcnt(0)")
    k(f"buffer_store_dwordx4 {vr(ZA,4)}, v1, {WS}, s63 offen sc1")
    k(f"buffer_store_dwordx4 {vr(ZA+4,4)}, v1, {WS}, s63 offen offset:1024 sc1")
    stamp_out(k)

def gen_chain_P(k, layer, abort):
    k(f"s_lshl_b32 s46, s60, 2"); k(f"s_add_u32 s46, s46, s{S_WAVE}")
    k("v_lshlrev_b32 v1, 7, v0"); k("v_mov_b32 v20, 0x7fffffff")
    k(f"s_mul_i32 s47, s46, {448*128}"); k("v_add_u32 v2, s47, v1")
    k("v_and_b32 v3, 15, v0"); k(f"v_cmp_le_u32 vcc, {NB}, v3"); k("v_cndmask_b32 v3, v20, v2, vcc")
    k(f"s_mul_i32 s47, s46, {28*128}"); k("v_add_u32 v4, s47, v1"); k("v_cmp_gt_u32 vcc, 28, v0"); k("v_cndmask_b32 v4, v20, v4, vcc")
    k(f"s_mul_i32 s47, s46, {7*128}"); k("v_add_u32 v5, s47, v1"); k("v_cmp_gt_u32 vcc, 7, v0"); k("v_cndmask_b32 v5, v20, v5, vcc")
    k(f"s_mul_i32 s47, s46, {10*128}"); k("v_add_u32 v6, s47, v1"); k("v_cmp_gt_u32 vcc, 10, v0"); k("v_cndmask_b32 v6, v20, v6, vcc")
    k("v_mov_b32 v7, 0")
    k(f"s_mov_b32 s62, {L.UU[layer]}"); k(f"s_mov_b32 s63, {L.XTA[layer]}")
    k(f"s_mov_b32 s64, {L.MEM[layer]+L.MEMSZ}"); k(f"s_mov_b32 s65, {L.PIM[layer]}")
    k(f"s_mov_b32 s61, {L.MEM[layer]}")
    def touch(v, mid=None):
        k(f"buffer_load_dword v8, v5, {WS}, s64 offen"); k(f"buffer_load_dword v8, v6, {WS}, s65 offen")
        k(f"buffer_load_dword v8, v4, {WS}, s63 offen")
        for j in range(7):
            if j == 3 and mid: mid()
            k(f"s_add_u32 s66, s62, {j*8192}")
            k(f"buffer_load_dword v8, v{v}, {WS}, s66 offen")
        k(f"s_add_u32 s62, s62, {16*28*1024}"); k(f"s_add_u32 s63, s63, {28*1024}")
        k(f"s_add_u32 s64, s64, {L.MEMSZ}"); k(f"s_add_u32 s65, s65, {L.PSZ}")
    def probe(): k(f"buffer_load_dword v9, v7, {WS}, s61 offen sc1")
    touch(2)
    for i in range(1, PFD): touch(3)
    k(f"s_mov_b32 s67, {63-PFD}")
    k(f"s_add_u32 s61, s61, {L.MEMSZ}")
    loop = k.label("LP"); lp = k.label("LPp"); go = k.label("LPg")
    k.place(loop)
    touch(3, probe)
    k("s_sub_u32 s67, s67, 1"); k("s_cmp_eq_u32 s67, 0"); k(f"s_cbranch_scc1 {abort}")
    k("s_waitcnt vmcnt(4)")
    k("v_cmp_eq_u32 vcc, -1, v9"); k(f"s_cbranch_vccz {go}")
    k(f"s_mov_b32 s70, {TIMEOUT}")
    k.place(lp)
    probe()
    k("s_sub_u32 s70, s70, 1"); k(f"s_cbranch_scc1 {abort}")
    k("s_waitcnt vmcnt(0)")
    k("v_cmp_eq_u32 vcc, -1, v9"); k(f"s_cbranch_vccnz {lp}")
    k.place(go)
    k(f"s_add_u32 s61, s61, {L.MEMSZ}")
    k(f"s_branch {loop}")

def gen_chain(layer):
    k = K(f"chain{layer}_kernel")
    if DIAG or T0: k("s_memtime s[86:87]")
    prologue(k, 256)
    ex = f"Lexit_{k.name}"
    k("s_and_b32 s46, s2, 7"); k("s_cmp_lg_u32 s46, 0"); k(f"s_cbranch_scc1 {ex}")
    lP = k.label("LroleP")
    k("s_lshr_b32 s59, s2, 3"); k("s_cmp_ge_u32 s59, 30"); k(f"s_cbranch_scc1 {lP}")
    srd(k, 8, P_DBG, 256)
    k("s_getreg_b32 s58, hwreg(HW_REG_XCC_ID)"); k("s_and_b32 s58, s58, 15"); k("s_add_u32 s58, s58, 1")
    k("v_mov_b32 v2, s58"); k("s_lshl_b32 s46, s59, 2"); k("v_mov_b32 v3, s46")
    k("buffer_store_dword v2, v3, s[8:11], 0 offen sc1")
    lB = k.label("LroleB")
    def agree(slow):
        lp = k.label("Lx")
        k("v_lshlrev_b32 v16, 2, v0"); k("v_min_u32 v16, 116, v16")
        k(f"s_mov_b32 s70, {TIMEOUT}")
        k.place(lp)
        k("buffer_load_dword v17, v16, s[8:11], 0 offen sc1")
        k("s_sub_u32 s70, s70, 1"); k(f"s_cbranch_scc1 {ex}")
        k("s_waitcnt vmcnt(0)")
        k("v_cmp_eq_u32 vcc, 0, v17"); k(f"s_cbranch_vccnz {lp}")
        k("v_cmp_ne_u32 vcc, s58, v17"); k(f"s_cbranch_vccnz {slow}")
    k("s_cmp_ge_u32 s59, 16"); k(f"s_cbranch_scc1 {lB}")
    k("s_mov_b32 s60, s59")
    setup_A(k)
    sl = k.label("LslowA"); agree(sl)
    gen_chain_A(k, layer, "", ex); k("s_endpgm")
    k.place(sl); gen_chain_A(k, layer, "sc1", ex); k("s_endpgm")
    k.place(lB)
    k("s_sub_u32 s60, s59, 16")
    setup_B(k)
    sl = k.label("LslowB"); agree(sl)
    gen_chain_B(k, layer, "", ex); k("s_endpgm")
    k.place(sl); gen_chain_B(k, layer, "sc1", ex); k("s_endpgm")
    k.place(lP)
    k("s_sub_u32 s60, s59, 30")
    gen_chain_P(k, layer, ex)
    epilogue(k)
    return k
```

```python
import struct, sys
from asmlib import *
import layout as L

def f2u(x): return struct.unpack("<I", struct.pack("<f", x))[0]
def hx(x): return hex(x & 0xffffffff)

S_WS = 4
P_X, P_MEM0, P_WQ, P_WK, P_WV, P_WO = 16, 18, 20, 22, 24, 26
P_BQ, P_BK, P_BV, P_BO = 32, 34, 36, 38
P_OUT, P_DBG, P_WS = 40, 42, 44
S_WAVE = 3

def srd(k, d, base, nbytes):
    k(f"s_mov_b32 s{d}, s{base}")
    k(f"s_and_b32 s{d+1}, s{base+1}, 0xffff")
    k(f"s_mov_b32 s{d+2}, {hx(nbytes)}")
    k(f"s_mov_b32 s{d+3}, 0x20000")

def prologue(k, nwg):
    k(f"s_cmp_ge_u32 s2, {nwg}")
    k(f"s_cbranch_scc1 Lexit_{k.name}")
    k("s_load_dwordx16 s[16:31], s[0:1], 0")
    k("s_load_dwordx8 s[32:39], s[0:1], 64")
    k("s_load_dwordx4 s[40:43], s[0:1], 96")
    k("s_load_dwordx2 s[44:45], s[0:1], 112")
    k("v_lshrrev_b32 v1, 6, v0")
    k(f"v_readfirstlane_b32 s{S_WAVE}, v1")
    k("v_and_b32 v0, 63, v0")
    k("s_waitcnt lgkmcnt(0)")
    srd(k, S_WS, P_WS, L.WS_BYTES)

def epilogue(k):
    k.place(f"Lexit_{k.name}")
    k("s_endpgm")

WS = "s[4:7]"

def xreduce_g(k, v, tmp, op):
    k(f"v_mov_b32 v{tmp}, v{v}")
    k(f"v_permlane16_swap_b32 v{v}, v{tmp}")
    k(f"{op} v{v}, v{v}, v{tmp}")
    k(f"v_mov_b32 v{tmp}, v{v}")
    k(f"v_permlane32_swap_b32 v{v}, v{tmp}")
    k(f"{op} v{v}, v{v}, v{tmp}")

def div7(k, sq, srem, sx):
    k(f"s_mul_i32 s{sq}, s{sx}, 9363")
    k(f"s_lshr_b32 s{sq}, s{sq}, 16")
    k(f"s_mul_i32 s{srem}, s{sq}, 7")
    k(f"s_sub_u32 s{srem}, s{sx}, s{srem}")

def gen_prep():
    k = K("prep_kernel")
    prologue(k, 256)
    k("v_and_b32 v2, 15, v0")
    k("v_lshrrev_b32 v3, 4, v0")
    k("v_lshrrev_b32 v4, 2, v2")
    k("v_lshlrev_b32 v4, 3, v4")
    k("v_and_b32 v5, 3, v2")
    k("v_add_u32 v4, v4, v5")
    k("v_lshlrev_b32 v6, 4, v0")
    k(f"s_lshl_b32 s46, s2, 2")
    k(f"s_add_u32 s46, s46, s{S_WAVE}")
    lab_no = k.label(); lq = k.label(); lo = k.label(); lk = k.label(); lv = k.label(); lj = k.label()
    k("s_mov_b32 s60, 0")
    srd(k, 8, P_BQ, 448*896)
    k("s_mov_b32 s50, 896")
    k("s_mov_b32 s51, 0")
    k("s_mov_b32 s52, 0")
    k("v_mov_b32 v7, 0")
    k("s_cmp_ge_u32 s46, 840")
    k(f"s_cbranch_scc1 {lab_no}")
    k("s_mov_b32 s60, 1")
    k("s_cmp_ge_u32 s46, 812"); k(f"s_cbranch_scc1 {lv}")
    k("s_cmp_ge_u32 s46, 784"); k(f"s_cbranch_scc1 {lk}")
    k("s_cmp_ge_u32 s46, 392"); k(f"s_cbranch_scc1 {lo}")
    def blk(base, n):
        k(f"s_sub_u32 s47, s46, {base}")
        k("s_mul_i32 s48, s47, 4682")
        k("s_lshr_b32 s48, s48, 16")
        k("s_mul_i32 s49, s48, 14")
        k("s_sub_u32 s49, s47, s49")
    blk(0, 392)
    k("s_lshl_b32 s53, s48, 4")
    k("v_add_u32 v7, s53, v2")
    k(f"s_lshl_b32 s52, s47, 10"); k(f"s_add_u32 s52, s52, {L.WBQ}")
    k(f"s_branch {lj}")
    k.place(lo)
    blk(392, 392)
    srd(k, 8, P_BO, 448*896)
    k("s_lshr_b32 s53, s48, 1"); k("s_lshl_b32 s53, s53, 5")
    k("s_and_b32 s54, s48, 1"); k("s_lshl_b32 s54, s54, 2"); k("s_add_u32 s53, s53, s54")
    k("v_add_u32 v7, s53, v4")
    k(f"s_lshl_b32 s52, s47, 10"); k(f"s_add_u32 s52, s52, {L.WBO}")
    k(f"s_branch {lj}")
    k.place(lk)
    blk(784, 28)
    srd(k, 8, P_BK, 448*56)
    k("s_mov_b32 s50, 56")
    k("s_lshl_b32 s53, s48, 2")
    k("v_add_u32 v7, s53, v4")
    k(f"s_lshl_b32 s52, s47, 10"); k(f"s_add_u32 s52, s52, {L.WBK}")
    k(f"s_branch {lj}")
    k.place(lv)
    blk(812, 28)
    srd(k, 8, P_BV, 448*56)
    k("s_mov_b32 s50, 56")
    k("s_lshl_b32 s53, s48, 4")
    k("v_add_u32 v7, s53, v2")
    k(f"s_lshl_b32 s52, s47, 10"); k(f"s_add_u32 s52, s52, {L.WBV}")
    k.place(lj)
    k("s_lshl_b32 s53, s49, 5")
    k("v_lshlrev_b32 v8, 3, v3")
    k("v_add_u32 v8, s53, v8")
    k("v_mul_lo_u32 v8, v8, s50")
    k("v_lshlrev_b32 v9, 1, v7")
    k("v_cmp_le_u32 vcc, s50, v9")
    k("v_add_u32 v8, v8, v9")
    k("v_mov_b32 v9, 0x7fffffff")
    k("v_cndmask_b32 v8, v8, v9, vcc")
    k("s_mov_b32 s53, 0")
    for j in range(8):
        k(f"buffer_load_ushort v{16+j}, v8, s[8:11], s53 offen")
        if j < 7: k("s_add_u32 s53, s53, s50")
    k("s_waitcnt vmcnt(0)")
    for j in range(4): k(f"v_lshl_or_b32 v{12+j}, v{17+2*j}, 16, v{16+2*j}")
    k(f"buffer_store_dwordx4 v[12:15], v6, {WS}, s52 offen")
    k.place(lab_no)
    k("v_mov_b32 v12, -1"); k("v_mov_b32 v13, -1"); k("v_mov_b32 v14, -1"); k("v_mov_b32 v15, -1")
    k("v_lshl_add_u32 v8, s46, 10, v6")
    nun = L.CLR_BYTES
    for l in range(2):
        for it in range(2):
            k(f"v_add_u32 v9, {it*1048576}, v8")
            k(f"v_cmp_gt_u32 vcc, {nun}, v9")
            k("s_nop 1")
            k("v_mov_b32 v10, 0x7fffffff")
            k("v_cndmask_b32 v9, v10, v9, vcc")
            k(f"s_mov_b32 s53, {L.HO[l] + L.MEMSZ}")
            k(f"buffer_store_dwordx4 v[12:15], v9, {WS}, s53 offen")
    lln = k.label()
    k("s_cmp_ge_u32 s2, 224")
    k(f"s_cbranch_scc1 {lln}")
    div7(k, 47, 48, 2)
    k("s_and_b32 s49, s47, 15")
    k("s_lshr_b32 s50, s47, 4")
    k("s_cmp_eq_u32 s50, 0")
    k(f"s_cselect_b32 s8, s{P_WQ}, s{P_WV}")
    k(f"s_cselect_b32 s9, s{P_WQ+1}, s{P_WV+1}")
    k("s_and_b32 s9, s9, 0xffff")
    k(f"s_mov_b32 s10, {448*8192}")
    k("s_mov_b32 s11, 0x20000")
    k("v_lshlrev_b32 v8, 13, v4")
    k("v_lshl_add_u32 v8, v3, 4, v8")
    k("s_lshl_b32 s51, s49, 9")
    BT = 16
    lvt = k.label(); lbd = k.label()
    k(f"s_lshr_b32 s53, s{S_WAVE}, 1"); k("s_lshl_b32 s53, s53, 5")
    k(f"s_and_b32 s54, s{S_WAVE}, 1"); k("s_lshl_b32 s54, s54, 2"); k("s_add_u32 s53, s53, s54")
    k("s_lshl_b32 s54, s48, 6"); k("s_add_u32 s53, s53, s54")
    srd(k, 12, P_WK, 448*8192)
    k("s_cmp_eq_u32 s50, 1")
    k(f"s_cbranch_scc1 {lvt}")
    k("s_lshl_b32 s54, s53, 13"); k("s_add_u32 s54, s54, s51")
    for ks in range(8):
        k(f"buffer_load_dwordx4 {vr(BT+4*ks,4)}, v8, s[12:15], s54 offen offset:{ks*64}")
    k(f"s_branch {lbd}")
    k.place(lvt)
    srd(k, 12, P_WO, 16*229376)
    k(f"v_mul_u32_u24 v9, {8*896}, v3")
    k("v_lshl_add_u32 v9, v4, 1, v9")
    k(f"v_add_u32 v10, {4*896}, v9")
    k(f"s_mul_i32 s54, s49, 229376"); k("s_lshl_b32 s55, s53, 1"); k("s_add_u32 s54, s54, s55")
    for ks in range(8):
        for j in range(8):
            k(f"buffer_load_ushort v{64+8*ks+j}, v{9 if j<4 else 10}, s[12:15], s54 offen offset:{(j&3)*896}")
        if ks < 7: k(f"s_add_u32 s54, s54, {32*896}")
    k.place(lbd)
    def aload(i):
        k(f"s_add_u32 s54, s{S_WAVE}, {4*i}")
        k("s_lshl_b32 s54, s54, 18")
        k("s_add_u32 s54, s54, s51")
        k(f"s_add_u32 s55, s54, {4*8192}")
        for t in range(2):
            for ks in range(8):
                k(f"buffer_load_dwordx4 {vr(256+i*64+t*32+ks*4,4)}, v8, s[8:11], s{54+t} offen offset:{ks*64}")
    for i in range(3): aload(i)
    k("s_waitcnt vmcnt(48)")
    lnp = k.label()
    k("s_cmp_eq_u32 s50, 0"); k(f"s_cbranch_scc1 {lnp}")
    for i in range(32): k(f"v_lshl_or_b32 v{BT+i}, v{65+2*i}, 16, v{64+2*i}")
    k.place(lnp)
    k(f"s_lshl_b32 s54, s{S_WAVE}, 13")
    k("v_add_u32 v9, s54, v6")
    for ks in range(8):
        k(f"ds_write_b128 v9, {vr(BT+4*ks,4)} offset:{ks*1024}")
    aload(3)
    k("s_waitcnt lgkmcnt(0)")
    k("s_barrier")
    BA = 64
    for tt in range(4):
        for ks in range(8):
            k(f"ds_read_b128 {vr(BA+(tt*8+ks)*4,4)}, v6 offset:{(tt*8+ks)*1024}")
    k("s_cmp_eq_u32 s50, 0")
    k(f"s_cselect_b32 s56, {hx(f2u(L.LOG2E/16))}, {hx(f2u(1.0))}")
    k(f"s_cselect_b32 s57, {L.WQ}, {L.WV}")
    k("s_mul_i32 s58, s49, 28"); k("s_lshl_b32 s59, s48, 2"); k("s_add_u32 s58, s58, s59")
    k(f"s_mul_i32 s58, s58, {14*1024}"); k("s_add_u32 s57, s57, s58")
    k("s_waitcnt lgkmcnt(0)")
    ACC = 192
    for i in range(4):
        if i == 3:
            k(f"s_cmp_ge_u32 s{S_WAVE}, 2")
            k(f"s_cbranch_scc1 Lexit_{k.name}")
        k(f"s_waitcnt vmcnt({[48,36,24,12][i]})")
        for ks in range(8):
            for t in range(2):
                for tt in range(4):
                    d = ACC + (t*4+tt)*4
                    c = "0" if ks == 0 else vr(d,4)
                    k(f"v_mfma_f32_16x16x32_bf16 {vr(d,4)}, {vr(256+i*64+t*32+ks*4,4)}, {vr(BA+(tt*8+ks)*4,4)}, {c}")
        k(f"s_add_u32 s58, s{S_WAVE}, {4*i}"); k("s_lshl_b32 s58, s58, 10"); k("s_add_u32 s58, s58, s57")
        for tt in range(4):
            o = 224 + tt*4
            for t in range(2):
                d = ACC + (t*4+tt)*4
                for r in range(4): k(f"v_mul_f32 v{d+r}, s56, v{d+r}")
                k(f"v_cvt_pk_bf16_f32 v{o+2*t}, v{d}, v{d+1}")
                k(f"v_cvt_pk_bf16_f32 v{o+2*t+1}, v{d+2}, v{d+3}")
            k(f"buffer_store_dwordx4 {vr(o,4)}, v6, {WS}, s58 offen")
            if tt < 3: k(f"s_add_u32 s58, s58, {14*1024}")
    k("s_endpgm")
    k.place(lln)
    srd(k, 8, P_X, L.XSZ)
    k("s_sub_u32 s47, s2, 224"); k("s_lshl_b32 s47, s47, 2"); k(f"s_add_u32 s47, s47, s{S_WAVE}")
    k("v_mul_u32_u24 v8, 896, v2")
    k("v_lshl_add_u32 v8, v3, 4, v8")
    k(f"s_mul_i32 s48, s47, {16*896}")
    XP = 16
    for ks in range(14):
        k(f"buffer_load_dwordx4 {vr(XP+4*ks,4)}, v8, s[8:11], s48 offen offset:{ks*64}")
    F = 72
    k("s_waitcnt vmcnt(0)")
    for i in range(56):
        k(f"v_lshlrev_b32 v{F+2*i}, 16, v{XP+i}")
        k(f"v_and_b32 v{F+2*i+1}, 0xffff0000, v{XP+i}")
    k(f"v_add_f32 v9, v{F}, v{F+1}"); k(f"v_add_f32 v10, v{F+2}, v{F+3}")
    for i in range(4, 112, 2):
        k(f"v_add_f32 v9, v9, v{F+i}"); k(f"v_add_f32 v10, v10, v{F+i+1}")
    k("v_add_f32 v9, v9, v10")
    xreduce_g(k, 9, 10, "v_add_f32")
    k(f"v_mul_f32 v9, {hx(f2u(1/448))}, v9")
    for i in range(112): k(f"v_sub_f32 v{F+i}, v{F+i}, v9")
    k(f"v_mul_f32 v10, v{F}, v{F}"); k(f"v_mul_f32 v11, v{F+1}, v{F+1}")
    for i in range(2, 112, 2):
        k(f"v_fmac_f32 v10, v{F+i}, v{F+i}"); k(f"v_fmac_f32 v11, v{F+i+1}, v{F+i+1}")
    k("v_add_f32 v10, v10, v11")
    xreduce_g(k, 10, 11, "v_add_f32")
    k(f"v_mov_b32 v11, {hx(f2u(1e-5))}")
    k(f"v_fmac_f32 v11, {hx(f2u(1/448))}, v10")
    k("v_rsq_f32 v11, v11")
    for i in range(112): k(f"v_mul_f32 v{F+i}, v{F+i}, v11")
    for i in range(56): k(f"v_cvt_pk_bf16_f32 v{XP+i}, v{F+2*i}, v{F+2*i+1}")
    k(f"s_mul_i32 s48, s47, {14*1024}"); k(f"s_add_u32 s48, s48, {L.XTA[0]}")
    for ks in range(14):
        if ks % 4 == 0 and ks: k("s_add_u32 s48, s48, 4096")
        k(f"buffer_store_dwordx4 {vr(XP+4*ks,4)}, v6, {WS}, s48 offen offset:{(ks%4)*1024}")
    k("s_cmp_lg_u32 s2, 255")
    k(f"s_cbranch_scc1 Lexit_{k.name}")
    srd(k, 8, P_MEM0, 7168)
    k(f"s_lshl_b32 s47, s{S_WAVE}, 6")
    k("v_add_u32 v8, s47, v0")
    k("v_and_b32 v9, 3, v8")
    k("v_bfe_u32 v10, v8, 2, 3")
    k("v_bfe_u32 v11, v8, 5, 1")
    k("v_lshrrev_b32 v12, 6, v8")
    k("v_mul_u32_u24 v10, 896, v10")
    k("v_lshl_add_u32 v10, v12, 5, v10")
    k("v_lshl_add_u32 v10, v9, 3, v10")
    k("v_lshl_add_u32 v10, v11, 2, v10")
    k("v_lshlrev_b32 v13, 2, v8")
    for p in range(7): k(f"buffer_load_dword v{16+p}, v10, s[8:11], 0 offen offset:{p*128}")
    k("v_and_b32 v9, 7, v8"); k("v_mul_u32_u24 v9, 896, v9")
    k("v_lshrrev_b32 v11, 3, v8"); k("v_lshl_add_u32 v9, v11, 4, v9")
    k("v_lshlrev_b32 v14, 4, v8")
    k("buffer_load_dwordx4 v[24:27], v9, s[8:11], 0 offen")
    k("buffer_load_dwordx4 v[28:31], v9, s[8:11], 0 offen offset:512")
    k("v_add_u32 v15, 4096, v14")
    k("v_cmp_gt_u32 vcc, 7168, v15")
    k("v_mov_b32 v11, 0x7fffffff")
    k("v_cndmask_b32 v15, v11, v15, vcc")
    k("s_waitcnt vmcnt(0)")
    for l in range(2):
        k(f"s_mov_b32 s47, {L.MEM[l]}")
        for p in range(7):
            if p == 4: k("s_add_u32 s47, s47, 4096")
            k(f"v_min_u32 v{16+p}, -2, v{16+p}")
            k(f"buffer_store_dword v{16+p}, v13, {WS}, s47 offen offset:{(p%4)*1024}")
        k(f"s_mov_b32 s47, {L.MEMN[l]}")
        k(f"buffer_store_dwordx4 v[24:27], v14, {WS}, s47 offen")
        k(f"buffer_store_dwordx4 v[28:31], v15, {WS}, s47 offen")
    epilogue(k)
    return k

def gen_gemm(layer):
    k = K(f"gemm{layer}_kernel")
    prologue(k, 224)
    div7(k, 47, 48, 2)
    k("s_and_b32 s49, s47, 15")
    k("s_lshr_b32 s50, s47, 4")
    k("v_lshlrev_b32 v1, 4, v0")
    k("s_cmp_eq_u32 s50, 0")
    k(f"s_cselect_b32 s57, {L.WQ}, {L.WV}")
    k("s_mul_i32 s58, s49, 28"); k("s_lshl_b32 s59, s48, 2"); k("s_add_u32 s58, s58, s59")
    k(f"s_mul_i32 s58, s58, {14*1024}"); k("s_add_u32 s57, s57, s58")
    for i in range(56):
        if i % 4 == 0 and i: k("s_add_u32 s57, s57, 4096")
        k(f"buffer_load_dwordx4 {vr(256+4*i,4)}, v1, {WS}, s57 offen offset:{(i%4)*1024}")
    def xreg(buf, i):
        if buf == 0: return 16 + 4*i
        return 128 + 4*i if i < 20 else 256 + 224 + 4*(i-20)
    def loadx(buf):
        k("s_mov_b32 s53, s52")
        for i in range(28):
            if i % 4 == 0 and i: k("s_add_u32 s53, s53, 4096")
            k(f"buffer_load_dwordx4 {vr(xreg(buf,i),4)}, v1, {WS}, s53 offen offset:{(i%4)*1024}")
        k(f"s_add_u32 s52, s52, {4*28*1024}")
    k(f"s_mul_i32 s52, s{S_WAVE}, {28*1024}"); k(f"s_add_u32 s52, s52, {L.XTA[layer]}")
    loadx(0)
    ACC = 208; O = 240
    lq = k.label()
    k("s_cmp_eq_u32 s50, 0")
    k(f"s_cbranch_scc1 {lq}")
    for typ in (1, 0):
        if typ == 0: k.place(lq)
        k(f"s_lshl_b32 s54, s{S_WAVE}, 4"); k("s_add_u32 s54, s54, s49"); k(f"s_mul_i32 s54, s54, {28*1024}")
        if typ == 1:
            k("s_lshl_b32 s55, s48, 12"); k("s_add_u32 s54, s54, s55"); k(f"s_add_u32 s54, s54, {L.UU[layer]}")
        else:
            k("s_lshl_b32 s55, s48, 11"); k("s_add_u32 s54, s54, s55"); k(f"s_add_u32 s54, s54, {L.QP[layer]}")
        k("s_mov_b32 s51, 8")
        lp = k.label(); k.place(lp)
        for buf in range(2):
            loadx(1-buf)
            k("s_waitcnt vmcnt(28)")
            for ks in range(14):
                for t in range(2):
                    for tt in range(4):
                        d = ACC + (t*4+tt)*4
                        c = "0" if ks == 0 else vr(d,4)
                        x = vr(xreg(buf, t*14+ks),4); w = vr(256+(tt*14+ks)*4,4)
                        if typ == 1: k(f"v_mfma_f32_16x16x32_bf16 {vr(d,4)}, {x}, {w}, {c}")
                        else:        k(f"v_mfma_f32_16x16x32_bf16 {vr(d,4)}, {w}, {x}, {c}")
            for u in range(4):
                if typ == 1: d0, d1 = ACC + u*4, ACC + (4+u)*4; off = u*1024; so = "s54"
                else:
                    t, pp = u >> 1, u & 1
                    d0, d1 = ACC + (t*4+2*pp)*4, ACC + (t*4+2*pp+1)*4; off = pp*1024; so = "s54" if t == 0 else "s55"
                    if u == 2: k(f"s_add_u32 s55, s54, {14*1024}")
                o = O + 4*u
                k(f"v_cvt_pk_bf16_f32 v{o}, v{d0}, v{d0+1}"); k(f"v_cvt_pk_bf16_f32 v{o+1}, v{d0+2}, v{d0+3}")
                k(f"v_cvt_pk_bf16_f32 v{o+2}, v{d1}, v{d1+1}"); k(f"v_cvt_pk_bf16_f32 v{o+3}, v{d1+2}, v{d1+3}")
                k(f"buffer_store_dwordx4 {vr(o,4)}, v1, {WS}, {so} offen offset:{off}")
            k(f"s_add_u32 s54, s54, {4*16*28*1024}")
        k("s_sub_u32 s51, s51, 1"); k("s_cmp_lg_u32 s51, 0"); k(f"s_cbranch_scc1 {lp}")
        k("s_endpgm")
    epilogue(k)
    return k

def gen_empty():
    k = K("empty_kernel", 32, 32, 48)
    k("s_endpgm")
    return k
```

```python
KB = 1024
WSZ = 16*28*14*KB
XSZ = 2048*448*2
QSZ = 64*16*28*KB
off = 0
def take(n, al=4096):
    global off
    off = (off + al - 1)//al*al
    o = off; off += n; return o
WQ = take(WSZ); WV = take(WSZ)
XTA = [take(XSZ), take(XSZ)]
XTB = [take(XSZ), take(XSZ)]
XR = [take(XSZ), take(XSZ), take(XSZ)]
QP = [take(QSZ), take(QSZ)]
UU = [take(QSZ), take(QSZ)]
MEMSZ = 7168; PSZ = 10240
HO_SZ = 65*MEMSZ + 64*PSZ
HO = [take(HO_SZ), take(HO_SZ)]
MEM = HO
PIM = [h + 65*MEMSZ for h in HO]
CLR_BYTES = 64*MEMSZ + 64*PSZ
MEMN = [take(64*MEMSZ), take(64*MEMSZ)]
VMSZ = 4*28*KB
VM = [take(64*VMSZ), take(64*VMSZ)]
KI = [take(64*2048), take(64*2048)]
VI = [take(64*2048), take(64*2048)]
WBQ = take(392*KB); WBO = take(392*KB); WBK = take(28*KB); WBV = take(28*KB)
WS_USED = off
WS_BYTES = 268435456
assert WS_USED <= WS_BYTES
LOG2E = 1.4426950408889634
def col(tau, m): return 32*(tau>>1) + 8*(m>>2) + 4*(tau&1) + (m&3)
def sigma(e): return 4*((e>>1)&1) + 2*(e&1) + (e>>2)
```

```python
import sys
import chain
from chain import *
from attn import *
R = 8
hdr = open('interleave_layers__memory_aug_recurrent_mem_tr__grouped_kv_mqa__prompt.s.ref').read().split("; Override launch")[0]
ks=[gen_prep()]; launches=[("prep_kernel",256,256,32768)]
for l in range(2):
    ks += [gen_gemm(l), gen_chain(l), gen_attnA(l), gen_attnB(l, R)]
    launches += [(f"gemm{l}_kernel",224,256,0),(f"chain{l}_kernel",256,256,CHAIN_LDS),(f"attna{l}_kernel",64,256,A3_LDS),(f"attnb{l}_kernel",(2048+R-1)//R,256,B_lds(R)['SIZE'])]
open(sys.argv[1] if len(sys.argv)>1 else "s4.s","w").write(emit_file(ks,launches,hdr))
```

```python
from gen import *
import gen

NEG = hx(f2u(-1e9*L.LOG2E))
NINF = hx(f2u(-3.0e38))
OOB = 0x40000000

def mf16(d, a, b, c): return f"v_mfma_f32_16x16x32_bf16 {vr(d,4)}, {vr(a,4)}, {vr(b,4)}, {'0' if c is None else vr(c,4)}"
def mf32(d, a, b, c): return f"v_mfma_f32_32x32x16_bf16 {vr(d,16)}, {vr(a,4)}, {vr(b,4)}, {'0' if c is None else vr(c,16)}"

def loads(k, regs, vaddr, sbase, stmp, flags="", WS=WL):
    cur = sbase
    for n, r in enumerate(regs):
        if n % 4 == 0 and n:
            k(f"s_add_u32 s{stmp}, s{cur}, 4096"); cur = stmp
        k(f"buffer_load_dwordx4 {vr(r,4)}, v{vaddr}, {WS}, s{cur} offen offset:{(n%4)*1024}{flags}")

def ln_epilogue(k, acc, nq, XRES, TMP, PK, V_ST, STATS, res_store, xn_store, done_label):
    def pairs(body):
        for pp in range(4):
            lab = None
            if pp == 3:
                lab = k.label(); k(f"s_cmp_ge_u32 s{S_WAVE}, 2"); k(f"s_cbranch_scc1 {lab}")
            body(pp)
            if lab: k.place(lab)
    SUM = TMP; T = TMP + 4
    for q in range(nq): k(f"v_mov_b32 v{SUM+q}, 0")
    def b1(pp):
        for q in range(nq):
            x = XRES(pp, q)
            for t in range(2):
                a = acc(pp, q, t)
                for h in range(2):
                    k(f"v_lshlrev_b32 v{T}, 16, v{x+2*t+h}"); k(f"v_and_b32 v{T+1}, 0xffff0000, v{x+2*t+h}")
                    k(f"v_add_f32 v{a+2*h}, v{a+2*h}, v{T}"); k(f"v_add_f32 v{a+2*h+1}, v{a+2*h+1}, v{T+1}")
                    k(f"v_cvt_pk_bf16_f32 v{x+2*t+h}, v{a+2*h}, v{a+2*h+1}")
                if True:
                    k(f"v_add_f32 v{T}, v{a}, v{a+1}"); k(f"v_add_f32 v{T+1}, v{a+2}, v{a+3}")
                    k(f"v_add_f32 v{SUM+q}, v{SUM+q}, v{T}"); k(f"v_add_f32 v{SUM+q}, v{SUM+q}, v{T+1}")
            res_store(pp, q, x)
    pairs(b1)
    k(f"s_cmp_eq_u32 s{S_LAYER}, 1"); k(f"s_cbranch_scc1 {done_label}")
    def exchange(off):
        for q in range(nq): xreduce_g(k, SUM+q, T, "v_add_f32")
        for q in range(nq): k(f"ds_write_b32 v{V_ST}, v{SUM+q} offset:{STATS+off+q*256}")
        k("s_waitcnt lgkmcnt(0)"); k("s_barrier")
        for q in range(nq): k(f"ds_read_b128 {vr(PK+4*q,4)}, v{V_ST+1} offset:{STATS+off+q*256}")
        k("s_waitcnt lgkmcnt(0)")
        for q in range(nq):
            k(f"v_add_f32 v{PK+4*q}, v{PK+4*q}, v{PK+4*q+1}"); k(f"v_add_f32 v{PK+4*q+2}, v{PK+4*q+2}, v{PK+4*q+3}")
            k(f"v_add_f32 v{SUM+q}, v{PK+4*q}, v{PK+4*q+2}")
    exchange(0)
    MU = TMP + 2
    for q in range(nq):
        k(f"v_mul_f32 v{MU+q}, {hx(f2u(1/448))}, v{SUM+q}"); k(f"v_mov_b32 v{SUM+q}, 0")
    def b2(pp):
        for q in range(nq):
            for t in range(2):
                a = acc(pp, q, t)
                for r in range(4):
                    k(f"v_sub_f32 v{a+r}, v{a+r}, v{MU+q}"); k(f"v_fmac_f32 v{SUM+q}, v{a+r}, v{a+r}")
    pairs(b2)
    exchange(512)
    for q in range(nq):
        k(f"v_mov_b32 v{MU+q}, {hx(f2u(1e-5))}"); k(f"v_fmac_f32 v{MU+q}, {hx(f2u(1/448))}, v{SUM+q}"); k(f"v_rsq_f32 v{MU+q}, v{MU+q}")
    def b3(pp):
        for q in range(nq):
            o = PK + 4*((pp*nq + q) & 1)
            for t in range(2):
                a = acc(pp, q, t)
                for r in range(4): k(f"v_mul_f32 v{a+r}, v{a+r}, v{MU+q}")
                k(f"v_cvt_pk_bf16_f32 v{o+2*t}, v{a}, v{a+1}"); k(f"v_cvt_pk_bf16_f32 v{o+2*t+1}, v{a+2}, v{a+3}")
            xn_store(pp, q, o)
    pairs(b3)

A4_PX = 0; A4_PM = 8192; A4_DUM = 10240; A4_ST = 12288; A4_XL = 13312; A4_LDS = A4_XL + 8192

def softmax_seg(k, S):
    k(f"v_mov_b32 v11, {NEG}"); k(f"v_mov_b32 v12, {NINF}")
    for r in range(4):
        k(f"v_cndmask_b32 v{S+4+r}, v12, v{S+4+r}, s[80:81]")
        k(f"v_cndmask_b32 v{S+16+r}, v12, v{S+16+r}, s[80:81]")
    grp = [list(range(S, S+8)), list(range(S+8, S+20))]
    MX = [36, 37]; T = 38
    for q in range(2):
        m = S+4 if q == 0 else S+16
        k(f"v_max3_f32 v{MX[q]}, v{52+q}, v{m}, v{m+1}"); k(f"v_max3_f32 v{MX[q]}, v{MX[q]}, v{m+2}, v{m+3}")
    for q in range(2):
        k(f"v_mov_b32 v{T+q}, v{MX[q]}")
    for q in range(2): k(f"v_permlane16_swap_b32 v{MX[q]}, v{T+q}")
    for q in range(2): k(f"v_max_f32 v{MX[q]}, v{MX[q]}, v{T+q}")
    for q in range(2): k(f"v_mov_b32 v{T+q}, v{MX[q]}")
    for q in range(2): k(f"v_permlane32_swap_b32 v{MX[q]}, v{T+q}")
    for q in range(2): k(f"v_max_f32 v{MX[q]}, v{MX[q]}, v{T+q}")
    for q in range(2):
        for x in grp[q]: k(f"v_sub_f32 v{x}, v{x}, v{MX[q]}")
        for x in grp[q]: k(f"v_exp_f32 v{x}, v{x}")
    for q in range(2):
        g = grp[q]
        k(f"v_add_f32 v{MX[q]}, v{g[0]}, v{g[1]}"); k(f"v_add_f32 v{T+q}, v{g[2]}, v{g[3]}")
        for i in range(4, len(g), 2):
            k(f"v_add_f32 v{MX[q]}, v{MX[q]}, v{g[i]}"); k(f"v_add_f32 v{T+q}, v{T+q}, v{g[i+1]}")
        k(f"v_add_f32 v{MX[q]}, v{MX[q]}, v{T+q}")
    for q in range(2): k(f"v_mov_b32 v{T+q}, v{MX[q]}")
    for q in range(2): k(f"v_permlane16_swap_b32 v{MX[q]}, v{T+q}")
    for q in range(2): k(f"v_add_f32 v{MX[q]}, v{MX[q]}, v{T+q}")
    for q in range(2): k(f"v_mov_b32 v{T+q}, v{MX[q]}")
    for q in range(2): k(f"v_permlane32_swap_b32 v{MX[q]}, v{T+q}")
    for q in range(2): k(f"v_add_f32 v{MX[q]}, v{MX[q]}, v{T+q}")
    for q in range(2): k(f"v_rcp_f32 v{MX[q]}, v{MX[q]}")
    for q in range(2):
        for x in grp[q]: k(f"v_mul_f32 v{x}, v{x}, v{MX[q]}")
    W = 40
    k(f"v_cvt_pk_bf16_f32 v{W}, v{S}, v{S+1}"); k(f"v_cvt_pk_bf16_f32 v{W+1}, v{S+2}, v{S+3}"); k(f"v_mov_b64 {vr(W+2,2)}, 0")
    k(f"v_cvt_pk_bf16_f32 v{W+4}, v{S+8}, v{S+9}"); k(f"v_cvt_pk_bf16_f32 v{W+5}, v{S+10}, v{S+11}")
    k(f"v_cvt_pk_bf16_f32 v{W+6}, v{S+12}, v{S+13}"); k(f"v_cvt_pk_bf16_f32 v{W+7}, v{S+14}, v{S+15}")
    k(f"v_cvt_pk_bf16_f32 v{W+8}, v{S+4}, v{S+5}"); k(f"v_cvt_pk_bf16_f32 v{W+9}, v{S+6}, v{S+7}")
    k(f"v_cvt_pk_bf16_f32 v{W+10}, v{S+16}, v{S+17}"); k(f"v_cvt_pk_bf16_f32 v{W+11}, v{S+18}, v{S+19}")

def body_attnA4(k, abort):
    U = 256; XK = 256+128; VMR = 256+128; MK = 256+160; Q = 64; XRS = 176; S = 16; P = 16; OUT = 192
    k("v_lshlrev_b32 v1, 4, v0"); k("v_and_b32 v2, 15, v0"); k("v_lshrrev_b32 v3, 4, v0")
    k("v_lshlrev_b32 v4, 2, v3")
    for r in range(4):
        k(f"v_add_u32 v5, {r}, v4"); k(f"v_cmp_le_u32 s[{72+2*r}:{73+2*r}], v5, v2")
    k("v_cmp_gt_u32 s[80:81], 2, v3")
    k("v_bfe_u32 v5, v0, 1, 1"); k("v_lshlrev_b32 v5, 2, v5"); k("v_bfe_u32 v6, v0, 2, 1"); k("v_lshl_add_u32 v5, v6, 1, v5")
    k("v_and_b32 v6, 1, v0"); k("v_add_u32 v5, v5, v6"); k("v_lshlrev_b32 v5, 4, v5"); k("v_lshl_add_u32 v5, v3, 7, v5")
    k(f"s_lshl_b32 s46, s{S_WAVE}, 11"); k("v_add_u32 v6, s46, v1")
    k(f"s_lshl_b32 s46, s{S_WAVE}, 8"); k(f"s_add_u32 s46, s46, {A4_PM}")
    k("v_lshlrev_b32 v7, 4, v2"); k("v_lshl_add_u32 v7, v3, 3, v7"); k("v_add_u32 v7, s46, v7")
    k(f"v_mov_b32 v8, {A4_DUM}"); k("v_cndmask_b32 v7, v8, v7, s[80:81]")
    k(f"s_lshl_b32 s61, s{S_WAVE}, 2"); k(f"s_cmp_eq_u32 s{S_WAVE}, 3"); k("s_cselect_b32 s61, 11, s61")
    k("s_lshl_b32 s48, s60, 7"); k(f"s_add_u32 s49, s48, {L.UC(0)}")
    k("v_and_b32 v12, 7, v0"); k("v_lshlrev_b32 v12, 13, v12")
    wait_words(k, "s49", 12, 13, 28, abort)
    k(f"s_mul_i32 s46, s60, {28*1024}"); k(f"s_add_u32 s46, s46, {L.XTA[0]}")
    loads(k, [XK+4*i for i in range(28)], 1, 46, 47, " sc1")
    k("s_lshl_b32 s63, s60, 2"); k("s_add_u32 s63, s63, s71"); k("s_lshl_b32 s63, s63, 2")
    k(f"s_add_u32 s46, s63, s{S_WAVE}"); k(f"s_mul_i32 s46, s46, {28*1024}"); k(f"s_add_u32 s46, s46, {L.QP[0]}")
    loads(k, [Q+4*i for i in range(28)], 1, 46, 47, " sc1")
    k(f"s_mul_i32 s64, s63, {28*1024}"); k("s_lshl_b32 s46, s61, 11"); k("s_add_u32 s64, s64, s46"); k(f"s_add_u32 s64, s64, {L.UU[0]}")
    k(f"s_mul_i32 s65, s63, {7*1024}"); k("s_add_u32 s65, s65, s46"); k(f"s_add_u32 s65, s65, {L.VM[0]}")
    k("v_and_b32 v11, 7, v0"); k("v_bfe_u32 v12, v0, 3, 1")
    k("v_mul_u32_u24 v8, 896, v11"); k("v_lshl_add_u32 v8, v3, 4, v8"); k("v_lshl_add_u32 v8, v12, 6, v8")
    k("v_lshlrev_b32 v13, 4, v11"); k("v_lshl_add_u32 v13, v3, 7, v13"); k("v_lshl_add_u32 v15, v12, 15, v13"); k("v_lshl_add_u32 v13, v12, 9, v13")
    k("v_lshlrev_b32 v14, 4, v11"); k("v_lshl_add_u32 v14, v3, 8, v14"); k("v_lshl_add_u32 v14, v12, 10, v14")
    k(f"s_lshl_b32 s46, s{S_WAVE}, 2"); k("v_lshlrev_b32 v10, 4, v11"); k("v_add_u32 v9, s46, v10")
    k(f"s_cmp_ge_u32 s{S_WAVE}, 2"); k("s_cselect_b32 s46, 1, 2"); k("v_cmp_ne_u32 s[82:83], s46, v12")
    k("s_lshl_b32 s62, s60, 2"); k("s_add_u32 s62, s62, s71"); k(f"s_mul_i32 s62, s62, {8*896}"); k("s_lshl_b32 s46, s61, 6"); k("s_add_u32 s62, s62, s46")
    k(f"s_add_u32 s8, s{P_WS}, {L.XR1}"); k(f"s_addc_u32 s9, s{P_WS+1}, 0"); k(f"s_cmp_eq_u32 s{S_LAYER}, 0")
    k(f"s_cselect_b32 s8, s{P_X}, s8"); k(f"s_cselect_b32 s9, s{P_X+1}, s9"); k("s_and_b32 s9, s9, 0xffff")
    k(f"s_mov_b32 s10, {L.XSZ}"); k("s_mov_b32 s11, 0x20000")
    k("s_waitcnt vmcnt(28)")
    for hh in range(4):
        k(f"s_add_u32 s46, s64, {hh*28*1024}")
        loads(k, [U+(hh*8+i)*4 for i in range(8)], 1, 46, 47, " sc1")
    for j in range(2):
        k(f"buffer_load_dwordx4 {vr(XRS+4*j,4)}, v8, s[8:11], s62 offen offset:{j*128} sc1")
    k("s_waitcnt vmcnt(34)")
    for ks in range(14):
        c = lambda i: None if ks == 0 else S+4*i
        k(mf16(S+0, XK+4*ks, Q+4*ks, c(0)))
        k(mf16(S+8, XK+4*ks, Q+4*(14+ks), c(2)))
        k(mf16(S+12, XK+4*(14+ks), Q+4*(14+ks), c(3)))
    for i in range(32): k(f"v_mov_b64 {vr(OUT+2*i,2)}, 0")
    k(f"v_mov_b32 v11, {NEG}")
    for r in range(4):
        k(f"v_cndmask_b32 v{S+r}, v11, v{S+r}, s[{72+2*r}:{73+2*r}]")
        k(f"v_cndmask_b32 v{S+12+r}, v11, v{S+12+r}, s[{72+2*r}:{73+2*r}]")
    k(f"v_max3_f32 v52, v{S}, v{S+1}, v{S+2}"); k(f"v_max_f32 v52, v52, v{S+3}")
    k(f"v_max3_f32 v53, v{S+8}, v{S+9}, v{S+10}")
    for i in (11, 13): k(f"v_max3_f32 v53, v53, v{S+i}, v{S+i+1}")
    k(f"v_max_f32 v53, v53, v{S+15}")
    k("s_cmp_ge_u32 s60, 62"); k(f"s_mov_b32 s49, {L.PROG(0)}"); k(f"s_cselect_b32 s49, {L.FIN(0)}, s49")
    k("s_add_u32 s50, s60, 2"); k("s_cmp_ge_u32 s60, 62"); k("s_cselect_b32 s50, 14, s50")
    k("v_mov_b32 v54, 0")
    k("s_waitcnt vmcnt(0)")
    wait_words(k, "s49", 54, 55, "s50", abort, ge=True, nap=1, far="s60")
    gen.tl(k, 2, 54)
    k(f"s_mul_i32 s46, s60, {L.MEMSZ}"); k(f"s_add_u32 s46, s46, {L.MEMN[0]}")
    for ks in range(14):
        if ks == 8: k("s_add_u32 s46, s46, 4096")
        k(f"buffer_load_dwordx4 {vr(MK+4*ks,4)}, v5, {WL}, s46 offen offset:{(ks%8)*512} sc1")
    loads(k, [VMR+4*i for i in range(8)], 1, 65, 47, " sc1")
    for ks in range(14):
        k(f"s_waitcnt vmcnt({21-ks})")
        c = lambda i: None if ks == 0 else S+4*i
        k(mf16(S+4, MK+4*ks, Q+4*ks, c(1)))
        k(mf16(S+16, MK+4*ks, Q+4*(14+ks), c(4)))
    k(f"s_mul_i32 s46, s{S_WAVE}, {14*1024}"); k(f"s_add_u32 s46, s46, {L.WBK}")
    assert L.WBV == L.WBK + 28*1024
    loads(k, [Q+4*i for i in range(14)], 1, 46, 47, "", WS)
    softmax_seg(k, S)
    W = 40
    k(f"ds_write_b128 v6, {vr(W,4)}"); k(f"ds_write_b128 v6, {vr(W+4,4)} offset:1024")
    k(f"ds_write_b64 v7, {vr(W+8,2)}"); k(f"ds_write_b64 v7, {vr(W+10,2)} offset:1024")
    k("s_waitcnt lgkmcnt(0)"); k("s_barrier")
    for i in range(8): k(f"ds_read_b128 {vr(P+4*i,4)}, v1 offset:{A4_PX+i*1024}")
    for q in range(2): k(f"ds_read_b128 {vr(P+32+4*q,4)}, v1 offset:{A4_PM+q*1024}")
    k("s_lshl_b32 s66, s60, 17"); k("s_lshl_b32 s46, s71, 13"); k("s_add_u32 s66, s66, s46"); k("s_lshl_b32 s46, s61, 9"); k("s_add_u32 s66, s66, s46")
    k(f"s_add_u32 s66, s66, {L.PARTS[0]}"); k("s_add_u32 s67, s66, 65536")
    k("s_waitcnt vmcnt(14) lgkmcnt(0)")
    skip = k.label()
    for pp in range(4):
        if pp == 3:
            k(f"s_cmp_ge_u32 s{S_WAVE}, 2"); k(f"s_cbranch_scc1 {skip}")
        for hh in range(5):
            for t in range(2):
                for q in range(2):
                    i = 2*pp + t
                    o = OUT + (i*2 + q)*4
                    k(mf16(o, (U+(hh*8+i)*4) if hh < 4 else VMR+4*i, P + (hh*2+q)*4, o))
        if pp:
            pack_store(k, OUT, pp-1, 56)
        if pp == 3: pack_store(k, OUT, 3, 56)
    j2 = k.label(); k(f"s_branch {j2}")
    k.place(skip); pack_store(k, OUT, 2, 56)
    k.place(j2)
    k("s_waitcnt vmcnt(0)"); k("s_barrier")
    lz = k.label(); k(f"s_cmp_lg_u32 s{S_WAVE}, 0"); k(f"s_cbranch_scc1 {lz}")
    lane0_addr(k, 56, 57); k(f"s_add_u32 s46, s48, {L.PC(0)}"); signal(k, "s46", 56, 57)
    k.place(lz)
    k(f"s_add_u32 s49, s48, {L.PC(0)}"); k("v_mov_b32 v54, 0"); wait_words(k, "s49", 54, 55, 4, abort, nap=1)
    k("s_lshl_b32 s66, s60, 17"); k("s_lshl_b32 s46, s71, 15"); k("s_add_u32 s66, s66, s46"); k("s_lshl_b32 s46, s61, 9"); k("s_add_u32 s66, s66, s46")
    k(f"s_add_u32 s66, s66, {L.PARTS[0]}")
    PT = 16; F = 192
    for src in range(4):
        if src: k("s_add_u32 s66, s66, 8192")
        for j in range(2): k(f"buffer_load_dwordx4 {vr(PT+(src*2+j)*4,4)}, v13, {WL}, s66 offen offset:{j*1024} sc1")
    for i in range(8):
        k(f"v_lshlrev_b32 v{F+2*i}, 16, v{XRS+i}"); k(f"v_and_b32 v{F+2*i+1}, 0xffff0000, v{XRS+i}")
    for src in range(4):
        k(f"s_waitcnt vmcnt({6-2*src})")
        for i in range(8):
            k(f"v_lshlrev_b32 v54, 16, v{PT+src*8+i}"); k(f"v_and_b32 v55, 0xffff0000, v{PT+src*8+i}")
            k(f"v_pk_add_f32 {vr(F+2*i,2)}, {vr(F+2*i,2)}, v[54:55]")
    for i in range(8): k(f"v_cvt_pk_bf16_f32 v{XRS+i}, v{F+2*i}, v{F+2*i+1}")
    k("v_mov_b32 v11, 0x7fffffff"); k("v_cndmask_b32 v12, v11, v8, s[82:83]")
    k(f"s_add_u32 s46, s62, {L.XRA[0]}")
    k(f"buffer_store_dwordx4 {vr(XRS,4)}, v8, {WL}, s46 offen sc1"); k(f"buffer_store_dwordx4 {vr(XRS+4,4)}, v12, {WL}, s46 offen offset:128 sc1")
    def rowsum(off, sq):
        for j in range(2):
            b = F + 8*j
            if sq:
                k(f"v_mul_f32 v{54+j}, v{b}, v{b}")
                for i in range(1, 8): k(f"v_fmac_f32 v{54+j}, v{b+i}, v{b+i}")
            else:
                k(f"v_add_f32 v{54+j}, v{b}, v{b+1}")
                for i in range(2, 8): k(f"v_add_f32 v{54+j}, v{54+j}, v{b+i}")
        k("v_cndmask_b32 v55, 0, v55, s[82:83]"); k("v_add_f32 v54, v54, v55")
        k("v_add_f32_dpp v54, v54, v54 row_ror:8 row_mask:0xf bank_mask:0xf")
        xreduce_g(k, 54, 55, "v_add_f32")
        k(f"ds_write_b32 v9, v54 offset:{A4_ST+off}"); k("s_waitcnt lgkmcnt(0)"); k("s_barrier")
        k(f"ds_read_b128 v[56:59], v10 offset:{A4_ST+off}"); k("s_waitcnt lgkmcnt(0)")
        k("v_add_f32 v56, v56, v57"); k("v_add_f32 v58, v58, v59"); k("v_add_f32 v54, v56, v58")
    rowsum(0, False)
    k(f"v_mul_f32 v54, {hx(f2u(1/448))}, v54")
    for i in range(16): k(f"v_sub_f32 v{F+i}, v{F+i}, v54")
    rowsum(256, True)
    k(f"v_mov_b32 v55, {hx(f2u(1e-5))}"); k(f"v_fmac_f32 v55, {hx(f2u(1/448))}, v54"); k("v_rsq_f32 v55, v55")
    for i in range(16): k(f"v_mul_f32 v{F+i}, v{F+i}, v55")
    for i in range(8): k(f"v_cvt_pk_bf16_f32 v{PT+i}, v{F+2*i}, v{F+2*i+1}")
    k("s_lshl_b32 s46, s61, 9"); k(f"s_add_u32 s46, s46, {A4_XL}"); k("v_add_u32 v12, s46, v13")
    k(f"v_mov_b32 v54, {A4_DUM - 1024}"); k("v_cndmask_b32 v54, v54, v12, s[82:83]")
    k(f"ds_write_b128 v12, {vr(PT,4)}"); k(f"ds_write_b128 v54, {vr(PT+4,4)} offset:1024")
    k("s_lshr_b32 s46, s71, 1"); k("s_lshl_b32 s47, s60, 1"); k("s_add_u32 s46, s46, s47"); k("s_mul_i32 s46, s46, 14"); k("s_add_u32 s46, s46, s61")
    k("s_lshl_b32 s46, s46, 10"); k("s_and_b32 s47, s71, 1"); k("s_lshl_b32 s47, s47, 7"); k("s_add_u32 s46, s46, s47"); k(f"s_add_u32 s46, s46, {L.XTB[0]}")
    k("v_cndmask_b32 v12, v11, v14, s[82:83]")
    k(f"buffer_store_dwordx4 {vr(PT,4)}, v14, {WL}, s46 offen sc1"); k(f"buffer_store_dwordx4 {vr(PT+4,4)}, v12, {WL}, s46 offen offset:2048 sc1")
    k("s_waitcnt lgkmcnt(0)"); k("s_barrier")
    X = 192
    k("v_and_b32 v12, 7, v0"); k("v_lshlrev_b32 v12, 4, v12"); k("v_lshl_add_u32 v12, v3, 7, v12")
    for ks in range(14): k(f"ds_read_b128 {vr(X+4*ks,4)}, v12 offset:{A4_XL+ks*512}")
    lv = k.label("LV"); le = k.label("LE")
    k("s_lshl_b32 s49, s60, 11")
    k(f"s_cmp_ge_u32 s{S_WAVE}, 2"); k(f"s_cbranch_scc1 {lv}")
    k("v_lshrrev_b32 v12, 1, v3"); k("v_lshlrev_b32 v12, 10, v12"); k("v_and_b32 v54, 1, v3"); k("v_lshl_add_u32 v12, v54, 9, v12")
    k("v_lshl_add_u32 v12, v2, 4, v12"); k("v_cmp_gt_u32 vcc, 8, v2"); k("v_cndmask_b32 v12, v11, v12, vcc")
    k("s_lshl_b32 s46, s71, 7"); k(f"s_lshl_b32 s47, s{S_WAVE}, 3"); k("s_add_u32 s46, s46, s47"); k("s_add_u32 s46, s46, s49"); k(f"s_add_u32 s46, s46, {L.KI[0]}")
    k("s_waitcnt lgkmcnt(0)")
    for ks in range(14): k(mf16(16, Q+4*ks, X+4*ks, None if ks == 0 else 16))
    k("v_cvt_pk_bf16_f32 v24, v16, v17"); k("v_cvt_pk_bf16_f32 v25, v18, v19")
    k(f"s_branch {le}")
    k.place(lv)
    k("v_lshlrev_b32 v12, 9, v3"); k("v_lshl_add_u32 v12, v2, 4, v12"); k("v_cndmask_b32 v12, v11, v12, s[80:81]")
    k("s_lshr_b32 s46, s71, 1"); k("s_lshl_b32 s46, s46, 10"); k("s_and_b32 s47, s71, 1"); k("s_lshl_b32 s47, s47, 3"); k("s_add_u32 s46, s46, s47")
    k(f"s_and_b32 s47, s{S_WAVE}, 1"); k("s_lshl_b32 s47, s47, 8"); k("s_add_u32 s46, s46, s47"); k("s_add_u32 s46, s46, s49"); k(f"s_add_u32 s46, s46, {L.VI[0]}")
    k(f"s_cmp_eq_u32 s{S_WAVE}, 3"); k("s_cselect_b32 s47, 12, 99"); k("v_cmp_eq_u32 vcc, s47, v2"); k("v_mov_b32 v54, 0x3f803f80")
    k("s_waitcnt lgkmcnt(0)")
    for ks in range(14): k(mf16(16, X+4*ks, Q+4*ks, None if ks == 0 else 16))
    k("v_cvt_pk_bf16_f32 v24, v16, v17"); k("v_cvt_pk_bf16_f32 v25, v18, v19")
    k("v_cndmask_b32 v24, v24, v54, vcc"); k("v_cndmask_b32 v25, v25, v54, vcc")
    k.place(le)
    k(f"buffer_store_dwordx2 v[24:25], v12, {WL}, s46 offen sc1")
    k("s_waitcnt vmcnt(0)"); k("s_barrier")
    lz = k.label(); k(f"s_cmp_lg_u32 s{S_WAVE}, 0"); k(f"s_cbranch_scc1 {lz}")
    k("s_lshl_b32 s46, s71, 7"); k(f"s_add_u32 s46, s46, {L.A3C(0)}"); k(f"s_add_u32 s47, s48, {L.SC(0)}")
    k("v_mov_b32 v4, s47"); k("v_mov_b32 v5, s46"); k("v_cmp_eq_u32 vcc, 0, v0"); k("v_cndmask_b32 v4, v5, v4, vcc"); k("v_mov_b32 v5, 1")
    signal(k, "0", 4, 5, lanes=3)
    k.place(lz)

def pack_store(k, OUT, pp, T):
    for q in range(2):
        for t in range(2):
            a = OUT + ((2*pp+t)*2 + q)*4
            k(f"v_cvt_pk_bf16_f32 v{T+4*q+2*t}, v{a}, v{a+1}"); k(f"v_cvt_pk_bf16_f32 v{T+4*q+2*t+1}, v{a+2}, v{a+3}")
        k(f"buffer_store_dwordx4 {vr(T+4*q,4)}, v15, {WL}, s{66+q} offen offset:{pp*512} sc1")

def B_lds(R):
    QT = R//2
    QL = 0
    OL = QL + 16*1024
    ST = OL + 16*912 + 512
    ST = (ST + 255)//256*256
    MXL = ST + 1024
    FL = MXL + 4*8*128
    RED = FL + 256
    return dict(QL=QL, OL=OL, ST=ST, MXL=MXL, FL=FL, RED=RED, SIZE=RED + 4*QT*4096)

def body_attnB(k, R, abort):
    QT = R//2; D = B_lds(R)
    XB = 16
    k("v_lshlrev_b32 v1, 4, v0"); k("v_and_b32 v2, 15, v0"); k("v_lshrrev_b32 v3, 4, v0")
    qreg = lambda o: 256 + 4*o if o < 64 else 120 + 4*(o-64)
    k(f"s_mul_i32 s46, s{S_WAVE}, {7*14*1024}"); k(f"s_add_u32 s46, s46, {L.WBQ}")
    loads(k, [qreg(o) for o in range(98)], 1, 46, 46, "", WS)
    k(f"s_mul_i32 s61, s60, {R}")
    k(f"v_min_u32 v4, {R-1}, v2"); k("v_add_u32 v4, s61, v4"); k("v_min_u32 v4, 2047, v4")
    k("v_add_u32 v5, s61, v2"); k(f"v_cmp_gt_u32 vcc, {R}, v2"); k("v_mov_b32 v6, 2048")
    k("v_cmp_lt_u32 s[72:73], v5, v6"); k("s_and_b64 s[72:73], s[72:73], vcc")
    k("v_lshrrev_b32 v5, 4, v4"); k(f"v_mul_u32_u24 v5, {14*1024}, v5"); k("v_and_b32 v6, 15, v4"); k("v_lshl_add_u32 v5, v6, 4, v5"); k("v_lshl_add_u32 v5, v3, 8, v5")
    k("v_mov_b64 v[8:9], 0"); k("v_mov_b64 v[10:11], 0"); k(f"s_lshl_b32 s46, s{S_WAVE}, 12"); k("v_add_u32 v7, s46, v1")
    for i in range(4): k(f"ds_write_b128 v7, v[8:11] offset:{D['QL']+i*1024}")
    k(f"v_mov_b32 v7, {D['FL']}"); k("ds_write_b32 v7, v8")
    k(f"s_add_u32 s8, s{P_WS}, {L.XR1}"); k(f"s_addc_u32 s9, s{P_WS+1}, 0"); k(f"s_cmp_eq_u32 s{S_LAYER}, 0")
    k(f"s_cselect_b32 s8, s8, s{P_OUT}"); k(f"s_cselect_b32 s9, s9, s{P_OUT+1}"); k("s_and_b32 s9, s9, 0xffff")
    k(f"s_mov_b32 s10, {L.XSZ}"); k("s_mov_b32 s11, 0x20000")
    k(f"s_lshl_b32 s69, s{S_WAVE}, 2"); k(f"s_cmp_eq_u32 s{S_WAVE}, 3"); k("s_cselect_b32 s69, 11, s69")
    k(f"s_mul_i32 s62, s69, {28*1024}"); k(f"s_add_u32 s62, s62, {L.WBO}")
    k("v_lshlrev_b32 v12, 7, v0")
    for j in range(14):
        k(f"s_add_u32 s46, s62, {j*8192}"); k(f"buffer_load_dword v13, v12, {WS}, s46 offen")
    div7(k, 47, 48, 100)
    k("s_lshr_b32 s50, s47, 4"); k("s_and_b32 s47, s47, 15"); k("s_cmp_eq_u32 s50, 0"); k(f"s_cselect_b32 s50, {L.WQ}, {L.WV}")
    k("s_mul_i32 s47, s47, 28"); k("s_lshl_b32 s48, s48, 2"); k("s_add_u32 s47, s47, s48"); k(f"s_add_u32 s47, s47, s{S_WAVE}")
    k(f"s_mul_i32 s47, s47, {14*1024}"); k("s_add_u32 s46, s47, s50"); k("s_add_u32 s47, s46, 6144")
    k(f"buffer_load_dword v13, v12, {WS}, s46 offen"); k(f"buffer_load_dword v13, v12, {WS}, s47 offen")
    k("v_mov_b32 v15, v12")
    k("v_lshrrev_b32 v12, 5, v4"); k("v_lshlrev_b32 v12, 7, v12"); k(f"s_mov_b32 s49, {L.SC(0)}")
    k("s_lshr_b32 s50, s61, 5"); k("s_min_u32 s50, s50, 61"); k("s_waitcnt vmcnt(0)")
    wait_words(k, "s49", 12, 13, 4, abort, nap=1, far="s50")
    k(f"s_mov_b32 s48, {L.XTB[0]}")
    loads(k, [XB+4*ks for ks in range(14)], 5, 48, 47, " sc1")
    k("s_waitcnt lgkmcnt(0)"); k("s_barrier")
    k(f"s_mul_i32 s63, s{S_WAVE}, 112")
    k("v_lshlrev_b32 v6, 2, v3"); k("v_add_u32 v6, s63, v6"); k("v_lshlrev_b32 v7, 10, v2")
    for i in range(7):
        k(f"v_add_u32 v8, {16*i}, v6"); k("v_mul_u32_u24 v9, 2341, v8"); k("v_lshrrev_b32 v9, 16, v9")
        k("v_lshl_add_u32 v8, v8, 1, v7"); k(f"v_lshl_add_u32 v{100+i}, v9, 3, v8")
    k(f"s_mov_b32 s64, {hx(f2u(L.LOG2E/28**0.5))}")
    A0 = 72
    for ks in range(14):
        k(f"s_waitcnt vmcnt({13-ks})")
        for i in range(7): k(mf16(A0+4*i, qreg(i*14+ks), XB+4*ks, None if ks == 0 else A0+4*i))
    for i in range(7):
        a = A0 + 4*i
        for r in range(4): k(f"v_mul_f32 v{a+r}, s64, v{a+r}")
        k(f"v_cvt_pk_bf16_f32 v{a}, v{a}, v{a+1}"); k(f"v_cvt_pk_bf16_f32 v{a+1}, v{a+2}, v{a+3}")
        k(f"ds_write_b64 v{100+i}, {vr(a,2)} offset:{D['QL']}")
    QO = 16; KV = [56, 72]; SS = [88, 104]; PP = 120; O = 128; MX = O + 16*QT
    assert QO + 8*QT <= 56 and MX + QT <= 216
    oreg = lambda o: 256 + 4*o if o < 64 else (216 + 4*(o-64) if o < 74 else (120 + 4*(o-74) if o < 98 else 256 + 4*(o-98)))
    k(f"s_lshl_b32 s65, s{S_WAVE}, 15"); k(f"s_add_u32 s66, s65, {L.VI[0]}"); k(f"s_add_u32 s65, s65, {L.KI[0]}")
    k("s_waitcnt lgkmcnt(0)"); k("s_barrier")
    k("v_bfe_u32 v6, v0, 4, 1"); k("v_lshlrev_b32 v6, 10, v6"); k("v_lshl_add_u32 v6, v2, 6, v6"); k("v_lshrrev_b32 v7, 5, v0"); k("v_lshl_add_u32 v6, v7, 4, v6")
    def qread():
        for q in range(QT):
            for kk in range(2): k(f"ds_read_b128 {vr(QO+8*q+4*kk,4)}, v6 offset:{D['QL']+q*2048+kk*32}")
    qread()
    for i in range(8*QT): k(f"v_mov_b64 {vr(O+2*i,2)}, 0")
    k("v_and_b32 v12, 3, v0"); k("v_lshlrev_b32 v12, 7, v12"); k(f"s_mov_b32 s49, {L.A3C(0)}")
    wait_words(k, "s49", 12, 13, 64, abort, nap=1, far=61)
    gen.tl(k, 4, 12)
    def kvl(b):
        return [f"buffer_load_dwordx4 {vr(KV[b],4)}, v1, {WL}, s67 offen sc1", f"buffer_load_dwordx4 {vr(KV[b]+4,4)}, v1, {WL}, s67 offen offset:1024 sc1",
                f"buffer_load_dwordx4 {vr(KV[b]+8,4)}, v1, {WL}, s68 offen sc1", f"buffer_load_dwordx4 {vr(KV[b]+12,4)}, v1, {WL}, s68 offen offset:1024 sc1",
                "s_add_u32 s67, s67, 2048", "s_add_u32 s68, s68, 2048"]
    def kvload(b):
        for x in kvl(b): k(x)
    def wl(o): return [f"s_add_u32 s46, s62, {(o//4)*4096}"]*(o % 4 == 0) + [f"buffer_load_dwordx4 {vr(oreg(o),4)}, v1, {WS}, s46 offen offset:{(o%4)*1024}"]
    k("s_mov_b32 s67, s65"); k("s_mov_b32 s68, s66"); k("s_mov_b32 s78, 0")
    kvload(0); kvload(1)
    k("s_and_b32 s46, s100, 15"); k("s_lshl_b32 s46, s46, 13"); k(f"s_and_b32 s47, s{S_WAVE}, 1"); k(f"s_mul_i32 s47, s47, {L.VI[0]-L.KI[0]}")
    k("s_add_u32 s46, s46, s47"); k(f"s_add_u32 s46, s46, {L.KI[0]}")
    k(f"buffer_load_dword v13, v15, {WL}, s46 offen sc1")
    gen.tl(k, 11, 12, 2)
    if gen.TL: k("s_memtime s[86:87]"); k("s_waitcnt lgkmcnt(0)")
    ntl = 2 if gen.TL else 1
    k(f"s_waitcnt vmcnt({4+ntl}) lgkmcnt(0)")
    k(mf32(SS[0], KV[0], QO, None)); k(mf32(SS[0], KV[0]+4, QO+4, SS[0]))
    nstep = 16*QT; wnext = 0; wcount = [0]*17
    for i in range(nstep):
        t, q = divmod(i, QT); s = SS[i & 1]; sn = SS[(i+1) & 1]; b = t & 1
        tn, qn = divmod(i+1, QT); last = i + 1 == nstep
        ex = lambda a, n: [f"v_exp_f32 v{s+r}, v{s+r}" for r in range(a, a+n)]
        cv = lambda h: [f"v_cvt_pk_bf16_f32 v{PP+4*h+j}, v{s+8*h+2*j}, v{s+8*h+2*j+1}" for j in range(4)]
        if not last:
            if qn == 0:
                k(f"s_waitcnt vmcnt({wcount[t]})")
            k(mf32(sn, KV[tn & 1], QO+8*qn, None))
        for x in ex(0, 4): k(x)
        if i:
            tp, qp = divmod(i-1, QT)
            k(mf32(O+16*qp, KV[tp & 1]+12, PP+4, O+16*qp))
        if q == 0 and 1 <= t <= 14:
            for x in kvl(1-b): k(x)
        for x in ex(4, 4): k(x)
        if not last: k(mf32(sn, KV[tn & 1]+4, QO+8*qn+4, sn))
        for x in cv(0) + ex(8, 4): k(x)
        k(mf32(O+16*q, KV[b]+8, PP, O+16*q))
        if wnext < 74 and (q >= 1 or t == 0 or True):
            for x in wl(wnext): k(x)
            wnext += 1; wcount[t] += 1
        for x in ex(12, 4) + cv(1): k(x)
    k(mf32(O+16*(QT-1), KV[1]+12, PP+4, O+16*(QT-1)))
    if gen.TL:
        k("s_memtime s[88:89]"); k("s_waitcnt lgkmcnt(0)"); k("s_sub_u32 s88, s88, s86")
        k("s_lshl_b32 s101, s2, 2"); k(f"s_add_u32 s101, s101, s{S_WAVE}"); k("s_lshl_b32 s101, s101, 6"); k(f"s_add_u32 s101, s101, {gen.TLOFF + 60}")
        k("v_mov_b32 v12, s88"); k("v_mov_b32 v13, 0"); k(f"buffer_store_dword v12, v13, {WS}, s101 offen")
    gen.tl(k, 12, 12, 2)
    redo = k.label("LBr"); slow = k.label("LBs"); fin = k.label("LBf")
    k.place(redo)
    k(f"s_mul_i32 s46, s{S_WAVE}, {QT*4096}"); k(f"s_add_u32 s46, s46, {D['RED']}"); k("v_add_u32 v7, s46, v1")
    for q in range(QT):
        for j in range(4): k(f"ds_write_b128 v7, {vr(O+16*q+4*j,4)} offset:{q*4096+j*1024}")
    k("v_mul_u32_u24 v14, 896, v4"); k("v_lshl_add_u32 v14, v3, 4, v14"); k("s_lshl_b32 s46, s69, 6"); k("v_add_u32 v14, s46, v14")
    k("s_waitcnt lgkmcnt(0)")
    OUT = 72; XRS = 104
    k(f"s_mov_b32 s48, {L.XRA[0]}")
    for pp in range(4): k(f"buffer_load_dwordx4 {vr(XRS+4*pp,4)}, v14, {WL}, s48 offen offset:{pp*64} sc1")
    k(f"s_add_u32 s46, s62, {72*1024}")
    for o in range(74, 98):
        for x in wl(o): k(x)
    k("s_barrier")
    T = 16
    k("v_lshrrev_b32 v8, 5, v0")
    k("v_bfe_u32 v9, v0, 4, 1"); k("v_mul_u32_u24 v9, 912, v9"); k("v_mul_u32_u24 v10, 56, v2"); k("v_add_u32 v9, v9, v10"); k("v_lshl_add_u32 v9, v8, 3, v9")
    k(f"v_mov_b32 v11, {D['OL'] + 16*912}"); k("v_cmp_eq_u32 s[74:75], 1, v8")
    for rep in range((QT+3)//4):
        skip = k.label()
        if rep == 1:
            k(f"s_cmp_lt_u32 s{S_WAVE}, {8-QT}"); k(f"s_cbranch_scc1 {skip}")
            k(f"s_add_u32 s46, s{S_WAVE}, {QT-4}")
        else: k(f"s_mov_b32 s46, s{S_WAVE}")
        k("s_lshl_b32 s47, s46, 12"); k(f"s_add_u32 s47, s47, {D['RED']}"); k("v_add_u32 v7, s47, v1")
        for w in range(4):
            if w: k(f"v_add_u32 v7, {QT*4096}, v7")
            for j in range(4): k(f"ds_read_b128 {vr(T+16*w+4*j,4)}, v7 offset:{j*1024}")
        k("s_waitcnt lgkmcnt(8)")
        for i in range(8): k(f"v_pk_add_f32 {vr(T+2*i,2)}, {vr(T+2*i,2)}, {vr(T+16+2*i,2)}")
        k("s_waitcnt lgkmcnt(0)")
        for i in range(8): k(f"v_pk_add_f32 {vr(T+32+2*i,2)}, {vr(T+32+2*i,2)}, {vr(T+48+2*i,2)}")
        for i in range(8): k(f"v_pk_add_f32 {vr(T+2*i,2)}, {vr(T+2*i,2)}, {vr(T+32+2*i,2)}")
        k(f"v_mov_b32 v12, v{T+12}"); k(f"v_mov_b32 v13, v{T+12}")
        k("v_permlane32_swap_b32 v12, v13")
        k(f"v_cmp_nle_f32 vcc, {hx(f2u(2.0**-60))}, v13"); k(f"v_mov_b32 v12, {hx(f2u(2.0**60))}")
        k("v_cmp_nle_f32 s[76:77], v13, v12"); k("s_or_b64 vcc, vcc, s[76:77]")
        ok = k.label()
        k(f"s_cbranch_vccz {ok}")
        k(f"v_mov_b32 v12, {D['FL']}"); k("v_mov_b32 v15, 1"); k("ds_write_b32 v12, v15")
        k.place(ok)
        k("v_rcp_f32 v13, v13")
        k("s_mul_i32 s47, s46, 1824"); k(f"s_add_u32 s47, s47, {D['OL']}"); k("v_add_u32 v10, s47, v9")
        for j in range(4):
            for r in range(4): k(f"v_mul_f32 v{T+4*j+r}, v{T+4*j+r}, v13")
            k(f"v_cvt_pk_bf16_f32 v{T+4*j}, v{T+4*j}, v{T+4*j+1}"); k(f"v_cvt_pk_bf16_f32 v{T+4*j+1}, v{T+4*j+2}, v{T+4*j+3}")
            if j == 3:
                k("v_add_u32 v10, 48, v10"); k("v_cndmask_b32 v10, v10, v11, s[74:75]")
                k(f"ds_write_b64 v10, {vr(T+12,2)}")
            else: k(f"ds_write_b64 v10, {vr(T+4*j,2)} offset:{16*j}")
        k.place(skip)
    k("s_waitcnt lgkmcnt(0)"); k("s_barrier")
    k(f"v_mov_b32 v12, {D['FL']}"); k("ds_read_b32 v12, v12")
    k(f"v_min_u32 v7, {R-1}, v2"); k("v_mul_u32_u24 v7, 912, v7"); k("v_lshl_add_u32 v7, v3, 4, v7")
    for ks in range(14): k(f"ds_read_b128 {vr(XB+4*ks,4)}, v7 offset:{D['OL']+ks*64}")
    k("s_waitcnt lgkmcnt(14)")
    k("v_readfirstlane_b32 s46, v12")
    k("s_andn2_b32 s46, s46, s78")
    k("s_cmp_eq_u32 s46, 1"); k(f"s_cbranch_scc1 {slow}")
    k("s_waitcnt vmcnt(24) lgkmcnt(0)")
    short = k.label()
    for i in range(8):
        if i == 5: k("s_waitcnt vmcnt(14)")
        if i == 6:
            k(f"s_cmp_ge_u32 s{S_WAVE}, 2"); k(f"s_cbranch_scc1 {short}")
        if i == 7: k("s_waitcnt vmcnt(0)")
        a = OUT + 4*i
        for ks in range(14): k(mf16(a, oreg(i*14+ks), XB+4*ks, None if ks == 0 else a))
        if i == 0:
            k(f"s_add_u32 s46, s62, {96*1024}")
            for o in range(98, 112):
                for x in wl(o): k(x)
    k.place(short)
    k("v_mov_b32 v9, 0x7fffffff"); k("v_cndmask_b32 v8, v9, v14, s[72:73]")
    k("s_lshl_b32 s46, s69, 10"); k("v_add_u32 v5, s46, v5"); k("v_cndmask_b32 v5, v9, v5, s[72:73]")
    k(f"s_lshl_b32 s46, s{S_WAVE}, 2"); k("v_lshlrev_b32 v11, 4, v2"); k("v_add_u32 v10, s46, v11")
    k(f"s_mov_b32 s49, {L.XTA[1]}")
    def res_store(pp, q, r): k(f"buffer_store_dwordx4 {vr(r,4)}, v8, s[8:11], 0 offen offset:{pp*64} sc1")
    def xn_store(pp, q, r): k(f"buffer_store_dwordx4 {vr(r,4)}, v5, {WS}, s49 offen offset:{pp*1024} sc1")
    ln_epilogue(k, lambda pp, q, t: OUT + (2*pp+t)*4, 1, lambda pp, q: XRS+4*pp, 16, 24, 10, D['ST'], res_store, xn_store, fin)
    k("s_waitcnt vmcnt(0)"); k("s_barrier")
    k(f"s_cmp_lg_u32 s{S_WAVE}, 0"); k(f"s_cbranch_scc1 {fin}")
    k("v_lshrrev_b32 v12, 5, v4"); k("v_lshlrev_b32 v12, 7, v12"); k("v_mov_b32 v13, 1"); k(f"s_mov_b32 s46, {L.RC(1)}")
    k("s_and_b64 exec, s[72:73], 0xffff")
    k(f"buffer_atomic_add v13, v12, {WS}, s46 offen sc1")
    k("s_mov_b64 exec, -1")
    k(f"s_branch {fin}")
    k.place(slow)
    k("s_waitcnt vmcnt(0) lgkmcnt(0)"); k("s_barrier")
    k("s_mov_b32 s78, 1")
    qread()
    for q in range(QT): k(f"v_mov_b32 v{MX+q}, {NINF}")
    k("s_mov_b32 s67, s65"); k("s_mov_b32 s68, s66"); k("s_mov_b32 s70, 16")
    lm = k.label("LM"); k.place(lm)
    kvload(0)
    k("s_waitcnt vmcnt(0) lgkmcnt(0)")
    for q in range(QT):
        s = SS[0]
        k(mf32(s, KV[0], QO+8*q, None)); k(mf32(s, KV[0]+4, QO+8*q+4, s))
        for r in range(0, 16, 2): k(f"v_max3_f32 v{MX+q}, v{MX+q}, v{s+r}, v{s+r+1}")
    k("s_sub_u32 s70, s70, 1"); k("s_cmp_lg_u32 s70, 0"); k(f"s_cbranch_scc1 {lm}")
    k("v_and_b32 v7, 31, v0"); k("v_lshlrev_b32 v7, 2, v7"); k(f"s_lshl_b32 s46, s{S_WAVE}, 10"); k("v_add_u32 v12, s46, v7")
    for q in range(QT):
        k(f"v_mov_b32 v13, v{MX+q}"); k(f"v_permlane32_swap_b32 v{MX+q}, v13"); k(f"v_max_f32 v{MX+q}, v{MX+q}, v13")
        k(f"ds_write_b32 v12, v{MX+q} offset:{D['MXL']+q*128}")
    k("s_waitcnt lgkmcnt(0)"); k("s_barrier")
    for q in range(QT):
        for w in range(4): k(f"ds_read_b32 v{SS[0]+w}, v7 offset:{D['MXL']+w*1024+q*128}")
        k("s_waitcnt lgkmcnt(0)")
        k(f"v_max3_f32 v{MX+q}, v{SS[0]}, v{SS[0]+1}, v{SS[0]+2}"); k(f"v_max_f32 v{MX+q}, v{MX+q}, v{SS[0]+3}")
    for i in range(8*QT): k(f"v_mov_b64 {vr(O+2*i,2)}, 0")
    k("s_mov_b32 s67, s65"); k("s_mov_b32 s68, s66"); k("s_mov_b32 s70, 16")
    lp = k.label("LK"); k.place(lp)
    kvload(0)
    k("s_waitcnt vmcnt(0)")
    for q in range(QT):
        s = SS[0]
        for r in range(16): k(f"v_sub_f32 v{s+r}, 0, v{MX+q}")
        k(mf32(s, KV[0], QO+8*q, s)); k(mf32(s, KV[0]+4, QO+8*q+4, s))
        for h in range(2):
            for r in range(8*h, 8*h+8): k(f"v_exp_f32 v{s+r}, v{s+r}")
            for j in range(4): k(f"v_cvt_pk_bf16_f32 v{PP+4*h+j}, v{s+8*h+2*j}, v{s+8*h+2*j+1}")
            k(mf32(O+16*q, KV[0]+8+4*h, PP+4*h, O+16*q))
    k("s_sub_u32 s70, s70, 1"); k("s_cmp_lg_u32 s70, 0"); k(f"s_cbranch_scc1 {lp}")
    k(f"s_branch {redo}")
    k.place(fin)
```

```python
from gen import *
import gen

ASL = 0
APOLL = 0
UV = 0
XPK = 0
BSL = 0
PSL = 0
XSIG = 0
XNOU = 0
XACK = 0
XSLEEP = 0
XNOEXP = 0
XPOLL = 0
NB = 9
PFD = 2

DIAG = False
DBGOFF = 0xF000000
def stamp(k, i):
    if DIAG == 3: k(f"s_memrealtime s[{72+2*i}:{73+2*i}]")
    elif DIAG: k(f"s_memtime s[{72+2*i}:{73+2*i}]")
def stamp_acc(k, n):
    if not DIAG: return
    k("s_waitcnt lgkmcnt(0)")
    if DIAG == 3:
        for i in range(1, n): k(f"s_add_u32 s{87+i}, s{87+i}, s{72+2*i}")
        return
    for i in range(n-1):
        k(f"s_sub_u32 s71, s{72+2*(i+1)}, s{72+2*i}"); k(f"s_add_u32 s{88+i}, s{88+i}, s71")
T0 = 0
def stamp_init(k):
    if DIAG or T0:
        for i in range(8): k(f"s_mov_b32 s{88+i}, 0")
        k("s_memtime s[72:73]"); k("s_waitcnt lgkmcnt(0)"); k("s_mov_b32 s95, s72")
def stamp_out(k):
    if not (DIAG or T0): return
    k("s_memtime s[72:73]"); k("s_waitcnt lgkmcnt(0)"); k("s_sub_u32 s95, s72, s95")
    for i in range(8): k(f"v_mov_b32 v{16+i}, s{88+i}")
    k(f"s_lshl_b32 s46, s59, 2"); k(f"s_add_u32 s46, s46, s{S_WAVE}"); k("s_lshl_b32 s46, s46, 5"); k(f"s_add_u32 s46, s46, {DBGOFF}")
    k("v_mov_b32 v24, 0")
    k(f"buffer_store_dwordx4 v[16:19], v24, {WS}, s46 offen"); k(f"buffer_store_dwordx4 v[20:23], v24, {WS}, s46 offen offset:16")

def interleave(k, main, side):
    for i, m in enumerate(main):
        k(m)
        for s in side.get(i, []): k(s)

def ugate(k, need, v128, vt, abort):
    gate(k, L.UC(0), 4, 28, need, 96, v128, vt, abort)

def poll_rot(k, loads, tmp, abort, pre_issued=False):
    from itertools import permutations
    n = len(loads)
    done = k.label("Lrd")
    lab = {}
    def L_(st):
        if st not in lab: lab[st] = k.label("Lr")
        return lab[st]
    def check(j):
        r = loads[j][1]
        if len(r) == 1: k(f"v_cmp_eq_u32 vcc, -1, v{r[0]}")
        else:
            k(f"v_max3_u32 v{tmp}, v{r[0]}, v{r[1]}, v{r[2]}"); k(f"v_max_u32 v{tmp}, v{tmp}, v{r[3]}"); k(f"v_cmp_eq_u32 vcc, -1, v{tmp}")
    k(f"s_mov_b32 s70, {TIMEOUT}")
    if not pre_issued:
        for j in range(n): k(loads[j][0])
    emitted = set(); deferred = []
    def spin(st):
        m = len(st)
        rots = [st[i:] + st[:i] for i in range(m)]
        for i, r in enumerate(rots):
            emitted.add(r); k.place(L_(r))
            j = r[0]
            k(f"s_waitcnt vmcnt({m-1})")
            check(j)
            hit = ("hit", r)
            k(f"s_cbranch_vccz {L_(hit)}"); deferred.append(r)
            k(loads[j][0])
            if i == m - 1:
                k("s_sub_u32 s70, s70, 1"); k(f"s_cbranch_scc0 {L_(rots[0])}"); k(f"s_branch {abort}")
    def hit(r):
        k.place(L_(("hit", r)))
        while True:
            for x in loads[r[0]][2]: k(x)
            r = r[1:]
            if not r:
                k(f"s_branch {done}"); return
            k(f"s_waitcnt vmcnt({len(r)-1})")
            check(r[0])
            miss = ("miss", r)
            k(f"s_cbranch_vccnz {L_(miss)}"); pend.append(r)
    spin(tuple(range(n)))
    pend = []; seen_hit = set(); seen_miss = set()
    while deferred or pend:
        while deferred:
            r = deferred.pop(0)
            if r not in seen_hit: seen_hit.add(r); hit(r)
        while pend:
            r = pend.pop(0)
            if r in seen_miss: continue
            seen_miss.add(r)
            k.place(L_(("miss", r)))
            k(loads[r[0]][0])
            nr = r[1:] + r[:1]
            if nr in emitted: k(f"s_branch {L_(nr)}")
            else: spin(nr)
    k.place(done)

def poll_mem(k, s_addr, abort, t=44):
    lp = k.label("Lpm")
    k(f"s_mov_b32 s70, {TIMEOUT}")
    k.place(lp)
    k(f"buffer_load_dword v{t}, v4, {WL}, s{s_addr} offen sc1")
    k(f"buffer_load_dwordx4 v3, {WL}, s{s_addr} offen sc1 lds")
    k(f"buffer_load_dwordx4 v3, {WL}, s{s_addr} offen offset:1024 sc1 lds")
    k("s_sub_u32 s70, s70, 1")
    k(f"s_cbranch_scc1 {abort}")
    k("s_waitcnt vmcnt(2)")
    k(f"v_cmp_eq_u32 vcc, -1, v{t}")
    k(f"s_cbranch_vccnz {lp}")
    k("s_waitcnt vmcnt(0)")

def poll_mem2(k, s_addr, abort, R0, R1, t):
    lp = k.label("Lpm"); got = [k.label("Lpg"), k.label("Lpg")]; join = k.label("Lpj")
    R = [R0, R1]
    def iss(d):
        k(f"buffer_load_dwordx4 {vr(R[d],4)}, v3, {WL}, s{s_addr} offen sc1"); k(f"buffer_load_dwordx4 {vr(R[d]+4,4)}, v4, {WL}, s{s_addr} offen sc1")
    k(f"s_mov_b32 s70, {TIMEOUT}")
    iss(0)
    k("s_nop 15")
    k.place(lp)
    for d in range(2):
        iss(1-d)
        if d == 0:
            k("s_sub_u32 s70, s70, 1"); k(f"s_cbranch_scc1 {abort}")
        k("s_waitcnt vmcnt(2)")
        k(f"v_max_u32 v{t}, v{R[d]}, v{R[d]+4}"); k(f"v_cmp_eq_u32 vcc, -1, v{t}")
        k(f"s_cbranch_vccz {got[0]}" if d == 0 else f"s_cbranch_vccnz {lp}")
    for d in (1, 0):
        k.place(got[d])
        k(f"ds_write_b128 v3, {vr(R[d],4)}"); k(f"ds_write_b128 v4, {vr(R[d]+4,4)}")
        if d == 1: k(f"s_branch {join}")
    k.place(join)
    k("s_waitcnt lgkmcnt(0)")

def mem_full_check(M, t):
    r = list(range(M, M+28))
    out = [f"v_max3_u32 v{t}, v{r[0]}, v{r[1]}, v{r[2]}"]
    r = r[3:]
    while len(r) >= 2:
        out.append(f"v_max3_u32 v{t}, v{t}, v{r[0]}, v{r[1]}"); r = r[2:]
    out.append(f"v_max_u32 v{t}, v{t}, v{r[0]}")
    return out

def mem_common_setup(k):
    k("v_lshlrev_b32 v1, 4, v0")
    k("v_and_b32 v2, 8, v0")
    k("v_cmp_eq_u32 vcc, 0, v2")
    k("v_mov_b32 v2, 0xeeee")
    k("v_mov_b32 v3, 0x4444")
    k("v_cndmask_b32 v2, v2, v3, vcc")
    k(f"s_lshl_b32 s46, s{S_WAVE}, 11"); k("s_mov_b32 m0, s46")
    k("v_add_u32 v3, s46, v1")
    k(f"s_cmp_eq_u32 s{S_WAVE}, 3"); k("s_cselect_b32 s47, 7, 15")
    k("v_and_b32 v4, s47, v0"); k("v_lshlrev_b32 v4, 7, v4"); k("v_add_u32 v4, s46, v4")

M = 16
SPW = 8*176
def gen_chain_A(k, st, abort):
    TT = 8192; SP = TT + 4*3584
    def W(i, p):
        o = i*7 + p
        return vr(256 + 8*o, 8) if o < 32 else vr(120 + 8*(o-32), 8)
    ACC = [52, 56, 60]; CV = 114; TB = [64, 68]; XK = 72; MK = 100; SX0, SX1, SM = 44, 48, 116
    def xk(pair, t): return XK + (pair*2 + t)*4
    XS = XK + 24
    def loadx():
        for t in range(2):
            if t == 1: k(f"s_add_u32 s64, s62, {14*1024}")
            so = "s62" if t == 0 else "s64"
            for pr in range(3):
                k(f"buffer_load_dwordx4 {vr(xk(pr,t),4)}, v6, {WL}, {so} offen offset:{pr*1024} sc1")
            k(f"buffer_load_dwordx2 {vr(XS+2*t,2)}, v14, {WL}, {so} offen sc1")
        k(f"s_add_u32 s62, s62, {28*1024}")
    loop = k.label("LA")
    k(f"s_mov_b32 s61, {L.MEM[0]}")
    k(f"s_mul_i32 s65, s60, 640"); k(f"s_add_u32 s65, s65, {L.PIM[0]}")
    k(f"s_mov_b32 s62, {L.XTA[0]}")
    k("s_mov_b32 s96, 0"); k("s_mov_b32 s98, 0")
    ugate(k, "s98", "v_lshlrev_b32 v16, 3, v1", 16, abort)
    loadx()
    k("s_mov_b32 s67, 63")
    gen.tl(k, 1, 16)
    for r in range(2): k(f"v_mov_b64 {vr(ACC[1]+2*r,2)}, 0")
    stamp_init(k)
    redo = k.label("LAr")
    k.place(loop)
    for r in range(2): k(f"v_mov_b64 {vr(ACC[0]+2*r,2)}, 0")
    stamp(k, 0)
    if APOLL: poll_mem2(k, 61, abort, 44, 100, 114)
    else: poll_mem(k, 61, abort)
    stamp(k, 1)
    if DIAG == 1:
        k(f"s_sub_u32 s71, {TIMEOUT}, s70"); k("s_add_u32 s94, s94, s71")
    k("s_barrier")
    stamp(k, 2)
    for p in range(7): k(f"ds_read_b128 {vr(M+4*p,4)}, v1 offset:{p*1024}")
    mk = [f"ds_read2_b32 {vr(MK,2)}, v7 offset0:0 offset1:32", f"ds_read2_b32 {vr(MK+2,2)}, v7 offset0:1 offset1:33",
          f"ds_read2_b32 {vr(MK+4,2)}, v7 offset0:128 offset1:160", f"ds_read2_b32 {vr(MK+6,2)}, v7 offset0:129 offset1:161",
          f"ds_read2_b32 {vr(MK+8,2)}, v15 offset0:0 offset1:32", f"ds_read2_b32 {vr(MK+10,2)}, v15 offset0:1 offset1:33",
          f"ds_read2_b32 {vr(MK+12,2)}, v5 offset0:0 offset1:32"]
    if APOLL: mk[0] = "s_waitcnt vmcnt(0)\n" + mk[0]
    T0R = ACC[1]
    for i in range(7):
        a = ACC[i % 3]; z = ACC[(i+1) % 3]; pa = ACC[(i-1) % 3]
        main = [f"v_smfmac_f32_16x16x64_bf16 {vr(a,4)}, {vr(M+4*p,4)}, {W(i,p)}, v2" for p in range(7)]
        side = {}
        if i == 0:
            for p in range(7): main[p] = f"s_waitcnt lgkmcnt({6-p})\n" + main[p]
        else:
            j = i - 1
            side[2] = [f"v_cvt_pk_bf16_f32 v{CV}, v{pa}, v{pa+1}"]
            side[3] = [f"v_cvt_pk_bf16_f32 v{CV+1}, v{pa+2}, v{pa+3}"]
            side[4] = [f"ds_write_b64 v8, {vr(CV,2)} offset:{j*512}"]
            if j >= 2: side[5] = [f"ds_read_b64_tr_b16 {vr(TB[(j >> 1) & 1] + 2*(j & 1),2)}, v9 offset:{j*512}"]
            if i < 6:
                side[0] = [f"v_mov_b64 {vr(z,2)}, 0"]; side[1] = [f"v_mov_b64 {vr(z+2,2)}, 0"]
            else:
                side[0] = [f"ds_read_b64_tr_b16 {vr(T0R,2)}, v9"]; side[1] = [f"ds_read_b64_tr_b16 {vr(T0R+2,2)}, v9 offset:512"]
            if i == 1: side[5] = [mk[0]]; side[6] = [mk[1]]
            if i == 2: side[5] = [mk[2]]; side[6] = [mk[3]]
            if 3 <= i <= 5: side[6] = [mk[i+1]]
        interleave(k, main, side)
    a = ACC[0]
    stamp(k, 3)
    fc = mem_full_check(M, ACC[2])
    def smm(pr, tb, first=False):
        c = (lambda r: "0") if first else (lambda r: vr(r,4))
        return [f"v_mfma_f32_16x16x32_bf16 {vr(SX0,4)}, {vr(xk(pr,0),4)}, {vr(tb,4)}, {c(SX0)}",
                f"v_mfma_f32_16x16x32_bf16 {vr(SX1,4)}, {vr(xk(pr,1),4)}, {vr(tb,4)}, {c(SX1)}",
                f"v_mfma_f32_16x16x32_bf16 {vr(SM,4)}, {vr(MK+4*pr,4)}, {vr(tb,4)}, {c(SM)}"]
    k("s_waitcnt lgkmcnt(2)")
    t1 = smm(1, TB[1], True); t0 = smm(0, T0R); t2 = smm(2, TB[0])
    k(t1[0]); k(t1[1])
    k(f"v_cvt_pk_bf16_f32 v{CV}, v{a}, v{a+1}")
    k(f"v_cvt_pk_bf16_f32 v{CV+1}, v{a+2}, v{a+3}")
    k(t1[2])
    k(f"ds_write_b64 v8, {vr(CV,2)} offset:{6*512}")
    k(f"ds_read_b64_tr_b16 {vr(CV,2)}, v9 offset:{6*512}")
    interleave(k, t0, {0: fc[0:2], 1: fc[2:4], 2: fc[4:6] + ["s_waitcnt lgkmcnt(2)"]})
    interleave(k, t2, {0: fc[6:8], 1: fc[8:10], 2: fc[10:12] + ["s_waitcnt lgkmcnt(0)"]})
    k(f"v_mfma_f32_16x16x16_bf16 {vr(SX0,4)}, {vr(XS,2)}, {vr(CV,2)}, {vr(SX0,4)}")
    k(f"v_mfma_f32_16x16x16_bf16 {vr(SX1,4)}, {vr(XS+2,2)}, {vr(CV,2)}, {vr(SX1,4)}")
    k(fc[12])
    k(f"v_mfma_f32_16x16x16_bf16 {vr(SM,4)}, {vr(MK+12,2)}, {vr(CV,2)}, {vr(SM,4)}")
    k(fc[13])
    k(f"v_cmp_eq_u32 vcc, -1, v{ACC[2]}")
    Y = TB[0]
    for r in range(4): k(f"v_add_f32_dpp v{Y+r}, v{SX0+r}, v{SX0+r} row_ror:8 row_mask:0xf bank_mask:0x3")
    for r in range(4): k(f"v_add_f32_dpp v{Y+r}, v{SX1+r}, v{SX1+r} row_ror:8 row_mask:0xf bank_mask:0xc")
    k(f"ds_write_b128 v10, {vr(Y,4)}")
    for r in range(4): k(f"v_add_f32_dpp v{Y+4}, v{SM+r}, v{SM+r} row_ror:8 row_mask:{'0x3' if r<2 else '0xc'} bank_mask:{'0xc' if r&1 else '0x3'}")
    k(f"ds_write_b32 v11, v{Y+4}")
    k(f"s_cbranch_vccnz {redo}")
    for r in range(2): k(f"v_mov_b64 {vr(ACC[1]+2*r,2)}, 0")
    k("s_waitcnt lgkmcnt(0)")
    k("s_barrier")
    stamp(k, 4)
    R = 16
    for q in range(4): k(f"ds_read_b64 {vr(R+2*q,2)}, v12 offset:{q*SPW}")
    k("s_waitcnt lgkmcnt(2)"); k(f"v_pk_add_f32 {vr(R,2)}, {vr(R,2)}, {vr(R+2,2)}")
    k("s_waitcnt lgkmcnt(0)"); k(f"v_pk_add_f32 {vr(R+4,2)}, {vr(R+4,2)}, {vr(R+6,2)}")
    k(f"v_pk_add_f32 {vr(R,2)}, {vr(R,2)}, {vr(R+4,2)}")
    def allred32(v, t, op):
        for sh in (8, 4, 2, 1):
            k(f"{op}_dpp v{v}, v{v}, v{v} row_ror:{sh} row_mask:0xf bank_mask:0xf")
        k(f"v_mov_b32 v{t}, v{v}")
        k(f"v_permlane16_swap_b32 v{v}, v{t}")
        k(f"{op} v{v}, v{v}, v{t}")
    slowmax = k.label("LAm"); publish = k.label("LAp")
    def normalise(check):
        k(f"v_exp_f32 v{R+4}, v{R}"); k(f"v_exp_f32 v{R+5}, v{R+1}")
        k(f"v_add_f32 v{R+2}, v{R+4}, v{R+5}")
        allred32(R+2, R+3, "v_add_f32")
        if check:
            k(f"v_med3_f32 v{R+3}, v{R+2}, s56, v0"); k(f"v_cmp_neq_f32 vcc, v{R+3}, v{R+2}")
        k(f"v_rcp_f32 v{R+2}, v{R+2}")
        k(f"v_mul_f32 v{R+4}, v{R+4}, v{R+2}"); k(f"v_mul_f32 v{R+5}, v{R+5}, v{R+2}")
        k(f"v_cvt_pk_bf16_f32 v{R+4}, v{R+4}, v{R+5}")
        k(f"v_min_u32 v{R+4}, -2, v{R+4}")
    normalise(True)
    k(f"s_cbranch_vccnz {slowmax}")
    k.place(publish)
    k(f"buffer_store_dword v{R+4}, v13, {WL}, s65 offen {st}")
    stamp(k, 5)
    if XACK:
        k("s_waitcnt vmcnt(0)"); stamp(k, 6)
    k("s_barrier")
    k("s_add_u32 s98, s98, 1")
    ugate(k, "s98", "v_lshlrev_b32 v24, 3, v1", 24, abort)
    loadx()
    if ASL: k(f"s_sleep {ASL}")
    if not XACK: stamp(k, 6)
    stamp_acc(k, 7)
    k(f"s_add_u32 s65, s65, {L.PSZ}"); k(f"s_add_u32 s61, s61, {L.MSTEP}")
    if gen.TL:
        for (n, ix) in ((53, 2), (33, 3)):
            lz = k.label(); k(f"s_cmp_lg_u32 s67, {n}"); k(f"s_cbranch_scc1 {lz}"); gen.tl(k, ix, 20); k.place(lz)
    k("s_sub_u32 s67, s67, 1"); k("s_cmp_lg_u32 s67, 0"); k(f"s_cbranch_scc1 {loop}")
    gen.tl(k, 4, 16)
    stamp_out(k)
    out = k.label("LAo"); k(f"s_branch {out}")
    k.place(slowmax)
    k(f"v_max_f32 v{R+2}, v{R}, v{R+1}")
    allred32(R+2, R+3, "v_max_f32")
    k(f"v_sub_f32 v{R}, v{R}, v{R+2}"); k(f"v_sub_f32 v{R+1}, v{R+1}, v{R+2}")
    normalise(False)
    k(f"s_branch {publish}")
    k.place(redo)
    k("s_waitcnt lgkmcnt(0)"); k("s_barrier")
    for r in range(2): k(f"v_mov_b64 {vr(ACC[1]+2*r,2)}, 0")
    k(f"s_branch {loop}")
    k.place(out)

def setup_A(k):
    TT = 8192; SP = TT + 4*3584
    mem_common_setup(k)
    if APOLL:
        k(f"s_mul_i32 s46, s{S_WAVE}, {112*16}"); k("v_add_u32 v3, s46, v1"); k("v_add_u32 v4, 1024, v3")
        k(f"v_add_u32 v5, {1024-768}, v3"); k("v_cmp_gt_u32 vcc, 48, v0"); k("v_cndmask_b32 v4, v5, v4, vcc")
    k(f"s_lshr_b32 s46, s{S_WAVE}, 1"); k("s_mul_i32 s46, s46, 7")
    k(f"s_and_b32 s69, s{S_WAVE}, 1")
    k("s_lshl_b32 s66, s69, 2"); k("s_add_u32 s66, s66, s46")
    k("s_add_u32 s68, s46, 3")
    k(f"s_mul_i32 s47, s60, 28"); k("s_lshl_b32 s48, s66, 1"); k("s_add_u32 s48, s48, s47")
    k(f"s_mul_i32 s48, s48, {14*1024}"); k(f"s_add_u32 s48, s48, {L.WQ}")
    k("s_lshl_b32 s49, s68, 1"); k("s_add_u32 s49, s49, s69"); k("s_add_u32 s49, s49, s47")
    k(f"s_mul_i32 s49, s49, {14*1024}"); k(f"s_add_u32 s49, s49, {L.WQ}")
    for n in range(98):
        reg = 256 + 4*n if n < 64 else 120 + 4*(n-64)
        if n == 84: k("s_mov_b32 s48, s49")
        nn = n if n < 84 else n - 84
        if nn % 4 == 0 and nn: k("s_add_u32 s48, s48, 4096")
        k(f"buffer_load_dwordx4 {vr(reg,4)}, v1, {WS}, s48 offen offset:{(nn%4)*1024}")
    k("v_and_b32 v16, 15, v0")
    k("v_lshrrev_b32 v17, 4, v0")
    k("v_bfe_u32 v18, v0, 1, 1"); k("v_lshlrev_b32 v18, 2, v18")
    k("v_bfe_u32 v19, v0, 2, 1"); k("v_lshl_add_u32 v18, v19, 1, v18")
    k("v_and_b32 v19, 1, v0"); k("v_add_u32 v18, v18, v19")
    k("v_lshlrev_b32 v18, 4, v18")
    k("v_lshrrev_b32 v19, 1, v17"); k("v_lshl_add_u32 v18, v19, 8, v18")
    k("v_and_b32 v19, 1, v17"); k("v_lshl_add_u32 v18, v19, 3, v18")
    k("s_lshl_b32 s46, s66, 9"); k("v_add_u32 v7, s46, v18")
    k("v_add_u32 v15, 1024, v7")
    k("s_lshl_b32 s46, s68, 9"); k("s_lshl_b32 s47, s69, 2"); k("s_add_u32 s46, s46, s47")
    k("v_add_u32 v5, s46, v18")
    k(f"s_mul_i32 s46, s{S_WAVE}, 3584"); k(f"s_add_u32 s46, s46, {TT}")
    k("v_lshlrev_b32 v8, 5, v16"); k("v_lshl_add_u32 v8, v17, 3, v8"); k("v_add_u32 v8, s46, v8")
    k("v_lshlrev_b32 v9, 3, v0"); k("v_add_u32 v9, s46, v9")
    k(f"s_mul_i32 s46, s{S_WAVE}, {SPW}"); k(f"s_add_u32 s46, s46, {SP}")
    k("v_and_b32 v19, 7, v0"); k("v_mul_u32_u24 v18, 176, v19"); k("v_add_u32 v18, s46, v18")
    k("v_lshrrev_b32 v19, 3, v16")
    k("v_lshl_add_u32 v10, v17, 5, v18"); k("v_lshl_add_u32 v10, v19, 4, v10")
    k("v_and_b32 v20, 1, v17"); k("v_lshl_add_u32 v11, v20, 4, v18")
    k("v_lshrrev_b32 v20, 1, v17"); k("v_lshl_add_u32 v11, v20, 3, v11")
    k("v_lshl_add_u32 v11, v19, 2, v11"); k("v_add_u32 v11, 128, v11")
    k(f"v_mov_b32 v20, {hx(f2u(-1e30))}"); k("v_mov_b32 v21, v20")
    k("ds_write_b64 v18, v[20:21] offset:160")
    k("v_and_b32 v19, 31, v0"); k("v_lshrrev_b32 v20, 5, v0")
    k(f"s_lshl_b32 s46, s{S_WAVE}, 1"); k("v_add_u32 v20, s46, v20")
    k("v_lshlrev_b32 v21, 3, v19"); k("v_cmp_gt_u32 vcc, 20, v19"); k("v_mov_b32 v22, 160")
    k("v_cndmask_b32 v21, v22, v21, vcc")
    k("v_mul_u32_u24 v22, 176, v20"); k("v_add_u32 v12, v21, v22"); k(f"v_add_u32 v12, {SP}, v12")
    k("v_lshrrev_b32 v21, 2, v19"); k("v_lshl_add_u32 v21, v21, 3, v20"); k("v_lshlrev_b32 v21, 4, v21")
    k("v_and_b32 v22, 3, v19"); k("v_lshl_add_u32 v21, v22, 2, v21")
    k("v_mov_b32 v22, 0x7fffffff"); k("v_cndmask_b32 v13, v22, v21, vcc")
    k("s_lshl_b32 s46, s68, 10"); k("s_lshl_b32 s47, s69, 3"); k("s_add_u32 s46, s46, s47")
    k("v_add_u32 v14, s46, v1")
    k("s_lshl_b32 s46, s66, 10"); k("v_add_u32 v6, s46, v1")
    k(f"s_mov_b32 s56, {hx(f2u(2.0**-60))}"); k(f"v_mov_b32 v0, {hx(f2u(2.0**60))}")
    k("s_waitcnt vmcnt(0) lgkmcnt(0)")

B_TB = 8192
B_OUT = B_TB + 8192
B_LW = B_OUT + 8192
CHAIN_LDS = B_LW + 4*28*1024

def setup_B(k):
    mem_common_setup(k)
    k(f"s_lshl_b32 s46, s{S_WAVE}, 2"); k("s_mul_i32 s46, s46, 28"); k("s_lshl_b32 s47, s60, 1"); k("s_add_u32 s46, s46, s47")
    k(f"s_mul_i32 s46, s46, {14*1024}"); k(f"s_add_u32 s46, s46, {L.WV}")
    k(f"s_mul_i32 s47, s{S_WAVE}, {28*1024}"); k(f"s_add_u32 s47, s47, {B_LW}")
    k("v_add_u32 v15, s47, v1")
    for hh in (3, 0, 1, 2):
        k(f"s_add_u32 s48, s46, {hh*28*14*1024}")
        for n in range(28):
            if hh == 3: reg = 16 + 4*n
            else:
                q = hh*28 + n
                reg = 256 + 4*q if q < 64 else 176 + 4*(q-64)
            if n % 4 == 0 and n: k("s_add_u32 s48, s48, 4096")
            k(f"buffer_load_dwordx4 {vr(reg,4)}, v1, {WS}, s48 offen offset:{(n%4)*1024}")
        if hh == 0:
            k("s_waitcnt vmcnt(28)")
            for n in range(28): k(f"ds_write_b128 v15, {vr(16+4*n,4)} offset:{n*1024}")
    k("s_waitcnt lgkmcnt(0)")
    k("v_and_b32 v16, 15, v0"); k("v_lshrrev_b32 v17, 4, v0"); k("v_and_b32 v18, 7, v0")
    k(f"s_mul_i32 s46, s{S_WAVE}, 2560")
    k("v_lshl_add_u32 v7, v17, 3, v18"); k("v_lshlrev_b32 v7, 4, v7"); k("v_add_u32 v7, s46, v7")
    k("v_lshrrev_b32 v19, 3, v16"); k("v_mul_u32_u24 v19, 640, v19"); k("v_add_u32 v7, v7, v19")
    k("v_mul_u32_u24 v8, 640, v17"); k("v_lshl_add_u32 v8, v18, 4, v8"); k("v_add_u32 v8, s46, v8"); k("v_add_u32 v8, 512, v8")
    k(f"v_mul_u32_u24 v19, {28*1024}, v17"); k("v_lshl_add_u32 v19, v16, 7, v19"); k("v_mov_b32 v20, 0x7fffffff")
    k(f"v_cmp_gt_u32 vcc, {NB}, v16"); k("v_cndmask_b32 v5, v20, v19, vcc")
    k(f"s_lshl_b32 s46, s{S_WAVE}, 11"); k(f"s_add_u32 s47, s46, {B_TB}")
    k("v_lshlrev_b32 v9, 4, v16"); k("v_lshl_add_u32 v9, v17, 2, v9"); k("v_add_u32 v9, s47, v9")
    k("v_add_u32 v10, s47, v1")
    k(f"s_lshl_b32 s46, s{S_WAVE}, 10"); k(f"s_add_u32 s47, s46, {B_OUT}"); k("v_add_u32 v11, s47, v1")
    k("v_bfe_u32 v19, v0, 2, 3"); k("v_lshrrev_b32 v20, 5, v0"); k("v_bfe_u32 v21, v0, 1, 1"); k("v_and_b32 v22, 1, v0")
    k(f"s_lshl_b32 s46, s{S_WAVE}, 1"); k("s_and_b32 s46, s46, 2"); k("v_add_u32 v21, s46, v21")
    k("v_lshl_add_u32 v12, v21, 4, v19"); k("v_lshlrev_b32 v12, 4, v12"); k("v_lshl_add_u32 v12, v22, 7, v12")
    k("v_lshl_add_u32 v12, v20, 3, v12"); k(f"v_add_u32 v12, {B_OUT}, v12")
    k("s_lshl_b32 s47, s60, 9"); k("s_lshl_b32 s48, s46, 7"); k("s_add_u32 s48, s48, s47")
    k("v_lshlrev_b32 v13, 2, v0"); k("v_add_u32 v13, s48, v13")
    k("v_lshlrev_b32 v14, 7, v21"); k("v_lshl_add_u32 v14, v19, 4, v14"); k("v_lshl_add_u32 v14, v22, 3, v14")
    k("v_lshl_add_u32 v14, v20, 2, v14"); k("v_add_u32 v14, s47, v14")
    k("v_mov_b32 v19, 0x7fffffff"); k(f"s_cmp_ge_u32 s{S_WAVE}, 2"); k("s_cselect_b64 vcc, -1, 0"); k("v_cndmask_b32 v14, v14, v19, vcc")
    lane0_addr(k, 6, 19); k("v_mov_b32 v0, 1")
    k("s_waitcnt vmcnt(0)")

def gen_chain_B(k, st, abort):
    ACC = [52, 56, 60]; FT = 64; HOLD = 67; ZA = 68; U = 76; P = 108; LW = 108; DUM = 66
    def W(hh, t, p):
        o = (hh*2 + t)*7 + p
        return vr(256 + 8*o, 8) if o < 32 else vr(176 + 8*(o-32), 8)
    loop = k.label("LB"); done = k.label("LBd"); first = k.label("LBf"); nofin = k.label("LBn")
    k(f"s_mov_b32 s61, {L.MEM[0]}"); k(f"s_mov_b32 s65, {L.PIM[0]}")
    k(f"s_lshl_b32 s62, s{S_WAVE}, 2"); k("s_mul_i32 s62, s62, 28"); k("s_lshl_b32 s46, s60, 1"); k("s_add_u32 s62, s62, s46")
    k("s_lshl_b32 s62, s62, 10"); k(f"s_add_u32 s62, s62, {L.UU[0]}")
    k(f"s_mul_i32 s63, s{S_WAVE}, 28"); k("s_add_u32 s63, s63, s46"); k("s_lshl_b32 s63, s63, 10"); k(f"s_add_u32 s63, s63, {L.VM[0] - L.VMSZ}")
    k(f"s_mov_b32 s66, {L.MEMN[0]}")
    k("s_mov_b32 s67, 0")
    k("s_mov_b32 s96, 0"); k(f"s_mov_b32 s99, {L.FIN(0)}")
    stamp_init(k)
    k.place(loop)
    if True:
        k("s_add_u32 s98, s67, 1")
        ugate(k, "s98", "v_lshlrev_b32 v108, 3, v1", 108, abort)
    k("s_cmp_eq_u32 s67, 0"); k(f"s_cselect_b32 s57, {L.SPARE[0]}, s63"); k(f"s_cselect_b32 s58, {L.SPARE[0]}, s66")
    again = k.label("LBa"); k.place(again)
    TA = [52, 56, 60, 164, 168, 172, 44, 48]
    for a_ in TA:
        k(f"v_mov_b64 {vr(a_,2)}, 0"); k(f"v_mov_b64 {vr(a_+2,2)}, 0")
    stamp(k, 0)
    poll_mem(k, 61, abort, FT)
    stamp(k, 1)
    k("s_barrier")
    stamp(k, 2)
    for p in range(7): k(f"ds_read_b128 {vr(M+4*p,4)}, v1 offset:{p*1024}")
    if NB:
        k(f"s_add_u32 s64, s62, {16*28*1024}")
        k(f"buffer_load_dword v{DUM}, v5, {WL}, s64 offen")
    exports = [f"buffer_store_dwordx4 {vr(ZA,4)}, v1, {WL}, s57 offen sc1", f"buffer_store_dwordx4 {vr(ZA+4,4)}, v1, {WL}, s57 offen offset:1024 sc1",
               f"buffer_store_dword v{HOLD}, v14, {WL}, s58 offen sc1"]
    uload = []
    for hh in range(4):
        for t in range(2):
            pre = [f"s_add_u32 s64, s62, {hh*28*1024}"] if (hh and t == 0) else []
            uload.append(pre + [f"buffer_load_dwordx4 {vr(U+(hh*2+t)*4,4)}, v1, {WL}, {'s64' if hh else 's62'} offen offset:{t*1024} sc1"])
    order = [(0,0),(0,1),(1,0),(3,0),(1,1),(2,0),(2,1),(3,1)]
    def fold(j):
        pa = TA[j]; hh, t = order[j]
        return [f"v_permlane32_swap_b32 v{pa}, v{pa+2}", f"v_permlane32_swap_b32 v{pa+1}, v{pa+3}",
                f"v_pk_add_f32 {vr(pa,2)}, {vr(pa,2)}, {vr(pa+2,2)}" if not XPK else f"v_add_f32 v{pa}, v{pa}, v{pa+2}\nv_add_f32 v{pa+1}, v{pa+1}, v{pa+3}",
                f"v_cvt_pk_bf16_f32 v{pa}, v{pa}, v{pa+1}", f"ds_write_b32 v9, v{pa} offset:{t*1024+hh*256}"]
    lw = [[f"ds_read_b128 {vr(LW+4*(n%14),4)}, v15 offset:{n*1024}" for n in range(14*u, 14*u+14)] for u in range(2)]
    plan = {0: [[lw[0][p]] for p in range(7)]}
    def mix(f, extra):
        g = [[] for _ in range(7)]
        for q in range(5): g[2+q].append(f[q])
        slots = [0, 1, 4, 5, 3, 2, 6]
        for e, sl in zip(extra, slots): g[sl] += e if isinstance(e, list) else [e]
        return g
    vm = exports + uload if UV == 0 else uload + exports
    if XNOU: vm = exports
    plan[1] = mix(fold(0), [lw[0][7], lw[0][8], lw[0][9], lw[0][10]])
    plan[2] = mix(fold(1), [lw[0][11], lw[0][12], lw[0][13]])
    plan[3] = mix(fold(2), [])
    plan[4] = mix(fold(3), [lw[1][0], lw[1][1], lw[1][2], lw[1][3], lw[1][4]])
    plan[5] = mix(fold(4), [lw[1][5], lw[1][6], lw[1][7], lw[1][8], lw[1][9]])
    plan[6] = mix(fold(5), [lw[1][10], lw[1][11], lw[1][12], lw[1][13]])
    plan[7] = mix(fold(6), [])
    for e, (ti, g) in zip(vm, [(0,2),(0,6),(1,3),(2,0),(2,5),(3,0),(3,4),(4,2),(5,2),(6,3),(7,0)]):
        plan[ti][g] = plan[ti][g] + (e if isinstance(e, list) else [e])
    for i, (hh, t) in enumerate(order):
        a = TA[i]
        if hh == 3: k("s_waitcnt lgkmcnt(1)")
        main = [f"v_smfmac_f32_16x16x64_bf16 {vr(a,4)}, {vr(M+4*p,4)}, {W(hh,t,p) if hh<3 else vr(LW+8*p,8)}, v2" for p in range(7)]
        if i == 0:
            for p in range(7): main[p] = "s_waitcnt lgkmcnt(6)\n" + main[p]
        if DIAG == 2 and i == 0: stamp(k, 3)
        interleave(k, main, dict(enumerate(plan[i])))
        if DIAG == 2 and i == 2: stamp(k, 4)
        if DIAG == 2 and i == 5: stamp(k, 5)
    fc = mem_full_check(M, FT)
    for x in fc[:7]: k(x)
    for x in fold(7): k(x)
    k(f"ds_read_b128 {vr(ZA,4)}, v10"); k(f"ds_read_b128 {vr(ZA+4,4)}, v10 offset:1024")
    for x in fc[7:]: k(x)
    redo = k.label("LBr")
    k(f"v_cmp_eq_u32 vcc, -1, v{FT}"); k(f"s_cbranch_vccnz {redo}")
    k(f"s_add_u32 s62, s62, {16*28*1024}"); k(f"s_add_u32 s61, s61, {L.MSTEP}")
    k(f"s_add_u32 s63, s63, {L.VMSZ}"); k(f"s_add_u32 s66, s66, {L.MEMSZ}")
    stamp(k, 3 if DIAG != 2 else 6)
    k("s_cmp_eq_u32 s67, 63"); k(f"s_cbranch_scc1 {done}")
    lp = k.label("Lpp")
    Q = P; OUT = P + 24
    k("s_waitcnt lgkmcnt(0)")
    k.place(lp)
    for r in range(8): k(f"v_mov_b64 {vr(OUT+2*r,2)}, 0")
    def pv(heads, q):
        o = []
        for hh in heads:
            for t in range(2):
                d = OUT + 8*(hh & 1) + 4*t
                o.append(f"v_mfma_f32_16x16x32_bf16 {vr(d,4)}, {vr(U+(hh*2+t)*4,4)}, {vr(q,4)}, {vr(d,4)}")
        o.insert(1, f"v_max3_u32 v{FT+1}, v{FT+1}, v{q+1}, v{q+2}"); o.insert(3, f"v_max_u32 v{FT+1}, v{FT+1}, v{q+3}")
        return o
    mm = [f"v_mfma_f32_16x16x32_bf16 {vr(OUT,4)}, {vr(ZA,4)}, {vr(Q+8,4)}, {vr(OUT,4)}", f"v_max3_u32 v{FT+1}, v{FT+1}, v{Q+9}, v{Q+10}",
          f"v_mfma_f32_16x16x32_bf16 {vr(OUT+4,4)}, {vr(ZA+4,4)}, {vr(Q+8,4)}, {vr(OUT+4,4)}", f"v_max_u32 v{FT+1}, v{FT+1}, v{Q+11}"]
    k(f"v_mov_b32 v{FT+1}, 0")
    poll_rot(k, [(f"buffer_load_dwordx4 {vr(Q,4)}, v7, {WL}, s65 offen sc1", [Q], pv((0, 1), Q)),
                 (f"buffer_load_dwordx4 {vr(Q+4,4)}, v7, {WL}, s65 offen offset:1280 sc1", [Q+4], pv((2, 3), Q+4)),
                 (f"buffer_load_dwordx4 {vr(Q+8,4)}, v8, {WL}, s65 offen sc1", [Q+8], mm)], FT, abort)
    if DIAG != 2: stamp(k, 4)
    if DIAG == 1:
        k(f"s_sub_u32 s71, {TIMEOUT}, s70"); k("s_add_u32 s94, s94, s71")
    k(f"v_cmp_eq_u32 vcc, -1, v{FT+1}")
    k(f"s_cbranch_vccnz {lp}")
    Y = ACC[0]
    for r in range(4): k(f"v_add_f32_dpp v{Y+r}, v{OUT+8+r}, v{OUT+r} row_ror:8 row_mask:0xf bank_mask:0x3")
    for r in range(4): k(f"v_add_f32_dpp v{Y+r}, v{OUT+4+r}, v{OUT+12+r} row_ror:8 row_mask:0xf bank_mask:0xc")
    k(f"ds_write_b128 v11, {vr(Y,4)}")
    k(f"s_add_u32 s65, s65, {L.PSZ}")
    k("s_add_u32 s67, s67, 1")
    k("s_waitcnt lgkmcnt(0)")
    k("s_barrier")
    if DIAG != 2: stamp(k, 5)
    k(f"s_cmp_ge_u32 s{S_WAVE}, 2"); k(f"s_cbranch_scc1 {nofin}")
    for q in range(4): k(f"ds_read_b64 {vr(U+2*q,2)}, v12 offset:{q*1024}")
    k("s_waitcnt lgkmcnt(2)"); k(f"v_pk_add_f32 {vr(U,2)}, {vr(U,2)}, {vr(U+2,2)}")
    k("s_waitcnt lgkmcnt(0)"); k(f"v_pk_add_f32 {vr(U+4,2)}, {vr(U+4,2)}, {vr(U+6,2)}")
    k(f"v_pk_add_f32 {vr(U,2)}, {vr(U,2)}, {vr(U+4,2)}")
    k(f"v_cvt_pk_bf16_f32 v{HOLD}, v{U}, v{U+1}")
    k(f"v_min_u32 v{U}, -2, v{HOLD}")
    k(f"buffer_store_dword v{U}, v13, {WL}, s61 offen {st}")
    if DIAG != 2: stamp(k, 6)
    stamp_acc(k, 7)
    k.place(nofin)
    if not BSL: k("s_barrier")
    if BSL: k(f"s_sleep {BSL}")
    k(f"s_branch {loop}")
    k.place(redo)
    k("s_waitcnt vmcnt(0) lgkmcnt(0)"); k("s_barrier"); k(f"s_mov_b32 s57, {L.SPARE[0]}"); k("s_mov_b32 s58, s57"); k(f"s_branch {again}")
    k.place(done)
    k("s_waitcnt lgkmcnt(0)")
    k(f"buffer_store_dwordx4 {vr(ZA,4)}, v1, {WL}, s63 offen sc1")
    k(f"buffer_store_dwordx4 {vr(ZA+4,4)}, v1, {WL}, s63 offen offset:1024 sc1")
    if True:
        k("s_waitcnt vmcnt(0)"); k("s_barrier")
        lz = k.label(); k(f"s_cmp_lg_u32 s{S_WAVE}, 0"); k(f"s_cbranch_scc1 {lz}")
        signal(k, "s99", 6, 0)
        k.place(lz)
    stamp_out(k)

def gen_chain_P(k, abort):
    k(f"s_lshl_b32 s46, s60, 2"); k(f"s_add_u32 s46, s46, s{S_WAVE}")
    k("s_mov_b32 s94, s46")
    k("v_lshlrev_b32 v1, 7, v0"); k("v_mov_b32 v20, 0x7fffffff")
    k(f"s_mul_i32 s47, s46, {448*128}"); k("v_add_u32 v2, s47, v1")
    k("v_and_b32 v3, 15, v0"); k(f"v_cmp_le_u32 vcc, {NB}, v3"); k("v_cndmask_b32 v3, v20, v2, vcc")
    k(f"s_mul_i32 s47, s46, {28*128}"); k("v_add_u32 v4, s47, v1"); k("v_cmp_gt_u32 vcc, 28, v0"); k("v_cndmask_b32 v4, v20, v4, vcc")
    k(f"s_mul_i32 s47, s46, {7*L.NMC*128}"); k("v_add_u32 v5, s47, v1"); k(f"v_cmp_gt_u32 vcc, {7*L.NMC}, v0"); k("v_cndmask_b32 v5, v20, v5, vcc")
    k(f"s_mul_i32 s47, s46, {10*L.NPC*128}"); k("v_add_u32 v6, s47, v1"); k(f"v_cmp_gt_u32 vcc, {10*L.NPC}, v0"); k("v_cndmask_b32 v6, v20, v6, vcc")
    k("v_min_u32 v7, 27, v0"); k("v_lshlrev_b32 v7, 8, v7")
    k("v_mov_b32 v12, 0"); k(f"s_mov_b32 s99, {L.PROG(0)}"); k("s_mov_b32 s95, 1")
    k(f"s_mov_b32 s62, {L.UU[0]}"); k(f"s_mov_b32 s63, {L.XTA[0]}")
    k(f"s_mov_b32 s64, {L.MEM[0]+L.MSTEP}"); k(f"s_mov_b32 s65, {L.PIM[0]}")
    k(f"s_mov_b32 s61, {L.MEM[0]}")
    def touch(v, mid=None):
        k(f"buffer_load_dword v8, v5, {WL}, s64 offen"); k(f"buffer_load_dword v8, v6, {WL}, s65 offen")
        k(f"buffer_load_dword v8, v4, {WL}, s63 offen")
        for j in range(7):
            if j == 3 and mid: mid()
            k(f"s_add_u32 s66, s62, {j*8192}")
            k(f"buffer_load_dword v8, v{v}, {WL}, s66 offen")
        k(f"s_add_u32 s62, s62, {16*28*1024}"); k(f"s_add_u32 s63, s63, {28*1024}")
        k(f"s_add_u32 s64, s64, {L.MSTEP}"); k(f"s_add_u32 s65, s65, {L.PSZ}")
    def probe(): k(f"buffer_load_dword v9, v7, {WL}, s61 offen sc1")
    k("s_mov_b32 s96, 0"); k("s_mov_b32 s98, 0")
    def pgate():
        ugate(k, "s98", "v_mov_b32 v24, v1", 24, abort); k("s_add_u32 s98, s98, 1")
    pgate(); touch(2)
    for i in range(1, PFD):
        pgate(); touch(3)
    k(f"s_add_u32 s61, s61, {L.MSTEP}")
    loop = k.label("LP"); lp = k.label("LPp"); go = k.label("LPg"); pend = k.label("LPe"); nt = k.label("LPn"); np_ = k.label("LPq")
    k.place(loop)
    k(f"s_cmp_ge_u32 s98, 63"); k(f"s_cbranch_scc1 {nt}")
    pgate()
    touch(3, probe)
    k("s_waitcnt vmcnt(4)")
    k("v_cmp_eq_u32 vcc, -1, v9"); k(f"s_cbranch_vccz {go}")
    k.place(nt)
    k(f"s_mov_b32 s70, {TIMEOUT}")
    k.place(lp)
    if PSL: k(f"s_sleep {PSL}")
    probe()
    k("s_sub_u32 s70, s70, 1"); k(f"s_cbranch_scc1 {abort}")
    k("s_waitcnt vmcnt(0)")
    k("v_cmp_eq_u32 vcc, -1, v9"); k(f"s_cbranch_vccnz {lp}")
    k.place(go)
    if True:
        k("s_cmp_lg_u32 s94, 0"); k(f"s_cbranch_scc1 {np_}")
        k("v_mov_b32 v13, s95"); k("s_mov_b64 exec, 1")
        k(f"buffer_store_dword v13, v12, {WL}, s99 offen sc1")
        k("s_mov_b64 exec, -1")
        k.place(np_)
    k(f"s_add_u32 s61, s61, {L.MSTEP}")
    k("s_add_u32 s95, s95, 1"); k("s_cmp_le_u32 s95, 63"); k(f"s_cbranch_scc1 {loop}")
    k.place(pend)

def chain_roles(k, ex):
    lP = k.label("LroleP")
    srd(k, 8, P_DBG, 256)
    k("s_getreg_b32 s58, hwreg(HW_REG_XCC_ID)"); k("s_and_b32 s58, s58, 15"); k("s_add_u32 s58, s58, 1")
    k("v_mov_b32 v2, s58"); k("s_lshl_b32 s46, s59, 2"); k("v_mov_b32 v3, s46")
    k("buffer_store_dword v2, v3, s[8:11], 0 offen sc1")
    k("s_cmp_ge_u32 s59, 30"); k(f"s_cbranch_scc1 {lP}")
    lB = k.label("LroleB")
    def agree(slow):
        lp = k.label("Lx")
        k("v_lshrrev_b32 v16, 2, v1"); k("v_min_u32 v16, 124, v16")
        k(f"s_mov_b32 s70, {TIMEOUT}")
        k.place(lp)
        k("buffer_load_dword v17, v16, s[8:11], 0 offen sc1")
        k("s_sub_u32 s70, s70, 1"); k(f"s_cbranch_scc1 {ex}")
        k("s_waitcnt vmcnt(0)")
        k("v_cmp_eq_u32 vcc, 0, v17"); k(f"s_cbranch_vccnz {lp}")
        k("v_cmp_ne_u32 vcc, s58, v17"); k(f"s_cbranch_vccnz {slow}")
    k("s_cmp_ge_u32 s59, 16"); k(f"s_cbranch_scc1 {lB}")
    k("s_mov_b32 s60, s59")
    setup_A(k)
    sl = k.label("LslowA"); agree(sl)
    top = k.label("Ltop"); k.place(top); gen_chain_A(k, "", ex); layer_next(k, top)
    k("s_endpgm")
    k.place(sl)
    top = k.label("Ltop"); k.place(top); gen_chain_A(k, "sc1", ex); layer_next(k, top)
    k("s_endpgm")
    k.place(lB)
    k("s_sub_u32 s60, s59, 16")
    setup_B(k)
    sl = k.label("LslowB"); agree(sl)
    top = k.label("Ltop"); k.place(top); gen_chain_B(k, "", ex); layer_next(k, top)
    k("s_endpgm")
    k.place(sl)
    top = k.label("Ltop"); k.place(top); gen_chain_B(k, "sc1", ex); layer_next(k, top)
    k("s_endpgm")
    k.place(lP)
    k("s_sub_u32 s60, s59, 30")
    top = k.label("Ltop"); k.place(top); gen_chain_P(k, ex); layer_next(k, top)
    k("s_endpgm")
```

```python
import struct, sys
from asmlib import *
import layout as L

def f2u(x): return struct.unpack("<I", struct.pack("<f", x))[0]
def hx(x): return hex(x & 0xffffffff)

S_WS = 4
P_X, P_MEM0, P_WQ, P_WK, P_WV, P_WO = 16, 18, 20, 22, 24, 26
P_BQ, P_BK, P_BV, P_BO = 32, 34, 36, 38
P_OUT, P_DBG, P_WS = 40, 42, 44
S_WAVE = 3

def srd(k, d, base, nbytes):
    k(f"s_mov_b32 s{d}, s{base}")
    k(f"s_and_b32 s{d+1}, s{base+1}, 0xffff")
    k(f"s_mov_b32 s{d+2}, {hx(nbytes)}")
    k(f"s_mov_b32 s{d+3}, 0x20000")

def prologue(k, nwg):
    k(f"s_cmp_ge_u32 s2, {nwg}")
    k(f"s_cbranch_scc1 Lexit_{k.name}")
    k("s_load_dwordx16 s[16:31], s[0:1], 0")
    k("s_load_dwordx8 s[32:39], s[0:1], 64")
    k("s_load_dwordx4 s[40:43], s[0:1], 96")
    k("s_load_dwordx2 s[44:45], s[0:1], 112")
    k("v_lshrrev_b32 v1, 6, v0")
    k(f"v_readfirstlane_b32 s{S_WAVE}, v1")
    k("v_and_b32 v0, 63, v0")
    k("s_waitcnt lgkmcnt(0)")
    srd(k, S_WS, P_WS, L.WS_BYTES)

def epilogue(k):
    k.place(f"Lexit_{k.name}")
    k("s_endpgm")

WS = "s[4:7]"
WL = "s[12:15]"
S_LAYER = 0

def xreduce_g(k, v, tmp, op):
    k(f"v_mov_b32 v{tmp}, v{v}")
    k(f"v_permlane16_swap_b32 v{v}, v{tmp}")
    k(f"{op} v{v}, v{v}, v{tmp}")
    k(f"v_mov_b32 v{tmp}, v{v}")
    k(f"v_permlane32_swap_b32 v{v}, v{tmp}")
    k(f"{op} v{v}, v{v}, v{tmp}")

def div7(k, sq, srem, sx):
    k(f"s_mul_i32 s{sq}, s{sx}, 9363")
    k(f"s_lshr_b32 s{sq}, s{sq}, 16")
    k(f"s_mul_i32 s{srem}, s{sq}, 7")
    k(f"s_sub_u32 s{srem}, s{sx}, s{srem}")

def gen_prep():
    k = K("prep_kernel")
    prologue(k, 256)
    k("v_and_b32 v2, 15, v0")
    k("v_lshrrev_b32 v3, 4, v0")
    k("v_lshrrev_b32 v4, 2, v2")
    k("v_lshlrev_b32 v4, 3, v4")
    k("v_and_b32 v5, 3, v2")
    k("v_add_u32 v4, v4, v5")
    k("v_lshlrev_b32 v6, 4, v0")
    k(f"s_lshl_b32 s46, s2, 2")
    k(f"s_add_u32 s46, s46, s{S_WAVE}")
    lab_no = k.label(); lq = k.label(); lo = k.label(); lk = k.label(); lv = k.label(); lj = k.label()
    k("s_mov_b32 s60, 0")
    srd(k, 8, P_BQ, 448*896)
    k("s_mov_b32 s50, 896")
    k("s_mov_b32 s51, 0")
    k("s_mov_b32 s52, 0")
    k("v_mov_b32 v7, 0")
    k("s_cmp_ge_u32 s46, 840")
    k(f"s_cbranch_scc1 {lab_no}")
    k("s_mov_b32 s60, 1")
    k("s_cmp_ge_u32 s46, 812"); k(f"s_cbranch_scc1 {lv}")
    k("s_cmp_ge_u32 s46, 784"); k(f"s_cbranch_scc1 {lk}")
    k("s_cmp_ge_u32 s46, 392"); k(f"s_cbranch_scc1 {lo}")
    def blk(base, n):
        k(f"s_sub_u32 s47, s46, {base}")
        k("s_mul_i32 s48, s47, 4682")
        k("s_lshr_b32 s48, s48, 16")
        k("s_mul_i32 s49, s48, 14")
        k("s_sub_u32 s49, s47, s49")
    blk(0, 392)
    k("s_lshl_b32 s53, s48, 4")
    k("v_add_u32 v7, s53, v2")
    k(f"s_lshl_b32 s52, s47, 10"); k(f"s_add_u32 s52, s52, {L.WBQ}")
    k(f"s_branch {lj}")
    k.place(lo)
    blk(392, 392)
    srd(k, 8, P_BO, 448*896)
    k("s_lshr_b32 s53, s48, 1"); k("s_lshl_b32 s53, s53, 5")
    k("s_and_b32 s54, s48, 1"); k("s_lshl_b32 s54, s54, 2"); k("s_add_u32 s53, s53, s54")
    k("v_add_u32 v7, s53, v4")
    k(f"s_lshl_b32 s52, s47, 10"); k(f"s_add_u32 s52, s52, {L.WBO}")
    k(f"s_branch {lj}")
    k.place(lk)
    blk(784, 28)
    srd(k, 8, P_BK, 448*56)
    k("s_mov_b32 s50, 56")
    k("s_lshl_b32 s53, s48, 2")
    k("v_add_u32 v7, s53, v4")
    k(f"s_lshl_b32 s52, s47, 10"); k(f"s_add_u32 s52, s52, {L.WBK}")
    k(f"s_branch {lj}")
    k.place(lv)
    blk(812, 28)
    srd(k, 8, P_BV, 448*56)
    k("s_mov_b32 s50, 56")
    k("s_lshl_b32 s53, s48, 4")
    k("v_add_u32 v7, s53, v2")
    k(f"s_lshl_b32 s52, s47, 10"); k(f"s_add_u32 s52, s52, {L.WBV}")
    k.place(lj)
    k("s_lshl_b32 s53, s49, 5")
    k("v_lshlrev_b32 v8, 3, v3")
    k("v_add_u32 v8, s53, v8")
    k("v_mul_lo_u32 v8, v8, s50")
    k("v_lshlrev_b32 v9, 1, v7")
    k("v_cmp_le_u32 vcc, s50, v9")
    k("v_add_u32 v8, v8, v9")
    k("v_mov_b32 v9, 0x7fffffff")
    k("v_cndmask_b32 v8, v8, v9, vcc")
    k("s_mov_b32 s53, 0")
    for j in range(8):
        k(f"buffer_load_ushort v{16+j}, v8, s[8:11], s53 offen")
        if j < 7: k("s_add_u32 s53, s53, s50")
    k("s_waitcnt vmcnt(0)")
    for j in range(4): k(f"v_lshl_or_b32 v{12+j}, v{17+2*j}, 16, v{16+2*j}")
    k(f"buffer_store_dwordx4 v[12:15], v6, {WS}, s52 offen")
    k.place(lab_no)
    k("v_mov_b32 v12, -1"); k("v_mov_b32 v13, -1"); k("v_mov_b32 v14, -1"); k("v_mov_b32 v15, -1")
    k("v_lshl_add_u32 v8, s46, 10, v6")
    nun = L.CLR_BYTES
    for l in range(2):
        for it in range((nun + 1048575)//1048576):
            k(f"v_add_u32 v9, {it*1048576}, v8")
            k(f"v_cmp_gt_u32 vcc, {nun}, v9")
            k("s_nop 1")
            k("v_mov_b32 v10, 0x7fffffff")
            k("v_cndmask_b32 v9, v10, v9, vcc")
            k(f"s_mov_b32 s53, {L.HO[l] + L.MSTEP}")
            k(f"buffer_store_dwordx4 v[12:15], v9, {WS}, s53 offen")
    k("v_mov_b64 v[12:13], 0"); k("v_mov_b64 v[14:15], 0")
    k(f"v_cmp_gt_u32 vcc, {L.CNT_BYTES}, v8"); k("v_cndmask_b32 v9, v10, v8, vcc")
    for l in range(2):
        k(f"s_mov_b32 s53, {L.CNT[l]}")
        k(f"buffer_store_dwordx4 v[12:15], v9, {WS}, s53 offen")
    lln = k.label()
    k("s_and_b32 s61, s2, 7"); k("s_lshr_b32 s62, s2, 3"); k("s_cmp_eq_u32 s61, 0")
    k(f"s_cbranch_scc1 {lln}")
    k("s_sub_u32 s61, s61, 1"); k("s_lshl_b32 s61, s61, 5"); k("s_add_u32 s61, s61, s62")
    div7(k, 47, 48, 61)
    k("s_and_b32 s49, s47, 15")
    k("s_lshr_b32 s50, s47, 4")
    k("s_cmp_eq_u32 s50, 0")
    k(f"s_cselect_b32 s8, s{P_WQ}, s{P_WV}")
    k(f"s_cselect_b32 s9, s{P_WQ+1}, s{P_WV+1}")
    k("s_and_b32 s9, s9, 0xffff")
    k(f"s_mov_b32 s10, {448*8192}")
    k("s_mov_b32 s11, 0x20000")
    k("v_lshlrev_b32 v8, 13, v4")
    k("v_lshl_add_u32 v8, v3, 4, v8")
    k("s_lshl_b32 s51, s49, 9")
    BT = 16
    lvt = k.label(); lbd = k.label()
    k(f"s_lshr_b32 s53, s{S_WAVE}, 1"); k("s_lshl_b32 s53, s53, 5")
    k(f"s_and_b32 s54, s{S_WAVE}, 1"); k("s_lshl_b32 s54, s54, 2"); k("s_add_u32 s53, s53, s54")
    k("s_lshl_b32 s54, s48, 6"); k("s_add_u32 s53, s53, s54")
    srd(k, 12, P_WK, 448*8192)
    k("s_cmp_eq_u32 s50, 1")
    k(f"s_cbranch_scc1 {lvt}")
    k("s_lshl_b32 s54, s53, 13"); k("s_add_u32 s54, s54, s51")
    for ks in range(8):
        k(f"buffer_load_dwordx4 {vr(BT+4*ks,4)}, v8, s[12:15], s54 offen offset:{ks*64}")
    k(f"s_branch {lbd}")
    k.place(lvt)
    srd(k, 12, P_WO, 16*229376)
    k(f"v_mul_u32_u24 v9, {8*896}, v3")
    k("v_lshl_add_u32 v9, v4, 1, v9")
    k(f"v_add_u32 v10, {4*896}, v9")
    k(f"s_mul_i32 s54, s49, 229376"); k("s_lshl_b32 s55, s53, 1"); k("s_add_u32 s54, s54, s55")
    for ks in range(8):
        for j in range(8):
            k(f"buffer_load_ushort v{64+8*ks+j}, v{9 if j<4 else 10}, s[12:15], s54 offen offset:{(j&3)*896}")
        if ks < 7: k(f"s_add_u32 s54, s54, {32*896}")
    k.place(lbd)
    def aload(i):
        k(f"s_add_u32 s54, s{S_WAVE}, {4*i}")
        k("s_lshl_b32 s54, s54, 18")
        k("s_add_u32 s54, s54, s51")
        k(f"s_add_u32 s55, s54, {4*8192}")
        for t in range(2):
            for ks in range(8):
                k(f"buffer_load_dwordx4 {vr(256+i*64+t*32+ks*4,4)}, v8, s[8:11], s{54+t} offen offset:{ks*64}")
    for i in range(3): aload(i)
    k("s_waitcnt vmcnt(48)")
    lnp = k.label()
    k("s_cmp_eq_u32 s50, 0"); k(f"s_cbranch_scc1 {lnp}")
    for i in range(32): k(f"v_lshl_or_b32 v{BT+i}, v{65+2*i}, 16, v{64+2*i}")
    k.place(lnp)
    k(f"s_lshl_b32 s54, s{S_WAVE}, 13")
    k("v_add_u32 v9, s54, v6")
    for ks in range(8):
        k(f"ds_write_b128 v9, {vr(BT+4*ks,4)} offset:{ks*1024}")
    aload(3)
    k("s_waitcnt lgkmcnt(0)")
    k("s_barrier")
    BA = 64
    for tt in range(4):
        for ks in range(8):
            k(f"ds_read_b128 {vr(BA+(tt*8+ks)*4,4)}, v6 offset:{(tt*8+ks)*1024}")
    k("s_cmp_eq_u32 s50, 0")
    k(f"s_cselect_b32 s56, {hx(f2u(L.LOG2E/16))}, {hx(f2u(1.0))}")
    k(f"s_cselect_b32 s57, {L.WQ}, {L.WV}")
    k("s_mul_i32 s58, s49, 28"); k("s_lshl_b32 s59, s48, 2"); k("s_add_u32 s58, s58, s59")
    k(f"s_mul_i32 s58, s58, {14*1024}"); k("s_add_u32 s57, s57, s58")
    k("s_waitcnt lgkmcnt(0)")
    ACC = 192
    for i in range(4):
        if i == 3:
            k(f"s_cmp_ge_u32 s{S_WAVE}, 2")
            k(f"s_cbranch_scc1 Lexit_{k.name}")
        k(f"s_waitcnt vmcnt({[48,36,24,12][i]})")
        for ks in range(8):
            for t in range(2):
                for tt in range(4):
                    d = ACC + (t*4+tt)*4
                    c = "0" if ks == 0 else vr(d,4)
                    k(f"v_mfma_f32_16x16x32_bf16 {vr(d,4)}, {vr(256+i*64+t*32+ks*4,4)}, {vr(BA+(tt*8+ks)*4,4)}, {c}")
        k(f"s_add_u32 s58, s{S_WAVE}, {4*i}"); k("s_lshl_b32 s58, s58, 10"); k("s_add_u32 s58, s58, s57")
        for tt in range(4):
            o = 224 + tt*4
            for t in range(2):
                d = ACC + (t*4+tt)*4
                for r in range(4): k(f"v_mul_f32 v{d+r}, s56, v{d+r}")
                k(f"v_cvt_pk_bf16_f32 v{o+2*t}, v{d}, v{d+1}")
                k(f"v_cvt_pk_bf16_f32 v{o+2*t+1}, v{d+2}, v{d+3}")
            k(f"buffer_store_dwordx4 {vr(o,4)}, v6, {WS}, s58 offen")
            if tt < 3: k(f"s_add_u32 s58, s58, {14*1024}")
    k("s_endpgm")
    k.place(lln)
    srd(k, 8, P_X, L.XSZ)
    k("s_lshl_b32 s47, s62, 2"); k(f"s_add_u32 s47, s47, s{S_WAVE}")
    k("v_mul_u32_u24 v8, 896, v2")
    k("v_lshl_add_u32 v8, v3, 4, v8")
    k(f"s_mul_i32 s48, s47, {16*896}")
    XP = 16
    for ks in range(14):
        k(f"buffer_load_dwordx4 {vr(XP+4*ks,4)}, v8, s[8:11], s48 offen offset:{ks*64}")
    F = 72
    k("s_waitcnt vmcnt(0)")
    for i in range(56):
        k(f"v_lshlrev_b32 v{F+2*i}, 16, v{XP+i}")
        k(f"v_and_b32 v{F+2*i+1}, 0xffff0000, v{XP+i}")
    k(f"v_add_f32 v9, v{F}, v{F+1}"); k(f"v_add_f32 v10, v{F+2}, v{F+3}")
    for i in range(4, 112, 2):
        k(f"v_add_f32 v9, v9, v{F+i}"); k(f"v_add_f32 v10, v10, v{F+i+1}")
    k("v_add_f32 v9, v9, v10")
    xreduce_g(k, 9, 10, "v_add_f32")
    k(f"v_mul_f32 v9, {hx(f2u(1/448))}, v9")
    for i in range(112): k(f"v_sub_f32 v{F+i}, v{F+i}, v9")
    k(f"v_mul_f32 v10, v{F}, v{F}"); k(f"v_mul_f32 v11, v{F+1}, v{F+1}")
    for i in range(2, 112, 2):
        k(f"v_fmac_f32 v10, v{F+i}, v{F+i}"); k(f"v_fmac_f32 v11, v{F+i+1}, v{F+i+1}")
    k("v_add_f32 v10, v10, v11")
    xreduce_g(k, 10, 11, "v_add_f32")
    k(f"v_mov_b32 v11, {hx(f2u(1e-5))}")
    k(f"v_fmac_f32 v11, {hx(f2u(1/448))}, v10")
    k("v_rsq_f32 v11, v11")
    for i in range(112): k(f"v_mul_f32 v{F+i}, v{F+i}, v11")
    for i in range(56): k(f"v_cvt_pk_bf16_f32 v{XP+i}, v{F+2*i}, v{F+2*i+1}")
    k(f"s_mul_i32 s48, s47, {14*1024}"); k(f"s_add_u32 s48, s48, {L.XTA[0]}")
    for ks in range(14):
        if ks % 4 == 0 and ks: k("s_add_u32 s48, s48, 4096")
        k(f"buffer_store_dwordx4 {vr(XP+4*ks,4)}, v6, {WS}, s48 offen offset:{(ks%4)*1024}")
    k("s_cmp_lg_u32 s2, 248")
    k(f"s_cbranch_scc1 Lexit_{k.name}")
    srd(k, 8, P_MEM0, 7168)
    k(f"s_lshl_b32 s47, s{S_WAVE}, 6")
    k("v_add_u32 v8, s47, v0")
    k("v_and_b32 v9, 3, v8")
    k("v_bfe_u32 v10, v8, 2, 3")
    k("v_bfe_u32 v11, v8, 5, 1")
    k("v_lshrrev_b32 v12, 6, v8")
    k("v_mul_u32_u24 v10, 896, v10")
    k("v_lshl_add_u32 v10, v12, 5, v10")
    k("v_lshl_add_u32 v10, v9, 3, v10")
    k("v_lshl_add_u32 v10, v11, 2, v10")
    k("v_lshlrev_b32 v13, 2, v8")
    for p in range(7): k(f"buffer_load_dword v{16+p}, v10, s[8:11], 0 offen offset:{p*128}")
    k("v_and_b32 v9, 7, v8"); k("v_mul_u32_u24 v9, 896, v9")
    k("v_lshrrev_b32 v11, 3, v8"); k("v_lshl_add_u32 v9, v11, 4, v9")
    k("v_lshlrev_b32 v14, 4, v8")
    k("buffer_load_dwordx4 v[24:27], v9, s[8:11], 0 offen")
    k("buffer_load_dwordx4 v[28:31], v9, s[8:11], 0 offen offset:512")
    k("v_add_u32 v15, 4096, v14")
    k("v_cmp_gt_u32 vcc, 7168, v15")
    k("v_mov_b32 v11, 0x7fffffff")
    k("v_cndmask_b32 v15, v11, v15, vcc")
    k("s_waitcnt vmcnt(0)")
    for p in range(7): k(f"v_min_u32 v{16+p}, -2, v{16+p}")
    for l in range(2):
        for c in range(L.NMC):
            k(f"s_mov_b32 s47, {L.MEM[l] + c*L.MEMSZ}")
            for p in range(7):
                if p == 4: k("s_add_u32 s47, s47, 4096")
                k(f"buffer_store_dword v{16+p}, v13, {WS}, s47 offen offset:{(p%4)*1024}")
        k(f"s_mov_b32 s47, {L.MEMN[l]}")
        k(f"buffer_store_dwordx4 v[24:27], v14, {WS}, s47 offen")
        k(f"buffer_store_dwordx4 v[28:31], v15, {WS}, s47 offen")
    epilogue(k)
    return k

TIMEOUT = 1 << 21
SLEEP = 8

def wait_words(k, soff, vaddr, vt, target, abort, ge=False, nap=None, srd_=WL, wg=True, far=None):
    lp = k.label("Lwc"); ok = k.label("Lwo")
    if wg:
        k(f"s_cmp_lg_u32 s{S_WAVE}, 0"); k(f"s_cbranch_scc1 {ok}")
    k(f"s_mov_b32 s47, {TIMEOUT}")
    if far is not None:
        lf = k.label("Lwf"); near = k.label("Lwn")
        k(f"s_mov_b32 s46, {L.PROG(0)}")
        k.place(lf)
        k(f"v_mov_b32 v{vt}, 0")
        k(f"buffer_load_dword v{vt}, v{vt}, {WL}, s46 offen sc1")
        k("s_sub_u32 s47, s47, 1"); k(f"s_cbranch_scc1 {abort}")
        k("s_waitcnt vmcnt(0)")
        k(f"v_cmp_gt_i32 vcc, {far}, v{vt}")
        k(f"s_cbranch_vccz {near}")
        k("s_sleep 48")
        k(f"s_branch {lf}")
        k.place(near)
    k.place(lp)
    k(f"buffer_load_dword v{vt}, v{vaddr}, {srd_}, {soff} offen sc1")
    k("s_sub_u32 s47, s47, 1"); k(f"s_cbranch_scc1 {abort}")
    k("s_waitcnt vmcnt(0)")
    k(f"v_cmp_{'gt' if ge else 'ne'}_u32 vcc, {target}, v{vt}")
    k(f"s_cbranch_vccz {ok}")
    k(f"s_sleep {SLEEP if nap is None else nap}")
    k(f"s_branch {lp}")
    k.place(ok)
    if wg: k("s_barrier")

def gate(k, base, nshard, target, need, mark, v128, vt, abort):
    ok = k.label("Lgo"); lp = k.label("Lgl")
    k(f"s_cmp_lt_u32 {need}, s{mark}"); k(f"s_cbranch_scc1 {ok}")
    k(f"s_mov_b32 s70, {TIMEOUT}")
    k(v128)
    k.place(lp)
    for j in range(nshard):
        k(f"s_mov_b32 s{mark+1}, {base + j*8192}")
        k(f"buffer_load_dword v{vt+1+j}, v{vt}, {WL}, s{mark+1} offen sc1")
    k("s_sub_u32 s70, s70, 1"); k(f"s_cbranch_scc1 {abort}")
    k("s_waitcnt vmcnt(0)")
    if nshard == 4:
        k(f"v_min3_u32 v{vt+1}, v{vt+1}, v{vt+2}, v{vt+3}"); k(f"v_min_u32 v{vt+1}, v{vt+1}, v{vt+4}")
    k(f"v_cmp_ne_u32 vcc, {target}, v{vt+1}")
    k(f"s_ff1_i32_b64 s{mark}, vcc"); k(f"s_min_u32 s{mark}, s{mark}, 0x100")
    k(f"s_cmp_lt_u32 {need}, s{mark}"); k(f"s_cbranch_scc0 {lp}")
    k.place(ok)

def signal(k, soff, vz, vone, srd_=WL, lanes=1):
    k(f"s_mov_b64 exec, {lanes}")
    k(f"buffer_atomic_add v{vone}, v{vz}, {srd_}, {soff} offen sc1")
    k("s_mov_b64 exec, -1")

TL = 0
TLOFF = 0xF100000
def tl(k, idx, vt, per_layer=5):
    if not TL: return
    k("s_memrealtime s[84:85]"); k("s_lshl_b32 s101, s2, 2"); k(f"s_add_u32 s101, s101, s{S_WAVE}"); k("s_lshl_b32 s101, s101, 6")
    k(f"s_add_u32 s101, s101, {TLOFF + 4*idx}"); k("s_waitcnt lgkmcnt(0)")
    k(f"s_mul_i32 s85, s{S_LAYER}, {4*per_layer}"); k("s_add_u32 s101, s101, s85")
    k(f"v_mov_b32 v{vt}, s84"); k(f"v_mov_b32 v{vt+1}, 0")
    k(f"buffer_store_dword v{vt}, v{vt+1}, {WS}, s101 offen")

def lane0_addr(k, vz, vone):
    k(f"v_mov_b32 v{vz}, 0"); k(f"v_mov_b32 v{vone}, 1")

def layer_begin(k):
    srd(k, 12, P_WS, L.WS_BYTES); k(f"s_mov_b32 s{S_LAYER}, 0")
def layer_next(k, top):
    k(f"s_add_u32 s12, s{P_WS}, {L.LSTRIDE}"); k(f"s_addc_u32 s13, s{P_WS+1}, 0"); k("s_and_b32 s13, s13, 0xffff")
    k(f"s_mov_b32 s14, {L.WS_BYTES - L.LSTRIDE}")
    k(f"s_add_u32 s{S_LAYER}, s{S_LAYER}, 1"); k(f"s_cmp_lt_u32 s{S_LAYER}, 2"); k(f"s_cbranch_scc1 {top}")

def body_gemm(k, sb, abort):
    div7(k, 47, 48, sb)
    k("s_and_b32 s49, s47, 15")
    k("s_lshr_b32 s50, s47, 4")
    k("v_lshlrev_b32 v1, 4, v0")
    k("s_cmp_eq_u32 s50, 0")
    k(f"s_cselect_b32 s57, {L.WQ}, {L.WV}")
    k(f"s_mov_b32 s56, {L.UC(0)}"); k(f"s_cselect_b32 s56, {L.QC(0)}, s56")
    k("s_mul_i32 s58, s49, 28"); k("s_lshl_b32 s59, s48, 2"); k("s_add_u32 s58, s58, s59")
    k(f"s_mul_i32 s58, s58, {14*1024}"); k("s_add_u32 s57, s57, s58")
    k(f"s_mul_i32 s58, s{S_WAVE}, {14*1024}"); k("s_add_u32 s57, s57, s58"); k("v_add_u32 v2, s58, v1")
    for i in range(14):
        if i % 4 == 0 and i: k("s_add_u32 s57, s57, 4096")
        k(f"buffer_load_dwordx4 {vr(128+4*i,4)}, v1, {WS}, s57 offen offset:{(i%4)*1024}")
    k("s_barrier")
    lane0_addr(k, 4, 5)
    k(f"s_lshl_b32 s58, s{S_WAVE}, 7"); k("s_add_u32 s56, s56, s58")
    k(f"s_and_b32 s58, s{sb}, 3"); k("s_lshl_b32 s58, s58, 13"); k("s_add_u32 s56, s56, s58")
    k(f"s_cmp_eq_u32 s{S_LAYER}, 0"); k("s_cselect_b32 s96, 0x100, 0"); k(f"s_mov_b32 s98, s{S_WAVE}")
    def xreg(buf, i):
        if buf == 0: return 16 + 4*i
        return 128 + 4*i if i < 20 else 256 + 224 + 4*(i-20)
    def loadx(buf):
        k("s_min_u32 s99, s98, 63")
        gate(k, L.RC(0), 1, 32, "s99", 96, "v_lshlrev_b32 v6, 3, v1", 6, abort)
        k("s_add_u32 s98, s98, 4")
        k("s_mov_b32 s53, s52")
        for i in range(28):
            if i % 4 == 0 and i: k("s_add_u32 s53, s53, 4096")
            k(f"buffer_load_dwordx4 {vr(xreg(buf,i),4)}, v1, {WL}, s53 offen offset:{(i%4)*1024} sc1")
        k(f"s_add_u32 s52, s52, {4*28*1024}")
    k(f"s_mul_i32 s52, s{S_WAVE}, {28*1024}"); k(f"s_add_u32 s52, s52, {L.XTA[0]}")
    for i in range(14):
        k(f"s_waitcnt vmcnt({13-i})"); k(f"ds_write_b128 v2, {vr(128+4*i,4)} offset:{i*1024}")
    loadx(0)
    k("s_waitcnt lgkmcnt(0)"); k("s_barrier")
    for i in range(56):
        k(f"ds_read_b128 {vr(256+4*i,4)}, v1 offset:{i*1024}")
        if i % 12 == 11: k("s_waitcnt lgkmcnt(4)")
    k("s_waitcnt lgkmcnt(0)"); k("s_barrier")
    ACC = 208; O = 240
    lq = k.label(); end = k.label()
    k("s_cmp_eq_u32 s50, 0")
    k(f"s_cbranch_scc1 {lq}")
    for typ in (1, 0):
        if typ == 0: k.place(lq)
        k(f"s_lshl_b32 s54, s{S_WAVE}, 4"); k("s_add_u32 s54, s54, s49"); k(f"s_mul_i32 s54, s54, {28*1024}")
        if typ == 1:
            k("s_lshl_b32 s55, s48, 12"); k("s_add_u32 s54, s54, s55"); k(f"s_add_u32 s54, s54, {L.UU[0]}")
        else:
            k("s_lshl_b32 s55, s48, 11"); k("s_add_u32 s54, s54, s55"); k(f"s_add_u32 s54, s54, {L.QP[0]}")
        k("s_mov_b32 s51, 8")
        lp = k.label(); k.place(lp)
        for buf in range(2):
            k("s_waitcnt vmcnt(0)")
            for ks in range(14):
                for t in range(2):
                    for tt in range(4):
                        d = ACC + (t*4+tt)*4
                        c = "0" if ks == 0 else vr(d,4)
                        x = vr(xreg(buf, t*14+ks),4); w = vr(256+(tt*14+ks)*4,4)
                        if typ == 1: k(f"v_mfma_f32_16x16x32_bf16 {vr(d,4)}, {x}, {w}, {c}")
                        else:        k(f"v_mfma_f32_16x16x32_bf16 {vr(d,4)}, {w}, {x}, {c}")
            for u in range(4):
                if typ == 1: d0, d1 = ACC + u*4, ACC + (4+u)*4; off = u*1024; so = "s54"
                else:
                    t, pp = u >> 1, u & 1
                    d0, d1 = ACC + (t*4+2*pp)*4, ACC + (t*4+2*pp+1)*4; off = pp*1024; so = "s54" if t == 0 else "s55"
                    if u == 2: k(f"s_add_u32 s55, s54, {14*1024}")
                o = O + 4*u
                k(f"v_cvt_pk_bf16_f32 v{o}, v{d0}, v{d0+1}"); k(f"v_cvt_pk_bf16_f32 v{o+1}, v{d0+2}, v{d0+3}")
                k(f"v_cvt_pk_bf16_f32 v{o+2}, v{d1}, v{d1+1}"); k(f"v_cvt_pk_bf16_f32 v{o+3}, v{d1+2}, v{d1+3}")
                k(f"buffer_store_dwordx4 {vr(o,4)}, v1, {WL}, {so} offen offset:{off} sc1")
            k(f"s_add_u32 s54, s54, {4*16*28*1024}")
            loadx(1-buf)
            k("s_waitcnt vmcnt(28)")
            signal(k, "s56", 4, 5)
            k("s_add_u32 s56, s56, 512")
        k("s_sub_u32 s51, s51, 1"); k("s_cmp_lg_u32 s51, 0"); k(f"s_cbranch_scc1 {lp}")
        if typ == 1: k(f"s_branch {end}")
    k.place(end)
    k("s_waitcnt vmcnt(0)")

def gen_empty():
    k = K("empty_kernel", 32, 32, 48)
    k("s_endpgm")
    return k
```

```python
KB = 1024
WSZ = 16*28*14*KB
XSZ = 2048*448*2
QSZ = 64*16*28*KB
off = 0
def take(n, al=4096):
    global off
    off = (off + al - 1)//al*al
    o = off; off += n; return o
WQ = take(WSZ); WV = take(WSZ)
WBQ = take(392*KB); WBO = take(392*KB); WBK = take(28*KB); WBV = take(28*KB)
XR1 = take(XSZ)
MEMSZ = 7168; P1 = 10240
NMC = 1; NPC = 1
MSTEP = NMC*MEMSZ; PSZ = NPC*P1
HO_SZ = 65*MSTEP + 64*PSZ
CLR_BYTES = 64*MSTEP + 64*PSZ
VMSZ = 4*28*KB
LB0 = take(0, 1 << 16)
_XTA = take(XSZ); _XTB = take(XSZ); _XRA = take(XSZ)
_QP = take(QSZ); _UU = take(QSZ)
_HO = take(HO_SZ); _MEMN = take(64*MEMSZ); _VM = take(64*VMSZ)
_KI = take(64*2048 + 4096); _VI = take(64*2048 + 4096)
_PART = take(64*4*4*8192)
_SPARE = take(8192)
_CNT = take(1024*128)
LSTRIDE = take(0, 1 << 16) - LB0
off = LB0 + 2*LSTRIDE
WS_USED = off
two = lambda x: [x, x + LSTRIDE]
XTA, XTB, XRA, QP, UU, HO, MEMN, VM, KI, VI, PARTS, CNT = map(two, (_XTA, _XTB, _XRA, _QP, _UU, _HO, _MEMN, _VM, _KI, _VI, _PART, _CNT))
SPARE = two(_SPARE)
MEM = HO
PIM = [h + 65*MSTEP for h in HO]
XR = [XRA[0], XR1, XRA[1]]
CNT_BYTES = 1024*128
def UC(l): return CNT[l] + 0*128
def QC(l): return CNT[l] + 256*128
def PC(l): return CNT[l] + 512*128
def SC(l): return CNT[l] + 576*128
def RC(l): return CNT[l] + 640*128
def PROG(l): return CNT[l] + 704*128
def FIN(l): return CNT[l] + 705*128
def A3C(l): return CNT[l] + 706*128
WS_BYTES = 268435456
assert WS_USED <= 0xF000000
LOG2E = 1.4426950408889634
def col(tau, m): return 32*(tau>>1) + 8*(m>>2) + 4*(tau&1) + (m&3)
def sigma(e): return 4*((e>>1)&1) + 2*(e>>2) + (e&1)
```

```python
from gen import *
import gen

FUSED = 0
XSIG = 0
XNOU = 0
XACK = 0
XSLEEP = 0
XNOEXP = 0
XPOLL = 0
NB = 9
PFD = 2

DIAG = False
DBGOFF = 0xF000000
def stamp(k, i):
    if DIAG == 3: k(f"s_memrealtime s[{72+2*i}:{73+2*i}]")
    elif DIAG: k(f"s_memtime s[{72+2*i}:{73+2*i}]")
def stamp_acc(k, n):
    if not DIAG: return
    k("s_waitcnt lgkmcnt(0)")
    if DIAG == 3:
        for i in range(1, n): k(f"s_add_u32 s{87+i}, s{87+i}, s{72+2*i}")
        return
    for i in range(n-1):
        k(f"s_sub_u32 s71, s{72+2*(i+1)}, s{72+2*i}"); k(f"s_add_u32 s{88+i}, s{88+i}, s71")
T0 = 0
def stamp_init(k):
    if DIAG or T0:
        for i in range(8): k(f"s_mov_b32 s{88+i}, 0")
        k("s_memtime s[72:73]"); k("s_waitcnt lgkmcnt(0)"); k("s_sub_u32 s94, s72, s86"); k("s_mov_b32 s95, s72")
def stamp_out(k):
    if not (DIAG or T0): return
    k("s_memtime s[72:73]"); k("s_waitcnt lgkmcnt(0)"); k("s_sub_u32 s95, s72, s95")
    for i in range(8): k(f"v_mov_b32 v{16+i}, s{88+i}")
    k(f"s_lshl_b32 s46, s59, 2"); k(f"s_add_u32 s46, s46, s{S_WAVE}"); k("s_lshl_b32 s46, s46, 5"); k(f"s_add_u32 s46, s46, {DBGOFF}")
    k("v_mov_b32 v24, 0")
    k(f"buffer_store_dwordx4 v[16:19], v24, {WS}, s46 offen"); k(f"buffer_store_dwordx4 v[20:23], v24, {WS}, s46 offen offset:16")

def interleave(k, main, side):
    for i, m in enumerate(main):
        k(m)
        for s in side.get(i, []): k(s)

def gate(k, layer, need, v128, vt, abort):
    if not FUSED: return
    ok = k.label("Lgo"); lp = k.label("Lgl")
    k(f"s_cmp_lt_u32 {need}, s96"); k(f"s_cbranch_scc1 {ok}")
    k(f"s_mov_b32 s97, {L.UC(layer)}"); k(f"s_mov_b32 s70, {TIMEOUT}")
    k(v128)
    k.place(lp)
    k(f"buffer_load_dword v{vt+1}, v{vt}, {WS}, s97 offen sc1")
    k("s_sub_u32 s70, s70, 1"); k(f"s_cbranch_scc1 {abort}")
    k("s_waitcnt vmcnt(0)")
    k(f"v_cmp_ne_u32 vcc, 112, v{vt+1}")
    k("s_ff1_i32_b64 s96, vcc"); k("s_min_u32 s96, s96, 0x100")
    k(f"s_cmp_lt_u32 {need}, s96"); k(f"s_cbranch_scc0 {lp}")
    k.place(ok)

def poll_mem(k, s_addr, abort):
    lp = k.label("Lpm")
    k(f"s_mov_b32 s70, {TIMEOUT}")
    k.place(lp)
    k(f"buffer_load_dwordx4 v[44:47], v3, {WS}, s{s_addr} offen sc1")
    k(f"buffer_load_dwordx4 v[48:51], v4, {WS}, s{s_addr} offen sc1")
    k("s_sub_u32 s70, s70, 1")
    k(f"s_cbranch_scc1 {abort}")
    k("s_waitcnt vmcnt(0)")
    k("v_max3_u32 v52, v44, v45, v46")
    k("v_max3_u32 v53, v47, v48, v49")
    k("v_max3_u32 v52, v52, v50, v51")
    k("v_max_u32 v52, v52, v53")
    k("v_cmp_eq_u32 vcc, -1, v52")
    k(f"s_cbranch_vccnz {lp}")
    k("ds_write_b128 v3, v[44:47]")
    k("ds_write_b128 v4, v[48:51]")

def mem_common_setup(k):
    k("v_lshlrev_b32 v1, 4, v0")
    k("v_and_b32 v2, 8, v0")
    k("v_cmp_eq_u32 vcc, 0, v2")
    k("v_mov_b32 v2, 0xeeee")
    k("v_mov_b32 v3, 0x4444")
    k("v_cndmask_b32 v2, v2, v3, vcc")
    k(f"s_mul_i32 s46, s{S_WAVE}, {112*16}")
    k("v_add_u32 v3, s46, v1")
    k("v_add_u32 v4, 1024, v3")
    k(f"v_add_u32 v5, {1024-768}, v3")
    k("v_cmp_gt_u32 vcc, 48, v0")
    k("v_cndmask_b32 v4, v5, v4, vcc")

M = 16
SPW = 8*176
def gen_chain_A(k, layer, st, abort):
    TT = 8192; SP = TT + 4*3584
    def W(i, p):
        o = i*7 + p
        return vr(256 + 8*o, 8) if o < 32 else vr(120 + 8*(o-32), 8)
    ACC = [52, 56, 60]; CV = 114; TB = [64, 68]; XK = 72; MK = 100; SX0, SX1, SM = 44, 48, 116
    def xk(pair, t): return XK + (pair*2 + t)*4
    XS = XK + 24
    def loadx():
        for t in range(2):
            if t == 1: k(f"s_add_u32 s64, s62, {14*1024}")
            so = "s62" if t == 0 else "s64"
            for pr in range(3):
                k(f"buffer_load_dwordx4 {vr(xk(pr,t),4)}, v6, {WS}, {so} offen offset:{pr*1024} sc1")
            k(f"buffer_load_dwordx2 {vr(XS+2*t,2)}, v14, {WS}, {so} offen sc1")
        k(f"s_add_u32 s62, s62, {28*1024}")
    loop = k.label("LA")
    k(f"s_mov_b32 s61, {L.MEM[layer]}")
    k(f"s_mul_i32 s65, s60, 640"); k(f"s_add_u32 s65, s65, {L.PIM[layer]}")
    k(f"s_mov_b32 s62, {L.XTA[layer]}")
    k("s_mov_b32 s96, 0"); k("s_mov_b32 s98, 0")
    gate(k, layer, "s98", "v_lshlrev_b32 v16, 3, v1", 16, abort)
    loadx()
    k("s_mov_b32 s67, 63")
    gen.tl(k, 1+5*layer, 16)
    for r in range(2): k(f"v_mov_b64 {vr(ACC[1]+2*r,2)}, 0")
    stamp_init(k)
    k.place(loop)
    stamp(k, 0)
    poll_mem(k, 61, abort)
    stamp(k, 1)
    k(f"s_add_u32 s61, s61, {L.MEMSZ}")
    for r in range(2): k(f"v_mov_b64 {vr(ACC[0]+2*r,2)}, 0")
    k("s_waitcnt lgkmcnt(0)")
    k("s_barrier")
    stamp(k, 2)
    for p in range(7): k(f"ds_read_b128 {vr(M+4*p,4)}, v1 offset:{p*1024}")
    k(f"ds_read2_b32 {vr(MK,2)}, v7 offset0:0 offset1:32"); k(f"ds_read2_b32 {vr(MK+2,2)}, v7 offset0:1 offset1:33")
    for i in range(7):
        a = ACC[i % 3]; z = ACC[(i+1) % 3]; pa = ACC[(i-1) % 3]
        main = [f"v_smfmac_f32_16x16x64_bf16 {vr(a,4)}, {vr(M+4*p,4)}, {W(i,p)}, v2" for p in range(7)]
        side = {}
        if i == 0:
            for p in range(7):
                main[p] = f"s_waitcnt lgkmcnt({8-p})\n" + main[p]
            side[1] = [f"ds_read2_b32 {vr(MK+4,2)}, v7 offset0:128 offset1:160"]
            main[2] = main[2].replace("lgkmcnt(6)", "lgkmcnt(7)")
            side[2] = [f"ds_read2_b32 {vr(MK+6,2)}, v7 offset0:129 offset1:161"]
            for p, n in ((3, 7), (4, 6), (5, 5), (6, 4)):
                main[p] = f"s_waitcnt lgkmcnt({n})\n" + main[p].split("\n")[1]
            side[6] = [f"ds_read2_b32 {vr(MK+8,2)}, v15 offset0:0 offset1:32"]
        else:
            j = i - 1
            side[2] = [f"v_cvt_pk_bf16_f32 v{CV}, v{pa}, v{pa+1}"]
            side[3] = [f"v_cvt_pk_bf16_f32 v{CV+1}, v{pa+2}, v{pa+3}"]
            tb = TB[(j >> 1) & 1] + 2*(j & 1)
            side[4] = [f"ds_write_b64 v8, {vr(CV,2)} offset:{j*512}"]
            side[5] = [f"ds_read_b64_tr_b16 {vr(tb,2)}, v9 offset:{j*512}"]
            side.setdefault(1, [])
            if i < 6:
                side[0] = [f"v_mov_b64 {vr(z,2)}, 0"]; side[1] = [f"v_mov_b64 {vr(z+2,2)}, 0"]
                if i == 1:
                    side[6] = [f"ds_read2_b32 {vr(MK+10,2)}, v15 offset0:1 offset1:33"]
                if i == 2:
                    side[6] = [f"ds_read2_b32 {vr(MK+12,2)}, v5 offset0:0 offset1:32"]
            if i == 3:
                side[2] = side[2] + ["s_waitcnt lgkmcnt(0)",
                    f"v_mfma_f32_16x16x32_bf16 {vr(SX0,4)}, {vr(xk(0,0),4)}, {vr(TB[0],4)}, 0",
                    f"v_mfma_f32_16x16x32_bf16 {vr(SX1,4)}, {vr(xk(0,1),4)}, {vr(TB[0],4)}, 0",
                    f"v_mfma_f32_16x16x32_bf16 {vr(SM,4)}, {vr(MK,4)}, {vr(TB[0],4)}, 0"]
        interleave(k, main, side)
    a = ACC[0]
    stamp(k, 3)
    k("s_waitcnt lgkmcnt(2)")
    k(f"v_mfma_f32_16x16x32_bf16 {vr(SX0,4)}, {vr(xk(1,0),4)}, {vr(TB[1],4)}, {vr(SX0,4)}")
    k(f"v_mfma_f32_16x16x32_bf16 {vr(SX1,4)}, {vr(xk(1,1),4)}, {vr(TB[1],4)}, {vr(SX1,4)}")
    k(f"v_cvt_pk_bf16_f32 v{CV}, v{a}, v{a+1}")
    k(f"v_cvt_pk_bf16_f32 v{CV+1}, v{a+2}, v{a+3}")
    k(f"v_mfma_f32_16x16x32_bf16 {vr(SM,4)}, {vr(MK+4,4)}, {vr(TB[1],4)}, {vr(SM,4)}")
    k(f"ds_write_b64 v8, {vr(CV,2)} offset:{6*512}")
    k(f"ds_read_b64_tr_b16 {vr(CV,2)}, v9 offset:{6*512}")
    k("s_waitcnt lgkmcnt(2)")
    k(f"v_mfma_f32_16x16x32_bf16 {vr(SX0,4)}, {vr(xk(2,0),4)}, {vr(TB[0],4)}, {vr(SX0,4)}")
    k(f"v_mfma_f32_16x16x32_bf16 {vr(SX1,4)}, {vr(xk(2,1),4)}, {vr(TB[0],4)}, {vr(SX1,4)}")
    k(f"v_mfma_f32_16x16x32_bf16 {vr(SM,4)}, {vr(MK+8,4)}, {vr(TB[0],4)}, {vr(SM,4)}")
    for r in range(2): k(f"v_mov_b64 {vr(ACC[1]+2*r,2)}, 0")
    k("s_waitcnt lgkmcnt(0)")
    k(f"v_mfma_f32_16x16x16_bf16 {vr(SX0,4)}, {vr(XS,2)}, {vr(CV,2)}, {vr(SX0,4)}")
    k(f"v_mfma_f32_16x16x16_bf16 {vr(SX1,4)}, {vr(XS+2,2)}, {vr(CV,2)}, {vr(SX1,4)}")
    k(f"v_mfma_f32_16x16x16_bf16 {vr(SM,4)}, {vr(MK+12,2)}, {vr(CV,2)}, {vr(SM,4)}")
    Y = TB[0]
    for r in range(4): k(f"v_add_f32_dpp v{Y+r}, v{SX0+r}, v{SX0+r} row_ror:8 row_mask:0xf bank_mask:0x3")
    for r in range(4): k(f"v_add_f32_dpp v{Y+r}, v{SX1+r}, v{SX1+r} row_ror:8 row_mask:0xf bank_mask:0xc")
    k(f"ds_write_b128 v10, {vr(Y,4)}")
    for r in range(4): k(f"v_add_f32_dpp v{Y+4}, v{SM+r}, v{SM+r} row_ror:8 row_mask:{'0x3' if r<2 else '0xc'} bank_mask:{'0xc' if r&1 else '0x3'}")
    k(f"ds_write_b32 v11, v{Y+4}")
    k("s_waitcnt lgkmcnt(0)")
    k("s_barrier")
    stamp(k, 4)
    R = 16
    for q in range(4): k(f"ds_read_b64 {vr(R+2*q,2)}, v12 offset:{q*SPW}")
    k("s_waitcnt lgkmcnt(2)"); k(f"v_pk_add_f32 {vr(R,2)}, {vr(R,2)}, {vr(R+2,2)}")
    k("s_waitcnt lgkmcnt(0)"); k(f"v_pk_add_f32 {vr(R+4,2)}, {vr(R+4,2)}, {vr(R+6,2)}")
    k(f"v_pk_add_f32 {vr(R,2)}, {vr(R,2)}, {vr(R+4,2)}")
    def allred32(v, t, op):
        for sh in (8, 4, 2, 1):
            k(f"{op}_dpp v{v}, v{v}, v{v} row_ror:{sh} row_mask:0xf bank_mask:0xf")
        k(f"v_mov_b32 v{t}, v{v}")
        k(f"v_permlane16_swap_b32 v{v}, v{t}")
        k(f"{op} v{v}, v{v}, v{t}")
    k(f"v_max_f32 v{R+2}, v{R}, v{R+1}")
    allred32(R+2, R+3, "v_max_f32")
    k(f"v_sub_f32 v{R}, v{R}, v{R+2}"); k(f"v_sub_f32 v{R+1}, v{R+1}, v{R+2}")
    k(f"v_exp_f32 v{R}, v{R}"); k(f"v_exp_f32 v{R+1}, v{R+1}")
    k(f"v_add_f32 v{R+2}, v{R}, v{R+1}")
    allred32(R+2, R+3, "v_add_f32")
    k(f"v_rcp_f32 v{R+2}, v{R+2}")
    k(f"v_mul_f32 v{R}, v{R}, v{R+2}"); k(f"v_mul_f32 v{R+1}, v{R+1}, v{R+2}")
    k(f"v_cvt_pk_bf16_f32 v{R}, v{R}, v{R+1}")
    k(f"v_min_u32 v{R}, -2, v{R}")
    k(f"buffer_store_dword v{R}, v13, {WS}, s65 offen {st}")
    stamp(k, 5)
    if XACK:
        k("s_waitcnt vmcnt(0)"); stamp(k, 6)
    k("s_barrier")
    k("s_add_u32 s98, s98, 1")
    gate(k, layer, "s98", "v_lshlrev_b32 v18, 3, v1", 18, abort)
    loadx()
    if not XACK: stamp(k, 6)
    stamp_acc(k, 7)
    k(f"s_add_u32 s65, s65, {L.PSZ}")
    if gen.TL:
        for (n, ix) in ((53, 2), (33, 3)):
            lz = k.label(); k(f"s_cmp_lg_u32 s67, {n}"); k(f"s_cbranch_scc1 {lz}"); gen.tl(k, ix+5*layer, 20); k.place(lz)
    k("s_sub_u32 s67, s67, 1"); k("s_cmp_lg_u32 s67, 0"); k(f"s_cbranch_scc1 {loop}")
    gen.tl(k, 4+5*layer, 16)
    stamp_out(k)

def setup_A(k):
    TT = 8192; SP = TT + 4*3584
    mem_common_setup(k)
    k(f"s_lshr_b32 s46, s{S_WAVE}, 1"); k("s_mul_i32 s46, s46, 7")
    k(f"s_and_b32 s69, s{S_WAVE}, 1")
    k("s_lshl_b32 s66, s69, 2"); k("s_add_u32 s66, s66, s46")
    k("s_add_u32 s68, s46, 3")
    k(f"s_mul_i32 s47, s60, 28"); k("s_lshl_b32 s48, s66, 1"); k("s_add_u32 s48, s48, s47")
    k(f"s_mul_i32 s48, s48, {14*1024}"); k(f"s_add_u32 s48, s48, {L.WQ}")
    k("s_lshl_b32 s49, s68, 1"); k("s_add_u32 s49, s49, s69"); k("s_add_u32 s49, s49, s47")
    k(f"s_mul_i32 s49, s49, {14*1024}"); k(f"s_add_u32 s49, s49, {L.WQ}")
    for n in range(98):
        reg = 256 + 4*n if n < 64 else 120 + 4*(n-64)
        if n == 84: k("s_mov_b32 s48, s49")
        nn = n if n < 84 else n - 84
        if nn % 4 == 0 and nn: k("s_add_u32 s48, s48, 4096")
        k(f"buffer_load_dwordx4 {vr(reg,4)}, v1, {WS}, s48 offen offset:{(nn%4)*1024}")
    k("v_and_b32 v16, 15, v0")
    k("v_lshrrev_b32 v17, 4, v0")
    k("v_bfe_u32 v18, v0, 1, 1"); k("v_lshlrev_b32 v18, 2, v18")
    k("v_and_b32 v19, 1, v0"); k("v_lshl_add_u32 v18, v19, 1, v18")
    k("v_bfe_u32 v19, v0, 2, 1"); k("v_add_u32 v18, v18, v19")
    k("v_lshlrev_b32 v18, 4, v18")
    k("v_lshrrev_b32 v19, 1, v17"); k("v_lshl_add_u32 v18, v19, 8, v18")
    k("v_and_b32 v19, 1, v17"); k("v_lshl_add_u32 v18, v19, 3, v18")
    k("s_lshl_b32 s46, s66, 9"); k("v_add_u32 v7, s46, v18")
    k("v_add_u32 v15, 1024, v7")
    k("s_lshl_b32 s46, s68, 9"); k("s_lshl_b32 s47, s69, 2"); k("s_add_u32 s46, s46, s47")
    k("v_add_u32 v5, s46, v18")
    k(f"s_mul_i32 s46, s{S_WAVE}, 3584"); k(f"s_add_u32 s46, s46, {TT}")
    k("v_lshlrev_b32 v8, 5, v16"); k("v_lshl_add_u32 v8, v17, 3, v8"); k("v_add_u32 v8, s46, v8")
    k("v_lshlrev_b32 v9, 3, v0"); k("v_add_u32 v9, s46, v9")
    k(f"s_mul_i32 s46, s{S_WAVE}, {SPW}"); k(f"s_add_u32 s46, s46, {SP}")
    k("v_and_b32 v19, 7, v0"); k("v_mul_u32_u24 v18, 176, v19"); k("v_add_u32 v18, s46, v18")
    k("v_lshrrev_b32 v19, 3, v16")
    k("v_lshl_add_u32 v10, v17, 5, v18"); k("v_lshl_add_u32 v10, v19, 4, v10")
    k("v_and_b32 v20, 1, v17"); k("v_lshl_add_u32 v11, v20, 4, v18")
    k("v_lshrrev_b32 v20, 1, v17"); k("v_lshl_add_u32 v11, v20, 3, v11")
    k("v_lshl_add_u32 v11, v19, 2, v11"); k("v_add_u32 v11, 128, v11")
    k(f"v_mov_b32 v20, {hx(f2u(-1e30))}"); k("v_mov_b32 v21, v20")
    k("ds_write_b64 v18, v[20:21] offset:160")
    k("v_and_b32 v19, 31, v0"); k("v_lshrrev_b32 v20, 5, v0")
    k(f"s_lshl_b32 s46, s{S_WAVE}, 1"); k("v_add_u32 v20, s46, v20")
    k("v_lshlrev_b32 v21, 3, v19"); k("v_cmp_gt_u32 vcc, 20, v19"); k("v_mov_b32 v22, 160")
    k("v_cndmask_b32 v21, v22, v21, vcc")
    k("v_mul_u32_u24 v22, 176, v20"); k("v_add_u32 v12, v21, v22"); k(f"v_add_u32 v12, {SP}, v12")
    k("v_lshrrev_b32 v21, 2, v19"); k("v_lshl_add_u32 v21, v21, 3, v20"); k("v_lshlrev_b32 v21, 4, v21")
    k("v_and_b32 v22, 3, v19"); k("v_lshl_add_u32 v21, v22, 2, v21")
    k("v_mov_b32 v22, 0x7fffffff"); k("v_cndmask_b32 v13, v22, v21, vcc")
    k("s_lshl_b32 s46, s68, 10"); k("s_lshl_b32 s47, s69, 3"); k("s_add_u32 s46, s46, s47")
    k("v_add_u32 v14, s46, v1")
    k("s_lshl_b32 s46, s66, 10"); k("v_add_u32 v6, s46, v1")
    k("s_waitcnt vmcnt(0) lgkmcnt(0)")

B_TB = 8192
B_OUT = B_TB + 8192
B_LW = B_OUT + 8192
CHAIN_LDS = B_LW + 4*28*1024

def setup_B(k):
    mem_common_setup(k)
    k(f"s_lshl_b32 s46, s{S_WAVE}, 2"); k("s_mul_i32 s46, s46, 28"); k("s_lshl_b32 s47, s60, 1"); k("s_add_u32 s46, s46, s47")
    k(f"s_mul_i32 s46, s46, {14*1024}"); k(f"s_add_u32 s46, s46, {L.WV}")
    k(f"s_mul_i32 s47, s{S_WAVE}, {28*1024}"); k(f"s_add_u32 s47, s47, {B_LW}")
    k("v_add_u32 v15, s47, v1")
    for hh in (3, 0, 1, 2):
        k(f"s_add_u32 s48, s46, {hh*28*14*1024}")
        for n in range(28):
            if hh == 3: reg = 16 + 4*n
            else:
                q = hh*28 + n
                reg = 256 + 4*q if q < 64 else 176 + 4*(q-64)
            if n % 4 == 0 and n: k("s_add_u32 s48, s48, 4096")
            k(f"buffer_load_dwordx4 {vr(reg,4)}, v1, {WS}, s48 offen offset:{(n%4)*1024}")
        if hh == 0:
            k("s_waitcnt vmcnt(28)")
            for n in range(28): k(f"ds_write_b128 v15, {vr(16+4*n,4)} offset:{n*1024}")
    k("s_waitcnt lgkmcnt(0)")
    k("v_and_b32 v16, 15, v0"); k("v_lshrrev_b32 v17, 4, v0"); k("v_and_b32 v18, 7, v0")
    k(f"s_mul_i32 s46, s{S_WAVE}, 2560")
    k("v_lshl_add_u32 v7, v17, 3, v18"); k("v_lshlrev_b32 v7, 4, v7"); k("v_add_u32 v7, s46, v7")
    k("v_lshrrev_b32 v19, 3, v16"); k("v_mul_u32_u24 v19, 640, v19"); k("v_add_u32 v7, v7, v19")
    k("v_mul_u32_u24 v8, 640, v17"); k("v_lshl_add_u32 v8, v18, 4, v8"); k("v_add_u32 v8, s46, v8"); k("v_add_u32 v8, 512, v8")
    k(f"v_mul_u32_u24 v19, {28*1024}, v17"); k("v_lshl_add_u32 v19, v16, 7, v19"); k("v_mov_b32 v20, 0x7fffffff")
    k(f"v_cmp_gt_u32 vcc, {NB}, v16"); k("v_cndmask_b32 v5, v20, v19, vcc")
    k(f"s_lshl_b32 s46, s{S_WAVE}, 11"); k(f"s_add_u32 s47, s46, {B_TB}")
    k("v_lshlrev_b32 v9, 4, v16"); k("v_lshl_add_u32 v9, v17, 2, v9"); k("v_add_u32 v9, s47, v9")
    k("v_add_u32 v10, s47, v1")
    k(f"s_lshl_b32 s46, s{S_WAVE}, 10"); k(f"s_add_u32 s47, s46, {B_OUT}"); k("v_add_u32 v11, s47, v1")
    k("v_bfe_u32 v19, v0, 2, 3"); k("v_lshrrev_b32 v20, 5, v0"); k("v_bfe_u32 v21, v0, 1, 1"); k("v_and_b32 v22, 1, v0")
    k(f"s_lshl_b32 s46, s{S_WAVE}, 1"); k("s_and_b32 s46, s46, 2"); k("v_add_u32 v21, s46, v21")
    k("v_lshl_add_u32 v12, v21, 4, v19"); k("v_lshlrev_b32 v12, 4, v12"); k("v_lshl_add_u32 v12, v22, 7, v12")
    k("v_lshl_add_u32 v12, v20, 3, v12"); k(f"v_add_u32 v12, {B_OUT}, v12")
    k("s_lshl_b32 s47, s60, 9"); k("s_lshl_b32 s48, s46, 7"); k("s_add_u32 s48, s48, s47")
    k("v_lshlrev_b32 v13, 2, v0"); k("v_add_u32 v13, s48, v13")
    k("v_lshlrev_b32 v14, 7, v21"); k("v_lshl_add_u32 v14, v19, 4, v14"); k("v_lshl_add_u32 v14, v22, 3, v14")
    k("v_lshl_add_u32 v14, v20, 2, v14"); k("v_add_u32 v14, s47, v14")
    lane0_addr(k, 6, 19); k("v_mov_b32 v0, 1")
    k("s_waitcnt vmcnt(0)")

def gen_chain_B(k, layer, st, abort):
    ACC = [52, 56, 60]; FT = 64; HOLD = 67; ZA = 68; U = 76; P = 108; LW = 108; DUM = 66
    def W(hh, t, p):
        o = (hh*2 + t)*7 + p
        return vr(256 + 8*o, 8) if o < 32 else vr(176 + 8*(o-32), 8)
    loop = k.label("LB"); done = k.label("LBd"); first = k.label("LBf"); nofin = k.label("LBn")
    k(f"s_mov_b32 s61, {L.MEM[layer]}")
    k(f"s_mov_b32 s65, {L.PIM[layer]}")
    k(f"s_lshl_b32 s62, s{S_WAVE}, 2"); k("s_mul_i32 s62, s62, 28"); k("s_lshl_b32 s46, s60, 1"); k("s_add_u32 s62, s62, s46")
    k("s_lshl_b32 s62, s62, 10"); k(f"s_add_u32 s62, s62, {L.UU[layer]}")
    k(f"s_mul_i32 s63, s{S_WAVE}, 28"); k("s_add_u32 s63, s63, s46"); k("s_lshl_b32 s63, s63, 10"); k(f"s_add_u32 s63, s63, {L.VM[layer]}")
    k(f"s_mov_b32 s66, {L.MEMN[layer]}")
    k("s_mov_b32 s67, 0")
    k("s_mov_b32 s96, 0"); k(f"s_mov_b32 s99, {L.FIN(layer)}")
    stamp_init(k)
    k.place(loop)
    if FUSED:
        k("s_add_u32 s98, s67, 1")
        gate(k, layer, "s98", "v_lshlrev_b32 v44, 3, v1", 44, abort)
    stamp(k, 0)
    poll_mem(k, 61, abort)
    stamp(k, 1)
    k(f"s_add_u32 s61, s61, {L.MEMSZ}")
    for r in range(2): k(f"v_mov_b64 {vr(ACC[0]+2*r,2)}, 0")
    k("s_waitcnt lgkmcnt(0)")
    k("s_barrier")
    stamp(k, 2)
    for p in range(7): k(f"ds_read_b128 {vr(M+4*p,4)}, v1 offset:{p*1024}")
    if NB:
        k(f"s_add_u32 s64, s62, {16*28*1024}")
        k(f"buffer_load_dword v{DUM}, v5, {WS}, s64 offen")
    for r in range(2): k(f"v_mov_b64 {vr(ACC[1]+2*r,2)}, 0")
    k("s_cmp_eq_u32 s67, 0"); k(f"s_cbranch_scc1 {first}")
    k(f"buffer_store_dwordx4 {vr(ZA,4)}, v1, {WS}, s63 offen sc1")
    k(f"buffer_store_dwordx4 {vr(ZA+4,4)}, v1, {WS}, s63 offen offset:1024 sc1")
    k(f"s_add_u32 s63, s63, {L.VMSZ}")
    k(f"s_cmp_ge_u32 s{S_WAVE}, 2"); k(f"s_cbranch_scc1 {first}")
    k(f"buffer_store_dword v{HOLD}, v14, {WS}, s66 offen sc1")
    k.place(first)
    k(f"s_add_u32 s66, s66, {L.MEMSZ}")
    uload = []
    for hh in range(4):
        for t in range(2):
            pre = [f"s_add_u32 s64, s62, {hh*28*1024}"] if (hh and t == 0) else []
            uload.append(pre + [f"buffer_load_dwordx4 {vr(U+(hh*2+t)*4,4)}, v1, {WS}, {'s64' if hh else 's62'} offen offset:{t*1024} sc1"])
    order = [(0,0),(0,1),(1,0),(3,0),(1,1),(2,0),(2,1),(3,1)]
    def fold(j):
        pa = ACC[j % 3]; hh, t = order[j]
        return [[f"v_permlane32_swap_b32 v{pa}, v{pa+1}"], [f"v_permlane32_swap_b32 v{pa+2}, v{pa+3}"],
                [f"v_add_f32 v{FT}, v{pa}, v{pa+1}", f"v_add_f32 v{FT+1}, v{pa+2}, v{pa+3}"],
                [f"v_cvt_pk_bf16_f32 v{FT}, v{FT}, v{FT+1}"], [f"ds_write_b32 v9, v{FT} offset:{t*1024+hh*256}"]]
    lw = [[f"ds_read_b128 {vr(LW+4*(n%14),4)}, v15 offset:{n*1024}" for n in range(14*u, 14*u+14)] for u in range(2)]
    k("s_waitcnt lgkmcnt(0)")
    for i, (hh, t) in enumerate(order):
        a = ACC[i % 3]; z = ACC[(i+1) % 3]
        if hh == 3: k("s_waitcnt lgkmcnt(0)")
        main = [f"v_smfmac_f32_16x16x64_bf16 {vr(a,4)}, {vr(M+4*p,4)}, {W(hh,t,p) if hh<3 else vr(LW+8*p,8)}, v2" for p in range(7)]
        side = {p: [] for p in range(7)}
        if i >= 1:
            f = fold(i-1)
            for q in range(5): side[2+q] += f[q]
            if i < 7:
                side[0] += [f"v_mov_b64 {vr(z,2)}, 0"]
                side[1] += [f"v_mov_b64 {vr(z+2,2)}, 0"]
        if i == 0:
            for p in range(7): side[p] += [lw[0][p]]
        if i in (1, 2):
            for q, p in enumerate((0, 1, 2, 3)):
                n = 7 + (i-1)*4 + q
                if n < 14: side[p] += [lw[0][n]]
        if i in (4, 5, 6):
            for q, p in enumerate((0, 1, 2, 3, 5)):
                n = (i-4)*5 + q
                if n < 14: side[p] += [lw[1][n]]
        if i in (1, 2, 3, 4) and not XNOU:
            side[5] += uload[2*(i-1)]; side[6] += uload[2*(i-1)+1]
        if DIAG == 2 and i == 0: stamp(k, 3)
        interleave(k, main, side)
        if DIAG == 2 and i == 1: stamp(k, 4)
        if DIAG == 2 and i == 3: stamp(k, 5)
    k(f"s_add_u32 s62, s62, {16*28*1024}")
    for f in fold(7):
        for x in f: k(x)
    k(f"ds_read_b128 {vr(ZA,4)}, v10"); k(f"ds_read_b128 {vr(ZA+4,4)}, v10 offset:1024")
    stamp(k, 3 if DIAG != 2 else 6)
    k("s_cmp_eq_u32 s67, 63"); k(f"s_cbranch_scc1 {done}")
    lp = k.label("Lpp"); got = [k.label("Lpg"), k.label("Lpg")]; join = k.label("Lpj")
    PS = [P, P+12]; OUT = P + 24
    def issue(q):
        k(f"buffer_load_dwordx4 {vr(PS[q],4)}, v7, {WS}, s65 offen sc1")
        k(f"buffer_load_dwordx4 {vr(PS[q]+4,4)}, v7, {WS}, s65 offen offset:1280 sc1")
        k(f"buffer_load_dwordx4 {vr(PS[q]+8,4)}, v8, {WS}, s65 offen sc1")
    k(f"s_mov_b32 s70, {TIMEOUT}")
    k("s_waitcnt lgkmcnt(0)")
    if XSLEEP: k(f"s_sleep {XSLEEP}")
    issue(0)
    k.place(lp)
    for q in range(2):
        issue(1-q)
        if q == 0:
            k("s_sub_u32 s70, s70, 1"); k(f"s_cbranch_scc1 {abort}")
        k("s_waitcnt vmcnt(3)")
        k(f"v_max3_u32 v{FT}, v{PS[q]}, v{PS[q]+4}, v{PS[q]+8}")
        k(f"v_cmp_eq_u32 vcc, -1, v{FT}")
        if q == 0: k(f"s_cbranch_vccz {got[0]}")
        else: k(f"s_cbranch_vccnz {lp}")
    for q in (1, 0):
        k.place(got[q])
        if DIAG != 2: stamp(k, 4)
        Q = PS[q]
        rest = [Q+i for i in range(12) if i % 4]
        chk = [f"v_max3_u32 v{FT}, v{rest[0]}, v{rest[1]}, v{rest[2]}"] + [f"v_max3_u32 v{FT}, v{FT}, v{rest[3+2*i]}, v{rest[4+2*i]}" for i in range(3)]
        main = []
        for hh in (0, 1, 2, 3):
            for t in range(2):
                o = OUT + 8*(hh & 1) + 4*t
                main.append(f"v_mfma_f32_16x16x32_bf16 {vr(o,4)}, {vr(U+(hh*2+t)*4,4)}, {vr(Q+4*(hh>>1),4)}, {'0' if hh<2 else vr(o,4)}")
            if hh == 1:
                main.append(f"v_mfma_f32_16x16x32_bf16 {vr(OUT,4)}, {vr(ZA,4)}, {vr(Q+8,4)}, {vr(OUT,4)}")
                main.append(f"v_mfma_f32_16x16x32_bf16 {vr(OUT+4,4)}, {vr(ZA+4,4)}, {vr(Q+8,4)}, {vr(OUT+4,4)}")
        side = {i: [chk[i]] for i in range(4)}
        side[4] = [f"v_cmp_eq_u32 vcc, -1, v{FT}"]
        interleave(k, main, side)
        k(f"s_cbranch_vccnz {lp if q == 1 else lp + 'r'}")
        if q == 1: k(f"s_branch {join}")
    k.place(join)
    Y = ACC[0]
    for r in range(4): k(f"v_add_f32_dpp v{Y+r}, v{OUT+8+r}, v{OUT+r} row_ror:8 row_mask:0xf bank_mask:0x3")
    for r in range(4): k(f"v_add_f32_dpp v{Y+r}, v{OUT+4+r}, v{OUT+12+r} row_ror:8 row_mask:0xf bank_mask:0xc")
    k(f"ds_write_b128 v11, {vr(Y,4)}")
    k(f"s_add_u32 s65, s65, {L.PSZ}")
    k("s_add_u32 s67, s67, 1")
    k("s_waitcnt lgkmcnt(0)")
    k("s_barrier")
    if DIAG != 2: stamp(k, 5)
    k(f"s_cmp_ge_u32 s{S_WAVE}, 2"); k(f"s_cbranch_scc1 {nofin}")
    for q in range(4): k(f"ds_read_b64 {vr(U+2*q,2)}, v12 offset:{q*1024}")
    k("s_waitcnt lgkmcnt(2)"); k(f"v_pk_add_f32 {vr(U,2)}, {vr(U,2)}, {vr(U+2,2)}")
    k("s_waitcnt lgkmcnt(0)"); k(f"v_pk_add_f32 {vr(U+4,2)}, {vr(U+4,2)}, {vr(U+6,2)}")
    k(f"v_pk_add_f32 {vr(U,2)}, {vr(U,2)}, {vr(U+4,2)}")
    k(f"v_cvt_pk_bf16_f32 v{HOLD}, v{U}, v{U+1}")
    k(f"v_min_u32 v{U}, -2, v{HOLD}")
    k(f"buffer_store_dword v{U}, v13, {WS}, s61 offen {st}")
    if DIAG != 2: stamp(k, 6)
    stamp_acc(k, 7)
    k.place(nofin)
    k("s_barrier")
    k(f"s_branch {loop}")
    k.place(lp + "r")
    issue(0)
    k(f"s_branch {lp}")
    k.place(done)
    k("s_waitcnt lgkmcnt(0)")
    k(f"buffer_store_dwordx4 {vr(ZA,4)}, v1, {WS}, s63 offen sc1")
    k(f"buffer_store_dwordx4 {vr(ZA+4,4)}, v1, {WS}, s63 offen offset:1024 sc1")
    if FUSED:
        k("s_waitcnt vmcnt(0)"); k("s_barrier")
        lz = k.label(); k(f"s_cmp_lg_u32 s{S_WAVE}, 0"); k(f"s_cbranch_scc1 {lz}")
        signal(k, "s99", 6, 0)
        k.place(lz)
    stamp_out(k)

def gen_chain_P(k, layer, abort):
    k(f"s_lshl_b32 s46, s60, 2"); k(f"s_add_u32 s46, s46, s{S_WAVE}")
    k("s_mov_b32 s94, s46")
    k("v_lshlrev_b32 v1, 7, v0"); k("v_mov_b32 v20, 0x7fffffff")
    k(f"s_mul_i32 s47, s46, {448*128}"); k("v_add_u32 v2, s47, v1")
    k("v_and_b32 v3, 15, v0"); k(f"v_cmp_le_u32 vcc, {NB}, v3"); k("v_cndmask_b32 v3, v20, v2, vcc")
    k(f"s_mul_i32 s47, s46, {28*128}"); k("v_add_u32 v4, s47, v1"); k("v_cmp_gt_u32 vcc, 28, v0"); k("v_cndmask_b32 v4, v20, v4, vcc")
    k(f"s_mul_i32 s47, s46, {7*128}"); k("v_add_u32 v5, s47, v1"); k("v_cmp_gt_u32 vcc, 7, v0"); k("v_cndmask_b32 v5, v20, v5, vcc")
    k(f"s_mul_i32 s47, s46, {10*128}"); k("v_add_u32 v6, s47, v1"); k("v_cmp_gt_u32 vcc, 10, v0"); k("v_cndmask_b32 v6, v20, v6, vcc")
    k("v_min_u32 v7, 27, v0"); k("v_lshlrev_b32 v7, 8, v7")
    k("v_mov_b32 v12, 0"); k(f"s_mov_b32 s99, {L.PROG(layer)}"); k("s_mov_b32 s95, 1")
    k(f"s_mov_b32 s62, {L.UU[layer]}"); k(f"s_mov_b32 s63, {L.XTA[layer]}")
    k(f"s_mov_b32 s64, {L.MEM[layer]+L.MEMSZ}"); k(f"s_mov_b32 s65, {L.PIM[layer]}")
    k(f"s_mov_b32 s61, {L.MEM[layer]}")
    def touch(v, mid=None):
        k(f"buffer_load_dword v8, v5, {WS}, s64 offen"); k(f"buffer_load_dword v8, v6, {WS}, s65 offen")
        k(f"buffer_load_dword v8, v4, {WS}, s63 offen")
        for j in range(7):
            if j == 3 and mid: mid()
            k(f"s_add_u32 s66, s62, {j*8192}")
            k(f"buffer_load_dword v8, v{v}, {WS}, s66 offen")
        k(f"s_add_u32 s62, s62, {16*28*1024}"); k(f"s_add_u32 s63, s63, {28*1024}")
        k(f"s_add_u32 s64, s64, {L.MEMSZ}"); k(f"s_add_u32 s65, s65, {L.PSZ}")
    def probe(): k(f"buffer_load_dword v9, v7, {WS}, s61 offen sc1")
    k("s_mov_b32 s96, 0"); k("s_mov_b32 s98, 0")
    def pgate():
        gate(k, layer, "s98", "v_mov_b32 v10, v1", 10, abort); k("s_add_u32 s98, s98, 1")
    pgate(); touch(2)
    for i in range(1, PFD):
        pgate(); touch(3)
    k(f"s_add_u32 s61, s61, {L.MEMSZ}")
    loop = k.label("LP"); lp = k.label("LPp"); go = k.label("LPg"); pend = k.label("LPe"); nt = k.label("LPn"); np_ = k.label("LPq")
    k.place(loop)
    k(f"s_cmp_ge_u32 s98, 63"); k(f"s_cbranch_scc1 {nt}")
    pgate()
    touch(3, probe)
    k("s_waitcnt vmcnt(4)")
    k("v_cmp_eq_u32 vcc, -1, v9"); k(f"s_cbranch_vccz {go}")
    k.place(nt)
    k(f"s_mov_b32 s70, {TIMEOUT}")
    k.place(lp)
    probe()
    k("s_sub_u32 s70, s70, 1"); k(f"s_cbranch_scc1 {abort}")
    k("s_waitcnt vmcnt(0)")
    k("v_cmp_eq_u32 vcc, -1, v9"); k(f"s_cbranch_vccnz {lp}")
    k.place(go)
    if FUSED:
        k("s_cmp_lg_u32 s94, 0"); k(f"s_cbranch_scc1 {np_}")
        k("v_mov_b32 v13, s95"); k("s_mov_b64 exec, 1")
        k(f"buffer_store_dword v13, v12, {WS}, s99 offen sc1")
        k("s_mov_b64 exec, -1")
        k.place(np_)
    k(f"s_add_u32 s61, s61, {L.MEMSZ}")
    k("s_add_u32 s95, s95, 1"); k("s_cmp_le_u32 s95, 63"); k(f"s_cbranch_scc1 {loop}")
    k.place(pend)

def chain_roles(k, layers, ex):
    lP = k.label("LroleP")
    srd(k, 8, P_DBG, 256)
    k("s_getreg_b32 s58, hwreg(HW_REG_XCC_ID)"); k("s_and_b32 s58, s58, 15"); k("s_add_u32 s58, s58, 1")
    k("v_mov_b32 v2, s58"); k("s_lshl_b32 s46, s59, 2"); k("v_mov_b32 v3, s46")
    k("buffer_store_dword v2, v3, s[8:11], 0 offen sc1")
    k("s_cmp_ge_u32 s59, 30"); k(f"s_cbranch_scc1 {lP}")
    lB = k.label("LroleB")
    def agree(slow):
        lp = k.label("Lx")
        k("v_lshrrev_b32 v16, 2, v1"); k("v_min_u32 v16, 124, v16")
        k(f"s_mov_b32 s70, {TIMEOUT}")
        k.place(lp)
        k("buffer_load_dword v17, v16, s[8:11], 0 offen sc1")
        k("s_sub_u32 s70, s70, 1"); k(f"s_cbranch_scc1 {ex}")
        k("s_waitcnt vmcnt(0)")
        k("v_cmp_eq_u32 vcc, 0, v17"); k(f"s_cbranch_vccnz {lp}")
        k("v_cmp_ne_u32 vcc, s58, v17"); k(f"s_cbranch_vccnz {slow}")
    k("s_cmp_ge_u32 s59, 16"); k(f"s_cbranch_scc1 {lB}")
    k("s_mov_b32 s60, s59")
    setup_A(k)
    sl = k.label("LslowA"); agree(sl)
    for l in layers: gen_chain_A(k, l, "", ex)
    k("s_endpgm")
    k.place(sl)
    for l in layers: gen_chain_A(k, l, "sc1", ex)
    k("s_endpgm")
    k.place(lB)
    k("s_sub_u32 s60, s59, 16")
    setup_B(k)
    sl = k.label("LslowB"); agree(sl)
    for l in layers: gen_chain_B(k, l, "", ex)
    k("s_endpgm")
    k.place(sl)
    for l in layers: gen_chain_B(k, l, "sc1", ex)
    k("s_endpgm")
    k.place(lP)
    k("s_sub_u32 s60, s59, 30")
    for l in layers: gen_chain_P(k, l, ex)
    k("s_endpgm")

def gen_chain(layer):
    k = K(f"chain{layer}_kernel", nsgpr=102)
    if DIAG or T0: k("s_memtime s[86:87]")
    prologue(k, 256)
    ex = f"Lexit_{k.name}"
    k("s_and_b32 s46, s2, 7"); k("s_cmp_lg_u32 s46, 0"); k(f"s_cbranch_scc1 {ex}")
    k("s_lshr_b32 s59, s2, 3")
    chain_roles(k, [layer], ex)
    epilogue(k)
    return k
```

```python
import struct, sys
from asmlib import *
import layout as L

def f2u(x): return struct.unpack("<I", struct.pack("<f", x))[0]
def hx(x): return hex(x & 0xffffffff)

S_WS = 4
P_X, P_MEM0, P_WQ, P_WK, P_WV, P_WO = 16, 18, 20, 22, 24, 26
P_BQ, P_BK, P_BV, P_BO = 32, 34, 36, 38
P_OUT, P_DBG, P_WS = 40, 42, 44
S_WAVE = 3

def srd(k, d, base, nbytes):
    k(f"s_mov_b32 s{d}, s{base}")
    k(f"s_and_b32 s{d+1}, s{base+1}, 0xffff")
    k(f"s_mov_b32 s{d+2}, {hx(nbytes)}")
    k(f"s_mov_b32 s{d+3}, 0x20000")

def prologue(k, nwg):
    k(f"s_cmp_ge_u32 s2, {nwg}")
    k(f"s_cbranch_scc1 Lexit_{k.name}")
    k("s_load_dwordx16 s[16:31], s[0:1], 0")
    k("s_load_dwordx8 s[32:39], s[0:1], 64")
    k("s_load_dwordx4 s[40:43], s[0:1], 96")
    k("s_load_dwordx2 s[44:45], s[0:1], 112")
    k("v_lshrrev_b32 v1, 6, v0")
    k(f"v_readfirstlane_b32 s{S_WAVE}, v1")
    k("v_and_b32 v0, 63, v0")
    k("s_waitcnt lgkmcnt(0)")
    srd(k, S_WS, P_WS, L.WS_BYTES)

def epilogue(k):
    k.place(f"Lexit_{k.name}")
    k("s_endpgm")

WS = "s[4:7]"

def xreduce_g(k, v, tmp, op):
    k(f"v_mov_b32 v{tmp}, v{v}")
    k(f"v_permlane16_swap_b32 v{v}, v{tmp}")
    k(f"{op} v{v}, v{v}, v{tmp}")
    k(f"v_mov_b32 v{tmp}, v{v}")
    k(f"v_permlane32_swap_b32 v{v}, v{tmp}")
    k(f"{op} v{v}, v{v}, v{tmp}")

def div7(k, sq, srem, sx):
    k(f"s_mul_i32 s{sq}, s{sx}, 9363")
    k(f"s_lshr_b32 s{sq}, s{sq}, 16")
    k(f"s_mul_i32 s{srem}, s{sq}, 7")
    k(f"s_sub_u32 s{srem}, s{sx}, s{srem}")

def gen_prep():
    k = K("prep_kernel")
    prologue(k, 256)
    k("v_and_b32 v2, 15, v0")
    k("v_lshrrev_b32 v3, 4, v0")
    k("v_lshrrev_b32 v4, 2, v2")
    k("v_lshlrev_b32 v4, 3, v4")
    k("v_and_b32 v5, 3, v2")
    k("v_add_u32 v4, v4, v5")
    k("v_lshlrev_b32 v6, 4, v0")
    k(f"s_lshl_b32 s46, s2, 2")
    k(f"s_add_u32 s46, s46, s{S_WAVE}")
    lab_no = k.label(); lq = k.label(); lo = k.label(); lk = k.label(); lv = k.label(); lj = k.label()
    k("s_mov_b32 s60, 0")
    srd(k, 8, P_BQ, 448*896)
    k("s_mov_b32 s50, 896")
    k("s_mov_b32 s51, 0")
    k("s_mov_b32 s52, 0")
    k("v_mov_b32 v7, 0")
    k("s_cmp_ge_u32 s46, 840")
    k(f"s_cbranch_scc1 {lab_no}")
    k("s_mov_b32 s60, 1")
    k("s_cmp_ge_u32 s46, 812"); k(f"s_cbranch_scc1 {lv}")
    k("s_cmp_ge_u32 s46, 784"); k(f"s_cbranch_scc1 {lk}")
    k("s_cmp_ge_u32 s46, 392"); k(f"s_cbranch_scc1 {lo}")
    def blk(base, n):
        k(f"s_sub_u32 s47, s46, {base}")
        k("s_mul_i32 s48, s47, 4682")
        k("s_lshr_b32 s48, s48, 16")
        k("s_mul_i32 s49, s48, 14")
        k("s_sub_u32 s49, s47, s49")
    blk(0, 392)
    k("s_lshl_b32 s53, s48, 4")
    k("v_add_u32 v7, s53, v2")
    k(f"s_lshl_b32 s52, s47, 10"); k(f"s_add_u32 s52, s52, {L.WBQ}")
    k(f"s_branch {lj}")
    k.place(lo)
    blk(392, 392)
    srd(k, 8, P_BO, 448*896)
    k("s_lshr_b32 s53, s48, 1"); k("s_lshl_b32 s53, s53, 5")
    k("s_and_b32 s54, s48, 1"); k("s_lshl_b32 s54, s54, 2"); k("s_add_u32 s53, s53, s54")
    k("v_add_u32 v7, s53, v4")
    k(f"s_lshl_b32 s52, s47, 10"); k(f"s_add_u32 s52, s52, {L.WBO}")
    k(f"s_branch {lj}")
    k.place(lk)
    blk(784, 28)
    srd(k, 8, P_BK, 448*56)
    k("s_mov_b32 s50, 56")
    k("s_lshl_b32 s53, s48, 2")
    k("v_add_u32 v7, s53, v4")
    k(f"s_lshl_b32 s52, s47, 10"); k(f"s_add_u32 s52, s52, {L.WBK}")
    k(f"s_branch {lj}")
    k.place(lv)
    blk(812, 28)
    srd(k, 8, P_BV, 448*56)
    k("s_mov_b32 s50, 56")
    k("s_lshl_b32 s53, s48, 4")
    k("v_add_u32 v7, s53, v2")
    k(f"s_lshl_b32 s52, s47, 10"); k(f"s_add_u32 s52, s52, {L.WBV}")
    k.place(lj)
    k("s_lshl_b32 s53, s49, 5")
    k("v_lshlrev_b32 v8, 3, v3")
    k("v_add_u32 v8, s53, v8")
    k("v_mul_lo_u32 v8, v8, s50")
    k("v_lshlrev_b32 v9, 1, v7")
    k("v_cmp_le_u32 vcc, s50, v9")
    k("v_add_u32 v8, v8, v9")
    k("v_mov_b32 v9, 0x7fffffff")
    k("v_cndmask_b32 v8, v8, v9, vcc")
    k("s_mov_b32 s53, 0")
    for j in range(8):
        k(f"buffer_load_ushort v{16+j}, v8, s[8:11], s53 offen")
        if j < 7: k("s_add_u32 s53, s53, s50")
    k("s_waitcnt vmcnt(0)")
    for j in range(4): k(f"v_lshl_or_b32 v{12+j}, v{17+2*j}, 16, v{16+2*j}")
    k(f"buffer_store_dwordx4 v[12:15], v6, {WS}, s52 offen")
    k.place(lab_no)
    k("v_mov_b32 v12, -1"); k("v_mov_b32 v13, -1"); k("v_mov_b32 v14, -1"); k("v_mov_b32 v15, -1")
    k("v_lshl_add_u32 v8, s46, 10, v6")
    nun = L.CLR_BYTES
    for l in range(2):
        for it in range(2):
            k(f"v_add_u32 v9, {it*1048576}, v8")
            k(f"v_cmp_gt_u32 vcc, {nun}, v9")
            k("s_nop 1")
            k("v_mov_b32 v10, 0x7fffffff")
            k("v_cndmask_b32 v9, v10, v9, vcc")
            k(f"s_mov_b32 s53, {L.HO[l] + L.MEMSZ}")
            k(f"buffer_store_dwordx4 v[12:15], v9, {WS}, s53 offen")
    k("v_mov_b64 v[12:13], 0"); k("v_mov_b64 v[14:15], 0")
    k(f"v_cmp_gt_u32 vcc, {L.CNT_BYTES}, v8"); k("v_cndmask_b32 v9, v10, v8, vcc"); k(f"s_mov_b32 s53, {L.CNT}")
    k(f"buffer_store_dwordx4 v[12:15], v9, {WS}, s53 offen")
    lln = k.label()
    k("s_cmp_ge_u32 s2, 224")
    k(f"s_cbranch_scc1 {lln}")
    div7(k, 47, 48, 2)
    k("s_and_b32 s49, s47, 15")
    k("s_lshr_b32 s50, s47, 4")
    k("s_cmp_eq_u32 s50, 0")
    k(f"s_cselect_b32 s8, s{P_WQ}, s{P_WV}")
    k(f"s_cselect_b32 s9, s{P_WQ+1}, s{P_WV+1}")
    k("s_and_b32 s9, s9, 0xffff")
    k(f"s_mov_b32 s10, {448*8192}")
    k("s_mov_b32 s11, 0x20000")
    k("v_lshlrev_b32 v8, 13, v4")
    k("v_lshl_add_u32 v8, v3, 4, v8")
    k("s_lshl_b32 s51, s49, 9")
    BT = 16
    lvt = k.label(); lbd = k.label()
    k(f"s_lshr_b32 s53, s{S_WAVE}, 1"); k("s_lshl_b32 s53, s53, 5")
    k(f"s_and_b32 s54, s{S_WAVE}, 1"); k("s_lshl_b32 s54, s54, 2"); k("s_add_u32 s53, s53, s54")
    k("s_lshl_b32 s54, s48, 6"); k("s_add_u32 s53, s53, s54")
    srd(k, 12, P_WK, 448*8192)
    k("s_cmp_eq_u32 s50, 1")
    k(f"s_cbranch_scc1 {lvt}")
    k("s_lshl_b32 s54, s53, 13"); k("s_add_u32 s54, s54, s51")
    for ks in range(8):
        k(f"buffer_load_dwordx4 {vr(BT+4*ks,4)}, v8, s[12:15], s54 offen offset:{ks*64}")
    k(f"s_branch {lbd}")
    k.place(lvt)
    srd(k, 12, P_WO, 16*229376)
    k(f"v_mul_u32_u24 v9, {8*896}, v3")
    k("v_lshl_add_u32 v9, v4, 1, v9")
    k(f"v_add_u32 v10, {4*896}, v9")
    k(f"s_mul_i32 s54, s49, 229376"); k("s_lshl_b32 s55, s53, 1"); k("s_add_u32 s54, s54, s55")
    for ks in range(8):
        for j in range(8):
            k(f"buffer_load_ushort v{64+8*ks+j}, v{9 if j<4 else 10}, s[12:15], s54 offen offset:{(j&3)*896}")
        if ks < 7: k(f"s_add_u32 s54, s54, {32*896}")
    k.place(lbd)
    def aload(i):
        k(f"s_add_u32 s54, s{S_WAVE}, {4*i}")
        k("s_lshl_b32 s54, s54, 18")
        k("s_add_u32 s54, s54, s51")
        k(f"s_add_u32 s55, s54, {4*8192}")
        for t in range(2):
            for ks in range(8):
                k(f"buffer_load_dwordx4 {vr(256+i*64+t*32+ks*4,4)}, v8, s[8:11], s{54+t} offen offset:{ks*64}")
    for i in range(3): aload(i)
    k("s_waitcnt vmcnt(48)")
    lnp = k.label()
    k("s_cmp_eq_u32 s50, 0"); k(f"s_cbranch_scc1 {lnp}")
    for i in range(32): k(f"v_lshl_or_b32 v{BT+i}, v{65+2*i}, 16, v{64+2*i}")
    k.place(lnp)
    k(f"s_lshl_b32 s54, s{S_WAVE}, 13")
    k("v_add_u32 v9, s54, v6")
    for ks in range(8):
        k(f"ds_write_b128 v9, {vr(BT+4*ks,4)} offset:{ks*1024}")
    aload(3)
    k("s_waitcnt lgkmcnt(0)")
    k("s_barrier")
    BA = 64
    for tt in range(4):
        for ks in range(8):
            k(f"ds_read_b128 {vr(BA+(tt*8+ks)*4,4)}, v6 offset:{(tt*8+ks)*1024}")
    k("s_cmp_eq_u32 s50, 0")
    k(f"s_cselect_b32 s56, {hx(f2u(L.LOG2E/16))}, {hx(f2u(1.0))}")
    k(f"s_cselect_b32 s57, {L.WQ}, {L.WV}")
    k("s_mul_i32 s58, s49, 28"); k("s_lshl_b32 s59, s48, 2"); k("s_add_u32 s58, s58, s59")
    k(f"s_mul_i32 s58, s58, {14*1024}"); k("s_add_u32 s57, s57, s58")
    k("s_waitcnt lgkmcnt(0)")
    ACC = 192
    for i in range(4):
        if i == 3:
            k(f"s_cmp_ge_u32 s{S_WAVE}, 2")
            k(f"s_cbranch_scc1 Lexit_{k.name}")
        k(f"s_waitcnt vmcnt({[48,36,24,12][i]})")
        for ks in range(8):
            for t in range(2):
                for tt in range(4):
                    d = ACC + (t*4+tt)*4
                    c = "0" if ks == 0 else vr(d,4)
                    k(f"v_mfma_f32_16x16x32_bf16 {vr(d,4)}, {vr(256+i*64+t*32+ks*4,4)}, {vr(BA+(tt*8+ks)*4,4)}, {c}")
        k(f"s_add_u32 s58, s{S_WAVE}, {4*i}"); k("s_lshl_b32 s58, s58, 10"); k("s_add_u32 s58, s58, s57")
        for tt in range(4):
            o = 224 + tt*4
            for t in range(2):
                d = ACC + (t*4+tt)*4
                for r in range(4): k(f"v_mul_f32 v{d+r}, s56, v{d+r}")
                k(f"v_cvt_pk_bf16_f32 v{o+2*t}, v{d}, v{d+1}")
                k(f"v_cvt_pk_bf16_f32 v{o+2*t+1}, v{d+2}, v{d+3}")
            k(f"buffer_store_dwordx4 {vr(o,4)}, v6, {WS}, s58 offen")
            if tt < 3: k(f"s_add_u32 s58, s58, {14*1024}")
    k("s_endpgm")
    k.place(lln)
    srd(k, 8, P_X, L.XSZ)
    k("s_sub_u32 s47, s2, 224"); k("s_lshl_b32 s47, s47, 2"); k(f"s_add_u32 s47, s47, s{S_WAVE}")
    k("v_mul_u32_u24 v8, 896, v2")
    k("v_lshl_add_u32 v8, v3, 4, v8")
    k(f"s_mul_i32 s48, s47, {16*896}")
    XP = 16
    for ks in range(14):
        k(f"buffer_load_dwordx4 {vr(XP+4*ks,4)}, v8, s[8:11], s48 offen offset:{ks*64}")
    F = 72
    k("s_waitcnt vmcnt(0)")
    for i in range(56):
        k(f"v_lshlrev_b32 v{F+2*i}, 16, v{XP+i}")
        k(f"v_and_b32 v{F+2*i+1}, 0xffff0000, v{XP+i}")
    k(f"v_add_f32 v9, v{F}, v{F+1}"); k(f"v_add_f32 v10, v{F+2}, v{F+3}")
    for i in range(4, 112, 2):
        k(f"v_add_f32 v9, v9, v{F+i}"); k(f"v_add_f32 v10, v10, v{F+i+1}")
    k("v_add_f32 v9, v9, v10")
    xreduce_g(k, 9, 10, "v_add_f32")
    k(f"v_mul_f32 v9, {hx(f2u(1/448))}, v9")
    for i in range(112): k(f"v_sub_f32 v{F+i}, v{F+i}, v9")
    k(f"v_mul_f32 v10, v{F}, v{F}"); k(f"v_mul_f32 v11, v{F+1}, v{F+1}")
    for i in range(2, 112, 2):
        k(f"v_fmac_f32 v10, v{F+i}, v{F+i}"); k(f"v_fmac_f32 v11, v{F+i+1}, v{F+i+1}")
    k("v_add_f32 v10, v10, v11")
    xreduce_g(k, 10, 11, "v_add_f32")
    k(f"v_mov_b32 v11, {hx(f2u(1e-5))}")
    k(f"v_fmac_f32 v11, {hx(f2u(1/448))}, v10")
    k("v_rsq_f32 v11, v11")
    for i in range(112): k(f"v_mul_f32 v{F+i}, v{F+i}, v11")
    for i in range(56): k(f"v_cvt_pk_bf16_f32 v{XP+i}, v{F+2*i}, v{F+2*i+1}")
    k(f"s_mul_i32 s48, s47, {14*1024}"); k(f"s_add_u32 s48, s48, {L.XTA[0]}")
    for ks in range(14):
        if ks % 4 == 0 and ks: k("s_add_u32 s48, s48, 4096")
        k(f"buffer_store_dwordx4 {vr(XP+4*ks,4)}, v6, {WS}, s48 offen offset:{(ks%4)*1024}")
    k("s_cmp_lg_u32 s2, 255")
    k(f"s_cbranch_scc1 Lexit_{k.name}")
    srd(k, 8, P_MEM0, 7168)
    k(f"s_lshl_b32 s47, s{S_WAVE}, 6")
    k("v_add_u32 v8, s47, v0")
    k("v_and_b32 v9, 3, v8")
    k("v_bfe_u32 v10, v8, 2, 3")
    k("v_bfe_u32 v11, v8, 5, 1")
    k("v_lshrrev_b32 v12, 6, v8")
    k("v_mul_u32_u24 v10, 896, v10")
    k("v_lshl_add_u32 v10, v12, 5, v10")
    k("v_lshl_add_u32 v10, v9, 3, v10")
    k("v_lshl_add_u32 v10, v11, 2, v10")
    k("v_lshlrev_b32 v13, 2, v8")
    for p in range(7): k(f"buffer_load_dword v{16+p}, v10, s[8:11], 0 offen offset:{p*128}")
    k("v_and_b32 v9, 7, v8"); k("v_mul_u32_u24 v9, 896, v9")
    k("v_lshrrev_b32 v11, 3, v8"); k("v_lshl_add_u32 v9, v11, 4, v9")
    k("v_lshlrev_b32 v14, 4, v8")
    k("buffer_load_dwordx4 v[24:27], v9, s[8:11], 0 offen")
    k("buffer_load_dwordx4 v[28:31], v9, s[8:11], 0 offen offset:512")
    k("v_add_u32 v15, 4096, v14")
    k("v_cmp_gt_u32 vcc, 7168, v15")
    k("v_mov_b32 v11, 0x7fffffff")
    k("v_cndmask_b32 v15, v11, v15, vcc")
    k("s_waitcnt vmcnt(0)")
    for l in range(2):
        k(f"s_mov_b32 s47, {L.MEM[l]}")
        for p in range(7):
            if p == 4: k("s_add_u32 s47, s47, 4096")
            k(f"v_min_u32 v{16+p}, -2, v{16+p}")
            k(f"buffer_store_dword v{16+p}, v13, {WS}, s47 offen offset:{(p%4)*1024}")
        k(f"s_mov_b32 s47, {L.MEMN[l]}")
        k(f"buffer_store_dwordx4 v[24:27], v14, {WS}, s47 offen")
        k(f"buffer_store_dwordx4 v[28:31], v15, {WS}, s47 offen")
    epilogue(k)
    return k

TIMEOUT = 1 << 21
SLEEP = 8

def wait_counter(k, off, target, abort, vt=2, ge=False, nap=None):
    lp = k.label("Lwc")
    k(f"v_mov_b32 v{vt}, 0"); k(f"s_mov_b32 s46, {off}" if isinstance(off, int) else f"s_mov_b32 s46, {off}")
    k(f"s_mov_b32 s47, {TIMEOUT}")
    k.place(lp)
    k(f"buffer_load_dword v{vt+1}, v{vt}, {WS}, s46 offen sc1")
    k("s_sub_u32 s47, s47, 1"); k(f"s_cbranch_scc1 {abort}")
    k("s_waitcnt vmcnt(0)")
    k(f"v_cmp_{'gt' if ge else 'ne'}_u32 vcc, {target}, v{vt+1}")
    ok = k.label("Lwo")
    k(f"s_cbranch_vccz {ok}")
    k(f"s_sleep {SLEEP if nap is None else nap}")
    k(f"s_branch {lp}")
    k.place(ok)

def signal(k, soff, vz, vone):
    k("s_mov_b64 exec, 1")
    k(f"buffer_atomic_add v{vone}, v{vz}, {WS}, {soff} offen sc1")
    k("s_mov_b64 exec, -1")

TL = 0
TLOFF = 0xF100000
def tl(k, idx, vt):
    if not TL: return
    k("s_memrealtime s[84:85]"); k("s_lshl_b32 s101, s2, 2"); k(f"s_add_u32 s101, s101, s{S_WAVE}"); k("s_lshl_b32 s101, s101, 6")
    k(f"s_add_u32 s101, s101, {TLOFF + 4*idx}"); k("s_waitcnt lgkmcnt(0)")
    k(f"v_mov_b32 v{vt}, s84"); k(f"v_mov_b32 v{vt+1}, 0")
    k(f"buffer_store_dword v{vt}, v{vt+1}, {WS}, s101 offen")

def lane0_addr(k, vz, vone):
    k(f"v_mov_b32 v{vz}, 0"); k(f"v_mov_b32 v{vone}, 1")

def body_gemm(k, layer, sb, fused=False, abort=None):
    sc = " sc1" if fused else ""
    div7(k, 47, 48, sb)
    k("s_and_b32 s49, s47, 15")
    k("s_lshr_b32 s50, s47, 4")
    k("v_lshlrev_b32 v1, 4, v0")
    k("s_cmp_eq_u32 s50, 0")
    k(f"s_cselect_b32 s57, {L.WQ}, {L.WV}")
    k(f"s_mov_b32 s56, {L.UC(layer)}"); k(f"s_cselect_b32 s56, {L.QC(layer)}, s56")
    k("s_mul_i32 s58, s49, 28"); k("s_lshl_b32 s59, s48, 2"); k("s_add_u32 s58, s58, s59")
    k(f"s_mul_i32 s58, s58, {14*1024}"); k("s_add_u32 s57, s57, s58")
    for i in range(56):
        if i % 4 == 0 and i: k("s_add_u32 s57, s57, 4096")
        k(f"buffer_load_dwordx4 {vr(256+4*i,4)}, v1, {WS}, s57 offen offset:{(i%4)*1024}")
    if fused:
        lane0_addr(k, 4, 5)
        k(f"s_lshl_b32 s58, s{S_WAVE}, 7"); k("s_add_u32 s56, s56, s58")
        if layer == 1:
            k("s_mov_b32 s58, s48")
            wait_counter(k, L.B3C(0), NBLK, abort)
            k("s_mov_b32 s48, s58")
    def xreg(buf, i):
        if buf == 0: return 16 + 4*i
        return 128 + 4*i if i < 20 else 256 + 224 + 4*(i-20)
    def loadx(buf):
        k("s_mov_b32 s53, s52")
        for i in range(28):
            if i % 4 == 0 and i: k("s_add_u32 s53, s53, 4096")
            k(f"buffer_load_dwordx4 {vr(xreg(buf,i),4)}, v1, {WS}, s53 offen offset:{(i%4)*1024}{sc}")
        k(f"s_add_u32 s52, s52, {4*28*1024}")
    k(f"s_mul_i32 s52, s{S_WAVE}, {28*1024}"); k(f"s_add_u32 s52, s52, {L.XTA[layer]}")
    loadx(0)
    ACC = 208; O = 240
    lq = k.label(); end = k.label()
    k("s_cmp_eq_u32 s50, 0")
    k(f"s_cbranch_scc1 {lq}")
    for typ in (1, 0):
        if typ == 0: k.place(lq)
        k(f"s_lshl_b32 s54, s{S_WAVE}, 4"); k("s_add_u32 s54, s54, s49"); k(f"s_mul_i32 s54, s54, {28*1024}")
        if typ == 1:
            k("s_lshl_b32 s55, s48, 12"); k("s_add_u32 s54, s54, s55"); k(f"s_add_u32 s54, s54, {L.UU[layer]}")
        else:
            k("s_lshl_b32 s55, s48, 11"); k("s_add_u32 s54, s54, s55"); k(f"s_add_u32 s54, s54, {L.QP[layer]}")
        k("s_mov_b32 s51, 8")
        lp = k.label(); k.place(lp)
        for buf in range(2):
            loadx(1-buf)
            k("s_waitcnt vmcnt(28)")
            for ks in range(14):
                for t in range(2):
                    for tt in range(4):
                        d = ACC + (t*4+tt)*4
                        c = "0" if ks == 0 else vr(d,4)
                        x = vr(xreg(buf, t*14+ks),4); w = vr(256+(tt*14+ks)*4,4)
                        if typ == 1: k(f"v_mfma_f32_16x16x32_bf16 {vr(d,4)}, {x}, {w}, {c}")
                        else:        k(f"v_mfma_f32_16x16x32_bf16 {vr(d,4)}, {w}, {x}, {c}")
            for u in range(4):
                if typ == 1: d0, d1 = ACC + u*4, ACC + (4+u)*4; off = u*1024; so = "s54"
                else:
                    t, pp = u >> 1, u & 1
                    d0, d1 = ACC + (t*4+2*pp)*4, ACC + (t*4+2*pp+1)*4; off = pp*1024; so = "s54" if t == 0 else "s55"
                    if u == 2: k(f"s_add_u32 s55, s54, {14*1024}")
                o = O + 4*u
                k(f"v_cvt_pk_bf16_f32 v{o}, v{d0}, v{d0+1}"); k(f"v_cvt_pk_bf16_f32 v{o+1}, v{d0+2}, v{d0+3}")
                k(f"v_cvt_pk_bf16_f32 v{o+2}, v{d1}, v{d1+1}"); k(f"v_cvt_pk_bf16_f32 v{o+3}, v{d1+2}, v{d1+3}")
                k(f"buffer_store_dwordx4 {vr(o,4)}, v1, {WS}, {so} offen offset:{off}{sc}")
            k(f"s_add_u32 s54, s54, {4*16*28*1024}")
            if fused:
                k("s_waitcnt vmcnt(0)")
                signal(k, "s56", 4, 5)
                k("s_add_u32 s56, s56, 512")
        k("s_sub_u32 s51, s51, 1"); k("s_cmp_lg_u32 s51, 0"); k(f"s_cbranch_scc1 {lp}")
        if typ == 1: k(f"s_branch {end}")
    k.place(end)

NBLK = 205

def gen_gemm(layer):
    k = K(f"gemm{layer}_kernel")
    prologue(k, 224)
    body_gemm(k, layer, 2)
    epilogue(k)
    return k

def gen_empty():
    k = K("empty_kernel", 32, 32, 48)
    k("s_endpgm")
    return k
```

```python
import sys
import chain, gen
from chain import *
from attn import *

RB = 10
def gen_main():
    k = K("main_kernel", nsgpr=102)
    prologue(k, 256)
    layer_begin(k)
    ex = f"Lexit_{k.name}"
    bulk = k.label("Lbulk")
    gen.tl(k, 0, 2)
    k("s_and_b32 s46, s2, 7"); k("s_lshr_b32 s59, s2, 3"); k("s_cmp_lg_u32 s46, 0"); k(f"s_cbranch_scc1 {bulk}")
    chain_roles(k, ex)
    k.place(bulk)
    k("s_sub_u32 s100, s46, 1"); k("s_lshl_b32 s100, s100, 5"); k("s_add_u32 s100, s100, s59")
    top = k.label("Ltop"); k.place(top)
    body_gemm(k, 100, ex)
    gen.tl(k, 1, 2)
    again = k.label("Lag")
    k("s_mov_b32 s1, s100")
    k.place(again)
    k("s_lshr_b32 s60, s1, 2"); k("s_and_b32 s71, s1, 3")
    body_attnA4(k, ex)
    gen.tl(k, 3, 2)
    k("s_add_u32 s1, s1, 224"); k("s_cmp_lt_u32 s1, 256"); k(f"s_cbranch_scc1 {again}")
    nob = k.label("Lnob")
    k("s_sub_u32 s60, s100, 32"); k("s_add_u32 s46, s100, 192"); k("s_cmp_lt_u32 s100, 32"); k("s_cselect_b32 s60, s46, s60")
    k("s_cmp_ge_u32 s60, 205"); k(f"s_cbranch_scc1 {nob}")
    body_attnB(k, RB, ex)
    gen.tl(k, 5, 2)
    k.place(nob)
    layer_next(k, top)
    epilogue(k)
    return k

if __name__ == "__main__":
    for a in sys.argv[2:]:
        n, v = a.split('='); setattr(gen if n in ('TL','SLEEP') else chain, n, int(v))
    hdr = open('interleave_layers__memory_aug_recurrent_mem_tr__grouped_kv_mqa__prompt.s.ref').read().split("; Override launch")[0]
    ks = [gen_prep(), gen_main()]
    lds = max(CHAIN_LDS, A4_LDS, B_lds(RB)['SIZE'])
    launches = [("prep_kernel",256,256,32768), ("main_kernel",256,256,lds)]
    open(sys.argv[1], "w").write(emit_file(ks, launches, hdr))
```

```python
from gen import *
import gen

NEG = hx(f2u(-1e9*L.LOG2E))
NINF = hx(f2u(-3.0e38))
OOB = 0x40000000

def mf16(d, a, b, c): return f"v_mfma_f32_16x16x32_bf16 {vr(d,4)}, {vr(a,4)}, {vr(b,4)}, {'0' if c is None else vr(c,4)}"
def mf32(d, a, b, c): return f"v_mfma_f32_32x32x16_bf16 {vr(d,16)}, {vr(a,4)}, {vr(b,4)}, {'0' if c is None else vr(c,16)}"

def loads(k, regs, vaddr, sbase, stmp, flags="", WS=WL):
    cur = sbase
    for n, r in enumerate(regs):
        if n % 4 == 0 and n:
            k(f"s_add_u32 s{stmp}, s{cur}, 4096"); cur = stmp
        k(f"buffer_load_dwordx4 {vr(r,4)}, v{vaddr}, {WS}, s{cur} offen offset:{(n%4)*1024}{flags}")

def ln_epilogue(k, acc, nq, XRES, TMP, PK, V_ST, STATS, res_store, xn_store, done_label):
    def pairs(body):
        for pp in range(4):
            lab = None
            if pp == 3:
                lab = k.label(); k(f"s_cmp_ge_u32 s{S_WAVE}, 2"); k(f"s_cbranch_scc1 {lab}")
            body(pp)
            if lab: k.place(lab)
    SUM = TMP; T = TMP + 4
    for q in range(nq): k(f"v_mov_b32 v{SUM+q}, 0")
    def b1(pp):
        for q in range(nq):
            x = XRES(pp, q)
            for t in range(2):
                a = acc(pp, q, t)
                for h in range(2):
                    k(f"v_lshlrev_b32 v{T}, 16, v{x+2*t+h}"); k(f"v_and_b32 v{T+1}, 0xffff0000, v{x+2*t+h}")
                    k(f"v_add_f32 v{a+2*h}, v{a+2*h}, v{T}"); k(f"v_add_f32 v{a+2*h+1}, v{a+2*h+1}, v{T+1}")
                    k(f"v_cvt_pk_bf16_f32 v{x+2*t+h}, v{a+2*h}, v{a+2*h+1}")
                if True:
                    k(f"v_add_f32 v{T}, v{a}, v{a+1}"); k(f"v_add_f32 v{T+1}, v{a+2}, v{a+3}")
                    k(f"v_add_f32 v{SUM+q}, v{SUM+q}, v{T}"); k(f"v_add_f32 v{SUM+q}, v{SUM+q}, v{T+1}")
            res_store(pp, q, x)
    pairs(b1)
    k(f"s_cmp_eq_u32 s{S_LAYER}, 1"); k(f"s_cbranch_scc1 {done_label}")
    def exchange(off):
        for q in range(nq): xreduce_g(k, SUM+q, T, "v_add_f32")
        for q in range(nq): k(f"ds_write_b32 v{V_ST}, v{SUM+q} offset:{STATS+off+q*256}")
        k("s_waitcnt lgkmcnt(0)"); k("s_barrier")
        for q in range(nq): k(f"ds_read_b128 {vr(PK+4*q,4)}, v{V_ST+1} offset:{STATS+off+q*256}")
        k("s_waitcnt lgkmcnt(0)")
        for q in range(nq):
            k(f"v_add_f32 v{PK+4*q}, v{PK+4*q}, v{PK+4*q+1}"); k(f"v_add_f32 v{PK+4*q+2}, v{PK+4*q+2}, v{PK+4*q+3}")
            k(f"v_add_f32 v{SUM+q}, v{PK+4*q}, v{PK+4*q+2}")
    exchange(0)
    MU = TMP + 2
    for q in range(nq):
        k(f"v_mul_f32 v{MU+q}, {hx(f2u(1/448))}, v{SUM+q}"); k(f"v_mov_b32 v{SUM+q}, 0")
    def b2(pp):
        for q in range(nq):
            for t in range(2):
                a = acc(pp, q, t)
                for r in range(4):
                    k(f"v_sub_f32 v{a+r}, v{a+r}, v{MU+q}"); k(f"v_fmac_f32 v{SUM+q}, v{a+r}, v{a+r}")
    pairs(b2)
    exchange(512)
    for q in range(nq):
        k(f"v_mov_b32 v{MU+q}, {hx(f2u(1e-5))}"); k(f"v_fmac_f32 v{MU+q}, {hx(f2u(1/448))}, v{SUM+q}"); k(f"v_rsq_f32 v{MU+q}, v{MU+q}")
    def b3(pp):
        for q in range(nq):
            o = PK + 4*((pp*nq + q) & 1)
            for t in range(2):
                a = acc(pp, q, t)
                for r in range(4): k(f"v_mul_f32 v{a+r}, v{a+r}, v{MU+q}")
                k(f"v_cvt_pk_bf16_f32 v{o+2*t}, v{a}, v{a+1}"); k(f"v_cvt_pk_bf16_f32 v{o+2*t+1}, v{a+2}, v{a+3}")
            xn_store(pp, q, o)
    pairs(b3)

A4_PX = 0; A4_PM = 8192; A4_DUM = 10240; A4_ST = 12288; A4_XL = 13312; A4_LDS = A4_XL + 8192

def softmax_seg(k, S):
    k(f"v_mov_b32 v11, {NEG}"); k(f"v_mov_b32 v12, {NINF}")
    for r in range(4):
        k(f"v_cndmask_b32 v{S+4+r}, v12, v{S+4+r}, s[80:81]")
        k(f"v_cndmask_b32 v{S+16+r}, v12, v{S+16+r}, s[80:81]")
    grp = [list(range(S, S+8)), list(range(S+8, S+20))]
    MX = [36, 37]; T = 38
    for q in range(2):
        m = S+4 if q == 0 else S+16
        k(f"v_max3_f32 v{MX[q]}, v{52+q}, v{m}, v{m+1}"); k(f"v_max3_f32 v{MX[q]}, v{MX[q]}, v{m+2}, v{m+3}")
    for q in range(2):
        k(f"v_mov_b32 v{T+q}, v{MX[q]}")
    for q in range(2): k(f"v_permlane16_swap_b32 v{MX[q]}, v{T+q}")
    for q in range(2): k(f"v_max_f32 v{MX[q]}, v{MX[q]}, v{T+q}")
    for q in range(2): k(f"v_mov_b32 v{T+q}, v{MX[q]}")
    for q in range(2): k(f"v_permlane32_swap_b32 v{MX[q]}, v{T+q}")
    for q in range(2): k(f"v_max_f32 v{MX[q]}, v{MX[q]}, v{T+q}")
    for q in range(2):
        for x in grp[q]: k(f"v_sub_f32 v{x}, v{x}, v{MX[q]}")
        for x in grp[q]: k(f"v_exp_f32 v{x}, v{x}")
    for q in range(2):
        g = grp[q]
        k(f"v_add_f32 v{MX[q]}, v{g[0]}, v{g[1]}"); k(f"v_add_f32 v{T+q}, v{g[2]}, v{g[3]}")
        for i in range(4, len(g), 2):
            k(f"v_add_f32 v{MX[q]}, v{MX[q]}, v{g[i]}"); k(f"v_add_f32 v{T+q}, v{T+q}, v{g[i+1]}")
        k(f"v_add_f32 v{MX[q]}, v{MX[q]}, v{T+q}")
    for q in range(2): k(f"v_mov_b32 v{T+q}, v{MX[q]}")
    for q in range(2): k(f"v_permlane16_swap_b32 v{MX[q]}, v{T+q}")
    for q in range(2): k(f"v_add_f32 v{MX[q]}, v{MX[q]}, v{T+q}")
    for q in range(2): k(f"v_mov_b32 v{T+q}, v{MX[q]}")
    for q in range(2): k(f"v_permlane32_swap_b32 v{MX[q]}, v{T+q}")
    for q in range(2): k(f"v_add_f32 v{MX[q]}, v{MX[q]}, v{T+q}")
    for q in range(2): k(f"v_rcp_f32 v{MX[q]}, v{MX[q]}")
    for q in range(2):
        for x in grp[q]: k(f"v_mul_f32 v{x}, v{x}, v{MX[q]}")
    W = 40
    k(f"v_cvt_pk_bf16_f32 v{W}, v{S}, v{S+1}"); k(f"v_cvt_pk_bf16_f32 v{W+1}, v{S+2}, v{S+3}"); k(f"v_mov_b64 {vr(W+2,2)}, 0")
    k(f"v_cvt_pk_bf16_f32 v{W+4}, v{S+8}, v{S+9}"); k(f"v_cvt_pk_bf16_f32 v{W+5}, v{S+10}, v{S+11}")
    k(f"v_cvt_pk_bf16_f32 v{W+6}, v{S+12}, v{S+13}"); k(f"v_cvt_pk_bf16_f32 v{W+7}, v{S+14}, v{S+15}")
    k(f"v_cvt_pk_bf16_f32 v{W+8}, v{S+4}, v{S+5}"); k(f"v_cvt_pk_bf16_f32 v{W+9}, v{S+6}, v{S+7}")
    k(f"v_cvt_pk_bf16_f32 v{W+10}, v{S+16}, v{S+17}"); k(f"v_cvt_pk_bf16_f32 v{W+11}, v{S+18}, v{S+19}")

def body_attnA4(k, abort):
    U = 256; XK = 256+128; VMR = 256+128; MK = 256+160; Q = 64; XRS = 176; S = 16; P = 16; OUT = 192
    k("v_lshlrev_b32 v1, 4, v0"); k("v_and_b32 v2, 15, v0"); k("v_lshrrev_b32 v3, 4, v0")
    k("v_lshlrev_b32 v4, 2, v3")
    for r in range(4):
        k(f"v_add_u32 v5, {r}, v4"); k(f"v_cmp_le_u32 s[{72+2*r}:{73+2*r}], v5, v2")
    k("v_cmp_gt_u32 s[80:81], 2, v3")
    k("v_bfe_u32 v5, v0, 1, 1"); k("v_lshlrev_b32 v5, 2, v5"); k("v_bfe_u32 v6, v0, 2, 1"); k("v_lshl_add_u32 v5, v6, 1, v5")
    k("v_and_b32 v6, 1, v0"); k("v_add_u32 v5, v5, v6"); k("v_lshlrev_b32 v5, 4, v5"); k("v_lshl_add_u32 v5, v3, 7, v5")
    k(f"s_lshl_b32 s46, s{S_WAVE}, 11"); k("v_add_u32 v6, s46, v1")
    k(f"s_lshl_b32 s46, s{S_WAVE}, 8"); k(f"s_add_u32 s46, s46, {A4_PM}")
    k("v_lshlrev_b32 v7, 4, v2"); k("v_lshl_add_u32 v7, v3, 3, v7"); k("v_add_u32 v7, s46, v7")
    k(f"v_mov_b32 v8, {A4_DUM}"); k("v_cndmask_b32 v7, v8, v7, s[80:81]")
    k(f"s_lshl_b32 s61, s{S_WAVE}, 2"); k(f"s_cmp_eq_u32 s{S_WAVE}, 3"); k("s_cselect_b32 s61, 11, s61")
    k("s_lshl_b32 s48, s60, 7"); k(f"s_add_u32 s49, s48, {L.UC(0)}")
    k("v_and_b32 v12, 7, v0"); k("v_lshlrev_b32 v12, 13, v12")
    wait_words(k, "s49", 12, 13, 28, abort)
    k(f"s_mul_i32 s46, s60, {28*1024}"); k(f"s_add_u32 s46, s46, {L.XTA[0]}")
    loads(k, [XK+4*i for i in range(28)], 1, 46, 47, " sc1")
    k("s_lshl_b32 s63, s60, 2"); k("s_add_u32 s63, s63, s71"); k("s_lshl_b32 s63, s63, 2")
    k(f"s_add_u32 s46, s63, s{S_WAVE}"); k(f"s_mul_i32 s46, s46, {28*1024}"); k(f"s_add_u32 s46, s46, {L.QP[0]}")
    loads(k, [Q+4*i for i in range(28)], 1, 46, 47, " sc1")
    k(f"s_mul_i32 s64, s63, {28*1024}"); k("s_lshl_b32 s46, s61, 11"); k("s_add_u32 s64, s64, s46"); k(f"s_add_u32 s64, s64, {L.UU[0]}")
    k(f"s_mul_i32 s65, s63, {7*1024}"); k("s_add_u32 s65, s65, s46"); k(f"s_add_u32 s65, s65, {L.VM[0]}")
    k("v_and_b32 v11, 7, v0"); k("v_bfe_u32 v12, v0, 3, 1")
    k("v_mul_u32_u24 v8, 896, v11"); k("v_lshl_add_u32 v8, v3, 4, v8"); k("v_lshl_add_u32 v8, v12, 6, v8")
    k("v_lshlrev_b32 v13, 4, v11"); k("v_lshl_add_u32 v13, v3, 7, v13"); k("v_lshl_add_u32 v15, v12, 15, v13"); k("v_lshl_add_u32 v13, v12, 9, v13")
    k("v_lshlrev_b32 v14, 4, v11"); k("v_lshl_add_u32 v14, v3, 8, v14"); k("v_lshl_add_u32 v14, v12, 10, v14")
    k(f"s_lshl_b32 s46, s{S_WAVE}, 2"); k("v_lshlrev_b32 v10, 4, v11"); k("v_add_u32 v9, s46, v10")
    k(f"s_cmp_ge_u32 s{S_WAVE}, 2"); k("s_cselect_b32 s46, 1, 2"); k("v_cmp_ne_u32 s[82:83], s46, v12")
    k("s_lshl_b32 s62, s60, 2"); k("s_add_u32 s62, s62, s71"); k(f"s_mul_i32 s62, s62, {8*896}"); k("s_lshl_b32 s46, s61, 6"); k("s_add_u32 s62, s62, s46")
    k(f"s_add_u32 s8, s{P_WS}, {L.XR1}"); k(f"s_addc_u32 s9, s{P_WS+1}, 0"); k(f"s_cmp_eq_u32 s{S_LAYER}, 0")
    k(f"s_cselect_b32 s8, s{P_X}, s8"); k(f"s_cselect_b32 s9, s{P_X+1}, s9"); k("s_and_b32 s9, s9, 0xffff")
    k(f"s_mov_b32 s10, {L.XSZ}"); k("s_mov_b32 s11, 0x20000")
    k("s_waitcnt vmcnt(28)")
    for hh in range(4):
        k(f"s_add_u32 s46, s64, {hh*28*1024}")
        loads(k, [U+(hh*8+i)*4 for i in range(8)], 1, 46, 47, " sc1")
    for j in range(2):
        k(f"buffer_load_dwordx4 {vr(XRS+4*j,4)}, v8, s[8:11], s62 offen offset:{j*128} sc1")
    k("s_waitcnt vmcnt(34)")
    for ks in range(14):
        c = lambda i: None if ks == 0 else S+4*i
        k(mf16(S+0, XK+4*ks, Q+4*ks, c(0)))
        k(mf16(S+8, XK+4*ks, Q+4*(14+ks), c(2)))
        k(mf16(S+12, XK+4*(14+ks), Q+4*(14+ks), c(3)))
    for i in range(32): k(f"v_mov_b64 {vr(OUT+2*i,2)}, 0")
    k(f"v_mov_b32 v11, {NEG}")
    for r in range(4):
        k(f"v_cndmask_b32 v{S+r}, v11, v{S+r}, s[{72+2*r}:{73+2*r}]")
        k(f"v_cndmask_b32 v{S+12+r}, v11, v{S+12+r}, s[{72+2*r}:{73+2*r}]")
    k(f"v_max3_f32 v52, v{S}, v{S+1}, v{S+2}"); k(f"v_max_f32 v52, v52, v{S+3}")
    k(f"v_max3_f32 v53, v{S+8}, v{S+9}, v{S+10}")
    for i in (11, 13): k(f"v_max3_f32 v53, v53, v{S+i}, v{S+i+1}")
    k(f"v_max_f32 v53, v53, v{S+15}")
    k("s_cmp_ge_u32 s60, 62"); k(f"s_mov_b32 s49, {L.PROG(0)}"); k(f"s_cselect_b32 s49, {L.FIN(0)}, s49")
    k("s_add_u32 s50, s60, 2"); k("s_cmp_ge_u32 s60, 62"); k("s_cselect_b32 s50, 14, s50")
    k("v_mov_b32 v54, 0")
    k("s_waitcnt vmcnt(0)")
    wait_words(k, "s49", 54, 55, "s50", abort, ge=True, nap=1, far="s60")
    gen.tl(k, 2, 54)
    k(f"s_mul_i32 s46, s60, {L.MEMSZ}"); k(f"s_add_u32 s46, s46, {L.MEMN[0]}")
    for ks in range(14):
        if ks == 8: k("s_add_u32 s46, s46, 4096")
        k(f"buffer_load_dwordx4 {vr(MK+4*ks,4)}, v5, {WL}, s46 offen offset:{(ks%8)*512} sc1")
    loads(k, [VMR+4*i for i in range(8)], 1, 65, 47, " sc1")
    for ks in range(14):
        k(f"s_waitcnt vmcnt({21-ks})")
        c = lambda i: None if ks == 0 else S+4*i
        k(mf16(S+4, MK+4*ks, Q+4*ks, c(1)))
        k(mf16(S+16, MK+4*ks, Q+4*(14+ks), c(4)))
    k(f"s_mul_i32 s46, s{S_WAVE}, {14*1024}"); k(f"s_add_u32 s46, s46, {L.WBK}")
    assert L.WBV == L.WBK + 28*1024
    loads(k, [Q+4*i for i in range(14)], 1, 46, 47, " sc1", WS)
    softmax_seg(k, S)
    W = 40
    k(f"ds_write_b128 v6, {vr(W,4)}"); k(f"ds_write_b128 v6, {vr(W+4,4)} offset:1024")
    k(f"ds_write_b64 v7, {vr(W+8,2)}"); k(f"ds_write_b64 v7, {vr(W+10,2)} offset:1024")
    k("s_waitcnt lgkmcnt(0)"); k("s_barrier")
    for i in range(8): k(f"ds_read_b128 {vr(P+4*i,4)}, v1 offset:{A4_PX+i*1024}")
    for q in range(2): k(f"ds_read_b128 {vr(P+32+4*q,4)}, v1 offset:{A4_PM+q*1024}")
    k("s_lshl_b32 s66, s60, 17"); k("s_lshl_b32 s46, s71, 13"); k("s_add_u32 s66, s66, s46"); k("s_lshl_b32 s46, s61, 9"); k("s_add_u32 s66, s66, s46")
    k(f"s_add_u32 s66, s66, {L.PARTS[0]}"); k("s_add_u32 s67, s66, 65536")
    k("s_waitcnt vmcnt(14) lgkmcnt(0)")
    skip = k.label()
    for pp in range(4):
        if pp == 3:
            k(f"s_cmp_ge_u32 s{S_WAVE}, 2"); k(f"s_cbranch_scc1 {skip}")
        for hh in range(5):
            for t in range(2):
                for q in range(2):
                    i = 2*pp + t
                    o = OUT + (i*2 + q)*4
                    k(mf16(o, (U+(hh*8+i)*4) if hh < 4 else VMR+4*i, P + (hh*2+q)*4, o))
        if pp:
            pack_store(k, OUT, pp-1, 56)
        if pp == 3: pack_store(k, OUT, 3, 56)
    j2 = k.label(); k(f"s_branch {j2}")
    k.place(skip); pack_store(k, OUT, 2, 56)
    k.place(j2)
    k("s_waitcnt vmcnt(0)"); k("s_barrier")
    lz = k.label(); k(f"s_cmp_lg_u32 s{S_WAVE}, 0"); k(f"s_cbranch_scc1 {lz}")
    lane0_addr(k, 56, 57); k(f"s_add_u32 s46, s48, {L.PC(0)}"); signal(k, "s46", 56, 57)
    k.place(lz)
    k(f"s_add_u32 s49, s48, {L.PC(0)}"); k("v_mov_b32 v54, 0"); wait_words(k, "s49", 54, 55, 4, abort, nap=1)
    k("s_lshl_b32 s66, s60, 17"); k("s_lshl_b32 s46, s71, 15"); k("s_add_u32 s66, s66, s46"); k("s_lshl_b32 s46, s61, 9"); k("s_add_u32 s66, s66, s46")
    k(f"s_add_u32 s66, s66, {L.PARTS[0]}")
    PT = 16; F = 192
    for src in range(4):
        if src: k("s_add_u32 s66, s66, 8192")
        for j in range(2): k(f"buffer_load_dwordx4 {vr(PT+(src*2+j)*4,4)}, v13, {WL}, s66 offen offset:{j*1024} sc1")
    for i in range(8):
        k(f"v_lshlrev_b32 v{F+2*i}, 16, v{XRS+i}"); k(f"v_and_b32 v{F+2*i+1}, 0xffff0000, v{XRS+i}")
    for src in range(4):
        k(f"s_waitcnt vmcnt({6-2*src})")
        for i in range(8):
            k(f"v_lshlrev_b32 v54, 16, v{PT+src*8+i}"); k(f"v_and_b32 v55, 0xffff0000, v{PT+src*8+i}")
            k(f"v_pk_add_f32 {vr(F+2*i,2)}, {vr(F+2*i,2)}, v[54:55]")
    for i in range(8): k(f"v_cvt_pk_bf16_f32 v{XRS+i}, v{F+2*i}, v{F+2*i+1}")
    k("v_mov_b32 v11, 0x7fffffff"); k("v_cndmask_b32 v12, v11, v8, s[82:83]")
    k(f"s_add_u32 s46, s62, {L.XRA[0]}")
    k(f"buffer_store_dwordx4 {vr(XRS,4)}, v8, {WL}, s46 offen sc1"); k(f"buffer_store_dwordx4 {vr(XRS+4,4)}, v12, {WL}, s46 offen offset:128 sc1")
    def rowsum(off, sq):
        for j in range(2):
            b = F + 8*j
            if sq:
                k(f"v_mul_f32 v{54+j}, v{b}, v{b}")
                for i in range(1, 8): k(f"v_fmac_f32 v{54+j}, v{b+i}, v{b+i}")
            else:
                k(f"v_add_f32 v{54+j}, v{b}, v{b+1}")
                for i in range(2, 8): k(f"v_add_f32 v{54+j}, v{54+j}, v{b+i}")
        k("v_cndmask_b32 v55, 0, v55, s[82:83]"); k("v_add_f32 v54, v54, v55")
        k("v_add_f32_dpp v54, v54, v54 row_ror:8 row_mask:0xf bank_mask:0xf")
        xreduce_g(k, 54, 55, "v_add_f32")
        k(f"ds_write_b32 v9, v54 offset:{A4_ST+off}"); k("s_waitcnt lgkmcnt(0)"); k("s_barrier")
        k(f"ds_read_b128 v[56:59], v10 offset:{A4_ST+off}"); k("s_waitcnt lgkmcnt(0)")
        k("v_add_f32 v56, v56, v57"); k("v_add_f32 v58, v58, v59"); k("v_add_f32 v54, v56, v58")
    rowsum(0, False)
    k(f"v_mul_f32 v54, {hx(f2u(1/448))}, v54")
    for i in range(16): k(f"v_sub_f32 v{F+i}, v{F+i}, v54")
    rowsum(256, True)
    k(f"v_mov_b32 v55, {hx(f2u(1e-5))}"); k(f"v_fmac_f32 v55, {hx(f2u(1/448))}, v54"); k("v_rsq_f32 v55, v55")
    for i in range(16): k(f"v_mul_f32 v{F+i}, v{F+i}, v55")
    for i in range(8): k(f"v_cvt_pk_bf16_f32 v{PT+i}, v{F+2*i}, v{F+2*i+1}")
    k("s_lshl_b32 s46, s61, 9"); k(f"s_add_u32 s46, s46, {A4_XL}"); k("v_add_u32 v12, s46, v13")
    k(f"v_mov_b32 v54, {A4_DUM - 1024}"); k("v_cndmask_b32 v54, v54, v12, s[82:83]")
    k(f"ds_write_b128 v12, {vr(PT,4)}"); k(f"ds_write_b128 v54, {vr(PT+4,4)} offset:1024")
    k("s_lshr_b32 s46, s71, 1"); k("s_lshl_b32 s47, s60, 1"); k("s_add_u32 s46, s46, s47"); k("s_mul_i32 s46, s46, 14"); k("s_add_u32 s46, s46, s61")
    k("s_lshl_b32 s46, s46, 10"); k("s_and_b32 s47, s71, 1"); k("s_lshl_b32 s47, s47, 7"); k("s_add_u32 s46, s46, s47"); k(f"s_add_u32 s46, s46, {L.XTB[0]}")
    k("v_cndmask_b32 v12, v11, v14, s[82:83]")
    k(f"buffer_store_dwordx4 {vr(PT,4)}, v14, {WL}, s46 offen sc1"); k(f"buffer_store_dwordx4 {vr(PT+4,4)}, v12, {WL}, s46 offen offset:2048 sc1")
    k("s_waitcnt lgkmcnt(0)"); k("s_barrier")
    X = 192
    k("v_and_b32 v12, 7, v0"); k("v_lshlrev_b32 v12, 4, v12"); k("v_lshl_add_u32 v12, v3, 7, v12")
    for ks in range(14): k(f"ds_read_b128 {vr(X+4*ks,4)}, v12 offset:{A4_XL+ks*512}")
    lv = k.label("LV"); le = k.label("LE")
    k("s_lshl_b32 s49, s60, 11")
    k(f"s_cmp_ge_u32 s{S_WAVE}, 2"); k(f"s_cbranch_scc1 {lv}")
    k("v_lshrrev_b32 v12, 1, v3"); k("v_lshlrev_b32 v12, 10, v12"); k("v_and_b32 v54, 1, v3"); k("v_lshl_add_u32 v12, v54, 9, v12")
    k("v_lshl_add_u32 v12, v2, 4, v12"); k("v_cmp_gt_u32 vcc, 8, v2"); k("v_cndmask_b32 v12, v11, v12, vcc")
    k("s_lshl_b32 s46, s71, 7"); k(f"s_lshl_b32 s47, s{S_WAVE}, 3"); k("s_add_u32 s46, s46, s47"); k("s_add_u32 s46, s46, s49"); k(f"s_add_u32 s46, s46, {L.KI[0]}")
    k("s_waitcnt lgkmcnt(0)")
    for ks in range(14): k(mf16(16, Q+4*ks, X+4*ks, None if ks == 0 else 16))
    k("v_cvt_pk_bf16_f32 v24, v16, v17"); k("v_cvt_pk_bf16_f32 v25, v18, v19")
    k(f"s_branch {le}")
    k.place(lv)
    k("v_lshlrev_b32 v12, 9, v3"); k("v_lshl_add_u32 v12, v2, 4, v12"); k("v_cndmask_b32 v12, v11, v12, s[80:81]")
    k("s_lshr_b32 s46, s71, 1"); k("s_lshl_b32 s46, s46, 10"); k("s_and_b32 s47, s71, 1"); k("s_lshl_b32 s47, s47, 3"); k("s_add_u32 s46, s46, s47")
    k(f"s_and_b32 s47, s{S_WAVE}, 1"); k("s_lshl_b32 s47, s47, 8"); k("s_add_u32 s46, s46, s47"); k("s_add_u32 s46, s46, s49"); k(f"s_add_u32 s46, s46, {L.VI[0]}")
    k(f"s_cmp_eq_u32 s{S_WAVE}, 3"); k("s_cselect_b32 s47, 12, 99"); k("v_cmp_eq_u32 vcc, s47, v2"); k("v_mov_b32 v54, 0x3f803f80")
    k("s_waitcnt lgkmcnt(0)")
    for ks in range(14): k(mf16(16, X+4*ks, Q+4*ks, None if ks == 0 else 16))
    k("v_cvt_pk_bf16_f32 v24, v16, v17"); k("v_cvt_pk_bf16_f32 v25, v18, v19")
    k("v_cndmask_b32 v24, v24, v54, vcc"); k("v_cndmask_b32 v25, v25, v54, vcc")
    k.place(le)
    k(f"buffer_store_dwordx2 v[24:25], v12, {WL}, s46 offen sc1")
    k("s_waitcnt vmcnt(0)"); k("s_barrier")
    lz = k.label(); k(f"s_cmp_lg_u32 s{S_WAVE}, 0"); k(f"s_cbranch_scc1 {lz}")
    k(f"s_add_u32 s47, s48, {L.SC(0)}"); lane0_addr(k, 4, 5); signal(k, "s47", 4, 5)
    k.place(lz)

def pack_store(k, OUT, pp, T):
    for q in range(2):
        for t in range(2):
            a = OUT + ((2*pp+t)*2 + q)*4
            k(f"v_cvt_pk_bf16_f32 v{T+4*q+2*t}, v{a}, v{a+1}"); k(f"v_cvt_pk_bf16_f32 v{T+4*q+2*t+1}, v{a+2}, v{a+3}")
        k(f"buffer_store_dwordx4 {vr(T+4*q,4)}, v15, {WL}, s{66+q} offen offset:{pp*512} sc1")

N7 = 76; ROW6 = 14*N7; LATE0 = 1792; N6 = 64; N4 = 16; ROW2 = LATE0 + 8*N4; N2 = (2048 - ROW2)//4
BQL = 0; BOL = 16384; BST = (BOL + 16*912 + 512 + 255)//256*256; BMX = BST + 1024; BFL = BMX + 4096; BRED = BFL + 256
B_LDS = BRED + 4*7*4096

def body_attnB(k, QT, abort, gemm_label=None):
    big = QT > 4; R = 2*QT; ROW0 = {7: 0, 6: ROW6, 4: LATE0, 2: ROW2}[QT]
    XB = 16
    k("v_lshlrev_b32 v1, 4, v0"); k("v_and_b32 v2, 15, v0"); k("v_lshrrev_b32 v3, 4, v0")
    qreg = lambda o: 256 + 4*o if o < 64 else 120 + 4*(o-64)
    k(f"s_mul_i32 s46, s{S_WAVE}, {7*14*1024}"); k(f"s_add_u32 s46, s46, {L.WBQ}")
    loads(k, [qreg(o) for o in range(98)], 1, 46, 46, " sc1", WS)
    k(f"s_mul_i32 s61, s60, {R}")
    if ROW0: k(f"s_add_u32 s61, s61, {ROW0}")
    k(f"v_min_u32 v4, {R-1}, v2"); k("v_add_u32 v4, s61, v4")
    if QT == 6: k(f"v_min_u32 v4, {LATE0-1}, v4")
    def tiled(vd, vt):
        k(f"v_lshrrev_b32 v{vd}, 4, v{vt}"); k(f"v_mul_u32_u24 v{vd}, {14*1024}, v{vd}"); k(f"v_and_b32 v6, 15, v{vt}")
        k(f"v_lshl_add_u32 v{vd}, v6, 4, v{vd}"); k(f"v_lshl_add_u32 v{vd}, v3, 8, v{vd}")
    tiled(5, 4)
    k("v_mov_b64 v[8:9], 0"); k("v_mov_b64 v[10:11], 0"); k(f"s_lshl_b32 s46, s{S_WAVE}, 12"); k("v_add_u32 v7, s46, v1")
    for i in range(4): k(f"ds_write_b128 v7, v[8:11] offset:{BQL+i*1024}")
    k(f"v_mov_b32 v7, {BFL}"); k("ds_write_b32 v7, v8")
    k("v_lshrrev_b32 v12, 5, v4"); k("v_lshlrev_b32 v12, 7, v12"); k(f"s_mov_b32 s49, {L.SC(0)}")
    k("s_lshr_b32 s50, s61, 5"); k("s_min_u32 s50, s50, 61"); k("s_waitcnt vmcnt(0)")
    wait_words(k, "s49", 12, 13, 4, abort, nap=1, far="s50")
    k(f"s_mov_b32 s48, {L.XTB[0]}")
    loads(k, [XB+4*ks for ks in range(14)], 5, 48, 47, " sc1")
    k("s_waitcnt lgkmcnt(0)"); k("s_barrier")
    k(f"s_mul_i32 s63, s{S_WAVE}, 112")
    k("v_lshlrev_b32 v6, 2, v3"); k("v_add_u32 v6, s63, v6"); k("v_lshlrev_b32 v7, 10, v2")
    for i in range(7):
        k(f"v_add_u32 v8, {16*i}, v6"); k("v_mul_u32_u24 v9, 2341, v8"); k("v_lshrrev_b32 v9, 16, v9")
        k("v_lshl_add_u32 v8, v8, 1, v7"); k(f"v_lshl_add_u32 v{100+i}, v9, 3, v8")
    k(f"s_mov_b32 s64, {hx(f2u(L.LOG2E/28**0.5))}")
    A0 = 72
    for ks in range(14):
        k(f"s_waitcnt vmcnt({13-ks})")
        for i in range(7): k(mf16(A0+4*i, qreg(i*14+ks), XB+4*ks, None if ks == 0 else A0+4*i))
    QO = 16; KV = [72, 88]; SS = [104, 120]; PP = 136; O = 144; MX = SS[1]
    def kvl(b):
        return [f"buffer_load_dwordx4 {vr(KV[b],4)}, v1, {WL}, s67 offen sc1", f"buffer_load_dwordx4 {vr(KV[b]+4,4)}, v1, {WL}, s67 offen offset:1024 sc1",
                f"buffer_load_dwordx4 {vr(KV[b]+8,4)}, v1, {WL}, s68 offen sc1", f"buffer_load_dwordx4 {vr(KV[b]+12,4)}, v1, {WL}, s68 offen offset:1024 sc1",
                "s_add_u32 s67, s67, 8192", "s_add_u32 s68, s68, 8192"]
    def kvload(b):
        for x in kvl(b): k(x)
    for i in range(7):
        a = A0 + 4*i
        for r in range(4): k(f"v_mul_f32 v{a+r}, s64, v{a+r}")
        k(f"v_cvt_pk_bf16_f32 v{a}, v{a}, v{a+1}"); k(f"v_cvt_pk_bf16_f32 v{a+1}, v{a+2}, v{a+3}")
        k(f"ds_write_b64 v{100+i}, {vr(a,2)} offset:{BQL}")
    k(f"s_lshl_b32 s65, s{S_WAVE}, 11"); k(f"s_add_u32 s66, s65, {L.VI[0]}"); k(f"s_add_u32 s65, s65, {L.KI[0]}")
    oreg = lambda o: 256 + 4*o if o < 64 else (128 + 4*(o-64) if o < 96 else 256 + 4*(o-96))
    def wl(o): return [f"s_add_u32 s46, s62, {(o//4)*4096}"]*(o % 4 == 0) + [f"buffer_load_dwordx4 {vr(oreg(o),4)}, v1, {WS}, s46 offen offset:{(o%4)*1024} sc1"]
    if big:
        k(f"s_lshl_b32 s69, s{S_WAVE}, 2"); k(f"s_cmp_eq_u32 s{S_WAVE}, 3"); k("s_cselect_b32 s69, 11, s69")
        k(f"s_mul_i32 s62, s69, {28*1024}"); k(f"s_add_u32 s62, s62, {L.WBO}")
        for o in range(64):
            for x in wl(o): k(x)
    k("s_waitcnt lgkmcnt(0)"); k("s_barrier")
    k("v_bfe_u32 v6, v0, 4, 1"); k("v_lshlrev_b32 v6, 10, v6"); k("v_lshl_add_u32 v6, v2, 6, v6"); k("v_lshrrev_b32 v7, 5, v0"); k("v_lshl_add_u32 v6, v7, 4, v6")
    def qread():
        for q in range(QT):
            for kk in range(2): k(f"ds_read_b128 {vr(QO+8*q+4*kk,4)}, v6 offset:{BQL+q*2048+kk*32}")
    qread()
    for i in range(8*QT): k(f"v_mov_b64 {vr(O+2*i,2)}, 0")
    gen.tl(k, 4, 12)
    k("s_mov_b32 s67, s65"); k("s_mov_b32 s68, s66"); k("s_mov_b32 s78, 0"); k("s_mov_b32 s96, 0"); k(f"s_mov_b32 s98, s{S_WAVE}")
    def sgate(): gate(k, L.SC(0), 1, 4, "s98", 96, "v_lshlrev_b32 v8, 3, v1", 8, abort, nap=4)
    sgate(); kvload(0); k("s_add_u32 s98, s98, 4")
    k("s_waitcnt lgkmcnt(0)")
    loop = k.label("LK"); lend = k.label("LKe"); k.place(loop)
    for b in range(2):
        nopf = k.label(); go = k.label(); havek = k.label()
        k("s_cmp_lt_u32 s98, s96"); k("s_cselect_b32 s79, 1, 0"); k("s_cmp_lt_u32 s98, 64"); k("s_cselect_b32 s79, s79, 0")
        k("s_cmp_eq_u32 s79, 0"); k(f"s_cbranch_scc1 {nopf}")
        kvload(1-b); k("s_waitcnt vmcnt(4)"); k(f"s_branch {go}")
        k.place(nopf); k("s_waitcnt vmcnt(0)")
        k.place(go)
        k(mf32(SS[0], KV[b], QO, None)); k(mf32(SS[0], KV[b]+4, QO+4, SS[0]))
        for q in range(QT):
            s_ = SS[q & 1]; sn = SS[(q+1) & 1]; last = q + 1 == QT
            ex = lambda a_, n: [f"v_exp_f32 v{s_+r}, v{s_+r}" for r in range(a_, a_+n)]
            cv = lambda h: [f"v_cvt_pk_bf16_f32 v{PP+4*h+j}, v{s_+8*h+2*j}, v{s_+8*h+2*j+1}" for j in range(4)]
            if not last: k(mf32(sn, KV[b], QO+8*(q+1), None))
            for x in ex(0, 4): k(x)
            if q: k(mf32(O+16*(q-1), KV[b]+12, PP+4, O+16*(q-1)))
            for x in ex(4, 4): k(x)
            if not last: k(mf32(sn, KV[b]+4, QO+8*(q+1)+4, sn))
            for x in cv(0) + ex(8, 4): k(x)
            k(mf32(O+16*q, KV[b]+8, PP, O+16*q))
            for x in ex(12, 4) + cv(1): k(x)
        k(mf32(O+16*(QT-1), KV[b]+12, PP+4, O+16*(QT-1)))
        if b == 1:
            k("s_cmp_ge_u32 s98, 64"); k(f"s_cbranch_scc1 {lend}")
        k("s_cmp_eq_u32 s79, 1"); k(f"s_cbranch_scc1 {havek}")
        if b == 0:
            nt = k.label()
            k("s_cmp_lt_u32 s98, 60"); k(f"s_cbranch_scc1 {nt}")
            k("v_lshlrev_b32 v8, 3, v1")
            code_touch(k, lend, 8192 if big else 1280, True, 8, 9)
            code_touch(k, gemm_label, 8192, False, 8, 9)
            k.place(nt)
        sgate(); kvload(1-b)
        k.place(havek)
        k("s_add_u32 s98, s98, 4")
    k(f"s_branch {loop}")
    k.place(lend)
    gen.tl(k, 12, 12, 2)
    redo = k.label("LBr"); slow = k.label("LBs"); fin = k.label("LBf")
    k.place(redo)
    k(f"s_mul_i32 s46, s{S_WAVE}, {QT*4096}"); k(f"s_add_u32 s46, s46, {BRED}"); k("v_add_u32 v7, s46, v1")
    for q in range(QT):
        for j in range(4): k(f"ds_write_b128 v7, {vr(O+16*q+4*j,4)} offset:{q*4096+j*1024}")
    OUT = 96; XRS = 80
    if big:
        k("v_add_u32 v9, s61, v2")
        if QT == 6:
            k(f"v_mov_b32 v8, 4096"); k(f"v_cmp_gt_u32 vcc, {LATE0}, v9"); k("v_cndmask_b32 v9, v8, v9, vcc")
            k(f"s_lshl_b32 s46, s60, 2"); k(f"s_add_u32 s46, s46, {LATE0 - 12}"); k("v_add_u32 v8, s46, v2")
        else: k("v_mov_b32 v8, 4096")
        k(f"v_cmp_gt_u32 vcc, {R}, v2"); k("v_cndmask_b32 v4, v8, v9, vcc"); k("v_mov_b32 v8, 2048"); k("v_cmp_lt_u32 s[72:73], v4, v8"); k("v_min_u32 v4, 2047, v4")
        k("v_mul_u32_u24 v14, 896, v4"); k("v_lshl_add_u32 v14, v3, 4, v14"); k("s_lshl_b32 s46, s69, 6"); k("v_add_u32 v14, s46, v14")
    k("s_waitcnt lgkmcnt(0)")
    if big:
        for o in range(64, 96):
            for x in wl(o): k(x)
    k("s_barrier")
    T = 16
    k("v_lshrrev_b32 v8, 5, v0")
    k("v_bfe_u32 v9, v0, 4, 1"); k("v_mul_u32_u24 v9, 912, v9"); k("v_mul_u32_u24 v10, 56, v2"); k("v_add_u32 v9, v9, v10"); k("v_lshl_add_u32 v9, v8, 3, v9")
    k(f"v_mov_b32 v11, {BOL + 16*912}"); k("v_cmp_eq_u32 s[74:75], 1, v8")
    for rep in range((QT+3)//4):
        skip = k.label()
        k(f"s_add_u32 s46, s{S_WAVE}, {4*rep}")
        if 4*rep + 3 >= QT:
            k(f"s_cmp_ge_u32 s46, {QT}"); k(f"s_cbranch_scc1 {skip}")
        k("s_lshl_b32 s47, s46, 12"); k(f"s_add_u32 s47, s47, {BRED}"); k("v_add_u32 v7, s47, v1")
        for w in range(4):
            if w: k(f"v_add_u32 v7, {QT*4096}, v7")
            for j in range(4): k(f"ds_read_b128 {vr(T+16*w+4*j,4)}, v7 offset:{j*1024}")
            if w == 2: k("s_waitcnt lgkmcnt(4)")
        for i in range(8): k(f"v_pk_add_f32 {vr(T+2*i,2)}, {vr(T+2*i,2)}, {vr(T+16+2*i,2)}")
        k("s_waitcnt lgkmcnt(0)")
        for i in range(8): k(f"v_pk_add_f32 {vr(T+32+2*i,2)}, {vr(T+32+2*i,2)}, {vr(T+48+2*i,2)}")
        for i in range(8): k(f"v_pk_add_f32 {vr(T+2*i,2)}, {vr(T+2*i,2)}, {vr(T+32+2*i,2)}")
        k(f"v_mov_b32 v12, v{T+12}"); k(f"v_mov_b32 v13, v{T+12}")
        k("v_permlane32_swap_b32 v12, v13")
        k(f"v_cmp_nle_f32 vcc, {hx(f2u(2.0**-60))}, v13"); k(f"v_mov_b32 v12, {hx(f2u(2.0**60))}")
        k("v_cmp_nle_f32 s[76:77], v13, v12"); k("s_or_b64 vcc, vcc, s[76:77]")
        ok = k.label()
        k(f"s_cbranch_vccz {ok}")
        k(f"v_mov_b32 v12, {BFL}"); k("v_mov_b32 v15, 1"); k("ds_write_b32 v12, v15")
        k.place(ok)
        k("v_rcp_f32 v13, v13")
        k("s_mul_i32 s47, s46, 1824"); k(f"s_add_u32 s47, s47, {BOL}"); k("v_add_u32 v10, s47, v9")
        for j in range(4):
            for r in range(4): k(f"v_mul_f32 v{T+4*j+r}, v{T+4*j+r}, v13")
            k(f"v_cvt_pk_bf16_f32 v{T+4*j}, v{T+4*j}, v{T+4*j+1}"); k(f"v_cvt_pk_bf16_f32 v{T+4*j+1}, v{T+4*j+2}, v{T+4*j+3}")
            if j == 3:
                k("v_add_u32 v10, 48, v10"); k("v_cndmask_b32 v10, v10, v11, s[74:75]")
                k(f"ds_write_b64 v10, {vr(T+12,2)}")
            else: k(f"ds_write_b64 v10, {vr(T+4*j,2)} offset:{16*j}")
        k.place(skip)
    k("s_waitcnt lgkmcnt(0)"); k("s_barrier")
    k(f"v_mov_b32 v12, {BFL}"); k("ds_read_b32 v12, v12"); k("s_waitcnt lgkmcnt(0)")
    k("v_readfirstlane_b32 s46, v12")
    k("s_andn2_b32 s46, s46, s78")
    k("s_cmp_eq_u32 s46, 1"); k(f"s_cbranch_scc1 {slow}")
    if not big:
        k(f"s_mul_i32 s46, s{S_WAVE}, 912"); k(f"s_add_u32 s46, s46, {BOL}"); k("v_add_u32 v7, s46, v1")
        for j in range(R//4): k(f"ds_read_b128 {vr(16+4*j,4)}, v7 offset:{j*4*912}")
        k(f"s_sub_u32 s46, s61, {LATE0}"); k(f"s_add_u32 s47, s46, s{S_WAVE}"); k("s_mul_i32 s47, s47, 896"); k(f"s_add_u32 s47, s47, {L.OLATE[0]}")
        k("v_mov_b32 v8, 0x7fffffff"); k("v_cmp_gt_u32 vcc, 56, v0"); k("v_cndmask_b32 v8, v8, v1, vcc")
        k("s_waitcnt lgkmcnt(0)")
        for j in range(R//4): k(f"buffer_store_dwordx4 {vr(16+4*j,4)}, v8, {WL}, s47 offen offset:{j*3584} sc1")
        k("s_waitcnt vmcnt(0)"); k("s_barrier")
        k(f"s_cmp_lg_u32 s{S_WAVE}, 0"); k(f"s_cbranch_scc1 {fin}")
        k("s_lshl_b32 s46, s46, 5"); k(f"s_add_u32 s46, s46, {L.OF(0)}"); k("v_lshlrev_b32 v12, 7, v0"); k("v_mov_b32 v13, 1")
        k(f"s_mov_b64 exec, {(1 << (R//4)) - 1}"); k(f"buffer_store_dword v13, v12, {WL}, s46 offen sc1"); k("s_mov_b64 exec, -1")
        k(f"s_branch {fin}")
    else:
        k(f"s_add_u32 s8, s{P_WS}, {L.XR1}"); k(f"s_addc_u32 s9, s{P_WS+1}, 0"); k(f"s_cmp_eq_u32 s{S_LAYER}, 0")
        k(f"s_cselect_b32 s8, s8, s{P_OUT}"); k(f"s_cselect_b32 s9, s9, s{P_OUT+1}"); k("s_and_b32 s9, s9, 0xffff")
        k(f"s_mov_b32 s10, {L.XSZ}"); k("s_mov_b32 s11, 0x20000")
        k(f"s_mov_b32 s48, {L.XRA[0]}")
        for pp in range(4): k(f"buffer_load_dwordx4 {vr(XRS+4*pp,4)}, v14, {WL}, s48 offen offset:{pp*64} sc1")
        k("v_mul_u32_u24 v7, 912, v2"); k("v_lshl_add_u32 v7, v3, 4, v7")
        for ks in range(14): k(f"ds_read_b128 {vr(XB+4*ks,4)}, v7 offset:{BOL+ks*64}")
        if QT == 6:
            k("s_lshl_b32 s49, s60, 7"); k(f"s_add_u32 s49, s49, {L.OF(0)}"); k("v_mov_b32 v12, 0")
            wait_words(k, "s49", 12, 13, 1, abort, nap=1, wg=False)
            k(f"v_subrev_u32 v12, {LATE0}, v4"); k("v_mul_u32_u24 v12, 896, v12"); k("v_lshl_add_u32 v12, v3, 4, v12"); k(f"s_mov_b32 s49, {L.OLATE[0]}")
            k("s_waitcnt lgkmcnt(0)")
            k("s_mov_b32 exec_lo, 0xf000f000"); k("s_mov_b32 exec_hi, 0xf000f000")
            for ks in range(14): k(f"buffer_load_dwordx4 {vr(XB+4*ks,4)}, v12, {WL}, s49 offen offset:{ks*64} sc1")
            k("s_mov_b64 exec, -1")
        k("s_waitcnt vmcnt(0) lgkmcnt(0)")
        gen.tl(k, 11, 12, 2)
        short = k.label()
        for i in range(8):
            if i == 6:
                k(f"s_cmp_ge_u32 s{S_WAVE}, 2"); k(f"s_cbranch_scc1 {short}")
                k("s_waitcnt vmcnt(0)")
            a = OUT + 4*i
            for ks in range(14): k(mf16(a, oreg(i*14+ks), XB+4*ks, None if ks == 0 else a))
            if i == 1:
                for o in range(96, 112):
                    for x in wl(o): k(x)
        k.place(short)
        slab_request(k, 100)
        k("v_mov_b32 v9, 0x7fffffff"); k("v_cndmask_b32 v8, v9, v14, s[72:73]")
        tiled(5, 4)
        k("s_lshl_b32 s46, s69, 10"); k("v_add_u32 v5, s46, v5"); k("v_cndmask_b32 v5, v9, v5, s[72:73]")
        k(f"s_lshl_b32 s46, s{S_WAVE}, 2"); k("v_lshlrev_b32 v11, 4, v2"); k("v_add_u32 v10, s46, v11")
        k(f"s_mov_b32 s49, {L.XTA[1]}")
        def res_store(pp, q, r): k(f"buffer_store_dwordx4 {vr(r,4)}, v8, s[8:11], 0 offen offset:{pp*64} sc1")
        def xn_store(pp, q, r): k(f"buffer_store_dwordx4 {vr(r,4)}, v5, {WS}, s49 offen offset:{pp*1024} sc1")
        ln_epilogue(k, lambda pp, q, t: OUT + (2*pp+t)*4, 1, lambda pp, q: XRS+4*pp, 16, 24, 10, BST, res_store, xn_store, fin)
        k("s_waitcnt vmcnt(0)"); k("s_barrier")
        k(f"s_cmp_lg_u32 s{S_WAVE}, 0"); k(f"s_cbranch_scc1 {fin}")
        lim = ROW6 if QT == 7 else LATE0
        k(f"s_add_u32 s47, s61, {R}"); k(f"s_min_u32 s47, s47, {lim}"); k(f"s_min_u32 s46, s61, {lim}")
        k("s_lshr_b32 s48, s46, 5"); k("s_add_u32 s49, s48, 1"); k("s_lshl_b32 s50, s49, 5"); k("s_min_u32 s50, s50, s47")
        k("s_sub_u32 s51, s50, s46"); k("s_sub_u32 s52, s47, s50")
        k("v_mov_b32 v12, s48"); k("v_mov_b32 v13, s51")
        k("v_writelane_b32 v12, s49, 1"); k("v_writelane_b32 v13, s52, 1")
        if QT == 6:
            k("s_lshr_b32 s48, s60, 3"); k(f"s_add_u32 s48, s48, {LATE0//32}"); k("v_writelane_b32 v12, s48, 2"); k("v_writelane_b32 v13, 4, 2")
        k("v_lshlrev_b32 v12, 7, v12"); k(f"s_mov_b32 s46, {L.RC(1)}")
        signal(k, "s46", 12, 13, WS, lanes=7 if QT == 6 else 3)
        k(f"s_branch {fin}")
    k.place(slow)
    k("s_waitcnt vmcnt(0) lgkmcnt(0)"); k("s_barrier")
    k("s_mov_b32 s78, 1")
    qread()
    for q in range(QT): k(f"v_mov_b32 v{MX+q}, {NINF}")
    k("s_mov_b32 s67, s65"); k("s_mov_b32 s68, s66"); k("s_mov_b32 s70, 16")
    lm = k.label("LM"); k.place(lm)
    kvload(0)
    k("s_waitcnt vmcnt(0) lgkmcnt(0)")
    for q in range(QT):
        s_ = SS[0]
        k(mf32(s_, KV[0], QO+8*q, None)); k(mf32(s_, KV[0]+4, QO+8*q+4, s_))
        for r in range(0, 16, 2): k(f"v_max3_f32 v{MX+q}, v{MX+q}, v{s_+r}, v{s_+r+1}")
    k("s_sub_u32 s70, s70, 1"); k("s_cmp_lg_u32 s70, 0"); k(f"s_cbranch_scc1 {lm}")
    k("v_and_b32 v7, 31, v0"); k("v_lshlrev_b32 v7, 2, v7"); k(f"s_lshl_b32 s46, s{S_WAVE}, 10"); k("v_add_u32 v12, s46, v7")
    for q in range(QT):
        k(f"v_mov_b32 v13, v{MX+q}"); k(f"v_permlane32_swap_b32 v{MX+q}, v13"); k(f"v_max_f32 v{MX+q}, v{MX+q}, v13")
        k(f"ds_write_b32 v12, v{MX+q} offset:{BMX+q*128}")
    k("s_waitcnt lgkmcnt(0)"); k("s_barrier")
    for q in range(QT):
        for w in range(4): k(f"ds_read_b32 v{SS[0]+w}, v7 offset:{BMX+w*1024+q*128}")
        k("s_waitcnt lgkmcnt(0)")
        k(f"v_max3_f32 v{MX+q}, v{SS[0]}, v{SS[0]+1}, v{SS[0]+2}"); k(f"v_max_f32 v{MX+q}, v{MX+q}, v{SS[0]+3}")
    for i in range(8*QT): k(f"v_mov_b64 {vr(O+2*i,2)}, 0")
    k("s_mov_b32 s67, s65"); k("s_mov_b32 s68, s66"); k("s_mov_b32 s70, 16")
    lp = k.label("LK"); k.place(lp)
    kvload(0)
    k("s_waitcnt vmcnt(0)")
    for q in range(QT):
        s_ = SS[0]
        for r in range(16): k(f"v_sub_f32 v{s_+r}, 0, v{MX+q}")
        k(mf32(s_, KV[0], QO+8*q, s_)); k(mf32(s_, KV[0]+4, QO+8*q+4, s_))
        for h in range(2):
            for r in range(8*h, 8*h+8): k(f"v_exp_f32 v{s_+r}, v{s_+r}")
            for j in range(4): k(f"v_cvt_pk_bf16_f32 v{PP+4*h+j}, v{s_+8*h+2*j}, v{s_+8*h+2*j+1}")
            k(mf32(O+16*q, KV[0]+8+4*h, PP+4*h, O+16*q))
    k("s_sub_u32 s70, s70, 1"); k("s_cmp_lg_u32 s70, 0"); k(f"s_cbranch_scc1 {lp}")
    k(f"s_branch {redo}")
    k.place(fin)
    if not big: slab_request(k, 100)
```

```python
from gen import *
import gen

ASL = 0
APOLL = 1
UV = 0
XPK = 0
BSL = 0
PSL = 0
XSIG = 0
XNOU = 0
XACK = 0
XSLEEP = 0
XNOEXP = 0
XPOLL = 0
NB = 9
PFD = 2

DIAG = False
DBGOFF = 0xF000000
def stamp(k, i):
    if DIAG == 3: k(f"s_memrealtime s[{72+2*i}:{73+2*i}]")
    elif DIAG: k(f"s_memtime s[{72+2*i}:{73+2*i}]")
def stamp_acc(k, n):
    if not DIAG: return
    k("s_waitcnt lgkmcnt(0)")
    if DIAG == 3:
        for i in range(1, n): k(f"s_add_u32 s{87+i}, s{87+i}, s{72+2*i}")
        return
    for i in range(n-1):
        k(f"s_sub_u32 s71, s{72+2*(i+1)}, s{72+2*i}"); k(f"s_add_u32 s{88+i}, s{88+i}, s71")
T0 = 0
def stamp_init(k):
    if DIAG or T0:
        for i in range(8): k(f"s_mov_b32 s{88+i}, 0")
        k("s_memtime s[72:73]"); k("s_waitcnt lgkmcnt(0)"); k("s_mov_b32 s95, s72")
def stamp_out(k):
    if not (DIAG or T0): return
    k("s_memtime s[72:73]"); k("s_waitcnt lgkmcnt(0)"); k("s_sub_u32 s95, s72, s95")
    for i in range(8): k(f"v_mov_b32 v{16+i}, s{88+i}")
    k(f"s_lshl_b32 s46, s59, 2"); k(f"s_add_u32 s46, s46, s{S_WAVE}"); k("s_lshl_b32 s46, s46, 5"); k(f"s_add_u32 s46, s46, {DBGOFF}")
    k("v_mov_b32 v24, 0")
    k(f"buffer_store_dwordx4 v[16:19], v24, {WS}, s46 offen"); k(f"buffer_store_dwordx4 v[20:23], v24, {WS}, s46 offen offset:16")

def interleave(k, main, side):
    for i, m in enumerate(main):
        k(m)
        for s in side.get(i, []): k(s)

def ugate(k, need, v128, vt, abort):
    gate(k, L.UC(0), 4, 28, need, 96, v128, vt, abort)

def poll_rot(k, loads, tmp, abort, pre_issued=False):
    from itertools import permutations
    n = len(loads)
    done = k.label("Lrd")
    lab = {}
    def L_(st):
        if st not in lab: lab[st] = k.label("Lr")
        return lab[st]
    def check(j):
        r = loads[j][1]
        if len(r) == 1: k(f"v_cmp_eq_u32 vcc, -1, v{r[0]}")
        else:
            k(f"v_max3_u32 v{tmp}, v{r[0]}, v{r[1]}, v{r[2]}"); k(f"v_max_u32 v{tmp}, v{tmp}, v{r[3]}"); k(f"v_cmp_eq_u32 vcc, -1, v{tmp}")
    k(f"s_mov_b32 s70, {TIMEOUT}")
    if not pre_issued:
        for j in range(n): k(loads[j][0])
    emitted = set(); deferred = []
    def spin(st):
        m = len(st)
        rots = [st[i:] + st[:i] for i in range(m)]
        for i, r in enumerate(rots):
            emitted.add(r); k.place(L_(r))
            j = r[0]
            k(f"s_waitcnt vmcnt({m-1})")
            check(j)
            hit = ("hit", r)
            k(f"s_cbranch_vccz {L_(hit)}"); deferred.append(r)
            k(loads[j][0])
            if i == m - 1:
                k("s_sub_u32 s70, s70, 1"); k(f"s_cbranch_scc0 {L_(rots[0])}"); k(f"s_branch {abort}")
    def hit(r):
        k.place(L_(("hit", r)))
        while True:
            for x in loads[r[0]][2]: k(x)
            r = r[1:]
            if not r:
                k(f"s_branch {done}"); return
            k(f"s_waitcnt vmcnt({len(r)-1})")
            check(r[0])
            miss = ("miss", r)
            k(f"s_cbranch_vccnz {L_(miss)}"); pend.append(r)
    spin(tuple(range(n)))
    pend = []; seen_hit = set(); seen_miss = set()
    while deferred or pend:
        while deferred:
            r = deferred.pop(0)
            if r not in seen_hit: seen_hit.add(r); hit(r)
        while pend:
            r = pend.pop(0)
            if r in seen_miss: continue
            seen_miss.add(r)
            k.place(L_(("miss", r)))
            k(loads[r[0]][0])
            nr = r[1:] + r[:1]
            if nr in emitted: k(f"s_branch {L_(nr)}")
            else: spin(nr)
    k.place(done)

def poll_mem(k, s_addr, abort, t=44):
    lp = k.label("Lpm")
    k(f"s_mov_b32 s70, {TIMEOUT}")
    k.place(lp)
    k(f"buffer_load_dword v{t}, v4, {WL}, s{s_addr} offen sc1")
    k(f"buffer_load_dwordx4 v3, {WL}, s{s_addr} offen sc1 lds")
    k(f"buffer_load_dwordx4 v3, {WL}, s{s_addr} offen offset:1024 sc1 lds")
    k("s_sub_u32 s70, s70, 1")
    k(f"s_cbranch_scc1 {abort}")
    k("s_waitcnt vmcnt(2)")
    k(f"v_cmp_eq_u32 vcc, -1, v{t}")
    k(f"s_cbranch_vccnz {lp}")
    k("s_waitcnt vmcnt(0)")

def poll_mem2(k, s_addr, abort, R0, R1, t):
    lp = k.label("Lpm"); got = [k.label("Lpg"), k.label("Lpg")]; join = k.label("Lpj")
    R = [R0, R1]
    def iss(d):
        k(f"buffer_load_dwordx4 {vr(R[d],4)}, v3, {WL}, s{s_addr} offen sc1"); k(f"buffer_load_dwordx4 {vr(R[d]+4,4)}, v4, {WL}, s{s_addr} offen sc1")
    k(f"s_mov_b32 s70, {TIMEOUT}")
    iss(0)
    k("s_nop 15")
    k.place(lp)
    for d in range(2):
        iss(1-d)
        if d == 0:
            k("s_sub_u32 s70, s70, 1"); k(f"s_cbranch_scc1 {abort}")
        k("s_waitcnt vmcnt(2)")
        k(f"v_max_u32 v{t}, v{R[d]}, v{R[d]+4}"); k(f"v_cmp_eq_u32 vcc, -1, v{t}")
        k(f"s_cbranch_vccz {got[0]}" if d == 0 else f"s_cbranch_vccnz {lp}")
    for d in (1, 0):
        k.place(got[d])
        k(f"ds_write_b128 v3, {vr(R[d],4)}"); k(f"ds_write_b128 v4, {vr(R[d]+4,4)}")
        if d == 1: k(f"s_branch {join}")
    k.place(join)
    k("s_waitcnt lgkmcnt(0)")

def mem_full_check(M, t):
    r = list(range(M, M+28))
    out = [f"v_max3_u32 v{t}, v{r[0]}, v{r[1]}, v{r[2]}"]
    r = r[3:]
    while len(r) >= 2:
        out.append(f"v_max3_u32 v{t}, v{t}, v{r[0]}, v{r[1]}"); r = r[2:]
    out.append(f"v_max_u32 v{t}, v{t}, v{r[0]}")
    return out

def mem_common_setup(k):
    k("v_lshlrev_b32 v1, 4, v0")
    k("v_and_b32 v2, 8, v0")
    k("v_cmp_eq_u32 vcc, 0, v2")
    k("v_mov_b32 v2, 0xeeee")
    k("v_mov_b32 v3, 0x4444")
    k("v_cndmask_b32 v2, v2, v3, vcc")
    k(f"s_lshl_b32 s46, s{S_WAVE}, 11"); k("s_mov_b32 m0, s46")
    k("v_add_u32 v3, s46, v1")
    k(f"s_cmp_eq_u32 s{S_WAVE}, 3"); k("s_cselect_b32 s47, 7, 15")
    k("v_and_b32 v4, s47, v0"); k("v_lshlrev_b32 v4, 7, v4"); k("v_add_u32 v4, s46, v4")

M = 16
SPW = 8*176
def gen_chain_A(k, st, abort):
    TT = 8192; SP = TT + 4*3584
    def W(i, p):
        o = i*7 + p
        return vr(256 + 8*o, 8) if o < 32 else vr(120 + 8*(o-32), 8)
    ACC = [52, 56, 60]; CV = 114; TB = [64, 68]; XK = 72; MK = 100; SX0, SX1, SM = 44, 48, 116
    def xk(pair, t): return XK + (pair*2 + t)*4
    XS = XK + 24
    def loadx():
        for t in range(2):
            if t == 1: k(f"s_add_u32 s64, s62, {14*1024}")
            so = "s62" if t == 0 else "s64"
            for pr in range(3):
                k(f"buffer_load_dwordx4 {vr(xk(pr,t),4)}, v6, {WL}, {so} offen offset:{pr*1024} sc1")
            k(f"buffer_load_dwordx2 {vr(XS+2*t,2)}, v14, {WL}, {so} offen sc1")
        k(f"s_add_u32 s62, s62, {28*1024}")
    loop = k.label("LA")
    k(f"s_mov_b32 s61, {L.MEM[0]}")
    k(f"s_mul_i32 s65, s60, 640"); k(f"s_add_u32 s65, s65, {L.PIM[0]}")
    k(f"s_mov_b32 s62, {L.XTA[0]}")
    k("s_mov_b32 s96, 0"); k("s_mov_b32 s98, 0")
    ugate(k, "s98", "v_lshlrev_b32 v16, 3, v1", 16, abort)
    loadx()
    k("s_mov_b32 s67, 63")
    gen.tl(k, 1, 16)
    for r in range(2): k(f"v_mov_b64 {vr(ACC[1]+2*r,2)}, 0")
    stamp_init(k)
    redo = k.label("LAr")
    k.place(loop)
    for r in range(2): k(f"v_mov_b64 {vr(ACC[0]+2*r,2)}, 0")
    stamp(k, 0)
    if APOLL: poll_mem2(k, 61, abort, 44, 100, 114)
    else: poll_mem(k, 61, abort)
    stamp(k, 1)
    if DIAG == 1:
        k(f"s_sub_u32 s71, {TIMEOUT}, s70"); k("s_add_u32 s94, s94, s71")
    k("s_barrier")
    stamp(k, 2)
    for p in range(7): k(f"ds_read_b128 {vr(M+4*p,4)}, v1 offset:{p*1024}")
    mk = [f"ds_read2_b32 {vr(MK,2)}, v7 offset0:0 offset1:32", f"ds_read2_b32 {vr(MK+2,2)}, v7 offset0:1 offset1:33",
          f"ds_read2_b32 {vr(MK+4,2)}, v7 offset0:128 offset1:160", f"ds_read2_b32 {vr(MK+6,2)}, v7 offset0:129 offset1:161",
          f"ds_read2_b32 {vr(MK+8,2)}, v15 offset0:0 offset1:32", f"ds_read2_b32 {vr(MK+10,2)}, v15 offset0:1 offset1:33",
          f"ds_read2_b32 {vr(MK+12,2)}, v5 offset0:0 offset1:32"]
    if APOLL: mk[0] = "s_waitcnt vmcnt(0)\n" + mk[0]
    T0R = ACC[1]
    for i in range(7):
        a = ACC[i % 3]; z = ACC[(i+1) % 3]; pa = ACC[(i-1) % 3]
        main = [f"v_smfmac_f32_16x16x64_bf16 {vr(a,4)}, {vr(M+4*p,4)}, {W(i,p)}, v2" for p in range(7)]
        side = {}
        if i == 0:
            for p in range(7): main[p] = f"s_waitcnt lgkmcnt({6-p})\n" + main[p]
        else:
            j = i - 1
            side[2] = [f"v_cvt_pk_bf16_f32 v{CV}, v{pa}, v{pa+1}"]
            side[3] = [f"v_cvt_pk_bf16_f32 v{CV+1}, v{pa+2}, v{pa+3}"]
            side[4] = [f"ds_write_b64 v8, {vr(CV,2)} offset:{j*512}"]
            if j >= 2: side[5] = [f"ds_read_b64_tr_b16 {vr(TB[(j >> 1) & 1] + 2*(j & 1),2)}, v9 offset:{j*512}"]
            if i < 6:
                side[0] = [f"v_mov_b64 {vr(z,2)}, 0"]; side[1] = [f"v_mov_b64 {vr(z+2,2)}, 0"]
            else:
                side[0] = [f"ds_read_b64_tr_b16 {vr(T0R,2)}, v9"]; side[1] = [f"ds_read_b64_tr_b16 {vr(T0R+2,2)}, v9 offset:512"]
            if i == 1: side[5] = [mk[0]]; side[6] = [mk[1]]
            if i == 2: side[5] = [mk[2]]; side[6] = [mk[3]]
            if 3 <= i <= 5: side[6] = [mk[i+1]]
        interleave(k, main, side)
    a = ACC[0]
    stamp(k, 3)
    fc = mem_full_check(M, ACC[2])
    def smm(pr, tb, first=False):
        c = (lambda r: "0") if first else (lambda r: vr(r,4))
        return [f"v_mfma_f32_16x16x32_bf16 {vr(SX0,4)}, {vr(xk(pr,0),4)}, {vr(tb,4)}, {c(SX0)}",
                f"v_mfma_f32_16x16x32_bf16 {vr(SX1,4)}, {vr(xk(pr,1),4)}, {vr(tb,4)}, {c(SX1)}",
                f"v_mfma_f32_16x16x32_bf16 {vr(SM,4)}, {vr(MK+4*pr,4)}, {vr(tb,4)}, {c(SM)}"]
    k("s_waitcnt lgkmcnt(2)")
    t1 = smm(1, TB[1], True); t0 = smm(0, T0R); t2 = smm(2, TB[0])
    k(t1[0]); k(t1[1])
    k(f"v_cvt_pk_bf16_f32 v{CV}, v{a}, v{a+1}")
    k(f"v_cvt_pk_bf16_f32 v{CV+1}, v{a+2}, v{a+3}")
    k(t1[2])
    k(f"ds_write_b64 v8, {vr(CV,2)} offset:{6*512}")
    k(f"ds_read_b64_tr_b16 {vr(CV,2)}, v9 offset:{6*512}")
    interleave(k, t0, {0: fc[0:2], 1: fc[2:4], 2: fc[4:6] + ["s_waitcnt lgkmcnt(2)"]})
    interleave(k, t2, {0: fc[6:8], 1: fc[8:10], 2: fc[10:12] + ["s_waitcnt lgkmcnt(0)"]})
    k(f"v_mfma_f32_16x16x16_bf16 {vr(SX0,4)}, {vr(XS,2)}, {vr(CV,2)}, {vr(SX0,4)}")
    k(f"v_mfma_f32_16x16x16_bf16 {vr(SX1,4)}, {vr(XS+2,2)}, {vr(CV,2)}, {vr(SX1,4)}")
    k(fc[12])
    k(f"v_mfma_f32_16x16x16_bf16 {vr(SM,4)}, {vr(MK+12,2)}, {vr(CV,2)}, {vr(SM,4)}")
    k(fc[13])
    k(f"v_cmp_eq_u32 vcc, -1, v{ACC[2]}")
    Y = TB[0]
    for r in range(4): k(f"v_add_f32_dpp v{Y+r}, v{SX0+r}, v{SX0+r} row_ror:8 row_mask:0xf bank_mask:0x3")
    for r in range(4): k(f"v_add_f32_dpp v{Y+r}, v{SX1+r}, v{SX1+r} row_ror:8 row_mask:0xf bank_mask:0xc")
    k(f"ds_write_b128 v10, {vr(Y,4)}")
    for r in range(4): k(f"v_add_f32_dpp v{Y+4}, v{SM+r}, v{SM+r} row_ror:8 row_mask:{'0x3' if r<2 else '0xc'} bank_mask:{'0xc' if r&1 else '0x3'}")
    k(f"ds_write_b32 v11, v{Y+4}")
    k(f"s_cbranch_vccnz {redo}")
    for r in range(2): k(f"v_mov_b64 {vr(ACC[1]+2*r,2)}, 0")
    k("s_waitcnt lgkmcnt(0)")
    k("s_barrier")
    stamp(k, 4)
    R = 16
    for q in range(4): k(f"ds_read_b64 {vr(R+2*q,2)}, v12 offset:{q*SPW}")
    k("s_waitcnt lgkmcnt(2)"); k(f"v_pk_add_f32 {vr(R,2)}, {vr(R,2)}, {vr(R+2,2)}")
    k("s_waitcnt lgkmcnt(0)"); k(f"v_pk_add_f32 {vr(R+4,2)}, {vr(R+4,2)}, {vr(R+6,2)}")
    k(f"v_pk_add_f32 {vr(R,2)}, {vr(R,2)}, {vr(R+4,2)}")
    def allred32(v, t, op):
        for sh in (8, 4, 2, 1):
            k(f"{op}_dpp v{v}, v{v}, v{v} row_ror:{sh} row_mask:0xf bank_mask:0xf")
        k(f"v_mov_b32 v{t}, v{v}")
        k(f"v_permlane16_swap_b32 v{v}, v{t}")
        k(f"{op} v{v}, v{v}, v{t}")
    slowmax = k.label("LAm"); publish = k.label("LAp")
    def normalise(check):
        k(f"v_exp_f32 v{R+4}, v{R}"); k(f"v_exp_f32 v{R+5}, v{R+1}")
        k(f"v_add_f32 v{R+2}, v{R+4}, v{R+5}")
        allred32(R+2, R+3, "v_add_f32")
        if check:
            k(f"v_med3_f32 v{R+3}, v{R+2}, s56, v0"); k(f"v_cmp_neq_f32 vcc, v{R+3}, v{R+2}")
        k(f"v_rcp_f32 v{R+2}, v{R+2}")
        k(f"v_mul_f32 v{R+4}, v{R+4}, v{R+2}"); k(f"v_mul_f32 v{R+5}, v{R+5}, v{R+2}")
        k(f"v_cvt_pk_bf16_f32 v{R+4}, v{R+4}, v{R+5}")
        k(f"v_min_u32 v{R+4}, -2, v{R+4}")
    normalise(True)
    k(f"s_cbranch_vccnz {slowmax}")
    k.place(publish)
    k(f"buffer_store_dword v{R+4}, v13, {WL}, s65 offen {st}")
    stamp(k, 5)
    if XACK:
        k("s_waitcnt vmcnt(0)"); stamp(k, 6)
    k("s_barrier")
    k("s_add_u32 s98, s98, 1")
    ugate(k, "s98", "v_lshlrev_b32 v24, 3, v1", 24, abort)
    loadx()
    if ASL: k(f"s_sleep {ASL}")
    if not XACK: stamp(k, 6)
    stamp_acc(k, 7)
    k(f"s_add_u32 s65, s65, {L.PSZ}"); k(f"s_add_u32 s61, s61, {L.MSTEP}")
    if gen.TL:
        for (n, ix) in ((53, 2), (33, 3)):
            lz = k.label(); k(f"s_cmp_lg_u32 s67, {n}"); k(f"s_cbranch_scc1 {lz}"); gen.tl(k, ix, 20); k.place(lz)
    k("s_sub_u32 s67, s67, 1"); k("s_cmp_lg_u32 s67, 0"); k(f"s_cbranch_scc1 {loop}")
    gen.tl(k, 4, 16)
    stamp_out(k)
    out = k.label("LAo"); k(f"s_branch {out}")
    k.place(slowmax)
    k(f"v_max_f32 v{R+2}, v{R}, v{R+1}")
    allred32(R+2, R+3, "v_max_f32")
    k(f"v_sub_f32 v{R}, v{R}, v{R+2}"); k(f"v_sub_f32 v{R+1}, v{R+1}, v{R+2}")
    normalise(False)
    k(f"s_branch {publish}")
    k.place(redo)
    k("s_waitcnt lgkmcnt(0)"); k("s_barrier")
    for r in range(2): k(f"v_mov_b64 {vr(ACC[1]+2*r,2)}, 0")
    k(f"s_branch {loop}")
    k.place(out)

def setup_A(k, abort):
    TT = 8192; SP = TT + 4*3584
    mem_common_setup(k)
    if APOLL:
        k(f"s_mul_i32 s46, s{S_WAVE}, {112*16}"); k("v_add_u32 v3, s46, v1"); k("v_add_u32 v4, 1024, v3")
        k(f"v_add_u32 v5, {1024-768}, v3"); k("v_cmp_gt_u32 vcc, 48, v0"); k("v_cndmask_b32 v4, v5, v4, vcc")
    k(f"s_lshr_b32 s46, s{S_WAVE}, 1"); k("s_mul_i32 s46, s46, 7")
    k(f"s_and_b32 s69, s{S_WAVE}, 1")
    k("s_lshl_b32 s66, s69, 2"); k("s_add_u32 s66, s66, s46")
    k("s_add_u32 s68, s46, 3")
    k("v_min_u32 v16, 6, v0"); k("v_lshlrev_b32 v16, 7, v16"); k(f"s_mul_i32 s48, s60, {7*128}"); k(f"s_add_u32 s48, s48, {L.SF(0)}")
    wait_words(k, "s48", 16, 17, 1, abort, nap=1, srd_=WS)
    k(f"s_mul_i32 s47, s60, 28"); k("s_lshl_b32 s48, s66, 1"); k("s_add_u32 s48, s48, s47")
    k(f"s_mul_i32 s48, s48, {14*1024}"); k(f"s_add_u32 s48, s48, {L.WQ}")
    k("s_lshl_b32 s49, s68, 1"); k("s_add_u32 s49, s49, s69"); k("s_add_u32 s49, s49, s47")
    k(f"s_mul_i32 s49, s49, {14*1024}"); k(f"s_add_u32 s49, s49, {L.WQ}")
    for n in range(98):
        reg = 256 + 4*n if n < 64 else 120 + 4*(n-64)
        if n == 84: k("s_mov_b32 s48, s49")
        nn = n if n < 84 else n - 84
        if nn % 4 == 0 and nn: k("s_add_u32 s48, s48, 4096")
        k(f"buffer_load_dwordx4 {vr(reg,4)}, v1, {WS}, s48 offen offset:{(nn%4)*1024} sc1")
    k("v_and_b32 v16, 15, v0")
    k("v_lshrrev_b32 v17, 4, v0")
    k("v_bfe_u32 v18, v0, 1, 1"); k("v_lshlrev_b32 v18, 2, v18")
    k("v_bfe_u32 v19, v0, 2, 1"); k("v_lshl_add_u32 v18, v19, 1, v18")
    k("v_and_b32 v19, 1, v0"); k("v_add_u32 v18, v18, v19")
    k("v_lshlrev_b32 v18, 4, v18")
    k("v_lshrrev_b32 v19, 1, v17"); k("v_lshl_add_u32 v18, v19, 8, v18")
    k("v_and_b32 v19, 1, v17"); k("v_lshl_add_u32 v18, v19, 3, v18")
    k("s_lshl_b32 s46, s66, 9"); k("v_add_u32 v7, s46, v18")
    k("v_add_u32 v15, 1024, v7")
    k("s_lshl_b32 s46, s68, 9"); k("s_lshl_b32 s47, s69, 2"); k("s_add_u32 s46, s46, s47")
    k("v_add_u32 v5, s46, v18")
    k(f"s_mul_i32 s46, s{S_WAVE}, 3584"); k(f"s_add_u32 s46, s46, {TT}")
    k("v_lshlrev_b32 v8, 5, v16"); k("v_lshl_add_u32 v8, v17, 3, v8"); k("v_add_u32 v8, s46, v8")
    k("v_lshlrev_b32 v9, 3, v0"); k("v_add_u32 v9, s46, v9")
    k(f"s_mul_i32 s46, s{S_WAVE}, {SPW}"); k(f"s_add_u32 s46, s46, {SP}")
    k("v_and_b32 v19, 7, v0"); k("v_mul_u32_u24 v18, 176, v19"); k("v_add_u32 v18, s46, v18")
    k("v_lshrrev_b32 v19, 3, v16")
    k("v_lshl_add_u32 v10, v17, 5, v18"); k("v_lshl_add_u32 v10, v19, 4, v10")
    k("v_and_b32 v20, 1, v17"); k("v_lshl_add_u32 v11, v20, 4, v18")
    k("v_lshrrev_b32 v20, 1, v17"); k("v_lshl_add_u32 v11, v20, 3, v11")
    k("v_lshl_add_u32 v11, v19, 2, v11"); k("v_add_u32 v11, 128, v11")
    k(f"v_mov_b32 v20, {hx(f2u(-1e30))}"); k("v_mov_b32 v21, v20")
    k("ds_write_b64 v18, v[20:21] offset:160")
    k("v_and_b32 v19, 31, v0"); k("v_lshrrev_b32 v20, 5, v0")
    k(f"s_lshl_b32 s46, s{S_WAVE}, 1"); k("v_add_u32 v20, s46, v20")
    k("v_lshlrev_b32 v21, 3, v19"); k("v_cmp_gt_u32 vcc, 20, v19"); k("v_mov_b32 v22, 160")
    k("v_cndmask_b32 v21, v22, v21, vcc")
    k("v_mul_u32_u24 v22, 176, v20"); k("v_add_u32 v12, v21, v22"); k(f"v_add_u32 v12, {SP}, v12")
    k("v_lshrrev_b32 v21, 2, v19"); k("v_lshl_add_u32 v21, v21, 3, v20"); k("v_lshlrev_b32 v21, 4, v21")
    k("v_and_b32 v22, 3, v19"); k("v_lshl_add_u32 v21, v22, 2, v21")
    k("v_mov_b32 v22, 0x7fffffff"); k("v_cndmask_b32 v13, v22, v21, vcc")
    k("s_lshl_b32 s46, s68, 10"); k("s_lshl_b32 s47, s69, 3"); k("s_add_u32 s46, s46, s47")
    k("v_add_u32 v14, s46, v1")
    k("s_lshl_b32 s46, s66, 10"); k("v_add_u32 v6, s46, v1")
    k(f"s_mov_b32 s56, {hx(f2u(2.0**-60))}"); k(f"v_mov_b32 v0, {hx(f2u(2.0**60))}")
    k("s_waitcnt vmcnt(0) lgkmcnt(0)")

B_TB = 8192
B_OUT = B_TB + 8192
B_LW = B_OUT + 8192
CHAIN_LDS = B_LW + 4*28*1024

def setup_B(k, abort):
    mem_common_setup(k)
    k("v_and_b32 v16, 15, v0"); k(f"v_mul_u32_u24 v16, {7*128}, v16"); k("s_lshr_b32 s48, s60, 1"); k("s_lshl_b32 s48, s48, 7"); k(f"s_add_u32 s48, s48, {L.SF(0) + 112*128}")
    wait_words(k, "s48", 16, 17, 1, abort, nap=1, srd_=WS)
    k(f"s_lshl_b32 s46, s{S_WAVE}, 2"); k("s_mul_i32 s46, s46, 28"); k("s_lshl_b32 s47, s60, 1"); k("s_add_u32 s46, s46, s47")
    k(f"s_mul_i32 s46, s46, {14*1024}"); k(f"s_add_u32 s46, s46, {L.WV}")
    k(f"s_mul_i32 s47, s{S_WAVE}, {28*1024}"); k(f"s_add_u32 s47, s47, {B_LW}")
    k("v_add_u32 v15, s47, v1")
    for hh in (3, 0, 1, 2):
        k(f"s_add_u32 s48, s46, {hh*28*14*1024}")
        for n in range(28):
            if hh == 3: reg = 16 + 4*n
            else:
                q = hh*28 + n
                reg = 256 + 4*q if q < 64 else 176 + 4*(q-64)
            if n % 4 == 0 and n: k("s_add_u32 s48, s48, 4096")
            k(f"buffer_load_dwordx4 {vr(reg,4)}, v1, {WS}, s48 offen offset:{(n%4)*1024} sc1")
        if hh == 0:
            k("s_waitcnt vmcnt(28)")
            for n in range(28): k(f"ds_write_b128 v15, {vr(16+4*n,4)} offset:{n*1024}")
    k("s_waitcnt lgkmcnt(0)")
    k("v_and_b32 v16, 15, v0"); k("v_lshrrev_b32 v17, 4, v0"); k("v_and_b32 v18, 7, v0")
    k(f"s_mul_i32 s46, s{S_WAVE}, 2560")
    k("v_lshl_add_u32 v7, v17, 3, v18"); k("v_lshlrev_b32 v7, 4, v7"); k("v_add_u32 v7, s46, v7")
    k("v_lshrrev_b32 v19, 3, v16"); k("v_mul_u32_u24 v19, 640, v19"); k("v_add_u32 v7, v7, v19")
    k("v_mul_u32_u24 v8, 640, v17"); k("v_lshl_add_u32 v8, v18, 4, v8"); k("v_add_u32 v8, s46, v8"); k("v_add_u32 v8, 512, v8")
    k(f"v_mul_u32_u24 v19, {28*1024}, v17"); k("v_lshl_add_u32 v19, v16, 7, v19"); k("v_mov_b32 v20, 0x7fffffff")
    k(f"v_cmp_gt_u32 vcc, {NB}, v16"); k("v_cndmask_b32 v5, v20, v19, vcc")
    k(f"s_lshl_b32 s46, s{S_WAVE}, 11"); k(f"s_add_u32 s47, s46, {B_TB}")
    k("v_lshlrev_b32 v9, 4, v16"); k("v_lshl_add_u32 v9, v17, 2, v9"); k("v_add_u32 v9, s47, v9")
    k("v_add_u32 v10, s47, v1")
    k(f"s_lshl_b32 s46, s{S_WAVE}, 10"); k(f"s_add_u32 s47, s46, {B_OUT}"); k("v_add_u32 v11, s47, v1")
    k("v_bfe_u32 v19, v0, 2, 3"); k("v_lshrrev_b32 v20, 5, v0"); k("v_bfe_u32 v21, v0, 1, 1"); k("v_and_b32 v22, 1, v0")
    k(f"s_lshl_b32 s46, s{S_WAVE}, 1"); k("s_and_b32 s46, s46, 2"); k("v_add_u32 v21, s46, v21")
    k("v_lshl_add_u32 v12, v21, 4, v19"); k("v_lshlrev_b32 v12, 4, v12"); k("v_lshl_add_u32 v12, v22, 7, v12")
    k("v_lshl_add_u32 v12, v20, 3, v12"); k(f"v_add_u32 v12, {B_OUT}, v12")
    k("s_lshl_b32 s47, s60, 9"); k("s_lshl_b32 s48, s46, 7"); k("s_add_u32 s48, s48, s47")
    k("v_lshlrev_b32 v13, 2, v0"); k("v_add_u32 v13, s48, v13")
    k("v_lshlrev_b32 v14, 7, v21"); k("v_lshl_add_u32 v14, v19, 4, v14"); k("v_lshl_add_u32 v14, v22, 3, v14")
    k("v_lshl_add_u32 v14, v20, 2, v14"); k("v_add_u32 v14, s47, v14")
    k("v_mov_b32 v19, 0x7fffffff"); k(f"s_cmp_ge_u32 s{S_WAVE}, 2"); k("s_cselect_b64 vcc, -1, 0"); k("v_cndmask_b32 v14, v14, v19, vcc")
    lane0_addr(k, 6, 19); k("v_mov_b32 v0, 1")
    k("s_waitcnt vmcnt(0)")

def gen_chain_B(k, st, abort):
    ACC = [52, 56, 60]; FT = 64; HOLD = 67; ZA = 68; U = 76; P = 108; LW = 108; DUM = 66
    def W(hh, t, p):
        o = (hh*2 + t)*7 + p
        return vr(256 + 8*o, 8) if o < 32 else vr(176 + 8*(o-32), 8)
    loop = k.label("LB"); done = k.label("LBd"); first = k.label("LBf"); nofin = k.label("LBn")
    k(f"s_mov_b32 s61, {L.MEM[0]}"); k(f"s_mov_b32 s65, {L.PIM[0]}")
    k(f"s_lshl_b32 s62, s{S_WAVE}, 2"); k("s_mul_i32 s62, s62, 28"); k("s_lshl_b32 s46, s60, 1"); k("s_add_u32 s62, s62, s46")
    k("s_lshl_b32 s62, s62, 10"); k(f"s_add_u32 s62, s62, {L.UU[0]}")
    k(f"s_mul_i32 s63, s{S_WAVE}, 28"); k("s_add_u32 s63, s63, s46"); k("s_lshl_b32 s63, s63, 10"); k(f"s_add_u32 s63, s63, {L.VM[0] - L.VMSZ}")
    k(f"s_mov_b32 s66, {L.MEMN[0]}")
    k("s_mov_b32 s67, 0")
    k("s_mov_b32 s96, 0"); k(f"s_mov_b32 s99, {L.FIN(0)}")
    stamp_init(k)
    k.place(loop)
    if True:
        k("s_add_u32 s98, s67, 1")
        ugate(k, "s98", "v_lshlrev_b32 v108, 3, v1", 108, abort)
    k("s_cmp_eq_u32 s67, 0"); k(f"s_cselect_b32 s57, {L.SPARE[0]}, s63"); k(f"s_cselect_b32 s58, {L.SPARE[0]}, s66")
    again = k.label("LBa"); k.place(again)
    TA = [52, 56, 60, 164, 168, 172, 44, 48]
    for a_ in TA:
        k(f"v_mov_b64 {vr(a_,2)}, 0"); k(f"v_mov_b64 {vr(a_+2,2)}, 0")
    stamp(k, 0)
    poll_mem(k, 61, abort, FT)
    stamp(k, 1)
    k("s_barrier")
    stamp(k, 2)
    for p in range(7): k(f"ds_read_b128 {vr(M+4*p,4)}, v1 offset:{p*1024}")
    if NB:
        k(f"s_add_u32 s64, s62, {16*28*1024}")
        k(f"buffer_load_dword v{DUM}, v5, {WL}, s64 offen")
    exports = [f"buffer_store_dwordx4 {vr(ZA,4)}, v1, {WL}, s57 offen sc1", f"buffer_store_dwordx4 {vr(ZA+4,4)}, v1, {WL}, s57 offen offset:1024 sc1",
               f"buffer_store_dword v{HOLD}, v14, {WL}, s58 offen sc1"]
    uload = []
    for hh in range(4):
        for t in range(2):
            pre = [f"s_add_u32 s64, s62, {hh*28*1024}"] if (hh and t == 0) else []
            uload.append(pre + [f"buffer_load_dwordx4 {vr(U+(hh*2+t)*4,4)}, v1, {WL}, {'s64' if hh else 's62'} offen offset:{t*1024} sc1"])
    order = [(0,0),(0,1),(1,0),(3,0),(1,1),(2,0),(2,1),(3,1)]
    def fold(j):
        pa = TA[j]; hh, t = order[j]
        return [f"v_permlane32_swap_b32 v{pa}, v{pa+2}", f"v_permlane32_swap_b32 v{pa+1}, v{pa+3}",
                f"v_pk_add_f32 {vr(pa,2)}, {vr(pa,2)}, {vr(pa+2,2)}" if not XPK else f"v_add_f32 v{pa}, v{pa}, v{pa+2}\nv_add_f32 v{pa+1}, v{pa+1}, v{pa+3}",
                f"v_cvt_pk_bf16_f32 v{pa}, v{pa}, v{pa+1}", f"ds_write_b32 v9, v{pa} offset:{t*1024+hh*256}"]
    lw = [[f"ds_read_b128 {vr(LW+4*(n%14),4)}, v15 offset:{n*1024}" for n in range(14*u, 14*u+14)] for u in range(2)]
    plan = {0: [[lw[0][p]] for p in range(7)]}
    def mix(f, extra):
        g = [[] for _ in range(7)]
        for q in range(5): g[2+q].append(f[q])
        slots = [0, 1, 4, 5, 3, 2, 6]
        for e, sl in zip(extra, slots): g[sl] += e if isinstance(e, list) else [e]
        return g
    vm = exports + uload if UV == 0 else uload + exports
    if XNOU: vm = exports
    plan[1] = mix(fold(0), [lw[0][7], lw[0][8], lw[0][9], lw[0][10]])
    plan[2] = mix(fold(1), [lw[0][11], lw[0][12], lw[0][13]])
    plan[3] = mix(fold(2), [])
    plan[4] = mix(fold(3), [lw[1][0], lw[1][1], lw[1][2], lw[1][3], lw[1][4]])
    plan[5] = mix(fold(4), [lw[1][5], lw[1][6], lw[1][7], lw[1][8], lw[1][9]])
    plan[6] = mix(fold(5), [lw[1][10], lw[1][11], lw[1][12], lw[1][13]])
    plan[7] = mix(fold(6), [])
    for e, (ti, g) in zip(vm, [(0,2),(0,6),(1,3),(2,0),(2,5),(3,0),(3,4),(4,2),(5,2),(6,3),(7,0)]):
        plan[ti][g] = plan[ti][g] + (e if isinstance(e, list) else [e])
    for i, (hh, t) in enumerate(order):
        a = TA[i]
        if hh == 3: k("s_waitcnt lgkmcnt(1)")
        main = [f"v_smfmac_f32_16x16x64_bf16 {vr(a,4)}, {vr(M+4*p,4)}, {W(hh,t,p) if hh<3 else vr(LW+8*p,8)}, v2" for p in range(7)]
        if i == 0:
            for p in range(7): main[p] = "s_waitcnt lgkmcnt(6)\n" + main[p]
        if DIAG == 2 and i == 0: stamp(k, 3)
        interleave(k, main, dict(enumerate(plan[i])))
        if DIAG == 2 and i == 2: stamp(k, 4)
        if DIAG == 2 and i == 5: stamp(k, 5)
    fc = mem_full_check(M, FT)
    for x in fc[:7]: k(x)
    for x in fold(7): k(x)
    k(f"ds_read_b128 {vr(ZA,4)}, v10"); k(f"ds_read_b128 {vr(ZA+4,4)}, v10 offset:1024")
    for x in fc[7:]: k(x)
    redo = k.label("LBr")
    k(f"v_cmp_eq_u32 vcc, -1, v{FT}"); k(f"s_cbranch_vccnz {redo}")
    k(f"s_add_u32 s62, s62, {16*28*1024}"); k(f"s_add_u32 s61, s61, {L.MSTEP}")
    k(f"s_add_u32 s63, s63, {L.VMSZ}"); k(f"s_add_u32 s66, s66, {L.MEMSZ}")
    stamp(k, 3 if DIAG != 2 else 6)
    k("s_cmp_eq_u32 s67, 63"); k(f"s_cbranch_scc1 {done}")
    lp = k.label("Lpp")
    Q = P; OUT = P + 24
    k("s_waitcnt lgkmcnt(0)")
    k.place(lp)
    for r in range(8): k(f"v_mov_b64 {vr(OUT+2*r,2)}, 0")
    def pv(heads, q):
        o = []
        for hh in heads:
            for t in range(2):
                d = OUT + 8*(hh & 1) + 4*t
                o.append(f"v_mfma_f32_16x16x32_bf16 {vr(d,4)}, {vr(U+(hh*2+t)*4,4)}, {vr(q,4)}, {vr(d,4)}")
        o.insert(1, f"v_max3_u32 v{FT+1}, v{FT+1}, v{q+1}, v{q+2}"); o.insert(3, f"v_max_u32 v{FT+1}, v{FT+1}, v{q+3}")
        return o
    mm = [f"v_mfma_f32_16x16x32_bf16 {vr(OUT,4)}, {vr(ZA,4)}, {vr(Q+8,4)}, {vr(OUT,4)}", f"v_max3_u32 v{FT+1}, v{FT+1}, v{Q+9}, v{Q+10}",
          f"v_mfma_f32_16x16x32_bf16 {vr(OUT+4,4)}, {vr(ZA+4,4)}, {vr(Q+8,4)}, {vr(OUT+4,4)}", f"v_max_u32 v{FT+1}, v{FT+1}, v{Q+11}"]
    k(f"v_mov_b32 v{FT+1}, 0")
    poll_rot(k, [(f"buffer_load_dwordx4 {vr(Q,4)}, v7, {WL}, s65 offen sc1", [Q], pv((0, 1), Q)),
                 (f"buffer_load_dwordx4 {vr(Q+4,4)}, v7, {WL}, s65 offen offset:1280 sc1", [Q+4], pv((2, 3), Q+4)),
                 (f"buffer_load_dwordx4 {vr(Q+8,4)}, v8, {WL}, s65 offen sc1", [Q+8], mm)], FT, abort)
    if DIAG != 2: stamp(k, 4)
    if DIAG == 1:
        k(f"s_sub_u32 s71, {TIMEOUT}, s70"); k("s_add_u32 s94, s94, s71")
    k(f"v_cmp_eq_u32 vcc, -1, v{FT+1}")
    k(f"s_cbranch_vccnz {lp}")
    Y = ACC[0]
    for r in range(4): k(f"v_add_f32_dpp v{Y+r}, v{OUT+8+r}, v{OUT+r} row_ror:8 row_mask:0xf bank_mask:0x3")
    for r in range(4): k(f"v_add_f32_dpp v{Y+r}, v{OUT+4+r}, v{OUT+12+r} row_ror:8 row_mask:0xf bank_mask:0xc")
    k(f"ds_write_b128 v11, {vr(Y,4)}")
    k(f"s_add_u32 s65, s65, {L.PSZ}")
    k("s_add_u32 s67, s67, 1")
    k("s_waitcnt lgkmcnt(0)")
    k("s_barrier")
    if DIAG != 2: stamp(k, 5)
    k(f"s_cmp_ge_u32 s{S_WAVE}, 2"); k(f"s_cbranch_scc1 {nofin}")
    for q in range(4): k(f"ds_read_b64 {vr(U+2*q,2)}, v12 offset:{q*1024}")
    k("s_waitcnt lgkmcnt(2)"); k(f"v_pk_add_f32 {vr(U,2)}, {vr(U,2)}, {vr(U+2,2)}")
    k("s_waitcnt lgkmcnt(0)"); k(f"v_pk_add_f32 {vr(U+4,2)}, {vr(U+4,2)}, {vr(U+6,2)}")
    k(f"v_pk_add_f32 {vr(U,2)}, {vr(U,2)}, {vr(U+4,2)}")
    k(f"v_cvt_pk_bf16_f32 v{HOLD}, v{U}, v{U+1}")
    k(f"v_min_u32 v{U}, -2, v{HOLD}")
    k(f"buffer_store_dword v{U}, v13, {WL}, s61 offen {st}")
    if DIAG != 2: stamp(k, 6)
    stamp_acc(k, 7)
    k.place(nofin)
    if not BSL: k("s_barrier")
    if BSL: k(f"s_sleep {BSL}")
    k(f"s_branch {loop}")
    k.place(redo)
    k("s_waitcnt vmcnt(0) lgkmcnt(0)"); k("s_barrier"); k(f"s_mov_b32 s57, {L.SPARE[0]}"); k("s_mov_b32 s58, s57"); k(f"s_branch {again}")
    k.place(done)
    k("s_waitcnt lgkmcnt(0)")
    k(f"buffer_store_dwordx4 {vr(ZA,4)}, v1, {WL}, s63 offen sc1")
    k(f"buffer_store_dwordx4 {vr(ZA+4,4)}, v1, {WL}, s63 offen offset:1024 sc1")
    if True:
        k("s_waitcnt vmcnt(0)"); k("s_barrier")
        lz = k.label(); k(f"s_cmp_lg_u32 s{S_WAVE}, 0"); k(f"s_cbranch_scc1 {lz}")
        signal(k, "s99", 6, 0)
        k.place(lz)
    stamp_out(k)

def gen_chain_P(k, abort):
    k(f"s_lshl_b32 s46, s60, 2"); k(f"s_add_u32 s46, s46, s{S_WAVE}")
    k("s_mov_b32 s94, s46")
    k("v_lshlrev_b32 v1, 7, v0"); k("v_mov_b32 v20, 0x7fffffff")
    k(f"s_mul_i32 s47, s46, {448*128}"); k("v_add_u32 v2, s47, v1")
    k("v_and_b32 v3, 15, v0"); k(f"v_cmp_le_u32 vcc, {NB}, v3"); k("v_cndmask_b32 v3, v20, v2, vcc")
    k(f"s_mul_i32 s47, s46, {28*128}"); k("v_add_u32 v4, s47, v1"); k("v_cmp_gt_u32 vcc, 28, v0"); k("v_cndmask_b32 v4, v20, v4, vcc")
    k(f"s_mul_i32 s47, s46, {7*L.NMC*128}"); k("v_add_u32 v5, s47, v1"); k(f"v_cmp_gt_u32 vcc, {7*L.NMC}, v0"); k("v_cndmask_b32 v5, v20, v5, vcc")
    k(f"s_mul_i32 s47, s46, {10*L.NPC*128}"); k("v_add_u32 v6, s47, v1"); k(f"v_cmp_gt_u32 vcc, {10*L.NPC}, v0"); k("v_cndmask_b32 v6, v20, v6, vcc")
    k("v_min_u32 v7, 27, v0"); k("v_lshlrev_b32 v7, 8, v7")
    k("v_mov_b32 v12, 0"); k(f"s_mov_b32 s99, {L.PROG(0)}"); k("s_mov_b32 s95, 1")
    k(f"s_mov_b32 s62, {L.UU[0]}"); k(f"s_mov_b32 s63, {L.XTA[0]}")
    k(f"s_mov_b32 s64, {L.MEM[0]+L.MSTEP}"); k(f"s_mov_b32 s65, {L.PIM[0]}")
    k(f"s_mov_b32 s61, {L.MEM[0]}")
    def touch(v, mid=None):
        k(f"buffer_load_dword v8, v5, {WL}, s64 offen"); k(f"buffer_load_dword v8, v6, {WL}, s65 offen")
        k(f"buffer_load_dword v8, v4, {WL}, s63 offen")
        for j in range(7):
            if j == 3 and mid: mid()
            k(f"s_add_u32 s66, s62, {j*8192}")
            k(f"buffer_load_dword v8, v{v}, {WL}, s66 offen")
        k(f"s_add_u32 s62, s62, {16*28*1024}"); k(f"s_add_u32 s63, s63, {28*1024}")
        k(f"s_add_u32 s64, s64, {L.MSTEP}"); k(f"s_add_u32 s65, s65, {L.PSZ}")
    def probe(): k(f"buffer_load_dword v9, v7, {WL}, s61 offen sc1")
    k("s_mov_b32 s96, 0"); k("s_mov_b32 s98, 0")
    def pgate():
        ugate(k, "s98", "v_mov_b32 v24, v1", 24, abort); k("s_add_u32 s98, s98, 1")
    pgate(); touch(2)
    for i in range(1, PFD):
        pgate(); touch(3)
    k(f"s_add_u32 s61, s61, {L.MSTEP}")
    loop = k.label("LP"); lp = k.label("LPp"); go = k.label("LPg"); pend = k.label("LPe"); nt = k.label("LPn"); np_ = k.label("LPq")
    k.place(loop)
    k(f"s_cmp_ge_u32 s98, 63"); k(f"s_cbranch_scc1 {nt}")
    pgate()
    touch(3, probe)
    k("s_waitcnt vmcnt(4)")
    k("v_cmp_eq_u32 vcc, -1, v9"); k(f"s_cbranch_vccz {go}")
    k.place(nt)
    k(f"s_mov_b32 s70, {TIMEOUT}")
    k.place(lp)
    if PSL: k(f"s_sleep {PSL}")
    probe()
    k("s_sub_u32 s70, s70, 1"); k(f"s_cbranch_scc1 {abort}")
    k("s_waitcnt vmcnt(0)")
    k("v_cmp_eq_u32 vcc, -1, v9"); k(f"s_cbranch_vccnz {lp}")
    k.place(go)
    if True:
        k("s_cmp_lg_u32 s94, 0"); k(f"s_cbranch_scc1 {np_}")
        k("v_mov_b32 v13, s95"); k("s_mov_b64 exec, 1")
        k(f"buffer_store_dword v13, v12, {WL}, s99 offen sc1")
        k("s_mov_b64 exec, -1")
        k.place(np_)
    k(f"s_add_u32 s61, s61, {L.MSTEP}")
    k("s_add_u32 s95, s95, 1"); k("s_cmp_le_u32 s95, 63"); k(f"s_cbranch_scc1 {loop}")
    k.place(pend)

def chain_roles(k, ex):
    lP = k.label("LroleP")
    srd(k, 8, P_DBG, 256)
    k("s_getreg_b32 s58, hwreg(HW_REG_XCC_ID)"); k("s_and_b32 s58, s58, 15"); k("s_add_u32 s58, s58, 1")
    k("v_mov_b32 v2, s58"); k("s_lshl_b32 s46, s59, 2"); k("v_mov_b32 v3, s46")
    k("buffer_store_dword v2, v3, s[8:11], 0 offen sc1")
    body_init(k, ex)
    gen.tl(k, 15, 16, 0)
    k("s_cmp_ge_u32 s59, 30"); k(f"s_cbranch_scc1 {lP}")
    lB = k.label("LroleB")
    def agree(slow):
        lp = k.label("Lx")
        k("v_lshrrev_b32 v16, 2, v1"); k("v_min_u32 v16, 124, v16")
        k(f"s_mov_b32 s70, {TIMEOUT}")
        k.place(lp)
        k("buffer_load_dword v17, v16, s[8:11], 0 offen sc1")
        k("s_sub_u32 s70, s70, 1"); k(f"s_cbranch_scc1 {ex}")
        k("s_waitcnt vmcnt(0)")
        k("v_cmp_eq_u32 vcc, 0, v17"); k(f"s_cbranch_vccnz {lp}")
        k("v_cmp_ne_u32 vcc, s58, v17"); k(f"s_cbranch_vccnz {slow}")
    k("s_cmp_ge_u32 s59, 16"); k(f"s_cbranch_scc1 {lB}")
    k("s_mov_b32 s60, s59")
    setup_A(k, ex)
    sl = k.label("LslowA"); agree(sl)
    top = k.label("Ltop"); k.place(top); gen_chain_A(k, "", ex); layer_next(k, top)
    k("s_endpgm")
    k.place(sl)
    top = k.label("Ltop"); k.place(top); gen_chain_A(k, "sc1", ex); layer_next(k, top)
    k("s_endpgm")
    k.place(lB)
    k("s_sub_u32 s60, s59, 16")
    setup_B(k, ex)
    sl = k.label("LslowB"); agree(sl)
    top = k.label("Ltop"); k.place(top); gen_chain_B(k, "", ex); layer_next(k, top)
    k("s_endpgm")
    k.place(sl)
    top = k.label("Ltop"); k.place(top); gen_chain_B(k, "sc1", ex); layer_next(k, top)
    k("s_endpgm")
    k.place(lP)
    k("s_sub_u32 s60, s59, 30")
    top = k.label("Ltop"); k.place(top); gen_chain_P(k, ex); layer_next(k, top)
    k("s_endpgm")
```

```python
import struct, sys
from asmlib import *
import layout as L

def f2u(x): return struct.unpack("<I", struct.pack("<f", x))[0]
def hx(x): return hex(x & 0xffffffff)

S_WS = 4
P_X, P_MEM0, P_WQ, P_WK, P_WV, P_WO = 16, 18, 20, 22, 24, 26
P_BQ, P_BK, P_BV, P_BO = 32, 34, 36, 38
P_OUT, P_DBG, P_WS = 40, 42, 44
S_WAVE = 3

def srd(k, d, base, nbytes):
    k(f"s_mov_b32 s{d}, s{base}")
    k(f"s_and_b32 s{d+1}, s{base+1}, 0xffff")
    k(f"s_mov_b32 s{d+2}, {hx(nbytes)}")
    k(f"s_mov_b32 s{d+3}, 0x20000")

def prologue(k, nwg):
    k(f"s_cmp_ge_u32 s2, {nwg}")
    k(f"s_cbranch_scc1 Lexit_{k.name}")
    k("s_load_dwordx16 s[16:31], s[0:1], 0")
    k("s_load_dwordx8 s[32:39], s[0:1], 64")
    k("s_load_dwordx4 s[40:43], s[0:1], 96")
    k("s_load_dwordx2 s[44:45], s[0:1], 112")
    k("v_lshrrev_b32 v1, 6, v0")
    k(f"v_readfirstlane_b32 s{S_WAVE}, v1")
    k("v_and_b32 v0, 63, v0")
    k("s_waitcnt lgkmcnt(0)")
    srd(k, S_WS, P_WS, L.WS_BYTES)

def epilogue(k):
    k.place(f"Lexit_{k.name}")
    k("s_endpgm")

WS = "s[4:7]"
WL = "s[12:15]"
S_LAYER = 0

def xreduce_g(k, v, tmp, op):
    k(f"v_mov_b32 v{tmp}, v{v}")
    k(f"v_permlane16_swap_b32 v{v}, v{tmp}")
    k(f"{op} v{v}, v{v}, v{tmp}")
    k(f"v_mov_b32 v{tmp}, v{v}")
    k(f"v_permlane32_swap_b32 v{v}, v{tmp}")
    k(f"{op} v{v}, v{v}, v{tmp}")

def div7(k, sq, srem, sx):
    k(f"s_mul_i32 s{sq}, s{sx}, 9363")
    k(f"s_lshr_b32 s{sq}, s{sq}, 16")
    k(f"s_mul_i32 s{srem}, s{sq}, 7")
    k(f"s_sub_u32 s{srem}, s{sx}, s{srem}")

SLABW = 0
SLAB_LDS = 32768
DBG_INIT = 128

def lane_parts(k):
    k("v_and_b32 v2, 15, v0"); k("v_lshrrev_b32 v3, 4, v0")
    k("v_lshrrev_b32 v4, 2, v2"); k("v_lshlrev_b32 v4, 3, v4"); k("v_and_b32 v5, 3, v2"); k("v_add_u32 v4, v4, v5")
    k("v_lshlrev_b32 v6, 4, v0")

def wait_init(k, abort, vt):
    srd(k, 8, P_DBG, 256)
    k(f"v_mov_b32 v{vt}, {DBG_INIT}")
    wait_words(k, "0", vt, vt+1, 32, abort, nap=1, srd_="s[8:11]")

RING_LDS = SLAB_LDS + 56*1024
SLAB_END = RING_LDS + 4*16384

def body_slab(k, sb, abort):
    lane_parts(k)
    div7(k, 47, 48, sb)
    k("s_and_b32 s49, s47, 15"); k("s_lshr_b32 s50, s47, 4")
    k("s_cmp_eq_u32 s50, 0")
    k(f"s_cselect_b32 s8, s{P_WQ}, s{P_WV}"); k(f"s_cselect_b32 s9, s{P_WQ+1}, s{P_WV+1}"); k("s_and_b32 s9, s9, 0xffff")
    k(f"s_mov_b32 s10, {448*8192}"); k("s_mov_b32 s11, 0x20000")
    k("s_lshl_b32 s51, s49, 9")
    k("v_lshrrev_b32 v9, 2, v0"); k("v_lshlrev_b32 v9, 13, v9"); k("v_and_b32 v10, 3, v0"); k("v_lshl_add_u32 v9, v10, 7, v9")
    k("s_lshl_b32 s54, s48, 2"); k(f"s_add_u32 s54, s54, s{S_WAVE}"); k("s_lshl_b32 s54, s54, 17"); k("s_add_u32 s54, s54, s51")
    k("buffer_load_dword v58, v9, s[8:11], s54 offen")
    k("v_lshrrev_b32 v9, 3, v0"); k("v_and_b32 v10, 7, v0"); k("v_xor_b32 v10, v10, v9")
    k("v_lshrrev_b32 v11, 5, v0"); k("v_and_b32 v9, 3, v9"); k("v_lshl_add_u32 v9, v11, 3, v9"); k("v_lshlrev_b32 v8, 13, v9"); k("v_lshl_add_u32 v8, v10, 4, v8")
    k("v_and_b32 v9, 7, v0"); k("v_xor_b32 v10, v3, v9"); k("v_lshl_add_u32 v10, v9, 3, v10"); k("v_lshlrev_b32 v10, 4, v10")
    k("v_bfe_u32 v9, v0, 3, 1"); k("v_lshl_add_u32 v10, v9, 12, v10")
    k(f"s_lshl_b32 s60, s{S_WAVE}, 14"); k(f"s_add_u32 s60, s60, {RING_LDS}")
    k("v_add_u32 v56, s60, v10"); k("v_xor_b32 v57, 64, v56")
    def dma_tile(srd_, sbase, ldsreg, ldsoff):
        k(f"s_add_u32 s55, s{sbase}, {16*8192}")
        for rh in range(2):
            for ln in range(4):
                k(f"s_add_u32 m0, s{ldsreg}, {ldsoff + (rh*4+ln)*1024 - ln*128}")
                k(f"buffer_load_dwordx4 v8, {srd_}, s{sbase if rh == 0 else 55} offen offset:{ln*128} lds")
    BA = 64
    lvt = k.label(); lbd = k.label()
    k(f"s_lshl_b32 s61, s{S_WAVE}, 13")
    srd(k, 64, P_WK, 448*8192)
    k("s_cmp_eq_u32 s50, 1"); k(f"s_cbranch_scc1 {lvt}")
    k(f"s_lshr_b32 s53, s{S_WAVE}, 1"); k("s_lshl_b32 s53, s53, 5")
    k(f"s_and_b32 s54, s{S_WAVE}, 1"); k("s_lshl_b32 s54, s54, 2"); k("s_add_u32 s53, s53, s54")
    k("s_lshl_b32 s54, s48, 6"); k("s_add_u32 s53, s53, s54")
    k("s_lshl_b32 s54, s53, 13"); k("s_add_u32 s54, s54, s51")
    dma_tile("s[64:67]", 54, 61, 0)
    k(f"s_branch {lbd}")
    k.place(lvt)
    srd(k, 64, P_WO, 16*229376)
    k("v_lshrrev_b32 v9, 3, v0"); k("v_mul_u32_u24 v9, 896, v9"); k("v_and_b32 v11, 7, v0"); k("v_lshl_add_u32 v9, v11, 4, v9")
    k("s_mul_i32 s54, s49, 229376"); k("s_lshl_b32 s55, s48, 7"); k("s_add_u32 s54, s54, s55"); k(f"s_mul_i32 s55, s{S_WAVE}, {64*896}"); k("s_add_u32 s54, s54, s55")
    for i in range(8):
        k(f"s_add_u32 m0, s61, {i*1024}")
        k(f"buffer_load_dwordx4 v9, s[64:67], s54 offen lds")
        if i < 7: k(f"s_add_u32 s54, s54, {8*896}")
    k.place(lbd)
    def atile(j):
        i, t = j >> 1, j & 1
        k(f"s_add_u32 s54, s{S_WAVE}, {4*i}"); k("s_lshl_b32 s54, s54, 18"); k("s_add_u32 s54, s54, s51")
        if t: k(f"s_add_u32 s54, s54, {4*8192}")
        dma_tile("s[8:11]", 54, 60, (j & 1)*8192)
    def aread(j):
        for ks in range(8): k(f"ds_read_b128 {vr(256+j*32+ks*4,4)}, v{56+(ks&1)} offset:{(j&1)*8192 + (ks>>1)*1024}")
    if TL == 2: k("s_memrealtime s[70:71]")
    atile(0); atile(1)
    if TL == 2: k("s_memrealtime s[72:73]")
    k(f"s_lshl_b32 s46, s{sb}, 2"); k(f"s_add_u32 s46, s46, s{S_WAVE}")
    lo = k.label(); lk = k.label(); lv = k.label(); lj = k.label()
    def blk(base):
        k(f"s_sub_u32 s52, s46, {base}"); k("s_mul_i32 s53, s52, 4682"); k("s_lshr_b32 s53, s53, 16"); k("s_mul_i32 s54, s53, 14"); k("s_sub_u32 s54, s52, s54")
        k("s_lshl_b32 s52, s52, 10")
    k("s_cmp_ge_u32 s46, 812"); k(f"s_cbranch_scc1 {lv}")
    k("s_cmp_ge_u32 s46, 784"); k(f"s_cbranch_scc1 {lk}")
    k("s_cmp_ge_u32 s46, 392"); k(f"s_cbranch_scc1 {lo}")
    blk(0); srd(k, 64, P_BQ, 448*896); k("s_mov_b32 s55, 896"); k("s_lshl_b32 s53, s53, 4"); k("v_add_u32 v7, s53, v2"); k(f"s_add_u32 s52, s52, {L.WBQ}"); k(f"s_branch {lj}")
    k.place(lo)
    blk(392); srd(k, 64, P_BO, 448*896); k("s_mov_b32 s55, 896")
    k("s_and_b32 s56, s53, 1"); k("s_lshr_b32 s53, s53, 1"); k("s_lshl_b32 s53, s53, 5"); k("s_lshl_b32 s56, s56, 2"); k("s_add_u32 s53, s53, s56")
    k("v_add_u32 v7, s53, v4"); k(f"s_add_u32 s52, s52, {L.WBO}"); k(f"s_branch {lj}")
    k.place(lk)
    blk(784); srd(k, 64, P_BK, 448*56); k("s_mov_b32 s55, 56"); k("s_lshl_b32 s53, s53, 2"); k("v_add_u32 v7, s53, v4"); k(f"s_add_u32 s52, s52, {L.WBK}"); k(f"s_branch {lj}")
    k.place(lv)
    blk(812); srd(k, 64, P_BV, 448*56); k("s_mov_b32 s55, 56"); k("s_lshl_b32 s53, s53, 4"); k("v_add_u32 v7, s53, v2"); k(f"s_add_u32 s52, s52, {L.WBV}")
    k("s_cmp_ge_u32 s46, 840"); k(f"s_cselect_b32 s52, {L.SPARE[0]}, s52")
    k.place(lj)
    k("s_lshl_b32 s53, s54, 5"); k("v_lshlrev_b32 v12, 3, v3"); k("v_add_u32 v12, s53, v12"); k("v_mul_lo_u32 v12, v12, s55")
    k("v_lshlrev_b32 v11, 1, v7"); k("v_cmp_le_u32 vcc, s55, v11"); k("v_add_u32 v12, v12, v11"); k("v_mov_b32 v11, 0x7fffffff"); k("v_cndmask_b32 v12, v12, v11, vcc")
    k("s_mov_b32 s53, 0")
    for j in range(8):
        k(f"buffer_load_ushort v{48+j}, v12, s[64:67], s53 offen")
        if j < 7: k("s_add_u32 s53, s53, s55")
    k("s_waitcnt vmcnt(24)"); k("s_barrier")
    if TL == 2: k("s_memrealtime s[74:75]")
    lq2 = k.label(); lr2 = k.label()
    k("s_cmp_eq_u32 s50, 0"); k(f"s_cbranch_scc1 {lq2}")
    k("v_bfe_u32 v9, v0, 2, 2"); k("v_lshl_add_u32 v9, v3, 3, v9"); k("v_lshlrev_b32 v9, 7, v9"); k("v_and_b32 v11, 3, v0"); k("v_lshl_add_u32 v9, v11, 4, v9")
    for tt in range(4):
        for ks in range(8):
            for h in range(2):
                k(f"ds_read_b64_tr_b16 {vr(BA+(tt*8+ks)*4+2*h,2)}, v9 offset:{(32*ks+4*h)*128 + (32*(tt>>1)+4*(tt&1))*2}")
            if ks % 4 == 3: k("s_waitcnt lgkmcnt(4)")
    k(f"s_branch {lr2}")
    k.place(lq2)
    k("v_xor_b32 v11, 64, v10")
    for tt in range(4):
        for ks in range(8): k(f"ds_read_b128 {vr(BA+(tt*8+ks)*4,4)}, v{10+(ks&1)} offset:{tt*8192 + (ks>>1)*1024}")
        k("s_waitcnt lgkmcnt(4)")
    k.place(lr2)
    k("s_cmp_eq_u32 s50, 0")
    k(f"s_cselect_b32 s56, {hx(f2u(L.LOG2E/16))}, {hx(f2u(1.0))}")
    k(f"s_cselect_b32 s57, {L.WQ}, {L.WV}")
    k("s_mul_i32 s58, s49, 28"); k("s_lshl_b32 s59, s48, 2"); k("s_add_u32 s58, s58, s59")
    k(f"s_mul_i32 s58, s58, {14*1024}"); k("s_add_u32 s57, s57, s58")
    k(f"s_lshl_b32 s58, s{S_WAVE}, 10"); k(f"s_add_u32 s58, s58, {SLAB_LDS}"); k("v_add_u32 v9, s58, v6")
    ACC = 192
    fin = k.label()
    for i in range(4):
        if i == 3:
            k(f"s_cmp_ge_u32 s{S_WAVE}, 2"); k(f"s_cbranch_scc1 {fin}")
        if TL == 2 and i == 0: k("s_memrealtime s[76:77]")
        younger = 8 if i == 0 else 4
        k(f"s_waitcnt vmcnt({8+younger})"); aread(2*i)
        k(f"s_waitcnt vmcnt({younger})"); aread(2*i+1)
        k("s_waitcnt lgkmcnt(0)")
        if i < 3: atile(2*i+2); atile(2*i+3)
        if TL == 2 and i in (0, 2): k(f"s_memrealtime s[{78+i}:{79+i}]")
        for ks in range(8):
            for t in range(2):
                for tt in range(4):
                    d = ACC + (t*4+tt)*4
                    k(f"v_mfma_f32_16x16x32_bf16 {vr(d,4)}, {vr(256+i*64+t*32+ks*4,4)}, {vr(BA+(tt*8+ks)*4,4)}, {'0' if ks == 0 else vr(d,4)}")
        k(f"s_add_u32 s58, s{S_WAVE}, {4*i}"); k("s_lshl_b32 s58, s58, 10"); k("s_add_u32 s58, s58, s57")
        for tt in range(4):
            o = 224 + tt*4
            for t in range(2):
                d = ACC + (t*4+tt)*4
                for r in range(4): k(f"v_mul_f32 v{d+r}, s56, v{d+r}")
                k(f"v_cvt_pk_bf16_f32 v{o+2*t}, v{d}, v{d+1}"); k(f"v_cvt_pk_bf16_f32 v{o+2*t+1}, v{d+2}, v{d+3}")
            k(f"buffer_store_dwordx4 {vr(o,4)}, v6, {WS}, s58 offen sc1")
            k(f"ds_write_b128 v9, {vr(o,4)} offset:{tt*14*1024 + i*4096}")
            if tt < 3: k(f"s_add_u32 s58, s58, {14*1024}")
    k.place(fin)
    if TL == 2: k("s_memrealtime s[82:83]")
    nc = k.label()
    k("s_cmp_eq_u32 s50, 0"); k(f"s_cbranch_scc1 {nc}")
    for r in range(4): k(f"v_mov_b32 v{16+r}, -1")
    k(f"s_sub_u32 s46, s{sb}, 112"); k("s_lshl_b32 s46, s46, 2"); k(f"s_add_u32 s46, s46, s{S_WAVE}"); k("v_lshl_add_u32 v9, s46, 10, v6")
    full, rest = divmod(L.CLR_BYTES, 448*1024)
    k(f"v_cmp_gt_u32 vcc, {rest}, v9"); k("v_mov_b32 v10, 0x7fffffff"); k("v_cndmask_b32 v10, v10, v9, vcc")
    for l in range(2):
        for it in range(full + (1 if rest else 0)):
            k(f"s_mov_b32 s53, {L.HO[l] + L.MSTEP + it*448*1024}")
            k(f"buffer_store_dwordx4 v[16:19], v{9 if it < full else 10}, {WS}, s53 offen sc1")
    k.place(nc)
    for j in range(4): k(f"v_lshl_or_b32 v{12+j}, v{49+2*j}, 16, v{48+2*j}")
    k(f"buffer_store_dwordx4 v[12:15], v6, {WS}, s52 offen sc1")
    k("s_waitcnt vmcnt(0) lgkmcnt(0)"); k("s_barrier")
    tl(k, 14, 12, 0)
    if TL == 2:
        for j in range(7):
            k(f"v_mov_b32 v12, s{70+2*j}"); k(f"s_sub_u32 s46, s101, {4*(14-1-j)}"); k(f"buffer_store_dword v12, v13, {WS}, s46 offen")
        k("s_endpgm")
    wait_init(k, abort, 12)
    lz = k.label(); k(f"s_cmp_lg_u32 s{S_WAVE}, 0"); k(f"s_cbranch_scc1 {lz}")
    k(f"s_lshl_b32 s46, s{sb}, 7"); k(f"s_add_u32 s46, s46, {L.SF(0)}"); lane0_addr(k, 12, 13)
    k("s_mov_b64 exec, 1"); k(f"buffer_store_dword v13, v12, {WS}, s46 offen sc1"); k("s_mov_b64 exec, -1")
    k.place(lz)

def body_init(k, abort):
    lane_parts(k)
    srd(k, 8, P_X, L.XSZ)
    k("s_lshl_b32 s47, s59, 2"); k(f"s_add_u32 s47, s47, s{S_WAVE}")
    k("v_mul_u32_u24 v8, 896, v2"); k("v_lshl_add_u32 v8, v3, 4, v8")
    k(f"s_mul_i32 s48, s47, {16*896}")
    XP = 16; F = 72
    for ks in range(14): k(f"buffer_load_dwordx4 {vr(XP+4*ks,4)}, v8, s[8:11], s48 offen offset:{ks*64}")
    k("v_lshlrev_b32 v9, 7, v0"); k("s_lshl_b32 s48, s47, 10"); k("v_add_u32 v9, s48, v9"); k("v_mov_b32 v10, 0")
    k("s_mov_b64 exec, 0xff")
    for l in range(2):
        k(f"s_mov_b32 s53, {L.CNT[l]}"); k(f"buffer_store_dword v10, v9, {WS}, s53 offen sc1")
    k("s_mov_b64 exec, -1")
    nom = k.label()
    k("s_cmp_lg_u32 s59, 31"); k(f"s_cbranch_scc1 {nom}")
    srd(k, 8, P_MEM0, 7168)
    k(f"s_lshl_b32 s48, s{S_WAVE}, 6"); k("v_add_u32 v8, s48, v0")
    k("v_and_b32 v9, 3, v8"); k("v_bfe_u32 v10, v8, 2, 3"); k("v_bfe_u32 v11, v8, 5, 1"); k("v_lshrrev_b32 v12, 6, v8")
    k("v_mul_u32_u24 v10, 896, v10"); k("v_lshl_add_u32 v10, v12, 5, v10"); k("v_lshl_add_u32 v10, v9, 3, v10"); k("v_lshl_add_u32 v10, v11, 2, v10")
    k("v_lshlrev_b32 v13, 2, v8")
    for p in range(7): k(f"buffer_load_dword v{76+p}, v10, s[8:11], 0 offen offset:{p*128}")
    k("v_and_b32 v9, 7, v8"); k("v_mul_u32_u24 v9, 896, v9"); k("v_lshrrev_b32 v11, 3, v8"); k("v_lshl_add_u32 v9, v11, 4, v9"); k("v_lshlrev_b32 v14, 4, v8")
    k("buffer_load_dwordx4 v[84:87], v9, s[8:11], 0 offen"); k("buffer_load_dwordx4 v[88:91], v9, s[8:11], 0 offen offset:512")
    k("v_add_u32 v15, 4096, v14"); k("v_cmp_gt_u32 vcc, 7168, v15"); k("v_mov_b32 v11, 0x7fffffff"); k("v_cndmask_b32 v15, v11, v15, vcc")
    k("s_waitcnt vmcnt(0)")
    for p in range(7): k(f"v_min_u32 v{76+p}, -2, v{76+p}")
    for l in range(2):
        k(f"s_mov_b32 s48, {L.MEM[l]}")
        for p in range(7):
            if p == 4: k("s_add_u32 s48, s48, 4096")
            k(f"buffer_store_dword v{76+p}, v13, {WS}, s48 offen offset:{(p%4)*1024} sc1")
        k(f"s_mov_b32 s48, {L.MEMN[l]}")
        k(f"buffer_store_dwordx4 v[84:87], v14, {WS}, s48 offen sc1"); k(f"buffer_store_dwordx4 v[88:91], v15, {WS}, s48 offen sc1")
    k.place(nom)
    k("s_waitcnt vmcnt(0)"); k("s_barrier")
    if TL == 2: tl(k, 1, 12, 0)
    srd(k, 8, P_DBG, 256)
    lz = k.label(); k(f"s_cmp_lg_u32 s{S_WAVE}, 0"); k(f"s_cbranch_scc1 {lz}")
    k(f"v_mov_b32 v12, {DBG_INIT}"); k("v_mov_b32 v13, 1"); signal(k, "0", 12, 13, "s[8:11]")
    k.place(lz)
    for i in range(56):
        k(f"v_lshlrev_b32 v{F+2*i}, 16, v{XP+i}"); k(f"v_and_b32 v{F+2*i+1}, 0xffff0000, v{XP+i}")
    k(f"v_add_f32 v9, v{F}, v{F+1}"); k(f"v_add_f32 v10, v{F+2}, v{F+3}")
    for i in range(4, 112, 2):
        k(f"v_add_f32 v9, v9, v{F+i}"); k(f"v_add_f32 v10, v10, v{F+i+1}")
    k("v_add_f32 v9, v9, v10")
    xreduce_g(k, 9, 10, "v_add_f32")
    k(f"v_mul_f32 v9, {hx(f2u(1/448))}, v9")
    for i in range(112): k(f"v_sub_f32 v{F+i}, v{F+i}, v9")
    k(f"v_mul_f32 v10, v{F}, v{F}"); k(f"v_mul_f32 v11, v{F+1}, v{F+1}")
    for i in range(2, 112, 2):
        k(f"v_fmac_f32 v10, v{F+i}, v{F+i}"); k(f"v_fmac_f32 v11, v{F+i+1}, v{F+i+1}")
    k("v_add_f32 v10, v10, v11")
    xreduce_g(k, 10, 11, "v_add_f32")
    k(f"v_mov_b32 v11, {hx(f2u(1e-5))}"); k(f"v_fmac_f32 v11, {hx(f2u(1/448))}, v10"); k("v_rsq_f32 v11, v11")
    for i in range(112): k(f"v_mul_f32 v{F+i}, v{F+i}, v11")
    for i in range(56): k(f"v_cvt_pk_bf16_f32 v{XP+i}, v{F+2*i}, v{F+2*i+1}")
    k(f"s_mul_i32 s48, s47, {14*1024}"); k(f"s_add_u32 s48, s48, {L.XTA[0]}")
    for ks in range(14):
        if ks % 4 == 0 and ks: k("s_add_u32 s48, s48, 4096")
        k(f"buffer_store_dwordx4 {vr(XP+4*ks,4)}, v6, {WS}, s48 offen offset:{(ks%4)*1024} sc1")
    k("s_waitcnt vmcnt(0)")
    if TL == 2:
        tl(k, 2, 12, 0); k("s_endpgm")
    k("s_mov_b32 s48, s47")
    wait_init(k, abort, 12)
    k("s_lshr_b32 s46, s48, 1"); k("s_lshl_b32 s46, s46, 7"); k(f"s_add_u32 s46, s46, {L.RC(0)}"); k("v_mov_b32 v12, 0"); k("v_mov_b32 v13, 16")
    signal(k, "s46", 12, 13, WS)

TIMEOUT = 1 << 21
SLEEP = 8

def wait_words(k, soff, vaddr, vt, target, abort, ge=False, nap=None, srd_=WL, wg=True, far=None):
    lp = k.label("Lwc"); ok = k.label("Lwo")
    if wg:
        k(f"s_cmp_lg_u32 s{S_WAVE}, 0"); k(f"s_cbranch_scc1 {ok}")
    k(f"s_mov_b32 s47, {TIMEOUT}")
    if far is not None:
        lf = k.label("Lwf"); near = k.label("Lwn")
        k(f"s_mov_b32 s46, {L.PROG(0)}")
        k.place(lf)
        k(f"v_mov_b32 v{vt}, 0")
        k(f"buffer_load_dword v{vt}, v{vt}, {WL}, s46 offen sc1")
        k("s_sub_u32 s47, s47, 1"); k(f"s_cbranch_scc1 {abort}")
        k("s_waitcnt vmcnt(0)")
        k(f"v_cmp_gt_i32 vcc, {far}, v{vt}")
        k(f"s_cbranch_vccz {near}")
        k("s_sleep 48")
        k(f"s_branch {lf}")
        k.place(near)
    k.place(lp)
    k(f"buffer_load_dword v{vt}, v{vaddr}, {srd_}, {soff} offen sc1")
    k("s_sub_u32 s47, s47, 1"); k(f"s_cbranch_scc1 {abort}")
    k("s_waitcnt vmcnt(0)")
    k(f"v_cmp_{'gt' if ge else 'ne'}_u32 vcc, {target}, v{vt}")
    k(f"s_cbranch_vccz {ok}")
    k(f"s_sleep {SLEEP if nap is None else nap}")
    k(f"s_branch {lp}")
    k.place(ok)
    if wg: k("s_barrier")

def gate(k, base, nshard, target, need, mark, v128, vt, abort, nap=0, napfar=40):
    ok = k.label("Lgo"); lp = k.label("Lgl")
    k(f"s_cmp_lt_u32 {need}, s{mark}"); k(f"s_cbranch_scc1 {ok}")
    k(f"s_mov_b32 s70, {TIMEOUT}")
    k(v128)
    k.place(lp)
    for j in range(nshard):
        k(f"s_mov_b32 s{mark+1}, {base + j*8192}")
        k(f"buffer_load_dword v{vt+1+j}, v{vt}, {WL}, s{mark+1} offen sc1")
    k("s_sub_u32 s70, s70, 1"); k(f"s_cbranch_scc1 {abort}")
    k("s_waitcnt vmcnt(0)")
    if nshard == 4:
        k(f"v_min3_u32 v{vt+1}, v{vt+1}, v{vt+2}, v{vt+3}"); k(f"v_min_u32 v{vt+1}, v{vt+1}, v{vt+4}")
    k(f"v_cmp_ne_u32 vcc, {target}, v{vt+1}")
    k(f"s_ff1_i32_b64 s{mark}, vcc"); k(f"s_min_u32 s{mark}, s{mark}, 0x100")
    if nap:
        k(f"s_cmp_lt_u32 {need}, s{mark}"); k(f"s_cbranch_scc1 {ok}")
        far = k.label("Lgf")
        k(f"s_add_u32 s{mark+1}, s{mark}, 1"); k(f"s_cmp_gt_u32 {need}, s{mark+1}"); k(f"s_cbranch_scc1 {far}")
        k(f"s_sleep {nap}"); k(f"s_branch {lp}")
        k.place(far); k(f"s_sleep {napfar}"); k(f"s_branch {lp}")
    else:
        k(f"s_cmp_lt_u32 {need}, s{mark}"); k(f"s_cbranch_scc0 {lp}")
    k.place(ok)

def signal(k, soff, vz, vone, srd_=WL, lanes=1):
    k(f"s_mov_b64 exec, {lanes}")
    k(f"buffer_atomic_add v{vone}, v{vz}, {srd_}, {soff} offen sc1")
    k("s_mov_b64 exec, -1")

TL = 0
TLOFF = 0xF100000
def tl(k, idx, vt, per_layer=5):
    if not TL: return
    k("s_memrealtime s[84:85]"); k("s_lshl_b32 s101, s2, 2"); k(f"s_add_u32 s101, s101, s{S_WAVE}"); k("s_lshl_b32 s101, s101, 6")
    k(f"s_add_u32 s101, s101, {TLOFF + 4*idx}"); k("s_waitcnt lgkmcnt(0)")
    k(f"s_mul_i32 s85, s{S_LAYER}, {4*per_layer}"); k("s_add_u32 s101, s101, s85")
    k(f"v_mov_b32 v{vt}, s84"); k(f"v_mov_b32 v{vt+1}, 0")
    k(f"buffer_store_dword v{vt}, v{vt+1}, {WS}, s101 offen")

def code_touch(k, lab, nbytes, forward, v128, vd):
    h = k.label("Lpc")
    k("s_getpc_b64 s[82:83]"); k.place(h)
    k(f"s_add_u32 s82, s82, {lab}-{h}"); k(f"s_addc_u32 s83, s83, {0 if forward else -1}")
    if nbytes < 8192:
        k(f"v_min_u32 v{vd}, {nbytes-128}, v{v128}"); k(f"global_load_dword v{vd}, v{vd}, s[82:83]"); return
    for j in range(nbytes//8192):
        if j: k("s_add_u32 s82, s82, 8192"); k("s_addc_u32 s83, s83, 0")
        k(f"global_load_dword v{vd}, v{v128}, s[82:83]")

def lane0_addr(k, vz, vone):
    k(f"v_mov_b32 v{vz}, 0"); k(f"v_mov_b32 v{vone}, 1")

def layer_begin(k):
    srd(k, 12, P_WS, L.WS_BYTES); k(f"s_mov_b32 s{S_LAYER}, 0")
def layer_next(k, top):
    k(f"s_add_u32 s12, s{P_WS}, {L.LSTRIDE}"); k(f"s_addc_u32 s13, s{P_WS+1}, 0"); k("s_and_b32 s13, s13, 0xffff")
    k(f"s_mov_b32 s14, {L.WS_BYTES - L.LSTRIDE}")
    k(f"s_add_u32 s{S_LAYER}, s{S_LAYER}, 1"); k(f"s_cmp_lt_u32 s{S_LAYER}, 2"); k(f"s_cbranch_scc1 {top}")

def slab_request(k, sb):
    no = k.label(); k(f"s_cmp_eq_u32 s{S_LAYER}, 1"); k(f"s_cbranch_scc1 {no}")
    div7(k, 53, 54, sb)
    k("s_and_b32 s55, s53, 15"); k("s_lshr_b32 s53, s53, 4"); k("s_cmp_eq_u32 s53, 0"); k(f"s_cselect_b32 s57, {L.WQ}, {L.WV}")
    k("s_mul_i32 s58, s55, 28"); k("s_lshl_b32 s59, s54, 2"); k("s_add_u32 s58, s58, s59"); k(f"s_add_u32 s58, s58, s{S_WAVE}")
    k(f"s_mul_i32 s58, s58, {14*1024}"); k("s_add_u32 s57, s57, s58")
    for i in range(14):
        if i % 4 == 0 and i: k("s_add_u32 s57, s57, 4096")
        k(f"buffer_load_dwordx4 {vr(128+4*i,4)}, v1, {WS}, s57 offen offset:{(i%4)*1024} sc1")
    k.place(no)

def body_gemm(k, sb, abort):
    div7(k, 47, 48, sb)
    k("s_and_b32 s49, s47, 15")
    k("s_lshr_b32 s50, s47, 4")
    k("v_lshlrev_b32 v1, 4, v0")
    k("s_cmp_eq_u32 s50, 0")
    k(f"s_mov_b32 s56, {L.UC(0)}"); k(f"s_cselect_b32 s56, {L.QC(0)}, s56")
    have = k.label()
    k(f"s_cmp_eq_u32 s{S_LAYER}, 0"); k(f"s_cbranch_scc1 {have}")
    k(f"s_mul_i32 s58, s{S_WAVE}, {14*1024}"); k(f"s_add_u32 s58, s58, {SLAB_LDS}"); k("v_add_u32 v2, s58, v1")
    k("s_waitcnt vmcnt(0)"); k("s_barrier")
    for i in range(14): k(f"ds_write_b128 v2, {vr(128+4*i,4)} offset:{i*1024}")
    k.place(have)
    k(f"v_add_u32 v2, {SLAB_LDS}, v1")
    k("s_waitcnt lgkmcnt(0)"); k("s_barrier")
    for i in range(56):
        k(f"ds_read_b128 {vr(256+4*i,4)}, v2 offset:{i*1024}")
        if i % 12 == 11: k("s_waitcnt lgkmcnt(4)")
    lane0_addr(k, 4, 5)
    k(f"s_lshl_b32 s58, s{S_WAVE}, 7"); k("s_add_u32 s56, s56, s58")
    k(f"s_and_b32 s58, s{sb}, 3"); k("s_lshl_b32 s58, s58, 13"); k("s_add_u32 s56, s56, s58")
    k("s_mov_b32 s96, 0"); k(f"s_mov_b32 s98, s{S_WAVE}")
    def xreg(buf, i):
        if buf == 0: return 16 + 4*i
        return 128 + 4*i if i < 20 else 256 + 224 + 4*(i-20)
    def loadx(buf):
        k("s_min_u32 s99, s98, 63")
        gate(k, L.RC(0), 1, 32, "s99", 96, "v_lshlrev_b32 v6, 3, v1", 6, abort, nap=3, napfar=3)
        k("s_add_u32 s98, s98, 4")
        k("s_mov_b32 s53, s52")
        for i in range(28):
            if i % 4 == 0 and i: k("s_add_u32 s53, s53, 4096")
            k(f"buffer_load_dwordx4 {vr(xreg(buf,i),4)}, v1, {WL}, s53 offen offset:{(i%4)*1024} sc1")
        k(f"s_add_u32 s52, s52, {4*28*1024}")
    k(f"s_mul_i32 s52, s{S_WAVE}, {28*1024}"); k(f"s_add_u32 s52, s52, {L.XTA[0]}")
    loadx(0)
    k("s_waitcnt lgkmcnt(0)"); k("s_barrier")
    tl(k, 2, 6)
    ACC = 208; O = 240
    lq = k.label(); end = k.label()
    k("s_cmp_eq_u32 s50, 0")
    k(f"s_cbranch_scc1 {lq}")
    for typ in (1, 0):
        if typ == 0: k.place(lq)
        k(f"s_lshl_b32 s54, s{S_WAVE}, 4"); k("s_add_u32 s54, s54, s49"); k(f"s_mul_i32 s54, s54, {28*1024}")
        if typ == 1:
            k("s_lshl_b32 s55, s48, 12"); k("s_add_u32 s54, s54, s55"); k(f"s_add_u32 s54, s54, {L.UU[0]}")
        else:
            k("s_lshl_b32 s55, s48, 11"); k("s_add_u32 s54, s54, s55"); k(f"s_add_u32 s54, s54, {L.QP[0]}")
        k("s_mov_b32 s51, 8")
        lp = k.label(); k.place(lp)
        for buf in range(2):
            k("s_waitcnt vmcnt(0)")
            for ks in range(14):
                for t in range(2):
                    for tt in range(4):
                        d = ACC + (t*4+tt)*4
                        c = "0" if ks == 0 else vr(d,4)
                        x = vr(xreg(buf, t*14+ks),4); w = vr(256+(tt*14+ks)*4,4)
                        if typ == 1: k(f"v_mfma_f32_16x16x32_bf16 {vr(d,4)}, {x}, {w}, {c}")
                        else:        k(f"v_mfma_f32_16x16x32_bf16 {vr(d,4)}, {w}, {x}, {c}")
            for u in range(4):
                if typ == 1: d0, d1 = ACC + u*4, ACC + (4+u)*4; off = u*1024; so = "s54"
                else:
                    t, pp = u >> 1, u & 1
                    d0, d1 = ACC + (t*4+2*pp)*4, ACC + (t*4+2*pp+1)*4; off = pp*1024; so = "s54" if t == 0 else "s55"
                    if u == 2: k(f"s_add_u32 s55, s54, {14*1024}")
                o = O + 4*u
                k(f"v_cvt_pk_bf16_f32 v{o}, v{d0}, v{d0+1}"); k(f"v_cvt_pk_bf16_f32 v{o+1}, v{d0+2}, v{d0+3}")
                k(f"v_cvt_pk_bf16_f32 v{o+2}, v{d1}, v{d1+1}"); k(f"v_cvt_pk_bf16_f32 v{o+3}, v{d1+2}, v{d1+3}")
                k(f"buffer_store_dwordx4 {vr(o,4)}, v1, {WL}, {so} offen offset:{off} sc1")
            k(f"s_add_u32 s54, s54, {4*16*28*1024}")
            k("s_waitcnt vmcnt(0)")
            signal(k, "s56", 4, 5)
            loadx(1-buf)
            if TL and buf == 0:
                lz = k.label(); k("s_cmp_lg_u32 s51, 8"); k(f"s_cbranch_scc1 {lz}"); tl(k, 3, 6); k.place(lz)
            k("s_add_u32 s56, s56, 512")
        k("s_sub_u32 s51, s51, 1"); k("s_cmp_lg_u32 s51, 0"); k(f"s_cbranch_scc1 {lp}")
        if typ == 1: k(f"s_branch {end}")
    k.place(end)
    k("s_waitcnt vmcnt(0)")

def gen_empty():
    k = K("empty_kernel", 32, 32, 48)
    k("s_endpgm")
    return k
```

```python
KB = 1024
WSZ = 16*28*14*KB
XSZ = 2048*448*2
QSZ = 64*16*28*KB
off = 0
def take(n, al=4096):
    global off
    off = (off + al - 1)//al*al
    o = off; off += n; return o
WQ = take(WSZ); WV = take(WSZ)
WBQ = take(392*KB); WBO = take(392*KB); WBK = take(28*KB); WBV = take(28*KB)
XR1 = take(XSZ)
MEMSZ = 7168; P1 = 10240
NMC = 1; NPC = 1
MSTEP = NMC*MEMSZ; PSZ = NPC*P1
HO_SZ = 65*MSTEP + 64*PSZ
CLR_BYTES = 64*MSTEP + 64*PSZ
VMSZ = 4*28*KB
LB0 = take(0, 1 << 16)
_XTA = take(XSZ); _XTB = take(XSZ); _XRA = take(XSZ)
_QP = take(QSZ); _UU = take(QSZ)
_HO = take(HO_SZ); _MEMN = take(64*MEMSZ); _VM = take(64*VMSZ)
_KI = take(64*2048 + 4096); _VI = take(64*2048 + 4096)
_PART = take(64*4*4*8192)
_SPARE = take(8192)
_OLATE = take(256*896)
_CNT = take(1024*128)
LSTRIDE = take(0, 1 << 16) - LB0
off = LB0 + 2*LSTRIDE
WS_USED = off
two = lambda x: [x, x + LSTRIDE]
XTA, XTB, XRA, QP, UU, HO, MEMN, VM, KI, VI, PARTS, CNT = map(two, (_XTA, _XTB, _XRA, _QP, _UU, _HO, _MEMN, _VM, _KI, _VI, _PART, _CNT))
SPARE = two(_SPARE); OLATE = two(_OLATE)
MEM = HO
PIM = [h + 65*MSTEP for h in HO]
XR = [XRA[0], XR1, XRA[1]]
CNT_BYTES = 1024*128
def UC(l): return CNT[l] + 0*128
def QC(l): return CNT[l] + 256*128
def PC(l): return CNT[l] + 512*128
def SC(l): return CNT[l] + 576*128
def RC(l): return CNT[l] + 640*128
def SF(l): return CNT[l] + 768*128
def OF(l): return CNT[l] + 704*128
def AX(l): return CNT[l] + 1004*128
def PROG(l): return CNT[l] + 1000*128
def FIN(l): return CNT[l] + 1001*128
def A3C(l): return CNT[l] + 1002*128
WS_BYTES = 268435456
assert WS_USED <= 0xF000000
LOG2E = 1.4426950408889634
def col(tau, m): return 32*(tau>>1) + 8*(m>>2) + 4*(tau&1) + (m&3)
def sigma(e): return 4*((e>>1)&1) + 2*(e>>2) + (e&1)
DIRM = 54
DIRX = 60
```

```python
import sys
import chain, gen
from chain import *
from attn import *

NAW = 36
assert NAW + N7 == 112 and N6 + N4 + N2 == 112
def gen_main():
    k = K("main_kernel", nsgpr=102)
    prologue(k, 256)
    layer_begin(k)
    ex = f"Lexit_{k.name}"
    bulk = k.label("Lbulk")
    gen.tl(k, 0, 2)
    k("s_and_b32 s46, s2, 7"); k("s_lshr_b32 s59, s2, 3"); k("s_cmp_lg_u32 s46, 0"); k(f"s_cbranch_scc1 {bulk}")
    chain_roles(k, ex)
    k.place(bulk)
    k("s_sub_u32 s100, s46, 1"); k("s_lshl_b32 s100, s100, 5"); k("s_add_u32 s100, s100, s59")
    body_slab(k, 100, ex)
    gen.tl(k, 15, 16, 0)
    top = k.label("Ltop"); k.place(top)
    body_gemm(k, 100, ex)
    gen.tl(k, 1, 2)
    nxt = k.label("Lnx"); again = k.label("Lag"); l7 = k.label("L7"); lq = k.label("Lq"); l4 = k.label("L4"); l2 = k.label("L2")
    k("s_cmp_lt_u32 s100, 112"); k(f"s_cbranch_scc1 {lq}")
    k(f"s_cmp_ge_u32 s100, {112+NAW}"); k(f"s_cbranch_scc1 {l7}")
    k("s_sub_u32 s93, s100, 112")
    k.place(again)
    k("s_lshr_b32 s60, s93, 2"); k("s_and_b32 s71, s93, 3")
    body_attnA4(k, ex)
    gen.tl(k, 3, 2)
    k(f"s_add_u32 s93, s93, {NAW}"); k("s_cmp_lt_u32 s93, 256"); k(f"s_cbranch_scc1 {again}")
    slab_request(k, 100)
    k(f"s_branch {nxt}")
    k.place(l7); k(f"s_sub_u32 s60, s100, {112+NAW}"); body_attnB(k, 7, ex, top); gen.tl(k, 5, 2); k(f"s_branch {nxt}")
    k.place(lq)
    k(f"s_cmp_ge_u32 s100, {N6+N4}"); k(f"s_cbranch_scc1 {l2}")
    k(f"s_cmp_ge_u32 s100, {N6}"); k(f"s_cbranch_scc1 {l4}")
    k("s_mov_b32 s60, s100"); body_attnB(k, 6, ex, top); gen.tl(k, 5, 2); k(f"s_branch {nxt}")
    k.place(l4); k(f"s_sub_u32 s60, s100, {N6}"); body_attnB(k, 4, ex, top); gen.tl(k, 5, 2); k(f"s_branch {nxt}")
    k.place(l2); k(f"s_sub_u32 s60, s100, {N6+N4}"); body_attnB(k, 2, ex, top); gen.tl(k, 5, 2)
    k.place(nxt)
    layer_next(k, top)
    epilogue(k)
    return k

if __name__ == "__main__":
    for a in sys.argv[2:]:
        n, v = a.split('='); setattr(gen if n in ('TL','SLEEP','TLBW') else chain, n, int(v))
    hdr = open('interleave_layers__memory_aug_recurrent_mem_tr__grouped_kv_mqa__prompt.s.ref').read().split("; Override launch")[0]
    ks = [gen_main()]
    lds = max(SLAB_END, CHAIN_LDS, A4_LDS, B_LDS)
    launches = [("main_kernel",256,256,lds)]
    open(sys.argv[1], "w").write(emit_file(ks, launches, hdr))
```

```python
from gen import *
import gen

NEG = hx(f2u(-1e9*L.LOG2E))
NINF = hx(f2u(-3.0e38))
OOB = 0x40000000

def mf16(d, a, b, c): return f"v_mfma_f32_16x16x32_bf16 {vr(d,4)}, {vr(a,4)}, {vr(b,4)}, {'0' if c is None else vr(c,4)}"
def mf32(d, a, b, c): return f"v_mfma_f32_32x32x16_bf16 {vr(d,16)}, {vr(a,4)}, {vr(b,4)}, {'0' if c is None else vr(c,16)}"

def loads(k, regs, vaddr, sbase, stmp, flags="", WS=WL):
    cur = sbase
    for n, r in enumerate(regs):
        if n % 4 == 0 and n:
            k(f"s_add_u32 s{stmp}, s{cur}, 4096"); cur = stmp
        k(f"buffer_load_dwordx4 {vr(r,4)}, v{vaddr}, {WS}, s{cur} offen offset:{(n%4)*1024}{flags}")

def ln_epilogue(k, acc, nq, XRES, TMP, PK, V_ST, STATS, res_store, xn_store, done_label):
    def pairs(body):
        for pp in range(4):
            lab = None
            if pp == 3:
                lab = k.label(); k(f"s_cmp_ge_u32 s{S_WAVE}, 2"); k(f"s_cbranch_scc1 {lab}")
            body(pp)
            if lab: k.place(lab)
    SUM = TMP; T = TMP + 4
    for q in range(nq): k(f"v_mov_b32 v{SUM+q}, 0")
    def b1(pp):
        for q in range(nq):
            x = XRES(pp, q)
            for t in range(2):
                a = acc(pp, q, t)
                for h in range(2):
                    k(f"v_lshlrev_b32 v{T}, 16, v{x+2*t+h}"); k(f"v_and_b32 v{T+1}, 0xffff0000, v{x+2*t+h}")
                    k(f"v_add_f32 v{a+2*h}, v{a+2*h}, v{T}"); k(f"v_add_f32 v{a+2*h+1}, v{a+2*h+1}, v{T+1}")
                    k(f"v_cvt_pk_bf16_f32 v{x+2*t+h}, v{a+2*h}, v{a+2*h+1}")
                if True:
                    k(f"v_add_f32 v{T}, v{a}, v{a+1}"); k(f"v_add_f32 v{T+1}, v{a+2}, v{a+3}")
                    k(f"v_add_f32 v{SUM+q}, v{SUM+q}, v{T}"); k(f"v_add_f32 v{SUM+q}, v{SUM+q}, v{T+1}")
            res_store(pp, q, x)
    pairs(b1)
    k(f"s_cmp_eq_u32 s{S_LAYER}, 1"); k(f"s_cbranch_scc1 {done_label}")
    def exchange(off):
        for q in range(nq): xreduce_g(k, SUM+q, T, "v_add_f32")
        for q in range(nq): k(f"ds_write_b32 v{V_ST}, v{SUM+q} offset:{STATS+off+q*256}")
        k("s_waitcnt lgkmcnt(0)"); k("s_barrier")
        for q in range(nq): k(f"ds_read_b128 {vr(PK+4*q,4)}, v{V_ST+1} offset:{STATS+off+q*256}")
        k("s_waitcnt lgkmcnt(0)")
        for q in range(nq):
            k(f"v_add_f32 v{PK+4*q}, v{PK+4*q}, v{PK+4*q+1}"); k(f"v_add_f32 v{PK+4*q+2}, v{PK+4*q+2}, v{PK+4*q+3}")
            k(f"v_add_f32 v{SUM+q}, v{PK+4*q}, v{PK+4*q+2}")
    exchange(0)
    MU = TMP + 2
    for q in range(nq):
        k(f"v_mul_f32 v{MU+q}, {hx(f2u(1/448))}, v{SUM+q}"); k(f"v_mov_b32 v{SUM+q}, 0")
    def b2(pp):
        for q in range(nq):
            for t in range(2):
                a = acc(pp, q, t)
                for r in range(4):
                    k(f"v_sub_f32 v{a+r}, v{a+r}, v{MU+q}"); k(f"v_fmac_f32 v{SUM+q}, v{a+r}, v{a+r}")
    pairs(b2)
    exchange(512)
    for q in range(nq):
        k(f"v_mov_b32 v{MU+q}, {hx(f2u(1e-5))}"); k(f"v_fmac_f32 v{MU+q}, {hx(f2u(1/448))}, v{SUM+q}"); k(f"v_rsq_f32 v{MU+q}, v{MU+q}")
    def b3(pp):
        for q in range(nq):
            o = PK + 4*((pp*nq + q) & 1)
            for t in range(2):
                a = acc(pp, q, t)
                for r in range(4): k(f"v_mul_f32 v{a+r}, v{a+r}, v{MU+q}")
                k(f"v_cvt_pk_bf16_f32 v{o+2*t}, v{a}, v{a+1}"); k(f"v_cvt_pk_bf16_f32 v{o+2*t+1}, v{a+2}, v{a+3}")
            xn_store(pp, q, o)
    pairs(b3)

A4_PX = 0; A4_PM = 8192; A4_DUM = 10240; A4_ST = 12288; A4_XL = 13312; A4_LDS = A4_XL + 8192

def softmax_seg(k, S):
    k(f"v_mov_b32 v11, {NEG}"); k(f"v_mov_b32 v12, {NINF}")
    for r in range(4):
        k(f"v_cndmask_b32 v{S+4+r}, v12, v{S+4+r}, s[80:81]")
        k(f"v_cndmask_b32 v{S+16+r}, v12, v{S+16+r}, s[80:81]")
    grp = [list(range(S, S+8)), list(range(S+8, S+20))]
    MX = [36, 37]; T = 38
    for q in range(2):
        m = S+4 if q == 0 else S+16
        k(f"v_max3_f32 v{MX[q]}, v{52+q}, v{m}, v{m+1}"); k(f"v_max3_f32 v{MX[q]}, v{MX[q]}, v{m+2}, v{m+3}")
    for q in range(2):
        k(f"v_mov_b32 v{T+q}, v{MX[q]}")
    for q in range(2): k(f"v_permlane16_swap_b32 v{MX[q]}, v{T+q}")
    for q in range(2): k(f"v_max_f32 v{MX[q]}, v{MX[q]}, v{T+q}")
    for q in range(2): k(f"v_mov_b32 v{T+q}, v{MX[q]}")
    for q in range(2): k(f"v_permlane32_swap_b32 v{MX[q]}, v{T+q}")
    for q in range(2): k(f"v_max_f32 v{MX[q]}, v{MX[q]}, v{T+q}")
    for q in range(2):
        for x in grp[q]: k(f"v_sub_f32 v{x}, v{x}, v{MX[q]}")
        for x in grp[q]: k(f"v_exp_f32 v{x}, v{x}")
    for q in range(2):
        g = grp[q]
        k(f"v_add_f32 v{MX[q]}, v{g[0]}, v{g[1]}"); k(f"v_add_f32 v{T+q}, v{g[2]}, v{g[3]}")
        for i in range(4, len(g), 2):
            k(f"v_add_f32 v{MX[q]}, v{MX[q]}, v{g[i]}"); k(f"v_add_f32 v{T+q}, v{T+q}, v{g[i+1]}")
        k(f"v_add_f32 v{MX[q]}, v{MX[q]}, v{T+q}")
    for q in range(2): k(f"v_mov_b32 v{T+q}, v{MX[q]}")
    for q in range(2): k(f"v_permlane16_swap_b32 v{MX[q]}, v{T+q}")
    for q in range(2): k(f"v_add_f32 v{MX[q]}, v{MX[q]}, v{T+q}")
    for q in range(2): k(f"v_mov_b32 v{T+q}, v{MX[q]}")
    for q in range(2): k(f"v_permlane32_swap_b32 v{MX[q]}, v{T+q}")
    for q in range(2): k(f"v_add_f32 v{MX[q]}, v{MX[q]}, v{T+q}")
    for q in range(2): k(f"v_rcp_f32 v{MX[q]}, v{MX[q]}")
    for q in range(2):
        for x in grp[q]: k(f"v_mul_f32 v{x}, v{x}, v{MX[q]}")
    W = 40
    k(f"v_cvt_pk_bf16_f32 v{W}, v{S}, v{S+1}"); k(f"v_cvt_pk_bf16_f32 v{W+1}, v{S+2}, v{S+3}"); k(f"v_mov_b64 {vr(W+2,2)}, 0")
    k(f"v_cvt_pk_bf16_f32 v{W+4}, v{S+8}, v{S+9}"); k(f"v_cvt_pk_bf16_f32 v{W+5}, v{S+10}, v{S+11}")
    k(f"v_cvt_pk_bf16_f32 v{W+6}, v{S+12}, v{S+13}"); k(f"v_cvt_pk_bf16_f32 v{W+7}, v{S+14}, v{S+15}")
    k(f"v_cvt_pk_bf16_f32 v{W+8}, v{S+4}, v{S+5}"); k(f"v_cvt_pk_bf16_f32 v{W+9}, v{S+6}, v{S+7}")
    k(f"v_cvt_pk_bf16_f32 v{W+10}, v{S+16}, v{S+17}"); k(f"v_cvt_pk_bf16_f32 v{W+11}, v{S+18}, v{S+19}")

def body_attnA4(k, abort):
    U = 256; XK = 256+128; VMR = 256+128; MK = 256+160; Q = 64; XRS = 176; S = 16; P = 16; OUT = 192
    k("v_lshlrev_b32 v1, 4, v0"); k("v_and_b32 v2, 15, v0"); k("v_lshrrev_b32 v3, 4, v0")
    k("v_lshlrev_b32 v4, 2, v3")
    for r in range(4):
        k(f"v_add_u32 v5, {r}, v4"); k(f"v_cmp_le_u32 s[{72+2*r}:{73+2*r}], v5, v2")
    k("v_cmp_gt_u32 s[80:81], 2, v3")
    k("v_bfe_u32 v5, v0, 1, 1"); k("v_lshlrev_b32 v5, 2, v5"); k("v_bfe_u32 v6, v0, 2, 1"); k("v_lshl_add_u32 v5, v6, 1, v5")
    k("v_and_b32 v6, 1, v0"); k("v_add_u32 v5, v5, v6"); k("v_lshlrev_b32 v5, 4, v5"); k("v_lshl_add_u32 v5, v3, 7, v5")
    k(f"s_lshl_b32 s46, s{S_WAVE}, 11"); k("v_add_u32 v6, s46, v1")
    k(f"s_lshl_b32 s46, s{S_WAVE}, 8"); k(f"s_add_u32 s46, s46, {A4_PM}")
    k("v_lshlrev_b32 v7, 4, v2"); k("v_lshl_add_u32 v7, v3, 3, v7"); k("v_add_u32 v7, s46, v7")
    k(f"v_mov_b32 v8, {A4_DUM}"); k("v_cndmask_b32 v7, v8, v7, s[80:81]")
    k(f"s_lshl_b32 s61, s{S_WAVE}, 2"); k(f"s_cmp_eq_u32 s{S_WAVE}, 3"); k("s_cselect_b32 s61, 11, s61")
    k("s_lshl_b32 s48, s60, 7"); k(f"s_add_u32 s49, s48, {L.UC(0)}")
    k("v_and_b32 v12, 7, v0"); k("v_lshlrev_b32 v12, 13, v12")
    wait_words(k, "s49", 12, 13, 28, abort)
    k(f"s_mul_i32 s46, s60, {28*1024}"); k(f"s_add_u32 s46, s46, {L.XTA[0]}")
    loads(k, [XK+4*i for i in range(28)], 1, 46, 47, " sc1")
    k("s_lshl_b32 s63, s60, 2"); k("s_add_u32 s63, s63, s71"); k("s_lshl_b32 s63, s63, 2")
    k(f"s_add_u32 s46, s63, s{S_WAVE}"); k(f"s_mul_i32 s46, s46, {28*1024}"); k(f"s_add_u32 s46, s46, {L.QP[0]}")
    loads(k, [Q+4*i for i in range(28)], 1, 46, 47, " sc1")
    k(f"s_mul_i32 s64, s63, {28*1024}"); k("s_lshl_b32 s46, s61, 11"); k("s_add_u32 s64, s64, s46"); k(f"s_add_u32 s64, s64, {L.UU[0]}")
    k(f"s_mul_i32 s65, s63, {7*1024}"); k("s_add_u32 s65, s65, s46"); k(f"s_add_u32 s65, s65, {L.VM[0]}")
    k("v_and_b32 v11, 7, v0"); k("v_bfe_u32 v12, v0, 3, 1")
    k("v_mul_u32_u24 v8, 896, v11"); k("v_lshl_add_u32 v8, v3, 4, v8"); k("v_lshl_add_u32 v8, v12, 6, v8")
    k("v_lshlrev_b32 v13, 4, v11"); k("v_lshl_add_u32 v13, v3, 7, v13"); k("v_lshl_add_u32 v15, v12, 15, v13"); k("v_lshl_add_u32 v13, v12, 9, v13")
    k("v_lshlrev_b32 v14, 4, v11"); k("v_lshl_add_u32 v14, v3, 8, v14"); k("v_lshl_add_u32 v14, v12, 10, v14")
    k(f"s_lshl_b32 s46, s{S_WAVE}, 2"); k("v_lshlrev_b32 v10, 4, v11"); k("v_add_u32 v9, s46, v10")
    k(f"s_cmp_ge_u32 s{S_WAVE}, 2"); k("s_cselect_b32 s46, 1, 2"); k("v_cmp_ne_u32 s[82:83], s46, v12")
    k("s_lshl_b32 s62, s60, 2"); k("s_add_u32 s62, s62, s71"); k(f"s_mul_i32 s62, s62, {8*896}"); k("s_lshl_b32 s46, s61, 6"); k("s_add_u32 s62, s62, s46")
    k(f"s_add_u32 s8, s{P_WS}, {L.XR1}"); k(f"s_addc_u32 s9, s{P_WS+1}, 0"); k(f"s_cmp_eq_u32 s{S_LAYER}, 0")
    k(f"s_cselect_b32 s8, s{P_X}, s8"); k(f"s_cselect_b32 s9, s{P_X+1}, s9"); k("s_and_b32 s9, s9, 0xffff")
    k(f"s_mov_b32 s10, {L.XSZ}"); k("s_mov_b32 s11, 0x20000")
    k("s_waitcnt vmcnt(28)")
    for hh in range(4):
        k(f"s_add_u32 s46, s64, {hh*28*1024}")
        loads(k, [U+(hh*8+i)*4 for i in range(8)], 1, 46, 47, " sc1")
    for j in range(2):
        k(f"buffer_load_dwordx4 {vr(XRS+4*j,4)}, v8, s[8:11], s62 offen offset:{j*128} sc1")
    k("s_waitcnt vmcnt(34)")
    for ks in range(14):
        c = lambda i: None if ks == 0 else S+4*i
        k(mf16(S+0, XK+4*ks, Q+4*ks, c(0)))
        k(mf16(S+8, XK+4*ks, Q+4*(14+ks), c(2)))
        k(mf16(S+12, XK+4*(14+ks), Q+4*(14+ks), c(3)))
    k(f"v_mov_b32 v11, {NEG}")
    for r in range(4):
        k(f"v_cndmask_b32 v{S+r}, v11, v{S+r}, s[{72+2*r}:{73+2*r}]")
        k(f"v_cndmask_b32 v{S+12+r}, v11, v{S+12+r}, s[{72+2*r}:{73+2*r}]")
    k(f"v_max3_f32 v52, v{S}, v{S+1}, v{S+2}"); k(f"v_max_f32 v52, v52, v{S+3}")
    k(f"v_max3_f32 v53, v{S+8}, v{S+9}, v{S+10}")
    for i in (11, 13): k(f"v_max3_f32 v53, v53, v{S+i}, v{S+i+1}")
    k(f"v_max_f32 v53, v53, v{S+15}")
    k(f"s_mov_b32 s49, {L.PROG(0)}"); k("s_add_u32 s50, s60, 2"); k("s_sub_u32 s51, s60, 1"); k(f"s_cmp_ge_u32 s60, {L.DIRM}"); k("s_cselect_b32 s50, s51, s50")
    k("v_mov_b32 v54, 0"); k("s_waitcnt vmcnt(0)"); k("s_sub_u32 s51, s50, 2")
    wait_words(k, "s49", 54, 55, "s50", abort, ge=True, nap=1, far="s51")
    k(f"s_mul_i32 s52, s60, {L.MEMSZ}"); k(f"s_add_u32 s52, s52, {L.MEMN[0]}"); k("s_add_u32 s53, s52, 4096"); k(f"s_mov_b32 s70, {TIMEOUT}")
    MV = 192
    lmk = k.label("Lmk"); k.place(lmk)
    for ks in range(14): k(f"buffer_load_dwordx4 {vr(MV+4*ks,4)}, v5, {WL}, s{52 if ks < 8 else 53} offen offset:{(ks%8)*512} sc1")
    k("s_sub_u32 s70, s70, 1"); k(f"s_cbranch_scc1 {abort}")
    for ks in range(14):
        k(f"s_waitcnt vmcnt({13-ks})")
        c = lambda i: None if ks == 0 else S+4*i
        k(mf16(S+4, MV+4*ks, Q+4*ks, c(1)))
        k(f"v_max3_u32 v54, v{MV+4*ks}, v{MV+4*ks+1}, {'v54' if ks else f'v{MV}'}")
        k(mf16(S+16, MV+4*ks, Q+4*(14+ks), c(4)))
        k(f"v_max3_u32 v54, v{MV+4*ks+2}, v{MV+4*ks+3}, v54")
    k("v_cmp_eq_u32 vcc, -1, v54"); k(f"s_cbranch_vccnz {lmk}")
    gen.tl(k, 2, 54)
    VV = 120
    loads(k, [VV+4*i for i in range(8)], 1, 65, 47, " sc1")
    for i in range(32): k(f"v_mov_b64 {vr(OUT+2*i,2)}, 0")
    k(f"s_mul_i32 s46, s{S_WAVE}, {14*1024}"); k(f"s_add_u32 s46, s46, {L.WBK}")
    assert L.WBV == L.WBK + 28*1024
    loads(k, [Q+4*i for i in range(14)], 1, 46, 47, " sc1", WS)
    softmax_seg(k, S)
    W = 40
    k(f"ds_write_b128 v6, {vr(W,4)}"); k(f"ds_write_b128 v6, {vr(W+4,4)} offset:1024")
    k(f"ds_write_b64 v7, {vr(W+8,2)}"); k(f"ds_write_b64 v7, {vr(W+10,2)} offset:1024")
    k("s_waitcnt lgkmcnt(0)"); k("s_barrier")
    for i in range(8): k(f"ds_read_b128 {vr(P+4*i,4)}, v1 offset:{A4_PX+i*1024}")
    for q in range(2): k(f"ds_read_b128 {vr(P+32+4*q,4)}, v1 offset:{A4_PM+q*1024}")
    k("s_lshl_b32 s66, s60, 17"); k("s_lshl_b32 s46, s71, 13"); k("s_add_u32 s66, s66, s46"); k("s_lshl_b32 s46, s61, 9"); k("s_add_u32 s66, s66, s46")
    k(f"s_add_u32 s66, s66, {L.PARTS[0]}"); k("s_add_u32 s67, s66, 65536")
    k("s_waitcnt lgkmcnt(0)")
    gen.tl(k, 4, 56)
    skip = k.label()
    for pp in range(4):
        if pp == 3:
            k(f"s_cmp_ge_u32 s{S_WAVE}, 2"); k(f"s_cbranch_scc1 {skip}")
        for hh in range(4):
            for t in range(2):
                for q in range(2):
                    i = 2*pp + t; o = OUT + (i*2 + q)*4
                    k(mf16(o, U+(hh*8+i)*4, P + (hh*2+q)*4, o))
    k.place(skip)
    lvm = k.label("Lvm"); lvk = k.label("Lvk")
    k.place(lvm)
    k("s_waitcnt vmcnt(0)")
    k(f"v_max3_u32 v56, v{VV}, v{VV+1}, v{VV+2}")
    for i in range(3, 23, 2): k(f"v_max3_u32 v56, v56, v{VV+i}, v{VV+i+1}")
    k(f"v_max_u32 v56, v56, v{VV+23}"); k(f"v_max3_u32 v57, v{VV+24}, v{VV+25}, v{VV+26}")
    for i in (27, 29): k(f"v_max3_u32 v57, v57, v{VV+i}, v{VV+i+1}")
    k(f"v_max_u32 v57, v57, v{VV+31}")
    k(f"s_cmp_ge_u32 s{S_WAVE}, 2"); k("s_cselect_b32 s46, 0, -1"); k("v_and_b32 v57, s46, v57"); k("v_max_u32 v56, v56, v57")
    k("v_cmp_eq_u32 vcc, -1, v56"); k(f"s_cbranch_vccz {lvk}")
    k("s_sub_u32 s70, s70, 1"); k(f"s_cbranch_scc1 {abort}")
    loads(k, [VV+4*i for i in range(8)], 1, 65, 47, " sc1")
    k(f"s_branch {lvm}")
    k.place(lvk)
    gen.tl(k, 5, 56)
    for i in range(8):
        for q in range(2):
            o = OUT + (i*2 + q)*4
            k(mf16(o, VV+4*i, P + (8+q)*4, o))
    skip = k.label()
    for pp in range(4):
        if pp == 3:
            k(f"s_cmp_ge_u32 s{S_WAVE}, 2"); k(f"s_cbranch_scc1 {skip}")
        pack_store(k, OUT, pp, 56 if pp & 1 else 128)
    k.place(skip)
    gen.tl(k, 11, 56, 2)
    direct = k.label("Ldir")
    k("s_cmp_ge_u32 s60, 62"); k(f"s_cbranch_scc1 {direct}")
    k("s_waitcnt vmcnt(0)"); k("s_barrier")
    lz = k.label(); k(f"s_cmp_lg_u32 s{S_WAVE}, 0"); k(f"s_cbranch_scc1 {lz}")
    lane0_addr(k, 56, 57); k(f"s_add_u32 s46, s48, {L.PC(0)}"); signal(k, "s46", 56, 57)
    k.place(lz)
    k(f"s_add_u32 s49, s48, {L.PC(0)}"); k("v_mov_b32 v54, 0"); wait_words(k, "s49", 54, 55, 4, abort, nap=1)
    k.place(direct)
    k("s_lshl_b32 s66, s60, 17"); k("s_lshl_b32 s46, s71, 15"); k("s_add_u32 s66, s66, s46"); k("s_lshl_b32 s46, s61, 9"); k("s_add_u32 s66, s66, s46")
    k(f"s_add_u32 s66, s66, {L.PARTS[0]}")
    PT = 16; F = 192
    lpt = k.label("Lpt"); k.place(lpt)
    for src in range(4):
        k(f"s_add_u32 s67, s66, {src*8192}")
        for j in range(2): k(f"buffer_load_dwordx4 {vr(PT+(src*2+j)*4,4)}, v13, {WL}, s67 offen offset:{j*1024} sc1")
    k("s_sub_u32 s70, s70, 1"); k(f"s_cbranch_scc1 {abort}")
    for i in range(8):
        k(f"v_lshlrev_b32 v{F+2*i}, 16, v{XRS+i}"); k(f"v_and_b32 v{F+2*i+1}, 0xffff0000, v{XRS+i}")
    k("v_mov_b32 v56, 0"); k("v_mov_b32 v57, 0")
    for src in range(4):
        k(f"s_waitcnt vmcnt({6-2*src})")
        for j in range(2):
            b_ = PT + src*8 + 4*j
            k(f"v_max3_u32 v{56+j}, v{56+j}, v{b_}, v{b_+1}"); k(f"v_max3_u32 v{56+j}, v{56+j}, v{b_+2}, v{b_+3}")
        for i in range(8):
            k(f"v_lshlrev_b32 v54, 16, v{PT+src*8+i}"); k(f"v_and_b32 v55, 0xffff0000, v{PT+src*8+i}")
            k(f"v_pk_add_f32 {vr(F+2*i,2)}, {vr(F+2*i,2)}, v[54:55]")
    k("v_cndmask_b32 v57, 0, v57, s[82:83]"); k("v_max_u32 v56, v56, v57"); k("v_cmp_eq_u32 vcc, -1, v56"); k(f"s_cbranch_vccnz {lpt}")
    gen.tl(k, 12, 56, 2)
    for i in range(8): k(f"v_cvt_pk_bf16_f32 v{XRS+i}, v{F+2*i}, v{F+2*i+1}")
    k("v_mov_b32 v11, 0x7fffffff"); k("v_cndmask_b32 v12, v11, v8, s[82:83]")
    k(f"s_add_u32 s46, s62, {L.XRA[0]}")
    k(f"buffer_store_dwordx4 {vr(XRS,4)}, v8, {WL}, s46 offen sc1"); k(f"buffer_store_dwordx4 {vr(XRS+4,4)}, v12, {WL}, s46 offen offset:128 sc1")
    def rowsum(off, sq):
        for j in range(2):
            b = F + 8*j
            if sq:
                k(f"v_mul_f32 v{54+j}, v{b}, v{b}")
                for i in range(1, 8): k(f"v_fmac_f32 v{54+j}, v{b+i}, v{b+i}")
            else:
                k(f"v_add_f32 v{54+j}, v{b}, v{b+1}")
                for i in range(2, 8): k(f"v_add_f32 v{54+j}, v{54+j}, v{b+i}")
        k("v_cndmask_b32 v55, 0, v55, s[82:83]"); k("v_add_f32 v54, v54, v55")
        k("v_add_f32_dpp v54, v54, v54 row_ror:8 row_mask:0xf bank_mask:0xf")
        xreduce_g(k, 54, 55, "v_add_f32")
        k(f"ds_write_b32 v9, v54 offset:{A4_ST+off}"); k("s_waitcnt lgkmcnt(0)"); k("s_barrier")
        k(f"ds_read_b128 v[56:59], v10 offset:{A4_ST+off}"); k("s_waitcnt lgkmcnt(0)")
        k("v_add_f32 v56, v56, v57"); k("v_add_f32 v58, v58, v59"); k("v_add_f32 v54, v56, v58")
    rowsum(0, False)
    k(f"v_mul_f32 v54, {hx(f2u(1/448))}, v54")
    for i in range(16): k(f"v_sub_f32 v{F+i}, v{F+i}, v54")
    rowsum(256, True)
    k(f"v_mov_b32 v55, {hx(f2u(1e-5))}"); k(f"v_fmac_f32 v55, {hx(f2u(1/448))}, v54"); k("v_rsq_f32 v55, v55")
    for i in range(16): k(f"v_mul_f32 v{F+i}, v{F+i}, v55")
    for i in range(8): k(f"v_cvt_pk_bf16_f32 v{PT+i}, v{F+2*i}, v{F+2*i+1}")
    for i in range(8): k(f"v_min_u32 v{PT+i}, -2, v{PT+i}")
    k("s_lshl_b32 s46, s61, 9"); k(f"s_add_u32 s46, s46, {A4_XL}"); k("v_add_u32 v12, s46, v13")
    k(f"v_mov_b32 v54, {A4_DUM - 1024}"); k("v_cndmask_b32 v54, v54, v12, s[82:83]")
    k(f"ds_write_b128 v12, {vr(PT,4)}"); k(f"ds_write_b128 v54, {vr(PT+4,4)} offset:1024")
    k("s_lshr_b32 s46, s71, 1"); k("s_lshl_b32 s47, s60, 1"); k("s_add_u32 s46, s46, s47"); k("s_mul_i32 s46, s46, 14"); k("s_add_u32 s46, s46, s61")
    k("s_lshl_b32 s46, s46, 10"); k("s_and_b32 s47, s71, 1"); k("s_lshl_b32 s47, s47, 7"); k("s_add_u32 s46, s46, s47"); k(f"s_add_u32 s46, s46, {L.XTB[0]}")
    k("v_cndmask_b32 v12, v11, v14, s[82:83]")
    k(f"buffer_store_dwordx4 {vr(PT,4)}, v14, {WL}, s46 offen sc1"); k(f"buffer_store_dwordx4 {vr(PT+4,4)}, v12, {WL}, s46 offen offset:2048 sc1")
    k("s_waitcnt lgkmcnt(0)"); k("s_barrier")
    X = 192
    k("v_and_b32 v12, 7, v0"); k("v_lshlrev_b32 v12, 4, v12"); k("v_lshl_add_u32 v12, v3, 7, v12")
    for ks in range(14): k(f"ds_read_b128 {vr(X+4*ks,4)}, v12 offset:{A4_XL+ks*512}")
    lv = k.label("LV"); le = k.label("LE")
    k("s_lshl_b32 s49, s60, 11")
    k(f"s_cmp_ge_u32 s{S_WAVE}, 2"); k(f"s_cbranch_scc1 {lv}")
    k("v_lshrrev_b32 v12, 1, v3"); k("v_lshlrev_b32 v12, 10, v12"); k("v_and_b32 v54, 1, v3"); k("v_lshl_add_u32 v12, v54, 9, v12")
    k("v_lshl_add_u32 v12, v2, 4, v12"); k("v_cmp_gt_u32 vcc, 8, v2"); k("v_cndmask_b32 v12, v11, v12, vcc")
    k("s_lshl_b32 s46, s71, 7"); k(f"s_lshl_b32 s47, s{S_WAVE}, 3"); k("s_add_u32 s46, s46, s47"); k("s_add_u32 s46, s46, s49"); k(f"s_add_u32 s46, s46, {L.KI[0]}")
    k("s_waitcnt lgkmcnt(0)")
    for ks in range(14): k(mf16(16, Q+4*ks, X+4*ks, None if ks == 0 else 16))
    k("v_cvt_pk_bf16_f32 v24, v16, v17"); k("v_cvt_pk_bf16_f32 v25, v18, v19")
    k(f"s_branch {le}")
    k.place(lv)
    k("v_lshlrev_b32 v12, 9, v3"); k("v_lshl_add_u32 v12, v2, 4, v12"); k("v_cndmask_b32 v12, v11, v12, s[80:81]")
    k("s_lshr_b32 s46, s71, 1"); k("s_lshl_b32 s46, s46, 10"); k("s_and_b32 s47, s71, 1"); k("s_lshl_b32 s47, s47, 3"); k("s_add_u32 s46, s46, s47")
    k(f"s_and_b32 s47, s{S_WAVE}, 1"); k("s_lshl_b32 s47, s47, 8"); k("s_add_u32 s46, s46, s47"); k("s_add_u32 s46, s46, s49"); k(f"s_add_u32 s46, s46, {L.VI[0]}")
    k(f"s_cmp_eq_u32 s{S_WAVE}, 3"); k("s_cselect_b32 s47, 12, 99"); k("v_cmp_eq_u32 vcc, s47, v2"); k("v_mov_b32 v54, 0x3f803f80")
    k("s_waitcnt lgkmcnt(0)")
    for ks in range(14): k(mf16(16, X+4*ks, Q+4*ks, None if ks == 0 else 16))
    k("v_cvt_pk_bf16_f32 v24, v16, v17"); k("v_cvt_pk_bf16_f32 v25, v18, v19")
    k("v_cndmask_b32 v24, v24, v54, vcc"); k("v_cndmask_b32 v25, v25, v54, vcc")
    k.place(le)
    k("v_min_u32 v24, -2, v24"); k("v_min_u32 v25, -2, v25")
    k(f"buffer_store_dwordx2 v[24:25], v12, {WL}, s46 offen sc1")
    k("s_waitcnt vmcnt(0)"); k("s_barrier")
    lz = k.label(); k(f"s_cmp_lg_u32 s{S_WAVE}, 0"); k(f"s_cbranch_scc1 {lz}")
    k(f"s_add_u32 s47, s48, {L.SC(0)}"); lane0_addr(k, 4, 5); signal(k, "s47", 4, 5)
    k.place(lz)

def pack_store(k, OUT, pp, T):
    for q in range(2):
        for t in range(2):
            a = OUT + ((2*pp+t)*2 + q)*4
            k(f"v_cvt_pk_bf16_f32 v{T+4*q+2*t}, v{a}, v{a+1}"); k(f"v_cvt_pk_bf16_f32 v{T+4*q+2*t+1}, v{a+2}, v{a+3}")
        for r in range(4): k(f"v_min_u32 v{T+4*q+r}, -2, v{T+4*q+r}")
        k(f"buffer_store_dwordx4 {vr(T+4*q,4)}, v15, {WL}, s{66+q} offen offset:{pp*512} sc1")

N7 = 76; ROW6 = 14*N7; LATE0 = 1792; N6 = 64; N4 = 16; ROW2 = LATE0 + 8*N4; N2 = (2048 - ROW2)//4
BQL = 0; BOL = 16384; BST = (BOL + 16*912 + 512 + 255)//256*256; BMX = BST + 1024; BFL = BMX + 4096; BRED = BFL + 256
B_LDS = BRED + 4*7*4096

def body_attnB(k, QT, abort, gemm_label=None):
    big = QT > 4; R = 2*QT; ROW0 = {7: 0, 6: ROW6, 4: LATE0, 2: ROW2}[QT]
    XB = 16
    k("v_lshlrev_b32 v1, 4, v0"); k("v_and_b32 v2, 15, v0"); k("v_lshrrev_b32 v3, 4, v0")
    qreg = lambda o: 256 + 4*o if o < 64 else 120 + 4*(o-64)
    k(f"s_mul_i32 s46, s{S_WAVE}, {7*14*1024}"); k(f"s_add_u32 s46, s46, {L.WBQ}")
    loads(k, [qreg(o) for o in range(98)], 1, 46, 46, " sc1", WS)
    k(f"s_mul_i32 s61, s60, {R}")
    if ROW0: k(f"s_add_u32 s61, s61, {ROW0}")
    k(f"v_min_u32 v4, {R-1}, v2"); k("v_add_u32 v4, s61, v4")
    if QT == 6: k(f"v_min_u32 v4, {LATE0-1}, v4")
    def tiled(vd, vt):
        k(f"v_lshrrev_b32 v{vd}, 4, v{vt}"); k(f"v_mul_u32_u24 v{vd}, {14*1024}, v{vd}"); k(f"v_and_b32 v6, 15, v{vt}")
        k(f"v_lshl_add_u32 v{vd}, v6, 4, v{vd}"); k(f"v_lshl_add_u32 v{vd}, v3, 8, v{vd}")
    tiled(5, 4)
    k("v_mov_b64 v[8:9], 0"); k("v_mov_b64 v[10:11], 0"); k(f"s_lshl_b32 s46, s{S_WAVE}, 12"); k("v_add_u32 v7, s46, v1")
    for i in range(4): k(f"ds_write_b128 v7, v[8:11] offset:{BQL+i*1024}")
    k(f"v_mov_b32 v7, {BFL}"); k("ds_write_b32 v7, v8")
    k("v_lshrrev_b32 v12, 5, v4"); k("v_lshlrev_b32 v12, 7, v12"); k(f"s_mov_b32 s49, {L.SC(0)}")
    k("s_lshr_b32 s50, s61, 5"); k("s_min_u32 s50, s50, 61"); k("s_waitcnt vmcnt(0)")
    if big: wait_words(k, "s49", 12, 13, 4, abort, nap=1, far="s50")
    else:
        k(f"s_mov_b32 s49, {L.PROG(0)}"); k("v_mov_b32 v12, 0")
        wait_words(k, "s49", 12, 13, "s50", abort, ge=True, nap=24)
        k("s_mov_b32 s96, 0"); k("s_lshr_b32 s98, s61, 5")
        if QT == 2: k("s_sub_u32 s98, s98, 1")
        gate(k, L.SC(0), 1, 4, "s98", 96, "v_lshlrev_b32 v8, 3, v1", 8, abort, nap=1, napfar=8)
    k(f"s_mov_b32 s48, {L.XTB[0]}"); k(f"s_mov_b32 s70, {TIMEOUT}")
    k("s_waitcnt lgkmcnt(0)"); k("s_barrier")
    k(f"s_mul_i32 s63, s{S_WAVE}, 112")
    k("v_lshlrev_b32 v6, 2, v3"); k("v_add_u32 v6, s63, v6"); k("v_lshlrev_b32 v7, 10, v2")
    for i in range(7):
        k(f"v_add_u32 v8, {16*i}, v6"); k("v_mul_u32_u24 v9, 2341, v8"); k("v_lshrrev_b32 v9, 16, v9")
        k("v_lshl_add_u32 v8, v8, 1, v7"); k(f"v_lshl_add_u32 v{100+i}, v9, 3, v8")
    k(f"s_mov_b32 s64, {hx(f2u(L.LOG2E/28**0.5))}")
    A0 = 72
    lx = k.label("Lx"); k.place(lx)
    if QT == 2:
        assert ROW2 == 32*L.DIRX
        l1 = k.label("Lx"); k.place(l1)
        k(f"s_add_u32 s47, s48, {13*1024}"); k(f"buffer_load_dword v8, v5, {WL}, s47 offen sc1")
        k("s_sub_u32 s70, s70, 1"); k(f"s_cbranch_scc1 {abort}")
        k("s_waitcnt vmcnt(0)"); k("v_cmp_eq_u32 vcc, -1, v8"); k(f"s_cbranch_vccnz {l1}")
    loads(k, [XB+4*ks for ks in range(14)], 5, 48, 47, " sc1")
    for ks in range(14):
        k(f"s_waitcnt vmcnt({13-ks})")
        for i in range(7):
            k(mf16(A0+4*i, qreg(i*14+ks), XB+4*ks, None if ks == 0 else A0+4*i))
            if QT == 2 and i < 2: k(f"v_max3_u32 v8, v{XB+4*ks+2*i}, v{XB+4*ks+2*i+1}, {'v8' if ks or i else f'v{XB}'}")
    if QT == 2:
        k("v_cmp_eq_u32 vcc, -1, v8"); k(f"s_cbranch_vccnz {lx}")
    QO = 16; KV = [72, 88] if big else [208, 224, 240]; SS = [104, 120]; PP = 136; O = 144; MX = SS[1]
    def kvl(b):
        return [f"buffer_load_dwordx4 {vr(KV[b],4)}, v1, {WL}, s67 offen sc1", f"buffer_load_dwordx4 {vr(KV[b]+4,4)}, v1, {WL}, s67 offen offset:1024 sc1",
                f"buffer_load_dwordx4 {vr(KV[b]+8,4)}, v1, {WL}, s68 offen sc1", f"buffer_load_dwordx4 {vr(KV[b]+12,4)}, v1, {WL}, s68 offen offset:1024 sc1",
                "s_add_u32 s67, s67, 8192", "s_add_u32 s68, s68, 8192"]
    def kvload(b):
        for x in kvl(b): k(x)
    k(f"s_lshl_b32 s65, s{S_WAVE}, 11"); k(f"s_add_u32 s66, s65, {L.VI[0]}"); k(f"s_add_u32 s65, s65, {L.KI[0]}")
    k("s_mov_b32 s67, s65"); k("s_mov_b32 s68, s66"); k("s_mov_b32 s78, 0")
    if big: k("s_mov_b32 s96, 0"); k(f"s_mov_b32 s98, s{S_WAVE}")
    def sgate(): gate(k, L.SC(0), 1, 4, "s98", 96, "v_lshlrev_b32 v8, 3, v1", 8, abort, nap=(2 if big else 1))
    def kv_direct(b, issued=False):
        lp_ = k.label("Lkd"); chk = k.label("Lkc"); k(f"s_mov_b32 s70, {TIMEOUT}")
        if issued: k(f"s_branch {chk}")
        else:
            k("s_sub_u32 s98, s98, 1"); sgate(); k("s_add_u32 s98, s98, 1"); k(f"s_mov_b32 s70, {TIMEOUT}")
        k.place(lp_)
        for x in kvl(b)[:4]: k(x)
        k("s_sub_u32 s70, s70, 1"); k(f"s_cbranch_scc1 {abort}")
        k.place(chk)
        k("s_waitcnt vmcnt(0)")
        k(f"v_max3_u32 v8, v{KV[b]}, v{KV[b]+1}, v{KV[b]+2}")
        for i in range(3, 15, 2): k(f"v_max3_u32 v8, v8, v{KV[b]+i}, v{KV[b]+i+1}")
        k(f"v_max_u32 v8, v8, v{KV[b]+15}"); k("v_cmp_eq_u32 vcc, -1, v8"); k(f"s_cbranch_vccnz {lp_}")
    if not big:
        k(f"s_add_u32 s98, s{S_WAVE}, 48")
        kvload(0); kvload(1); kvload(2)
    for i in range(7):
        a = A0 + 4*i
        for r in range(4): k(f"v_mul_f32 v{a+r}, s64, v{a+r}")
        k(f"v_cvt_pk_bf16_f32 v{a}, v{a}, v{a+1}"); k(f"v_cvt_pk_bf16_f32 v{a+1}, v{a+2}, v{a+3}")
        k(f"ds_write_b64 v{100+i}, {vr(a,2)} offset:{BQL}")
    oreg = lambda o: 256 + 4*o if o < 64 else (128 + 4*(o-64) if o < 96 else 256 + 4*(o-96))
    def wl(o): return [f"s_add_u32 s46, s62, {(o//4)*4096}"]*(o % 4 == 0) + [f"buffer_load_dwordx4 {vr(oreg(o),4)}, v1, {WS}, s46 offen offset:{(o%4)*1024} sc1"]
    if big:
        k(f"s_lshl_b32 s69, s{S_WAVE}, 2"); k(f"s_cmp_eq_u32 s{S_WAVE}, 3"); k("s_cselect_b32 s69, 11, s69")
        k(f"s_mul_i32 s62, s69, {28*1024}"); k(f"s_add_u32 s62, s62, {L.WBO}")
        for o in range(64):
            for x in wl(o): k(x)
    k("s_waitcnt lgkmcnt(0)"); k("s_barrier")
    k("v_bfe_u32 v6, v0, 4, 1"); k("v_lshlrev_b32 v6, 10, v6"); k("v_lshl_add_u32 v6, v2, 6, v6"); k("v_lshrrev_b32 v7, 5, v0"); k("v_lshl_add_u32 v6, v7, 4, v6")
    def qread():
        for q in range(QT):
            for kk in range(2): k(f"ds_read_b128 {vr(QO+8*q+4*kk,4)}, v6 offset:{BQL+q*2048+kk*32}")
    qread()
    for i in range(8*QT): k(f"v_mov_b64 {vr(O+2*i,2)}, 0")
    gen.tl(k, 4, 12)
    if big:
        sgate(); kvload(0); k("s_add_u32 s98, s98, 4")
        k("s_waitcnt lgkmcnt(0)")
        loop = k.label("LK"); lend = k.label("LKe"); k.place(loop)
        for b in range(2):
            nopf = k.label(); go = k.label(); havek = k.label()
            k("s_cmp_lt_u32 s98, s96"); k("s_cselect_b32 s79, 1, 0"); k("s_cmp_lt_u32 s98, 64"); k("s_cselect_b32 s79, s79, 0")
            k("s_cmp_eq_u32 s79, 0"); k(f"s_cbranch_scc1 {nopf}")
            kvload(1-b); k("s_waitcnt vmcnt(4)"); k(f"s_branch {go}")
            k.place(nopf); k("s_waitcnt vmcnt(0)")
            k.place(go)
            k(mf32(SS[0], KV[b], QO, None)); k(mf32(SS[0], KV[b]+4, QO+4, SS[0]))
            for q in range(QT):
                s_ = SS[q & 1]; sn = SS[(q+1) & 1]; last = q + 1 == QT
                ex = lambda a_, n: [f"v_exp_f32 v{s_+r}, v{s_+r}" for r in range(a_, a_+n)]
                cv = lambda h: [f"v_cvt_pk_bf16_f32 v{PP+4*h+j}, v{s_+8*h+2*j}, v{s_+8*h+2*j+1}" for j in range(4)]
                if not last: k(mf32(sn, KV[b], QO+8*(q+1), None))
                for x in ex(0, 4): k(x)
                if q: k(mf32(O+16*(q-1), KV[b]+12, PP+4, O+16*(q-1)))
                for x in ex(4, 4): k(x)
                if not last: k(mf32(sn, KV[b]+4, QO+8*(q+1)+4, sn))
                for x in cv(0) + ex(8, 4): k(x)
                k(mf32(O+16*q, KV[b]+8, PP, O+16*q))
                for x in ex(12, 4) + cv(1): k(x)
            k(mf32(O+16*(QT-1), KV[b]+12, PP+4, O+16*(QT-1)))
            if b == 1:
                k("s_cmp_ge_u32 s98, 64"); k(f"s_cbranch_scc1 {lend}")
            k("s_cmp_eq_u32 s79, 1"); k(f"s_cbranch_scc1 {havek}")
            if b == 0:
                nt = k.label()
                k("s_cmp_lt_u32 s98, 60"); k(f"s_cbranch_scc1 {nt}")
                k("v_lshlrev_b32 v8, 3, v1")
                code_touch(k, lend, 8192 if big else 1280, True, 8, 9)
                code_touch(k, gemm_label, 8192, False, 8, 9)
                k.place(nt)
            sgate(); kvload(1-b)
            k.place(havek)
            k("s_add_u32 s98, s98, 4")
        k(f"s_branch {loop}")
        k.place(lend)
    else:
        k("s_waitcnt vmcnt(8) lgkmcnt(0)")
        k(mf32(SS[0], KV[0], QO, None)); k(mf32(SS[0], KV[0]+4, QO+4, SS[0]))
        nstep = 16*QT
        for i in range(nstep):
            t, q = divmod(i, QT); s_ = SS[i & 1]; sn = SS[(i+1) & 1]; tn, qn = divmod(i+1, QT); last = i + 1 == nstep
            ex = lambda a_, n: [f"v_exp_f32 v{s_+r}, v{s_+r}" for r in range(a_, a_+n)]
            cv = lambda h: [f"v_cvt_pk_bf16_f32 v{PP+4*h+j}, v{s_+8*h+2*j}, v{s_+8*h+2*j+1}" for j in range(4)]
            if not last:
                if qn == 0:
                    if tn <= 14: k("s_waitcnt vmcnt(4)")
                    else: kv_direct(15 % 3, True)
                k(mf32(sn, KV[tn % 3], QO+8*qn, None))
            for x in ex(0, 4): k(x)
            if i:
                tp, qp = divmod(i-1, QT)
                k(mf32(O+16*qp, KV[tp % 3]+12, PP+4, O+16*qp))
            if q == 0 and 1 <= t <= 13:
                if t == 13:
                    for x in kvl(15 % 3)[:4]: k(x)
                else:
                    if t >= 10:
                        sgate(); k("s_add_u32 s98, s98, 4")
                    kvload((t+2) % 3)
            for x in ex(4, 4): k(x)
            if not last: k(mf32(sn, KV[tn % 3]+4, QO+8*qn+4, sn))
            for x in cv(0) + ex(8, 4): k(x)
            k(mf32(O+16*q, KV[t % 3]+8, PP, O+16*q))
            for x in ex(12, 4) + cv(1): k(x)
        k(mf32(O+16*(QT-1), KV[15 % 3]+12, PP+4, O+16*(QT-1)))
    gen.tl(k, 12, 12, 2)
    redo = k.label("LBr"); slow = k.label("LBs"); fin = k.label("LBf")
    k.place(redo)
    k(f"s_mul_i32 s46, s{S_WAVE}, {QT*4096}"); k(f"s_add_u32 s46, s46, {BRED}"); k("v_add_u32 v7, s46, v1")
    for q in range(QT):
        for j in range(4): k(f"ds_write_b128 v7, {vr(O+16*q+4*j,4)} offset:{q*4096+j*1024}")
    OUT = 96; XRS = 80
    if big:
        k("v_add_u32 v9, s61, v2")
        if QT == 6:
            k(f"v_mov_b32 v8, 4096"); k(f"v_cmp_gt_u32 vcc, {LATE0}, v9"); k("v_cndmask_b32 v9, v8, v9, vcc")
            k(f"s_lshl_b32 s46, s60, 2"); k(f"s_add_u32 s46, s46, {LATE0 - 12}"); k("v_add_u32 v8, s46, v2")
        else: k("v_mov_b32 v8, 4096")
        k(f"v_cmp_gt_u32 vcc, {R}, v2"); k("v_cndmask_b32 v4, v8, v9, vcc"); k("v_mov_b32 v8, 2048"); k("v_cmp_lt_u32 s[72:73], v4, v8"); k("v_min_u32 v4, 2047, v4")
        k("v_mul_u32_u24 v14, 896, v4"); k("v_lshl_add_u32 v14, v3, 4, v14"); k("s_lshl_b32 s46, s69, 6"); k("v_add_u32 v14, s46, v14")
    k("s_waitcnt lgkmcnt(0)")
    if big:
        for o in range(64, 96):
            for x in wl(o): k(x)
    k("s_barrier")
    T = 16
    k("v_lshrrev_b32 v8, 5, v0")
    k("v_bfe_u32 v9, v0, 4, 1"); k("v_mul_u32_u24 v9, 912, v9"); k("v_mul_u32_u24 v10, 56, v2"); k("v_add_u32 v9, v9, v10"); k("v_lshl_add_u32 v9, v8, 3, v9")
    k(f"v_mov_b32 v11, {BOL + 16*912}"); k("v_cmp_eq_u32 s[74:75], 1, v8")
    for rep in range((QT+3)//4):
        skip = k.label()
        k(f"s_add_u32 s46, s{S_WAVE}, {4*rep}")
        if 4*rep + 3 >= QT:
            k(f"s_cmp_ge_u32 s46, {QT}"); k(f"s_cbranch_scc1 {skip}")
        k("s_lshl_b32 s47, s46, 12"); k(f"s_add_u32 s47, s47, {BRED}"); k("v_add_u32 v7, s47, v1")
        for w in range(4):
            if w: k(f"v_add_u32 v7, {QT*4096}, v7")
            for j in range(4): k(f"ds_read_b128 {vr(T+16*w+4*j,4)}, v7 offset:{j*1024}")
            if w == 2: k("s_waitcnt lgkmcnt(4)")
        for i in range(8): k(f"v_pk_add_f32 {vr(T+2*i,2)}, {vr(T+2*i,2)}, {vr(T+16+2*i,2)}")
        k("s_waitcnt lgkmcnt(0)")
        for i in range(8): k(f"v_pk_add_f32 {vr(T+32+2*i,2)}, {vr(T+32+2*i,2)}, {vr(T+48+2*i,2)}")
        for i in range(8): k(f"v_pk_add_f32 {vr(T+2*i,2)}, {vr(T+2*i,2)}, {vr(T+32+2*i,2)}")
        k(f"v_mov_b32 v12, v{T+12}"); k(f"v_mov_b32 v13, v{T+12}")
        k("v_permlane32_swap_b32 v12, v13")
        k(f"v_cmp_nle_f32 vcc, {hx(f2u(2.0**-60))}, v13"); k(f"v_mov_b32 v12, {hx(f2u(2.0**60))}")
        k("v_cmp_nle_f32 s[76:77], v13, v12"); k("s_or_b64 vcc, vcc, s[76:77]")
        ok = k.label()
        k(f"s_cbranch_vccz {ok}")
        k(f"v_mov_b32 v12, {BFL}"); k("v_mov_b32 v15, 1"); k("ds_write_b32 v12, v15")
        k.place(ok)
        k("v_rcp_f32 v13, v13")
        k("s_mul_i32 s47, s46, 1824"); k(f"s_add_u32 s47, s47, {BOL}"); k("v_add_u32 v10, s47, v9")
        for j in range(4):
            for r in range(4): k(f"v_mul_f32 v{T+4*j+r}, v{T+4*j+r}, v13")
            k(f"v_cvt_pk_bf16_f32 v{T+4*j}, v{T+4*j}, v{T+4*j+1}"); k(f"v_cvt_pk_bf16_f32 v{T+4*j+1}, v{T+4*j+2}, v{T+4*j+3}")
            if j == 3:
                k("v_add_u32 v10, 48, v10"); k("v_cndmask_b32 v10, v10, v11, s[74:75]")
                k(f"ds_write_b64 v10, {vr(T+12,2)}")
            else: k(f"ds_write_b64 v10, {vr(T+4*j,2)} offset:{16*j}")
        k.place(skip)
    k("s_waitcnt lgkmcnt(0)"); k("s_barrier")
    k(f"v_mov_b32 v12, {BFL}"); k("ds_read_b32 v12, v12"); k("s_waitcnt lgkmcnt(0)")
    k("v_readfirstlane_b32 s46, v12")
    k("s_andn2_b32 s46, s46, s78")
    k("s_cmp_eq_u32 s46, 1"); k(f"s_cbranch_scc1 {slow}")
    if not big:
        k(f"s_mul_i32 s46, s{S_WAVE}, 912"); k(f"s_add_u32 s46, s46, {BOL}"); k("v_add_u32 v7, s46, v1")
        for j in range(R//4): k(f"ds_read_b128 {vr(16+4*j,4)}, v7 offset:{j*4*912}")
        k(f"s_sub_u32 s46, s61, {LATE0}"); k(f"s_add_u32 s47, s46, s{S_WAVE}"); k("s_mul_i32 s47, s47, 896"); k(f"s_add_u32 s47, s47, {L.OLATE[0]}")
        k("v_mov_b32 v8, 0x7fffffff"); k("v_cmp_gt_u32 vcc, 56, v0"); k("v_cndmask_b32 v8, v8, v1, vcc")
        k("s_waitcnt lgkmcnt(0)")
        for j in range(R//4): k(f"buffer_store_dwordx4 {vr(16+4*j,4)}, v8, {WL}, s47 offen offset:{j*3584} sc1")
        k("s_waitcnt vmcnt(0)"); k("s_barrier")
        k(f"s_cmp_lg_u32 s{S_WAVE}, 0"); k(f"s_cbranch_scc1 {fin}")
        k("s_lshl_b32 s46, s46, 5"); k(f"s_add_u32 s46, s46, {L.OF(0)}"); k("v_lshlrev_b32 v12, 7, v0"); k("v_mov_b32 v13, 1")
        k(f"s_mov_b64 exec, {(1 << (R//4)) - 1}"); k(f"buffer_store_dword v13, v12, {WL}, s46 offen sc1"); k("s_mov_b64 exec, -1")
        k(f"s_branch {fin}")
    else:
        k(f"s_add_u32 s8, s{P_WS}, {L.XR1}"); k(f"s_addc_u32 s9, s{P_WS+1}, 0"); k(f"s_cmp_eq_u32 s{S_LAYER}, 0")
        k(f"s_cselect_b32 s8, s8, s{P_OUT}"); k(f"s_cselect_b32 s9, s9, s{P_OUT+1}"); k("s_and_b32 s9, s9, 0xffff")
        k(f"s_mov_b32 s10, {L.XSZ}"); k("s_mov_b32 s11, 0x20000")
        k(f"s_mov_b32 s48, {L.XRA[0]}")
        for pp in range(4): k(f"buffer_load_dwordx4 {vr(XRS+4*pp,4)}, v14, {WL}, s48 offen offset:{pp*64} sc1")
        k("v_mul_u32_u24 v7, 912, v2"); k("v_lshl_add_u32 v7, v3, 4, v7")
        for ks in range(14): k(f"ds_read_b128 {vr(XB+4*ks,4)}, v7 offset:{BOL+ks*64}")
        if QT == 6:
            k("s_lshl_b32 s49, s60, 7"); k(f"s_add_u32 s49, s49, {L.OF(0)}"); k("v_mov_b32 v12, 0")
            wait_words(k, "s49", 12, 13, 1, abort, nap=1, wg=False)
            k(f"v_subrev_u32 v12, {LATE0}, v4"); k("v_mul_u32_u24 v12, 896, v12"); k("v_lshl_add_u32 v12, v3, 4, v12"); k(f"s_mov_b32 s49, {L.OLATE[0]}")
            k("s_waitcnt lgkmcnt(0)")
            k("s_mov_b32 exec_lo, 0xf000f000"); k("s_mov_b32 exec_hi, 0xf000f000")
            for ks in range(14): k(f"buffer_load_dwordx4 {vr(XB+4*ks,4)}, v12, {WL}, s49 offen offset:{ks*64} sc1")
            k("s_mov_b64 exec, -1")
        k("s_waitcnt vmcnt(0) lgkmcnt(0)")
        gen.tl(k, 11, 12, 2)
        short = k.label()
        for i in range(8):
            if i == 6:
                k(f"s_cmp_ge_u32 s{S_WAVE}, 2"); k(f"s_cbranch_scc1 {short}")
                k("s_waitcnt vmcnt(0)")
            a = OUT + 4*i
            for ks in range(14): k(mf16(a, oreg(i*14+ks), XB+4*ks, None if ks == 0 else a))
            if i == 1:
                for o in range(96, 112):
                    for x in wl(o): k(x)
        k.place(short)
        slab_request(k, 100)
        k("v_mov_b32 v9, 0x7fffffff"); k("v_cndmask_b32 v8, v9, v14, s[72:73]")
        tiled(5, 4)
        k("s_lshl_b32 s46, s69, 10"); k("v_add_u32 v5, s46, v5"); k("v_cndmask_b32 v5, v9, v5, s[72:73]")
        k(f"s_lshl_b32 s46, s{S_WAVE}, 2"); k("v_lshlrev_b32 v11, 4, v2"); k("v_add_u32 v10, s46, v11")
        k(f"s_mov_b32 s49, {L.XTA[1]}")
        def res_store(pp, q, r): k(f"buffer_store_dwordx4 {vr(r,4)}, v8, s[8:11], 0 offen offset:{pp*64} sc1")
        def xn_store(pp, q, r): k(f"buffer_store_dwordx4 {vr(r,4)}, v5, {WS}, s49 offen offset:{pp*1024} sc1")
        ln_epilogue(k, lambda pp, q, t: OUT + (2*pp+t)*4, 1, lambda pp, q: XRS+4*pp, 16, 24, 10, BST, res_store, xn_store, fin)
        k("s_waitcnt vmcnt(0)"); k("s_barrier")
        k(f"s_cmp_lg_u32 s{S_WAVE}, 0"); k(f"s_cbranch_scc1 {fin}")
        lim = ROW6 if QT == 7 else LATE0
        k(f"s_add_u32 s47, s61, {R}"); k(f"s_min_u32 s47, s47, {lim}"); k(f"s_min_u32 s46, s61, {lim}")
        k("s_lshr_b32 s48, s46, 5"); k("s_add_u32 s49, s48, 1"); k("s_lshl_b32 s50, s49, 5"); k("s_min_u32 s50, s50, s47")
        k("s_sub_u32 s51, s50, s46"); k("s_sub_u32 s52, s47, s50")
        k("v_mov_b32 v12, s48"); k("v_mov_b32 v13, s51")
        k("v_writelane_b32 v12, s49, 1"); k("v_writelane_b32 v13, s52, 1")
        if QT == 6:
            k("s_lshr_b32 s48, s60, 3"); k(f"s_add_u32 s48, s48, {LATE0//32}"); k("v_writelane_b32 v12, s48, 2"); k("v_writelane_b32 v13, 4, 2")
        k("v_lshlrev_b32 v12, 7, v12"); k(f"s_mov_b32 s46, {L.RC(1)}")
        signal(k, "s46", 12, 13, WS, lanes=7 if QT == 6 else 3)
        k(f"s_branch {fin}")
    k.place(slow)
    k("s_waitcnt vmcnt(0) lgkmcnt(0)"); k("s_barrier")
    k("s_mov_b32 s78, 1")
    qread()
    for q in range(QT): k(f"v_mov_b32 v{MX+q}, {NINF}")
    k("s_mov_b32 s67, s65"); k("s_mov_b32 s68, s66"); k("s_mov_b32 s70, 16")
    lm = k.label("LM"); k.place(lm)
    kvload(0)
    k("s_waitcnt vmcnt(0) lgkmcnt(0)")
    for q in range(QT):
        s_ = SS[0]
        k(mf32(s_, KV[0], QO+8*q, None)); k(mf32(s_, KV[0]+4, QO+8*q+4, s_))
        for r in range(0, 16, 2): k(f"v_max3_f32 v{MX+q}, v{MX+q}, v{s_+r}, v{s_+r+1}")
    k("s_sub_u32 s70, s70, 1"); k("s_cmp_lg_u32 s70, 0"); k(f"s_cbranch_scc1 {lm}")
    k("v_and_b32 v7, 31, v0"); k("v_lshlrev_b32 v7, 2, v7"); k(f"s_lshl_b32 s46, s{S_WAVE}, 10"); k("v_add_u32 v12, s46, v7")
    for q in range(QT):
        k(f"v_mov_b32 v13, v{MX+q}"); k(f"v_permlane32_swap_b32 v{MX+q}, v13"); k(f"v_max_f32 v{MX+q}, v{MX+q}, v13")
        k(f"ds_write_b32 v12, v{MX+q} offset:{BMX+q*128}")
    k("s_waitcnt lgkmcnt(0)"); k("s_barrier")
    for q in range(QT):
        for w in range(4): k(f"ds_read_b32 v{SS[0]+w}, v7 offset:{BMX+w*1024+q*128}")
        k("s_waitcnt lgkmcnt(0)")
        k(f"v_max3_f32 v{MX+q}, v{SS[0]}, v{SS[0]+1}, v{SS[0]+2}"); k(f"v_max_f32 v{MX+q}, v{MX+q}, v{SS[0]+3}")
    for i in range(8*QT): k(f"v_mov_b64 {vr(O+2*i,2)}, 0")
    k("s_mov_b32 s67, s65"); k("s_mov_b32 s68, s66"); k("s_mov_b32 s70, 16")
    lp = k.label("LK"); k.place(lp)
    kvload(0)
    k("s_waitcnt vmcnt(0)")
    for q in range(QT):
        s_ = SS[0]
        for r in range(16): k(f"v_sub_f32 v{s_+r}, 0, v{MX+q}")
        k(mf32(s_, KV[0], QO+8*q, s_)); k(mf32(s_, KV[0]+4, QO+8*q+4, s_))
        for h in range(2):
            for r in range(8*h, 8*h+8): k(f"v_exp_f32 v{s_+r}, v{s_+r}")
            for j in range(4): k(f"v_cvt_pk_bf16_f32 v{PP+4*h+j}, v{s_+8*h+2*j}, v{s_+8*h+2*j+1}")
            k(mf32(O+16*q, KV[0]+8+4*h, PP+4*h, O+16*q))
    k("s_sub_u32 s70, s70, 1"); k("s_cmp_lg_u32 s70, 0"); k(f"s_cbranch_scc1 {lp}")
    k(f"s_branch {redo}")
    k.place(fin)
    if not big: slab_request(k, 100)
```

```python
from gen import *
import gen

ASL = 0
VMPOS = [(1,1),(1,6),(2,1),(2,5),(3,1),(3,4),(4,1),(5,1),(6,1),(6,6),(7,1)]
BPOLL = 0
BPS = 3
APOLL = 1
UV = 0
XPK = 0
BSL = 0
PSL = 0
XSIG = 0
XNOU = 0
XACK = 0
XSLEEP = 0
XNOEXP = 0
XPOLL = 0
NB = 9
PFD = 2

DIAG = False
DBGOFF = 0xF000000
def stamp(k, i):
    if DIAG == 3: k(f"s_memrealtime s[{72+2*i}:{73+2*i}]")
    elif DIAG: k(f"s_memtime s[{72+2*i}:{73+2*i}]")
def stamp_acc(k, n):
    if not DIAG: return
    k("s_waitcnt lgkmcnt(0)")
    if DIAG == 3:
        for i in range(1, n): k(f"s_add_u32 s{87+i}, s{87+i}, s{72+2*i}")
        return
    for i in range(n-1):
        k(f"s_sub_u32 s71, s{72+2*(i+1)}, s{72+2*i}"); k(f"s_add_u32 s{88+i}, s{88+i}, s71")
T0 = 0
def stamp_init(k):
    if DIAG or T0:
        for i in range(8): k(f"s_mov_b32 s{88+i}, 0")
        k("s_memtime s[72:73]"); k("s_waitcnt lgkmcnt(0)"); k("s_mov_b32 s95, s72")
def stamp_out(k):
    if not (DIAG or T0): return
    k("s_memtime s[72:73]"); k("s_waitcnt lgkmcnt(0)"); k("s_sub_u32 s95, s72, s95")
    for i in range(8): k(f"v_mov_b32 v{16+i}, s{88+i}")
    k(f"s_lshl_b32 s46, s59, 2"); k(f"s_add_u32 s46, s46, s{S_WAVE}"); k("s_lshl_b32 s46, s46, 5"); k(f"s_add_u32 s46, s46, {DBGOFF}")
    k("v_mov_b32 v24, 0")
    k(f"buffer_store_dwordx4 v[16:19], v24, {WS}, s46 offen"); k(f"buffer_store_dwordx4 v[20:23], v24, {WS}, s46 offen offset:16")

def interleave(k, main, side):
    for i, m in enumerate(main):
        k(m)
        for s in side.get(i, []): k(s)

def ugate(k, need, v128, vt, abort):
    gate(k, L.UC(0), 4, 28, need, 96, v128, vt, abort)

def poll_rot(k, loads, tmp, abort, pre_issued=False):
    from itertools import permutations
    n = len(loads)
    done = k.label("Lrd")
    lab = {}
    def L_(st):
        if st not in lab: lab[st] = k.label("Lr")
        return lab[st]
    def check(j):
        r = loads[j][1]
        if len(r) == 1: k(f"v_cmp_eq_u32 vcc, -1, v{r[0]}")
        else:
            k(f"v_max3_u32 v{tmp}, v{r[0]}, v{r[1]}, v{r[2]}"); k(f"v_max_u32 v{tmp}, v{tmp}, v{r[3]}"); k(f"v_cmp_eq_u32 vcc, -1, v{tmp}")
    k(f"s_mov_b32 s70, {TIMEOUT}")
    if not pre_issued:
        for j in range(n): k(loads[j][0])
    emitted = set(); deferred = []
    def spin(st):
        m = len(st)
        rots = [st[i:] + st[:i] for i in range(m)]
        for i, r in enumerate(rots):
            emitted.add(r); k.place(L_(r))
            j = r[0]
            k(f"s_waitcnt vmcnt({m-1})")
            check(j)
            hit = ("hit", r)
            k(f"s_cbranch_vccz {L_(hit)}"); deferred.append(r)
            k(loads[j][0])
            if i == m - 1:
                k("s_sub_u32 s70, s70, 1"); k(f"s_cbranch_scc0 {L_(rots[0])}"); k(f"s_branch {abort}")
    def hit(r):
        k.place(L_(("hit", r)))
        while True:
            for x in loads[r[0]][2]: k(x)
            r = r[1:]
            if not r:
                k(f"s_branch {done}"); return
            k(f"s_waitcnt vmcnt({len(r)-1})")
            check(r[0])
            miss = ("miss", r)
            k(f"s_cbranch_vccnz {L_(miss)}"); pend.append(r)
    spin(tuple(range(n)))
    pend = []; seen_hit = set(); seen_miss = set()
    while deferred or pend:
        while deferred:
            r = deferred.pop(0)
            if r not in seen_hit: seen_hit.add(r); hit(r)
        while pend:
            r = pend.pop(0)
            if r in seen_miss: continue
            seen_miss.add(r)
            k.place(L_(("miss", r)))
            k(loads[r[0]][0])
            nr = r[1:] + r[:1]
            if nr in emitted: k(f"s_branch {L_(nr)}")
            else: spin(nr)
    k.place(done)

def poll_mem(k, s_addr, abort, t=44, filler=()):
    lp = k.label("Lpm")
    k(f"s_mov_b32 s70, {TIMEOUT}")
    k.place(lp)
    k(f"buffer_load_dword v{t}, v4, {WL}, s{s_addr} offen sc1")
    k(f"buffer_load_dwordx4 v3, {WL}, s{s_addr} offen sc1 lds")
    k(f"buffer_load_dwordx4 v3, {WL}, s{s_addr} offen offset:1024 sc1 lds")
    k("s_sub_u32 s70, s70, 1")
    k(f"s_cbranch_scc1 {abort}")
    for x in filler: k(x)
    k("s_waitcnt vmcnt(2)")
    k(f"v_cmp_eq_u32 vcc, -1, v{t}")
    k(f"s_cbranch_vccnz {lp}")
    k("s_waitcnt vmcnt(0)")

def poll_mem2(k, s_addr, abort, R0, R1, t):
    lp = k.label("Lpm"); got = [k.label("Lpg"), k.label("Lpg")]; join = k.label("Lpj")
    R = [R0, R1]
    def iss(d):
        k(f"buffer_load_dwordx4 {vr(R[d],4)}, v3, {WL}, s{s_addr} offen sc1"); k(f"buffer_load_dwordx4 {vr(R[d]+4,4)}, v4, {WL}, s{s_addr} offen sc1")
    k(f"s_mov_b32 s70, {TIMEOUT}")
    iss(0)
    k("s_nop 15")
    k.place(lp)
    for d in range(2):
        iss(1-d)
        if d == 0:
            k("s_sub_u32 s70, s70, 1"); k(f"s_cbranch_scc1 {abort}")
        k("s_waitcnt vmcnt(2)")
        k(f"v_max_u32 v{t}, v{R[d]}, v{R[d]+4}"); k(f"v_cmp_eq_u32 vcc, -1, v{t}")
        k(f"s_cbranch_vccz {got[0]}" if d == 0 else f"s_cbranch_vccnz {lp}")
    for d in (1, 0):
        k.place(got[d])
        k(f"ds_write_b128 v3, {vr(R[d],4)}"); k(f"ds_write_b128 v4, {vr(R[d]+4,4)}")
        if d == 1: k(f"s_branch {join}")
    k.place(join)
    k("s_waitcnt lgkmcnt(0)")

def mem_full_check(M, t):
    r = list(range(M, M+28))
    out = [f"v_max3_u32 v{t}, v{r[0]}, v{r[1]}, v{r[2]}"]
    r = r[3:]
    while len(r) >= 2:
        out.append(f"v_max3_u32 v{t}, v{t}, v{r[0]}, v{r[1]}"); r = r[2:]
    out.append(f"v_max_u32 v{t}, v{t}, v{r[0]}")
    return out

def mem_common_setup(k):
    k("v_lshlrev_b32 v1, 4, v0")
    k("v_and_b32 v2, 8, v0")
    k("v_cmp_eq_u32 vcc, 0, v2")
    k("v_mov_b32 v2, 0xeeee")
    k("v_mov_b32 v3, 0x4444")
    k("v_cndmask_b32 v2, v2, v3, vcc")
    k(f"s_lshl_b32 s46, s{S_WAVE}, 11"); k("s_mov_b32 m0, s46")
    k("v_add_u32 v3, s46, v1")
    k(f"s_cmp_eq_u32 s{S_WAVE}, 3"); k("s_cselect_b32 s47, 7, 15")
    k("v_and_b32 v4, s47, v0"); k("v_lshlrev_b32 v4, 7, v4"); k("v_add_u32 v4, s46, v4")

M = 16
SPW = 8*176
def gen_chain_A(k, st, abort, w):
    TT = 8192; SP = TT + 4*3584
    def W(i, p):
        o = i*7 + p
        return vr(256 + 8*o, 8) if o < 32 else vr(120 + 8*(o-32), 8)
    ACC = [52, 56, 60]; CV = 114; TB = [64, 68]; XK = 72; MK = 100; SX0, SX1, SM = 44, 48, 116
    def xk(pair, t): return XK + (pair*2 + t)*4
    XS = XK + 24
    def loadx():
        for t in range(2):
            if t == 1: k(f"s_add_u32 s64, s62, {14*1024}")
            so = "s62" if t == 0 else "s64"
            for pr in range(3):
                k(f"buffer_load_dwordx4 {vr(xk(pr,t),4)}, v6, {WL}, {so} offen offset:{pr*1024} sc1")
            k(f"buffer_load_dwordx2 {vr(XS+2*t,2)}, v14, {WL}, {so} offen sc1")
        k(f"s_add_u32 s62, s62, {28*1024}")
    loop = k.label("LA")
    k(f"s_mov_b32 s61, {L.MEM[0]}")
    k(f"s_mul_i32 s65, s60, 640"); k(f"s_add_u32 s65, s65, {L.PIM[0]}")
    k(f"s_mov_b32 s62, {L.XTA[0]}")
    k("s_mov_b32 s96, 0"); k("s_mov_b32 s98, 0")
    ugate(k, "s98", "v_lshlrev_b32 v16, 3, v1", 16, abort)
    loadx()
    k("s_mov_b32 s67, 63")
    gen.tl(k, 1, 16)
    for r in range(2): k(f"v_mov_b64 {vr(ACC[1]+2*r,2)}, 0")
    stamp_init(k)
    redo = k.label("LAr")
    own = [2*w, (2*w+1) % 7]; rest = [p for p in range(7) if p not in own]
    k.place(loop)
    for r in range(2): k(f"v_mov_b64 {vr(ACC[0]+2*r,2)}, 0")
    for r in range(2): k(f"v_mov_b64 {vr(ACC[2]+2*r,2)}, 0")
    stamp(k, 0)
    sm = lambda i, reg, p: f"v_smfmac_f32_16x16x64_bf16 {vr(ACC[i % 3],4)}, {vr(reg,4)}, {W(i,p)}, v2"
    lp = k.label("Lpm"); got = [k.label("Lpg"), k.label("Lpg")]; join = k.label("Lpj")
    PR = [44, 100]
    def iss(d):
        for e in range(2): k(f"buffer_load_dwordx4 {vr(PR[d]+4*e,4)}, v{3+e}, {WL}, s61 offen sc1")
    k(f"s_mov_b32 s70, {TIMEOUT}")
    iss(0)
    k("s_nop 15")
    k.place(lp)
    for d in range(2):
        iss(1-d)
        if d == 0:
            k("s_sub_u32 s70, s70, 1"); k(f"s_cbranch_scc1 {abort}")
        k("s_waitcnt vmcnt(2)")
        if w < 3: k(f"v_max_u32 v{CV}, v{PR[d]}, v{PR[d]+4}")
        else:
            k(f"v_max3_u32 v{CV}, v{PR[d]}, v{PR[d]+4}, v{PR[d]+5}"); k(f"v_max3_u32 v{CV}, v{CV}, v{PR[d]+6}, v{PR[d]+7}")
        k(f"v_cmp_eq_u32 vcc, -1, v{CV}")
        k(f"s_cbranch_vccz {got[0]}" if d == 0 else f"s_cbranch_vccnz {lp}")
    for d in (1, 0):
        k.place(got[d])
        stamp(k, 1)
        k(f"ds_write_b128 v3, {vr(PR[d],4)}")
        if w < 3: k(f"ds_write_b128 v4, {vr(PR[d]+4,4)}")
        for i in range(2):
            for e in range(2): k(sm(i, PR[d]+4*e, own[e]))
        k("s_waitcnt lgkmcnt(0)")
        k("s_barrier")
        stamp(k, 2)
        for p in rest: k(f"ds_read_b128 {vr(M+4*p,4)}, v1 offset:{p*1024}")
        for e in range(2): k(sm(2, PR[d]+4*e, own[e]))
        if d == 1: k(f"s_branch {join}")
    k.place(join)
    for p in own: k(f"ds_read_b128 {vr(M+4*p,4)}, v1 offset:{p*1024}")
    mk = [f"ds_read2_b32 {vr(MK,2)}, v7 offset0:0 offset1:32", f"ds_read2_b32 {vr(MK+2,2)}, v7 offset0:1 offset1:33",
          f"ds_read2_b32 {vr(MK+4,2)}, v7 offset0:128 offset1:160", f"ds_read2_b32 {vr(MK+6,2)}, v7 offset0:129 offset1:161",
          f"ds_read2_b32 {vr(MK+8,2)}, v15 offset0:0 offset1:32", f"ds_read2_b32 {vr(MK+10,2)}, v15 offset0:1 offset1:33",
          f"ds_read2_b32 {vr(MK+12,2)}, v5 offset0:0 offset1:32"]
    mk[0] = "s_waitcnt vmcnt(0)\n" + mk[0]
    T0R = ACC[1]
    for i in range(7):
        z = ACC[(i+1) % 3]; pa = ACC[(i-1) % 3]
        ps = rest if i < 3 else rest + own
        main = [sm(i, M+4*p, p) for p in ps]
        side = {}
        if i == 0:
            for q in range(5): main[q] = f"s_waitcnt lgkmcnt({6-q})\n" + main[q]
        else:
            j = i - 1
            side[2] = [f"v_cvt_pk_bf16_f32 v{CV}, v{pa}, v{pa+1}"]
            side[3] = [f"v_cvt_pk_bf16_f32 v{CV+1}, v{pa+2}, v{pa+3}"]
            side[4] = [f"ds_write_b64 v8, {vr(CV,2)} offset:{j*512}"]
            if j >= 2: side[5] = [f"ds_read_b64_tr_b16 {vr(TB[(j >> 1) & 1] + 2*(j & 1),2)}, v9 offset:{j*512}"]
            if 2 <= i < 6:
                side[0] = [f"v_mov_b64 {vr(z,2)}, 0"]; side[1] = [f"v_mov_b64 {vr(z+2,2)}, 0"]
            if i == 6:
                side[0] = [f"ds_read_b64_tr_b16 {vr(T0R,2)}, v9"]; side[1] = [f"ds_read_b64_tr_b16 {vr(T0R+2,2)}, v9 offset:512"]
            if i == 3: main[5] = "s_waitcnt lgkmcnt(2)\n" + main[5]; side[6] = [mk[0]]; side[0] += [mk[6]]
            if i == 4: side[6] = [mk[1]]; side[0] += [mk[2]]; side[1] += [mk[3]]
            if i == 5: side[6] = [mk[4]]; side[0] += [mk[5]]
        interleave(k, main, side)
    a = ACC[0]
    stamp(k, 3)
    fc = mem_full_check(M, ACC[2])
    def smm(pr, tb, first=False):
        c = (lambda r: "0") if first else (lambda r: vr(r,4))
        return [f"v_mfma_f32_16x16x32_bf16 {vr(SX0,4)}, {vr(xk(pr,0),4)}, {vr(tb,4)}, {c(SX0)}",
                f"v_mfma_f32_16x16x32_bf16 {vr(SX1,4)}, {vr(xk(pr,1),4)}, {vr(tb,4)}, {c(SX1)}",
                f"v_mfma_f32_16x16x32_bf16 {vr(SM,4)}, {vr(MK+4*pr,4)}, {vr(tb,4)}, {c(SM)}"]
    k("s_waitcnt lgkmcnt(2)")
    t1 = smm(1, TB[1], True); t0 = smm(0, T0R); t2 = smm(2, TB[0])
    k(t1[0]); k(t1[1])
    k(f"v_cvt_pk_bf16_f32 v{CV}, v{a}, v{a+1}")
    k(f"v_cvt_pk_bf16_f32 v{CV+1}, v{a+2}, v{a+3}")
    k(t1[2])
    k(f"ds_write_b64 v8, {vr(CV,2)} offset:{6*512}")
    k(f"ds_read_b64_tr_b16 {vr(CV,2)}, v9 offset:{6*512}")
    interleave(k, t0, {0: fc[0:2], 1: fc[2:4], 2: fc[4:6] + ["s_waitcnt lgkmcnt(2)"]})
    interleave(k, t2, {0: fc[6:8], 1: fc[8:10], 2: fc[10:12] + ["s_waitcnt lgkmcnt(0)"]})
    k(f"v_mfma_f32_16x16x16_bf16 {vr(SX0,4)}, {vr(XS,2)}, {vr(CV,2)}, {vr(SX0,4)}")
    k(f"v_mfma_f32_16x16x16_bf16 {vr(SX1,4)}, {vr(XS+2,2)}, {vr(CV,2)}, {vr(SX1,4)}")
    k(fc[12])
    k(f"v_mfma_f32_16x16x16_bf16 {vr(SM,4)}, {vr(MK+12,2)}, {vr(CV,2)}, {vr(SM,4)}")
    k(fc[13])
    k(f"v_cmp_eq_u32 vcc, -1, v{ACC[2]}")
    Y = TB[0]
    for r in range(4): k(f"v_add_f32_dpp v{Y+r}, v{SX0+r}, v{SX0+r} row_ror:8 row_mask:0xf bank_mask:0x3")
    for r in range(4): k(f"v_add_f32_dpp v{Y+r}, v{SX1+r}, v{SX1+r} row_ror:8 row_mask:0xf bank_mask:0xc")
    k(f"ds_write_b128 v10, {vr(Y,4)}")
    for r in range(4): k(f"v_add_f32_dpp v{Y+4}, v{SM+r}, v{SM+r} row_ror:8 row_mask:{'0x3' if r<2 else '0xc'} bank_mask:{'0xc' if r&1 else '0x3'}")
    k(f"ds_write_b32 v11, v{Y+4}")
    k(f"s_cbranch_vccnz {redo}")
    for r in range(2): k(f"v_mov_b64 {vr(ACC[1]+2*r,2)}, 0")
    k("s_waitcnt lgkmcnt(0)")
    k("s_barrier")
    stamp(k, 4)
    R = 16
    for q in range(4): k(f"ds_read_b64 {vr(R+2*q,2)}, v12 offset:{q*SPW}")
    k("s_waitcnt lgkmcnt(2)"); k(f"v_pk_add_f32 {vr(R,2)}, {vr(R,2)}, {vr(R+2,2)}")
    k("s_waitcnt lgkmcnt(0)"); k(f"v_pk_add_f32 {vr(R+4,2)}, {vr(R+4,2)}, {vr(R+6,2)}")
    k(f"v_pk_add_f32 {vr(R,2)}, {vr(R,2)}, {vr(R+4,2)}")
    def allred32(v, t, op):
        for sh in (8, 4, 2, 1):
            k(f"{op}_dpp v{v}, v{v}, v{v} row_ror:{sh} row_mask:0xf bank_mask:0xf")
        k(f"v_mov_b32 v{t}, v{v}")
        k(f"v_permlane16_swap_b32 v{v}, v{t}")
        k(f"{op} v{v}, v{v}, v{t}")
    slowmax = k.label("LAm"); publish = k.label("LAp")
    def normalise(check):
        k(f"v_exp_f32 v{R+4}, v{R}"); k(f"v_exp_f32 v{R+5}, v{R+1}")
        k(f"v_add_f32 v{R+2}, v{R+4}, v{R+5}")
        allred32(R+2, R+3, "v_add_f32")
        if check:
            k(f"v_med3_f32 v{R+3}, v{R+2}, s56, v0"); k(f"v_cmp_neq_f32 vcc, v{R+3}, v{R+2}")
        k(f"v_rcp_f32 v{R+2}, v{R+2}")
        k(f"v_mul_f32 v{R+4}, v{R+4}, v{R+2}"); k(f"v_mul_f32 v{R+5}, v{R+5}, v{R+2}")
        k(f"v_cvt_pk_bf16_f32 v{R+4}, v{R+4}, v{R+5}")
        k(f"v_min_u32 v{R+4}, -2, v{R+4}")
    normalise(True)
    k(f"s_cbranch_vccnz {slowmax}")
    k.place(publish)
    k(f"buffer_store_dword v{R+4}, v13, {WL}, s65 offen {st}")
    stamp(k, 5)
    if XACK:
        k("s_waitcnt vmcnt(0)"); stamp(k, 6)
    k("s_barrier")
    k("s_add_u32 s98, s98, 1")
    ugate(k, "s98", "v_lshlrev_b32 v24, 3, v1", 24, abort)
    loadx()
    if ASL: k(f"s_sleep {ASL}")
    if not XACK: stamp(k, 6)
    stamp_acc(k, 7)
    k(f"s_add_u32 s65, s65, {L.PSZ}"); k(f"s_add_u32 s61, s61, {L.MSTEP}")
    if gen.TL:
        for (n, ix) in ((53, 2), (33, 3)):
            lz = k.label(); k(f"s_cmp_lg_u32 s67, {n}"); k(f"s_cbranch_scc1 {lz}"); gen.tl(k, ix, 20); k.place(lz)
    k("s_sub_u32 s67, s67, 1"); k("s_cmp_lg_u32 s67, 0"); k(f"s_cbranch_scc1 {loop}")
    gen.tl(k, 4, 16)
    stamp_out(k)
    out = k.label("LAo"); k(f"s_branch {out}")
    k.place(slowmax)
    k(f"v_max_f32 v{R+2}, v{R}, v{R+1}")
    allred32(R+2, R+3, "v_max_f32")
    k(f"v_sub_f32 v{R}, v{R}, v{R+2}"); k(f"v_sub_f32 v{R+1}, v{R+1}, v{R+2}")
    normalise(False)
    k(f"s_branch {publish}")
    k.place(redo)
    k("s_waitcnt lgkmcnt(0)"); k("s_barrier")
    for r in range(2): k(f"v_mov_b64 {vr(ACC[1]+2*r,2)}, 0")
    k(f"s_branch {loop}")
    k.place(out)

def setup_A(k, abort):
    TT = 8192; SP = TT + 4*3584
    mem_common_setup(k)
    k(f"s_cmp_eq_u32 s{S_WAVE}, 3"); k("s_cselect_b32 s46, 0, 1024"); k("v_add_u32 v4, s46, v3"); k("s_cselect_b64 vcc, -1, 0"); k("v_cndmask_b32 v4, v4, v1, vcc")
    k(f"s_lshr_b32 s46, s{S_WAVE}, 1"); k("s_mul_i32 s46, s46, 7")
    k(f"s_and_b32 s69, s{S_WAVE}, 1")
    k("s_lshl_b32 s66, s69, 2"); k("s_add_u32 s66, s66, s46")
    k("s_add_u32 s68, s46, 3")
    k("v_min_u32 v16, 27, v0"); k("v_lshrrev_b32 v17, 2, v16"); k("v_and_b32 v16, 3, v16"); k("v_lshlrev_b32 v16, 2, v16"); k("v_lshl_add_u32 v16, v17, 7, v16")
    k(f"s_mul_i32 s54, s60, {7*128}"); k(f"s_add_u32 s54, s54, {L.SF(0)}"); k("s_mov_b32 s55, 0")
    k(f"s_mul_i32 s47, s60, 28"); k("s_lshl_b32 s48, s66, 1"); k("s_add_u32 s48, s48, s47")
    k(f"s_mul_i32 s48, s48, {14*1024}"); k(f"s_add_u32 s48, s48, {L.WQ}")
    k("s_lshl_b32 s49, s68, 1"); k("s_add_u32 s49, s49, s69"); k("s_add_u32 s49, s49, s47")
    k(f"s_mul_i32 s49, s49, {14*1024}"); k(f"s_add_u32 s49, s49, {L.WQ}")
    for r in range(4):
        slab_round_wait(k, r, "s54", 16, 17, abort)
        for i in range(7):
            k(f"s_add_u32 s50, s{48 if i < 6 else 49}, {(i*14*1024 if i < 6 else 0) + r*4096}")
            for ks in range(4*r, min(4*r+4, 14)):
                n = i*14 + ks; reg = 256 + 4*n if n < 64 else 120 + 4*(n-64)
                k(f"buffer_load_dwordx4 {vr(reg,4)}, v1, {WS}, s50 offen offset:{(ks%4)*1024} sc1")
    k("v_and_b32 v16, 15, v0")
    k("v_lshrrev_b32 v17, 4, v0")
    k("v_bfe_u32 v18, v0, 1, 1"); k("v_lshlrev_b32 v18, 2, v18")
    k("v_bfe_u32 v19, v0, 2, 1"); k("v_lshl_add_u32 v18, v19, 1, v18")
    k("v_and_b32 v19, 1, v0"); k("v_add_u32 v18, v18, v19")
    k("v_lshlrev_b32 v18, 4, v18")
    k("v_lshrrev_b32 v19, 1, v17"); k("v_lshl_add_u32 v18, v19, 8, v18")
    k("v_and_b32 v19, 1, v17"); k("v_lshl_add_u32 v18, v19, 3, v18")
    k("s_lshl_b32 s46, s66, 9"); k("v_add_u32 v7, s46, v18")
    k("v_add_u32 v15, 1024, v7")
    k("s_lshl_b32 s46, s68, 9"); k("s_lshl_b32 s47, s69, 2"); k("s_add_u32 s46, s46, s47")
    k("v_add_u32 v5, s46, v18")
    k(f"s_mul_i32 s46, s{S_WAVE}, 3584"); k(f"s_add_u32 s46, s46, {TT}")
    k("v_lshlrev_b32 v8, 5, v16"); k("v_lshl_add_u32 v8, v17, 3, v8"); k("v_add_u32 v8, s46, v8")
    k("v_lshlrev_b32 v9, 3, v0"); k("v_add_u32 v9, s46, v9")
    k(f"s_mul_i32 s46, s{S_WAVE}, {SPW}"); k(f"s_add_u32 s46, s46, {SP}")
    k("v_and_b32 v19, 7, v0"); k("v_mul_u32_u24 v18, 176, v19"); k("v_add_u32 v18, s46, v18")
    k("v_lshrrev_b32 v19, 3, v16")
    k("v_lshl_add_u32 v10, v17, 5, v18"); k("v_lshl_add_u32 v10, v19, 4, v10")
    k("v_and_b32 v20, 1, v17"); k("v_lshl_add_u32 v11, v20, 4, v18")
    k("v_lshrrev_b32 v20, 1, v17"); k("v_lshl_add_u32 v11, v20, 3, v11")
    k("v_lshl_add_u32 v11, v19, 2, v11"); k("v_add_u32 v11, 128, v11")
    k(f"v_mov_b32 v20, {hx(f2u(-1e30))}"); k("v_mov_b32 v21, v20")
    k("ds_write_b64 v18, v[20:21] offset:160")
    k("v_and_b32 v19, 31, v0"); k("v_lshrrev_b32 v20, 5, v0")
    k(f"s_lshl_b32 s46, s{S_WAVE}, 1"); k("v_add_u32 v20, s46, v20")
    k("v_lshlrev_b32 v21, 3, v19"); k("v_cmp_gt_u32 vcc, 20, v19"); k("v_mov_b32 v22, 160")
    k("v_cndmask_b32 v21, v22, v21, vcc")
    k("v_mul_u32_u24 v22, 176, v20"); k("v_add_u32 v12, v21, v22"); k(f"v_add_u32 v12, {SP}, v12")
    k("v_lshrrev_b32 v21, 2, v19"); k("v_lshl_add_u32 v21, v21, 3, v20"); k("v_lshlrev_b32 v21, 4, v21")
    k("v_and_b32 v22, 3, v19"); k("v_lshl_add_u32 v21, v22, 2, v21")
    k("v_mov_b32 v22, 0x7fffffff"); k("v_cndmask_b32 v13, v22, v21, vcc")
    k("s_lshl_b32 s46, s68, 10"); k("s_lshl_b32 s47, s69, 3"); k("s_add_u32 s46, s46, s47")
    k("v_add_u32 v14, s46, v1")
    k("s_lshl_b32 s46, s66, 10"); k("v_add_u32 v6, s46, v1")
    k(f"s_mov_b32 s56, {hx(f2u(2.0**-60))}"); k(f"v_mov_b32 v0, {hx(f2u(2.0**60))}")
    k("s_waitcnt vmcnt(0) lgkmcnt(0)")

B_TB = 8192
B_OUT = B_TB + 8192
B_LW = B_OUT + 8192
CHAIN_LDS = B_LW + 4*28*1024

def setup_B(k, abort):
    mem_common_setup(k)
    k("v_lshrrev_b32 v131, 2, v0"); k(f"v_mul_u32_u24 v131, {7*128}, v131"); k("v_and_b32 v130, 3, v0"); k("v_lshl_add_u32 v130, v130, 2, v131")
    k("s_lshr_b32 s54, s60, 1"); k("s_lshl_b32 s54, s54, 7"); k(f"s_add_u32 s54, s54, {L.SF(0) + 112*128}"); k("s_mov_b32 s55, 0")
    k(f"s_lshl_b32 s46, s{S_WAVE}, 2"); k("s_mul_i32 s46, s46, 28"); k("s_lshl_b32 s47, s60, 1"); k("s_add_u32 s46, s46, s47")
    k(f"s_mul_i32 s46, s46, {14*1024}"); k(f"s_add_u32 s46, s46, {L.WV}")
    k(f"s_mul_i32 s47, s{S_WAVE}, {28*1024}"); k(f"s_add_u32 s47, s47, {B_LW}")
    k("v_add_u32 v15, s47, v1")
    for r in range(4):
        slab_round_wait(k, r, "s54", 130, 131, abort)
        for hh in range(4):
            for t in range(2):
                k(f"s_add_u32 s48, s46, {(hh*28 + t)*14*1024 + r*4096}")
                for ks in range(4*r, min(4*r+4, 14)):
                    n = t*14 + ks; q = hh*28 + n
                    reg = 16 + 4*n if hh == 3 else (256 + 4*q if q < 64 else 176 + 4*(q-64))
                    k(f"buffer_load_dwordx4 {vr(reg,4)}, v1, {WS}, s48 offen offset:{(ks%4)*1024} sc1")
    k("s_waitcnt vmcnt(0)")
    for n in range(28): k(f"ds_write_b128 v15, {vr(16+4*n,4)} offset:{n*1024}")
    k("s_waitcnt lgkmcnt(0)")
    k("v_and_b32 v16, 15, v0"); k("v_lshrrev_b32 v17, 4, v0"); k("v_and_b32 v18, 7, v0")
    k(f"s_mul_i32 s46, s{S_WAVE}, 2560")
    k("v_lshl_add_u32 v7, v17, 3, v18"); k("v_lshlrev_b32 v7, 4, v7"); k("v_add_u32 v7, s46, v7")
    k("v_lshrrev_b32 v19, 3, v16"); k("v_mul_u32_u24 v19, 640, v19"); k("v_add_u32 v7, v7, v19")
    k("v_mul_u32_u24 v8, 640, v17"); k("v_lshl_add_u32 v8, v18, 4, v8"); k("v_add_u32 v8, s46, v8"); k("v_add_u32 v8, 512, v8")
    k(f"v_mul_u32_u24 v19, {28*1024}, v17"); k("v_lshl_add_u32 v19, v16, 7, v19"); k("v_mov_b32 v20, 0x7fffffff")
    k(f"v_cmp_gt_u32 vcc, {NB}, v16"); k("v_cndmask_b32 v5, v20, v19, vcc")
    k(f"s_lshl_b32 s46, s{S_WAVE}, 11"); k(f"s_add_u32 s47, s46, {B_TB}")
    k("v_lshlrev_b32 v9, 4, v16"); k("v_lshl_add_u32 v9, v17, 2, v9"); k("v_add_u32 v9, s47, v9")
    k("v_add_u32 v10, s47, v1")
    k(f"s_lshl_b32 s46, s{S_WAVE}, 10"); k(f"s_add_u32 s47, s46, {B_OUT}"); k("v_add_u32 v11, s47, v1")
    k("v_bfe_u32 v19, v0, 2, 3"); k("v_lshrrev_b32 v20, 5, v0"); k("v_bfe_u32 v21, v0, 1, 1"); k("v_and_b32 v22, 1, v0")
    k(f"s_lshl_b32 s46, s{S_WAVE}, 1"); k("s_and_b32 s46, s46, 2"); k("v_add_u32 v21, s46, v21")
    k("v_lshl_add_u32 v12, v21, 4, v19"); k("v_lshlrev_b32 v12, 4, v12"); k("v_lshl_add_u32 v12, v22, 7, v12")
    k("v_lshl_add_u32 v12, v20, 3, v12"); k(f"v_add_u32 v12, {B_OUT}, v12")
    k("s_lshl_b32 s47, s60, 9"); k("s_lshl_b32 s48, s46, 7"); k("s_add_u32 s48, s48, s47")
    k("v_lshlrev_b32 v13, 2, v0"); k("v_add_u32 v13, s48, v13")
    k("v_lshlrev_b32 v14, 7, v21"); k("v_lshl_add_u32 v14, v19, 4, v14"); k("v_lshl_add_u32 v14, v22, 3, v14")
    k("v_lshl_add_u32 v14, v20, 2, v14"); k("v_add_u32 v14, s47, v14")
    k("v_mov_b32 v19, 0x7fffffff"); k(f"s_cmp_ge_u32 s{S_WAVE}, 2"); k("s_cselect_b64 vcc, -1, 0"); k("v_cndmask_b32 v14, v14, v19, vcc"); k("v_cndmask_b32 v13, v13, v19, vcc")
    lane0_addr(k, 6, 19); k("v_mov_b32 v0, 1")
    k("s_waitcnt vmcnt(0)")

def gen_chain_B(k, st, abort):
    ACC = [52, 56, 60]; FT = 64; HOLD = 67; ZA = 68; U = 76; P = 108; LW = 108; DUM = 66
    def W(hh, t, p):
        o = (hh*2 + t)*7 + p
        return vr(256 + 8*o, 8) if o < 32 else vr(176 + 8*(o-32), 8)
    loop = k.label("LB"); done = k.label("LBd"); first = k.label("LBf"); nofin = k.label("LBn")
    k(f"s_mov_b32 s61, {L.MEM[0]}"); k(f"s_mov_b32 s65, {L.PIM[0]}")
    k(f"s_lshl_b32 s62, s{S_WAVE}, 2"); k("s_mul_i32 s62, s62, 28"); k("s_lshl_b32 s46, s60, 1"); k("s_add_u32 s62, s62, s46")
    k("s_lshl_b32 s62, s62, 10"); k(f"s_add_u32 s62, s62, {L.UU[0]}")
    k(f"s_mul_i32 s63, s{S_WAVE}, 28"); k("s_add_u32 s63, s63, s46"); k("s_lshl_b32 s63, s63, 10"); k(f"s_add_u32 s63, s63, {L.VM[0] - L.VMSZ}")
    k(f"s_mov_b32 s66, {L.MEMN[0]}")
    k("s_mov_b32 s67, 0")
    k("s_mov_b32 s96, 0"); k(f"s_mov_b32 s99, {L.FIN(0)}")
    stamp_init(k)
    k.place(loop)
    if True:
        k("s_add_u32 s98, s67, 1")
        ugate(k, "s98", "v_lshlrev_b32 v108, 3, v1", 108, abort)
    k("s_cmp_eq_u32 s67, 0"); k(f"s_cselect_b32 s57, {L.SPARE[0]}, s63"); k(f"s_cselect_b32 s58, {L.SPARE[0]}, s66")
    again = k.label("LBa"); k.place(again)
    TA = [52, 56, 60, 164, 168, 172, 44, 48]
    zero = [f"v_mov_b64 {vr(a_+2*h,2)}, 0" for a_ in TA for h in range(2)]
    stamp(k, 0)
    poll_mem(k, 61, abort, FT, zero)
    stamp(k, 1)
    k("s_barrier")
    stamp(k, 2)
    for p in range(7): k(f"ds_read_b128 {vr(M+4*p,4)}, v1 offset:{p*1024}")
    if NB:
        k(f"s_add_u32 s64, s62, {16*28*1024}")
        k(f"buffer_load_dword v{DUM}, v5, {WL}, s64 offen")
    exports = [f"buffer_store_dwordx4 {vr(ZA,4)}, v1, {WL}, s57 offen sc1", f"buffer_store_dwordx4 {vr(ZA+4,4)}, v1, {WL}, s57 offen offset:1024 sc1",
               f"buffer_store_dword v{HOLD}, v14, {WL}, s58 offen sc1"]
    uload = []
    for hh in range(4):
        for t in range(2):
            pre = [f"s_add_u32 s64, s62, {hh*28*1024}"] if (hh and t == 0) else []
            uload.append(pre + [f"buffer_load_dwordx4 {vr(U+(hh*2+t)*4,4)}, v1, {WL}, {'s64' if hh else 's62'} offen offset:{t*1024} sc1"])
    order = [(0,0),(0,1),(1,0),(3,0),(1,1),(2,0),(2,1),(3,1)]
    def fold(j):
        pa = TA[j]; hh, t = order[j]
        return [f"v_permlane32_swap_b32 v{pa}, v{pa+2}", f"v_permlane32_swap_b32 v{pa+1}, v{pa+3}",
                f"v_add_f32 v{pa}, v{pa}, v{pa+2}", f"v_add_f32 v{pa+1}, v{pa+1}, v{pa+3}",
                f"v_cvt_pk_bf16_f32 v{pa}, v{pa}, v{pa+1}", f"v_min_u32 v{pa}, -2, v{pa}\nds_write_b32 v9, v{pa} offset:{t*1024+hh*256}"]
    lw = [[f"ds_read_b128 {vr(LW+4*(n%14),4)}, v15 offset:{n*1024}" for n in range(14*u, 14*u+14)] for u in range(2)]
    vm = exports + uload
    plan = {i: [[] for _ in range(7)] for i in range(8)}
    for p in range(7): plan[0][p].append(lw[0][p])
    for n, (ti, g) in zip(range(7, 14), [(1,0),(1,2),(1,3),(1,4),(1,5),(2,2),(2,3)]): plan[ti][g].append(lw[0][n])
    for n, (ti, g) in enumerate([(4,2),(4,3),(4,4),(4,5),(4,6),(5,2),(5,3),(5,4),(5,5),(5,6),(6,2),(6,3),(6,4),(6,5)]): plan[ti][g].append(lw[1][n])
    for e, (ti, g) in zip(vm, VMPOS): plan[ti][g] += (e if isinstance(e, list) else [e])
    for i in range(1, 8):
        f = fold(i-1)
        for q in range(5): plan[i][2+q].append(f[q])
        if i < 7: plan[i+1][0].insert(0, f[5])
    for i, (hh, t) in enumerate(order):
        a = TA[i]
        if hh == 3: k("s_waitcnt lgkmcnt(0)")
        main = [f"v_smfmac_f32_16x16x64_bf16 {vr(a,4)}, {vr(M+4*p,4)}, {W(hh,t,p) if hh<3 else vr(LW+8*p,8)}, v2" for p in range(7)]
        if i == 0:
            for p in range(7): main[p] = "s_waitcnt lgkmcnt(6)\n" + main[p]
        if DIAG == 2 and i == 0: stamp(k, 3)
        interleave(k, main, dict(enumerate(plan[i])))
        if DIAG == 2 and i == 2: stamp(k, 4)
        if DIAG == 2 and i == 5: stamp(k, 5)
    fc = mem_full_check(M, FT)
    k(fold(6)[5])
    for x in fc[:6]: k(x)
    for x in fold(7): k(x)
    k(f"ds_read_b128 {vr(ZA,4)}, v10"); k(f"ds_read_b128 {vr(ZA+4,4)}, v10 offset:1024")
    for x in fc[6:]: k(x)
    redo = k.label("LBr")
    k(f"v_cmp_eq_u32 vcc, -1, v{FT}"); k(f"s_cbranch_vccnz {redo}")
    k(f"s_add_u32 s62, s62, {16*28*1024}"); k(f"s_add_u32 s61, s61, {L.MSTEP}")
    k(f"s_add_u32 s63, s63, {L.VMSZ}"); k(f"s_add_u32 s66, s66, {L.MEMSZ}")
    stamp(k, 3 if DIAG != 2 else 6)
    k("s_cmp_eq_u32 s67, 63"); k(f"s_cbranch_scc1 {done}")
    lp = k.label("Lpp")
    Q = P; OUT = P + 24
    k("s_waitcnt lgkmcnt(0)")
    if BPS: k(f"s_sleep {BPS}")
    k.place(lp)
    for r in range(8): k(f"v_mov_b64 {vr(OUT+2*r,2)}, 0")
    def pv(heads, q):
        o = []
        for hh in heads:
            for t in range(2):
                d = OUT + 8*(hh & 1) + 4*t
                o.append(f"v_mfma_f32_16x16x32_bf16 {vr(d,4)}, {vr(U+(hh*2+t)*4,4)}, {vr(q,4)}, {vr(d,4)}")
        o.insert(1, f"v_max3_u32 v{FT+1}, v{FT+1}, v{q+1}, v{q+2}"); o.insert(3, f"v_max_u32 v{FT+1}, v{FT+1}, v{q+3}")
        return o
    mm = [f"v_mfma_f32_16x16x32_bf16 {vr(OUT,4)}, {vr(ZA,4)}, {vr(Q+8,4)}, {vr(OUT,4)}", f"v_max3_u32 v{FT+1}, v{FT+1}, v{Q+9}, v{Q+10}",
          f"v_mfma_f32_16x16x32_bf16 {vr(OUT+4,4)}, {vr(ZA+4,4)}, {vr(Q+8,4)}, {vr(OUT+4,4)}", f"v_max_u32 v{FT+1}, v{FT+1}, v{Q+11}"]
    k(f"v_mov_b32 v{FT+1}, 0")
    poll_rot(k, [(f"buffer_load_dwordx4 {vr(Q,4)}, v7, {WL}, s65 offen sc1", [Q], pv((0, 1), Q)),
                 (f"buffer_load_dwordx4 {vr(Q+4,4)}, v7, {WL}, s65 offen offset:1280 sc1", [Q+4], pv((2, 3), Q+4)),
                 (f"buffer_load_dwordx4 {vr(Q+8,4)}, v8, {WL}, s65 offen sc1", [Q+8], mm)], FT, abort)
    if DIAG != 2: stamp(k, 4)
    if DIAG == 1:
        k(f"s_sub_u32 s71, {TIMEOUT}, s70"); k("s_add_u32 s94, s94, s71")
    k(f"v_cmp_eq_u32 vcc, -1, v{FT+1}")
    Y = ACC[0]
    for r in range(4): k(f"v_add_f32_dpp v{Y+r}, v{OUT+8+r}, v{OUT+r} row_ror:8 row_mask:0xf bank_mask:0x3")
    for r in range(4): k(f"v_add_f32_dpp v{Y+r}, v{OUT+4+r}, v{OUT+12+r} row_ror:8 row_mask:0xf bank_mask:0xc")
    k(f"ds_write_b128 v11, {vr(Y,4)}")
    k(f"s_cbranch_vccnz {lp}")
    k(f"s_add_u32 s65, s65, {L.PSZ}")
    k("s_add_u32 s67, s67, 1")
    k("s_waitcnt lgkmcnt(0)")
    k("s_barrier")
    if DIAG != 2: stamp(k, 5)
    for q in range(4): k(f"ds_read_b64 {vr(U+2*q,2)}, v12 offset:{q*1024}")
    k("s_waitcnt lgkmcnt(2)"); k(f"v_pk_add_f32 {vr(U,2)}, {vr(U,2)}, {vr(U+2,2)}")
    k("s_waitcnt lgkmcnt(0)"); k(f"v_pk_add_f32 {vr(U+4,2)}, {vr(U+4,2)}, {vr(U+6,2)}")
    k(f"v_pk_add_f32 {vr(U,2)}, {vr(U,2)}, {vr(U+4,2)}")
    k(f"v_cvt_pk_bf16_f32 v{HOLD}, v{U}, v{U+1}")
    k(f"v_min_u32 v{HOLD}, -2, v{HOLD}")
    k(f"buffer_store_dword v{HOLD}, v13, {WL}, s61 offen {st}")
    k("s_cmp_lg_u32 s67, 63"); k(f"s_cbranch_scc1 {nofin}")
    k(f"buffer_store_dword v{HOLD}, v14, {WL}, s66 offen sc1")
    k.place(nofin)
    if DIAG != 2: stamp(k, 6)
    stamp_acc(k, 7)
    if BSL: k(f"s_sleep {BSL}")
    k(f"s_branch {loop}")
    k.place(redo)
    k("s_waitcnt vmcnt(0) lgkmcnt(0)"); k("s_barrier"); k(f"s_mov_b32 s57, {L.SPARE[0]}"); k("s_mov_b32 s58, s57"); k(f"s_branch {again}")
    k.place(done)
    k("s_waitcnt lgkmcnt(0)")
    k(f"buffer_store_dwordx4 {vr(ZA,4)}, v1, {WL}, s63 offen sc1")
    k(f"buffer_store_dwordx4 {vr(ZA+4,4)}, v1, {WL}, s63 offen offset:1024 sc1")
    stamp_out(k)

def gen_chain_P(k, abort):
    k(f"s_lshl_b32 s46, s60, 2"); k(f"s_add_u32 s46, s46, s{S_WAVE}")
    k("s_mov_b32 s94, s46")
    k("v_lshlrev_b32 v1, 7, v0"); k("v_mov_b32 v20, 0x7fffffff")
    k(f"s_mul_i32 s47, s46, {448*128}"); k("v_add_u32 v2, s47, v1")
    k("v_and_b32 v3, 15, v0"); k(f"v_cmp_le_u32 vcc, {NB}, v3"); k("v_cndmask_b32 v3, v20, v2, vcc")
    k(f"s_mul_i32 s47, s46, {28*128}"); k("v_add_u32 v4, s47, v1"); k("v_cmp_gt_u32 vcc, 28, v0"); k("v_cndmask_b32 v4, v20, v4, vcc")
    k(f"s_mul_i32 s47, s46, {7*L.NMC*128}"); k("v_add_u32 v5, s47, v1"); k(f"v_cmp_gt_u32 vcc, {7*L.NMC}, v0"); k("v_cndmask_b32 v5, v20, v5, vcc")
    k(f"s_mul_i32 s47, s46, {10*L.NPC*128}"); k("v_add_u32 v6, s47, v1"); k(f"v_cmp_gt_u32 vcc, {10*L.NPC}, v0"); k("v_cndmask_b32 v6, v20, v6, vcc")
    k("v_min_u32 v7, 27, v0"); k("v_lshlrev_b32 v7, 8, v7")
    k("v_mov_b32 v12, 0"); k(f"s_mov_b32 s99, {L.PROG(0)}"); k("s_mov_b32 s95, 1")
    k(f"s_mov_b32 s62, {L.UU[0]}"); k(f"s_mov_b32 s63, {L.XTA[0]}")
    k(f"s_mov_b32 s64, {L.MEM[0]+L.MSTEP}"); k(f"s_mov_b32 s65, {L.PIM[0]}")
    k(f"s_mov_b32 s61, {L.MEM[0]}")
    def touch(v, mid=None):
        k(f"buffer_load_dword v8, v5, {WL}, s64 offen"); k(f"buffer_load_dword v8, v6, {WL}, s65 offen")
        k(f"buffer_load_dword v8, v4, {WL}, s63 offen")
        for j in range(7):
            if j == 3 and mid: mid()
            k(f"s_add_u32 s66, s62, {j*8192}")
            k(f"buffer_load_dword v8, v{v}, {WL}, s66 offen")
        k(f"s_add_u32 s62, s62, {16*28*1024}"); k(f"s_add_u32 s63, s63, {28*1024}")
        k(f"s_add_u32 s64, s64, {L.MSTEP}"); k(f"s_add_u32 s65, s65, {L.PSZ}")
    def probe(): k(f"buffer_load_dword v9, v7, {WL}, s61 offen sc1")
    k("s_mov_b32 s96, 0"); k("s_mov_b32 s98, 0")
    def pgate():
        ugate(k, "s98", "v_mov_b32 v24, v1", 24, abort); k("s_add_u32 s98, s98, 1")
    pgate(); touch(2)
    for i in range(1, PFD):
        pgate(); touch(3)
    k(f"s_add_u32 s61, s61, {L.MSTEP}")
    loop = k.label("LP"); lp = k.label("LPp"); go = k.label("LPg"); pend = k.label("LPe"); nt = k.label("LPn"); np_ = k.label("LPq")
    k.place(loop)
    k(f"s_cmp_ge_u32 s98, 63"); k(f"s_cbranch_scc1 {nt}")
    pgate()
    touch(3, probe)
    k("s_waitcnt vmcnt(4)")
    k("v_cmp_eq_u32 vcc, -1, v9"); k(f"s_cbranch_vccz {go}")
    k.place(nt)
    k(f"s_mov_b32 s70, {TIMEOUT}")
    k.place(lp)
    if PSL: k(f"s_sleep {PSL}")
    probe()
    k("s_sub_u32 s70, s70, 1"); k(f"s_cbranch_scc1 {abort}")
    k("s_waitcnt vmcnt(0)")
    k("v_cmp_eq_u32 vcc, -1, v9"); k(f"s_cbranch_vccnz {lp}")
    k.place(go)
    if True:
        k("s_cmp_lg_u32 s94, 0"); k(f"s_cbranch_scc1 {np_}")
        k("v_mov_b32 v13, s95"); k("s_mov_b64 exec, 1")
        k(f"buffer_store_dword v13, v12, {WL}, s99 offen sc1")
        k("s_mov_b64 exec, -1")
        k.place(np_)
    k(f"s_add_u32 s61, s61, {L.MSTEP}")
    k("s_add_u32 s95, s95, 1"); k("s_cmp_le_u32 s95, 63"); k(f"s_cbranch_scc1 {loop}")
    k.place(pend)

def chain_roles(k, ex):
    lP = k.label("LroleP")
    k("s_getreg_b32 s58, hwreg(HW_REG_XCC_ID)"); k("s_and_b32 s58, s58, 15"); k("s_add_u32 s58, s58, 1")
    body_init(k, ex)
    gen.tl(k, 15, 16, 0)
    k("s_cmp_ge_u32 s59, 30"); k(f"s_cbranch_scc1 {lP}")
    lB = k.label("LroleB")
    def agree(slow):
        lp = k.label("Lx")
        k("v_lshrrev_b32 v16, 2, v1"); k("v_min_u32 v16, 124, v16")
        k(f"s_mov_b32 s70, {TIMEOUT}")
        k.place(lp)
        k("buffer_load_dword v17, v16, s[8:11], 0 offen sc1")
        k("s_sub_u32 s70, s70, 1"); k(f"s_cbranch_scc1 {ex}")
        k("s_waitcnt vmcnt(0)")
        k("v_cmp_eq_u32 vcc, 0, v17"); k(f"s_cbranch_vccnz {lp}")
        k("v_cmp_ne_u32 vcc, s58, v17"); k(f"s_cbranch_vccnz {slow}")
    k("s_cmp_ge_u32 s59, 16"); k(f"s_cbranch_scc1 {lB}")
    k("s_mov_b32 s60, s59")
    setup_A(k, ex)
    sl = k.label("LslowA"); agree(sl)
    def per_wave(st):
        labs = [k.label("LAw") for _ in range(4)]
        for w in range(1, 4):
            k(f"s_cmp_eq_u32 s{S_WAVE}, {w}"); k(f"s_cbranch_scc1 {labs[w]}")
        for w in range(4):
            k.place(labs[w])
            top = k.label("Ltop"); k.place(top); gen_chain_A(k, st, ex, w); layer_next(k, top)
            k("s_endpgm")
    per_wave("")
    k.place(sl)
    per_wave("sc1")
    k.place(lB)
    k("s_sub_u32 s60, s59, 16")
    setup_B(k, ex)
    sl = k.label("LslowB"); agree(sl)
    top = k.label("Ltop"); k.place(top); gen_chain_B(k, "", ex); layer_next(k, top)
    k("s_endpgm")
    k.place(sl)
    top = k.label("Ltop"); k.place(top); gen_chain_B(k, "sc1", ex); layer_next(k, top)
    k("s_endpgm")
    k.place(lP)
    k("s_sub_u32 s60, s59, 30")
    top = k.label("Ltop"); k.place(top); gen_chain_P(k, ex); layer_next(k, top)
    k("s_endpgm")
```

```python
import struct, sys
from asmlib import *
import layout as L

def f2u(x): return struct.unpack("<I", struct.pack("<f", x))[0]
def hx(x): return hex(x & 0xffffffff)

S_WS = 4
P_X, P_MEM0, P_WQ, P_WK, P_WV, P_WO = 16, 18, 20, 22, 24, 26
P_BQ, P_BK, P_BV, P_BO = 32, 34, 36, 38
P_OUT, P_DBG, P_WS = 40, 42, 44
S_WAVE = 3

def srd(k, d, base, nbytes):
    k(f"s_mov_b32 s{d}, s{base}")
    k(f"s_and_b32 s{d+1}, s{base+1}, 0xffff")
    k(f"s_mov_b32 s{d+2}, {hx(nbytes)}")
    k(f"s_mov_b32 s{d+3}, 0x20000")

def prologue(k, nwg):
    k(f"s_cmp_ge_u32 s2, {nwg}")
    k(f"s_cbranch_scc1 Lexit_{k.name}")
    k("s_load_dwordx16 s[16:31], s[0:1], 0")
    k("s_load_dwordx8 s[32:39], s[0:1], 64")
    k("s_load_dwordx4 s[40:43], s[0:1], 96")
    k("s_load_dwordx2 s[44:45], s[0:1], 112")
    k("v_lshrrev_b32 v1, 6, v0")
    k(f"v_readfirstlane_b32 s{S_WAVE}, v1")
    k("v_and_b32 v0, 63, v0")
    k("s_waitcnt lgkmcnt(0)")
    srd(k, S_WS, P_WS, L.WS_BYTES)

def epilogue(k):
    k.place(f"Lexit_{k.name}")
    k("s_endpgm")

WS = "s[4:7]"
WL = "s[12:15]"
S_LAYER = 0

def xreduce_g(k, v, tmp, op):
    k(f"v_mov_b32 v{tmp}, v{v}")
    k(f"v_permlane16_swap_b32 v{v}, v{tmp}")
    k(f"{op} v{v}, v{v}, v{tmp}")
    k(f"v_mov_b32 v{tmp}, v{v}")
    k(f"v_permlane32_swap_b32 v{v}, v{tmp}")
    k(f"{op} v{v}, v{v}, v{tmp}")

def div7(k, sq, srem, sx):
    k(f"s_mul_i32 s{sq}, s{sx}, 9363")
    k(f"s_lshr_b32 s{sq}, s{sq}, 16")
    k(f"s_mul_i32 s{srem}, s{sq}, 7")
    k(f"s_sub_u32 s{srem}, s{sx}, s{srem}")

TLBW = 0
SLAB_LDS = 32768
DBG_INIT = 128

def lane_parts(k):
    k("v_and_b32 v2, 15, v0"); k("v_lshrrev_b32 v3, 4, v0")
    k("v_lshrrev_b32 v4, 2, v2"); k("v_lshlrev_b32 v4, 3, v4"); k("v_and_b32 v5, 3, v2"); k("v_add_u32 v4, v4, v5")
    k("v_lshlrev_b32 v6, 4, v0")

def wait_init(k, abort, vt):
    srd(k, 8, P_DBG, 256)
    k(f"v_mov_b32 v{vt}, {DBG_INIT}")
    wait_words(k, "0", vt, vt+1, 32, abort, nap=1, srd_="s[8:11]")

RING_LDS = SLAB_LDS + 56*1024
SLAB_END = RING_LDS + 4*16384

def body_slab(k, sb, abort):
    lane_parts(k)
    div7(k, 47, 48, sb)
    k("s_and_b32 s49, s47, 15"); k("s_lshr_b32 s50, s47, 4")
    k("s_cmp_eq_u32 s50, 0")
    k(f"s_cselect_b32 s8, s{P_WQ}, s{P_WV}"); k(f"s_cselect_b32 s9, s{P_WQ+1}, s{P_WV+1}"); k("s_and_b32 s9, s9, 0xffff")
    k(f"s_mov_b32 s10, {448*8192}"); k("s_mov_b32 s11, 0x20000")
    k("s_lshl_b32 s51, s49, 9")
    if TLBW:
        k("v_lshlrev_b32 v9, 16, v0"); k("buffer_load_dword v59, v9, s[8:11], s51 offen")
    k("v_lshrrev_b32 v9, 2, v0"); k("v_lshlrev_b32 v9, 13, v9"); k("v_and_b32 v10, 3, v0"); k("v_lshl_add_u32 v9, v10, 7, v9")
    k("s_lshl_b32 s54, s48, 2"); k(f"s_add_u32 s54, s54, s{S_WAVE}"); k("s_lshl_b32 s54, s54, 17"); k("s_add_u32 s54, s54, s51")
    k("buffer_load_dword v58, v9, s[8:11], s54 offen")
    k("v_lshrrev_b32 v9, 3, v0"); k("v_and_b32 v10, 7, v0"); k("v_xor_b32 v10, v10, v9")
    k("v_lshrrev_b32 v11, 5, v0"); k("v_and_b32 v9, 3, v9"); k("v_lshl_add_u32 v9, v11, 3, v9"); k("v_lshlrev_b32 v8, 13, v9"); k("v_lshl_add_u32 v8, v10, 4, v8")
    k("v_and_b32 v9, 7, v0"); k("v_xor_b32 v10, v3, v9"); k("v_lshl_add_u32 v10, v9, 3, v10"); k("v_lshlrev_b32 v10, 4, v10")
    k("v_bfe_u32 v9, v0, 3, 1"); k("v_lshl_add_u32 v10, v9, 12, v10")
    k(f"s_lshl_b32 s60, s{S_WAVE}, 14"); k(f"s_add_u32 s60, s60, {RING_LDS}")
    k("v_add_u32 v56, s60, v10"); k("v_xor_b32 v57, 64, v56")
    def dma_tile(srd_, sbase, ldsreg, ldsoff):
        k(f"s_add_u32 s55, s{sbase}, {16*8192}")
        for rh in range(2):
            for ln in range(4):
                k(f"s_add_u32 m0, s{ldsreg}, {ldsoff + (rh*4+ln)*1024 - ln*128}")
                k(f"buffer_load_dwordx4 v8, {srd_}, s{sbase if rh == 0 else 55} offen offset:{ln*128} lds")
    BA = 64
    lvt = k.label(); lbd = k.label()
    k(f"s_lshl_b32 s61, s{S_WAVE}, 13")
    srd(k, 64, P_WK, 448*8192)
    k("s_cmp_eq_u32 s50, 1"); k(f"s_cbranch_scc1 {lvt}")
    k(f"s_lshr_b32 s53, s{S_WAVE}, 1"); k("s_lshl_b32 s53, s53, 5")
    k(f"s_and_b32 s54, s{S_WAVE}, 1"); k("s_lshl_b32 s54, s54, 2"); k("s_add_u32 s53, s53, s54")
    k("s_lshl_b32 s54, s48, 6"); k("s_add_u32 s53, s53, s54")
    k("s_lshl_b32 s54, s53, 13"); k("s_add_u32 s54, s54, s51")
    dma_tile("s[64:67]", 54, 61, 0)
    k(f"s_branch {lbd}")
    k.place(lvt)
    srd(k, 64, P_WO, 16*229376)
    k("v_lshrrev_b32 v9, 3, v0"); k("v_mul_u32_u24 v9, 896, v9"); k("v_and_b32 v11, 7, v0"); k("v_lshl_add_u32 v9, v11, 4, v9")
    k("s_mul_i32 s54, s49, 229376"); k("s_lshl_b32 s55, s48, 7"); k("s_add_u32 s54, s54, s55"); k(f"s_mul_i32 s55, s{S_WAVE}, {64*896}"); k("s_add_u32 s54, s54, s55")
    for i in range(8):
        k(f"s_add_u32 m0, s61, {i*1024}")
        k(f"buffer_load_dwordx4 v9, s[64:67], s54 offen lds")
        if i < 7: k(f"s_add_u32 s54, s54, {8*896}")
    k.place(lbd)
    def atile(j):
        i, t = j >> 1, j & 1
        k(f"s_add_u32 s54, s{S_WAVE}, {4*i}"); k("s_lshl_b32 s54, s54, 18"); k("s_add_u32 s54, s54, s51")
        if t: k(f"s_add_u32 s54, s54, {4*8192}")
        dma_tile("s[8:11]", 54, 60, (j & 1)*8192)
    def aread(j):
        for ks in range(8): k(f"ds_read_b128 {vr(256+j*32+ks*4,4)}, v{56+(ks&1)} offset:{(j&1)*8192 + (ks>>1)*1024}")
    if TL == 2: k("s_memrealtime s[70:71]")
    atile(0); atile(1)
    if TL == 2: k("s_memrealtime s[72:73]")
    k(f"s_lshl_b32 s46, s{sb}, 2"); k(f"s_add_u32 s46, s46, s{S_WAVE}")
    lo = k.label(); lk = k.label(); lv = k.label(); lj = k.label()
    def blk(base):
        k(f"s_sub_u32 s52, s46, {base}"); k("s_mul_i32 s53, s52, 4682"); k("s_lshr_b32 s53, s53, 16"); k("s_mul_i32 s54, s53, 14"); k("s_sub_u32 s54, s52, s54")
        k("s_lshl_b32 s52, s52, 10")
    k("s_cmp_ge_u32 s46, 812"); k(f"s_cbranch_scc1 {lv}")
    k("s_cmp_ge_u32 s46, 784"); k(f"s_cbranch_scc1 {lk}")
    k("s_cmp_ge_u32 s46, 392"); k(f"s_cbranch_scc1 {lo}")
    blk(0); srd(k, 64, P_BQ, 448*896); k("s_mov_b32 s55, 896"); k("s_lshl_b32 s53, s53, 4"); k("v_add_u32 v7, s53, v2"); k(f"s_add_u32 s52, s52, {L.WBQ}"); k(f"s_branch {lj}")
    k.place(lo)
    blk(392); srd(k, 64, P_BO, 448*896); k("s_mov_b32 s55, 896")
    k("s_and_b32 s56, s53, 1"); k("s_lshr_b32 s53, s53, 1"); k("s_lshl_b32 s53, s53, 5"); k("s_lshl_b32 s56, s56, 2"); k("s_add_u32 s53, s53, s56")
    k("v_add_u32 v7, s53, v4"); k(f"s_add_u32 s52, s52, {L.WBO}"); k(f"s_branch {lj}")
    k.place(lk)
    blk(784); srd(k, 64, P_BK, 448*56); k("s_mov_b32 s55, 56"); k("s_lshl_b32 s53, s53, 2"); k("v_add_u32 v7, s53, v4"); k(f"s_add_u32 s52, s52, {L.WBK}"); k(f"s_branch {lj}")
    k.place(lv)
    blk(812); srd(k, 64, P_BV, 448*56); k("s_mov_b32 s55, 56"); k("s_lshl_b32 s53, s53, 4"); k("v_add_u32 v7, s53, v2"); k(f"s_add_u32 s52, s52, {L.WBV}")
    k("s_cmp_ge_u32 s46, 840"); k(f"s_cselect_b32 s52, {L.SPARE[0]}, s52")
    k.place(lj)
    k("s_lshl_b32 s53, s54, 5"); k("v_lshlrev_b32 v12, 3, v3"); k("v_add_u32 v12, s53, v12"); k("v_mul_lo_u32 v12, v12, s55")
    k("v_lshlrev_b32 v11, 1, v7"); k("v_cmp_le_u32 vcc, s55, v11"); k("v_add_u32 v12, v12, v11"); k("v_mov_b32 v11, 0x7fffffff"); k("v_cndmask_b32 v12, v12, v11, vcc")
    k("s_mov_b32 s53, 0")
    for j in range(8):
        k(f"buffer_load_ushort v{48+j}, v12, s[64:67], s53 offen")
        if j < 7: k("s_add_u32 s53, s53, s55")
    k("s_waitcnt vmcnt(24)"); k("s_barrier")
    srd(k, 64, P_DBG, 256); k(f"v_mov_b32 v13, {DBG_INIT}")
    if TL == 2: k("s_memrealtime s[74:75]")
    lq2 = k.label(); lr2 = k.label()
    k("s_cmp_eq_u32 s50, 0"); k(f"s_cbranch_scc1 {lq2}")
    k("v_bfe_u32 v9, v0, 2, 2"); k("v_lshl_add_u32 v9, v3, 3, v9"); k("v_lshlrev_b32 v9, 7, v9"); k("v_and_b32 v11, 3, v0"); k("v_lshl_add_u32 v9, v11, 4, v9")
    for tt in range(4):
        for ks in range(8):
            for h in range(2):
                k(f"ds_read_b64_tr_b16 {vr(BA+(tt*8+ks)*4+2*h,2)}, v9 offset:{(32*ks+4*h)*128 + (32*(tt>>1)+4*(tt&1))*2}")
            if ks % 4 == 3: k("s_waitcnt lgkmcnt(4)")
    k(f"s_branch {lr2}")
    k.place(lq2)
    k("v_xor_b32 v11, 64, v10")
    for tt in range(4):
        for ks in range(8): k(f"ds_read_b128 {vr(BA+(tt*8+ks)*4,4)}, v{10+(ks&1)} offset:{tt*8192 + (ks>>1)*1024}")
        k("s_waitcnt lgkmcnt(4)")
    k.place(lr2)
    k("s_cmp_eq_u32 s50, 0")
    k(f"s_cselect_b32 s56, {hx(f2u(L.LOG2E/16))}, {hx(f2u(1.0))}")
    k(f"s_cselect_b32 s57, {L.WQ}, {L.WV}")
    k("s_mul_i32 s58, s49, 28"); k("s_lshl_b32 s59, s48, 2"); k("s_add_u32 s58, s58, s59")
    k(f"s_mul_i32 s58, s58, {14*1024}"); k("s_add_u32 s57, s57, s58")
    k(f"s_lshl_b32 s58, s{S_WAVE}, 10"); k(f"s_add_u32 s58, s58, {SLAB_LDS}"); k("v_add_u32 v9, s58, v6")
    ACC = [192, 16]; OB = 224
    fin = k.label()
    k(f"s_lshl_b32 s62, s{sb}, 7"); k(f"s_add_u32 s62, s62, {L.SF(0)}"); k(f"s_lshl_b32 s63, s{S_WAVE}, 2"); k("v_mov_b32 v60, s63")
    k(f"s_lshl_b32 s58, s{S_WAVE}, 10"); k("s_add_u32 s57, s57, s58")
    k("s_mov_b32 s56, s56"); k("v_mov_b32 v62, s56"); k("v_mov_b32 v63, s56")
    def epi(i):
        o_ = []
        for tt in range(4):
            o = OB + tt*4
            for t in range(2):
                d = ACC[i & 1] + (t*4+tt)*4
                o_ += [f"v_mul_f32 v{d+r}, s56, v{d+r}" for r in range(4)]
                o_ += [f"v_cvt_pk_bf16_f32 v{o+2*t}, v{d}, v{d+1}", f"v_cvt_pk_bf16_f32 v{o+2*t+1}, v{d+2}, v{d+3}"]
            o_ += [f"s_add_u32 s58, s57, {tt*14*1024 + i*4096}", f"buffer_store_dwordx4 {vr(o,4)}, v6, {WS}, s58 offen sc1", f"ds_write_b128 v9, {vr(o,4)} offset:{tt*14*1024 + i*4096}"]
        return o_
    def flag(n):
        k(f"v_mov_b32 v61, {n}"); k("s_mov_b64 exec, 1"); k(f"buffer_store_dword v61, v60, {WS}, s62 offen sc1"); k("s_mov_b64 exec, -1")
    def capture(fn):
        n0 = len(k.lines); fn(); o_ = k.lines[n0:]; del k.lines[n0:]; return o_
    for i in range(4):
        if i == 3:
            k(f"s_cmp_ge_u32 s{S_WAVE}, 2"); k(f"s_cbranch_scc1 {fin}")
        if TL == 2 and i == 0: k("s_memrealtime s[76:77]")
        younger = [8, 1, 4, 4][i]
        k(f"s_waitcnt vmcnt({8+younger})"); aread(2*i)
        k(f"s_waitcnt vmcnt({younger})"); aread(2*i+1)
        if i == 2:
            okz = k.label()
            k("v_cmp_ne_u32 vcc, 32, v14"); k(f"s_cbranch_vccz {okz}")
            wait_words(k, "0", 13, 14, 32, abort, nap=2, srd_="s[64:67]", wg=False)
            k.place(okz)
        if i == 3: flag(1)
        k("s_waitcnt lgkmcnt(0)")
        if TL == 2 and i in (0, 2): k(f"s_memrealtime s[{78+i}:{79+i}]")
        side = (capture(lambda: (atile(2*i+2), atile(2*i+3))) if i < 3 else []) + (epi(i-1) if i else ["buffer_load_dword v14, v13, s[64:67], 0 offen sc1"])
        main = [f"v_mfma_f32_16x16x32_bf16 {vr(ACC[i&1]+(t*4+tt)*4,4)}, {vr(256+i*64+t*32+ks*4,4)}, {vr(BA+(tt*8+ks)*4,4)}, {'0' if ks == 0 else vr(ACC[i&1]+(t*4+tt)*4,4)}"
                for ks in range(8) for t in range(2) for tt in range(4)]
        per = -(-len(side)//60)
        for n, m_ in enumerate(main):
            k(m_)
            if n >= 3:
                for x in side[(n-3)*per:(n-2)*per]: k(x)
    k("s_waitcnt vmcnt(4)"); flag(2)
    for x in epi(3): k(x)
    j3 = k.label(); k(f"s_branch {j3}")
    k.place(fin)
    k("s_waitcnt vmcnt(20)"); flag(1)
    for x in epi(2): k(x)
    k.place(j3)
    if TL == 2: k("s_memrealtime s[82:83]")
    for j in range(4): k(f"v_lshl_or_b32 v{12+j}, v{49+2*j}, 16, v{48+2*j}")
    k(f"buffer_store_dwordx4 v[12:15], v6, {WS}, s52 offen sc1")
    k("s_waitcnt vmcnt(0) lgkmcnt(0)")
    flag(4)
    tl(k, 14, 12, 0)
    if TL == 2:
        for j in range(7):
            k(f"v_mov_b32 v12, s{70+2*j}"); k(f"s_sub_u32 s46, s101, {4*(14-1-j)}"); k(f"buffer_store_dword v12, v13, {WS}, s46 offen")
        k("s_endpgm")
    nc = k.label()
    k("s_cmp_eq_u32 s50, 0"); k(f"s_cbranch_scc1 {nc}")
    for r in range(4): k(f"v_mov_b32 v{16+r}, -1")
    k(f"s_sub_u32 s46, s{sb}, 112"); k("s_lshl_b32 s46, s46, 2"); k(f"s_add_u32 s46, s46, s{S_WAVE}"); k("v_lshl_add_u32 v9, s46, 10, v6")
    full, rest = divmod(L.CLR_BYTES, 448*1024)
    k(f"v_cmp_gt_u32 vcc, {rest}, v9"); k("v_mov_b32 v10, 0x7fffffff"); k("v_cndmask_b32 v10, v10, v9, vcc")
    for l in range(2):
        for it in range(full + (1 if rest else 0)):
            k(f"s_mov_b32 s53, {L.HO[l] + L.MSTEP + it*448*1024}")
            k(f"buffer_store_dwordx4 v[16:19], v{9 if it < full else 10}, {WS}, s53 offen sc1")
    for base, size in ((L.MEMN[0] + L.DIRM*L.MEMSZ, (64-L.DIRM)*L.MEMSZ), (L.VM[0] + L.DIRM*L.VMSZ, (64-L.DIRM)*L.VMSZ), (L.PARTS[0] + 62*131072, 2*131072),
                       (L.XTB[0] + L.DIRX*28672, (64-L.DIRX)*28672), (L.KI[0] + L.DIRX*2048, (64-L.DIRX)*2048), (L.VI[0] + L.DIRX*2048, (64-L.DIRX)*2048)):
        while size > 0:
            if size < 448*1024:
                k(f"v_cmp_gt_u32 vcc, {size}, v9"); k("v_mov_b32 v10, 0x7fffffff"); k("v_cndmask_b32 v10, v10, v9, vcc")
            for l in range(2):
                k(f"s_mov_b32 s53, {base + l*L.LSTRIDE}"); k(f"buffer_store_dwordx4 v[16:19], v{10 if size < 448*1024 else 9}, {WS}, s53 offen sc1")
            base += 448*1024; size -= 448*1024
    k.place(nc)

def body_init(k, abort):
    lane_parts(k)
    srd(k, 8, P_X, L.XSZ)
    k("s_lshl_b32 s47, s59, 2"); k(f"s_add_u32 s47, s47, s{S_WAVE}")
    k("v_mul_u32_u24 v8, 896, v2"); k("v_lshl_add_u32 v8, v3, 4, v8")
    k(f"s_mul_i32 s48, s47, {16*896}")
    XP = 16; F = 72
    k("s_mov_b32 s49, s48")
    k("v_lshlrev_b32 v9, 7, v0"); k("s_lshl_b32 s48, s47, 10"); k("v_add_u32 v9, s48, v9"); k("v_mov_b64 v[12:13], 0"); k("v_mov_b64 v[14:15], 0")
    k("s_mov_b64 exec, 0xff")
    for l in range(2):
        k(f"s_mov_b32 s53, {L.CNT[l]}"); k(f"buffer_store_dwordx4 v[12:15], v9, {WS}, s53 offen sc1")
    k("s_mov_b64 exec, -1")
    for ks in range(14): k(f"buffer_load_dwordx4 {vr(XP+4*ks,4)}, v8, s[8:11], s49 offen offset:{ks*64}")
    k("s_waitcnt vmcnt(14)"); k("s_barrier")
    if TL == 2: tl(k, 1, 12, 0)
    srd(k, 64, P_DBG, 256)
    lz = k.label(); k(f"s_cmp_lg_u32 s{S_WAVE}, 0"); k(f"s_cbranch_scc1 {lz}")
    k(f"v_mov_b32 v12, {DBG_INIT}"); k("v_mov_b32 v13, 1"); signal(k, "0", 12, 13, "s[64:67]")
    k.place(lz)
    nom = k.label()
    k("s_cmp_lg_u32 s59, 31"); k(f"s_cbranch_scc1 {nom}")
    srd(k, 8, P_MEM0, 7168)
    k(f"s_lshl_b32 s48, s{S_WAVE}, 6"); k("v_add_u32 v8, s48, v0")
    k("v_and_b32 v9, 3, v8"); k("v_bfe_u32 v10, v8, 2, 3"); k("v_bfe_u32 v11, v8, 5, 1"); k("v_lshrrev_b32 v12, 6, v8")
    k("v_mul_u32_u24 v10, 896, v10"); k("v_lshl_add_u32 v10, v12, 5, v10"); k("v_lshl_add_u32 v10, v9, 3, v10"); k("v_lshl_add_u32 v10, v11, 2, v10")
    k("v_lshlrev_b32 v13, 2, v8")
    for p in range(7): k(f"buffer_load_dword v{76+p}, v10, s[8:11], 0 offen offset:{p*128}")
    k("v_and_b32 v9, 7, v8"); k("v_mul_u32_u24 v9, 896, v9"); k("v_lshrrev_b32 v11, 3, v8"); k("v_lshl_add_u32 v9, v11, 4, v9"); k("v_lshlrev_b32 v14, 4, v8")
    k("buffer_load_dwordx4 v[84:87], v9, s[8:11], 0 offen"); k("buffer_load_dwordx4 v[88:91], v9, s[8:11], 0 offen offset:512")
    k("v_add_u32 v15, 4096, v14"); k("v_cmp_gt_u32 vcc, 7168, v15"); k("v_mov_b32 v11, 0x7fffffff"); k("v_cndmask_b32 v15, v11, v15, vcc")
    k("s_waitcnt vmcnt(0)")
    for p in list(range(7)) + list(range(8, 16)): k(f"v_min_u32 v{76+p}, -2, v{76+p}")
    for l in range(2):
        k(f"s_mov_b32 s48, {L.MEM[l]}")
        for p in range(7):
            if p == 4: k("s_add_u32 s48, s48, 4096")
            k(f"buffer_store_dword v{76+p}, v13, {WS}, s48 offen offset:{(p%4)*1024} sc1")
        k(f"s_mov_b32 s48, {L.MEMN[l]}")
        k(f"buffer_store_dwordx4 v[84:87], v14, {WS}, s48 offen sc1"); k(f"buffer_store_dwordx4 v[88:91], v15, {WS}, s48 offen sc1")
    k.place(nom)
    k("s_waitcnt vmcnt(0)"); k("s_barrier")
    k("v_mov_b32 v12, s58"); k("s_lshl_b32 s46, s59, 2"); k("v_mov_b32 v13, s46")
    k("buffer_store_dword v12, v13, s[64:67], 0 offen sc1")
    for i in range(56):
        k(f"v_lshlrev_b32 v{F+2*i}, 16, v{XP+i}"); k(f"v_and_b32 v{F+2*i+1}, 0xffff0000, v{XP+i}")
    k(f"v_add_f32 v9, v{F}, v{F+1}"); k(f"v_add_f32 v10, v{F+2}, v{F+3}")
    for i in range(4, 112, 2):
        k(f"v_add_f32 v9, v9, v{F+i}"); k(f"v_add_f32 v10, v10, v{F+i+1}")
    k("v_add_f32 v9, v9, v10")
    xreduce_g(k, 9, 10, "v_add_f32")
    k(f"v_mul_f32 v9, {hx(f2u(1/448))}, v9")
    for i in range(112): k(f"v_sub_f32 v{F+i}, v{F+i}, v9")
    k(f"v_mul_f32 v10, v{F}, v{F}"); k(f"v_mul_f32 v11, v{F+1}, v{F+1}")
    for i in range(2, 112, 2):
        k(f"v_fmac_f32 v10, v{F+i}, v{F+i}"); k(f"v_fmac_f32 v11, v{F+i+1}, v{F+i+1}")
    k("v_add_f32 v10, v10, v11")
    xreduce_g(k, 10, 11, "v_add_f32")
    k(f"v_mov_b32 v11, {hx(f2u(1e-5))}"); k(f"v_fmac_f32 v11, {hx(f2u(1/448))}, v10"); k("v_rsq_f32 v11, v11")
    for i in range(112): k(f"v_mul_f32 v{F+i}, v{F+i}, v11")
    for i in range(56): k(f"v_cvt_pk_bf16_f32 v{XP+i}, v{F+2*i}, v{F+2*i+1}")
    k(f"s_mul_i32 s48, s47, {14*1024}"); k(f"s_add_u32 s48, s48, {L.XTA[0]}")
    for ks in range(14):
        if ks % 4 == 0 and ks: k("s_add_u32 s48, s48, 4096")
        k(f"buffer_store_dwordx4 {vr(XP+4*ks,4)}, v6, {WS}, s48 offen offset:{(ks%4)*1024} sc1")
    k("s_waitcnt vmcnt(0)")
    if TL == 2:
        tl(k, 2, 12, 0); k("s_endpgm")
    k("s_mov_b32 s48, s47")
    wait_init(k, abort, 12)
    k("s_lshr_b32 s46, s48, 1"); k("s_lshl_b32 s46, s46, 7"); k(f"s_add_u32 s46, s46, {L.RC(0)}"); k("v_mov_b32 v12, 0"); k("v_mov_b32 v13, 16")
    signal(k, "s46", 12, 13, WS)

TIMEOUT = 1 << 21
SLEEP = 8

def wait_words(k, soff, vaddr, vt, target, abort, ge=False, nap=None, srd_=WL, wg=True, far=None):
    lp = k.label("Lwc"); ok = k.label("Lwo")
    if wg:
        k(f"s_cmp_lg_u32 s{S_WAVE}, 0"); k(f"s_cbranch_scc1 {ok}")
    k(f"s_mov_b32 s47, {TIMEOUT}")
    if far is not None:
        lf = k.label("Lwf"); near = k.label("Lwn")
        k(f"s_mov_b32 s46, {L.PROG(0)}")
        k.place(lf)
        k(f"v_mov_b32 v{vt}, 0")
        k(f"buffer_load_dword v{vt}, v{vt}, {WL}, s46 offen sc1")
        k("s_sub_u32 s47, s47, 1"); k(f"s_cbranch_scc1 {abort}")
        k("s_waitcnt vmcnt(0)")
        k(f"v_cmp_gt_i32 vcc, {far}, v{vt}")
        k(f"s_cbranch_vccz {near}")
        k("s_sleep 48")
        k(f"s_branch {lf}")
        k.place(near)
    k.place(lp)
    k(f"buffer_load_dword v{vt}, v{vaddr}, {srd_}, {soff} offen sc1")
    k("s_sub_u32 s47, s47, 1"); k(f"s_cbranch_scc1 {abort}")
    k("s_waitcnt vmcnt(0)")
    k(f"v_cmp_{'gt' if ge else 'ne'}_u32 vcc, {target}, v{vt}")
    k(f"s_cbranch_vccz {ok}")
    k(f"s_sleep {SLEEP if nap is None else nap}")
    k(f"s_branch {lp}")
    k.place(ok)
    if wg: k("s_barrier")

def gate(k, base, nshard, target, need, mark, v128, vt, abort, nap=0, napfar=40):
    ok = k.label("Lgo"); lp = k.label("Lgl")
    k(f"s_cmp_lt_u32 {need}, s{mark}"); k(f"s_cbranch_scc1 {ok}")
    k(f"s_mov_b32 s70, {TIMEOUT}")
    k(v128)
    k.place(lp)
    for j in range(nshard):
        k(f"s_mov_b32 s{mark+1}, {base + j*8192}")
        k(f"buffer_load_dword v{vt+1+j}, v{vt}, {WL}, s{mark+1} offen sc1")
    k("s_sub_u32 s70, s70, 1"); k(f"s_cbranch_scc1 {abort}")
    k("s_waitcnt vmcnt(0)")
    if nshard == 4:
        k(f"v_min3_u32 v{vt+1}, v{vt+1}, v{vt+2}, v{vt+3}"); k(f"v_min_u32 v{vt+1}, v{vt+1}, v{vt+4}")
    k(f"v_cmp_ne_u32 vcc, {target}, v{vt+1}")
    k(f"s_ff1_i32_b64 s{mark}, vcc"); k(f"s_min_u32 s{mark}, s{mark}, 0x100")
    if nap:
        k(f"s_cmp_lt_u32 {need}, s{mark}"); k(f"s_cbranch_scc1 {ok}")
        far = k.label("Lgf")
        k(f"s_add_u32 s{mark+1}, s{mark}, 1"); k(f"s_cmp_gt_u32 {need}, s{mark+1}"); k(f"s_cbranch_scc1 {far}")
        k(f"s_sleep {nap}"); k(f"s_branch {lp}")
        k.place(far); k(f"s_sleep {napfar}"); k(f"s_branch {lp}")
    else:
        k(f"s_cmp_lt_u32 {need}, s{mark}"); k(f"s_cbranch_scc0 {lp}")
    k.place(ok)

def signal(k, soff, vz, vone, srd_=WL, lanes=1):
    k(f"s_mov_b64 exec, {lanes}")
    k(f"buffer_atomic_add v{vone}, v{vz}, {srd_}, {soff} offen sc1")
    k("s_mov_b64 exec, -1")

TL = 0
TLOFF = 0xF100000
def tl(k, idx, vt, per_layer=5):
    if not TL: return
    k("s_memrealtime s[84:85]"); k("s_lshl_b32 s101, s2, 2"); k(f"s_add_u32 s101, s101, s{S_WAVE}"); k("s_lshl_b32 s101, s101, 6")
    k(f"s_add_u32 s101, s101, {TLOFF + 4*idx}"); k("s_waitcnt lgkmcnt(0)")
    k(f"s_mul_i32 s85, s{S_LAYER}, {4*per_layer}"); k("s_add_u32 s101, s101, s85")
    k(f"v_mov_b32 v{vt}, s84"); k(f"v_mov_b32 v{vt+1}, 0")
    k(f"buffer_store_dword v{vt}, v{vt+1}, {WS}, s101 offen")
    if TL == 3:
        k("s_memtime s[84:85]"); k("s_waitcnt lgkmcnt(0)"); k(f"v_mov_b32 v{vt}, s84"); k("s_add_u32 s101, s101, 0x10000")
        k(f"buffer_store_dword v{vt}, v{vt+1}, {WS}, s101 offen")

def code_touch(k, lab, nbytes, forward, v128, vd):
    h = k.label("Lpc")
    k("s_getpc_b64 s[82:83]"); k.place(h)
    k(f"s_add_u32 s82, s82, {lab}-{h}"); k(f"s_addc_u32 s83, s83, {0 if forward else -1}")
    if nbytes < 8192:
        k(f"v_min_u32 v{vd}, {nbytes-128}, v{v128}"); k(f"global_load_dword v{vd}, v{vd}, s[82:83]"); return
    for j in range(nbytes//8192):
        if j: k("s_add_u32 s82, s82, 8192"); k("s_addc_u32 s83, s83, 0")
        k(f"global_load_dword v{vd}, v{v128}, s[82:83]")

def slab_round_wait(k, r, soff, vaddr, vt, abort):
    ok = k.label("Lsr"); lp = k.label("Lsl")
    k(f"s_cmp_gt_u32 s55, {r}"); k(f"s_cbranch_scc1 {ok}")
    k(f"s_mov_b32 s70, {TIMEOUT}")
    k.place(lp)
    k(f"buffer_load_dword v{vt}, v{vaddr}, {WS}, {soff} offen sc1")
    k("s_sub_u32 s70, s70, 1"); k(f"s_cbranch_scc1 {abort}")
    k("s_waitcnt vmcnt(0)")
    k(f"v_cmp_gt_u32 vcc, 4, v{vt}"); k("s_cmp_eq_u64 vcc, 0"); k("s_cselect_b32 s55, 4, s55")
    k(f"v_cmp_ge_u32 vcc, {r}, v{vt}"); k(f"s_cbranch_vccz {ok}")
    k("s_sleep 2"); k(f"s_branch {lp}")
    k.place(ok)

def lane0_addr(k, vz, vone):
    k(f"v_mov_b32 v{vz}, 0"); k(f"v_mov_b32 v{vone}, 1")

def layer_begin(k):
    srd(k, 12, P_WS, L.WS_BYTES); k(f"s_mov_b32 s{S_LAYER}, 0")
def layer_next(k, top):
    k(f"s_add_u32 s12, s{P_WS}, {L.LSTRIDE}"); k(f"s_addc_u32 s13, s{P_WS+1}, 0"); k("s_and_b32 s13, s13, 0xffff")
    k(f"s_mov_b32 s14, {L.WS_BYTES - L.LSTRIDE}")
    k(f"s_add_u32 s{S_LAYER}, s{S_LAYER}, 1"); k(f"s_cmp_lt_u32 s{S_LAYER}, 2"); k(f"s_cbranch_scc1 {top}")

def slab_request(k, sb):
    no = k.label(); k(f"s_cmp_eq_u32 s{S_LAYER}, 1"); k(f"s_cbranch_scc1 {no}")
    div7(k, 53, 54, sb)
    k("s_and_b32 s55, s53, 15"); k("s_lshr_b32 s53, s53, 4"); k("s_cmp_eq_u32 s53, 0"); k(f"s_cselect_b32 s57, {L.WQ}, {L.WV}")
    k("s_mul_i32 s58, s55, 28"); k("s_lshl_b32 s59, s54, 2"); k("s_add_u32 s58, s58, s59"); k(f"s_add_u32 s58, s58, s{S_WAVE}")
    k(f"s_mul_i32 s58, s58, {14*1024}"); k("s_add_u32 s57, s57, s58")
    for i in range(14):
        if i % 4 == 0 and i: k("s_add_u32 s57, s57, 4096")
        k(f"buffer_load_dwordx4 {vr(128+4*i,4)}, v1, {WS}, s57 offen offset:{(i%4)*1024} sc1")
    k.place(no)

def body_gemm(k, sb, abort):
    div7(k, 47, 48, sb)
    k("s_and_b32 s49, s47, 15")
    k("s_lshr_b32 s50, s47, 4")
    k("v_lshlrev_b32 v1, 4, v0")
    k("s_cmp_eq_u32 s50, 0")
    k(f"s_mov_b32 s56, {L.UC(0)}"); k(f"s_cselect_b32 s56, {L.QC(0)}, s56")
    have = k.label()
    k(f"s_cmp_eq_u32 s{S_LAYER}, 0"); k(f"s_cbranch_scc1 {have}")
    k(f"s_mul_i32 s58, s{S_WAVE}, {14*1024}"); k(f"s_add_u32 s58, s58, {SLAB_LDS}"); k("v_add_u32 v2, s58, v1")
    k("s_waitcnt vmcnt(0)"); k("s_barrier")
    for i in range(14): k(f"ds_write_b128 v2, {vr(128+4*i,4)} offset:{i*1024}")
    k.place(have)
    k(f"v_add_u32 v2, {SLAB_LDS}, v1")
    k("s_waitcnt lgkmcnt(0)"); k("s_barrier")
    for i in range(56):
        k(f"ds_read_b128 {vr(256+4*i,4)}, v2 offset:{i*1024}")
        if i % 12 == 11: k("s_waitcnt lgkmcnt(4)")
    lane0_addr(k, 4, 5)
    k(f"s_lshl_b32 s58, s{S_WAVE}, 7"); k("s_add_u32 s56, s56, s58")
    k(f"s_and_b32 s58, s{sb}, 3"); k("s_lshl_b32 s58, s58, 13"); k("s_add_u32 s56, s56, s58")
    k("s_mov_b32 s96, 0"); k(f"s_mov_b32 s98, s{S_WAVE}")
    def xreg(buf, i):
        if buf == 0: return 16 + 4*i
        return 128 + 4*i if i < 20 else 256 + 224 + 4*(i-20)
    def loadx(buf):
        k("s_min_u32 s99, s98, 63")
        gate(k, L.RC(0), 1, 32, "s99", 96, "v_lshlrev_b32 v6, 3, v1", 6, abort, nap=3, napfar=3)
        k("s_add_u32 s98, s98, 4")
        k("s_mov_b32 s53, s52")
        for i in range(28):
            if i % 4 == 0 and i: k("s_add_u32 s53, s53, 4096")
            k(f"buffer_load_dwordx4 {vr(xreg(buf,i),4)}, v1, {WL}, s53 offen offset:{(i%4)*1024} sc1")
        k(f"s_add_u32 s52, s52, {4*28*1024}")
    k(f"s_mul_i32 s52, s{S_WAVE}, {28*1024}"); k(f"s_add_u32 s52, s52, {L.XTA[0]}")
    loadx(0)
    k("s_waitcnt vmcnt(28) lgkmcnt(0)"); k("s_barrier")
    tl(k, 2, 6)
    ACC = 208; O = 240
    lq = k.label(); end = k.label()
    k("s_cmp_eq_u32 s50, 0")
    k(f"s_cbranch_scc1 {lq}")
    for typ in (1, 0):
        if typ == 0: k.place(lq)
        k(f"s_lshl_b32 s54, s{S_WAVE}, 4"); k("s_add_u32 s54, s54, s49"); k(f"s_mul_i32 s54, s54, {28*1024}")
        if typ == 1:
            k("s_lshl_b32 s55, s48, 12"); k("s_add_u32 s54, s54, s55"); k(f"s_add_u32 s54, s54, {L.UU[0]}")
        else:
            k("s_lshl_b32 s55, s48, 11"); k("s_add_u32 s54, s54, s55"); k(f"s_add_u32 s54, s54, {L.QP[0]}")
        k("s_mov_b32 s51, 8")
        lp = k.label(); k.place(lp)
        for buf in range(2):
            k("s_waitcnt vmcnt(0)")
            for ks in range(14):
                for t in range(2):
                    for tt in range(4):
                        d = ACC + (t*4+tt)*4
                        c = "0" if ks == 0 else vr(d,4)
                        x = vr(xreg(buf, t*14+ks),4); w = vr(256+(tt*14+ks)*4,4)
                        if typ == 1: k(f"v_mfma_f32_16x16x32_bf16 {vr(d,4)}, {x}, {w}, {c}")
                        else:        k(f"v_mfma_f32_16x16x32_bf16 {vr(d,4)}, {w}, {x}, {c}")
            for u in range(4):
                if typ == 1: d0, d1 = ACC + u*4, ACC + (4+u)*4; off = u*1024; so = "s54"
                else:
                    t, pp = u >> 1, u & 1
                    d0, d1 = ACC + (t*4+2*pp)*4, ACC + (t*4+2*pp+1)*4; off = pp*1024; so = "s54" if t == 0 else "s55"
                    if u == 2: k(f"s_add_u32 s55, s54, {14*1024}")
                o = O + 4*u
                k(f"v_cvt_pk_bf16_f32 v{o}, v{d0}, v{d0+1}"); k(f"v_cvt_pk_bf16_f32 v{o+1}, v{d0+2}, v{d0+3}")
                k(f"v_cvt_pk_bf16_f32 v{o+2}, v{d1}, v{d1+1}"); k(f"v_cvt_pk_bf16_f32 v{o+3}, v{d1+2}, v{d1+3}")
                k(f"buffer_store_dwordx4 {vr(o,4)}, v1, {WL}, {so} offen offset:{off} sc1")
            k(f"s_add_u32 s54, s54, {4*16*28*1024}")
            k("s_waitcnt vmcnt(0)")
            signal(k, "s56", 4, 5)
            loadx(1-buf)
            if TL and buf == 0:
                lz = k.label(); k("s_cmp_lg_u32 s51, 8"); k(f"s_cbranch_scc1 {lz}"); tl(k, 3, 6); k.place(lz)
            k("s_add_u32 s56, s56, 512")
        k("s_sub_u32 s51, s51, 1"); k("s_cmp_lg_u32 s51, 0"); k(f"s_cbranch_scc1 {lp}")
        if typ == 1: k(f"s_branch {end}")
    k.place(end)
    k("s_waitcnt vmcnt(0)")

def gen_empty():
    k = K("empty_kernel", 32, 32, 48)
    k("s_endpgm")
    return k
```

```python
from gen import *
import gen

ASL = 0
NE1 = 2
VMPOS = [(1,1),(1,6),(2,1),(2,5),(3,1),(3,4),(4,1),(5,1),(6,1),(6,6),(7,1)]
BPOLL = 0
BPS = 2
APOLL = 1
UV = 0
XPK = 0
BSL = 0
PSL = 0
XSIG = 0
XNOU = 0
XACK = 0
XSLEEP = 0
XNOEXP = 0
XPOLL = 0
NB = 9
PFD = 2

DIAG = False
DBGOFF = 0xF000000
def stamp(k, i):
    if DIAG == 3: k(f"s_memrealtime s[{72+2*i}:{73+2*i}]")
    elif DIAG: k(f"s_memtime s[{72+2*i}:{73+2*i}]")
def stamp_acc(k, n):
    if not DIAG: return
    k("s_waitcnt lgkmcnt(0)")
    if DIAG == 3:
        for i in range(1, n): k(f"s_add_u32 s{87+i}, s{87+i}, s{72+2*i}")
        return
    for i in range(n-1):
        k(f"s_sub_u32 s71, s{72+2*(i+1)}, s{72+2*i}"); k(f"s_add_u32 s{88+i}, s{88+i}, s71")
T0 = 0
def stamp_init(k):
    if DIAG or T0:
        for i in range(8): k(f"s_mov_b32 s{88+i}, 0")
        k("s_memtime s[72:73]"); k("s_waitcnt lgkmcnt(0)"); k("s_mov_b32 s95, s72")
def stamp_out(k):
    if not (DIAG or T0): return
    k("s_memtime s[72:73]"); k("s_waitcnt lgkmcnt(0)"); k("s_sub_u32 s95, s72, s95")
    for i in range(8): k(f"v_mov_b32 v{16+i}, s{88+i}")
    k(f"s_lshl_b32 s46, s59, 2"); k(f"s_add_u32 s46, s46, s{S_WAVE}"); k("s_lshl_b32 s46, s46, 5"); k(f"s_add_u32 s46, s46, {DBGOFF}")
    k("v_mov_b32 v24, 0")
    k(f"buffer_store_dwordx4 v[16:19], v24, {WS}, s46 offen"); k(f"buffer_store_dwordx4 v[20:23], v24, {WS}, s46 offen offset:16")

def interleave(k, main, side):
    for i, m in enumerate(main):
        k(m)
        for s in side.get(i, []): k(s)

def ugate(k, need, v128, vt, abort):
    gate(k, L.UC(0), 4, 28, need, 96, v128, vt, abort)

def poll_rot(k, loads, tmp, abort, pre_issued=False):
    from itertools import permutations
    n = len(loads)
    done = k.label("Lrd")
    lab = {}
    def L_(st):
        if st not in lab: lab[st] = k.label("Lr")
        return lab[st]
    def check(j):
        r = loads[j][1]
        if len(r) == 1: k(f"v_cmp_eq_u32 vcc, -1, v{r[0]}")
        else:
            k(f"v_max3_u32 v{tmp}, v{r[0]}, v{r[1]}, v{r[2]}"); k(f"v_max_u32 v{tmp}, v{tmp}, v{r[3]}"); k(f"v_cmp_eq_u32 vcc, -1, v{tmp}")
    k(f"s_mov_b32 s70, {TIMEOUT}")
    if not pre_issued:
        for j in range(n): k(loads[j][0])
    emitted = set(); deferred = []
    def spin(st):
        m = len(st)
        rots = [st[i:] + st[:i] for i in range(m)]
        for i, r in enumerate(rots):
            emitted.add(r); k.place(L_(r))
            j = r[0]
            k(f"s_waitcnt vmcnt({m-1})")
            check(j)
            hit = ("hit", r)
            k(f"s_cbranch_vccz {L_(hit)}"); deferred.append(r)
            k(loads[j][0])
            if i == m - 1:
                k("s_sub_u32 s70, s70, 1"); k(f"s_cbranch_scc0 {L_(rots[0])}"); k(f"s_branch {abort}")
    def hit(r):
        k.place(L_(("hit", r)))
        while True:
            for x in loads[r[0]][2]: k(x)
            r = r[1:]
            if not r:
                k(f"s_branch {done}"); return
            k(f"s_waitcnt vmcnt({len(r)-1})")
            check(r[0])
            miss = ("miss", r)
            k(f"s_cbranch_vccnz {L_(miss)}"); pend.append(r)
    spin(tuple(range(n)))
    pend = []; seen_hit = set(); seen_miss = set()
    while deferred or pend:
        while deferred:
            r = deferred.pop(0)
            if r not in seen_hit: seen_hit.add(r); hit(r)
        while pend:
            r = pend.pop(0)
            if r in seen_miss: continue
            seen_miss.add(r)
            k.place(L_(("miss", r)))
            k(loads[r[0]][0])
            nr = r[1:] + r[:1]
            if nr in emitted: k(f"s_branch {L_(nr)}")
            else: spin(nr)
    k.place(done)

def poll_mem(k, s_addr, abort, t=44, filler=()):
    lp = k.label("Lpm")
    k(f"s_mov_b32 s70, {TIMEOUT}")
    k.place(lp)
    k(f"buffer_load_dword v{t}, v4, {WL}, s{s_addr} offen sc1")
    k(f"buffer_load_dwordx4 v3, {WL}, s{s_addr} offen sc1 lds")
    k(f"buffer_load_dwordx4 v3, {WL}, s{s_addr} offen offset:1024 sc1 lds")
    k("s_sub_u32 s70, s70, 1")
    k(f"s_cbranch_scc1 {abort}")
    for x in filler: k(x)
    k("s_waitcnt vmcnt(2)")
    k(f"v_cmp_eq_u32 vcc, -1, v{t}")
    k(f"s_cbranch_vccnz {lp}")
    k("s_waitcnt vmcnt(0)")

def poll_mem2(k, s_addr, abort, R0, R1, t):
    lp = k.label("Lpm"); got = [k.label("Lpg"), k.label("Lpg")]; join = k.label("Lpj")
    R = [R0, R1]
    def iss(d):
        k(f"buffer_load_dwordx4 {vr(R[d],4)}, v3, {WL}, s{s_addr} offen sc1"); k(f"buffer_load_dwordx4 {vr(R[d]+4,4)}, v4, {WL}, s{s_addr} offen sc1")
    k(f"s_mov_b32 s70, {TIMEOUT}")
    iss(0)
    k("s_nop 15")
    k.place(lp)
    for d in range(2):
        iss(1-d)
        if d == 0:
            k("s_sub_u32 s70, s70, 1"); k(f"s_cbranch_scc1 {abort}")
        k("s_waitcnt vmcnt(2)")
        k(f"v_max_u32 v{t}, v{R[d]}, v{R[d]+4}"); k(f"v_cmp_eq_u32 vcc, -1, v{t}")
        k(f"s_cbranch_vccz {got[0]}" if d == 0 else f"s_cbranch_vccnz {lp}")
    for d in (1, 0):
        k.place(got[d])
        k(f"ds_write_b128 v3, {vr(R[d],4)}"); k(f"ds_write_b128 v4, {vr(R[d]+4,4)}")
        if d == 1: k(f"s_branch {join}")
    k.place(join)
    k("s_waitcnt lgkmcnt(0)")

def mem_full_check(M, t):
    r = list(range(M, M+28))
    out = [f"v_max3_u32 v{t}, v{r[0]}, v{r[1]}, v{r[2]}"]
    r = r[3:]
    while len(r) >= 2:
        out.append(f"v_max3_u32 v{t}, v{t}, v{r[0]}, v{r[1]}"); r = r[2:]
    out.append(f"v_max_u32 v{t}, v{t}, v{r[0]}")
    return out

def mem_common_setup(k):
    k("v_lshlrev_b32 v1, 4, v0")
    k("v_and_b32 v2, 8, v0")
    k("v_cmp_eq_u32 vcc, 0, v2")
    k("v_mov_b32 v2, 0xeeee")
    k("v_mov_b32 v3, 0x4444")
    k("v_cndmask_b32 v2, v2, v3, vcc")
    k(f"s_lshl_b32 s46, s{S_WAVE}, 11"); k("s_mov_b32 m0, s46")
    k("v_add_u32 v3, s46, v1")
    k(f"s_cmp_eq_u32 s{S_WAVE}, 3"); k("s_cselect_b32 s47, 7, 15")
    k("v_and_b32 v4, s47, v0"); k("v_lshlrev_b32 v4, 7, v4"); k("v_add_u32 v4, s46, v4")

M = 16
SPW = 8*176
def gen_chain_A(k, st, abort, w):
    TT = 8192; SP = TT + 4*3584
    def W(i, p):
        o = i*7 + p
        return vr(256 + 8*o, 8) if o < 32 else vr(120 + 8*(o-32), 8)
    ACC = [52, 56, 60]; CV = 114; TB = [64, 68]; XK = 72; MK = 100; SX0, SX1, SM = 44, 48, 116
    def xk(pair, t): return XK + (pair*2 + t)*4
    XS = XK + 24
    def loadx():
        for t in range(2):
            if t == 1: k(f"s_add_u32 s64, s62, {14*1024}")
            so = "s62" if t == 0 else "s64"
            for pr in range(3):
                k(f"buffer_load_dwordx4 {vr(xk(pr,t),4)}, v6, {WL}, {so} offen offset:{pr*1024} sc1")
            k(f"buffer_load_dwordx2 {vr(XS+2*t,2)}, v14, {WL}, {so} offen sc1")
        k(f"s_add_u32 s62, s62, {28*1024}")
    loop = k.label("LA")
    k(f"s_mov_b32 s61, {L.MEM[0]}")
    k(f"s_mul_i32 s65, s60, 640"); k(f"s_add_u32 s65, s65, {L.PIM[0]}")
    k(f"s_mov_b32 s62, {L.XTA[0]}")
    k("s_mov_b32 s96, 0"); k("s_mov_b32 s98, 0")
    ugate(k, "s98", "v_lshlrev_b32 v16, 3, v1", 16, abort)
    loadx()
    k("s_mov_b32 s67, 63")
    gen.tl(k, 1, 16)
    for r in range(2): k(f"v_mov_b64 {vr(ACC[1]+2*r,2)}, 0")
    stamp_init(k)
    redo = k.label("LAr")
    own = [2*w, (2*w+1) % 7]; rest = [p for p in range(7) if p not in own]
    TAc = [ACC[0], ACC[1], ACC[2], TB[0], SM, ACC[0], ACC[1]]
    NE = 5
    k.place(loop)
    for i in range(NE):
        for r in range(2): k(f"v_mov_b64 {vr(TAc[i]+2*r,2)}, 0")
    stamp(k, 0)
    sm = lambda i, reg, p: f"v_smfmac_f32_16x16x64_bf16 {vr(TAc[i],4)}, {vr(reg,4)}, {W(i,p)}, v2"
    lp = k.label("Lpm"); got = [k.label("Lpg"), k.label("Lpg")]; join = k.label("Lpj")
    PR = [44, 100]
    def iss(d):
        for e in range(2): k(f"buffer_load_dwordx4 {vr(PR[d]+4*e,4)}, v{3+e}, {WL}, s61 offen sc1")
    k(f"s_mov_b32 s70, {TIMEOUT}")
    iss(0)
    k("s_nop 15")
    k.place(lp)
    for d in range(2):
        iss(1-d)
        if d == 0:
            k("s_sub_u32 s70, s70, 1"); k(f"s_cbranch_scc1 {abort}")
        k("s_waitcnt vmcnt(2)")
        if w < 3: k(f"v_max_u32 v{CV}, v{PR[d]}, v{PR[d]+4}")
        else:
            k(f"v_max3_u32 v{CV}, v{PR[d]}, v{PR[d]+4}, v{PR[d]+5}"); k(f"v_max3_u32 v{CV}, v{CV}, v{PR[d]+6}, v{PR[d]+7}")
        k(f"v_cmp_eq_u32 vcc, -1, v{CV}")
        k(f"s_cbranch_vccz {got[0]}" if d == 0 else f"s_cbranch_vccnz {lp}")
    for d in (1, 0):
        k.place(got[d])
        stamp(k, 1)
        k(f"ds_write_b128 v3, {vr(PR[d],4)}")
        if w < 3: k(f"ds_write_b128 v4, {vr(PR[d]+4,4)}")
        for i in range(NE1):
            for e in range(2): k(sm(i, PR[d]+4*e, own[e]))
        k("s_waitcnt lgkmcnt(0)")
        k("s_barrier")
        stamp(k, 2)
        for p in rest: k(f"ds_read_b128 {vr(M+4*p,4)}, v1 offset:{p*1024}")
        for i in range(NE1, NE):
            for e in range(2): k(sm(i, PR[d]+4*e, own[e]))
        if d == 1: k(f"s_branch {join}")
    k.place(join)
    mk = [f"ds_read2_b32 {vr(MK,2)}, v7 offset0:0 offset1:32", f"ds_read2_b32 {vr(MK+2,2)}, v7 offset0:1 offset1:33",
          f"ds_read2_b32 {vr(MK+4,2)}, v7 offset0:128 offset1:160", f"ds_read2_b32 {vr(MK+6,2)}, v7 offset0:129 offset1:161",
          f"ds_read2_b32 {vr(MK+8,2)}, v15 offset0:0 offset1:32", f"ds_read2_b32 {vr(MK+10,2)}, v15 offset0:1 offset1:33",
          f"ds_read2_b32 {vr(MK+12,2)}, v5 offset0:0 offset1:32"]
    T0R = ACC[2]
    tr = lambda j: f"ds_read_b64_tr_b16 {vr(TB[(j >> 1) & 1] + 2*(j & 1),2)}, v9 offset:{j*512}"
    for i in range(7):
        ps = rest if i < NE else rest + own
        main = [sm(i, M+4*p, p) for p in ps]
        side = {g: [] for g in range(7)}
        if i == 0:
            for q in range(5): main[q] = f"s_waitcnt lgkmcnt({4-q})\n" + main[q]
        else:
            pa = TAc[i-1]
            side[2] = [f"v_cvt_pk_bf16_f32 v{CV}, v{pa}, v{pa+1}"]
            side[3] = [f"v_cvt_pk_bf16_f32 v{CV+1}, v{pa+2}, v{pa+3}"]
            side[4] = [f"ds_write_b64 v8, {vr(CV,2)} offset:{(i-1)*512}"]
        if i == 1: side[0] = [f"ds_read_b128 {vr(M+4*own[0],4)}, v1 offset:{own[0]*1024}"]; side[1] = [f"ds_read_b128 {vr(M+4*own[1],4)}, v1 offset:{own[1]*1024}"]
        if i == 2: side[0] = [f"v_mov_b64 {vr(ACC[0],2)}, 0"]; side[1] = [f"v_mov_b64 {vr(ACC[0]+2,2)}, 0"]
        if i == 3: side[0] = [mk[6], f"v_mov_b64 {vr(ACC[1],2)}, 0"]; side[1] = [mk[5], f"v_mov_b64 {vr(ACC[1]+2,2)}, 0"]
        if i == 4: side[0] = [tr(2)]; side[1] = ["s_waitcnt vmcnt(0)", mk[0]]; side[2] = [mk[1]] + side[2]; side[3] = [mk[2]] + side[3]
        if i == 5: main[5] = "s_waitcnt lgkmcnt(6)\n" + main[5]
        if i == 5: side[0] = [tr(3)]; side[1] = [mk[3]]; side[2] = [mk[4]] + side[2]; side[5] = [tr(4)]; side[6] = [f"ds_read_b64_tr_b16 {vr(T0R,2)}, v9"]
        if i == 6: side[0] = [f"ds_read_b64_tr_b16 {vr(T0R+2,2)}, v9 offset:512"]; side[5] = [tr(5)]
        interleave(k, main, side)
    a = TAc[6]
    stamp(k, 3)
    fc = mem_full_check(M, a)
    def smm(pr, tb, first=False):
        c = (lambda r: "0") if first else (lambda r: vr(r,4))
        return [f"v_mfma_f32_16x16x32_bf16 {vr(SX0,4)}, {vr(xk(pr,0),4)}, {vr(tb,4)}, {c(SX0)}",
                f"v_mfma_f32_16x16x32_bf16 {vr(SX1,4)}, {vr(xk(pr,1),4)}, {vr(tb,4)}, {c(SX1)}",
                f"v_mfma_f32_16x16x32_bf16 {vr(SM,4)}, {vr(MK+4*pr,4)}, {vr(tb,4)}, {c(SM)}"]
    k("s_waitcnt lgkmcnt(2)")
    t1 = smm(1, TB[1], True); t0 = smm(0, T0R); t2 = smm(2, TB[0])
    k(t1[0]); k(t1[1])
    k(f"v_cvt_pk_bf16_f32 v{CV}, v{a}, v{a+1}")
    k(f"v_cvt_pk_bf16_f32 v{CV+1}, v{a+2}, v{a+3}")
    k(t1[2])
    k(f"ds_write_b64 v8, {vr(CV,2)} offset:{6*512}")
    k(f"ds_read_b64_tr_b16 {vr(CV,2)}, v9 offset:{6*512}")
    interleave(k, t0, {0: fc[0:2], 1: fc[2:4], 2: fc[4:6] + ["s_waitcnt lgkmcnt(2)"]})
    interleave(k, t2, {0: fc[6:8], 1: fc[8:10], 2: fc[10:12] + ["s_waitcnt lgkmcnt(0)"]})
    k(f"v_mfma_f32_16x16x16_bf16 {vr(SX0,4)}, {vr(XS,2)}, {vr(CV,2)}, {vr(SX0,4)}")
    k(f"v_mfma_f32_16x16x16_bf16 {vr(SX1,4)}, {vr(XS+2,2)}, {vr(CV,2)}, {vr(SX1,4)}")
    k(fc[12])
    k(f"v_mfma_f32_16x16x16_bf16 {vr(SM,4)}, {vr(MK+12,2)}, {vr(CV,2)}, {vr(SM,4)}")
    k(fc[13])
    k(f"v_cmp_eq_u32 vcc, -1, v{a}")
    Y = TB[0]
    for r in range(4): k(f"v_add_f32_dpp v{Y+r}, v{SX0+r}, v{SX0+r} row_ror:8 row_mask:0xf bank_mask:0x3")
    for r in range(4): k(f"v_add_f32_dpp v{Y+r}, v{SX1+r}, v{SX1+r} row_ror:8 row_mask:0xf bank_mask:0xc")
    k(f"ds_write_b128 v10, {vr(Y,4)}")
    for r in range(4): k(f"v_add_f32_dpp v{Y+4}, v{SM+r}, v{SM+r} row_ror:8 row_mask:{'0x3' if r<2 else '0xc'} bank_mask:{'0xc' if r&1 else '0x3'}")
    k(f"ds_write_b32 v11, v{Y+4}")
    k(f"s_cbranch_vccnz {redo}")
    k("s_waitcnt lgkmcnt(0)")
    k("s_barrier")
    stamp(k, 4)
    R = 16
    for q in range(4): k(f"ds_read_b64 {vr(R+2*q,2)}, v12 offset:{q*SPW}")
    k("s_waitcnt lgkmcnt(2)"); k(f"v_pk_add_f32 {vr(R,2)}, {vr(R,2)}, {vr(R+2,2)}")
    k("s_waitcnt lgkmcnt(0)"); k(f"v_pk_add_f32 {vr(R+4,2)}, {vr(R+4,2)}, {vr(R+6,2)}")
    k(f"v_pk_add_f32 {vr(R,2)}, {vr(R,2)}, {vr(R+4,2)}")
    def allred32(v, t, op):
        for sh in (8, 4, 2, 1):
            k(f"{op}_dpp v{v}, v{v}, v{v} row_ror:{sh} row_mask:0xf bank_mask:0xf")
        k(f"v_mov_b32 v{t}, v{v}")
        k(f"v_permlane16_swap_b32 v{v}, v{t}")
        k(f"{op} v{v}, v{v}, v{t}")
    slowmax = k.label("LAm"); publish = k.label("LAp")
    def normalise(check):
        k(f"v_exp_f32 v{R+4}, v{R}"); k(f"v_exp_f32 v{R+5}, v{R+1}")
        k(f"v_add_f32 v{R+2}, v{R+4}, v{R+5}")
        allred32(R+2, R+3, "v_add_f32")
        if check:
            k(f"v_med3_f32 v{R+3}, v{R+2}, s56, v0"); k(f"v_cmp_neq_f32 vcc, v{R+3}, v{R+2}")
        k(f"v_rcp_f32 v{R+2}, v{R+2}")
        k(f"v_mul_f32 v{R+4}, v{R+4}, v{R+2}"); k(f"v_mul_f32 v{R+5}, v{R+5}, v{R+2}")
        k(f"v_cvt_pk_bf16_f32 v{R+4}, v{R+4}, v{R+5}")
        k(f"v_min_u32 v{R+4}, -2, v{R+4}")
    normalise(True)
    k(f"s_cbranch_vccnz {slowmax}")
    k.place(publish)
    k(f"buffer_store_dword v{R+4}, v13, {WL}, s65 offen {st}")
    stamp(k, 5)
    if XACK:
        k("s_waitcnt vmcnt(0)"); stamp(k, 6)
    k("s_barrier")
    k("s_add_u32 s98, s98, 1")
    ugate(k, "s98", "v_lshlrev_b32 v24, 3, v1", 24, abort)
    loadx()
    if ASL: k(f"s_sleep {ASL}")
    if not XACK: stamp(k, 6)
    stamp_acc(k, 7)
    k(f"s_add_u32 s65, s65, {L.PSZ}"); k(f"s_add_u32 s61, s61, {L.MSTEP}")
    if gen.TL:
        for (n, ix) in ((53, 2), (33, 3)) + (((63, 10), (62, 11), (61, 12), (60, 13), (58, 14)) if gen.TL == 4 else ()):
            lz = k.label(); k(f"s_cmp_lg_u32 s67, {n}"); k(f"s_cbranch_scc1 {lz}")
            if ix >= 10: k(f"s_cmp_lg_u32 s{S_LAYER}, 0"); k(f"s_cbranch_scc1 {lz}")
            gen.tl(k, ix, 20, 5 if ix < 10 else 0); k.place(lz)
    k("s_sub_u32 s67, s67, 1"); k("s_cmp_lg_u32 s67, 0"); k(f"s_cbranch_scc1 {loop}")
    gen.tl(k, 4, 16)
    stamp_out(k)
    out = k.label("LAo"); k(f"s_branch {out}")
    k.place(slowmax)
    k(f"v_max_f32 v{R+2}, v{R}, v{R+1}")
    allred32(R+2, R+3, "v_max_f32")
    k(f"v_sub_f32 v{R}, v{R}, v{R+2}"); k(f"v_sub_f32 v{R+1}, v{R+1}, v{R+2}")
    normalise(False)
    k(f"s_branch {publish}")
    k.place(redo)
    k("s_waitcnt lgkmcnt(0)"); k("s_barrier")
    k(f"s_branch {loop}")
    k.place(out)

def setup_A(k, abort):
    TT = 8192; SP = TT + 4*3584
    mem_common_setup(k)
    k(f"s_cmp_eq_u32 s{S_WAVE}, 3"); k("s_cselect_b32 s46, 0, 1024"); k("v_add_u32 v4, s46, v3"); k("s_cselect_b64 vcc, -1, 0"); k("v_cndmask_b32 v4, v4, v1, vcc")
    k(f"s_lshr_b32 s46, s{S_WAVE}, 1"); k("s_mul_i32 s46, s46, 7")
    k(f"s_and_b32 s69, s{S_WAVE}, 1")
    k("s_lshl_b32 s66, s69, 2"); k("s_add_u32 s66, s66, s46")
    k("s_add_u32 s68, s46, 3")
    k("v_min_u32 v16, 27, v0"); k("v_lshrrev_b32 v17, 2, v16"); k("v_and_b32 v16, 3, v16"); k("v_lshlrev_b32 v16, 2, v16"); k("v_lshl_add_u32 v16, v17, 7, v16")
    k(f"s_mul_i32 s54, s60, {7*128}"); k(f"s_add_u32 s54, s54, {L.SF(0)}"); k("s_mov_b32 s55, 0")
    k(f"s_mul_i32 s47, s60, 28"); k("s_lshl_b32 s48, s66, 1"); k("s_add_u32 s48, s48, s47")
    k(f"s_mul_i32 s48, s48, {14*1024}"); k(f"s_add_u32 s48, s48, {L.WQ}")
    k("s_lshl_b32 s49, s68, 1"); k("s_add_u32 s49, s49, s69"); k("s_add_u32 s49, s49, s47")
    k(f"s_mul_i32 s49, s49, {14*1024}"); k(f"s_add_u32 s49, s49, {L.WQ}")
    for r in range(4):
        slab_round_wait(k, r, "s54", 16, 17, abort)
        for i in range(7):
            k(f"s_add_u32 s50, s{48 if i < 6 else 49}, {(i*14*1024 if i < 6 else 0) + r*4096}")
            for ks in range(4*r, min(4*r+4, 14)):
                n = i*14 + ks; reg = 256 + 4*n if n < 64 else 120 + 4*(n-64)
                k(f"buffer_load_dwordx4 {vr(reg,4)}, v1, {WS}, s50 offen offset:{(ks%4)*1024} sc1")
    k("v_and_b32 v16, 15, v0")
    k("v_lshrrev_b32 v17, 4, v0")
    k("v_bfe_u32 v18, v0, 1, 1"); k("v_lshlrev_b32 v18, 2, v18")
    k("v_bfe_u32 v19, v0, 2, 1"); k("v_lshl_add_u32 v18, v19, 1, v18")
    k("v_and_b32 v19, 1, v0"); k("v_add_u32 v18, v18, v19")
    k("v_lshlrev_b32 v18, 4, v18")
    k("v_lshrrev_b32 v19, 1, v17"); k("v_lshl_add_u32 v18, v19, 8, v18")
    k("v_and_b32 v19, 1, v17"); k("v_lshl_add_u32 v18, v19, 3, v18")
    k("s_lshl_b32 s46, s66, 9"); k("v_add_u32 v7, s46, v18")
    k("v_add_u32 v15, 1024, v7")
    k("s_lshl_b32 s46, s68, 9"); k("s_lshl_b32 s47, s69, 2"); k("s_add_u32 s46, s46, s47")
    k("v_add_u32 v5, s46, v18")
    k(f"s_mul_i32 s46, s{S_WAVE}, 3584"); k(f"s_add_u32 s46, s46, {TT}")
    k("v_lshlrev_b32 v8, 5, v16"); k("v_lshl_add_u32 v8, v17, 3, v8"); k("v_add_u32 v8, s46, v8")
    k("v_lshlrev_b32 v9, 3, v0"); k("v_add_u32 v9, s46, v9")
    k(f"s_mul_i32 s46, s{S_WAVE}, {SPW}"); k(f"s_add_u32 s46, s46, {SP}")
    k("v_and_b32 v19, 7, v0"); k("v_mul_u32_u24 v18, 176, v19"); k("v_add_u32 v18, s46, v18")
    k("v_lshrrev_b32 v19, 3, v16")
    k("v_lshl_add_u32 v10, v17, 5, v18"); k("v_lshl_add_u32 v10, v19, 4, v10")
    k("v_and_b32 v20, 1, v17"); k("v_lshl_add_u32 v11, v20, 4, v18")
    k("v_lshrrev_b32 v20, 1, v17"); k("v_lshl_add_u32 v11, v20, 3, v11")
    k("v_lshl_add_u32 v11, v19, 2, v11"); k("v_add_u32 v11, 128, v11")
    k(f"v_mov_b32 v20, {hx(f2u(-1e30))}"); k("v_mov_b32 v21, v20")
    k("ds_write_b64 v18, v[20:21] offset:160")
    k("v_and_b32 v19, 31, v0"); k("v_lshrrev_b32 v20, 5, v0")
    k(f"s_lshl_b32 s46, s{S_WAVE}, 1"); k("v_add_u32 v20, s46, v20")
    k("v_lshlrev_b32 v21, 3, v19"); k("v_cmp_gt_u32 vcc, 20, v19"); k("v_mov_b32 v22, 160")
    k("v_cndmask_b32 v21, v22, v21, vcc")
    k("v_mul_u32_u24 v22, 176, v20"); k("v_add_u32 v12, v21, v22"); k(f"v_add_u32 v12, {SP}, v12")
    k("v_lshrrev_b32 v21, 2, v19"); k("v_lshl_add_u32 v21, v21, 3, v20"); k("v_lshlrev_b32 v21, 4, v21")
    k("v_and_b32 v22, 3, v19"); k("v_lshl_add_u32 v21, v22, 2, v21")
    k("v_mov_b32 v22, 0x7fffffff"); k("v_cndmask_b32 v13, v22, v21, vcc")
    k("s_lshl_b32 s46, s68, 10"); k("s_lshl_b32 s47, s69, 3"); k("s_add_u32 s46, s46, s47")
    k("v_add_u32 v14, s46, v1")
    k("s_lshl_b32 s46, s66, 10"); k("v_add_u32 v6, s46, v1")
    k(f"s_mov_b32 s56, {hx(f2u(2.0**-60))}"); k(f"v_mov_b32 v0, {hx(f2u(2.0**60))}")
    k("s_waitcnt vmcnt(0) lgkmcnt(0)")

B_TB = 8192
B_OUT = B_TB + 8192
B_LW = B_OUT + 8192
CHAIN_LDS = B_LW + 4*28*1024

def setup_B(k, abort):
    mem_common_setup(k)
    k("v_lshrrev_b32 v131, 2, v0"); k(f"v_mul_u32_u24 v131, {7*128}, v131"); k("v_and_b32 v130, 3, v0"); k("v_lshl_add_u32 v130, v130, 2, v131")
    k("s_lshr_b32 s54, s60, 1"); k("s_lshl_b32 s54, s54, 7"); k(f"s_add_u32 s54, s54, {L.SF(0) + 112*128}"); k("s_mov_b32 s55, 0")
    k(f"s_lshl_b32 s46, s{S_WAVE}, 2"); k("s_mul_i32 s46, s46, 28"); k("s_lshl_b32 s47, s60, 1"); k("s_add_u32 s46, s46, s47")
    k(f"s_mul_i32 s46, s46, {14*1024}"); k(f"s_add_u32 s46, s46, {L.WV}")
    k(f"s_mul_i32 s47, s{S_WAVE}, {28*1024}"); k(f"s_add_u32 s47, s47, {B_LW}")
    k("v_add_u32 v15, s47, v1")
    for r in range(4):
        slab_round_wait(k, r, "s54", 130, 131, abort)
        for hh in range(4):
            for t in range(2):
                k(f"s_add_u32 s48, s46, {(hh*28 + t)*14*1024 + r*4096}")
                for ks in range(4*r, min(4*r+4, 14)):
                    n = t*14 + ks; q = hh*28 + n
                    reg = 16 + 4*n if hh == 3 else (256 + 4*q if q < 64 else 176 + 4*(q-64))
                    k(f"buffer_load_dwordx4 {vr(reg,4)}, v1, {WS}, s48 offen offset:{(ks%4)*1024} sc1")
    k("s_waitcnt vmcnt(0)")
    for n in range(28): k(f"ds_write_b128 v15, {vr(16+4*n,4)} offset:{n*1024}")
    k("s_waitcnt lgkmcnt(0)")
    k("v_and_b32 v16, 15, v0"); k("v_lshrrev_b32 v17, 4, v0"); k("v_and_b32 v18, 7, v0")
    k(f"s_mul_i32 s46, s{S_WAVE}, 2560")
    k("v_lshl_add_u32 v7, v17, 3, v18"); k("v_lshlrev_b32 v7, 4, v7"); k("v_add_u32 v7, s46, v7")
    k("v_lshrrev_b32 v19, 3, v16"); k("v_mul_u32_u24 v19, 640, v19"); k("v_add_u32 v7, v7, v19")
    k("v_mul_u32_u24 v8, 640, v17"); k("v_lshl_add_u32 v8, v18, 4, v8"); k("v_add_u32 v8, s46, v8"); k("v_add_u32 v8, 512, v8")
    k(f"v_mul_u32_u24 v19, {28*1024}, v17"); k("v_lshl_add_u32 v19, v16, 7, v19"); k("v_mov_b32 v20, 0x7fffffff")
    k(f"v_cmp_gt_u32 vcc, {NB}, v16"); k("v_cndmask_b32 v5, v20, v19, vcc")
    k(f"s_lshl_b32 s46, s{S_WAVE}, 11"); k(f"s_add_u32 s47, s46, {B_TB}")
    k("v_lshlrev_b32 v9, 4, v16"); k("v_lshl_add_u32 v9, v17, 2, v9"); k("v_add_u32 v9, s47, v9")
    k("v_add_u32 v10, s47, v1")
    k(f"s_lshl_b32 s46, s{S_WAVE}, 10"); k(f"s_add_u32 s47, s46, {B_OUT}"); k("v_add_u32 v11, s47, v1")
    k("v_bfe_u32 v19, v0, 2, 3"); k("v_lshrrev_b32 v20, 5, v0"); k("v_bfe_u32 v21, v0, 1, 1"); k("v_and_b32 v22, 1, v0")
    k(f"s_lshl_b32 s46, s{S_WAVE}, 1"); k("s_and_b32 s46, s46, 2"); k("v_add_u32 v21, s46, v21")
    k("v_lshl_add_u32 v12, v21, 4, v19"); k("v_lshlrev_b32 v12, 4, v12"); k("v_lshl_add_u32 v12, v22, 7, v12")
    k("v_lshl_add_u32 v12, v20, 3, v12"); k(f"v_add_u32 v12, {B_OUT}, v12")
    k("s_lshl_b32 s47, s60, 9"); k("s_lshl_b32 s48, s46, 7"); k("s_add_u32 s48, s48, s47")
    k("v_lshlrev_b32 v13, 2, v0"); k("v_add_u32 v13, s48, v13")
    k("v_lshlrev_b32 v14, 7, v21"); k("v_lshl_add_u32 v14, v19, 4, v14"); k("v_lshl_add_u32 v14, v22, 3, v14")
    k("v_lshl_add_u32 v14, v20, 2, v14"); k("v_add_u32 v14, s47, v14")
    k("v_mov_b32 v19, 0x7fffffff"); k(f"s_cmp_ge_u32 s{S_WAVE}, 2"); k("s_cselect_b64 vcc, -1, 0"); k("v_cndmask_b32 v14, v14, v19, vcc"); k("v_cndmask_b32 v13, v13, v19, vcc")
    lane0_addr(k, 6, 19); k("v_mov_b32 v0, 1")
    k("s_waitcnt vmcnt(0)")

def gen_chain_B(k, st, abort):
    ACC = [52, 56, 60]; FT = 64; HOLD = 67; ZA = 68; U = 76; P = 108; LW = 108; DUM = 66
    def W(hh, t, p):
        o = (hh*2 + t)*7 + p
        return vr(256 + 8*o, 8) if o < 32 else vr(176 + 8*(o-32), 8)
    loop = k.label("LB"); done = k.label("LBd"); first = k.label("LBf"); nofin = k.label("LBn")
    k(f"s_mov_b32 s61, {L.MEM[0]}"); k(f"s_mov_b32 s65, {L.PIM[0]}")
    k(f"s_lshl_b32 s62, s{S_WAVE}, 2"); k("s_mul_i32 s62, s62, 28"); k("s_lshl_b32 s46, s60, 1"); k("s_add_u32 s62, s62, s46")
    k("s_lshl_b32 s62, s62, 10"); k(f"s_add_u32 s62, s62, {L.UU[0]}")
    k(f"s_mul_i32 s63, s{S_WAVE}, 28"); k("s_add_u32 s63, s63, s46"); k("s_lshl_b32 s63, s63, 10"); k(f"s_add_u32 s63, s63, {L.VM[0] - L.VMSZ}")
    k(f"s_mov_b32 s66, {L.MEMN[0]}")
    k("s_mov_b32 s67, 0")
    k("s_mov_b32 s96, 0")
    gen.tl(k, 1, 44)
    stamp_init(k)
    k.place(loop)
    if True:
        k("s_add_u32 s98, s67, 1")
        ugate(k, "s98", "v_lshlrev_b32 v108, 3, v1", 108, abort)
    k("s_cmp_eq_u32 s67, 0"); k(f"s_cselect_b32 s57, {L.SPARE[0]}, s63"); k(f"s_cselect_b32 s58, {L.SPARE[0]}, s66")
    again = k.label("LBa"); k.place(again)
    TA = [52, 56, 60, 164, 168, 172, 44, 48]
    zero = [f"v_mov_b64 {vr(a_+2*h,2)}, 0" for a_ in TA for h in range(2)]
    stamp(k, 0)
    poll_mem(k, 61, abort, FT, zero)
    stamp(k, 1)
    k("s_barrier")
    stamp(k, 2)
    for p in range(7): k(f"ds_read_b128 {vr(M+4*p,4)}, v1 offset:{p*1024}")
    if NB:
        k(f"s_add_u32 s64, s62, {16*28*1024}")
        k(f"buffer_load_dword v{DUM}, v5, {WL}, s64 offen")
    exports = [f"buffer_store_dwordx4 {vr(ZA,4)}, v1, {WL}, s57 offen sc1", f"buffer_store_dwordx4 {vr(ZA+4,4)}, v1, {WL}, s57 offen offset:1024 sc1",
               f"buffer_store_dword v{HOLD}, v14, {WL}, s58 offen sc1"]
    uload = []
    for hh in range(4):
        for t in range(2):
            pre = [f"s_add_u32 s64, s62, {hh*28*1024}"] if (hh and t == 0) else []
            uload.append(pre + [f"buffer_load_dwordx4 {vr(U+(hh*2+t)*4,4)}, v1, {WL}, {'s64' if hh else 's62'} offen offset:{t*1024} sc1"])
    order = [(0,0),(0,1),(1,0),(3,0),(1,1),(2,0),(2,1),(3,1)]
    def fold(j):
        pa = TA[j]; hh, t = order[j]
        return [f"v_permlane32_swap_b32 v{pa}, v{pa+2}", f"v_permlane32_swap_b32 v{pa+1}, v{pa+3}",
                f"v_add_f32 v{pa}, v{pa}, v{pa+2}", f"v_add_f32 v{pa+1}, v{pa+1}, v{pa+3}",
                f"v_cvt_pk_bf16_f32 v{pa}, v{pa}, v{pa+1}", f"v_min_u32 v{pa}, -2, v{pa}\nds_write_b32 v9, v{pa} offset:{t*1024+hh*256}"]
    lw = [[f"ds_read_b128 {vr(LW+4*(n%14),4)}, v15 offset:{n*1024}" for n in range(14*u, 14*u+14)] for u in range(2)]
    vm = exports + uload
    plan = {i: [[] for _ in range(7)] for i in range(8)}
    for p in range(7): plan[0][p].append(lw[0][p])
    for n, (ti, g) in zip(range(7, 14), [(1,0),(1,2),(1,3),(1,4),(1,5),(2,2),(2,3)]): plan[ti][g].append(lw[0][n])
    for n, (ti, g) in enumerate([(4,2),(4,3),(4,4),(4,5),(4,6),(5,2),(5,3),(5,4),(5,5),(5,6),(6,2),(6,3),(6,4),(6,5)]): plan[ti][g].append(lw[1][n])
    for e, (ti, g) in zip(vm, VMPOS): plan[ti][g] += (e if isinstance(e, list) else [e])
    for i in range(1, 8):
        f = fold(i-1)
        for q in range(5): plan[i][2+q].append(f[q])
        if i < 7: plan[i+1][0].insert(0, f[5])
    for i, (hh, t) in enumerate(order):
        a = TA[i]
        if hh == 3: k("s_waitcnt lgkmcnt(0)")
        main = [f"v_smfmac_f32_16x16x64_bf16 {vr(a,4)}, {vr(M+4*p,4)}, {W(hh,t,p) if hh<3 else vr(LW+8*p,8)}, v2" for p in range(7)]
        if i == 0:
            for p in range(7): main[p] = "s_waitcnt lgkmcnt(6)\n" + main[p]
        if DIAG == 2 and i == 0: stamp(k, 3)
        interleave(k, main, dict(enumerate(plan[i])))
        if DIAG == 2 and i == 2: stamp(k, 4)
        if DIAG == 2 and i == 5: stamp(k, 5)
    fc = mem_full_check(M, FT)
    k(fold(6)[5])
    for x in fc[:6]: k(x)
    for x in fold(7): k(x)
    k(f"ds_read_b128 {vr(ZA,4)}, v10"); k(f"ds_read_b128 {vr(ZA+4,4)}, v10 offset:1024")
    for x in fc[6:]: k(x)
    redo = k.label("LBr")
    k(f"v_cmp_eq_u32 vcc, -1, v{FT}"); k(f"s_cbranch_vccnz {redo}")
    k(f"s_add_u32 s62, s62, {16*28*1024}"); k(f"s_add_u32 s61, s61, {L.MSTEP}")
    k(f"s_add_u32 s63, s63, {L.VMSZ}"); k(f"s_add_u32 s66, s66, {L.MEMSZ}")
    stamp(k, 3 if DIAG != 2 else 6)
    k("s_cmp_eq_u32 s67, 63"); k(f"s_cbranch_scc1 {done}")
    lp = k.label("Lpp")
    Q = P; OUT = P + 24
    k("s_waitcnt lgkmcnt(0)")
    if BPS: k(f"s_sleep {BPS}")
    k.place(lp)
    for r in range(8): k(f"v_mov_b64 {vr(OUT+2*r,2)}, 0")
    def pv(heads, q):
        o = []
        for hh in heads:
            for t in range(2):
                d = OUT + 8*(hh & 1) + 4*t
                o.append(f"v_mfma_f32_16x16x32_bf16 {vr(d,4)}, {vr(U+(hh*2+t)*4,4)}, {vr(q,4)}, {vr(d,4)}")
        o.insert(1, f"v_max3_u32 v{FT+1}, v{FT+1}, v{q+1}, v{q+2}"); o.insert(3, f"v_max_u32 v{FT+1}, v{FT+1}, v{q+3}")
        return o
    mm = [f"v_mfma_f32_16x16x32_bf16 {vr(OUT,4)}, {vr(ZA,4)}, {vr(Q+8,4)}, {vr(OUT,4)}", f"v_max3_u32 v{FT+1}, v{FT+1}, v{Q+9}, v{Q+10}",
          f"v_mfma_f32_16x16x32_bf16 {vr(OUT+4,4)}, {vr(ZA+4,4)}, {vr(Q+8,4)}, {vr(OUT+4,4)}", f"v_max_u32 v{FT+1}, v{FT+1}, v{Q+11}"]
    k(f"v_mov_b32 v{FT+1}, 0")
    poll_rot(k, [(f"buffer_load_dwordx4 {vr(Q,4)}, v7, {WL}, s65 offen sc1", [Q], pv((0, 1), Q)),
                 (f"buffer_load_dwordx4 {vr(Q+4,4)}, v7, {WL}, s65 offen offset:1280 sc1", [Q+4], pv((2, 3), Q+4)),
                 (f"buffer_load_dwordx4 {vr(Q+8,4)}, v8, {WL}, s65 offen sc1", [Q+8], mm)], FT, abort)
    if DIAG != 2: stamp(k, 4)
    if DIAG == 1:
        k(f"s_sub_u32 s71, {TIMEOUT}, s70"); k("s_add_u32 s94, s94, s71")
    k(f"v_cmp_eq_u32 vcc, -1, v{FT+1}")
    Y = ACC[0]
    for r in range(4): k(f"v_add_f32_dpp v{Y+r}, v{OUT+8+r}, v{OUT+r} row_ror:8 row_mask:0xf bank_mask:0x3")
    for r in range(4): k(f"v_add_f32_dpp v{Y+r}, v{OUT+4+r}, v{OUT+12+r} row_ror:8 row_mask:0xf bank_mask:0xc")
    k(f"ds_write_b128 v11, {vr(Y,4)}")
    k(f"s_cbranch_vccnz {lp}")
    k(f"s_add_u32 s65, s65, {L.PSZ}")
    k("s_add_u32 s67, s67, 1")
    k("s_waitcnt lgkmcnt(0)")
    k("s_barrier")
    if DIAG != 2: stamp(k, 5)
    for q in range(4): k(f"ds_read_b64 {vr(U+2*q,2)}, v12 offset:{q*1024}")
    k("s_waitcnt lgkmcnt(2)"); k(f"v_pk_add_f32 {vr(U,2)}, {vr(U,2)}, {vr(U+2,2)}")
    k("s_waitcnt lgkmcnt(0)"); k(f"v_pk_add_f32 {vr(U+4,2)}, {vr(U+4,2)}, {vr(U+6,2)}")
    k(f"v_pk_add_f32 {vr(U,2)}, {vr(U,2)}, {vr(U+4,2)}")
    k(f"v_cvt_pk_bf16_f32 v{HOLD}, v{U}, v{U+1}")
    k(f"v_min_u32 v{HOLD}, -2, v{HOLD}")
    k(f"buffer_store_dword v{HOLD}, v13, {WL}, s61 offen {st}")
    k("s_cmp_lg_u32 s67, 63"); k(f"s_cbranch_scc1 {nofin}")
    k(f"buffer_store_dword v{HOLD}, v14, {WL}, s66 offen sc1")
    k.place(nofin)
    if DIAG != 2: stamp(k, 6)
    stamp_acc(k, 7)
    if BSL: k(f"s_sleep {BSL}")
    k(f"s_branch {loop}")
    k.place(redo)
    k("s_waitcnt vmcnt(0) lgkmcnt(0)"); k("s_barrier"); k(f"s_mov_b32 s57, {L.SPARE[0]}"); k("s_mov_b32 s58, s57"); k(f"s_branch {again}")
    k.place(done)
    k("s_waitcnt lgkmcnt(0)")
    k(f"buffer_store_dwordx4 {vr(ZA,4)}, v1, {WL}, s63 offen sc1")
    k(f"buffer_store_dwordx4 {vr(ZA+4,4)}, v1, {WL}, s63 offen offset:1024 sc1")
    stamp_out(k)

def gen_chain_P(k, abort):
    k(f"s_lshl_b32 s46, s60, 2"); k(f"s_add_u32 s46, s46, s{S_WAVE}")
    k("s_mov_b32 s94, s46")
    k("v_lshlrev_b32 v1, 7, v0"); k("v_mov_b32 v20, 0x7fffffff")
    k(f"s_mul_i32 s47, s46, {448*128}"); k("v_add_u32 v2, s47, v1")
    k("v_and_b32 v3, 15, v0"); k(f"v_cmp_le_u32 vcc, {NB}, v3"); k("v_cndmask_b32 v3, v20, v2, vcc")
    k(f"s_mul_i32 s47, s46, {28*128}"); k("v_add_u32 v4, s47, v1"); k("v_cmp_gt_u32 vcc, 28, v0"); k("v_cndmask_b32 v4, v20, v4, vcc")
    k(f"s_mul_i32 s47, s46, {7*L.NMC*128}"); k("v_add_u32 v5, s47, v1"); k(f"v_cmp_gt_u32 vcc, {7*L.NMC}, v0"); k("v_cndmask_b32 v5, v20, v5, vcc")
    k(f"s_mul_i32 s47, s46, {10*L.NPC*128}"); k("v_add_u32 v6, s47, v1"); k(f"v_cmp_gt_u32 vcc, {10*L.NPC}, v0"); k("v_cndmask_b32 v6, v20, v6, vcc")
    k("v_min_u32 v7, 27, v0"); k("v_lshlrev_b32 v7, 8, v7")
    k("v_mov_b32 v12, 0"); k(f"s_mov_b32 s99, {L.PROG(0)}"); k("s_mov_b32 s95, 1")
    k(f"s_mov_b32 s62, {L.UU[0]}"); k(f"s_mov_b32 s63, {L.XTA[0]}")
    k(f"s_mov_b32 s64, {L.MEM[0]+L.MSTEP}"); k(f"s_mov_b32 s65, {L.PIM[0]}")
    k(f"s_mov_b32 s61, {L.MEM[0]}")
    def touch(v, mid=None):
        k(f"buffer_load_dword v8, v5, {WL}, s64 offen"); k(f"buffer_load_dword v8, v6, {WL}, s65 offen")
        k(f"buffer_load_dword v8, v4, {WL}, s63 offen")
        for j in range(7):
            if j == 3 and mid: mid()
            k(f"s_add_u32 s66, s62, {j*8192}")
            k(f"buffer_load_dword v8, v{v}, {WL}, s66 offen")
        k(f"s_add_u32 s62, s62, {16*28*1024}"); k(f"s_add_u32 s63, s63, {28*1024}")
        k(f"s_add_u32 s64, s64, {L.MSTEP}"); k(f"s_add_u32 s65, s65, {L.PSZ}")
    def probe(): k(f"buffer_load_dword v9, v7, {WL}, s61 offen sc1")
    k("s_mov_b32 s96, 0"); k("s_mov_b32 s98, 0")
    def pgate():
        ugate(k, "s98", "v_mov_b32 v24, v1", 24, abort); k("s_add_u32 s98, s98, 1")
    pgate(); touch(2)
    for i in range(1, PFD):
        pgate(); touch(3)
    k(f"s_add_u32 s61, s61, {L.MSTEP}")
    loop = k.label("LP"); lp = k.label("LPp"); go = k.label("LPg"); pend = k.label("LPe"); nt = k.label("LPn"); np_ = k.label("LPq")
    k.place(loop)
    k(f"s_cmp_ge_u32 s98, 63"); k(f"s_cbranch_scc1 {nt}")
    pgate()
    touch(3, probe)
    k("s_waitcnt vmcnt(4)")
    k("v_cmp_eq_u32 vcc, -1, v9"); k(f"s_cbranch_vccz {go}")
    k.place(nt)
    k(f"s_mov_b32 s70, {TIMEOUT}")
    k.place(lp)
    if PSL: k(f"s_sleep {PSL}")
    probe()
    k("s_sub_u32 s70, s70, 1"); k(f"s_cbranch_scc1 {abort}")
    k("s_waitcnt vmcnt(0)")
    k("v_cmp_eq_u32 vcc, -1, v9"); k(f"s_cbranch_vccnz {lp}")
    k.place(go)
    if True:
        k("s_cmp_lg_u32 s94, 0"); k(f"s_cbranch_scc1 {np_}")
        k("v_mov_b32 v13, s95"); k("s_mov_b64 exec, 1")
        k(f"buffer_store_dword v13, v12, {WL}, s99 offen sc1")
        k("s_mov_b64 exec, -1")
        k.place(np_)
    k(f"s_add_u32 s61, s61, {L.MSTEP}")
    k("s_add_u32 s95, s95, 1"); k("s_cmp_le_u32 s95, 63"); k(f"s_cbranch_scc1 {loop}")
    k.place(pend)

def chain_roles(k, ex):
    lP = k.label("LroleP")
    k("s_getreg_b32 s58, hwreg(HW_REG_XCC_ID)"); k("s_and_b32 s58, s58, 15"); k("s_add_u32 s58, s58, 1")
    body_init(k, ex)
    gen.tl(k, 15, 16, 0)
    k("s_cmp_ge_u32 s59, 30"); k(f"s_cbranch_scc1 {lP}")
    lB = k.label("LroleB")
    def agree(slow):
        lp = k.label("Lx")
        k("v_lshrrev_b32 v16, 2, v1"); k("v_min_u32 v16, 124, v16")
        k(f"s_mov_b32 s70, {TIMEOUT}")
        k.place(lp)
        k("buffer_load_dword v17, v16, s[8:11], 0 offen sc1")
        k("s_sub_u32 s70, s70, 1"); k(f"s_cbranch_scc1 {ex}")
        k("s_waitcnt vmcnt(0)")
        k("v_cmp_eq_u32 vcc, 0, v17"); k(f"s_cbranch_vccnz {lp}")
        k("v_cmp_ne_u32 vcc, s58, v17"); k(f"s_cbranch_vccnz {slow}")
    k("s_cmp_ge_u32 s59, 16"); k(f"s_cbranch_scc1 {lB}")
    k("s_mov_b32 s60, s59")
    setup_A(k, ex)
    sl = k.label("LslowA"); agree(sl)
    def per_wave(st):
        labs = [k.label("LAw") for _ in range(4)]
        for w in range(1, 4):
            k(f"s_cmp_eq_u32 s{S_WAVE}, {w}"); k(f"s_cbranch_scc1 {labs[w]}")
        for w in range(4):
            k.place(labs[w])
            top = k.label("Ltop"); k.place(top); gen_chain_A(k, st, ex, w); layer_next(k, top)
            k("s_endpgm")
    per_wave("")
    k.place(sl)
    per_wave("sc1")
    k.place(lB)
    k("s_sub_u32 s60, s59, 16")
    setup_B(k, ex)
    sl = k.label("LslowB"); agree(sl)
    top = k.label("Ltop"); k.place(top); gen_chain_B(k, "", ex); layer_next(k, top)
    k("s_endpgm")
    k.place(sl)
    top = k.label("Ltop"); k.place(top); gen_chain_B(k, "sc1", ex); layer_next(k, top)
    k("s_endpgm")
    k.place(lP)
    k("s_sub_u32 s60, s59, 30")
    top = k.label("Ltop"); k.place(top); gen_chain_P(k, ex); layer_next(k, top)
    k("s_endpgm")
```

```python
from gen import *
import gen

NEG = hx(f2u(-1e9*L.LOG2E))
NINF = hx(f2u(-3.0e38))
OOB = 0x40000000

def mf16(d, a, b, c): return f"v_mfma_f32_16x16x32_bf16 {vr(d,4)}, {vr(a,4)}, {vr(b,4)}, {'0' if c is None else vr(c,4)}"
def mf32(d, a, b, c): return f"v_mfma_f32_32x32x16_bf16 {vr(d,16)}, {vr(a,4)}, {vr(b,4)}, {'0' if c is None else vr(c,16)}"

def loads(k, regs, vaddr, sbase, stmp, flags="", WS=WL):
    cur = sbase
    for n, r in enumerate(regs):
        if n % 4 == 0 and n:
            k(f"s_add_u32 s{stmp}, s{cur}, 4096"); cur = stmp
        k(f"buffer_load_dwordx4 {vr(r,4)}, v{vaddr}, {WS}, s{cur} offen offset:{(n%4)*1024}{flags}")

def ln_epilogue(k, acc, nq, XRES, TMP, PK, V_ST, STATS, res_store, xn_store, done_label):
    def pairs(body):
        for pp in range(4):
            lab = None
            if pp == 3:
                lab = k.label(); k(f"s_cmp_ge_u32 s{S_WAVE}, 2"); k(f"s_cbranch_scc1 {lab}")
            body(pp)
            if lab: k.place(lab)
    SUM = TMP; T = TMP + 4
    for q in range(nq): k(f"v_mov_b32 v{SUM+q}, 0")
    def b1(pp):
        for q in range(nq):
            x = XRES(pp, q)
            for t in range(2):
                a = acc(pp, q, t)
                for h in range(2):
                    k(f"v_lshlrev_b32 v{T}, 16, v{x+2*t+h}"); k(f"v_and_b32 v{T+1}, 0xffff0000, v{x+2*t+h}")
                    k(f"v_add_f32 v{a+2*h}, v{a+2*h}, v{T}"); k(f"v_add_f32 v{a+2*h+1}, v{a+2*h+1}, v{T+1}")
                    k(f"v_cvt_pk_bf16_f32 v{x+2*t+h}, v{a+2*h}, v{a+2*h+1}")
                if True:
                    k(f"v_add_f32 v{T}, v{a}, v{a+1}"); k(f"v_add_f32 v{T+1}, v{a+2}, v{a+3}")
                    k(f"v_add_f32 v{SUM+q}, v{SUM+q}, v{T}"); k(f"v_add_f32 v{SUM+q}, v{SUM+q}, v{T+1}")
            res_store(pp, q, x)
    pairs(b1)
    k(f"s_cmp_eq_u32 s{S_LAYER}, 1"); k(f"s_cbranch_scc1 {done_label}")
    def exchange(off):
        for q in range(nq): xreduce_g(k, SUM+q, T, "v_add_f32")
        for q in range(nq): k(f"ds_write_b32 v{V_ST}, v{SUM+q} offset:{STATS+off+q*256}")
        k("s_waitcnt lgkmcnt(0)"); k("s_barrier")
        for q in range(nq): k(f"ds_read_b128 {vr(PK+4*q,4)}, v{V_ST+1} offset:{STATS+off+q*256}")
        k("s_waitcnt lgkmcnt(0)")
        for q in range(nq):
            k(f"v_add_f32 v{PK+4*q}, v{PK+4*q}, v{PK+4*q+1}"); k(f"v_add_f32 v{PK+4*q+2}, v{PK+4*q+2}, v{PK+4*q+3}")
            k(f"v_add_f32 v{SUM+q}, v{PK+4*q}, v{PK+4*q+2}")
    exchange(0)
    MU = TMP + 2
    for q in range(nq):
        k(f"v_mul_f32 v{MU+q}, {hx(f2u(1/448))}, v{SUM+q}"); k(f"v_mov_b32 v{SUM+q}, 0")
    def b2(pp):
        for q in range(nq):
            for t in range(2):
                a = acc(pp, q, t)
                for r in range(4):
                    k(f"v_sub_f32 v{a+r}, v{a+r}, v{MU+q}"); k(f"v_fmac_f32 v{SUM+q}, v{a+r}, v{a+r}")
    pairs(b2)
    exchange(512)
    for q in range(nq):
        k(f"v_mov_b32 v{MU+q}, {hx(f2u(1e-5))}"); k(f"v_fmac_f32 v{MU+q}, {hx(f2u(1/448))}, v{SUM+q}"); k(f"v_rsq_f32 v{MU+q}, v{MU+q}")
    def b3(pp):
        for q in range(nq):
            o = PK + 4*((pp*nq + q) & 1)
            for t in range(2):
                a = acc(pp, q, t)
                for r in range(4): k(f"v_mul_f32 v{a+r}, v{a+r}, v{MU+q}")
                k(f"v_cvt_pk_bf16_f32 v{o+2*t}, v{a}, v{a+1}"); k(f"v_cvt_pk_bf16_f32 v{o+2*t+1}, v{a+2}, v{a+3}")
            xn_store(pp, q, o)
    pairs(b3)

A4_PX = 0; A4_PM = 8192; A4_DUM = 10240; A4_ST = 12288; A4_XL = 13312; A4_LDS = A4_XL + 8192

def softmax_seg(k, S):
    k(f"v_mov_b32 v11, {NEG}"); k(f"v_mov_b32 v12, {NINF}")
    for r in range(4):
        k(f"v_cndmask_b32 v{S+4+r}, v12, v{S+4+r}, s[80:81]")
        k(f"v_cndmask_b32 v{S+16+r}, v12, v{S+16+r}, s[80:81]")
    grp = [list(range(S, S+8)), list(range(S+8, S+20))]
    MX = [36, 37]; T = 38
    for q in range(2):
        m = S+4 if q == 0 else S+16
        k(f"v_max3_f32 v{MX[q]}, v{52+q}, v{m}, v{m+1}"); k(f"v_max3_f32 v{MX[q]}, v{MX[q]}, v{m+2}, v{m+3}")
    for q in range(2):
        k(f"v_mov_b32 v{T+q}, v{MX[q]}")
    for q in range(2): k(f"v_permlane16_swap_b32 v{MX[q]}, v{T+q}")
    for q in range(2): k(f"v_max_f32 v{MX[q]}, v{MX[q]}, v{T+q}")
    for q in range(2): k(f"v_mov_b32 v{T+q}, v{MX[q]}")
    for q in range(2): k(f"v_permlane32_swap_b32 v{MX[q]}, v{T+q}")
    for q in range(2): k(f"v_max_f32 v{MX[q]}, v{MX[q]}, v{T+q}")
    for q in range(2):
        for x in grp[q]: k(f"v_sub_f32 v{x}, v{x}, v{MX[q]}")
        for x in grp[q]: k(f"v_exp_f32 v{x}, v{x}")
    for q in range(2):
        g = grp[q]
        k(f"v_add_f32 v{MX[q]}, v{g[0]}, v{g[1]}"); k(f"v_add_f32 v{T+q}, v{g[2]}, v{g[3]}")
        for i in range(4, len(g), 2):
            k(f"v_add_f32 v{MX[q]}, v{MX[q]}, v{g[i]}"); k(f"v_add_f32 v{T+q}, v{T+q}, v{g[i+1]}")
        k(f"v_add_f32 v{MX[q]}, v{MX[q]}, v{T+q}")
    for q in range(2): k(f"v_mov_b32 v{T+q}, v{MX[q]}")
    for q in range(2): k(f"v_permlane16_swap_b32 v{MX[q]}, v{T+q}")
    for q in range(2): k(f"v_add_f32 v{MX[q]}, v{MX[q]}, v{T+q}")
    for q in range(2): k(f"v_mov_b32 v{T+q}, v{MX[q]}")
    for q in range(2): k(f"v_permlane32_swap_b32 v{MX[q]}, v{T+q}")
    for q in range(2): k(f"v_add_f32 v{MX[q]}, v{MX[q]}, v{T+q}")
    for q in range(2): k(f"v_rcp_f32 v{MX[q]}, v{MX[q]}")
    for q in range(2):
        for x in grp[q]: k(f"v_mul_f32 v{x}, v{x}, v{MX[q]}")
    W = 40
    k(f"v_cvt_pk_bf16_f32 v{W}, v{S}, v{S+1}"); k(f"v_cvt_pk_bf16_f32 v{W+1}, v{S+2}, v{S+3}"); k(f"v_mov_b64 {vr(W+2,2)}, 0")
    k(f"v_cvt_pk_bf16_f32 v{W+4}, v{S+8}, v{S+9}"); k(f"v_cvt_pk_bf16_f32 v{W+5}, v{S+10}, v{S+11}")
    k(f"v_cvt_pk_bf16_f32 v{W+6}, v{S+12}, v{S+13}"); k(f"v_cvt_pk_bf16_f32 v{W+7}, v{S+14}, v{S+15}")
    k(f"v_cvt_pk_bf16_f32 v{W+8}, v{S+4}, v{S+5}"); k(f"v_cvt_pk_bf16_f32 v{W+9}, v{S+6}, v{S+7}")
    k(f"v_cvt_pk_bf16_f32 v{W+10}, v{S+16}, v{S+17}"); k(f"v_cvt_pk_bf16_f32 v{W+11}, v{S+18}, v{S+19}")

def group_same_die(k, abort):
    k("s_getreg_b32 s94, hwreg(HW_REG_XCC_ID)"); k("s_and_b32 s94, s94, 15"); k("s_add_u32 s94, s94, 1")
    k("s_lshr_b32 s49, s93, 2"); k("s_lshl_b32 s49, s49, 7"); k(f"s_add_u32 s49, s49, {L.AX(0)}")
    k("s_and_b32 s46, s93, 3"); k("s_lshl_b32 s46, s46, 2"); k("v_mov_b32 v2, s46"); k("v_mov_b32 v3, s94")
    k("s_mov_b64 exec, 1"); k(f"buffer_store_dword v3, v2, {WL}, s49 offen sc1"); k("s_mov_b64 exec, -1")
    k("v_and_b32 v2, 3, v0"); k("v_lshlrev_b32 v2, 2, v2")
    wait_words(k, "s49", 2, 3, 1, abort, ge=True, nap=4, wg=False)
    k("v_cmp_ne_u32 vcc, s94, v3"); k("s_cmp_eq_u64 vcc, 0"); k("s_cselect_b32 s94, 1, 0")

def body_attnA4(k, abort):
    U = 256; XK = 256+128; VMR = 256+128; MK = 256+160; Q = 64; XRS = 176; S = 16; P = 16; OUT = 192
    k("v_lshlrev_b32 v1, 4, v0"); k("v_and_b32 v2, 15, v0"); k("v_lshrrev_b32 v3, 4, v0")
    k("v_lshlrev_b32 v4, 2, v3")
    for r in range(4):
        k(f"v_add_u32 v5, {r}, v4"); k(f"v_cmp_le_u32 s[{72+2*r}:{73+2*r}], v5, v2")
    k("v_cmp_gt_u32 s[80:81], 2, v3")
    k("v_bfe_u32 v5, v0, 1, 1"); k("v_lshlrev_b32 v5, 2, v5"); k("v_bfe_u32 v6, v0, 2, 1"); k("v_lshl_add_u32 v5, v6, 1, v5")
    k("v_and_b32 v6, 1, v0"); k("v_add_u32 v5, v5, v6"); k("v_lshlrev_b32 v5, 4, v5"); k("v_lshl_add_u32 v5, v3, 7, v5")
    k(f"s_lshl_b32 s46, s{S_WAVE}, 11"); k("v_add_u32 v6, s46, v1")
    k(f"s_lshl_b32 s46, s{S_WAVE}, 8"); k(f"s_add_u32 s46, s46, {A4_PM}")
    k("v_lshlrev_b32 v7, 4, v2"); k("v_lshl_add_u32 v7, v3, 3, v7"); k("v_add_u32 v7, s46, v7")
    k(f"v_mov_b32 v8, {A4_DUM}"); k("v_cndmask_b32 v7, v8, v7, s[80:81]")
    k(f"s_lshl_b32 s61, s{S_WAVE}, 2"); k(f"s_cmp_eq_u32 s{S_WAVE}, 3"); k("s_cselect_b32 s61, 11, s61")
    k("s_lshl_b32 s48, s60, 7"); k(f"s_add_u32 s49, s48, {L.UC(0)}")
    k("v_and_b32 v12, 7, v0"); k("v_lshlrev_b32 v12, 13, v12")
    wait_words(k, "s49", 12, 13, 28, abort)
    k(f"s_mul_i32 s46, s60, {28*1024}"); k(f"s_add_u32 s46, s46, {L.XTA[0]}")
    loads(k, [XK+4*i for i in range(28)], 1, 46, 47, " sc1")
    k("s_lshl_b32 s63, s60, 2"); k("s_add_u32 s63, s63, s71"); k("s_lshl_b32 s63, s63, 2")
    k(f"s_add_u32 s46, s63, s{S_WAVE}"); k(f"s_mul_i32 s46, s46, {28*1024}"); k(f"s_add_u32 s46, s46, {L.QP[0]}")
    loads(k, [Q+4*i for i in range(28)], 1, 46, 47, " sc1")
    k(f"s_mul_i32 s64, s63, {28*1024}"); k("s_lshl_b32 s46, s61, 11"); k("s_add_u32 s64, s64, s46"); k(f"s_add_u32 s64, s64, {L.UU[0]}")
    k(f"s_mul_i32 s65, s63, {7*1024}"); k("s_add_u32 s65, s65, s46"); k(f"s_add_u32 s65, s65, {L.VM[0]}")
    k("v_and_b32 v11, 7, v0"); k("v_bfe_u32 v12, v0, 3, 1")
    k("v_mul_u32_u24 v8, 896, v11"); k("v_lshl_add_u32 v8, v3, 4, v8"); k("v_lshl_add_u32 v8, v12, 6, v8")
    k("v_lshlrev_b32 v13, 4, v11"); k("v_lshl_add_u32 v13, v3, 7, v13"); k("v_lshl_add_u32 v15, v12, 15, v13"); k("v_lshl_add_u32 v13, v12, 9, v13")
    k("v_lshlrev_b32 v14, 4, v11"); k("v_lshl_add_u32 v14, v3, 8, v14"); k("v_lshl_add_u32 v14, v12, 10, v14")
    k(f"s_lshl_b32 s46, s{S_WAVE}, 2"); k("v_lshlrev_b32 v10, 4, v11"); k("v_add_u32 v9, s46, v10")
    k(f"s_cmp_ge_u32 s{S_WAVE}, 2"); k("s_cselect_b32 s46, 1, 2"); k("v_cmp_ne_u32 s[82:83], s46, v12")
    k("s_lshl_b32 s62, s60, 2"); k("s_add_u32 s62, s62, s71"); k(f"s_mul_i32 s62, s62, {8*896}"); k("s_lshl_b32 s46, s61, 6"); k("s_add_u32 s62, s62, s46")
    k(f"s_add_u32 s8, s{P_WS}, {L.XR1}"); k(f"s_addc_u32 s9, s{P_WS+1}, 0"); k(f"s_cmp_eq_u32 s{S_LAYER}, 0")
    k(f"s_cselect_b32 s8, s{P_X}, s8"); k(f"s_cselect_b32 s9, s{P_X+1}, s9"); k("s_and_b32 s9, s9, 0xffff")
    k(f"s_mov_b32 s10, {L.XSZ}"); k("s_mov_b32 s11, 0x20000")
    k("s_waitcnt vmcnt(28)")
    for hh in range(4):
        k(f"s_add_u32 s46, s64, {hh*28*1024}")
        loads(k, [U+(hh*8+i)*4 for i in range(8)], 1, 46, 47, " sc1")
    for j in range(2):
        k(f"buffer_load_dwordx4 {vr(XRS+4*j,4)}, v8, s[8:11], s62 offen offset:{j*128} sc1")
    k("s_waitcnt vmcnt(34)")
    for ks in range(14):
        c = lambda i: None if ks == 0 else S+4*i
        k(mf16(S+0, XK+4*ks, Q+4*ks, c(0)))
        k(mf16(S+8, XK+4*ks, Q+4*(14+ks), c(2)))
        k(mf16(S+12, XK+4*(14+ks), Q+4*(14+ks), c(3)))
    k(f"v_mov_b32 v11, {NEG}")
    for r in range(4):
        k(f"v_cndmask_b32 v{S+r}, v11, v{S+r}, s[{72+2*r}:{73+2*r}]")
        k(f"v_cndmask_b32 v{S+12+r}, v11, v{S+12+r}, s[{72+2*r}:{73+2*r}]")
    k(f"v_max3_f32 v52, v{S}, v{S+1}, v{S+2}"); k(f"v_max_f32 v52, v52, v{S+3}")
    k(f"v_max3_f32 v53, v{S+8}, v{S+9}, v{S+10}")
    for i in (11, 13): k(f"v_max3_f32 v53, v53, v{S+i}, v{S+i+1}")
    k(f"v_max_f32 v53, v53, v{S+15}")
    ntch = k.label()
    k("s_cmp_lt_u32 s60, 62"); k(f"s_cbranch_scc1 {ntch}")
    k("s_lshl_b32 s46, s60, 17"); k("s_lshl_b32 s47, s71, 15"); k("s_add_u32 s46, s46, s47"); k(f"s_lshl_b32 s47, s{S_WAVE}, 13"); k("s_add_u32 s46, s46, s47")
    k(f"s_add_u32 s46, s46, {L.PARTS[0]}"); k("v_lshlrev_b32 v54, 7, v0"); k(f"buffer_load_dword v55, v54, {WL}, s46 offen sc1")
    k.place(ntch)
    k(f"s_mov_b32 s49, {L.PROG(0)}"); k("s_add_u32 s50, s60, 2"); k("s_sub_u32 s51, s60, 1"); k(f"s_cmp_ge_u32 s60, {L.DIRM}"); k("s_cselect_b32 s50, s51, s50")
    k("v_mov_b32 v54, 0"); k("s_waitcnt vmcnt(0)"); k("s_sub_u32 s51, s50, 2")
    wait_words(k, "s49", 54, 55, "s50", abort, ge=True, nap=1, far="s51")
    k(f"s_mul_i32 s52, s60, {L.MEMSZ}"); k(f"s_add_u32 s52, s52, {L.MEMN[0]}"); k("s_add_u32 s53, s52, 4096"); k(f"s_mov_b32 s70, {TIMEOUT}")
    MV = 192
    lmk = k.label("Lmk"); k.place(lmk)
    for ks in range(14): k(f"buffer_load_dwordx4 {vr(MV+4*ks,4)}, v5, {WL}, s{52 if ks < 8 else 53} offen offset:{(ks%8)*512} sc1")
    k("s_sub_u32 s70, s70, 1"); k(f"s_cbranch_scc1 {abort}")
    for ks in range(14):
        k(f"s_waitcnt vmcnt({13-ks})")
        c = lambda i: None if ks == 0 else S+4*i
        k(mf16(S+4, MV+4*ks, Q+4*ks, c(1)))
        k(f"v_max3_u32 v54, v{MV+4*ks}, v{MV+4*ks+1}, {'v54' if ks else f'v{MV}'}")
        k(mf16(S+16, MV+4*ks, Q+4*(14+ks), c(4)))
        k(f"v_max3_u32 v54, v{MV+4*ks+2}, v{MV+4*ks+3}, v54")
    k("v_cmp_eq_u32 vcc, -1, v54"); k(f"s_cbranch_vccnz {lmk}")
    gen.tl(k, 2, 54)
    VV = 120
    loads(k, [VV+4*i for i in range(8)], 1, 65, 47, " sc1")
    for i in range(32): k(f"v_mov_b64 {vr(OUT+2*i,2)}, 0")
    k(f"s_mul_i32 s46, s{S_WAVE}, {14*1024}"); k(f"s_add_u32 s46, s46, {L.WBK}")
    assert L.WBV == L.WBK + 28*1024
    loads(k, [Q+4*i for i in range(14)], 1, 46, 47, " sc1", WS)
    softmax_seg(k, S)
    W = 40
    k(f"ds_write_b128 v6, {vr(W,4)}"); k(f"ds_write_b128 v6, {vr(W+4,4)} offset:1024")
    k(f"ds_write_b64 v7, {vr(W+8,2)}"); k(f"ds_write_b64 v7, {vr(W+10,2)} offset:1024")
    k("s_waitcnt lgkmcnt(0)"); k("s_barrier")
    for i in range(8): k(f"ds_read_b128 {vr(P+4*i,4)}, v1 offset:{A4_PX+i*1024}")
    for q in range(2): k(f"ds_read_b128 {vr(P+32+4*q,4)}, v1 offset:{A4_PM+q*1024}")
    k("s_lshl_b32 s66, s60, 17"); k("s_lshl_b32 s46, s71, 13"); k("s_add_u32 s66, s66, s46"); k("s_lshl_b32 s46, s61, 9"); k("s_add_u32 s66, s66, s46")
    k(f"s_add_u32 s66, s66, {L.PARTS[0]}"); k("s_add_u32 s67, s66, 65536")
    k("s_waitcnt lgkmcnt(0)")
    gen.tl(k, 4, 56)
    skip = k.label()
    for pp in range(4):
        if pp == 3:
            k(f"s_cmp_ge_u32 s{S_WAVE}, 2"); k(f"s_cbranch_scc1 {skip}")
        for hh in range(4):
            for t in range(2):
                for q in range(2):
                    i = 2*pp + t; o = OUT + (i*2 + q)*4
                    k(mf16(o, U+(hh*8+i)*4, P + (hh*2+q)*4, o))
    k.place(skip)
    lvm = k.label("Lvm"); lvk = k.label("Lvk")
    k.place(lvm)
    k("s_waitcnt vmcnt(0)")
    k(f"v_max3_u32 v56, v{VV}, v{VV+1}, v{VV+2}")
    for i in range(3, 23, 2): k(f"v_max3_u32 v56, v56, v{VV+i}, v{VV+i+1}")
    k(f"v_max_u32 v56, v56, v{VV+23}"); k(f"v_max3_u32 v57, v{VV+24}, v{VV+25}, v{VV+26}")
    for i in (27, 29): k(f"v_max3_u32 v57, v57, v{VV+i}, v{VV+i+1}")
    k(f"v_max_u32 v57, v57, v{VV+31}")
    k(f"s_cmp_ge_u32 s{S_WAVE}, 2"); k("s_cselect_b32 s46, 0, -1"); k("v_and_b32 v57, s46, v57"); k("v_max_u32 v56, v56, v57")
    k("v_cmp_eq_u32 vcc, -1, v56"); k(f"s_cbranch_vccz {lvk}")
    k("s_sub_u32 s70, s70, 1"); k(f"s_cbranch_scc1 {abort}")
    loads(k, [VV+4*i for i in range(8)], 1, 65, 47, " sc1")
    k(f"s_branch {lvm}")
    k.place(lvk)
    gen.tl(k, 5, 56)
    for i in range(8):
        for q in range(2):
            o = OUT + (i*2 + q)*4
            k(mf16(o, VV+4*i, P + (8+q)*4, o))
    skip = k.label(); wide = k.label()
    k("s_cmp_ge_u32 s60, 62"); k("s_cselect_b32 s46, s94, 0"); k("s_cmp_eq_u32 s46, 0"); k(f"s_cbranch_scc1 {wide}")
    for fl in ("", " sc1"):
        if fl: k.place(wide)
        for pp in range(4):
            if pp == 3:
                k(f"s_cmp_ge_u32 s{S_WAVE}, 2"); k(f"s_cbranch_scc1 {skip}")
            pack_store(k, OUT, pp, 56 if pp & 1 else 128, fl)
        if not fl: k(f"s_branch {skip}")
    k.place(skip)
    gen.tl(k, 11, 56, 2)
    direct = k.label("Ldir")
    k("s_cmp_ge_u32 s60, 62"); k(f"s_cbranch_scc1 {direct}")
    k("s_waitcnt vmcnt(0)"); k("s_barrier")
    lz = k.label(); k(f"s_cmp_lg_u32 s{S_WAVE}, 0"); k(f"s_cbranch_scc1 {lz}")
    lane0_addr(k, 56, 57); k(f"s_add_u32 s46, s48, {L.PC(0)}"); signal(k, "s46", 56, 57)
    k.place(lz)
    k(f"s_add_u32 s49, s48, {L.PC(0)}"); k("v_mov_b32 v54, 0"); wait_words(k, "s49", 54, 55, 4, abort, nap=1)
    k.place(direct)
    k("s_lshl_b32 s66, s60, 17"); k("s_lshl_b32 s46, s71, 15"); k("s_add_u32 s66, s66, s46"); k("s_lshl_b32 s46, s61, 9"); k("s_add_u32 s66, s66, s46")
    k(f"s_add_u32 s66, s66, {L.PARTS[0]}")
    PT = 16; F = 192
    lpt = k.label("Lpt"); k.place(lpt)
    for src in range(4):
        k(f"s_add_u32 s67, s66, {src*8192}")
        for j in range(2): k(f"buffer_load_dwordx4 {vr(PT+(src*2+j)*4,4)}, v13, {WL}, s67 offen offset:{j*1024} sc1")
    k("s_sub_u32 s70, s70, 1"); k(f"s_cbranch_scc1 {abort}")
    for i in range(8):
        k(f"v_lshlrev_b32 v{F+2*i}, 16, v{XRS+i}"); k(f"v_and_b32 v{F+2*i+1}, 0xffff0000, v{XRS+i}")
    k("v_mov_b32 v56, 0"); k("v_mov_b32 v57, 0")
    for src in range(4):
        k(f"s_waitcnt vmcnt({6-2*src})")
        for j in range(2):
            b_ = PT + src*8 + 4*j
            k(f"v_max3_u32 v{56+j}, v{56+j}, v{b_}, v{b_+1}"); k(f"v_max3_u32 v{56+j}, v{56+j}, v{b_+2}, v{b_+3}")
        for i in range(8):
            k(f"v_lshlrev_b32 v54, 16, v{PT+src*8+i}"); k(f"v_and_b32 v55, 0xffff0000, v{PT+src*8+i}")
            k(f"v_pk_add_f32 {vr(F+2*i,2)}, {vr(F+2*i,2)}, v[54:55]")
    k("v_cndmask_b32 v57, 0, v57, s[82:83]"); k("v_max_u32 v56, v56, v57"); k("v_cmp_eq_u32 vcc, -1, v56"); k(f"s_cbranch_vccnz {lpt}")
    gen.tl(k, 12, 56, 2)
    for i in range(8): k(f"v_cvt_pk_bf16_f32 v{XRS+i}, v{F+2*i}, v{F+2*i+1}")
    k("v_mov_b32 v11, 0x7fffffff"); k("v_cndmask_b32 v12, v11, v8, s[82:83]")
    k(f"s_add_u32 s46, s62, {L.XRA[0]}")
    k(f"buffer_store_dwordx4 {vr(XRS,4)}, v8, {WL}, s46 offen sc1"); k(f"buffer_store_dwordx4 {vr(XRS+4,4)}, v12, {WL}, s46 offen offset:128 sc1")
    def rowsum(off, sq):
        for j in range(2):
            b = F + 8*j
            if sq:
                k(f"v_mul_f32 v{54+j}, v{b}, v{b}")
                for i in range(1, 8): k(f"v_fmac_f32 v{54+j}, v{b+i}, v{b+i}")
            else:
                k(f"v_add_f32 v{54+j}, v{b}, v{b+1}")
                for i in range(2, 8): k(f"v_add_f32 v{54+j}, v{54+j}, v{b+i}")
        k("v_cndmask_b32 v55, 0, v55, s[82:83]"); k("v_add_f32 v54, v54, v55")
        k("v_add_f32_dpp v54, v54, v54 row_ror:8 row_mask:0xf bank_mask:0xf")
        xreduce_g(k, 54, 55, "v_add_f32")
        k(f"ds_write_b32 v9, v54 offset:{A4_ST+off}"); k("s_waitcnt lgkmcnt(0)"); k("s_barrier")
        k(f"ds_read_b128 v[56:59], v10 offset:{A4_ST+off}"); k("s_waitcnt lgkmcnt(0)")
        k("v_add_f32 v56, v56, v57"); k("v_add_f32 v58, v58, v59"); k("v_add_f32 v54, v56, v58")
    rowsum(0, False)
    k(f"v_mul_f32 v54, {hx(f2u(1/448))}, v54")
    for i in range(16): k(f"v_sub_f32 v{F+i}, v{F+i}, v54")
    rowsum(256, True)
    k(f"v_mov_b32 v55, {hx(f2u(1e-5))}"); k(f"v_fmac_f32 v55, {hx(f2u(1/448))}, v54"); k("v_rsq_f32 v55, v55")
    for i in range(16): k(f"v_mul_f32 v{F+i}, v{F+i}, v55")
    for i in range(8): k(f"v_cvt_pk_bf16_f32 v{PT+i}, v{F+2*i}, v{F+2*i+1}")
    for i in range(8): k(f"v_min_u32 v{PT+i}, -2, v{PT+i}")
    k("s_lshl_b32 s46, s61, 9"); k(f"s_add_u32 s46, s46, {A4_XL}"); k("v_add_u32 v12, s46, v13")
    k(f"v_mov_b32 v54, {A4_DUM - 1024}"); k("v_cndmask_b32 v54, v54, v12, s[82:83]")
    k(f"ds_write_b128 v12, {vr(PT,4)}"); k(f"ds_write_b128 v54, {vr(PT+4,4)} offset:1024")
    k("s_lshr_b32 s46, s71, 1"); k("s_lshl_b32 s47, s60, 1"); k("s_add_u32 s46, s46, s47"); k("s_mul_i32 s46, s46, 14"); k("s_add_u32 s46, s46, s61")
    k("s_lshl_b32 s46, s46, 10"); k("s_and_b32 s47, s71, 1"); k("s_lshl_b32 s47, s47, 7"); k("s_add_u32 s46, s46, s47"); k(f"s_add_u32 s46, s46, {L.XTB[0]}")
    k("v_cndmask_b32 v12, v11, v14, s[82:83]")
    k(f"buffer_store_dwordx4 {vr(PT,4)}, v14, {WL}, s46 offen sc1"); k(f"buffer_store_dwordx4 {vr(PT+4,4)}, v12, {WL}, s46 offen offset:2048 sc1")
    k("s_waitcnt lgkmcnt(0)"); k("s_barrier")
    X = 192
    k("v_and_b32 v12, 7, v0"); k("v_lshlrev_b32 v12, 4, v12"); k("v_lshl_add_u32 v12, v3, 7, v12")
    for ks in range(14): k(f"ds_read_b128 {vr(X+4*ks,4)}, v12 offset:{A4_XL+ks*512}")
    lv = k.label("LV"); le = k.label("LE")
    k("s_lshl_b32 s49, s60, 11")
    k(f"s_cmp_ge_u32 s{S_WAVE}, 2"); k(f"s_cbranch_scc1 {lv}")
    k("v_lshrrev_b32 v12, 1, v3"); k("v_lshlrev_b32 v12, 10, v12"); k("v_and_b32 v54, 1, v3"); k("v_lshl_add_u32 v12, v54, 9, v12")
    k("v_lshl_add_u32 v12, v2, 4, v12"); k("v_cmp_gt_u32 vcc, 8, v2"); k("v_cndmask_b32 v12, v11, v12, vcc")
    k("s_lshl_b32 s46, s71, 7"); k(f"s_lshl_b32 s47, s{S_WAVE}, 3"); k("s_add_u32 s46, s46, s47"); k("s_add_u32 s46, s46, s49"); k(f"s_add_u32 s46, s46, {L.KI[0]}")
    k("s_waitcnt lgkmcnt(0)")
    for ks in range(14): k(mf16(16, Q+4*ks, X+4*ks, None if ks == 0 else 16))
    k("v_cvt_pk_bf16_f32 v24, v16, v17"); k("v_cvt_pk_bf16_f32 v25, v18, v19")
    k(f"s_branch {le}")
    k.place(lv)
    k("v_lshlrev_b32 v12, 9, v3"); k("v_lshl_add_u32 v12, v2, 4, v12"); k("v_cndmask_b32 v12, v11, v12, s[80:81]")
    k("s_lshr_b32 s46, s71, 1"); k("s_lshl_b32 s46, s46, 10"); k("s_and_b32 s47, s71, 1"); k("s_lshl_b32 s47, s47, 3"); k("s_add_u32 s46, s46, s47")
    k(f"s_and_b32 s47, s{S_WAVE}, 1"); k("s_lshl_b32 s47, s47, 8"); k("s_add_u32 s46, s46, s47"); k("s_add_u32 s46, s46, s49"); k(f"s_add_u32 s46, s46, {L.VI[0]}")
    k(f"s_cmp_eq_u32 s{S_WAVE}, 3"); k("s_cselect_b32 s47, 12, 99"); k("v_cmp_eq_u32 vcc, s47, v2"); k("v_mov_b32 v54, 0x3f803f80")
    k("s_waitcnt lgkmcnt(0)")
    for ks in range(14): k(mf16(16, X+4*ks, Q+4*ks, None if ks == 0 else 16))
    k("v_cvt_pk_bf16_f32 v24, v16, v17"); k("v_cvt_pk_bf16_f32 v25, v18, v19")
    k("v_cndmask_b32 v24, v24, v54, vcc"); k("v_cndmask_b32 v25, v25, v54, vcc")
    k.place(le)
    k("v_min_u32 v24, -2, v24"); k("v_min_u32 v25, -2, v25")
    k(f"buffer_store_dwordx2 v[24:25], v12, {WL}, s46 offen sc1")
    k("s_waitcnt vmcnt(0)"); k("s_barrier")
    lz = k.label(); k(f"s_cmp_lg_u32 s{S_WAVE}, 0"); k(f"s_cbranch_scc1 {lz}")
    k(f"s_add_u32 s47, s48, {L.SC(0)}"); lane0_addr(k, 4, 5); signal(k, "s47", 4, 5)
    k.place(lz)

def pack_store(k, OUT, pp, T, fl):
    for q in range(2):
        for t in range(2):
            a = OUT + ((2*pp+t)*2 + q)*4
            k(f"v_cvt_pk_bf16_f32 v{T+4*q+2*t}, v{a}, v{a+1}"); k(f"v_cvt_pk_bf16_f32 v{T+4*q+2*t+1}, v{a+2}, v{a+3}")
        for r in range(4): k(f"v_min_u32 v{T+4*q+r}, -2, v{T+4*q+r}")
        k(f"buffer_store_dwordx4 {vr(T+4*q,4)}, v15, {WL}, s{66+q} offen offset:{pp*512}{fl}")

N7 = 76; ROW6 = 14*N7; LATE0 = 1792; N6 = 64; N4 = 16; ROW2 = LATE0 + 8*N4; N2 = (2048 - ROW2)//4
BQL = 0; BOL = 16384; BST = (BOL + 16*912 + 512 + 255)//256*256; BMX = BST + 1024; BFL = BMX + 4096; BRED = BFL + 256
B_LDS = BRED + 4*7*4096

def body_attnB(k, QT, abort, gemm_label=None):
    big = QT > 4; R = 2*QT; ROW0 = {7: 0, 6: ROW6, 4: LATE0, 2: ROW2}[QT]
    XB = 16
    k("v_lshlrev_b32 v1, 4, v0"); k("v_and_b32 v2, 15, v0"); k("v_lshrrev_b32 v3, 4, v0")
    qreg = lambda o: 256 + 4*o if o < 64 else 120 + 4*(o-64)
    k(f"s_mul_i32 s46, s{S_WAVE}, {7*14*1024}"); k(f"s_add_u32 s46, s46, {L.WBQ}")
    loads(k, [qreg(o) for o in range(98)], 1, 46, 46, " sc1", WS)
    k(f"s_mul_i32 s61, s60, {R}")
    if ROW0: k(f"s_add_u32 s61, s61, {ROW0}")
    k(f"v_min_u32 v4, {R-1}, v2"); k("v_add_u32 v4, s61, v4")
    if QT == 6: k(f"v_min_u32 v4, {LATE0-1}, v4")
    def tiled(vd, vt):
        k(f"v_lshrrev_b32 v{vd}, 4, v{vt}"); k(f"v_mul_u32_u24 v{vd}, {14*1024}, v{vd}"); k(f"v_and_b32 v6, 15, v{vt}")
        k(f"v_lshl_add_u32 v{vd}, v6, 4, v{vd}"); k(f"v_lshl_add_u32 v{vd}, v3, 8, v{vd}")
    tiled(5, 4)
    k("v_mov_b64 v[8:9], 0"); k("v_mov_b64 v[10:11], 0"); k(f"s_lshl_b32 s46, s{S_WAVE}, 12"); k("v_add_u32 v7, s46, v1")
    for i in range(4): k(f"ds_write_b128 v7, v[8:11] offset:{BQL+i*1024}")
    k(f"v_mov_b32 v7, {BFL}"); k("ds_write_b32 v7, v8")
    k("v_lshrrev_b32 v12, 5, v4"); k("v_lshlrev_b32 v12, 7, v12"); k(f"s_mov_b32 s49, {L.SC(0)}")
    k("s_lshr_b32 s50, s61, 5"); k("s_min_u32 s50, s50, 61"); k("s_waitcnt vmcnt(0)")
    if big: wait_words(k, "s49", 12, 13, 4, abort, nap=1, far="s50")
    else:
        k(f"s_mov_b32 s49, {L.PROG(0)}"); k("v_mov_b32 v12, 0")
        wait_words(k, "s49", 12, 13, "s50", abort, ge=True, nap=24)
        k("s_mov_b32 s96, 0"); k("s_lshr_b32 s98, s61, 5")
        if QT == 2: k("s_sub_u32 s98, s98, 1")
        gate(k, L.SC(0), 1, 4, "s98", 96, "v_lshlrev_b32 v8, 3, v1", 8, abort, nap=1, napfar=8)
    k(f"s_mov_b32 s48, {L.XTB[0]}"); k(f"s_mov_b32 s70, {TIMEOUT}")
    k("s_waitcnt lgkmcnt(0)"); k("s_barrier")
    k(f"s_mul_i32 s63, s{S_WAVE}, 112")
    k("v_lshlrev_b32 v6, 2, v3"); k("v_add_u32 v6, s63, v6"); k("v_lshlrev_b32 v7, 10, v2")
    for i in range(7):
        k(f"v_add_u32 v8, {16*i}, v6"); k("v_mul_u32_u24 v9, 2341, v8"); k("v_lshrrev_b32 v9, 16, v9")
        k("v_lshl_add_u32 v8, v8, 1, v7"); k(f"v_lshl_add_u32 v{100+i}, v9, 3, v8")
    k(f"s_mov_b32 s64, {hx(f2u(L.LOG2E/28**0.5))}")
    A0 = 72
    lx = k.label("Lx"); k.place(lx)
    if QT == 2:
        assert ROW2 == 32*L.DIRX
        l1 = k.label("Lx"); k.place(l1)
        k(f"s_add_u32 s47, s48, {13*1024}"); k(f"buffer_load_dword v8, v5, {WL}, s47 offen sc1")
        k("s_sub_u32 s70, s70, 1"); k(f"s_cbranch_scc1 {abort}")
        k("s_waitcnt vmcnt(0)"); k("v_cmp_eq_u32 vcc, -1, v8"); k(f"s_cbranch_vccnz {l1}")
    loads(k, [XB+4*ks for ks in range(14)], 5, 48, 47, " sc1")
    for ks in range(14):
        k(f"s_waitcnt vmcnt({13-ks})")
        for i in range(7):
            k(mf16(A0+4*i, qreg(i*14+ks), XB+4*ks, None if ks == 0 else A0+4*i))
            if QT == 2 and i < 2: k(f"v_max3_u32 v8, v{XB+4*ks+2*i}, v{XB+4*ks+2*i+1}, {'v8' if ks or i else f'v{XB}'}")
    if QT == 2:
        k("v_cmp_eq_u32 vcc, -1, v8"); k(f"s_cbranch_vccnz {lx}")
    QO = 16; KV = [72, 88] if big else [208, 224, 240]; SS = [104, 120]; PP = 136; O = 144; MX = SS[1]
    def kvl(b):
        return [f"buffer_load_dwordx4 {vr(KV[b],4)}, v1, {WL}, s67 offen sc1", f"buffer_load_dwordx4 {vr(KV[b]+4,4)}, v1, {WL}, s67 offen offset:1024 sc1",
                f"buffer_load_dwordx4 {vr(KV[b]+8,4)}, v1, {WL}, s68 offen sc1", f"buffer_load_dwordx4 {vr(KV[b]+12,4)}, v1, {WL}, s68 offen offset:1024 sc1",
                "s_add_u32 s67, s67, 8192", "s_add_u32 s68, s68, 8192"]
    def kvload(b):
        for x in kvl(b): k(x)
    k(f"s_lshl_b32 s65, s{S_WAVE}, 11"); k(f"s_add_u32 s66, s65, {L.VI[0]}"); k(f"s_add_u32 s65, s65, {L.KI[0]}")
    k("s_mov_b32 s67, s65"); k("s_mov_b32 s68, s66"); k("s_mov_b32 s78, 0")
    if big: k("s_mov_b32 s96, 0"); k(f"s_mov_b32 s98, s{S_WAVE}")
    def sgate(): gate(k, L.SC(0), 1, 4, "s98", 96, "v_lshlrev_b32 v8, 3, v1", 8, abort, nap=(2 if big else 1))
    def kv_direct(b, issued=False):
        lp_ = k.label("Lkd"); chk = k.label("Lkc"); k(f"s_mov_b32 s70, {TIMEOUT}")
        if issued: k(f"s_branch {chk}")
        else:
            k("s_sub_u32 s98, s98, 1"); sgate(); k("s_add_u32 s98, s98, 1"); k(f"s_mov_b32 s70, {TIMEOUT}")
        k.place(lp_)
        for x in kvl(b)[:4]: k(x)
        k("s_sub_u32 s70, s70, 1"); k(f"s_cbranch_scc1 {abort}")
        k.place(chk)
        k("s_waitcnt vmcnt(0)")
        k(f"v_max3_u32 v8, v{KV[b]}, v{KV[b]+1}, v{KV[b]+2}")
        for i in range(3, 15, 2): k(f"v_max3_u32 v8, v8, v{KV[b]+i}, v{KV[b]+i+1}")
        k(f"v_max_u32 v8, v8, v{KV[b]+15}"); k("v_cmp_eq_u32 vcc, -1, v8"); k(f"s_cbranch_vccnz {lp_}")
    if not big:
        k(f"s_add_u32 s98, s{S_WAVE}, 48")
        kvload(0); kvload(1); kvload(2)
    for i in range(7):
        a = A0 + 4*i
        for r in range(4): k(f"v_mul_f32 v{a+r}, s64, v{a+r}")
        k(f"v_cvt_pk_bf16_f32 v{a}, v{a}, v{a+1}"); k(f"v_cvt_pk_bf16_f32 v{a+1}, v{a+2}, v{a+3}")
        k(f"ds_write_b64 v{100+i}, {vr(a,2)} offset:{BQL}")
    oreg = lambda o: 256 + 4*o if o < 64 else (128 + 4*(o-64) if o < 96 else 256 + 4*(o-96))
    def wl(o): return [f"s_add_u32 s46, s62, {(o//4)*4096}"]*(o % 4 == 0) + [f"buffer_load_dwordx4 {vr(oreg(o),4)}, v1, {WS}, s46 offen offset:{(o%4)*1024} sc1"]
    if big:
        k(f"s_lshl_b32 s69, s{S_WAVE}, 2"); k(f"s_cmp_eq_u32 s{S_WAVE}, 3"); k("s_cselect_b32 s69, 11, s69")
        k(f"s_mul_i32 s62, s69, {28*1024}"); k(f"s_add_u32 s62, s62, {L.WBO}")
        for o in range(64):
            for x in wl(o): k(x)
    k("s_waitcnt lgkmcnt(0)"); k("s_barrier")
    k("v_bfe_u32 v6, v0, 4, 1"); k("v_lshlrev_b32 v6, 10, v6"); k("v_lshl_add_u32 v6, v2, 6, v6"); k("v_lshrrev_b32 v7, 5, v0"); k("v_lshl_add_u32 v6, v7, 4, v6")
    def qread():
        for q in range(QT):
            for kk in range(2): k(f"ds_read_b128 {vr(QO+8*q+4*kk,4)}, v6 offset:{BQL+q*2048+kk*32}")
    qread()
    for i in range(8*QT): k(f"v_mov_b64 {vr(O+2*i,2)}, 0")
    gen.tl(k, 4, 12)
    if big:
        sgate(); kvload(0); k("s_add_u32 s98, s98, 4")
        k("s_waitcnt lgkmcnt(0)")
        loop = k.label("LK"); lend = k.label("LKe"); k.place(loop)
        for b in range(2):
            nopf = k.label(); go = k.label(); havek = k.label()
            k("s_cmp_lt_u32 s98, s96"); k("s_cselect_b32 s79, 1, 0"); k("s_cmp_lt_u32 s98, 64"); k("s_cselect_b32 s79, s79, 0")
            k("s_cmp_eq_u32 s79, 0"); k(f"s_cbranch_scc1 {nopf}")
            kvload(1-b); k("s_waitcnt vmcnt(4)"); k(f"s_branch {go}")
            k.place(nopf); k("s_waitcnt vmcnt(0)")
            k.place(go)
            k(mf32(SS[0], KV[b], QO, None)); k(mf32(SS[0], KV[b]+4, QO+4, SS[0]))
            for q in range(QT):
                s_ = SS[q & 1]; sn = SS[(q+1) & 1]; last = q + 1 == QT
                ex = lambda a_, n: [f"v_exp_f32 v{s_+r}, v{s_+r}" for r in range(a_, a_+n)]
                cv = lambda h: [f"v_cvt_pk_bf16_f32 v{PP+4*h+j}, v{s_+8*h+2*j}, v{s_+8*h+2*j+1}" for j in range(4)]
                if not last: k(mf32(sn, KV[b], QO+8*(q+1), None))
                for x in ex(0, 4): k(x)
                if q: k(mf32(O+16*(q-1), KV[b]+12, PP+4, O+16*(q-1)))
                for x in ex(4, 4): k(x)
                if not last: k(mf32(sn, KV[b]+4, QO+8*(q+1)+4, sn))
                for x in cv(0) + ex(8, 4): k(x)
                k(mf32(O+16*q, KV[b]+8, PP, O+16*q))
                for x in ex(12, 4) + cv(1): k(x)
            k(mf32(O+16*(QT-1), KV[b]+12, PP+4, O+16*(QT-1)))
            if b == 1:
                k("s_cmp_ge_u32 s98, 64"); k(f"s_cbranch_scc1 {lend}")
            k("s_cmp_eq_u32 s79, 1"); k(f"s_cbranch_scc1 {havek}")
            if b == 0:
                nt = k.label()
                k("s_cmp_lt_u32 s98, 60"); k(f"s_cbranch_scc1 {nt}")
                k("v_lshlrev_b32 v8, 3, v1")
                code_touch(k, lend, 8192 if big else 1280, True, 8, 9)
                code_touch(k, gemm_label, 8192, False, 8, 9)
                k.place(nt)
            sgate(); kvload(1-b)
            k.place(havek)
            k("s_add_u32 s98, s98, 4")
        k(f"s_branch {loop}")
        k.place(lend)
    else:
        k("s_waitcnt vmcnt(8) lgkmcnt(0)")
        k(mf32(SS[0], KV[0], QO, None)); k(mf32(SS[0], KV[0]+4, QO+4, SS[0]))
        nstep = 16*QT
        for i in range(nstep):
            t, q = divmod(i, QT); s_ = SS[i & 1]; sn = SS[(i+1) & 1]; tn, qn = divmod(i+1, QT); last = i + 1 == nstep
            ex = lambda a_, n: [f"v_exp_f32 v{s_+r}, v{s_+r}" for r in range(a_, a_+n)]
            cv = lambda h: [f"v_cvt_pk_bf16_f32 v{PP+4*h+j}, v{s_+8*h+2*j}, v{s_+8*h+2*j+1}" for j in range(4)]
            if not last:
                if qn == 0:
                    if tn <= 14: k("s_waitcnt vmcnt(4)")
                    else: kv_direct(15 % 3, True)
                k(mf32(sn, KV[tn % 3], QO+8*qn, None))
            for x in ex(0, 4): k(x)
            if i:
                tp, qp = divmod(i-1, QT)
                k(mf32(O+16*qp, KV[tp % 3]+12, PP+4, O+16*qp))
            if q == 0 and 1 <= t <= 13:
                if t == 13:
                    for x in kvl(15 % 3)[:4]: k(x)
                else:
                    if t >= 10:
                        sgate(); k("s_add_u32 s98, s98, 4")
                    kvload((t+2) % 3)
            for x in ex(4, 4): k(x)
            if not last: k(mf32(sn, KV[tn % 3]+4, QO+8*qn+4, sn))
            for x in cv(0) + ex(8, 4): k(x)
            k(mf32(O+16*q, KV[t % 3]+8, PP, O+16*q))
            for x in ex(12, 4) + cv(1): k(x)
        k(mf32(O+16*(QT-1), KV[15 % 3]+12, PP+4, O+16*(QT-1)))
    gen.tl(k, 12, 12, 2)
    redo = k.label("LBr"); slow = k.label("LBs"); fin = k.label("LBf")
    k.place(redo)
    k(f"s_mul_i32 s46, s{S_WAVE}, {QT*4096}"); k(f"s_add_u32 s46, s46, {BRED}"); k("v_add_u32 v7, s46, v1")
    for q in range(QT):
        for j in range(4): k(f"ds_write_b128 v7, {vr(O+16*q+4*j,4)} offset:{q*4096+j*1024}")
    OUT = 96; XRS = 80
    if big:
        k("v_add_u32 v9, s61, v2")
        if QT == 6:
            k(f"v_mov_b32 v8, 4096"); k(f"v_cmp_gt_u32 vcc, {LATE0}, v9"); k("v_cndmask_b32 v9, v8, v9, vcc")
            k(f"s_lshl_b32 s46, s60, 2"); k(f"s_add_u32 s46, s46, {LATE0 - 12}"); k("v_add_u32 v8, s46, v2")
        else: k("v_mov_b32 v8, 4096")
        k(f"v_cmp_gt_u32 vcc, {R}, v2"); k("v_cndmask_b32 v4, v8, v9, vcc"); k("v_mov_b32 v8, 2048"); k("v_cmp_lt_u32 s[72:73], v4, v8"); k("v_min_u32 v4, 2047, v4")
        k("v_mul_u32_u24 v14, 896, v4"); k("v_lshl_add_u32 v14, v3, 4, v14"); k("s_lshl_b32 s46, s69, 6"); k("v_add_u32 v14, s46, v14")
    k("s_waitcnt lgkmcnt(0)")
    if big:
        for o in range(64, 96):
            for x in wl(o): k(x)
    k("s_barrier")
    T = 16
    k("v_lshrrev_b32 v8, 5, v0")
    k("v_bfe_u32 v9, v0, 4, 1"); k("v_mul_u32_u24 v9, 912, v9"); k("v_mul_u32_u24 v10, 56, v2"); k("v_add_u32 v9, v9, v10"); k("v_lshl_add_u32 v9, v8, 3, v9")
    k(f"v_mov_b32 v11, {BOL + 16*912}"); k("v_cmp_eq_u32 s[74:75], 1, v8")
    for rep in range((QT+3)//4):
        skip = k.label()
        k(f"s_add_u32 s46, s{S_WAVE}, {4*rep}")
        if 4*rep + 3 >= QT:
            k(f"s_cmp_ge_u32 s46, {QT}"); k(f"s_cbranch_scc1 {skip}")
        k("s_lshl_b32 s47, s46, 12"); k(f"s_add_u32 s47, s47, {BRED}"); k("v_add_u32 v7, s47, v1")
        for w in range(4):
            if w: k(f"v_add_u32 v7, {QT*4096}, v7")
            for j in range(4): k(f"ds_read_b128 {vr(T+16*w+4*j,4)}, v7 offset:{j*1024}")
            if w == 2: k("s_waitcnt lgkmcnt(4)")
        for i in range(8): k(f"v_pk_add_f32 {vr(T+2*i,2)}, {vr(T+2*i,2)}, {vr(T+16+2*i,2)}")
        k("s_waitcnt lgkmcnt(0)")
        for i in range(8): k(f"v_pk_add_f32 {vr(T+32+2*i,2)}, {vr(T+32+2*i,2)}, {vr(T+48+2*i,2)}")
        for i in range(8): k(f"v_pk_add_f32 {vr(T+2*i,2)}, {vr(T+2*i,2)}, {vr(T+32+2*i,2)}")
        k(f"v_mov_b32 v12, v{T+12}"); k(f"v_mov_b32 v13, v{T+12}")
        k("v_permlane32_swap_b32 v12, v13")
        k(f"v_cmp_nle_f32 vcc, {hx(f2u(2.0**-60))}, v13"); k(f"v_mov_b32 v12, {hx(f2u(2.0**60))}")
        k("v_cmp_nle_f32 s[76:77], v13, v12"); k("s_or_b64 vcc, vcc, s[76:77]")
        ok = k.label()
        k(f"s_cbranch_vccz {ok}")
        k(f"v_mov_b32 v12, {BFL}"); k("v_mov_b32 v15, 1"); k("ds_write_b32 v12, v15")
        k.place(ok)
        k("v_rcp_f32 v13, v13")
        k("s_mul_i32 s47, s46, 1824"); k(f"s_add_u32 s47, s47, {BOL}"); k("v_add_u32 v10, s47, v9")
        for j in range(4):
            for r in range(4): k(f"v_mul_f32 v{T+4*j+r}, v{T+4*j+r}, v13")
            k(f"v_cvt_pk_bf16_f32 v{T+4*j}, v{T+4*j}, v{T+4*j+1}"); k(f"v_cvt_pk_bf16_f32 v{T+4*j+1}, v{T+4*j+2}, v{T+4*j+3}")
            if j == 3:
                k("v_add_u32 v10, 48, v10"); k("v_cndmask_b32 v10, v10, v11, s[74:75]")
                k(f"ds_write_b64 v10, {vr(T+12,2)}")
            else: k(f"ds_write_b64 v10, {vr(T+4*j,2)} offset:{16*j}")
        k.place(skip)
    k("s_waitcnt lgkmcnt(0)"); k("s_barrier")
    k(f"v_mov_b32 v12, {BFL}"); k("ds_read_b32 v12, v12"); k("s_waitcnt lgkmcnt(0)")
    k("v_readfirstlane_b32 s46, v12")
    k("s_andn2_b32 s46, s46, s78")
    k("s_cmp_eq_u32 s46, 1"); k(f"s_cbranch_scc1 {slow}")
    if not big:
        k(f"s_mul_i32 s46, s{S_WAVE}, 912"); k(f"s_add_u32 s46, s46, {BOL}"); k("v_add_u32 v7, s46, v1")
        for j in range(R//4): k(f"ds_read_b128 {vr(16+4*j,4)}, v7 offset:{j*4*912}")
        k(f"s_sub_u32 s46, s61, {LATE0}"); k(f"s_add_u32 s47, s46, s{S_WAVE}"); k("s_mul_i32 s47, s47, 896"); k(f"s_add_u32 s47, s47, {L.OLATE[0]}")
        k("v_mov_b32 v8, 0x7fffffff"); k("v_cmp_gt_u32 vcc, 56, v0"); k("v_cndmask_b32 v8, v8, v1, vcc")
        k("s_waitcnt lgkmcnt(0)")
        for j in range(R//4): k(f"buffer_store_dwordx4 {vr(16+4*j,4)}, v8, {WL}, s47 offen offset:{j*3584} sc1")
        k("s_waitcnt vmcnt(0)"); k("s_barrier")
        k(f"s_cmp_lg_u32 s{S_WAVE}, 0"); k(f"s_cbranch_scc1 {fin}")
        k("s_lshl_b32 s46, s46, 5"); k(f"s_add_u32 s46, s46, {L.OF(0)}"); k("v_lshlrev_b32 v12, 7, v0"); k("v_mov_b32 v13, 1")
        k(f"s_mov_b64 exec, {(1 << (R//4)) - 1}"); k(f"buffer_store_dword v13, v12, {WL}, s46 offen sc1"); k("s_mov_b64 exec, -1")
        k(f"s_branch {fin}")
    else:
        k(f"s_add_u32 s8, s{P_WS}, {L.XR1}"); k(f"s_addc_u32 s9, s{P_WS+1}, 0"); k(f"s_cmp_eq_u32 s{S_LAYER}, 0")
        k(f"s_cselect_b32 s8, s8, s{P_OUT}"); k(f"s_cselect_b32 s9, s9, s{P_OUT+1}"); k("s_and_b32 s9, s9, 0xffff")
        k(f"s_mov_b32 s10, {L.XSZ}"); k("s_mov_b32 s11, 0x20000")
        k(f"s_mov_b32 s48, {L.XRA[0]}")
        for pp in range(4): k(f"buffer_load_dwordx4 {vr(XRS+4*pp,4)}, v14, {WL}, s48 offen offset:{pp*64} sc1")
        k("v_mul_u32_u24 v7, 912, v2"); k("v_lshl_add_u32 v7, v3, 4, v7")
        for ks in range(14): k(f"ds_read_b128 {vr(XB+4*ks,4)}, v7 offset:{BOL+ks*64}")
        if QT == 6:
            k("s_lshl_b32 s49, s60, 7"); k(f"s_add_u32 s49, s49, {L.OF(0)}"); k("v_mov_b32 v12, 0")
            wait_words(k, "s49", 12, 13, 1, abort, nap=1, wg=False)
            k(f"v_subrev_u32 v12, {LATE0}, v4"); k("v_mul_u32_u24 v12, 896, v12"); k("v_lshl_add_u32 v12, v3, 4, v12"); k(f"s_mov_b32 s49, {L.OLATE[0]}")
            k("s_waitcnt lgkmcnt(0)")
            k("s_mov_b32 exec_lo, 0xf000f000"); k("s_mov_b32 exec_hi, 0xf000f000")
            for ks in range(14): k(f"buffer_load_dwordx4 {vr(XB+4*ks,4)}, v12, {WL}, s49 offen offset:{ks*64} sc1")
            k("s_mov_b64 exec, -1")
        k("s_waitcnt vmcnt(0) lgkmcnt(0)")
        gen.tl(k, 11, 12, 2)
        short = k.label()
        for i in range(8):
            if i == 6:
                k(f"s_cmp_ge_u32 s{S_WAVE}, 2"); k(f"s_cbranch_scc1 {short}")
                k("s_waitcnt vmcnt(0)")
            a = OUT + 4*i
            for ks in range(14): k(mf16(a, oreg(i*14+ks), XB+4*ks, None if ks == 0 else a))
            if i == 1:
                for o in range(96, 112):
                    for x in wl(o): k(x)
        k.place(short)
        slab_request(k, 100)
        k("v_mov_b32 v9, 0x7fffffff"); k("v_cndmask_b32 v8, v9, v14, s[72:73]")
        tiled(5, 4)
        k("s_lshl_b32 s46, s69, 10"); k("v_add_u32 v5, s46, v5"); k("v_cndmask_b32 v5, v9, v5, s[72:73]")
        k(f"s_lshl_b32 s46, s{S_WAVE}, 2"); k("v_lshlrev_b32 v11, 4, v2"); k("v_add_u32 v10, s46, v11")
        k(f"s_mov_b32 s49, {L.XTA[1]}")
        def res_store(pp, q, r): k(f"buffer_store_dwordx4 {vr(r,4)}, v8, s[8:11], 0 offen offset:{pp*64} sc1")
        def xn_store(pp, q, r): k(f"buffer_store_dwordx4 {vr(r,4)}, v5, {WS}, s49 offen offset:{pp*1024} sc1")
        ln_epilogue(k, lambda pp, q, t: OUT + (2*pp+t)*4, 1, lambda pp, q: XRS+4*pp, 16, 24, 10, BST, res_store, xn_store, fin)
        slab_stage(k, 6)
        k("s_waitcnt vmcnt(0)"); k("s_barrier")
        k(f"s_cmp_lg_u32 s{S_WAVE}, 0"); k(f"s_cbranch_scc1 {fin}")
        lim = ROW6 if QT == 7 else LATE0
        k(f"s_add_u32 s47, s61, {R}"); k(f"s_min_u32 s47, s47, {lim}"); k(f"s_min_u32 s46, s61, {lim}")
        k("s_lshr_b32 s48, s46, 5"); k("s_add_u32 s49, s48, 1"); k("s_lshl_b32 s50, s49, 5"); k("s_min_u32 s50, s50, s47")
        k("s_sub_u32 s51, s50, s46"); k("s_sub_u32 s52, s47, s50")
        k("v_mov_b32 v12, s48"); k("v_mov_b32 v13, s51")
        k("v_writelane_b32 v12, s49, 1"); k("v_writelane_b32 v13, s52, 1")
        if QT == 6:
            k("s_lshr_b32 s48, s60, 3"); k(f"s_add_u32 s48, s48, {LATE0//32}"); k("v_writelane_b32 v12, s48, 2"); k("v_writelane_b32 v13, 4, 2")
        k("v_lshlrev_b32 v12, 7, v12"); k(f"s_mov_b32 s46, {L.RC(1)}")
        signal(k, "s46", 12, 13, WS, lanes=7 if QT == 6 else 3)
        k(f"s_branch {fin}")
    k.place(slow)
    k("s_waitcnt vmcnt(0) lgkmcnt(0)"); k("s_barrier")
    k("s_mov_b32 s78, 1")
    qread()
    for q in range(QT): k(f"v_mov_b32 v{MX+q}, {NINF}")
    k("s_mov_b32 s67, s65"); k("s_mov_b32 s68, s66"); k("s_mov_b32 s70, 16")
    lm = k.label("LM"); k.place(lm)
    kvload(0)
    k("s_waitcnt vmcnt(0) lgkmcnt(0)")
    for q in range(QT):
        s_ = SS[0]
        k(mf32(s_, KV[0], QO+8*q, None)); k(mf32(s_, KV[0]+4, QO+8*q+4, s_))
        for r in range(0, 16, 2): k(f"v_max3_f32 v{MX+q}, v{MX+q}, v{s_+r}, v{s_+r+1}")
    k("s_sub_u32 s70, s70, 1"); k("s_cmp_lg_u32 s70, 0"); k(f"s_cbranch_scc1 {lm}")
    k("v_and_b32 v7, 31, v0"); k("v_lshlrev_b32 v7, 2, v7"); k(f"s_lshl_b32 s46, s{S_WAVE}, 10"); k("v_add_u32 v12, s46, v7")
    for q in range(QT):
        k(f"v_mov_b32 v13, v{MX+q}"); k(f"v_permlane32_swap_b32 v{MX+q}, v13"); k(f"v_max_f32 v{MX+q}, v{MX+q}, v13")
        k(f"ds_write_b32 v12, v{MX+q} offset:{BMX+q*128}")
    k("s_waitcnt lgkmcnt(0)"); k("s_barrier")
    for q in range(QT):
        for w in range(4): k(f"ds_read_b32 v{SS[0]+w}, v7 offset:{BMX+w*1024+q*128}")
        k("s_waitcnt lgkmcnt(0)")
        k(f"v_max3_f32 v{MX+q}, v{SS[0]}, v{SS[0]+1}, v{SS[0]+2}"); k(f"v_max_f32 v{MX+q}, v{MX+q}, v{SS[0]+3}")
    for i in range(8*QT): k(f"v_mov_b64 {vr(O+2*i,2)}, 0")
    k("s_mov_b32 s67, s65"); k("s_mov_b32 s68, s66"); k("s_mov_b32 s70, 16")
    lp = k.label("LK"); k.place(lp)
    kvload(0)
    k("s_waitcnt vmcnt(0)")
    for q in range(QT):
        s_ = SS[0]
        for r in range(16): k(f"v_sub_f32 v{s_+r}, 0, v{MX+q}")
        k(mf32(s_, KV[0], QO+8*q, s_)); k(mf32(s_, KV[0]+4, QO+8*q+4, s_))
        for h in range(2):
            for r in range(8*h, 8*h+8): k(f"v_exp_f32 v{s_+r}, v{s_+r}")
            for j in range(4): k(f"v_cvt_pk_bf16_f32 v{PP+4*h+j}, v{s_+8*h+2*j}, v{s_+8*h+2*j+1}")
            k(mf32(O+16*q, KV[0]+8+4*h, PP+4*h, O+16*q))
    k("s_sub_u32 s70, s70, 1"); k("s_cmp_lg_u32 s70, 0"); k(f"s_cbranch_scc1 {lp}")
    k(f"s_branch {redo}")
    k.place(fin)
    if not big:
        slab_request(k, 100); slab_stage(k, 0)
```

```python
from gen import *
import gen

ASL = 0
WNT = 0
PMODE = 0
NE1 = 2
VMPOS = [(1,1),(1,6),(2,1),(2,5),(3,1),(3,4),(4,1),(5,1),(6,1),(6,6),(7,1)]
BPOLL = 0
BPS = 2
APOLL = 1
UV = 0
XPK = 0
BSL = 0
PSL = 0
XSIG = 0
XNOU = 0
XACK = 0
XSLEEP = 0
XNOEXP = 0
XPOLL = 0
NB = 9
PFD = 2

DIAG = False
DBGOFF = 0xF000000
def stamp(k, i):
    if DIAG == 3: k(f"s_memrealtime s[{72+2*i}:{73+2*i}]")
    elif DIAG: k(f"s_memtime s[{72+2*i}:{73+2*i}]")
def stamp_acc(k, n):
    if not DIAG: return
    k("s_waitcnt lgkmcnt(0)")
    if DIAG == 3:
        for i in range(1, n): k(f"s_add_u32 s{87+i}, s{87+i}, s{72+2*i}")
        return
    for i in range(n-1):
        k(f"s_sub_u32 s71, s{72+2*(i+1)}, s{72+2*i}"); k(f"s_add_u32 s{88+i}, s{88+i}, s71")
T0 = 0
def stamp_init(k):
    if DIAG or T0:
        for i in range(8): k(f"s_mov_b32 s{88+i}, 0")
        k("s_memtime s[72:73]"); k("s_waitcnt lgkmcnt(0)"); k("s_mov_b32 s95, s72")
def stamp_out(k):
    if not (DIAG or T0): return
    k("s_memtime s[72:73]"); k("s_waitcnt lgkmcnt(0)"); k("s_sub_u32 s95, s72, s95")
    for i in range(8): k(f"v_mov_b32 v{16+i}, s{88+i}")
    k(f"s_lshl_b32 s46, s59, 2"); k(f"s_add_u32 s46, s46, s{S_WAVE}"); k("s_lshl_b32 s46, s46, 5"); k(f"s_add_u32 s46, s46, {DBGOFF}")
    k("v_mov_b32 v24, 0")
    k(f"buffer_store_dwordx4 v[16:19], v24, {WS}, s46 offen"); k(f"buffer_store_dwordx4 v[20:23], v24, {WS}, s46 offen offset:16")

def tl0(k, ix, vt):
    if gen.TL != 4: return
    lz = k.label(); k("s_or_b32 s46, s67, s0"); k("s_cmp_lg_u32 s46, 0"); k(f"s_cbranch_scc1 {lz}"); gen.tl(k, ix, vt, 0); k.place(lz)

def interleave(k, main, side):
    for i, m in enumerate(main):
        k(m)
        for s in side.get(i, []): k(s)

def ugate_parts(k, need, v128, vt):
    def request():
        k(v128); k(f"v_and_b32 v{vt+1}, 0x780, v{vt}"); k(f"v_lshrrev_b32 v{vt}, 11, v{vt}"); k(f"v_lshl_add_u32 v{vt}, v{vt}, 13, v{vt+1}")
        k("s_min_u32 s96, s96, 48"); k("s_lshl_b32 s97, s96, 7"); k(f"s_add_u32 s97, s97, {L.UC(0)}")
        k(f"buffer_load_dword v{vt+1}, v{vt}, {WL}, s97 offen sc1")
    def evaluate():
        k(f"v_cmp_ne_u32 vcc, 28, v{vt+1}")
        k("s_or_b32 s97, vcc_lo, vcc_hi"); k("s_lshr_b32 vcc_lo, s97, 16"); k("s_or_b32 s97, s97, vcc_lo"); k("s_or_b32 s97, s97, 0x10000")
        k("s_ff1_i32_b32 s97, s97"); k("s_add_u32 s96, s96, s97"); k("s_cmp_ge_u32 s96, 64"); k("s_cselect_b32 s96, 0x100, s96")
    return request, evaluate

def ugate(k, need, v128, vt, abort):
    ok = k.label("Lgo"); lp = k.label("Lgl")
    req, ev = ugate_parts(k, need, v128, vt)
    k(f"s_cmp_lt_u32 {need}, s96"); k(f"s_cbranch_scc1 {ok}")
    k(f"s_mov_b32 s70, {TIMEOUT}")
    k.place(lp)
    req()
    k("s_sub_u32 s70, s70, 1"); k(f"s_cbranch_scc1 {abort}")
    k("s_waitcnt vmcnt(0)")
    ev()
    k(f"s_cmp_lt_u32 {need}, s96"); k(f"s_cbranch_scc0 {lp}")
    k.place(ok)

def poll_rot(k, loads, tmp, abort, pre_issued=False):
    from itertools import permutations
    n = len(loads)
    done = k.label("Lrd")
    lab = {}
    def L_(st):
        if st not in lab: lab[st] = k.label("Lr")
        return lab[st]
    def check(j):
        r = loads[j][1]
        if len(r) == 1: k(f"v_cmp_eq_u32 vcc, -1, v{r[0]}")
        else:
            k(f"v_max3_u32 v{tmp}, v{r[0]}, v{r[1]}, v{r[2]}"); k(f"v_max_u32 v{tmp}, v{tmp}, v{r[3]}"); k(f"v_cmp_eq_u32 vcc, -1, v{tmp}")
    k(f"s_mov_b32 s70, {TIMEOUT}")
    if not pre_issued:
        for j in range(n): k(loads[j][0])
    emitted = set(); deferred = []
    def spin(st):
        m = len(st)
        rots = [st[i:] + st[:i] for i in range(m)]
        for i, r in enumerate(rots):
            emitted.add(r); k.place(L_(r))
            j = r[0]
            k(f"s_waitcnt vmcnt({m-1})")
            check(j)
            hit = ("hit", r)
            k(f"s_cbranch_vccz {L_(hit)}"); deferred.append(r)
            k(loads[j][0])
            if i == m - 1:
                k("s_sub_u32 s70, s70, 1"); k(f"s_cbranch_scc0 {L_(rots[0])}"); k(f"s_branch {abort}")
    def hit(r):
        k.place(L_(("hit", r)))
        while True:
            for x in loads[r[0]][2]: k(x)
            r = r[1:]
            if not r:
                k(f"s_branch {done}"); return
            k(f"s_waitcnt vmcnt({len(r)-1})")
            check(r[0])
            miss = ("miss", r)
            k(f"s_cbranch_vccnz {L_(miss)}"); pend.append(r)
    spin(tuple(range(n)))
    pend = []; seen_hit = set(); seen_miss = set()
    while deferred or pend:
        while deferred:
            r = deferred.pop(0)
            if r not in seen_hit: seen_hit.add(r); hit(r)
        while pend:
            r = pend.pop(0)
            if r in seen_miss: continue
            seen_miss.add(r)
            k.place(L_(("miss", r)))
            k(loads[r[0]][0])
            nr = r[1:] + r[:1]
            if nr in emitted: k(f"s_branch {L_(nr)}")
            else: spin(nr)
    k.place(done)

def poll_mem(k, s_addr, abort, t=44, filler=()):
    lp = k.label("Lpm")
    k(f"s_mov_b32 s70, {TIMEOUT}")
    k.place(lp)
    k(f"buffer_load_dword v{t}, v4, {WL}, s{s_addr} offen sc1")
    k(f"buffer_load_dwordx4 v3, {WL}, s{s_addr} offen sc1 lds")
    k(f"buffer_load_dwordx4 v3, {WL}, s{s_addr} offen offset:1024 sc1 lds")
    k("s_sub_u32 s70, s70, 1")
    k(f"s_cbranch_scc1 {abort}")
    for x in filler: k(x)
    k("s_waitcnt vmcnt(2)")
    k(f"v_cmp_eq_u32 vcc, -1, v{t}")
    k(f"s_cbranch_vccnz {lp}")
    k("s_waitcnt vmcnt(0)")

def poll_mem2(k, s_addr, abort, R0, R1, t):
    lp = k.label("Lpm"); got = [k.label("Lpg"), k.label("Lpg")]; join = k.label("Lpj")
    R = [R0, R1]
    def iss(d):
        k(f"buffer_load_dwordx4 {vr(R[d],4)}, v3, {WL}, s{s_addr} offen sc1"); k(f"buffer_load_dwordx4 {vr(R[d]+4,4)}, v4, {WL}, s{s_addr} offen sc1")
    k(f"s_mov_b32 s70, {TIMEOUT}")
    iss(0)
    k("s_nop 15")
    k.place(lp)
    for d in range(2):
        iss(1-d)
        if d == 0:
            k("s_sub_u32 s70, s70, 1"); k(f"s_cbranch_scc1 {abort}")
        k("s_waitcnt vmcnt(2)")
        k(f"v_max_u32 v{t}, v{R[d]}, v{R[d]+4}"); k(f"v_cmp_eq_u32 vcc, -1, v{t}")
        k(f"s_cbranch_vccz {got[0]}" if d == 0 else f"s_cbranch_vccnz {lp}")
    for d in (1, 0):
        k.place(got[d])
        k(f"ds_write_b128 v3, {vr(R[d],4)}"); k(f"ds_write_b128 v4, {vr(R[d]+4,4)}")
        if d == 1: k(f"s_branch {join}")
    k.place(join)
    k("s_waitcnt lgkmcnt(0)")

def mem_full_check(M, t):
    r = list(range(M, M+28))
    out = [f"v_max3_u32 v{t}, v{r[0]}, v{r[1]}, v{r[2]}"]
    r = r[3:]
    while len(r) >= 2:
        out.append(f"v_max3_u32 v{t}, v{t}, v{r[0]}, v{r[1]}"); r = r[2:]
    out.append(f"v_max_u32 v{t}, v{t}, v{r[0]}")
    return out

def mem_common_setup(k):
    k("v_lshlrev_b32 v1, 4, v0")
    k("v_and_b32 v2, 8, v0")
    k("v_cmp_eq_u32 vcc, 0, v2")
    k("v_mov_b32 v2, 0xeeee")
    k("v_mov_b32 v3, 0x4444")
    k("v_cndmask_b32 v2, v2, v3, vcc")
    k(f"s_lshl_b32 s46, s{S_WAVE}, 11"); k("s_mov_b32 m0, s46")
    k("v_add_u32 v3, s46, v1")
    k(f"s_cmp_eq_u32 s{S_WAVE}, 3"); k("s_cselect_b32 s47, 7, 15")
    k("v_and_b32 v4, s47, v0"); k("v_lshlrev_b32 v4, 7, v4"); k("v_add_u32 v4, s46, v4")

M = 16
SPW = 8*176
def gen_chain_A(k, st, abort, w):
    TT = 8192; SP = TT + 4*3584
    def W(i, p):
        o = i*7 + p
        return vr(256 + 8*o, 8) if o < 32 else vr(120 + 8*(o-32), 8)
    ACC = [52, 56, 60]; CV = 114; TB = [64, 68]; XK = 72; MK = 100; SX0, SX1, SM = 44, 48, 116
    def xk(pair, t): return XK + (pair*2 + t)*4
    XS = XK + 24
    def loadx():
        for t in range(2):
            if t == 1: k(f"s_add_u32 s64, s62, {14*1024}")
            so = "s62" if t == 0 else "s64"
            for pr in range(3):
                k(f"buffer_load_dwordx4 {vr(xk(pr,t),4)}, v6, {WL}, {so} offen offset:{pr*1024} sc1")
            k(f"buffer_load_dwordx2 {vr(XS+2*t,2)}, v14, {WL}, {so} offen sc1")
        k(f"s_add_u32 s62, s62, {28*1024}")
    loop = k.label("LA")
    k(f"s_mov_b32 s61, {L.MEM[0]}")
    k(f"s_mul_i32 s65, s60, 640"); k(f"s_add_u32 s65, s65, {L.PIM[0]}")
    k(f"s_mov_b32 s62, {L.XTA[0]}")
    k("s_mov_b32 s96, 0"); k("s_mov_b32 s98, 0")
    ugate(k, "s98", "v_lshlrev_b32 v16, 3, v1", 16, abort)
    loadx()
    k("s_mov_b32 s67, 63")
    gen.tl(k, 1, 16)
    for r in range(2): k(f"v_mov_b64 {vr(ACC[1]+2*r,2)}, 0")
    stamp_init(k)
    redo = k.label("LAr")
    own = [2*w, (2*w+1) % 7]; rest = [p for p in range(7) if p not in own]
    TAc = [ACC[0], ACC[1], ACC[2], TB[0], SM, ACC[0], ACC[1]]
    NE = 5
    k.place(loop)
    for i in range(NE):
        for r in range(2): k(f"v_mov_b64 {vr(TAc[i]+2*r,2)}, 0")
    stamp(k, 0)
    sm = lambda i, reg, p: f"v_smfmac_f32_16x16x64_bf16 {vr(TAc[i],4)}, {vr(reg,4)}, {W(i,p)}, v2"
    lp = k.label("Lpm"); got = [k.label("Lpg"), k.label("Lpg")]; join = k.label("Lpj")
    PR = [44, 100]
    def iss(d):
        for e in range(2): k(f"buffer_load_dwordx4 {vr(PR[d]+4*e,4)}, v{3+e}, {WL}, s61 offen sc1")
    k(f"s_mov_b32 s70, {TIMEOUT}")
    iss(0)
    k("s_nop 15")
    k.place(lp)
    for d in range(2):
        iss(1-d)
        if d == 0:
            k("s_sub_u32 s70, s70, 1"); k(f"s_cbranch_scc1 {abort}")
        k("s_waitcnt vmcnt(2)")
        if w < 3: k(f"v_max_u32 v{CV}, v{PR[d]}, v{PR[d]+4}")
        else:
            k(f"v_max3_u32 v{CV}, v{PR[d]}, v{PR[d]+4}, v{PR[d]+5}"); k(f"v_max3_u32 v{CV}, v{CV}, v{PR[d]+6}, v{PR[d]+7}")
        k(f"v_cmp_eq_u32 vcc, -1, v{CV}")
        k(f"s_cbranch_vccz {got[0]}" if d == 0 else f"s_cbranch_vccnz {lp}")
    for d in (1, 0):
        k.place(got[d])
        stamp(k, 1)
        k(f"ds_write_b128 v3, {vr(PR[d],4)}")
        if w < 3: k(f"ds_write_b128 v4, {vr(PR[d]+4,4)}")
        for i in range(NE1):
            for e in range(2): k(sm(i, PR[d]+4*e, own[e]))
        k("s_waitcnt lgkmcnt(0)")
        k("s_barrier")
        stamp(k, 2)
        for p in rest: k(f"ds_read_b128 {vr(M+4*p,4)}, v1 offset:{p*1024}")
        for i in range(NE1, NE):
            for e in range(2): k(sm(i, PR[d]+4*e, own[e]))
        if d == 1: k(f"s_branch {join}")
    k.place(join)
    mk = [f"ds_read2_b32 {vr(MK,2)}, v7 offset0:0 offset1:32", f"ds_read2_b32 {vr(MK+2,2)}, v7 offset0:1 offset1:33",
          f"ds_read2_b32 {vr(MK+4,2)}, v7 offset0:128 offset1:160", f"ds_read2_b32 {vr(MK+6,2)}, v7 offset0:129 offset1:161",
          f"ds_read2_b32 {vr(MK+8,2)}, v15 offset0:0 offset1:32", f"ds_read2_b32 {vr(MK+10,2)}, v15 offset0:1 offset1:33",
          f"ds_read2_b32 {vr(MK+12,2)}, v5 offset0:0 offset1:32"]
    T0R = ACC[2]
    tr = lambda j: f"ds_read_b64_tr_b16 {vr(TB[(j >> 1) & 1] + 2*(j & 1),2)}, v9 offset:{j*512}"
    for i in range(7):
        ps = rest if i < NE else rest + own
        main = [sm(i, M+4*p, p) for p in ps]
        side = {g: [] for g in range(7)}
        if i == 0:
            for q in range(5): main[q] = f"s_waitcnt lgkmcnt({4-q})\n" + main[q]
        else:
            pa = TAc[i-1]
            side[2] = [f"v_cvt_pk_bf16_f32 v{CV}, v{pa}, v{pa+1}"]
            side[3] = [f"v_cvt_pk_bf16_f32 v{CV+1}, v{pa+2}, v{pa+3}"]
            side[4] = [f"ds_write_b64 v8, {vr(CV,2)} offset:{(i-1)*512}"]
        if i == 1: side[0] = [f"ds_read_b128 {vr(M+4*own[0],4)}, v1 offset:{own[0]*1024}"]; side[1] = [f"ds_read_b128 {vr(M+4*own[1],4)}, v1 offset:{own[1]*1024}"]
        if i == 2: side[0] = [f"v_mov_b64 {vr(ACC[0],2)}, 0"]; side[1] = [f"v_mov_b64 {vr(ACC[0]+2,2)}, 0"]
        if i == 3: side[0] = [mk[6], f"v_mov_b64 {vr(ACC[1],2)}, 0"]; side[1] = [mk[5], f"v_mov_b64 {vr(ACC[1]+2,2)}, 0"]
        if i == 4: side[0] = [tr(2)]; side[1] = ["s_waitcnt vmcnt(0)", mk[0]]; side[2] = [mk[1]] + side[2]; side[3] = [mk[2]] + side[3]
        if i == 5: main[5] = "s_waitcnt lgkmcnt(6)\n" + main[5]
        if i == 5: side[0] = [tr(3)]; side[1] = [mk[3]]; side[2] = [mk[4]] + side[2]; side[5] = [tr(4)]; side[6] = [f"ds_read_b64_tr_b16 {vr(T0R,2)}, v9"]
        if i == 6: side[0] = [f"ds_read_b64_tr_b16 {vr(T0R+2,2)}, v9 offset:512"]; side[5] = [tr(5)]
        interleave(k, main, side)
    a = TAc[6]
    stamp(k, 3)
    fc = mem_full_check(M, a)
    def smm(pr, tb, first=False):
        c = (lambda r: "0") if first else (lambda r: vr(r,4))
        return [f"v_mfma_f32_16x16x32_bf16 {vr(SX0,4)}, {vr(xk(pr,0),4)}, {vr(tb,4)}, {c(SX0)}",
                f"v_mfma_f32_16x16x32_bf16 {vr(SX1,4)}, {vr(xk(pr,1),4)}, {vr(tb,4)}, {c(SX1)}",
                f"v_mfma_f32_16x16x32_bf16 {vr(SM,4)}, {vr(MK+4*pr,4)}, {vr(tb,4)}, {c(SM)}"]
    k("s_waitcnt lgkmcnt(2)")
    t1 = smm(1, TB[1], True); t0 = smm(0, T0R); t2 = smm(2, TB[0])
    k(t1[0]); k(t1[1])
    k(f"v_cvt_pk_bf16_f32 v{CV}, v{a}, v{a+1}")
    k(f"v_cvt_pk_bf16_f32 v{CV+1}, v{a+2}, v{a+3}")
    k(t1[2])
    k(f"ds_write_b64 v8, {vr(CV,2)} offset:{6*512}")
    k(f"ds_read_b64_tr_b16 {vr(CV,2)}, v9 offset:{6*512}")
    interleave(k, t0, {0: fc[0:2], 1: fc[2:4], 2: fc[4:6] + ["s_waitcnt lgkmcnt(2)"]})
    interleave(k, t2, {0: fc[6:8], 1: fc[8:10], 2: fc[10:12] + ["s_waitcnt lgkmcnt(0)"]})
    k(f"v_mfma_f32_16x16x16_bf16 {vr(SX0,4)}, {vr(XS,2)}, {vr(CV,2)}, {vr(SX0,4)}")
    k(f"v_mfma_f32_16x16x16_bf16 {vr(SX1,4)}, {vr(XS+2,2)}, {vr(CV,2)}, {vr(SX1,4)}")
    k(fc[12])
    k(f"v_mfma_f32_16x16x16_bf16 {vr(SM,4)}, {vr(MK+12,2)}, {vr(CV,2)}, {vr(SM,4)}")
    k(fc[13])
    k(f"v_cmp_eq_u32 vcc, -1, v{a}")
    Y = TB[0]
    for r in range(4): k(f"v_add_f32_dpp v{Y+r}, v{SX0+r}, v{SX0+r} row_ror:8 row_mask:0xf bank_mask:0x3")
    for r in range(4): k(f"v_add_f32_dpp v{Y+r}, v{SX1+r}, v{SX1+r} row_ror:8 row_mask:0xf bank_mask:0xc")
    k(f"ds_write_b128 v10, {vr(Y,4)}")
    for r in range(4): k(f"v_add_f32_dpp v{Y+4}, v{SM+r}, v{SM+r} row_ror:8 row_mask:{'0x3' if r<2 else '0xc'} bank_mask:{'0xc' if r&1 else '0x3'}")
    k(f"ds_write_b32 v11, v{Y+4}")
    k(f"s_cbranch_vccnz {redo}")
    k("s_waitcnt lgkmcnt(0)")
    k("s_barrier")
    stamp(k, 4)
    R = 16
    for q in range(4): k(f"ds_read_b64 {vr(R+2*q,2)}, v12 offset:{q*SPW}")
    k("s_waitcnt lgkmcnt(2)"); k(f"v_pk_add_f32 {vr(R,2)}, {vr(R,2)}, {vr(R+2,2)}")
    k("s_waitcnt lgkmcnt(0)"); k(f"v_pk_add_f32 {vr(R+4,2)}, {vr(R+4,2)}, {vr(R+6,2)}")
    k(f"v_pk_add_f32 {vr(R,2)}, {vr(R,2)}, {vr(R+4,2)}")
    def allred32(v, t, op):
        for sh in (8, 4, 2, 1):
            k(f"{op}_dpp v{v}, v{v}, v{v} row_ror:{sh} row_mask:0xf bank_mask:0xf")
        k(f"v_mov_b32 v{t}, v{v}")
        k(f"v_permlane16_swap_b32 v{v}, v{t}")
        k(f"{op} v{v}, v{v}, v{t}")
    slowmax = k.label("LAm"); publish = k.label("LAp")
    def normalise(check):
        k(f"v_exp_f32 v{R+4}, v{R}"); k(f"v_exp_f32 v{R+5}, v{R+1}")
        k(f"v_add_f32 v{R+2}, v{R+4}, v{R+5}")
        allred32(R+2, R+3, "v_add_f32")
        if check:
            k(f"v_med3_f32 v{R+3}, v{R+2}, s56, v0"); k(f"v_cmp_neq_f32 vcc, v{R+3}, v{R+2}")
        k(f"v_rcp_f32 v{R+2}, v{R+2}")
        k(f"v_mul_f32 v{R+4}, v{R+4}, v{R+2}"); k(f"v_mul_f32 v{R+5}, v{R+5}, v{R+2}")
        k(f"v_cvt_pk_bf16_f32 v{R+4}, v{R+4}, v{R+5}")
        k(f"v_min_u32 v{R+4}, -2, v{R+4}")
    normalise(True)
    k(f"s_cbranch_vccnz {slowmax}")
    k.place(publish)
    k(f"buffer_store_dword v{R+4}, v13, {WL}, s65 offen {st}")
    stamp(k, 5)
    if XACK:
        k("s_waitcnt vmcnt(0)"); stamp(k, 6)
    k("s_barrier")
    k("s_add_u32 s98, s98, 1")
    ugate(k, "s98", "v_lshlrev_b32 v24, 3, v1", 24, abort)
    loadx()
    if ASL: k(f"s_sleep {ASL}")
    if not XACK: stamp(k, 6)
    stamp_acc(k, 7)
    k(f"s_add_u32 s65, s65, {L.PSZ}"); k(f"s_add_u32 s61, s61, {L.MSTEP}")
    if gen.TL:
        for (n, ix) in ((53, 2), (33, 3)) + (((63, 10), (62, 11), (61, 12), (60, 13), (58, 14)) if gen.TL == 4 else ()):
            lz = k.label(); k(f"s_cmp_lg_u32 s67, {n}"); k(f"s_cbranch_scc1 {lz}")
            if ix >= 10: k(f"s_cmp_lg_u32 s{S_LAYER}, 0"); k(f"s_cbranch_scc1 {lz}")
            gen.tl(k, ix, 20, 5 if ix < 10 else 0); k.place(lz)
    k("s_sub_u32 s67, s67, 1"); k("s_cmp_lg_u32 s67, 0"); k(f"s_cbranch_scc1 {loop}")
    gen.tl(k, 4, 16)
    stamp_out(k)
    out = k.label("LAo"); k(f"s_branch {out}")
    k.place(slowmax)
    k(f"v_max_f32 v{R+2}, v{R}, v{R+1}")
    allred32(R+2, R+3, "v_max_f32")
    k(f"v_sub_f32 v{R}, v{R}, v{R+2}"); k(f"v_sub_f32 v{R+1}, v{R+1}, v{R+2}")
    normalise(False)
    k(f"s_branch {publish}")
    k.place(redo)
    k("s_waitcnt lgkmcnt(0)"); k("s_barrier")
    k(f"s_branch {loop}")
    k.place(out)

def setup_A(k, abort):
    TT = 8192; SP = TT + 4*3584
    mem_common_setup(k)
    k(f"s_cmp_eq_u32 s{S_WAVE}, 3"); k("s_cselect_b32 s46, 0, 1024"); k("v_add_u32 v4, s46, v3"); k("s_cselect_b64 vcc, -1, 0"); k("v_cndmask_b32 v4, v4, v1, vcc")
    k(f"s_lshr_b32 s46, s{S_WAVE}, 1"); k("s_mul_i32 s46, s46, 7")
    k(f"s_and_b32 s69, s{S_WAVE}, 1")
    k("s_lshl_b32 s66, s69, 2"); k("s_add_u32 s66, s66, s46")
    k("s_add_u32 s68, s46, 3")
    k("v_min_u32 v16, 27, v0"); k("v_lshrrev_b32 v17, 2, v16"); k("v_and_b32 v16, 3, v16"); k("v_lshlrev_b32 v16, 2, v16"); k("v_lshl_add_u32 v16, v17, 7, v16")
    k(f"s_mul_i32 s54, s60, {7*128}"); k(f"s_add_u32 s54, s54, {L.SF(0)}"); k("s_mov_b32 s55, 0")
    k(f"s_mul_i32 s47, s60, 28"); k("s_lshl_b32 s48, s66, 1"); k("s_add_u32 s48, s48, s47")
    k(f"s_mul_i32 s48, s48, {14*1024}"); k(f"s_add_u32 s48, s48, {L.WQ}")
    k("s_lshl_b32 s49, s68, 1"); k("s_add_u32 s49, s49, s69"); k("s_add_u32 s49, s49, s47")
    k(f"s_mul_i32 s49, s49, {14*1024}"); k(f"s_add_u32 s49, s49, {L.WQ}")
    for r in range(4):
        slab_round_wait(k, r, "s54", 16, 17, abort)
        for i in range(7):
            k(f"s_add_u32 s50, s{48 if i < 6 else 49}, {(i*14*1024 if i < 6 else 0) + r*4096}")
            for ks in range(4*r, min(4*r+4, 14)):
                n = i*14 + ks; reg = 256 + 4*n if n < 64 else 120 + 4*(n-64)
                k(f"buffer_load_dwordx4 {vr(reg,4)}, v1, {WS}, s50 offen offset:{(ks%4)*1024} sc1{' nt' if WNT else ''}")
    k("v_and_b32 v16, 15, v0")
    k("v_lshrrev_b32 v17, 4, v0")
    k("v_bfe_u32 v18, v0, 1, 1"); k("v_lshlrev_b32 v18, 2, v18")
    k("v_bfe_u32 v19, v0, 2, 1"); k("v_lshl_add_u32 v18, v19, 1, v18")
    k("v_and_b32 v19, 1, v0"); k("v_add_u32 v18, v18, v19")
    k("v_lshlrev_b32 v18, 4, v18")
    k("v_lshrrev_b32 v19, 1, v17"); k("v_lshl_add_u32 v18, v19, 8, v18")
    k("v_and_b32 v19, 1, v17"); k("v_lshl_add_u32 v18, v19, 3, v18")
    k("s_lshl_b32 s46, s66, 9"); k("v_add_u32 v7, s46, v18")
    k("v_add_u32 v15, 1024, v7")
    k("s_lshl_b32 s46, s68, 9"); k("s_lshl_b32 s47, s69, 2"); k("s_add_u32 s46, s46, s47")
    k("v_add_u32 v5, s46, v18")
    k(f"s_mul_i32 s46, s{S_WAVE}, 3584"); k(f"s_add_u32 s46, s46, {TT}")
    k("v_lshlrev_b32 v8, 5, v16"); k("v_lshl_add_u32 v8, v17, 3, v8"); k("v_add_u32 v8, s46, v8")
    k("v_lshlrev_b32 v9, 3, v0"); k("v_add_u32 v9, s46, v9")
    k(f"s_mul_i32 s46, s{S_WAVE}, {SPW}"); k(f"s_add_u32 s46, s46, {SP}")
    k("v_and_b32 v19, 7, v0"); k("v_mul_u32_u24 v18, 176, v19"); k("v_add_u32 v18, s46, v18")
    k("v_lshrrev_b32 v19, 3, v16")
    k("v_lshl_add_u32 v10, v17, 5, v18"); k("v_lshl_add_u32 v10, v19, 4, v10")
    k("v_and_b32 v20, 1, v17"); k("v_lshl_add_u32 v11, v20, 4, v18")
    k("v_lshrrev_b32 v20, 1, v17"); k("v_lshl_add_u32 v11, v20, 3, v11")
    k("v_lshl_add_u32 v11, v19, 2, v11"); k("v_add_u32 v11, 128, v11")
    k(f"v_mov_b32 v20, {hx(f2u(-1e30))}"); k("v_mov_b32 v21, v20")
    k("ds_write_b64 v18, v[20:21] offset:160")
    k("v_and_b32 v19, 31, v0"); k("v_lshrrev_b32 v20, 5, v0")
    k(f"s_lshl_b32 s46, s{S_WAVE}, 1"); k("v_add_u32 v20, s46, v20")
    k("v_lshlrev_b32 v21, 3, v19"); k("v_cmp_gt_u32 vcc, 20, v19"); k("v_mov_b32 v22, 160")
    k("v_cndmask_b32 v21, v22, v21, vcc")
    k("v_mul_u32_u24 v22, 176, v20"); k("v_add_u32 v12, v21, v22"); k(f"v_add_u32 v12, {SP}, v12")
    k("v_lshrrev_b32 v21, 2, v19"); k("v_lshl_add_u32 v21, v21, 3, v20"); k("v_lshlrev_b32 v21, 4, v21")
    k("v_and_b32 v22, 3, v19"); k("v_lshl_add_u32 v21, v22, 2, v21")
    k("v_mov_b32 v22, 0x7fffffff"); k("v_cndmask_b32 v13, v22, v21, vcc")
    k("s_lshl_b32 s46, s68, 10"); k("s_lshl_b32 s47, s69, 3"); k("s_add_u32 s46, s46, s47")
    k("v_add_u32 v14, s46, v1")
    k("s_lshl_b32 s46, s66, 10"); k("v_add_u32 v6, s46, v1")
    k(f"s_mov_b32 s56, {hx(f2u(2.0**-60))}"); k(f"v_mov_b32 v0, {hx(f2u(2.0**60))}")
    k("s_waitcnt vmcnt(0) lgkmcnt(0)")

B_TB = 8192
B_OUT = B_TB + 8192
B_LW = B_OUT + 8192
CHAIN_LDS = B_LW + 4*28*1024

def setup_B(k, abort):
    mem_common_setup(k)
    k("v_lshrrev_b32 v131, 2, v0"); k(f"v_mul_u32_u24 v131, {7*128}, v131"); k("v_and_b32 v130, 3, v0"); k("v_lshl_add_u32 v130, v130, 2, v131")
    k("s_lshr_b32 s54, s60, 1"); k("s_lshl_b32 s54, s54, 7"); k(f"s_add_u32 s54, s54, {L.SF(0) + 112*128}"); k("s_mov_b32 s55, 0")
    k(f"s_lshl_b32 s46, s{S_WAVE}, 2"); k("s_mul_i32 s46, s46, 28"); k("s_lshl_b32 s47, s60, 1"); k("s_add_u32 s46, s46, s47")
    k(f"s_mul_i32 s46, s46, {14*1024}"); k(f"s_add_u32 s46, s46, {L.WV}")
    k(f"s_mul_i32 s47, s{S_WAVE}, {28*1024}"); k(f"s_add_u32 s47, s47, {B_LW}")
    k("v_add_u32 v15, s47, v1")
    for r in range(4):
        slab_round_wait(k, r, "s54", 130, 131, abort)
        for hh in range(4):
            for t in range(2):
                k(f"s_add_u32 s48, s46, {(hh*28 + t)*14*1024 + r*4096}")
                for ks in range(4*r, min(4*r+4, 14)):
                    n = t*14 + ks; q = hh*28 + n
                    reg = 16 + 4*n if hh == 3 else (256 + 4*q if q < 64 else 176 + 4*(q-64))
                    k(f"buffer_load_dwordx4 {vr(reg,4)}, v1, {WS}, s48 offen offset:{(ks%4)*1024} sc1{' nt' if WNT else ''}")
    req, ev = ugate_parts(k, "0", "v_lshlrev_b32 v130, 3, v1", 130)
    k("s_mov_b32 s96, 0"); req(); k(f"s_mov_b32 s48, {L.MEM[0]}"); k(f"buffer_load_dword v132, v4, {WL}, s48 offen sc1")
    k("s_waitcnt vmcnt(0)")
    ev()
    for n in range(28): k(f"ds_write_b128 v15, {vr(16+4*n,4)} offset:{n*1024}")
    k("s_waitcnt lgkmcnt(0)")
    k("v_and_b32 v16, 15, v0"); k("v_lshrrev_b32 v17, 4, v0"); k("v_and_b32 v18, 7, v0")
    k(f"s_mul_i32 s46, s{S_WAVE}, 2560")
    k("v_lshl_add_u32 v7, v17, 3, v18"); k("v_lshlrev_b32 v7, 4, v7"); k("v_add_u32 v7, s46, v7")
    k("v_lshrrev_b32 v19, 3, v16"); k("v_mul_u32_u24 v19, 640, v19"); k("v_add_u32 v7, v7, v19")
    k("v_mul_u32_u24 v8, 640, v17"); k("v_lshl_add_u32 v8, v18, 4, v8"); k("v_add_u32 v8, s46, v8"); k("v_add_u32 v8, 512, v8")
    k(f"v_mul_u32_u24 v19, {28*1024}, v17"); k("v_lshl_add_u32 v19, v16, 7, v19"); k("v_mov_b32 v20, 0x7fffffff")
    k(f"v_cmp_gt_u32 vcc, {NB}, v16"); k("v_cndmask_b32 v5, v20, v19, vcc")
    k(f"s_lshl_b32 s46, s{S_WAVE}, 11"); k(f"s_add_u32 s47, s46, {B_TB}")
    k("v_lshlrev_b32 v9, 4, v16"); k("v_lshl_add_u32 v9, v17, 2, v9"); k("v_add_u32 v9, s47, v9")
    k("v_add_u32 v10, s47, v1")
    k(f"s_lshl_b32 s46, s{S_WAVE}, 10"); k(f"s_add_u32 s47, s46, {B_OUT}"); k("v_add_u32 v11, s47, v1")
    k("v_bfe_u32 v19, v0, 2, 3"); k("v_lshrrev_b32 v20, 5, v0"); k("v_bfe_u32 v21, v0, 1, 1"); k("v_and_b32 v22, 1, v0")
    k(f"s_lshl_b32 s46, s{S_WAVE}, 1"); k("s_and_b32 s46, s46, 2"); k("v_add_u32 v21, s46, v21")
    k("v_lshl_add_u32 v12, v21, 4, v19"); k("v_lshlrev_b32 v12, 4, v12"); k("v_lshl_add_u32 v12, v22, 7, v12")
    k("v_lshl_add_u32 v12, v20, 3, v12"); k(f"v_add_u32 v12, {B_OUT}, v12")
    k("s_lshl_b32 s47, s60, 9"); k("s_lshl_b32 s48, s46, 7"); k("s_add_u32 s48, s48, s47")
    k("v_lshlrev_b32 v13, 2, v0"); k("v_add_u32 v13, s48, v13")
    k("v_lshlrev_b32 v14, 7, v21"); k("v_lshl_add_u32 v14, v19, 4, v14"); k("v_lshl_add_u32 v14, v22, 3, v14")
    k("v_lshl_add_u32 v14, v20, 2, v14"); k("v_add_u32 v14, s47, v14")
    k("v_mov_b32 v19, 0x7fffffff"); k(f"s_cmp_ge_u32 s{S_WAVE}, 2"); k("s_cselect_b64 vcc, -1, 0"); k("v_cndmask_b32 v14, v14, v19, vcc"); k("v_cndmask_b32 v13, v13, v19, vcc")
    lane0_addr(k, 6, 19); k("v_mov_b32 v0, 1")
    k("s_waitcnt vmcnt(0)")

def gen_chain_B(k, st, abort):
    ACC = [52, 56, 60]; FT = 64; HOLD = 67; ZA = 68; U = 76; P = 108; LW = 108; DUM = 66
    def W(hh, t, p):
        o = (hh*2 + t)*7 + p
        return vr(256 + 8*o, 8) if o < 32 else vr(176 + 8*(o-32), 8)
    loop = k.label("LB"); done = k.label("LBd"); first = k.label("LBf"); nofin = k.label("LBn")
    k(f"s_mov_b32 s61, {L.MEM[0]}"); k(f"s_mov_b32 s65, {L.PIM[0]}")
    k(f"s_lshl_b32 s62, s{S_WAVE}, 2"); k("s_mul_i32 s62, s62, 28"); k("s_lshl_b32 s46, s60, 1"); k("s_add_u32 s62, s62, s46")
    k("s_lshl_b32 s62, s62, 10"); k(f"s_add_u32 s62, s62, {L.UU[0]}")
    k(f"s_mul_i32 s63, s{S_WAVE}, 28"); k("s_add_u32 s63, s63, s46"); k("s_lshl_b32 s63, s63, 10"); k(f"s_add_u32 s63, s63, {L.VM[0] - L.VMSZ}")
    k(f"s_mov_b32 s66, {L.MEMN[0]}")
    k("s_mov_b32 s67, 0")
    gen.tl(k, 1, 44)
    stamp_init(k)
    k.place(loop)
    if True:
        k("s_add_u32 s98, s67, 1")
        ugate(k, "s98", "v_lshlrev_b32 v108, 3, v1", 108, abort)
    tl0(k, 10, 108)
    k("s_cmp_eq_u32 s67, 0"); k(f"s_cselect_b32 s57, {L.SPARE[0]}, s63"); k(f"s_cselect_b32 s58, {L.SPARE[0]}, s66")
    again = k.label("LBa"); k.place(again)
    TA = [52, 56, 60, 164, 168, 172, 44, 48]
    zero = [f"v_mov_b64 {vr(a_+2*h,2)}, 0" for a_ in TA for h in range(2)]
    stamp(k, 0)
    poll_mem(k, 61, abort, FT, zero)
    stamp(k, 1)
    k("s_barrier")
    stamp(k, 2)
    tl0(k, 11, 108)
    for p in range(7): k(f"ds_read_b128 {vr(M+4*p,4)}, v1 offset:{p*1024}")
    if NB:
        k(f"s_add_u32 s64, s62, {16*28*1024}")
        k(f"buffer_load_dword v{DUM}, v5, {WL}, s64 offen")
    exports = [f"buffer_store_dwordx4 {vr(ZA,4)}, v1, {WL}, s57 offen sc1", f"buffer_store_dwordx4 {vr(ZA+4,4)}, v1, {WL}, s57 offen offset:1024 sc1",
               f"buffer_store_dword v{HOLD}, v14, {WL}, s58 offen sc1"]
    uload = []
    for hh in range(4):
        for t in range(2):
            pre = [f"s_add_u32 s64, s62, {hh*28*1024}"] if (hh and t == 0) else []
            uload.append(pre + [f"buffer_load_dwordx4 {vr(U+(hh*2+t)*4,4)}, v1, {WL}, {'s64' if hh else 's62'} offen offset:{t*1024} sc1"])
    order = [(0,0),(0,1),(1,0),(3,0),(1,1),(2,0),(2,1),(3,1)]
    def fold(j):
        pa = TA[j]; hh, t = order[j]
        return [f"v_permlane32_swap_b32 v{pa}, v{pa+2}", f"v_permlane32_swap_b32 v{pa+1}, v{pa+3}",
                f"v_add_f32 v{pa}, v{pa}, v{pa+2}", f"v_add_f32 v{pa+1}, v{pa+1}, v{pa+3}",
                f"v_cvt_pk_bf16_f32 v{pa}, v{pa}, v{pa+1}", f"v_min_u32 v{pa}, -2, v{pa}\nds_write_b32 v9, v{pa} offset:{t*1024+hh*256}"]
    lw = [[f"ds_read_b128 {vr(LW+4*(n%14),4)}, v15 offset:{n*1024}" for n in range(14*u, 14*u+14)] for u in range(2)]
    vm = exports + uload
    plan = {i: [[] for _ in range(7)] for i in range(8)}
    for p in range(7): plan[0][p].append(lw[0][p])
    for n, (ti, g) in zip(range(7, 14), [(1,0),(1,2),(1,3),(1,4),(1,5),(2,2),(2,3)]): plan[ti][g].append(lw[0][n])
    for n, (ti, g) in enumerate([(4,2),(4,3),(4,4),(4,5),(4,6),(5,2),(5,3),(5,4),(5,5),(5,6),(6,2),(6,3),(6,4),(6,5)]): plan[ti][g].append(lw[1][n])
    for e, (ti, g) in zip(vm, VMPOS): plan[ti][g] += (e if isinstance(e, list) else [e])
    for i in range(1, 8):
        f = fold(i-1)
        for q in range(5): plan[i][2+q].append(f[q])
        if i < 7: plan[i+1][0].insert(0, f[5])
    for i, (hh, t) in enumerate(order):
        a = TA[i]
        if hh == 3: k("s_waitcnt lgkmcnt(0)")
        main = [f"v_smfmac_f32_16x16x64_bf16 {vr(a,4)}, {vr(M+4*p,4)}, {W(hh,t,p) if hh<3 else vr(LW+8*p,8)}, v2" for p in range(7)]
        if i == 0:
            for p in range(7): main[p] = "s_waitcnt lgkmcnt(6)\n" + main[p]
        if DIAG == 2 and i == 0: stamp(k, 3)
        interleave(k, main, dict(enumerate(plan[i])))
        if DIAG == 2 and i == 2: stamp(k, 4)
        if DIAG == 2 and i == 5: stamp(k, 5)
    fc = mem_full_check(M, FT)
    k(fold(6)[5])
    for x in fc[:6]: k(x)
    for x in fold(7): k(x)
    k(f"ds_read_b128 {vr(ZA,4)}, v10"); k(f"ds_read_b128 {vr(ZA+4,4)}, v10 offset:1024")
    for x in fc[6:]: k(x)
    redo = k.label("LBr")
    k(f"v_cmp_eq_u32 vcc, -1, v{FT}"); k(f"s_cbranch_vccnz {redo}")
    k(f"s_add_u32 s62, s62, {16*28*1024}"); k(f"s_add_u32 s61, s61, {L.MSTEP}")
    k(f"s_add_u32 s63, s63, {L.VMSZ}"); k(f"s_add_u32 s66, s66, {L.MEMSZ}")
    stamp(k, 3 if DIAG != 2 else 6)
    k("s_cmp_eq_u32 s67, 63"); k(f"s_cbranch_scc1 {done}")
    lp = k.label("Lpp")
    Q = P; OUT = P + 24
    k("s_waitcnt lgkmcnt(0)")
    tl0(k, 12, 108)
    k(f"s_mov_b32 s70, {TIMEOUT}")
    if BPS: k(f"s_sleep {BPS}")
    k.place(lp)
    for r in range(8): k(f"v_mov_b64 {vr(OUT+2*r,2)}, 0")
    def pv(heads, q):
        o = []
        for hh in heads:
            for t in range(2):
                d = OUT + 8*(hh & 1) + 4*t
                o.append(f"v_mfma_f32_16x16x32_bf16 {vr(d,4)}, {vr(U+(hh*2+t)*4,4)}, {vr(q,4)}, {vr(d,4)}")
        o.insert(1, f"v_max3_u32 v{FT+1}, v{FT+1}, v{q+1}, v{q+2}"); o.insert(3, f"v_max_u32 v{FT+1}, v{FT+1}, v{q+3}")
        return o
    mm = [f"v_mfma_f32_16x16x32_bf16 {vr(OUT,4)}, {vr(ZA,4)}, {vr(Q+8,4)}, {vr(OUT,4)}", f"v_max3_u32 v{FT+1}, v{FT+1}, v{Q+9}, v{Q+10}",
          f"v_mfma_f32_16x16x32_bf16 {vr(OUT+4,4)}, {vr(ZA+4,4)}, {vr(Q+8,4)}, {vr(OUT+4,4)}", f"v_max_u32 v{FT+1}, v{FT+1}, v{Q+11}"]
    k(f"v_mov_b32 v{FT+1}, 0")
    lds_ = [(f"buffer_load_dwordx4 {vr(Q,4)}, v7, {WL}, s65 offen sc1", [Q], pv((0, 1), Q)),
            (f"buffer_load_dwordx4 {vr(Q+4,4)}, v7, {WL}, s65 offen offset:1280 sc1", [Q+4], pv((2, 3), Q+4)),
            (f"buffer_load_dwordx4 {vr(Q+8,4)}, v8, {WL}, s65 offen sc1", [Q+8], mm)]
    if PMODE == 0: poll_rot(k, lds_, FT, abort)
    else:
        l1 = k.label("Lp1")
        k.place(l1)
        for x in lds_: k(x[0])
        k("s_sub_u32 s70, s70, 1"); k(f"s_cbranch_scc1 {abort}")
        k("s_waitcnt vmcnt(2)")
        if PMODE == 1:
            k(f"v_cmp_eq_u32 vcc, -1, v{Q}"); k(f"s_cbranch_vccnz {l1}")
        for j, x in enumerate(lds_):
            if j: k(f"s_waitcnt vmcnt({2-j})")
            for n, y in enumerate(x[2]):
                k(y)
                if n == 0 and (j or PMODE == 2): k(f"v_max_u32 v{FT+1}, v{FT+1}, v{x[1][0]}")
    if DIAG != 2: stamp(k, 4)
    if DIAG == 1:
        k(f"s_sub_u32 s71, {TIMEOUT}, s70"); k("s_add_u32 s94, s94, s71")
    k(f"v_cmp_eq_u32 vcc, -1, v{FT+1}")
    Y = ACC[0]
    for r in range(4): k(f"v_add_f32_dpp v{Y+r}, v{OUT+8+r}, v{OUT+r} row_ror:8 row_mask:0xf bank_mask:0x3")
    for r in range(4): k(f"v_add_f32_dpp v{Y+r}, v{OUT+4+r}, v{OUT+12+r} row_ror:8 row_mask:0xf bank_mask:0xc")
    k(f"ds_write_b128 v11, {vr(Y,4)}")
    k(f"s_cbranch_vccnz {lp}")
    tl0(k, 13, 108)
    k(f"s_add_u32 s65, s65, {L.PSZ}")
    k("s_add_u32 s67, s67, 1")
    k("s_waitcnt lgkmcnt(0)")
    k("s_barrier")
    if DIAG != 2: stamp(k, 5)
    for q in range(4): k(f"ds_read_b64 {vr(U+2*q,2)}, v12 offset:{q*1024}")
    k("s_waitcnt lgkmcnt(2)"); k(f"v_pk_add_f32 {vr(U,2)}, {vr(U,2)}, {vr(U+2,2)}")
    k("s_waitcnt lgkmcnt(0)"); k(f"v_pk_add_f32 {vr(U+4,2)}, {vr(U+4,2)}, {vr(U+6,2)}")
    k(f"v_pk_add_f32 {vr(U,2)}, {vr(U,2)}, {vr(U+4,2)}")
    k(f"v_cvt_pk_bf16_f32 v{HOLD}, v{U}, v{U+1}")
    k(f"v_min_u32 v{HOLD}, -2, v{HOLD}")
    k(f"buffer_store_dword v{HOLD}, v13, {WL}, s61 offen {st}")
    k("s_cmp_lg_u32 s67, 63"); k(f"s_cbranch_scc1 {nofin}")
    k(f"buffer_store_dword v{HOLD}, v14, {WL}, s66 offen sc1")
    k.place(nofin)
    if DIAG != 2: stamp(k, 6)
    stamp_acc(k, 7)
    if BSL: k(f"s_sleep {BSL}")
    k(f"s_branch {loop}")
    k.place(redo)
    k("s_waitcnt vmcnt(0) lgkmcnt(0)"); k("s_barrier"); k(f"s_mov_b32 s57, {L.SPARE[0]}"); k("s_mov_b32 s58, s57"); k(f"s_branch {again}")
    k.place(done)
    k("s_waitcnt lgkmcnt(0)")
    k(f"buffer_store_dwordx4 {vr(ZA,4)}, v1, {WL}, s63 offen sc1")
    k(f"buffer_store_dwordx4 {vr(ZA+4,4)}, v1, {WL}, s63 offen offset:1024 sc1")
    k("s_mov_b32 s96, 0")
    stamp_out(k)

def gen_chain_P(k, abort):
    k(f"s_lshl_b32 s46, s60, 2"); k(f"s_add_u32 s46, s46, s{S_WAVE}")
    k("s_mov_b32 s94, s46")
    k("v_lshlrev_b32 v1, 7, v0"); k("v_mov_b32 v20, 0x7fffffff")
    k(f"s_mul_i32 s47, s46, {448*128}"); k("v_add_u32 v2, s47, v1")
    k("v_and_b32 v3, 15, v0"); k(f"v_cmp_le_u32 vcc, {NB}, v3"); k("v_cndmask_b32 v3, v20, v2, vcc")
    k(f"s_mul_i32 s47, s46, {28*128}"); k("v_add_u32 v4, s47, v1"); k("v_cmp_gt_u32 vcc, 28, v0"); k("v_cndmask_b32 v4, v20, v4, vcc")
    k(f"s_mul_i32 s47, s46, {7*L.NMC*128}"); k("v_add_u32 v5, s47, v1"); k(f"v_cmp_gt_u32 vcc, {7*L.NMC}, v0"); k("v_cndmask_b32 v5, v20, v5, vcc")
    k(f"s_mul_i32 s47, s46, {10*L.NPC*128}"); k("v_add_u32 v6, s47, v1"); k(f"v_cmp_gt_u32 vcc, {10*L.NPC}, v0"); k("v_cndmask_b32 v6, v20, v6, vcc")
    k("v_min_u32 v7, 27, v0"); k("v_lshlrev_b32 v7, 8, v7")
    k("v_mov_b32 v12, 0"); k(f"s_mov_b32 s99, {L.PROG(0)}"); k("s_mov_b32 s95, 1")
    k(f"s_mov_b32 s62, {L.UU[0]}"); k(f"s_mov_b32 s63, {L.XTA[0]}")
    k(f"s_mov_b32 s64, {L.MEM[0]+L.MSTEP}"); k(f"s_mov_b32 s65, {L.PIM[0]}")
    k(f"s_mov_b32 s61, {L.MEM[0]}")
    def touch(v, mid=None):
        k(f"buffer_load_dword v8, v5, {WL}, s64 offen"); k(f"buffer_load_dword v8, v6, {WL}, s65 offen")
        k(f"buffer_load_dword v8, v4, {WL}, s63 offen")
        for j in range(7):
            if j == 3 and mid: mid()
            k(f"s_add_u32 s66, s62, {j*8192}")
            k(f"buffer_load_dword v8, v{v}, {WL}, s66 offen")
        k(f"s_add_u32 s62, s62, {16*28*1024}"); k(f"s_add_u32 s63, s63, {28*1024}")
        k(f"s_add_u32 s64, s64, {L.MSTEP}"); k(f"s_add_u32 s65, s65, {L.PSZ}")
    def probe(): k(f"buffer_load_dword v9, v7, {WL}, s61 offen sc1")
    k("s_mov_b32 s96, 0"); k("s_mov_b32 s98, 0")
    def pgate():
        ugate(k, "s98", "v_mov_b32 v24, v1", 24, abort); k("s_add_u32 s98, s98, 1")
    pgate(); touch(2)
    for i in range(1, PFD):
        pgate(); touch(3)
    k(f"s_add_u32 s61, s61, {L.MSTEP}")
    loop = k.label("LP"); lp = k.label("LPp"); go = k.label("LPg"); pend = k.label("LPe"); nt = k.label("LPn"); np_ = k.label("LPq")
    k.place(loop)
    k(f"s_cmp_ge_u32 s98, 63"); k(f"s_cbranch_scc1 {nt}")
    pgate()
    touch(3, probe)
    k("s_waitcnt vmcnt(4)")
    k("v_cmp_eq_u32 vcc, -1, v9"); k(f"s_cbranch_vccz {go}")
    k.place(nt)
    k(f"s_mov_b32 s70, {TIMEOUT}")
    k.place(lp)
    if PSL: k(f"s_sleep {PSL}")
    probe()
    k("s_sub_u32 s70, s70, 1"); k(f"s_cbranch_scc1 {abort}")
    k("s_waitcnt vmcnt(0)")
    k("v_cmp_eq_u32 vcc, -1, v9"); k(f"s_cbranch_vccnz {lp}")
    k.place(go)
    if True:
        k("s_cmp_lg_u32 s94, 0"); k(f"s_cbranch_scc1 {np_}")
        k("v_mov_b32 v13, s95"); k("s_mov_b64 exec, 1")
        k(f"buffer_store_dword v13, v12, {WL}, s99 offen sc1")
        k("s_mov_b64 exec, -1")
        k.place(np_)
    k(f"s_add_u32 s61, s61, {L.MSTEP}")
    k("s_add_u32 s95, s95, 1"); k("s_cmp_le_u32 s95, 63"); k(f"s_cbranch_scc1 {loop}")
    k.place(pend)

def chain_roles(k, ex):
    lP = k.label("LroleP")
    k("s_getreg_b32 s58, hwreg(HW_REG_XCC_ID)"); k("s_and_b32 s58, s58, 15"); k("s_add_u32 s58, s58, 1")
    body_init(k, ex)
    gen.tl(k, 15, 16, 0)
    k("s_cmp_ge_u32 s59, 30"); k(f"s_cbranch_scc1 {lP}")
    lB = k.label("LroleB")
    def agree(slow):
        lp = k.label("Lx")
        k("v_lshrrev_b32 v16, 2, v1"); k("v_min_u32 v16, 124, v16")
        k(f"s_mov_b32 s70, {TIMEOUT}")
        k.place(lp)
        k("buffer_load_dword v17, v16, s[8:11], 0 offen offset:128 sc1")
        k("s_sub_u32 s70, s70, 1"); k(f"s_cbranch_scc1 {ex}")
        k("s_waitcnt vmcnt(0)")
        k("v_cmp_eq_u32 vcc, 0, v17"); k(f"s_cbranch_vccnz {lp}")
        k("v_cmp_ne_u32 vcc, s58, v17"); k(f"s_cbranch_vccnz {slow}")
    k("s_cmp_ge_u32 s59, 16"); k(f"s_cbranch_scc1 {lB}")
    k("s_mov_b32 s60, s59")
    lA0 = k.label("LA0"); lB0 = k.label("LB0")
    k("v_lshlrev_b32 v16, 7, v0"); code_touch(k, lA0, 16384, True, 16, 17)
    setup_A(k, ex)
    sl = k.label("LslowA"); agree(sl)
    def per_wave(st):
        labs = [k.label("LAw") for _ in range(4)]
        for w in range(1, 4):
            k(f"s_cmp_eq_u32 s{S_WAVE}, {w}"); k(f"s_cbranch_scc1 {labs[w]}")
        for w in range(4):
            k.place(labs[w])
            top = k.label("Ltop"); k.place(top); gen_chain_A(k, st, ex, w); layer_next(k, top)
            k("s_endpgm")
    k.place(lA0)
    per_wave("")
    k.place(sl)
    per_wave("sc1")
    k.place(lB)
    k("s_sub_u32 s60, s59, 16")
    k("v_lshlrev_b32 v132, 7, v0"); code_touch(k, lB0, 8192, True, 132, 133)
    setup_B(k, ex)
    sl = k.label("LslowB"); agree(sl)
    k.place(lB0)
    top = k.label("Ltop"); k.place(top); gen_chain_B(k, "", ex); layer_next(k, top)
    k("s_endpgm")
    k.place(sl)
    top = k.label("Ltop"); k.place(top); gen_chain_B(k, "sc1", ex); layer_next(k, top)
    k("s_endpgm")
    k.place(lP)
    k("s_sub_u32 s60, s59, 30")
    top = k.label("Ltop"); k.place(top); gen_chain_P(k, ex); layer_next(k, top)
    k("s_endpgm")
```

```python
import struct, sys
from asmlib import *
import layout as L

def f2u(x): return struct.unpack("<I", struct.pack("<f", x))[0]
def hx(x): return hex(x & 0xffffffff)

S_WS = 4
P_X, P_MEM0, P_WQ, P_WK, P_WV, P_WO = 16, 18, 20, 22, 24, 26
P_BQ, P_BK, P_BV, P_BO = 32, 34, 36, 38
P_OUT, P_DBG, P_WS = 40, 42, 44
S_WAVE = 3

def srd(k, d, base, nbytes):
    k(f"s_mov_b32 s{d}, s{base}")
    k(f"s_and_b32 s{d+1}, s{base+1}, 0xffff")
    k(f"s_mov_b32 s{d+2}, {hx(nbytes)}")
    k(f"s_mov_b32 s{d+3}, 0x20000")

def prologue(k, nwg):
    k(f"s_cmp_lt_u32 s2, {nwg}")
    k(f"s_cbranch_scc1 Lgo_{k.name}")
    k("s_endpgm")
    k.place(f"Lgo_{k.name}")
    k("s_load_dwordx16 s[16:31], s[0:1], 0")
    k("s_load_dwordx8 s[32:39], s[0:1], 64")
    k("s_load_dwordx4 s[40:43], s[0:1], 96")
    k("s_load_dwordx2 s[44:45], s[0:1], 112")
    k("v_lshrrev_b32 v1, 6, v0")
    k(f"v_readfirstlane_b32 s{S_WAVE}, v1")
    k("v_and_b32 v0, 63, v0")
    k("s_waitcnt lgkmcnt(0)")
    srd(k, S_WS, P_WS, L.WS_BYTES)

def epilogue(k):
    k.place(f"Lexit_{k.name}")
    k("s_endpgm")

WS = "s[4:7]"
WL = "s[12:15]"
S_LAYER = 0

def xreduce_g(k, v, tmp, op):
    k(f"v_mov_b32 v{tmp}, v{v}")
    k(f"v_permlane16_swap_b32 v{v}, v{tmp}")
    k(f"{op} v{v}, v{v}, v{tmp}")
    k(f"v_mov_b32 v{tmp}, v{v}")
    k(f"v_permlane32_swap_b32 v{v}, v{tmp}")
    k(f"{op} v{v}, v{v}, v{tmp}")

def div7(k, sq, srem, sx):
    k(f"s_mul_i32 s{sq}, s{sx}, 9363")
    k(f"s_lshr_b32 s{sq}, s{sq}, 16")
    k(f"s_mul_i32 s{srem}, s{sq}, 7")
    k(f"s_sub_u32 s{srem}, s{sx}, s{srem}")

TLBW = 0
QDELAY = 0
SLAB_LDS = 32768
DBG_INIT = 128

def lane_parts(k):
    k("v_and_b32 v2, 15, v0"); k("v_lshrrev_b32 v3, 4, v0")
    k("v_lshrrev_b32 v4, 2, v2"); k("v_lshlrev_b32 v4, 3, v4"); k("v_and_b32 v5, 3, v2"); k("v_add_u32 v4, v4, v5")
    k("v_lshlrev_b32 v6, 4, v0")

def wait_init(k, abort, vt):
    srd(k, 8, P_DBG, 256)
    k(f"v_mov_b32 v{vt}, {DBG_INIT}")
    wait_words(k, "0", vt, vt+1, 32, abort, nap=1, srd_="s[8:11]")

RING_LDS = SLAB_LDS + 56*1024
SLAB_END = RING_LDS + 4*16384

def body_slab(k, sb, abort):
    lane_parts(k)
    div7(k, 47, 48, sb)
    k("s_and_b32 s49, s47, 15"); k("s_lshr_b32 s50, s47, 4")
    k("s_cmp_eq_u32 s50, 0")
    k(f"s_cselect_b32 s8, s{P_WQ}, s{P_WV}"); k(f"s_cselect_b32 s9, s{P_WQ+1}, s{P_WV+1}"); k("s_and_b32 s9, s9, 0xffff")
    k(f"s_mov_b32 s10, {448*8192}"); k("s_mov_b32 s11, 0x20000")
    k("s_lshl_b32 s51, s49, 9")
    if TLBW:
        k("v_lshlrev_b32 v9, 16, v0"); k("buffer_load_dword v59, v9, s[8:11], s51 offen")
    k("v_lshrrev_b32 v9, 2, v0"); k("v_lshlrev_b32 v9, 13, v9"); k("v_and_b32 v10, 3, v0"); k("v_lshl_add_u32 v9, v10, 7, v9")
    k("s_lshl_b32 s54, s48, 2"); k(f"s_add_u32 s54, s54, s{S_WAVE}"); k("s_lshl_b32 s54, s54, 17"); k("s_add_u32 s54, s54, s51")
    k("buffer_load_dword v58, v9, s[8:11], s54 offen")
    k("v_lshrrev_b32 v9, 3, v0"); k("v_and_b32 v10, 7, v0"); k("v_xor_b32 v10, v10, v9")
    k("v_lshrrev_b32 v11, 5, v0"); k("v_and_b32 v9, 3, v9"); k("v_lshl_add_u32 v9, v11, 3, v9"); k("v_lshlrev_b32 v8, 13, v9"); k("v_lshl_add_u32 v8, v10, 4, v8")
    k("v_and_b32 v9, 7, v0"); k("v_xor_b32 v10, v3, v9"); k("v_lshl_add_u32 v10, v9, 3, v10"); k("v_lshlrev_b32 v10, 4, v10")
    k("v_bfe_u32 v9, v0, 3, 1"); k("v_lshl_add_u32 v10, v9, 12, v10")
    k(f"s_lshl_b32 s60, s{S_WAVE}, 14"); k(f"s_add_u32 s60, s60, {RING_LDS}")
    k("v_add_u32 v56, s60, v10"); k("v_xor_b32 v57, 64, v56")
    def dma_tile(srd_, sbase, ldsreg, ldsoff):
        k(f"s_add_u32 s55, s{sbase}, {16*8192}")
        for rh in range(2):
            for ln in range(4):
                k(f"s_add_u32 m0, s{ldsreg}, {ldsoff + (rh*4+ln)*1024 - ln*128}")
                k(f"buffer_load_dwordx4 v8, {srd_}, s{sbase if rh == 0 else 55} offen offset:{ln*128} lds")
    BA = 64
    lvt = k.label(); lbd = k.label()
    k(f"s_lshl_b32 s61, s{S_WAVE}, 13")
    srd(k, 64, P_WK, 448*8192)
    k("s_cmp_eq_u32 s50, 1"); k(f"s_cbranch_scc1 {lvt}")
    k(f"s_lshr_b32 s53, s{S_WAVE}, 1"); k("s_lshl_b32 s53, s53, 5")
    k(f"s_and_b32 s54, s{S_WAVE}, 1"); k("s_lshl_b32 s54, s54, 2"); k("s_add_u32 s53, s53, s54")
    k("s_lshl_b32 s54, s48, 6"); k("s_add_u32 s53, s53, s54")
    k("s_lshl_b32 s54, s53, 13"); k("s_add_u32 s54, s54, s51")
    dma_tile("s[64:67]", 54, 61, 0)
    k(f"s_branch {lbd}")
    k.place(lvt)
    srd(k, 64, P_WO, 16*229376)
    k("v_lshrrev_b32 v9, 3, v0"); k("v_mul_u32_u24 v9, 896, v9"); k("v_and_b32 v11, 7, v0"); k("v_lshl_add_u32 v9, v11, 4, v9")
    k("s_mul_i32 s54, s49, 229376"); k("s_lshl_b32 s55, s48, 7"); k("s_add_u32 s54, s54, s55"); k(f"s_mul_i32 s55, s{S_WAVE}, {64*896}"); k("s_add_u32 s54, s54, s55")
    for i in range(8):
        k(f"s_add_u32 m0, s61, {i*1024}")
        k(f"buffer_load_dwordx4 v9, s[64:67], s54 offen lds")
        if i < 7: k(f"s_add_u32 s54, s54, {8*896}")
    k.place(lbd)
    def atile(j):
        i, t = j >> 1, j & 1
        k(f"s_add_u32 s54, s{S_WAVE}, {4*i}"); k("s_lshl_b32 s54, s54, 18"); k("s_add_u32 s54, s54, s51")
        if t: k(f"s_add_u32 s54, s54, {4*8192}")
        dma_tile("s[8:11]", 54, 60, (j & 1)*8192)
    def aread(j):
        for ks in range(8): k(f"ds_read_b128 {vr(256+j*32+ks*4,4)}, v{56+(ks&1)} offset:{(j&1)*8192 + (ks>>1)*1024}")
    if TL == 2: k("s_memrealtime s[70:71]")
    atile(0); atile(1)
    if TL == 2: k("s_memrealtime s[72:73]")
    k(f"s_lshl_b32 s46, s{sb}, 2"); k(f"s_add_u32 s46, s46, s{S_WAVE}")
    lo = k.label(); lk = k.label(); lv = k.label(); lj = k.label()
    def blk(base):
        k(f"s_sub_u32 s52, s46, {base}"); k("s_mul_i32 s53, s52, 4682"); k("s_lshr_b32 s53, s53, 16"); k("s_mul_i32 s54, s53, 14"); k("s_sub_u32 s54, s52, s54")
        k("s_lshl_b32 s52, s52, 10")
    k("s_cmp_ge_u32 s46, 812"); k(f"s_cbranch_scc1 {lv}")
    k("s_cmp_ge_u32 s46, 784"); k(f"s_cbranch_scc1 {lk}")
    k("s_cmp_ge_u32 s46, 392"); k(f"s_cbranch_scc1 {lo}")
    blk(0); srd(k, 64, P_BQ, 448*896); k("s_mov_b32 s55, 896"); k("s_lshl_b32 s53, s53, 4"); k("v_add_u32 v7, s53, v2"); k(f"s_add_u32 s52, s52, {L.WBQ}"); k(f"s_branch {lj}")
    k.place(lo)
    blk(392); srd(k, 64, P_BO, 448*896); k("s_mov_b32 s55, 896")
    k("s_and_b32 s56, s53, 1"); k("s_lshr_b32 s53, s53, 1"); k("s_lshl_b32 s53, s53, 5"); k("s_lshl_b32 s56, s56, 2"); k("s_add_u32 s53, s53, s56")
    k("v_add_u32 v7, s53, v4"); k(f"s_add_u32 s52, s52, {L.WBO}"); k(f"s_branch {lj}")
    k.place(lk)
    blk(784); srd(k, 64, P_BK, 448*56); k("s_mov_b32 s55, 56"); k("s_lshl_b32 s53, s53, 2"); k("v_add_u32 v7, s53, v4"); k(f"s_add_u32 s52, s52, {L.WBK}"); k(f"s_branch {lj}")
    k.place(lv)
    blk(812); srd(k, 64, P_BV, 448*56); k("s_mov_b32 s55, 56"); k("s_lshl_b32 s53, s53, 4"); k("v_add_u32 v7, s53, v2"); k(f"s_add_u32 s52, s52, {L.WBV}")
    k("s_cmp_ge_u32 s46, 840"); k(f"s_cselect_b32 s52, {L.SPARE[0]}, s52")
    k.place(lj)
    k("s_lshl_b32 s53, s54, 5"); k("v_lshlrev_b32 v12, 3, v3"); k("v_add_u32 v12, s53, v12"); k("v_mul_lo_u32 v12, v12, s55")
    k("v_lshlrev_b32 v11, 1, v7"); k("v_cmp_le_u32 vcc, s55, v11"); k("v_add_u32 v12, v12, v11"); k("v_mov_b32 v11, 0x7fffffff"); k("v_cndmask_b32 v12, v12, v11, vcc")
    k("s_mov_b32 s53, 0")
    for j in range(8):
        k(f"buffer_load_ushort v{48+j}, v12, s[64:67], s53 offen")
        if j < 7: k("s_add_u32 s53, s53, s55")
    k("s_waitcnt vmcnt(24)"); k("s_barrier")
    srd(k, 64, P_DBG, 256); k(f"v_mov_b32 v13, {DBG_INIT}")
    if TL == 2: k("s_memrealtime s[74:75]")
    lq2 = k.label(); lr2 = k.label()
    k("s_cmp_eq_u32 s50, 0"); k(f"s_cbranch_scc1 {lq2}")
    k("v_bfe_u32 v9, v0, 2, 2"); k("v_lshl_add_u32 v9, v3, 3, v9"); k("v_lshlrev_b32 v9, 7, v9"); k("v_and_b32 v11, 3, v0"); k("v_lshl_add_u32 v9, v11, 4, v9")
    for tt in range(4):
        for ks in range(8):
            for h in range(2):
                k(f"ds_read_b64_tr_b16 {vr(BA+(tt*8+ks)*4+2*h,2)}, v9 offset:{(32*ks+4*h)*128 + (32*(tt>>1)+4*(tt&1))*2}")
            if ks % 4 == 3: k("s_waitcnt lgkmcnt(4)")
    k(f"s_branch {lr2}")
    k.place(lq2)
    k("v_xor_b32 v11, 64, v10")
    for tt in range(4):
        for ks in range(8): k(f"ds_read_b128 {vr(BA+(tt*8+ks)*4,4)}, v{10+(ks&1)} offset:{tt*8192 + (ks>>1)*1024}")
        k("s_waitcnt lgkmcnt(4)")
    k.place(lr2)
    k("s_cmp_eq_u32 s50, 0")
    k(f"s_cselect_b32 s56, {hx(f2u(L.LOG2E/16))}, {hx(f2u(1.0))}")
    k(f"s_cselect_b32 s57, {L.WQ}, {L.WV}")
    k("s_mul_i32 s58, s49, 28"); k("s_lshl_b32 s59, s48, 2"); k("s_add_u32 s58, s58, s59")
    k(f"s_mul_i32 s58, s58, {14*1024}"); k("s_add_u32 s57, s57, s58")
    k(f"s_lshl_b32 s58, s{S_WAVE}, 10"); k(f"s_add_u32 s58, s58, {SLAB_LDS}"); k("v_add_u32 v9, s58, v6")
    ACC = [192, 16]; OB = 224
    fin = k.label()
    k(f"s_lshl_b32 s62, s{sb}, 7"); k(f"s_add_u32 s62, s62, {L.SF(0)}"); k(f"s_lshl_b32 s63, s{S_WAVE}, 2"); k("v_mov_b32 v60, s63")
    k(f"s_lshl_b32 s58, s{S_WAVE}, 10"); k("s_add_u32 s57, s57, s58")
    k("s_mov_b32 s56, s56"); k("v_mov_b32 v62, s56"); k("v_mov_b32 v63, s56")
    def epi(i):
        o_ = []
        for tt in range(4):
            o = OB + tt*4
            for t in range(2):
                d = ACC[i & 1] + (t*4+tt)*4
                o_ += [f"v_mul_f32 v{d+r}, s56, v{d+r}" for r in range(4)]
                o_ += [f"v_cvt_pk_bf16_f32 v{o+2*t}, v{d}, v{d+1}", f"v_cvt_pk_bf16_f32 v{o+2*t+1}, v{d+2}, v{d+3}"]
            o_ += [f"s_add_u32 s58, s57, {tt*14*1024 + i*4096}", f"buffer_store_dwordx4 {vr(o,4)}, v6, {WS}, s58 offen sc1", f"ds_write_b128 v9, {vr(o,4)} offset:{tt*14*1024 + i*4096}"]
        return o_
    def flag(n):
        k(f"v_mov_b32 v61, {n}"); k("s_mov_b64 exec, 1"); k(f"buffer_store_dword v61, v60, {WS}, s62 offen sc1"); k("s_mov_b64 exec, -1")
    def capture(fn):
        n0 = len(k.lines); fn(); o_ = k.lines[n0:]; del k.lines[n0:]; return o_
    for i in range(4):
        if i == 3:
            k(f"s_cmp_ge_u32 s{S_WAVE}, 2"); k(f"s_cbranch_scc1 {fin}")
        if TL == 2 and i == 0: k("s_memrealtime s[76:77]")
        younger = [8, 1, 4, 4][i]
        k(f"s_waitcnt vmcnt({8+younger})"); aread(2*i)
        k(f"s_waitcnt vmcnt({younger})"); aread(2*i+1)
        if i == 2:
            okz = k.label()
            k("v_cmp_ne_u32 vcc, 32, v14"); k(f"s_cbranch_vccz {okz}")
            wait_words(k, "0", 13, 14, 32, abort, nap=2, srd_="s[64:67]", wg=False)
            k.place(okz)
        if i == 3: flag(1)
        k("s_waitcnt lgkmcnt(0)")
        if TL == 2 and i in (0, 2): k(f"s_memrealtime s[{78+i}:{79+i}]")
        side = (capture(lambda: (atile(2*i+2), atile(2*i+3))) if i < 3 else []) + (epi(i-1) if i else ["buffer_load_dword v14, v13, s[64:67], 0 offen sc1"])
        main = [f"v_mfma_f32_16x16x32_bf16 {vr(ACC[i&1]+(t*4+tt)*4,4)}, {vr(256+i*64+t*32+ks*4,4)}, {vr(BA+(tt*8+ks)*4,4)}, {'0' if ks == 0 else vr(ACC[i&1]+(t*4+tt)*4,4)}"
                for ks in range(8) for t in range(2) for tt in range(4)]
        per = -(-len(side)//60)
        for n, m_ in enumerate(main):
            k(m_)
            if n >= 3:
                for x in side[(n-3)*per:(n-2)*per]: k(x)
    k("s_waitcnt vmcnt(4)"); flag(2)
    for x in epi(3): k(x)
    j3 = k.label(); k(f"s_branch {j3}")
    k.place(fin)
    k("s_waitcnt vmcnt(20)"); flag(1)
    for x in epi(2): k(x)
    k.place(j3)
    if TL == 2: k("s_memrealtime s[82:83]")
    for j in range(4): k(f"v_lshl_or_b32 v{12+j}, v{49+2*j}, 16, v{48+2*j}")
    k(f"buffer_store_dwordx4 v[12:15], v6, {WS}, s52 offen sc1")
    k("s_waitcnt vmcnt(0) lgkmcnt(0)")
    flag(4)
    tl(k, 14, 12, 0)
    if TL == 2:
        for j in range(7):
            k(f"v_mov_b32 v12, s{70+2*j}"); k(f"s_sub_u32 s46, s101, {4*(14-1-j)}"); k(f"buffer_store_dword v12, v13, {WS}, s46 offen")
        k("s_endpgm")
    nc = k.label()
    k("s_cmp_eq_u32 s50, 0"); k(f"s_cbranch_scc1 {nc}")
    for r in range(4): k(f"v_mov_b32 v{16+r}, -1")
    k(f"s_sub_u32 s46, s{sb}, 112"); k("s_lshl_b32 s46, s46, 2"); k(f"s_add_u32 s46, s46, s{S_WAVE}"); k("v_lshl_add_u32 v9, s46, 10, v6")
    full, rest = divmod(L.CLR_BYTES, 448*1024)
    k(f"v_cmp_gt_u32 vcc, {rest}, v9"); k("v_mov_b32 v10, 0x7fffffff"); k("v_cndmask_b32 v10, v10, v9, vcc")
    for l in range(2):
        for it in range(full + (1 if rest else 0)):
            k(f"s_mov_b32 s53, {L.HO[l] + L.MSTEP + it*448*1024}")
            k(f"buffer_store_dwordx4 v[16:19], v{9 if it < full else 10}, {WS}, s53 offen sc1")
    for base, size in ((L.MEMN[0] + L.DIRM*L.MEMSZ, (64-L.DIRM)*L.MEMSZ), (L.VM[0] + L.DIRM*L.VMSZ, (64-L.DIRM)*L.VMSZ), (L.PARTS[0] + 62*131072, 2*131072),
                       (L.XTB[0] + L.DIRX*28672, (64-L.DIRX)*28672), (L.KI[0] + L.DIRX*2048, (64-L.DIRX)*2048), (L.VI[0] + L.DIRX*2048, (64-L.DIRX)*2048)):
        while size > 0:
            if size < 448*1024:
                k(f"v_cmp_gt_u32 vcc, {size}, v9"); k("v_mov_b32 v10, 0x7fffffff"); k("v_cndmask_b32 v10, v10, v9, vcc")
            for l in range(2):
                k(f"s_mov_b32 s53, {base + l*L.LSTRIDE}"); k(f"buffer_store_dwordx4 v[16:19], v{10 if size < 448*1024 else 9}, {WS}, s53 offen sc1")
            base += 448*1024; size -= 448*1024
    k.place(nc)

def body_init(k, abort):
    lane_parts(k)
    srd(k, 8, P_X, L.XSZ)
    k("s_lshl_b32 s47, s59, 2"); k(f"s_add_u32 s47, s47, s{S_WAVE}")
    k("v_mul_u32_u24 v8, 896, v2"); k("v_lshl_add_u32 v8, v3, 4, v8")
    k(f"s_mul_i32 s48, s47, {16*896}")
    XP = 16; F = 72
    k("s_mov_b32 s49, s48")
    k("v_lshlrev_b32 v9, 7, v0"); k("s_lshl_b32 s48, s47, 10"); k("v_add_u32 v9, s48, v9"); k("v_mov_b64 v[12:13], 0"); k("v_mov_b64 v[14:15], 0")
    k("s_mov_b64 exec, 0xff")
    for l in range(2):
        k(f"s_mov_b32 s53, {L.CNT[l]}"); k(f"buffer_store_dwordx4 v[12:15], v9, {WS}, s53 offen sc1")
    k("s_mov_b64 exec, -1")
    for ks in range(14): k(f"buffer_load_dwordx4 {vr(XP+4*ks,4)}, v8, s[8:11], s49 offen offset:{ks*64}")
    k("s_waitcnt vmcnt(14)"); k("s_barrier")
    if TL == 2: tl(k, 1, 12, 0)
    srd(k, 64, P_DBG, 256)
    lz = k.label(); k(f"s_cmp_lg_u32 s{S_WAVE}, 0"); k(f"s_cbranch_scc1 {lz}")
    k(f"v_mov_b32 v12, {DBG_INIT}"); k("v_mov_b32 v13, 1"); signal(k, "0", 12, 13, "s[64:67]")
    k.place(lz)
    nom = k.label()
    k("s_cmp_lg_u32 s59, 31"); k(f"s_cbranch_scc1 {nom}")
    srd(k, 8, P_MEM0, 7168)
    k(f"s_lshl_b32 s48, s{S_WAVE}, 6"); k("v_add_u32 v8, s48, v0")
    k("v_and_b32 v9, 3, v8"); k("v_bfe_u32 v10, v8, 2, 3"); k("v_bfe_u32 v11, v8, 5, 1"); k("v_lshrrev_b32 v12, 6, v8")
    k("v_mul_u32_u24 v10, 896, v10"); k("v_lshl_add_u32 v10, v12, 5, v10"); k("v_lshl_add_u32 v10, v9, 3, v10"); k("v_lshl_add_u32 v10, v11, 2, v10")
    k("v_lshlrev_b32 v13, 2, v8")
    for p in range(7): k(f"buffer_load_dword v{76+p}, v10, s[8:11], 0 offen offset:{p*128}")
    k("v_and_b32 v9, 7, v8"); k("v_mul_u32_u24 v9, 896, v9"); k("v_lshrrev_b32 v11, 3, v8"); k("v_lshl_add_u32 v9, v11, 4, v9"); k("v_lshlrev_b32 v14, 4, v8")
    k("buffer_load_dwordx4 v[84:87], v9, s[8:11], 0 offen"); k("buffer_load_dwordx4 v[88:91], v9, s[8:11], 0 offen offset:512")
    k("v_add_u32 v15, 4096, v14"); k("v_cmp_gt_u32 vcc, 7168, v15"); k("v_mov_b32 v11, 0x7fffffff"); k("v_cndmask_b32 v15, v11, v15, vcc")
    k("s_waitcnt vmcnt(0)")
    for p in list(range(7)) + list(range(8, 16)): k(f"v_min_u32 v{76+p}, -2, v{76+p}")
    for l in range(2):
        k(f"s_mov_b32 s48, {L.MEM[l]}")
        for p in range(7):
            if p == 4: k("s_add_u32 s48, s48, 4096")
            k(f"buffer_store_dword v{76+p}, v13, {WS}, s48 offen offset:{(p%4)*1024} sc1")
        k(f"s_mov_b32 s48, {L.MEMN[l]}")
        k(f"buffer_store_dwordx4 v[84:87], v14, {WS}, s48 offen sc1"); k(f"buffer_store_dwordx4 v[88:91], v15, {WS}, s48 offen sc1")
    k.place(nom)
    k("s_waitcnt vmcnt(0)"); k("s_barrier")
    k("v_mov_b32 v12, s58"); k("s_lshl_b32 s46, s59, 2"); k("v_mov_b32 v13, s46")
    k("buffer_store_dword v12, v13, s[64:67], 0 offen sc1")
    for i in range(56):
        k(f"v_lshlrev_b32 v{F+2*i}, 16, v{XP+i}"); k(f"v_and_b32 v{F+2*i+1}, 0xffff0000, v{XP+i}")
    k(f"v_add_f32 v9, v{F}, v{F+1}"); k(f"v_add_f32 v10, v{F+2}, v{F+3}")
    for i in range(4, 112, 2):
        k(f"v_add_f32 v9, v9, v{F+i}"); k(f"v_add_f32 v10, v10, v{F+i+1}")
    k("v_add_f32 v9, v9, v10")
    xreduce_g(k, 9, 10, "v_add_f32")
    k(f"v_mul_f32 v9, {hx(f2u(1/448))}, v9")
    for i in range(112): k(f"v_sub_f32 v{F+i}, v{F+i}, v9")
    k(f"v_mul_f32 v10, v{F}, v{F}"); k(f"v_mul_f32 v11, v{F+1}, v{F+1}")
    for i in range(2, 112, 2):
        k(f"v_fmac_f32 v10, v{F+i}, v{F+i}"); k(f"v_fmac_f32 v11, v{F+i+1}, v{F+i+1}")
    k("v_add_f32 v10, v10, v11")
    xreduce_g(k, 10, 11, "v_add_f32")
    k(f"v_mov_b32 v11, {hx(f2u(1e-5))}"); k(f"v_fmac_f32 v11, {hx(f2u(1/448))}, v10"); k("v_rsq_f32 v11, v11")
    for i in range(112): k(f"v_mul_f32 v{F+i}, v{F+i}, v11")
    for i in range(56): k(f"v_cvt_pk_bf16_f32 v{XP+i}, v{F+2*i}, v{F+2*i+1}")
    k(f"s_mul_i32 s48, s47, {14*1024}"); k(f"s_add_u32 s48, s48, {L.XTA[0]}")
    for ks in range(14):
        if ks % 4 == 0 and ks: k("s_add_u32 s48, s48, 4096")
        k(f"buffer_store_dwordx4 {vr(XP+4*ks,4)}, v6, {WS}, s48 offen offset:{(ks%4)*1024} sc1")
    k("s_waitcnt vmcnt(0)")
    if TL == 2:
        tl(k, 2, 12, 0); k("s_endpgm")
    k("s_mov_b32 s48, s47")
    wait_init(k, abort, 12)
    k("s_lshr_b32 s46, s48, 1"); k("s_lshl_b32 s46, s46, 7"); k(f"s_add_u32 s46, s46, {L.RC(0)}"); k("v_mov_b32 v12, 0"); k("v_mov_b32 v13, 16")
    signal(k, "s46", 12, 13, WS)

TIMEOUT = 1 << 21
SLEEP = 8

def wait_words(k, soff, vaddr, vt, target, abort, ge=False, nap=None, srd_=WL, wg=True, far=None):
    lp = k.label("Lwc"); ok = k.label("Lwo")
    if wg:
        k(f"s_cmp_lg_u32 s{S_WAVE}, 0"); k(f"s_cbranch_scc1 {ok}")
    k(f"s_mov_b32 s47, {TIMEOUT}")
    if far is not None:
        lf = k.label("Lwf"); near = k.label("Lwn")
        k(f"s_mov_b32 s46, {L.PROG(0)}")
        k.place(lf)
        k(f"v_mov_b32 v{vt}, 0")
        k(f"buffer_load_dword v{vt}, v{vt}, {WL}, s46 offen sc1")
        k("s_sub_u32 s47, s47, 1"); k(f"s_cbranch_scc1 {abort}")
        k("s_waitcnt vmcnt(0)")
        k(f"v_cmp_gt_i32 vcc, {far}, v{vt}")
        k(f"s_cbranch_vccz {near}")
        k("s_sleep 48")
        k(f"s_branch {lf}")
        k.place(near)
    k.place(lp)
    k(f"buffer_load_dword v{vt}, v{vaddr}, {srd_}, {soff} offen sc1")
    k("s_sub_u32 s47, s47, 1"); k(f"s_cbranch_scc1 {abort}")
    k("s_waitcnt vmcnt(0)")
    k(f"v_cmp_{'gt' if ge else 'ne'}_u32 vcc, {target}, v{vt}")
    k(f"s_cbranch_vccz {ok}")
    k(f"s_sleep {SLEEP if nap is None else nap}")
    k(f"s_branch {lp}")
    k.place(ok)
    if wg: k("s_barrier")

def gate(k, base, nshard, target, need, mark, v128, vt, abort, nap=0, napfar=40, greedy=True):
    ok = k.label("Lgo"); lp = k.label("Lgl")
    k(f"s_cmp_lt_u32 {need}, s{mark}"); k(f"s_cbranch_scc1 {ok}")
    k(f"s_mov_b32 s70, {TIMEOUT}")
    k(v128); k(f"v_and_b32 v{vt}, 0x780, v{vt}")
    k.place(lp)
    k(f"s_min_u32 s{mark}, s{mark}, 48"); k(f"s_lshl_b32 s{mark+1}, s{mark}, 7"); k(f"s_add_u32 s{mark+1}, s{mark+1}, {base}")
    k("s_mov_b64 exec, 0xffff")
    k(f"buffer_load_dword v{vt+1}, v{vt}, {WL}, s{mark+1} offen sc1")
    k("s_mov_b64 exec, -1")
    k("s_sub_u32 s70, s70, 1"); k(f"s_cbranch_scc1 {abort}")
    k("s_waitcnt vmcnt(0)")
    k(f"v_cmp_ne_u32 vcc, {target}, v{vt+1}")
    k(f"s_or_b32 s{mark+1}, vcc_lo, 0x10000"); k(f"s_ff1_i32_b32 s{mark+1}, s{mark+1}"); k(f"s_add_u32 s{mark}, s{mark}, s{mark+1}")
    k(f"s_cmp_eq_u32 s{mark+1}, 16"); k(f"s_cselect_b32 s{mark+1}, 1, 0")
    k(f"s_cmp_ge_u32 s{mark}, 64"); k(f"s_cselect_b32 s{mark}, 0x100, s{mark}"); k(f"s_cbranch_scc1 {ok}")
    if greedy:
        k(f"s_cmp_eq_u32 s{mark+1}, 1"); k(f"s_cbranch_scc1 {lp}")
    else:
        k(f"s_cmp_lt_u32 {need}, s{mark}"); k(f"s_cbranch_scc1 {ok}")
        k(f"s_cmp_eq_u32 s{mark+1}, 1"); k(f"s_cbranch_scc1 {lp}")
    if nap:
        k(f"s_cmp_lt_u32 {need}, s{mark}"); k(f"s_cbranch_scc1 {ok}")
        far = k.label("Lgf")
        k(f"s_add_u32 s{mark+1}, s{mark}, 1"); k(f"s_cmp_gt_u32 {need}, s{mark+1}"); k(f"s_cbranch_scc1 {far}")
        k(f"s_sleep {nap}"); k(f"s_branch {lp}")
        k.place(far); k(f"s_sleep {napfar}"); k(f"s_branch {lp}")
    else:
        k(f"s_cmp_lt_u32 {need}, s{mark}"); k(f"s_cbranch_scc0 {lp}")
    k.place(ok)

def signal(k, soff, vz, vone, srd_=WL, lanes=1):
    k(f"s_mov_b64 exec, {lanes}")
    k(f"buffer_atomic_add v{vone}, v{vz}, {srd_}, {soff} offen sc1")
    k("s_mov_b64 exec, -1")

TL = 0
TLOFF = 0xF100000
def tl(k, idx, vt, per_layer=5):
    if not TL: return
    k("s_memrealtime s[84:85]"); k("s_lshl_b32 s101, s2, 2"); k(f"s_add_u32 s101, s101, s{S_WAVE}"); k("s_lshl_b32 s101, s101, 6")
    k(f"s_add_u32 s101, s101, {TLOFF + 4*idx}"); k("s_waitcnt lgkmcnt(0)")
    k(f"s_mul_i32 s85, s{S_LAYER}, {4*per_layer}"); k("s_add_u32 s101, s101, s85")
    k(f"v_mov_b32 v{vt}, s84"); k(f"v_mov_b32 v{vt+1}, 0")
    k(f"buffer_store_dword v{vt}, v{vt+1}, {WS}, s101 offen")
    if TL == 3:
        k("s_memtime s[84:85]"); k("s_waitcnt lgkmcnt(0)"); k(f"v_mov_b32 v{vt}, s84"); k("s_add_u32 s101, s101, 0x10000")
        k(f"buffer_store_dword v{vt}, v{vt+1}, {WS}, s101 offen")

def code_touch(k, lab, nbytes, forward, v128, vd):
    h = k.label("Lpc")
    k("s_getpc_b64 s[82:83]"); k.place(h)
    k(f"s_add_u32 s82, s82, {lab}-{h}"); k(f"s_addc_u32 s83, s83, {0 if forward else -1}")
    if nbytes < 8192:
        k(f"v_min_u32 v{vd}, {nbytes-128}, v{v128}"); k(f"global_load_dword v{vd}, v{vd}, s[82:83]"); return
    for j in range(nbytes//8192):
        if j: k("s_add_u32 s82, s82, 8192"); k("s_addc_u32 s83, s83, 0")
        k(f"global_load_dword v{vd}, v{v128}, s[82:83]")

def slab_round_wait(k, r, soff, vaddr, vt, abort):
    ok = k.label("Lsr"); lp = k.label("Lsl")
    k(f"s_cmp_gt_u32 s55, {r}"); k(f"s_cbranch_scc1 {ok}")
    k(f"s_mov_b32 s70, {TIMEOUT}")
    k.place(lp)
    k(f"buffer_load_dword v{vt}, v{vaddr}, {WS}, {soff} offen sc1")
    k("s_sub_u32 s70, s70, 1"); k(f"s_cbranch_scc1 {abort}")
    k("s_waitcnt vmcnt(0)")
    k(f"v_cmp_gt_u32 vcc, 4, v{vt}"); k("s_cmp_eq_u64 vcc, 0"); k("s_cselect_b32 s55, 4, s55")
    k(f"v_cmp_ge_u32 vcc, {r}, v{vt}"); k(f"s_cbranch_vccz {ok}")
    k("s_sleep 2"); k(f"s_branch {lp}")
    k.place(ok)

def lane0_addr(k, vz, vone):
    k(f"v_mov_b32 v{vz}, 0"); k(f"v_mov_b32 v{vone}, 1")

def layer_begin(k):
    srd(k, 12, P_WS, L.WS_BYTES); k(f"s_mov_b32 s{S_LAYER}, 0")
def layer_next(k, top):
    k(f"s_add_u32 s12, s{P_WS}, {L.LSTRIDE}"); k(f"s_addc_u32 s13, s{P_WS+1}, 0"); k("s_and_b32 s13, s13, 0xffff")
    k(f"s_mov_b32 s14, {L.WS_BYTES - L.LSTRIDE}")
    k(f"s_add_u32 s{S_LAYER}, s{S_LAYER}, 1"); k(f"s_cmp_lt_u32 s{S_LAYER}, 2"); k(f"s_cbranch_scc1 {top}")

def slab_request(k, sb):
    no = k.label(); k(f"s_cmp_eq_u32 s{S_LAYER}, 1"); k(f"s_cbranch_scc1 {no}")
    div7(k, 53, 54, sb)
    k("s_and_b32 s55, s53, 15"); k("s_lshr_b32 s53, s53, 4"); k("s_cmp_eq_u32 s53, 0"); k(f"s_cselect_b32 s57, {L.WQ}, {L.WV}")
    k("s_mul_i32 s58, s55, 28"); k("s_lshl_b32 s59, s54, 2"); k("s_add_u32 s58, s58, s59"); k(f"s_add_u32 s58, s58, s{S_WAVE}")
    k(f"s_mul_i32 s58, s58, {14*1024}"); k("s_add_u32 s57, s57, s58")
    for i in range(14):
        if i % 4 == 0 and i: k("s_add_u32 s57, s57, 4096")
        k(f"buffer_load_dwordx4 {vr(128+4*i,4)}, v1, {WS}, s57 offen offset:{(i%4)*1024} sc1")
    k.place(no)

def slab_stage(k, younger, first=False):
    no = k.label()
    if not first:
        k(f"s_cmp_eq_u32 s{S_LAYER}, 1"); k(f"s_cbranch_scc1 {no}")
        k(f"s_mul_i32 s58, s{S_WAVE}, {14*1024}"); k(f"s_add_u32 s58, s58, {SLAB_LDS}"); k("v_add_u32 v2, s58, v1")
        k(f"s_waitcnt vmcnt({younger})"); k("s_barrier")
        for i in range(14): k(f"ds_write_b128 v2, {vr(128+4*i,4)} offset:{i*1024}")
    else: k("v_lshlrev_b32 v1, 4, v0")
    k(f"v_add_u32 v2, {SLAB_LDS}, v1")
    k("s_waitcnt lgkmcnt(0)"); k("s_barrier")
    for i in range(56):
        k(f"ds_read_b128 {vr(256+4*i,4)}, v2 offset:{i*1024}")
        if i % 12 == 11: k("s_waitcnt lgkmcnt(4)")
    k.place(no)

def body_gemm(k, sb, abort):
    div7(k, 47, 48, sb)
    k("s_and_b32 s49, s47, 15")
    k("s_lshr_b32 s50, s47, 4")
    k("v_lshlrev_b32 v1, 4, v0")
    k("s_cmp_eq_u32 s50, 0")
    k(f"s_mov_b32 s56, {L.UC(0)}"); k(f"s_cselect_b32 s56, {L.QC(0)}, s56")
    lane0_addr(k, 4, 5)
    k(f"s_lshl_b32 s58, s{S_WAVE}, 7"); k("s_add_u32 s56, s56, s58")
    k(f"s_and_b32 s58, s{sb}, 3"); k("s_lshl_b32 s58, s58, 13"); k("s_add_u32 s56, s56, s58")
    k("s_mov_b32 s96, 0"); k(f"s_mov_b32 s98, s{S_WAVE}")
    def xreg(buf, i):
        if buf == 0: return 16 + 4*i
        return 128 + 4*i if i < 20 else 256 + 224 + 4*(i-20)
    def loadx(buf):
        k("s_min_u32 s99, s98, 63")
        gate(k, L.RC(0), 1, 32, "s99", 96, "v_lshlrev_b32 v6, 3, v1", 6, abort, nap=3, napfar=3, greedy=False)
        k("s_add_u32 s98, s98, 4")
        for ks in range(14):
            if ks % 4 == 0:
                k(f"s_add_u32 s53, s52, {ks*1024}"); k(f"s_add_u32 s57, s52, {(14+ks)*1024}")
            for t in range(2):
                k(f"buffer_load_dwordx4 {vr(xreg(buf,t*14+ks),4)}, v1, {WL}, s{57 if t else 53} offen offset:{(ks%4)*1024} sc1")
        k(f"s_add_u32 s52, s52, {4*28*1024}")
    k(f"s_mul_i32 s52, s{S_WAVE}, {28*1024}"); k(f"s_add_u32 s52, s52, {L.XTA[0]}")
    if QDELAY:
        nq = k.label()
        k("s_cmp_lg_u32 s50, 0"); k(f"s_cbranch_scc1 {nq}")
        k(f"s_mov_b32 s46, {L.PROG(0)}"); wait_words(k, "s46", 4, 6, QDELAY, abort, ge=True, nap=32)
        k.place(nq)
    loadx(0)
    k("s_waitcnt vmcnt(28) lgkmcnt(0)"); k("s_barrier")
    tl(k, 2, 6)
    ACC = 208; O = 240
    lq = k.label(); end = k.label()
    k("s_cmp_eq_u32 s50, 0")
    k(f"s_cbranch_scc1 {lq}")
    for typ in (1, 0):
        if typ == 0: k.place(lq)
        k(f"s_lshl_b32 s54, s{S_WAVE}, 4"); k("s_add_u32 s54, s54, s49"); k(f"s_mul_i32 s54, s54, {28*1024}")
        if typ == 1:
            k("s_lshl_b32 s55, s48, 12"); k("s_add_u32 s54, s54, s55"); k(f"s_add_u32 s54, s54, {L.UU[0]}")
        else:
            k("s_lshl_b32 s55, s48, 11"); k("s_add_u32 s54, s54, s55"); k(f"s_add_u32 s54, s54, {L.QP[0]}")
        k("s_mov_b32 s51, 8")
        lp = k.label(); k.place(lp)
        for buf in range(2):
            for ks in range(14):
                for t in range(2):
                    k(f"s_waitcnt vmcnt({27 - 2*ks - t})")
                    for tt in range(4):
                        d = ACC + (t*4+tt)*4
                        c = "0" if ks == 0 else vr(d,4)
                        x = vr(xreg(buf, t*14+ks),4); w = vr(256+(tt*14+ks)*4,4)
                        if typ == 1: k(f"v_mfma_f32_16x16x32_bf16 {vr(d,4)}, {x}, {w}, {c}")
                        else:        k(f"v_mfma_f32_16x16x32_bf16 {vr(d,4)}, {w}, {x}, {c}")
            for u in range(4):
                if typ == 1: d0, d1 = ACC + u*4, ACC + (4+u)*4; off = u*1024; so = "s54"
                else:
                    t, pp = u >> 1, u & 1
                    d0, d1 = ACC + (t*4+2*pp)*4, ACC + (t*4+2*pp+1)*4; off = pp*1024; so = "s54" if t == 0 else "s55"
                    if u == 2: k(f"s_add_u32 s55, s54, {14*1024}")
                o = O + 4*u
                k(f"v_cvt_pk_bf16_f32 v{o}, v{d0}, v{d0+1}"); k(f"v_cvt_pk_bf16_f32 v{o+1}, v{d0+2}, v{d0+3}")
                k(f"v_cvt_pk_bf16_f32 v{o+2}, v{d1}, v{d1+1}"); k(f"v_cvt_pk_bf16_f32 v{o+3}, v{d1+2}, v{d1+3}")
                k(f"buffer_store_dwordx4 {vr(o,4)}, v1, {WL}, {so} offen offset:{off} sc1")
            k(f"s_add_u32 s54, s54, {4*16*28*1024}")
            k("s_waitcnt vmcnt(0)")
            signal(k, "s56", 4, 5)
            loadx(1-buf)
            if TL and buf == 0:
                lz = k.label(); k("s_cmp_lg_u32 s51, 8"); k(f"s_cbranch_scc1 {lz}"); tl(k, 3, 6); k.place(lz)
            k("s_add_u32 s56, s56, 512")
        k("s_sub_u32 s51, s51, 1"); k("s_cmp_lg_u32 s51, 0"); k(f"s_cbranch_scc1 {lp}")
        if typ == 1: k(f"s_branch {end}")
    k.place(end)
    k("s_waitcnt vmcnt(0)")

def gen_empty():
    k = K("empty_kernel", 32, 32, 48)
    k("s_endpgm")
    return k
```

```python
import sys
import chain, gen
from chain import *
from attn import *

NAW = 36
assert NAW + N7 == 112 and N6 + N4 + N2 == 112
def gen_main():
    k = K("main_kernel", nsgpr=102)
    prologue(k, 256)
    layer_begin(k)
    ex = f"Lexit_{k.name}"
    bulk = k.label("Lbulk")
    gen.tl(k, 0, 2)
    k("s_and_b32 s46, s2, 7"); k("s_lshr_b32 s59, s2, 3"); k("s_cmp_lg_u32 s46, 0"); k(f"s_cbranch_scc1 {bulk}")
    chain_roles(k, "Lexit_team")
    k.place("Lexit_team"); k("s_endpgm")
    k.place(bulk)
    gen.TLROLE[0] = 'b'
    k("s_sub_u32 s100, s46, 1"); k("s_lshl_b32 s100, s100, 5"); k("s_add_u32 s100, s100, s59")
    body_slab(k, 100, ex)
    gen.tl(k, 15, 16, 0)
    slab_stage(k, 0, True)
    top = k.label("Ltop"); k.place(top)
    body_gemm(k, 100, ex)
    gen.tl(k, 1, 2)
    nxt = k.label("Lnx"); again = k.label("Lag"); l7 = k.label("L7"); lq = k.label("Lq"); l4 = k.label("L4"); l2 = k.label("L2")
    k("s_cmp_lt_u32 s100, 112"); k(f"s_cbranch_scc1 {lq}")
    k(f"s_cmp_ge_u32 s100, {112+NAW}"); k(f"s_cbranch_scc1 {l7}")
    k("s_sub_u32 s93, s100, 112")
    group_same_die(k, ex)
    k.place(again)
    k("s_lshr_b32 s60, s93, 2"); k("s_and_b32 s71, s93, 3")
    body_attnA4(k, ex)
    gen.tl(k, 3, 2)
    k(f"s_add_u32 s93, s93, {NAW}"); k("s_cmp_lt_u32 s93, 256"); k(f"s_cbranch_scc1 {again}")
    slab_request(k, 100); slab_stage(k, 0)
    k(f"s_branch {nxt}")
    k.place(l7); k(f"s_sub_u32 s60, s100, {112+NAW}"); body_attnB(k, 7, ex, top); gen.tl(k, 5, 2); k(f"s_branch {nxt}")
    k.place(lq)
    k(f"s_cmp_ge_u32 s100, {N6+N4}"); k(f"s_cbranch_scc1 {l2}")
    k(f"s_cmp_ge_u32 s100, {N6}"); k(f"s_cbranch_scc1 {l4}")
    k("s_mov_b32 s60, s100"); body_attnB(k, 6, ex, top); gen.tl(k, 5, 2); k(f"s_branch {nxt}")
    k.place(l4); k(f"s_sub_u32 s60, s100, {N6}"); body_attnB(k, 4, ex, top); gen.tl(k, 5, 2); k(f"s_branch {nxt}")
    k.place(l2); k(f"s_sub_u32 s60, s100, {N6+N4}"); body_attnB(k, 2, ex, top); gen.tl(k, 5, 2)
    k.place(nxt)
    layer_next(k, top)
    epilogue(k)
    return k

if __name__ == "__main__":
    for a in sys.argv[2:]:
        n, v = a.split('='); setattr(gen if n in ('TL','SLEEP','TLBW','QDELAY') else chain, n, int(v))
    hdr = open('interleave_layers__memory_aug_recurrent_mem_tr__grouped_kv_mqa__prompt.s.ref').read().split("; Override launch")[0]
    ks = [gen_main()]
    lds = max(SLAB_END, CHAIN_LDS, A4_LDS, B_LDS)
    launches = [("main_kernel",256,256,lds)]
    open(sys.argv[1], "w").write(emit_file(ks, launches, hdr))
```

```python
import struct, sys
from asmlib import *
import layout as L

def f2u(x): return struct.unpack("<I", struct.pack("<f", x))[0]
def hx(x): return hex(x & 0xffffffff)

S_WS = 4
P_X, P_MEM0, P_WQ, P_WK, P_WV, P_WO = 16, 18, 20, 22, 24, 26
P_BQ, P_BK, P_BV, P_BO = 32, 34, 36, 38
P_OUT, P_DBG, P_WS = 40, 42, 44
S_WAVE = 3

def srd(k, d, base, nbytes):
    k(f"s_mov_b32 s{d}, s{base}")
    k(f"s_and_b32 s{d+1}, s{base+1}, 0xffff")
    k(f"s_mov_b32 s{d+2}, {hx(nbytes)}")
    k(f"s_mov_b32 s{d+3}, 0x20000")

def prologue(k, nwg):
    k(f"s_cmp_lt_u32 s2, {nwg}")
    k(f"s_cbranch_scc1 Lgo_{k.name}")
    k("s_endpgm")
    k.place(f"Lgo_{k.name}")
    k("s_load_dwordx16 s[16:31], s[0:1], 0")
    k("s_load_dwordx8 s[32:39], s[0:1], 64")
    k("s_load_dwordx4 s[40:43], s[0:1], 96")
    k("s_load_dwordx2 s[44:45], s[0:1], 112")
    k("v_lshrrev_b32 v1, 6, v0")
    k(f"v_readfirstlane_b32 s{S_WAVE}, v1")
    k("v_and_b32 v0, 63, v0")
    k("s_waitcnt lgkmcnt(0)")
    srd(k, S_WS, P_WS, L.WS_BYTES)

def epilogue(k):
    k.place(f"Lexit_{k.name}")
    k("s_endpgm")

WS = "s[4:7]"
WL = "s[12:15]"
S_LAYER = 0

def xreduce_g(k, v, tmp, op):
    k(f"v_mov_b32 v{tmp}, v{v}")
    k(f"v_permlane16_swap_b32 v{v}, v{tmp}")
    k(f"{op} v{v}, v{v}, v{tmp}")
    k(f"v_mov_b32 v{tmp}, v{v}")
    k(f"v_permlane32_swap_b32 v{v}, v{tmp}")
    k(f"{op} v{v}, v{v}, v{tmp}")

def div7(k, sq, srem, sx):
    k(f"s_mul_i32 s{sq}, s{sx}, 9363")
    k(f"s_lshr_b32 s{sq}, s{sq}, 16")
    k(f"s_mul_i32 s{srem}, s{sq}, 7")
    k(f"s_sub_u32 s{srem}, s{sx}, s{srem}")

TLBW = 0
QDELAY = 0
SLAB_LDS = 32768
DBG_INIT = 64

def lane_parts(k):
    k("v_and_b32 v2, 15, v0"); k("v_lshrrev_b32 v3, 4, v0")
    k("v_lshrrev_b32 v4, 2, v2"); k("v_lshlrev_b32 v4, 3, v4"); k("v_and_b32 v5, 3, v2"); k("v_add_u32 v4, v4, v5")
    k("v_lshlrev_b32 v6, 4, v0")

def wait_init(k, abort, vt):
    srd(k, 8, P_DBG, 256)
    k(f"v_mov_b32 v{vt}, {DBG_INIT}")
    wait_words(k, "0", vt, vt+1, 32, abort, nap=1, srd_="s[8:11]")

RING_LDS = SLAB_LDS + 56*1024
SLAB_END = RING_LDS + 4*16384

def body_slab(k, sb, abort):
    lane_parts(k)
    div7(k, 47, 48, sb)
    k("s_and_b32 s49, s47, 15"); k("s_lshr_b32 s50, s47, 4")
    k("s_cmp_eq_u32 s50, 0")
    k(f"s_cselect_b32 s8, s{P_WQ}, s{P_WV}"); k(f"s_cselect_b32 s9, s{P_WQ+1}, s{P_WV+1}"); k("s_and_b32 s9, s9, 0xffff")
    k(f"s_mov_b32 s10, {448*8192}"); k("s_mov_b32 s11, 0x20000")
    k("s_lshl_b32 s51, s49, 9")
    if TLBW:
        k("v_lshlrev_b32 v9, 16, v0"); k("buffer_load_dword v59, v9, s[8:11], s51 offen")
    k("v_lshrrev_b32 v9, 2, v0"); k("v_lshlrev_b32 v9, 13, v9"); k("v_and_b32 v10, 3, v0"); k("v_lshl_add_u32 v9, v10, 7, v9")
    k("s_lshl_b32 s54, s48, 2"); k(f"s_add_u32 s54, s54, s{S_WAVE}"); k("s_lshl_b32 s54, s54, 17"); k("s_add_u32 s54, s54, s51")
    k("buffer_load_dword v58, v9, s[8:11], s54 offen")
    k("v_lshrrev_b32 v9, 3, v0"); k("v_and_b32 v10, 7, v0"); k("v_xor_b32 v10, v10, v9")
    k("v_lshrrev_b32 v11, 5, v0"); k("v_and_b32 v9, 3, v9"); k("v_lshl_add_u32 v9, v11, 3, v9"); k("v_lshlrev_b32 v8, 13, v9"); k("v_lshl_add_u32 v8, v10, 4, v8")
    k("v_and_b32 v9, 7, v0"); k("v_xor_b32 v10, v3, v9"); k("v_lshl_add_u32 v10, v9, 3, v10"); k("v_lshlrev_b32 v10, 4, v10")
    k("v_bfe_u32 v9, v0, 3, 1"); k("v_lshl_add_u32 v10, v9, 12, v10")
    k(f"s_lshl_b32 s60, s{S_WAVE}, 14"); k(f"s_add_u32 s60, s60, {RING_LDS}")
    k("v_add_u32 v56, s60, v10"); k("v_xor_b32 v57, 64, v56")
    def dma_tile(srd_, sbase, ldsreg, ldsoff):
        k(f"s_add_u32 s55, s{sbase}, {16*8192}")
        for rh in range(2):
            for ln in range(4):
                k(f"s_add_u32 m0, s{ldsreg}, {ldsoff + (rh*4+ln)*1024 - ln*128}")
                k(f"buffer_load_dwordx4 v8, {srd_}, s{sbase if rh == 0 else 55} offen offset:{ln*128} lds")
    BA = 64
    lvt = k.label(); lbd = k.label()
    k(f"s_lshl_b32 s61, s{S_WAVE}, 13")
    srd(k, 64, P_WK, 448*8192)
    k("s_cmp_eq_u32 s50, 1"); k(f"s_cbranch_scc1 {lvt}")
    k(f"s_lshr_b32 s53, s{S_WAVE}, 1"); k("s_lshl_b32 s53, s53, 5")
    k(f"s_and_b32 s54, s{S_WAVE}, 1"); k("s_lshl_b32 s54, s54, 2"); k("s_add_u32 s53, s53, s54")
    k("s_lshl_b32 s54, s48, 6"); k("s_add_u32 s53, s53, s54")
    k("s_lshl_b32 s54, s53, 13"); k("s_add_u32 s54, s54, s51")
    dma_tile("s[64:67]", 54, 61, 0)
    k(f"s_branch {lbd}")
    k.place(lvt)
    srd(k, 64, P_WO, 16*229376)
    k("v_lshrrev_b32 v9, 3, v0"); k("v_mul_u32_u24 v9, 896, v9"); k("v_and_b32 v11, 7, v0"); k("v_lshl_add_u32 v9, v11, 4, v9")
    k("s_mul_i32 s54, s49, 229376"); k("s_lshl_b32 s55, s48, 7"); k("s_add_u32 s54, s54, s55"); k(f"s_mul_i32 s55, s{S_WAVE}, {64*896}"); k("s_add_u32 s54, s54, s55")
    for i in range(8):
        k(f"s_add_u32 m0, s61, {i*1024}")
        k(f"buffer_load_dwordx4 v9, s[64:67], s54 offen lds")
        if i < 7: k(f"s_add_u32 s54, s54, {8*896}")
    k.place(lbd)
    def atile(j):
        i, t = j >> 1, j & 1
        k(f"s_add_u32 s54, s{S_WAVE}, {4*i}"); k("s_lshl_b32 s54, s54, 18"); k("s_add_u32 s54, s54, s51")
        if t: k(f"s_add_u32 s54, s54, {4*8192}")
        dma_tile("s[8:11]", 54, 60, (j & 1)*8192)
    def aread(j):
        for ks in range(8): k(f"ds_read_b128 {vr(256+j*32+ks*4,4)}, v{56+(ks&1)} offset:{(j&1)*8192 + (ks>>1)*1024}")
    if TL == 2: k("s_memrealtime s[70:71]")
    atile(0); atile(1)
    if TL == 2: k("s_memrealtime s[72:73]")
    k(f"s_lshl_b32 s46, s{sb}, 2"); k(f"s_add_u32 s46, s46, s{S_WAVE}")
    lo = k.label(); lk = k.label(); lv = k.label(); lj = k.label()
    def blk(base):
        k(f"s_sub_u32 s52, s46, {base}"); k("s_mul_i32 s53, s52, 4682"); k("s_lshr_b32 s53, s53, 16"); k("s_mul_i32 s54, s53, 14"); k("s_sub_u32 s54, s52, s54")
        k("s_lshl_b32 s52, s52, 10")
    k("s_cmp_ge_u32 s46, 812"); k(f"s_cbranch_scc1 {lv}")
    k("s_cmp_ge_u32 s46, 784"); k(f"s_cbranch_scc1 {lk}")
    k("s_cmp_ge_u32 s46, 392"); k(f"s_cbranch_scc1 {lo}")
    blk(0); srd(k, 64, P_BQ, 448*896); k("s_mov_b32 s55, 896"); k("s_lshl_b32 s53, s53, 4"); k("v_add_u32 v7, s53, v2"); k(f"s_add_u32 s52, s52, {L.WBQ}"); k(f"s_branch {lj}")
    k.place(lo)
    blk(392); srd(k, 64, P_BO, 448*896); k("s_mov_b32 s55, 896")
    k("s_and_b32 s56, s53, 1"); k("s_lshr_b32 s53, s53, 1"); k("s_lshl_b32 s53, s53, 5"); k("s_lshl_b32 s56, s56, 2"); k("s_add_u32 s53, s53, s56")
    k("v_add_u32 v7, s53, v4"); k(f"s_add_u32 s52, s52, {L.WBO}"); k(f"s_branch {lj}")
    k.place(lk)
    blk(784); srd(k, 64, P_BK, 448*56); k("s_mov_b32 s55, 56"); k("s_lshl_b32 s53, s53, 2"); k("v_add_u32 v7, s53, v4"); k(f"s_add_u32 s52, s52, {L.WBK}"); k(f"s_branch {lj}")
    k.place(lv)
    blk(812); srd(k, 64, P_BV, 448*56); k("s_mov_b32 s55, 56"); k("s_lshl_b32 s53, s53, 4"); k("v_add_u32 v7, s53, v2"); k(f"s_add_u32 s52, s52, {L.WBV}")
    k("s_cmp_ge_u32 s46, 840"); k(f"s_cselect_b32 s52, {L.SPARE[0]}, s52")
    k.place(lj)
    k("s_lshl_b32 s53, s54, 5"); k("v_lshlrev_b32 v12, 3, v3"); k("v_add_u32 v12, s53, v12"); k("v_mul_lo_u32 v12, v12, s55")
    k("v_lshlrev_b32 v11, 1, v7"); k("v_cmp_le_u32 vcc, s55, v11"); k("v_add_u32 v12, v12, v11"); k("v_mov_b32 v11, 0x7fffffff"); k("v_cndmask_b32 v12, v12, v11, vcc")
    k("s_mov_b32 s53, 0")
    for j in range(8):
        k(f"buffer_load_ushort v{48+j}, v12, s[64:67], s53 offen")
        if j < 7: k("s_add_u32 s53, s53, s55")
    k("s_waitcnt vmcnt(24)"); k("s_barrier")
    srd(k, 64, P_DBG, 256); k(f"v_mov_b32 v13, {DBG_INIT}")
    if TL == 2: k("s_memrealtime s[74:75]")
    lq2 = k.label(); lr2 = k.label()
    k("s_cmp_eq_u32 s50, 0"); k(f"s_cbranch_scc1 {lq2}")
    k("v_bfe_u32 v9, v0, 2, 2"); k("v_lshl_add_u32 v9, v3, 3, v9"); k("v_lshlrev_b32 v9, 7, v9"); k("v_and_b32 v11, 3, v0"); k("v_lshl_add_u32 v9, v11, 4, v9")
    for tt in range(4):
        for ks in range(8):
            for h in range(2):
                k(f"ds_read_b64_tr_b16 {vr(BA+(tt*8+ks)*4+2*h,2)}, v9 offset:{(32*ks+4*h)*128 + (32*(tt>>1)+4*(tt&1))*2}")
            if ks % 4 == 3: k("s_waitcnt lgkmcnt(4)")
    k(f"s_branch {lr2}")
    k.place(lq2)
    k("v_xor_b32 v11, 64, v10")
    for tt in range(4):
        for ks in range(8): k(f"ds_read_b128 {vr(BA+(tt*8+ks)*4,4)}, v{10+(ks&1)} offset:{tt*8192 + (ks>>1)*1024}")
        k("s_waitcnt lgkmcnt(4)")
    k.place(lr2)
    k("s_cmp_eq_u32 s50, 0")
    k(f"s_cselect_b32 s56, {hx(f2u(L.LOG2E/16))}, {hx(f2u(1.0))}")
    k(f"s_cselect_b32 s57, {L.WQ}, {L.WV}")
    k("s_mul_i32 s58, s49, 28"); k("s_lshl_b32 s59, s48, 2"); k("s_add_u32 s58, s58, s59")
    k(f"s_mul_i32 s58, s58, {14*1024}"); k("s_add_u32 s57, s57, s58")
    k(f"s_lshl_b32 s58, s{S_WAVE}, 10"); k(f"s_add_u32 s58, s58, {SLAB_LDS}"); k("v_add_u32 v9, s58, v6")
    ACC = [192, 16]; OB = 224
    fin = k.label()
    k(f"s_lshl_b32 s62, s{sb}, 7"); k(f"s_add_u32 s62, s62, {L.SF(0)}"); k(f"s_lshl_b32 s63, s{S_WAVE}, 2"); k("v_mov_b32 v60, s63")
    k(f"s_lshl_b32 s58, s{S_WAVE}, 10"); k("s_add_u32 s57, s57, s58")
    k("s_mov_b32 s56, s56"); k("v_mov_b32 v62, s56"); k("v_mov_b32 v63, s56")
    def epi(i):
        o_ = []
        for tt in range(4):
            o = OB + tt*4
            for t in range(2):
                d = ACC[i & 1] + (t*4+tt)*4
                o_ += [f"v_mul_f32 v{d+r}, s56, v{d+r}" for r in range(4)]
                o_ += [f"v_cvt_pk_bf16_f32 v{o+2*t}, v{d}, v{d+1}", f"v_cvt_pk_bf16_f32 v{o+2*t+1}, v{d+2}, v{d+3}"]
            o_ += [f"s_add_u32 s58, s57, {tt*14*1024 + i*4096}", f"buffer_store_dwordx4 {vr(o,4)}, v6, {WS}, s58 offen sc1", f"ds_write_b128 v9, {vr(o,4)} offset:{tt*14*1024 + i*4096}"]
        return o_
    def flag(n):
        k(f"v_mov_b32 v61, {n}"); k("s_mov_b64 exec, 1"); k(f"buffer_store_dword v61, v60, {WS}, s62 offen sc1"); k("s_mov_b64 exec, -1")
    def capture(fn):
        n0 = len(k.lines); fn(); o_ = k.lines[n0:]; del k.lines[n0:]; return o_
    for i in range(4):
        if i == 3:
            k(f"s_cmp_ge_u32 s{S_WAVE}, 2"); k(f"s_cbranch_scc1 {fin}")
        if TL == 2 and i == 0: k("s_memrealtime s[76:77]")
        younger = [8, 1, 4, 4][i]
        k(f"s_waitcnt vmcnt({8+younger})"); aread(2*i)
        k(f"s_waitcnt vmcnt({younger})"); aread(2*i+1)
        if i == 2:
            okz = k.label()
            k("v_cmp_ne_u32 vcc, 32, v14"); k(f"s_cbranch_vccz {okz}")
            wait_words(k, "0", 13, 14, 32, abort, nap=2, srd_="s[64:67]", wg=False)
            k.place(okz)
        if i == 3: flag(1)
        k("s_waitcnt lgkmcnt(0)")
        if TL == 2 and i in (0, 2): k(f"s_memrealtime s[{78+i}:{79+i}]")
        side = (capture(lambda: (atile(2*i+2), atile(2*i+3))) if i < 3 else []) + (epi(i-1) if i else ["buffer_load_dword v14, v13, s[64:67], 0 offen sc1"])
        main = [f"v_mfma_f32_16x16x32_bf16 {vr(ACC[i&1]+(t*4+tt)*4,4)}, {vr(256+i*64+t*32+ks*4,4)}, {vr(BA+(tt*8+ks)*4,4)}, {'0' if ks == 0 else vr(ACC[i&1]+(t*4+tt)*4,4)}"
                for ks in range(8) for t in range(2) for tt in range(4)]
        per = -(-len(side)//60)
        for n, m_ in enumerate(main):
            k(m_)
            if n >= 3:
                for x in side[(n-3)*per:(n-2)*per]: k(x)
    k("s_waitcnt vmcnt(4)"); flag(2)
    for x in epi(3): k(x)
    j3 = k.label(); k(f"s_branch {j3}")
    k.place(fin)
    k("s_waitcnt vmcnt(20)"); flag(1)
    for x in epi(2): k(x)
    k.place(j3)
    if TL == 2: k("s_memrealtime s[82:83]")
    for j in range(4): k(f"v_lshl_or_b32 v{12+j}, v{49+2*j}, 16, v{48+2*j}")
    k(f"buffer_store_dwordx4 v[12:15], v6, {WS}, s52 offen sc1")
    k("s_waitcnt vmcnt(0) lgkmcnt(0)")
    flag(4)
    tl(k, 14, 12, 0)
    if TL == 2:
        for j in range(7):
            k(f"v_mov_b32 v12, s{70+2*j}"); k(f"s_sub_u32 s46, s101, {4*(14-1-j)}"); k(f"buffer_store_dword v12, v13, {WS}, s46 offen")
        k("s_endpgm")
    nc = k.label()
    k("s_cmp_eq_u32 s50, 0"); k(f"s_cbranch_scc1 {nc}")
    for r in range(4): k(f"v_mov_b32 v{16+r}, -1")
    k(f"s_sub_u32 s46, s{sb}, 112"); k("s_lshl_b32 s46, s46, 2"); k(f"s_add_u32 s46, s46, s{S_WAVE}"); k("v_lshl_add_u32 v9, s46, 10, v6")
    full, rest = divmod(L.CLR_BYTES, 448*1024)
    k(f"v_cmp_gt_u32 vcc, {rest}, v9"); k("v_mov_b32 v10, 0x7fffffff"); k("v_cndmask_b32 v10, v10, v9, vcc")
    for l in range(2):
        for it in range(full + (1 if rest else 0)):
            k(f"s_mov_b32 s53, {L.HO[l] + L.MSTEP + it*448*1024}")
            k(f"buffer_store_dwordx4 v[16:19], v{9 if it < full else 10}, {WS}, s53 offen sc1")
    for base, size in ((L.MEMN[0] + L.DIRM*L.MEMSZ, (64-L.DIRM)*L.MEMSZ), (L.VM[0] + L.DIRM*L.VMSZ, (64-L.DIRM)*L.VMSZ), (L.PARTS[0] + 62*131072, 2*131072),
                       (L.XTB[0] + L.DIRX*28672, (64-L.DIRX)*28672), (L.KI[0] + L.DIRX*2048, (64-L.DIRX)*2048), (L.VI[0] + L.DIRX*2048, (64-L.DIRX)*2048)):
        while size > 0:
            if size < 448*1024:
                k(f"v_cmp_gt_u32 vcc, {size}, v9"); k("v_mov_b32 v10, 0x7fffffff"); k("v_cndmask_b32 v10, v10, v9, vcc")
            for l in range(2):
                k(f"s_mov_b32 s53, {base + l*L.LSTRIDE}"); k(f"buffer_store_dwordx4 v[16:19], v{10 if size < 448*1024 else 9}, {WS}, s53 offen sc1")
            base += 448*1024; size -= 448*1024
    k.place(nc)

def body_init(k, abort):
    lane_parts(k)
    srd(k, 8, P_X, L.XSZ)
    k("s_lshl_b32 s47, s59, 2"); k(f"s_add_u32 s47, s47, s{S_WAVE}")
    k("v_mul_u32_u24 v8, 896, v2"); k("v_lshl_add_u32 v8, v3, 4, v8")
    k(f"s_mul_i32 s48, s47, {16*896}")
    XP = 16; F = 72
    k("s_mov_b32 s49, s48")
    k("v_lshlrev_b32 v9, 7, v0"); k("s_lshl_b32 s48, s47, 10"); k("v_add_u32 v9, s48, v9"); k("v_mov_b64 v[12:13], 0"); k("v_mov_b64 v[14:15], 0")
    k("s_mov_b64 exec, 0xff")
    for l in range(2):
        k(f"s_mov_b32 s53, {L.CNT[l]}"); k(f"buffer_store_dwordx4 v[12:15], v9, {WS}, s53 offen sc1")
    k("s_mov_b64 exec, -1")
    for ks in range(14): k(f"buffer_load_dwordx4 {vr(XP+4*ks,4)}, v8, s[8:11], s49 offen offset:{ks*64}")
    k("s_waitcnt vmcnt(14)"); k("s_barrier")
    if TL == 2: tl(k, 1, 12, 0)
    srd(k, 64, P_DBG, 256)
    lz = k.label(); k(f"s_cmp_lg_u32 s{S_WAVE}, 0"); k(f"s_cbranch_scc1 {lz}")
    k(f"v_mov_b32 v12, {DBG_INIT}"); k("v_mov_b32 v13, 1"); signal(k, "0", 12, 13, "s[64:67]")
    k.place(lz)
    nom = k.label()
    k("s_cmp_lg_u32 s59, 31"); k(f"s_cbranch_scc1 {nom}")
    srd(k, 8, P_MEM0, 7168)
    k(f"s_lshl_b32 s48, s{S_WAVE}, 6"); k("v_add_u32 v8, s48, v0")
    k("v_and_b32 v9, 3, v8"); k("v_bfe_u32 v10, v8, 2, 3"); k("v_bfe_u32 v11, v8, 5, 1"); k("v_lshrrev_b32 v12, 6, v8")
    k("v_mul_u32_u24 v10, 896, v10"); k("v_lshl_add_u32 v10, v12, 5, v10"); k("v_lshl_add_u32 v10, v9, 3, v10"); k("v_lshl_add_u32 v10, v11, 2, v10")
    k("v_lshlrev_b32 v13, 2, v8")
    for p in range(7): k(f"buffer_load_dword v{76+p}, v10, s[8:11], 0 offen offset:{p*128}")
    k("v_and_b32 v9, 7, v8"); k("v_mul_u32_u24 v9, 896, v9"); k("v_lshrrev_b32 v11, 3, v8"); k("v_lshl_add_u32 v9, v11, 4, v9"); k("v_lshlrev_b32 v14, 4, v8")
    k("buffer_load_dwordx4 v[84:87], v9, s[8:11], 0 offen"); k("buffer_load_dwordx4 v[88:91], v9, s[8:11], 0 offen offset:512")
    k("v_add_u32 v15, 4096, v14"); k("v_cmp_gt_u32 vcc, 7168, v15"); k("v_mov_b32 v11, 0x7fffffff"); k("v_cndmask_b32 v15, v11, v15, vcc")
    k("s_waitcnt vmcnt(0)")
    for p in list(range(7)) + list(range(8, 16)): k(f"v_min_u32 v{76+p}, -2, v{76+p}")
    for l in range(2):
        k(f"s_mov_b32 s48, {L.MEM[l]}")
        for p in range(7):
            if p == 4: k("s_add_u32 s48, s48, 4096")
            k(f"buffer_store_dword v{76+p}, v13, {WS}, s48 offen offset:{(p%4)*1024} sc1")
        k(f"s_mov_b32 s48, {L.MEMN[l]}")
        k(f"buffer_store_dwordx4 v[84:87], v14, {WS}, s48 offen sc1"); k(f"buffer_store_dwordx4 v[88:91], v15, {WS}, s48 offen sc1")
    k.place(nom)
    k("s_waitcnt vmcnt(0)"); k("s_barrier")
    k("v_mov_b32 v12, s58"); k("s_lshl_b32 s46, s59, 2"); k("v_mov_b32 v13, s46")
    k("buffer_store_dword v12, v13, s[64:67], 0 offen offset:128 sc1")
    for i in range(56):
        k(f"v_lshlrev_b32 v{F+2*i}, 16, v{XP+i}"); k(f"v_and_b32 v{F+2*i+1}, 0xffff0000, v{XP+i}")
    k(f"v_add_f32 v9, v{F}, v{F+1}"); k(f"v_add_f32 v10, v{F+2}, v{F+3}")
    for i in range(4, 112, 2):
        k(f"v_add_f32 v9, v9, v{F+i}"); k(f"v_add_f32 v10, v10, v{F+i+1}")
    k("v_add_f32 v9, v9, v10")
    xreduce_g(k, 9, 10, "v_add_f32")
    k(f"v_mul_f32 v9, {hx(f2u(1/448))}, v9")
    for i in range(112): k(f"v_sub_f32 v{F+i}, v{F+i}, v9")
    k(f"v_mul_f32 v10, v{F}, v{F}"); k(f"v_mul_f32 v11, v{F+1}, v{F+1}")
    for i in range(2, 112, 2):
        k(f"v_fmac_f32 v10, v{F+i}, v{F+i}"); k(f"v_fmac_f32 v11, v{F+i+1}, v{F+i+1}")
    k("v_add_f32 v10, v10, v11")
    xreduce_g(k, 10, 11, "v_add_f32")
    k(f"v_mov_b32 v11, {hx(f2u(1e-5))}"); k(f"v_fmac_f32 v11, {hx(f2u(1/448))}, v10"); k("v_rsq_f32 v11, v11")
    for i in range(112): k(f"v_mul_f32 v{F+i}, v{F+i}, v11")
    for i in range(56): k(f"v_cvt_pk_bf16_f32 v{XP+i}, v{F+2*i}, v{F+2*i+1}")
    k(f"s_mul_i32 s48, s47, {14*1024}"); k(f"s_add_u32 s48, s48, {L.XTA[0]}")
    for ks in range(14):
        if ks % 4 == 0 and ks: k("s_add_u32 s48, s48, 4096")
        k(f"buffer_store_dwordx4 {vr(XP+4*ks,4)}, v6, {WS}, s48 offen offset:{(ks%4)*1024} sc1")
    k("s_waitcnt vmcnt(0)")
    if TL == 2:
        tl(k, 2, 12, 0); k("s_endpgm")
    k("s_mov_b32 s48, s47")
    wait_init(k, abort, 12)
    k("s_lshr_b32 s46, s48, 1"); k("s_lshl_b32 s46, s46, 7"); k(f"s_add_u32 s46, s46, {L.RC(0)}"); k("v_mov_b32 v12, 0"); k("v_mov_b32 v13, 16")
    signal(k, "s46", 12, 13, WS)

TIMEOUT = 1 << 21
SLEEP = 8

def wait_words(k, soff, vaddr, vt, target, abort, ge=False, nap=None, srd_=WL, wg=True, far=None):
    lp = k.label("Lwc"); ok = k.label("Lwo")
    if wg:
        k(f"s_cmp_lg_u32 s{S_WAVE}, 0"); k(f"s_cbranch_scc1 {ok}")
    k(f"s_mov_b32 s47, {TIMEOUT}")
    if far is not None:
        lf = k.label("Lwf"); near = k.label("Lwn")
        k(f"s_mov_b32 s46, {L.PROG(0)}")
        k.place(lf)
        k(f"v_mov_b32 v{vt}, 0")
        k(f"buffer_load_dword v{vt}, v{vt}, {WL}, s46 offen sc1")
        k("s_sub_u32 s47, s47, 1"); k(f"s_cbranch_scc1 {abort}")
        k("s_waitcnt vmcnt(0)")
        k(f"v_cmp_gt_i32 vcc, {far}, v{vt}")
        k(f"s_cbranch_vccz {near}")
        k("s_sleep 48")
        k(f"s_branch {lf}")
        k.place(near)
    k.place(lp)
    k(f"buffer_load_dword v{vt}, v{vaddr}, {srd_}, {soff} offen sc1")
    k("s_sub_u32 s47, s47, 1"); k(f"s_cbranch_scc1 {abort}")
    k("s_waitcnt vmcnt(0)")
    k(f"v_cmp_{'gt' if ge else 'ne'}_u32 vcc, {target}, v{vt}")
    k(f"s_cbranch_vccz {ok}")
    k(f"s_sleep {SLEEP if nap is None else nap}")
    k(f"s_branch {lp}")
    k.place(ok)
    if wg: k("s_barrier")

def gate(k, base, nshard, target, need, mark, v128, vt, abort, nap=0, napfar=40, greedy=True):
    ok = k.label("Lgo"); lp = k.label("Lgl")
    k(f"s_cmp_lt_u32 {need}, s{mark}"); k(f"s_cbranch_scc1 {ok}")
    k(f"s_mov_b32 s70, {TIMEOUT}")
    k(v128); k(f"v_and_b32 v{vt}, 0x780, v{vt}")
    k.place(lp)
    k(f"s_min_u32 s{mark}, s{mark}, 48"); k(f"s_lshl_b32 s{mark+1}, s{mark}, 7"); k(f"s_add_u32 s{mark+1}, s{mark+1}, {base}")
    k("s_mov_b64 exec, 0xffff")
    k(f"buffer_load_dword v{vt+1}, v{vt}, {WL}, s{mark+1} offen sc1")
    k("s_mov_b64 exec, -1")
    k("s_sub_u32 s70, s70, 1"); k(f"s_cbranch_scc1 {abort}")
    k("s_waitcnt vmcnt(0)")
    k(f"v_cmp_ne_u32 vcc, {target}, v{vt+1}")
    k(f"s_or_b32 s{mark+1}, vcc_lo, 0x10000"); k(f"s_ff1_i32_b32 s{mark+1}, s{mark+1}"); k(f"s_add_u32 s{mark}, s{mark}, s{mark+1}")
    k(f"s_cmp_eq_u32 s{mark+1}, 16"); k(f"s_cselect_b32 s{mark+1}, 1, 0")
    k(f"s_cmp_ge_u32 s{mark}, 64"); k(f"s_cselect_b32 s{mark}, 0x100, s{mark}"); k(f"s_cbranch_scc1 {ok}")
    if greedy:
        k(f"s_cmp_eq_u32 s{mark+1}, 1"); k(f"s_cbranch_scc1 {lp}")
    else:
        k(f"s_cmp_lt_u32 {need}, s{mark}"); k(f"s_cbranch_scc1 {ok}")
        k(f"s_cmp_eq_u32 s{mark+1}, 1"); k(f"s_cbranch_scc1 {lp}")
    if nap:
        k(f"s_cmp_lt_u32 {need}, s{mark}"); k(f"s_cbranch_scc1 {ok}")
        far = k.label("Lgf")
        k(f"s_add_u32 s{mark+1}, s{mark}, 1"); k(f"s_cmp_gt_u32 {need}, s{mark+1}"); k(f"s_cbranch_scc1 {far}")
        k(f"s_sleep {nap}"); k(f"s_branch {lp}")
        k.place(far); k(f"s_sleep {napfar}"); k(f"s_branch {lp}")
    else:
        k(f"s_cmp_lt_u32 {need}, s{mark}"); k(f"s_cbranch_scc0 {lp}")
    k.place(ok)

def signal(k, soff, vz, vone, srd_=WL, lanes=1):
    k(f"s_mov_b64 exec, {lanes}")
    k(f"buffer_atomic_add v{vone}, v{vz}, {srd_}, {soff} offen sc1")
    k("s_mov_b64 exec, -1")

TL = 0
TLROLE = ['t']
TLWG = 242
TLOFF = 0xF100000
def tl(k, idx, vt, per_layer=5):
    if not TL: return
    if TL == 5:
        tab = {('t', 0): 0, ('t', 15): 1, ('t', 1): 2, ('t', 2): 3, ('t', 4): 4, ('b', 15): 8, ('b', 5): 9}
        key = (TLROLE[0], idx)
        if key not in tab: return
        lz = k.label()
        k(f"s_cmp_lg_u32 s2, {0 if key[0] == 't' else TLWG}"); k(f"s_cbranch_scc1 {lz}")
        k("s_memrealtime s[84:85]"); srd(k, 88, P_DBG, 256); k("s_waitcnt lgkmcnt(0)")
        k(f"s_mul_i32 s85, s{S_LAYER}, {0 if idx in (0, 15) else (12 if key[0] == 't' else 4)}"); k(f"s_add_u32 s85, s85, {4*tab[key]}")
        k(f"v_mov_b32 v{vt}, s84"); k(f"v_mov_b32 v{vt+1}, 0"); k(f"buffer_store_dword v{vt}, v{vt+1}, s[88:91], s85 offen")
        k.place(lz); return
    k("s_memrealtime s[84:85]"); k("s_lshl_b32 s101, s2, 2"); k(f"s_add_u32 s101, s101, s{S_WAVE}"); k("s_lshl_b32 s101, s101, 6")
    k(f"s_add_u32 s101, s101, {TLOFF + 4*idx}"); k("s_waitcnt lgkmcnt(0)")
    k(f"s_mul_i32 s85, s{S_LAYER}, {4*per_layer}"); k("s_add_u32 s101, s101, s85")
    k(f"v_mov_b32 v{vt}, s84"); k(f"v_mov_b32 v{vt+1}, 0")
    k(f"buffer_store_dword v{vt}, v{vt+1}, {WS}, s101 offen")
    if TL == 3:
        k("s_memtime s[84:85]"); k("s_waitcnt lgkmcnt(0)"); k(f"v_mov_b32 v{vt}, s84"); k("s_add_u32 s101, s101, 0x10000")
        k(f"buffer_store_dword v{vt}, v{vt+1}, {WS}, s101 offen")

def code_touch(k, lab, nbytes, forward, v128, vd):
    h = k.label("Lpc")
    k("s_getpc_b64 s[82:83]"); k.place(h)
    k(f"s_add_u32 s82, s82, {lab}-{h}"); k(f"s_addc_u32 s83, s83, {0 if forward else -1}")
    if nbytes < 8192:
        k(f"v_min_u32 v{vd}, {nbytes-128}, v{v128}"); k(f"global_load_dword v{vd}, v{vd}, s[82:83]"); return
    for j in range(nbytes//8192):
        if j: k("s_add_u32 s82, s82, 8192"); k("s_addc_u32 s83, s83, 0")
        k(f"global_load_dword v{vd}, v{v128}, s[82:83]")

def slab_round_wait(k, r, soff, vaddr, vt, abort):
    ok = k.label("Lsr"); lp = k.label("Lsl")
    k(f"s_cmp_gt_u32 s55, {r}"); k(f"s_cbranch_scc1 {ok}")
    k(f"s_mov_b32 s70, {TIMEOUT}")
    k.place(lp)
    k(f"buffer_load_dword v{vt}, v{vaddr}, {WS}, {soff} offen sc1")
    k("s_sub_u32 s70, s70, 1"); k(f"s_cbranch_scc1 {abort}")
    k("s_waitcnt vmcnt(0)")
    k(f"v_cmp_gt_u32 vcc, 4, v{vt}"); k("s_cmp_eq_u64 vcc, 0"); k("s_cselect_b32 s55, 4, s55")
    k(f"v_cmp_ge_u32 vcc, {r}, v{vt}"); k(f"s_cbranch_vccz {ok}")
    k("s_sleep 2"); k(f"s_branch {lp}")
    k.place(ok)

def lane0_addr(k, vz, vone):
    k(f"v_mov_b32 v{vz}, 0"); k(f"v_mov_b32 v{vone}, 1")

def layer_begin(k):
    srd(k, 12, P_WS, L.WS_BYTES); k(f"s_mov_b32 s{S_LAYER}, 0")
def layer_next(k, top):
    k(f"s_add_u32 s12, s{P_WS}, {L.LSTRIDE}"); k(f"s_addc_u32 s13, s{P_WS+1}, 0"); k("s_and_b32 s13, s13, 0xffff")
    k(f"s_mov_b32 s14, {L.WS_BYTES - L.LSTRIDE}")
    k(f"s_add_u32 s{S_LAYER}, s{S_LAYER}, 1"); k(f"s_cmp_lt_u32 s{S_LAYER}, 2"); k(f"s_cbranch_scc1 {top}")

def slab_request(k, sb):
    no = k.label(); k(f"s_cmp_eq_u32 s{S_LAYER}, 1"); k(f"s_cbranch_scc1 {no}")
    div7(k, 53, 54, sb)
    k("s_and_b32 s55, s53, 15"); k("s_lshr_b32 s53, s53, 4"); k("s_cmp_eq_u32 s53, 0"); k(f"s_cselect_b32 s57, {L.WQ}, {L.WV}")
    k("s_mul_i32 s58, s55, 28"); k("s_lshl_b32 s59, s54, 2"); k("s_add_u32 s58, s58, s59"); k(f"s_add_u32 s58, s58, s{S_WAVE}")
    k(f"s_mul_i32 s58, s58, {14*1024}"); k("s_add_u32 s57, s57, s58")
    for i in range(14):
        if i % 4 == 0 and i: k("s_add_u32 s57, s57, 4096")
        k(f"buffer_load_dwordx4 {vr(128+4*i,4)}, v1, {WS}, s57 offen offset:{(i%4)*1024} sc1")
    k.place(no)

def slab_stage(k, younger, first=False):
    no = k.label()
    if not first:
        k(f"s_cmp_eq_u32 s{S_LAYER}, 1"); k(f"s_cbranch_scc1 {no}")
        k(f"s_mul_i32 s58, s{S_WAVE}, {14*1024}"); k(f"s_add_u32 s58, s58, {SLAB_LDS}"); k("v_add_u32 v2, s58, v1")
        k(f"s_waitcnt vmcnt({younger})"); k("s_barrier")
        for i in range(14): k(f"ds_write_b128 v2, {vr(128+4*i,4)} offset:{i*1024}")
    else: k("v_lshlrev_b32 v1, 4, v0")
    k(f"v_add_u32 v2, {SLAB_LDS}, v1")
    k("s_waitcnt lgkmcnt(0)"); k("s_barrier")
    for i in range(56):
        k(f"ds_read_b128 {vr(256+4*i,4)}, v2 offset:{i*1024}")
        if i % 12 == 11: k("s_waitcnt lgkmcnt(4)")
    k.place(no)

def body_gemm(k, sb, abort):
    div7(k, 47, 48, sb)
    k("s_and_b32 s49, s47, 15")
    k("s_lshr_b32 s50, s47, 4")
    k("v_lshlrev_b32 v1, 4, v0")
    k("s_cmp_eq_u32 s50, 0")
    k(f"s_mov_b32 s56, {L.UC(0)}"); k(f"s_cselect_b32 s56, {L.QC(0)}, s56")
    lane0_addr(k, 4, 5)
    k(f"s_lshl_b32 s58, s{S_WAVE}, 7"); k("s_add_u32 s56, s56, s58")
    k(f"s_and_b32 s58, s{sb}, 3"); k("s_lshl_b32 s58, s58, 13"); k("s_add_u32 s56, s56, s58")
    k("s_mov_b32 s96, 0"); k(f"s_mov_b32 s98, s{S_WAVE}")
    def xreg(buf, i):
        if buf == 0: return 16 + 4*i
        return 128 + 4*i if i < 20 else 256 + 224 + 4*(i-20)
    def loadx(buf):
        k("s_min_u32 s99, s98, 63")
        gate(k, L.RC(0), 1, 32, "s99", 96, "v_lshlrev_b32 v6, 3, v1", 6, abort, nap=3, napfar=3, greedy=False)
        k("s_add_u32 s98, s98, 4")
        for ks in range(14):
            if ks % 4 == 0:
                k(f"s_add_u32 s53, s52, {ks*1024}"); k(f"s_add_u32 s57, s52, {(14+ks)*1024}")
            for t in range(2):
                k(f"buffer_load_dwordx4 {vr(xreg(buf,t*14+ks),4)}, v1, {WL}, s{57 if t else 53} offen offset:{(ks%4)*1024} sc1")
        k(f"s_add_u32 s52, s52, {4*28*1024}")
    k(f"s_mul_i32 s52, s{S_WAVE}, {28*1024}"); k(f"s_add_u32 s52, s52, {L.XTA[0]}")
    if QDELAY:
        nq = k.label()
        k("s_cmp_lg_u32 s50, 0"); k(f"s_cbranch_scc1 {nq}")
        k(f"s_mov_b32 s46, {L.PROG(0)}"); wait_words(k, "s46", 4, 6, QDELAY, abort, ge=True, nap=32)
        k.place(nq)
    loadx(0)
    k("s_waitcnt vmcnt(28) lgkmcnt(0)"); k("s_barrier")
    tl(k, 2, 6)
    ACC = 208; O = 240
    lq = k.label(); end = k.label()
    k("s_cmp_eq_u32 s50, 0")
    k(f"s_cbranch_scc1 {lq}")
    for typ in (1, 0):
        if typ == 0: k.place(lq)
        k(f"s_lshl_b32 s54, s{S_WAVE}, 4"); k("s_add_u32 s54, s54, s49"); k(f"s_mul_i32 s54, s54, {28*1024}")
        if typ == 1:
            k("s_lshl_b32 s55, s48, 12"); k("s_add_u32 s54, s54, s55"); k(f"s_add_u32 s54, s54, {L.UU[0]}")
        else:
            k("s_lshl_b32 s55, s48, 11"); k("s_add_u32 s54, s54, s55"); k(f"s_add_u32 s54, s54, {L.QP[0]}")
        k("s_mov_b32 s51, 8")
        lp = k.label(); k.place(lp)
        for buf in range(2):
            for ks in range(14):
                for t in range(2):
                    k(f"s_waitcnt vmcnt({27 - 2*ks - t})")
                    for tt in range(4):
                        d = ACC + (t*4+tt)*4
                        c = "0" if ks == 0 else vr(d,4)
                        x = vr(xreg(buf, t*14+ks),4); w = vr(256+(tt*14+ks)*4,4)
                        if typ == 1: k(f"v_mfma_f32_16x16x32_bf16 {vr(d,4)}, {x}, {w}, {c}")
                        else:        k(f"v_mfma_f32_16x16x32_bf16 {vr(d,4)}, {w}, {x}, {c}")
            for u in range(4):
                if typ == 1: d0, d1 = ACC + u*4, ACC + (4+u)*4; off = u*1024; so = "s54"
                else:
                    t, pp = u >> 1, u & 1
                    d0, d1 = ACC + (t*4+2*pp)*4, ACC + (t*4+2*pp+1)*4; off = pp*1024; so = "s54" if t == 0 else "s55"
                    if u == 2: k(f"s_add_u32 s55, s54, {14*1024}")
                o = O + 4*u
                k(f"v_cvt_pk_bf16_f32 v{o}, v{d0}, v{d0+1}"); k(f"v_cvt_pk_bf16_f32 v{o+1}, v{d0+2}, v{d0+3}")
                k(f"v_cvt_pk_bf16_f32 v{o+2}, v{d1}, v{d1+1}"); k(f"v_cvt_pk_bf16_f32 v{o+3}, v{d1+2}, v{d1+3}")
                k(f"buffer_store_dwordx4 {vr(o,4)}, v1, {WL}, {so} offen offset:{off} sc1")
            k(f"s_add_u32 s54, s54, {4*16*28*1024}")
            k("s_waitcnt vmcnt(0)")
            signal(k, "s56", 4, 5)
            loadx(1-buf)
            if TL and buf == 0:
                lz = k.label(); k("s_cmp_lg_u32 s51, 8"); k(f"s_cbranch_scc1 {lz}"); tl(k, 3, 6); k.place(lz)
            k("s_add_u32 s56, s56, 512")
        k("s_sub_u32 s51, s51, 1"); k("s_cmp_lg_u32 s51, 0"); k(f"s_cbranch_scc1 {lp}")
        if typ == 1: k(f"s_branch {end}")
    k.place(end)
    k("s_waitcnt vmcnt(0)")

def gen_empty():
    k = K("empty_kernel", 32, 32, 48)
    k("s_endpgm")
    return k
```

```python
from gen import *
import gen

ATCH = 0
NEG = hx(f2u(-1e9*L.LOG2E))
NINF = hx(f2u(-3.0e38))
OOB = 0x40000000

def mf16(d, a, b, c): return f"v_mfma_f32_16x16x32_bf16 {vr(d,4)}, {vr(a,4)}, {vr(b,4)}, {'0' if c is None else vr(c,4)}"
def mf32(d, a, b, c): return f"v_mfma_f32_32x32x16_bf16 {vr(d,16)}, {vr(a,4)}, {vr(b,4)}, {'0' if c is None else vr(c,16)}"

def loads(k, regs, vaddr, sbase, stmp, flags="", WS=WL):
    cur = sbase
    for n, r in enumerate(regs):
        if n % 4 == 0 and n:
            k(f"s_add_u32 s{stmp}, s{cur}, 4096"); cur = stmp
        k(f"buffer_load_dwordx4 {vr(r,4)}, v{vaddr}, {WS}, s{cur} offen offset:{(n%4)*1024}{flags}")

def ln_epilogue(k, acc, nq, XRES, TMP, PK, V_ST, STATS, res_store, xn_store, done_label):
    def pairs(body):
        for pp in range(4):
            lab = None
            if pp == 3:
                lab = k.label(); k(f"s_cmp_ge_u32 s{S_WAVE}, 2"); k(f"s_cbranch_scc1 {lab}")
            body(pp)
            if lab: k.place(lab)
    SUM = TMP; T = TMP + 4
    for q in range(nq): k(f"v_mov_b32 v{SUM+q}, 0")
    def b1(pp):
        for q in range(nq):
            x = XRES(pp, q)
            for t in range(2):
                a = acc(pp, q, t)
                for h in range(2):
                    k(f"v_lshlrev_b32 v{T}, 16, v{x+2*t+h}"); k(f"v_and_b32 v{T+1}, 0xffff0000, v{x+2*t+h}")
                    k(f"v_add_f32 v{a+2*h}, v{a+2*h}, v{T}"); k(f"v_add_f32 v{a+2*h+1}, v{a+2*h+1}, v{T+1}")
                    k(f"v_cvt_pk_bf16_f32 v{x+2*t+h}, v{a+2*h}, v{a+2*h+1}")
                if True:
                    k(f"v_add_f32 v{T}, v{a}, v{a+1}"); k(f"v_add_f32 v{T+1}, v{a+2}, v{a+3}")
                    k(f"v_add_f32 v{SUM+q}, v{SUM+q}, v{T}"); k(f"v_add_f32 v{SUM+q}, v{SUM+q}, v{T+1}")
            res_store(pp, q, x)
    pairs(b1)
    k(f"s_cmp_eq_u32 s{S_LAYER}, 1"); k(f"s_cbranch_scc1 {done_label}")
    def exchange(off):
        for q in range(nq): xreduce_g(k, SUM+q, T, "v_add_f32")
        for q in range(nq): k(f"ds_write_b32 v{V_ST}, v{SUM+q} offset:{STATS+off+q*256}")
        k("s_waitcnt lgkmcnt(0)"); k("s_barrier")
        for q in range(nq): k(f"ds_read_b128 {vr(PK+4*q,4)}, v{V_ST+1} offset:{STATS+off+q*256}")
        k("s_waitcnt lgkmcnt(0)")
        for q in range(nq):
            k(f"v_add_f32 v{PK+4*q}, v{PK+4*q}, v{PK+4*q+1}"); k(f"v_add_f32 v{PK+4*q+2}, v{PK+4*q+2}, v{PK+4*q+3}")
            k(f"v_add_f32 v{SUM+q}, v{PK+4*q}, v{PK+4*q+2}")
    exchange(0)
    MU = TMP + 2
    for q in range(nq):
        k(f"v_mul_f32 v{MU+q}, {hx(f2u(1/448))}, v{SUM+q}"); k(f"v_mov_b32 v{SUM+q}, 0")
    def b2(pp):
        for q in range(nq):
            for t in range(2):
                a = acc(pp, q, t)
                for r in range(4):
                    k(f"v_sub_f32 v{a+r}, v{a+r}, v{MU+q}"); k(f"v_fmac_f32 v{SUM+q}, v{a+r}, v{a+r}")
    pairs(b2)
    exchange(512)
    for q in range(nq):
        k(f"v_mov_b32 v{MU+q}, {hx(f2u(1e-5))}"); k(f"v_fmac_f32 v{MU+q}, {hx(f2u(1/448))}, v{SUM+q}"); k(f"v_rsq_f32 v{MU+q}, v{MU+q}")
    def b3(pp):
        for q in range(nq):
            o = PK + 4*((pp*nq + q) & 1)
            for t in range(2):
                a = acc(pp, q, t)
                for r in range(4): k(f"v_mul_f32 v{a+r}, v{a+r}, v{MU+q}")
                k(f"v_cvt_pk_bf16_f32 v{o+2*t}, v{a}, v{a+1}"); k(f"v_cvt_pk_bf16_f32 v{o+2*t+1}, v{a+2}, v{a+3}")
            xn_store(pp, q, o)
    pairs(b3)

A4_PX = 0; A4_PM = 8192; A4_DUM = 10240; A4_ST = 12288; A4_XL = 13312; A4_LDS = A4_XL + 8192

def softmax_seg(k, S):
    k(f"v_mov_b32 v11, {NEG}"); k(f"v_mov_b32 v12, {NINF}")
    for r in range(4):
        k(f"v_cndmask_b32 v{S+4+r}, v12, v{S+4+r}, s[80:81]")
        k(f"v_cndmask_b32 v{S+16+r}, v12, v{S+16+r}, s[80:81]")
    grp = [list(range(S, S+8)), list(range(S+8, S+20))]
    MX = [36, 37]; T = 38
    for q in range(2):
        m = S+4 if q == 0 else S+16
        k(f"v_max3_f32 v{MX[q]}, v{52+q}, v{m}, v{m+1}"); k(f"v_max3_f32 v{MX[q]}, v{MX[q]}, v{m+2}, v{m+3}")
    for q in range(2):
        k(f"v_mov_b32 v{T+q}, v{MX[q]}")
    for q in range(2): k(f"v_permlane16_swap_b32 v{MX[q]}, v{T+q}")
    for q in range(2): k(f"v_max_f32 v{MX[q]}, v{MX[q]}, v{T+q}")
    for q in range(2): k(f"v_mov_b32 v{T+q}, v{MX[q]}")
    for q in range(2): k(f"v_permlane32_swap_b32 v{MX[q]}, v{T+q}")
    for q in range(2): k(f"v_max_f32 v{MX[q]}, v{MX[q]}, v{T+q}")
    for q in range(2):
        for x in grp[q]: k(f"v_sub_f32 v{x}, v{x}, v{MX[q]}")
        for x in grp[q]: k(f"v_exp_f32 v{x}, v{x}")
    for q in range(2):
        g = grp[q]
        k(f"v_add_f32 v{MX[q]}, v{g[0]}, v{g[1]}"); k(f"v_add_f32 v{T+q}, v{g[2]}, v{g[3]}")
        for i in range(4, len(g), 2):
            k(f"v_add_f32 v{MX[q]}, v{MX[q]}, v{g[i]}"); k(f"v_add_f32 v{T+q}, v{T+q}, v{g[i+1]}")
        k(f"v_add_f32 v{MX[q]}, v{MX[q]}, v{T+q}")
    for q in range(2): k(f"v_mov_b32 v{T+q}, v{MX[q]}")
    for q in range(2): k(f"v_permlane16_swap_b32 v{MX[q]}, v{T+q}")
    for q in range(2): k(f"v_add_f32 v{MX[q]}, v{MX[q]}, v{T+q}")
    for q in range(2): k(f"v_mov_b32 v{T+q}, v{MX[q]}")
    for q in range(2): k(f"v_permlane32_swap_b32 v{MX[q]}, v{T+q}")
    for q in range(2): k(f"v_add_f32 v{MX[q]}, v{MX[q]}, v{T+q}")
    for q in range(2): k(f"v_rcp_f32 v{MX[q]}, v{MX[q]}")
    for q in range(2):
        for x in grp[q]: k(f"v_mul_f32 v{x}, v{x}, v{MX[q]}")
    W = 40
    k(f"v_cvt_pk_bf16_f32 v{W}, v{S}, v{S+1}"); k(f"v_cvt_pk_bf16_f32 v{W+1}, v{S+2}, v{S+3}"); k(f"v_mov_b64 {vr(W+2,2)}, 0")
    k(f"v_cvt_pk_bf16_f32 v{W+4}, v{S+8}, v{S+9}"); k(f"v_cvt_pk_bf16_f32 v{W+5}, v{S+10}, v{S+11}")
    k(f"v_cvt_pk_bf16_f32 v{W+6}, v{S+12}, v{S+13}"); k(f"v_cvt_pk_bf16_f32 v{W+7}, v{S+14}, v{S+15}")
    k(f"v_cvt_pk_bf16_f32 v{W+8}, v{S+4}, v{S+5}"); k(f"v_cvt_pk_bf16_f32 v{W+9}, v{S+6}, v{S+7}")
    k(f"v_cvt_pk_bf16_f32 v{W+10}, v{S+16}, v{S+17}"); k(f"v_cvt_pk_bf16_f32 v{W+11}, v{S+18}, v{S+19}")

def group_same_die(k, abort):
    k("s_getreg_b32 s94, hwreg(HW_REG_XCC_ID)"); k("s_and_b32 s94, s94, 15"); k("s_add_u32 s94, s94, 1")
    k("s_lshr_b32 s49, s93, 2"); k("s_lshl_b32 s49, s49, 7"); k(f"s_add_u32 s49, s49, {L.AX(0)}")
    k("s_and_b32 s46, s93, 3"); k("s_lshl_b32 s46, s46, 2"); k("v_mov_b32 v2, s46"); k("v_mov_b32 v3, s94")
    k("s_mov_b64 exec, 1"); k(f"buffer_store_dword v3, v2, {WL}, s49 offen sc1"); k("s_mov_b64 exec, -1")
    k("v_and_b32 v2, 3, v0"); k("v_lshlrev_b32 v2, 2, v2")
    wait_words(k, "s49", 2, 3, 1, abort, ge=True, nap=4, wg=False)
    k("v_cmp_ne_u32 vcc, s94, v3"); k("s_cmp_eq_u64 vcc, 0"); k("s_cselect_b32 s94, 1, 0")

def body_attnA4(k, abort):
    U = 256; XK = 256+128; VMR = 256+128; MK = 256+160; Q = 64; XRS = 176; S = 16; P = 16; OUT = 192
    k("v_lshlrev_b32 v1, 4, v0"); k("v_and_b32 v2, 15, v0"); k("v_lshrrev_b32 v3, 4, v0")
    k("v_lshlrev_b32 v4, 2, v3")
    for r in range(4):
        k(f"v_add_u32 v5, {r}, v4"); k(f"v_cmp_le_u32 s[{72+2*r}:{73+2*r}], v5, v2")
    k("v_cmp_gt_u32 s[80:81], 2, v3")
    k("v_bfe_u32 v5, v0, 1, 1"); k("v_lshlrev_b32 v5, 2, v5"); k("v_bfe_u32 v6, v0, 2, 1"); k("v_lshl_add_u32 v5, v6, 1, v5")
    k("v_and_b32 v6, 1, v0"); k("v_add_u32 v5, v5, v6"); k("v_lshlrev_b32 v5, 4, v5"); k("v_lshl_add_u32 v5, v3, 7, v5")
    k(f"s_lshl_b32 s46, s{S_WAVE}, 11"); k("v_add_u32 v6, s46, v1")
    k(f"s_lshl_b32 s46, s{S_WAVE}, 8"); k(f"s_add_u32 s46, s46, {A4_PM}")
    k("v_lshlrev_b32 v7, 4, v2"); k("v_lshl_add_u32 v7, v3, 3, v7"); k("v_add_u32 v7, s46, v7")
    k(f"v_mov_b32 v8, {A4_DUM}"); k("v_cndmask_b32 v7, v8, v7, s[80:81]")
    k(f"s_lshl_b32 s61, s{S_WAVE}, 2"); k(f"s_cmp_eq_u32 s{S_WAVE}, 3"); k("s_cselect_b32 s61, 11, s61")
    k("s_lshl_b32 s48, s60, 7"); k(f"s_add_u32 s49, s48, {L.UC(0)}")
    k("v_and_b32 v12, 7, v0"); k("v_lshlrev_b32 v12, 13, v12")
    wait_words(k, "s49", 12, 13, 28, abort)
    k("s_lshl_b32 s63, s60, 2"); k("s_add_u32 s63, s63, s71"); k("s_lshl_b32 s63, s63, 2")
    k(f"s_add_u32 s46, s63, s{S_WAVE}"); k(f"s_mul_i32 s52, s46, {28*1024}"); k("v_lshlrev_b32 v12, 7, v0"); k("v_min_u32 v13, 4096-128, v12")
    for base in ((L.QP[0], L.UU[0]) if ATCH else ()):
        for j in range(4):
            k(f"s_add_u32 s46, s52, {base + j*8192}"); k(f"buffer_load_dword v14, v{12 if j < 3 else 13}, {WL}, s46 offen sc1")
    k(f"s_mul_i32 s46, s60, {28*1024}"); k(f"s_add_u32 s46, s46, {L.XTA[0]}")
    loads(k, [XK+4*i for i in range(28)], 1, 46, 47, " sc1")
    k(f"s_add_u32 s46, s52, {L.QP[0]}"); k("s_waitcnt vmcnt(28)")
    loads(k, [Q+4*i for i in range(28)], 1, 46, 47, " sc1")
    k(f"s_mul_i32 s64, s63, {28*1024}"); k("s_lshl_b32 s46, s61, 11"); k("s_add_u32 s64, s64, s46"); k(f"s_add_u32 s64, s64, {L.UU[0]}")
    k(f"s_mul_i32 s65, s63, {7*1024}"); k("s_add_u32 s65, s65, s46"); k(f"s_add_u32 s65, s65, {L.VM[0]}")
    k("v_and_b32 v11, 7, v0"); k("v_bfe_u32 v12, v0, 3, 1")
    k("v_mul_u32_u24 v8, 896, v11"); k("v_lshl_add_u32 v8, v3, 4, v8"); k("v_lshl_add_u32 v8, v12, 6, v8")
    k("v_lshlrev_b32 v13, 4, v11"); k("v_lshl_add_u32 v13, v3, 7, v13"); k("v_lshl_add_u32 v15, v12, 15, v13"); k("v_lshl_add_u32 v13, v12, 9, v13")
    k("v_lshlrev_b32 v14, 4, v11"); k("v_lshl_add_u32 v14, v3, 8, v14"); k("v_lshl_add_u32 v14, v12, 10, v14")
    k(f"s_lshl_b32 s46, s{S_WAVE}, 2"); k("v_lshlrev_b32 v10, 4, v11"); k("v_add_u32 v9, s46, v10")
    k(f"s_cmp_ge_u32 s{S_WAVE}, 2"); k("s_cselect_b32 s46, 1, 2"); k("v_cmp_ne_u32 s[82:83], s46, v12")
    k("s_lshl_b32 s62, s60, 2"); k("s_add_u32 s62, s62, s71"); k(f"s_mul_i32 s62, s62, {8*896}"); k("s_lshl_b32 s46, s61, 6"); k("s_add_u32 s62, s62, s46")
    k(f"s_add_u32 s8, s{P_WS}, {L.XR1}"); k(f"s_addc_u32 s9, s{P_WS+1}, 0"); k(f"s_cmp_eq_u32 s{S_LAYER}, 0")
    k(f"s_cselect_b32 s8, s{P_X}, s8"); k(f"s_cselect_b32 s9, s{P_X+1}, s9"); k("s_and_b32 s9, s9, 0xffff")
    k(f"s_mov_b32 s10, {L.XSZ}"); k("s_mov_b32 s11, 0x20000")
    k("s_waitcnt vmcnt(28)")
    for hh in range(4):
        k(f"s_add_u32 s46, s64, {hh*28*1024}")
        loads(k, [U+(hh*8+i)*4 for i in range(8)], 1, 46, 47, " sc1")
    for j in range(2):
        k(f"buffer_load_dwordx4 {vr(XRS+4*j,4)}, v8, s[8:11], s62 offen offset:{j*128} sc1")
    k("s_waitcnt vmcnt(34)")
    for ks in range(14):
        c = lambda i: None if ks == 0 else S+4*i
        k(mf16(S+0, XK+4*ks, Q+4*ks, c(0)))
        k(mf16(S+8, XK+4*ks, Q+4*(14+ks), c(2)))
        k(mf16(S+12, XK+4*(14+ks), Q+4*(14+ks), c(3)))
    k(f"v_mov_b32 v11, {NEG}")
    for r in range(4):
        k(f"v_cndmask_b32 v{S+r}, v11, v{S+r}, s[{72+2*r}:{73+2*r}]")
        k(f"v_cndmask_b32 v{S+12+r}, v11, v{S+12+r}, s[{72+2*r}:{73+2*r}]")
    k(f"v_max3_f32 v52, v{S}, v{S+1}, v{S+2}"); k(f"v_max_f32 v52, v52, v{S+3}")
    k(f"v_max3_f32 v53, v{S+8}, v{S+9}, v{S+10}")
    for i in (11, 13): k(f"v_max3_f32 v53, v53, v{S+i}, v{S+i+1}")
    k(f"v_max_f32 v53, v53, v{S+15}")
    ntch = k.label()
    k("s_cmp_lt_u32 s60, 62"); k(f"s_cbranch_scc1 {ntch}")
    k("s_lshl_b32 s46, s60, 17"); k("s_lshl_b32 s47, s71, 15"); k("s_add_u32 s46, s46, s47"); k(f"s_lshl_b32 s47, s{S_WAVE}, 13"); k("s_add_u32 s46, s46, s47")
    k(f"s_add_u32 s46, s46, {L.PARTS[0]}"); k("v_lshlrev_b32 v54, 7, v0"); k(f"buffer_load_dword v55, v54, {WL}, s46 offen sc1")
    k.place(ntch)
    k(f"s_mov_b32 s49, {L.PROG(0)}"); k("s_add_u32 s50, s60, 2"); k("s_sub_u32 s51, s60, 1"); k(f"s_cmp_ge_u32 s60, {L.DIRM}"); k("s_cselect_b32 s50, s51, s50")
    k("v_mov_b32 v54, 0"); k("s_waitcnt vmcnt(0)"); k("s_sub_u32 s51, s50, 2")
    wait_words(k, "s49", 54, 55, "s50", abort, ge=True, nap=1, far="s51")
    k(f"s_mul_i32 s52, s60, {L.MEMSZ}"); k(f"s_add_u32 s52, s52, {L.MEMN[0]}"); k("s_add_u32 s53, s52, 4096"); k(f"s_mov_b32 s70, {TIMEOUT}")
    MV = 192
    lmk = k.label("Lmk"); k.place(lmk)
    for ks in range(14): k(f"buffer_load_dwordx4 {vr(MV+4*ks,4)}, v5, {WL}, s{52 if ks < 8 else 53} offen offset:{(ks%8)*512} sc1")
    k("s_sub_u32 s70, s70, 1"); k(f"s_cbranch_scc1 {abort}")
    for ks in range(14):
        k(f"s_waitcnt vmcnt({13-ks})")
        c = lambda i: None if ks == 0 else S+4*i
        k(mf16(S+4, MV+4*ks, Q+4*ks, c(1)))
        k(f"v_max3_u32 v54, v{MV+4*ks}, v{MV+4*ks+1}, {'v54' if ks else f'v{MV}'}")
        k(mf16(S+16, MV+4*ks, Q+4*(14+ks), c(4)))
        k(f"v_max3_u32 v54, v{MV+4*ks+2}, v{MV+4*ks+3}, v54")
    k("v_cmp_eq_u32 vcc, -1, v54"); k(f"s_cbranch_vccnz {lmk}")
    gen.tl(k, 2, 54)
    VV = 120
    loads(k, [VV+4*i for i in range(8)], 1, 65, 47, " sc1")
    for i in range(32): k(f"v_mov_b64 {vr(OUT+2*i,2)}, 0")
    k(f"s_mul_i32 s46, s{S_WAVE}, {14*1024}"); k(f"s_add_u32 s46, s46, {L.WBK}")
    assert L.WBV == L.WBK + 28*1024
    loads(k, [Q+4*i for i in range(14)], 1, 46, 47, " sc1", WS)
    softmax_seg(k, S)
    W = 40
    k(f"ds_write_b128 v6, {vr(W,4)}"); k(f"ds_write_b128 v6, {vr(W+4,4)} offset:1024")
    k(f"ds_write_b64 v7, {vr(W+8,2)}"); k(f"ds_write_b64 v7, {vr(W+10,2)} offset:1024")
    k("s_waitcnt lgkmcnt(0)"); k("s_barrier")
    for i in range(8): k(f"ds_read_b128 {vr(P+4*i,4)}, v1 offset:{A4_PX+i*1024}")
    for q in range(2): k(f"ds_read_b128 {vr(P+32+4*q,4)}, v1 offset:{A4_PM+q*1024}")
    k("s_lshl_b32 s66, s60, 17"); k("s_lshl_b32 s46, s71, 13"); k("s_add_u32 s66, s66, s46"); k("s_lshl_b32 s46, s61, 9"); k("s_add_u32 s66, s66, s46")
    k(f"s_add_u32 s66, s66, {L.PARTS[0]}"); k("s_add_u32 s67, s66, 65536")
    k("s_waitcnt lgkmcnt(0)")
    gen.tl(k, 4, 56)
    skip = k.label()
    for pp in range(4):
        if pp == 3:
            k(f"s_cmp_ge_u32 s{S_WAVE}, 2"); k(f"s_cbranch_scc1 {skip}")
        for hh in range(4):
            for t in range(2):
                for q in range(2):
                    i = 2*pp + t; o = OUT + (i*2 + q)*4
                    k(mf16(o, U+(hh*8+i)*4, P + (hh*2+q)*4, o))
    k.place(skip)
    lvm = k.label("Lvm"); lvk = k.label("Lvk")
    k.place(lvm)
    k("s_waitcnt vmcnt(0)")
    k(f"v_max3_u32 v56, v{VV}, v{VV+1}, v{VV+2}")
    for i in range(3, 23, 2): k(f"v_max3_u32 v56, v56, v{VV+i}, v{VV+i+1}")
    k(f"v_max_u32 v56, v56, v{VV+23}"); k(f"v_max3_u32 v57, v{VV+24}, v{VV+25}, v{VV+26}")
    for i in (27, 29): k(f"v_max3_u32 v57, v57, v{VV+i}, v{VV+i+1}")
    k(f"v_max_u32 v57, v57, v{VV+31}")
    k(f"s_cmp_ge_u32 s{S_WAVE}, 2"); k("s_cselect_b32 s46, 0, -1"); k("v_and_b32 v57, s46, v57"); k("v_max_u32 v56, v56, v57")
    k("v_cmp_eq_u32 vcc, -1, v56"); k(f"s_cbranch_vccz {lvk}")
    k("s_sub_u32 s70, s70, 1"); k(f"s_cbranch_scc1 {abort}")
    loads(k, [VV+4*i for i in range(8)], 1, 65, 47, " sc1")
    k(f"s_branch {lvm}")
    k.place(lvk)
    gen.tl(k, 5, 56)
    for i in range(8):
        for q in range(2):
            o = OUT + (i*2 + q)*4
            k(mf16(o, VV+4*i, P + (8+q)*4, o))
    skip = k.label(); wide = k.label()
    k("s_cmp_ge_u32 s60, 62"); k("s_cselect_b32 s46, s94, 0"); k("s_cmp_eq_u32 s46, 0"); k(f"s_cbranch_scc1 {wide}")
    for fl in ("", " sc1"):
        if fl: k.place(wide)
        for pp in range(4):
            if pp == 3:
                k(f"s_cmp_ge_u32 s{S_WAVE}, 2"); k(f"s_cbranch_scc1 {skip}")
            pack_store(k, OUT, pp, 56 if pp & 1 else 128, fl)
        if not fl: k(f"s_branch {skip}")
    k.place(skip)
    gen.tl(k, 11, 56, 2)
    direct = k.label("Ldir")
    k("s_cmp_ge_u32 s60, 62"); k(f"s_cbranch_scc1 {direct}")
    k("s_waitcnt vmcnt(0)"); k("s_barrier")
    lz = k.label(); k(f"s_cmp_lg_u32 s{S_WAVE}, 0"); k(f"s_cbranch_scc1 {lz}")
    lane0_addr(k, 56, 57); k(f"s_add_u32 s46, s48, {L.PC(0)}"); signal(k, "s46", 56, 57)
    k.place(lz)
    k(f"s_add_u32 s49, s48, {L.PC(0)}"); k("v_mov_b32 v54, 0"); wait_words(k, "s49", 54, 55, 4, abort, nap=1)
    k.place(direct)
    k("s_lshl_b32 s66, s60, 17"); k("s_lshl_b32 s46, s71, 15"); k("s_add_u32 s66, s66, s46"); k("s_lshl_b32 s46, s61, 9"); k("s_add_u32 s66, s66, s46")
    k(f"s_add_u32 s66, s66, {L.PARTS[0]}")
    PT = 16; F = 192
    lpt = k.label("Lpt"); k.place(lpt)
    for src in range(4):
        k(f"s_add_u32 s67, s66, {src*8192}")
        for j in range(2): k(f"buffer_load_dwordx4 {vr(PT+(src*2+j)*4,4)}, v13, {WL}, s67 offen offset:{j*1024} sc1")
    k("s_sub_u32 s70, s70, 1"); k(f"s_cbranch_scc1 {abort}")
    for i in range(8):
        k(f"v_lshlrev_b32 v{F+2*i}, 16, v{XRS+i}"); k(f"v_and_b32 v{F+2*i+1}, 0xffff0000, v{XRS+i}")
    k("v_mov_b32 v56, 0"); k("v_mov_b32 v57, 0")
    for src in range(4):
        k(f"s_waitcnt vmcnt({6-2*src})")
        for j in range(2):
            b_ = PT + src*8 + 4*j
            k(f"v_max3_u32 v{56+j}, v{56+j}, v{b_}, v{b_+1}"); k(f"v_max3_u32 v{56+j}, v{56+j}, v{b_+2}, v{b_+3}")
        for i in range(8):
            k(f"v_lshlrev_b32 v54, 16, v{PT+src*8+i}"); k(f"v_and_b32 v55, 0xffff0000, v{PT+src*8+i}")
            k(f"v_pk_add_f32 {vr(F+2*i,2)}, {vr(F+2*i,2)}, v[54:55]")
    k("v_cndmask_b32 v57, 0, v57, s[82:83]"); k("v_max_u32 v56, v56, v57"); k("v_cmp_eq_u32 vcc, -1, v56"); k(f"s_cbranch_vccnz {lpt}")
    gen.tl(k, 12, 56, 2)
    for i in range(8): k(f"v_cvt_pk_bf16_f32 v{XRS+i}, v{F+2*i}, v{F+2*i+1}")
    k("v_mov_b32 v11, 0x7fffffff"); k("v_cndmask_b32 v12, v11, v8, s[82:83]")
    k(f"s_add_u32 s46, s62, {L.XRA[0]}")
    k(f"buffer_store_dwordx4 {vr(XRS,4)}, v8, {WL}, s46 offen sc1"); k(f"buffer_store_dwordx4 {vr(XRS+4,4)}, v12, {WL}, s46 offen offset:128 sc1")
    def rowsum(off, sq):
        for j in range(2):
            b = F + 8*j
            if sq:
                k(f"v_mul_f32 v{54+j}, v{b}, v{b}")
                for i in range(1, 8): k(f"v_fmac_f32 v{54+j}, v{b+i}, v{b+i}")
            else:
                k(f"v_add_f32 v{54+j}, v{b}, v{b+1}")
                for i in range(2, 8): k(f"v_add_f32 v{54+j}, v{54+j}, v{b+i}")
        k("v_cndmask_b32 v55, 0, v55, s[82:83]"); k("v_add_f32 v54, v54, v55")
        k("v_add_f32_dpp v54, v54, v54 row_ror:8 row_mask:0xf bank_mask:0xf")
        xreduce_g(k, 54, 55, "v_add_f32")
        k(f"ds_write_b32 v9, v54 offset:{A4_ST+off}"); k("s_waitcnt lgkmcnt(0)"); k("s_barrier")
        k(f"ds_read_b128 v[56:59], v10 offset:{A4_ST+off}"); k("s_waitcnt lgkmcnt(0)")
        k("v_add_f32 v56, v56, v57"); k("v_add_f32 v58, v58, v59"); k("v_add_f32 v54, v56, v58")
    rowsum(0, False)
    k(f"v_mul_f32 v54, {hx(f2u(1/448))}, v54")
    for i in range(16): k(f"v_sub_f32 v{F+i}, v{F+i}, v54")
    rowsum(256, True)
    k(f"v_mov_b32 v55, {hx(f2u(1e-5))}"); k(f"v_fmac_f32 v55, {hx(f2u(1/448))}, v54"); k("v_rsq_f32 v55, v55")
    for i in range(16): k(f"v_mul_f32 v{F+i}, v{F+i}, v55")
    for i in range(8): k(f"v_cvt_pk_bf16_f32 v{PT+i}, v{F+2*i}, v{F+2*i+1}")
    for i in range(8): k(f"v_min_u32 v{PT+i}, -2, v{PT+i}")
    k("s_lshl_b32 s46, s61, 9"); k(f"s_add_u32 s46, s46, {A4_XL}"); k("v_add_u32 v12, s46, v13")
    k(f"v_mov_b32 v54, {A4_DUM - 1024}"); k("v_cndmask_b32 v54, v54, v12, s[82:83]")
    k(f"ds_write_b128 v12, {vr(PT,4)}"); k(f"ds_write_b128 v54, {vr(PT+4,4)} offset:1024")
    k("s_lshr_b32 s46, s71, 1"); k("s_lshl_b32 s47, s60, 1"); k("s_add_u32 s46, s46, s47"); k("s_mul_i32 s46, s46, 14"); k("s_add_u32 s46, s46, s61")
    k("s_lshl_b32 s46, s46, 10"); k("s_and_b32 s47, s71, 1"); k("s_lshl_b32 s47, s47, 7"); k("s_add_u32 s46, s46, s47"); k(f"s_add_u32 s46, s46, {L.XTB[0]}")
    k("v_cndmask_b32 v12, v11, v14, s[82:83]")
    k(f"buffer_store_dwordx4 {vr(PT,4)}, v14, {WL}, s46 offen sc1"); k(f"buffer_store_dwordx4 {vr(PT+4,4)}, v12, {WL}, s46 offen offset:2048 sc1")
    k("s_waitcnt lgkmcnt(0)"); k("s_barrier")
    X = 192
    k("v_and_b32 v12, 7, v0"); k("v_lshlrev_b32 v12, 4, v12"); k("v_lshl_add_u32 v12, v3, 7, v12")
    for ks in range(14): k(f"ds_read_b128 {vr(X+4*ks,4)}, v12 offset:{A4_XL+ks*512}")
    lv = k.label("LV"); le = k.label("LE")
    k("s_lshl_b32 s49, s60, 11")
    k(f"s_cmp_ge_u32 s{S_WAVE}, 2"); k(f"s_cbranch_scc1 {lv}")
    k("v_lshrrev_b32 v12, 1, v3"); k("v_lshlrev_b32 v12, 10, v12"); k("v_and_b32 v54, 1, v3"); k("v_lshl_add_u32 v12, v54, 9, v12")
    k("v_lshl_add_u32 v12, v2, 4, v12"); k("v_cmp_gt_u32 vcc, 8, v2"); k("v_cndmask_b32 v12, v11, v12, vcc")
    k("s_lshl_b32 s46, s71, 7"); k(f"s_lshl_b32 s47, s{S_WAVE}, 3"); k("s_add_u32 s46, s46, s47"); k("s_add_u32 s46, s46, s49"); k(f"s_add_u32 s46, s46, {L.KI[0]}")
    k("s_waitcnt lgkmcnt(0)")
    for ks in range(14): k(mf16(16, Q+4*ks, X+4*ks, None if ks == 0 else 16))
    k("v_cvt_pk_bf16_f32 v24, v16, v17"); k("v_cvt_pk_bf16_f32 v25, v18, v19")
    k(f"s_branch {le}")
    k.place(lv)
    k("v_lshlrev_b32 v12, 9, v3"); k("v_lshl_add_u32 v12, v2, 4, v12"); k("v_cndmask_b32 v12, v11, v12, s[80:81]")
    k("s_lshr_b32 s46, s71, 1"); k("s_lshl_b32 s46, s46, 10"); k("s_and_b32 s47, s71, 1"); k("s_lshl_b32 s47, s47, 3"); k("s_add_u32 s46, s46, s47")
    k(f"s_and_b32 s47, s{S_WAVE}, 1"); k("s_lshl_b32 s47, s47, 8"); k("s_add_u32 s46, s46, s47"); k("s_add_u32 s46, s46, s49"); k(f"s_add_u32 s46, s46, {L.VI[0]}")
    k(f"s_cmp_eq_u32 s{S_WAVE}, 3"); k("s_cselect_b32 s47, 12, 99"); k("v_cmp_eq_u32 vcc, s47, v2"); k("v_mov_b32 v54, 0x3f803f80")
    k("s_waitcnt lgkmcnt(0)")
    for ks in range(14): k(mf16(16, X+4*ks, Q+4*ks, None if ks == 0 else 16))
    k("v_cvt_pk_bf16_f32 v24, v16, v17"); k("v_cvt_pk_bf16_f32 v25, v18, v19")
    k("v_cndmask_b32 v24, v24, v54, vcc"); k("v_cndmask_b32 v25, v25, v54, vcc")
    k.place(le)
    k("v_min_u32 v24, -2, v24"); k("v_min_u32 v25, -2, v25")
    k(f"buffer_store_dwordx2 v[24:25], v12, {WL}, s46 offen sc1")
    k("s_waitcnt vmcnt(0)"); k("s_barrier")
    lz = k.label(); k(f"s_cmp_lg_u32 s{S_WAVE}, 0"); k(f"s_cbranch_scc1 {lz}")
    k(f"s_add_u32 s47, s48, {L.SC(0)}"); lane0_addr(k, 4, 5); signal(k, "s47", 4, 5)
    k.place(lz)

def pack_store(k, OUT, pp, T, fl):
    for q in range(2):
        for t in range(2):
            a = OUT + ((2*pp+t)*2 + q)*4
            k(f"v_cvt_pk_bf16_f32 v{T+4*q+2*t}, v{a}, v{a+1}"); k(f"v_cvt_pk_bf16_f32 v{T+4*q+2*t+1}, v{a+2}, v{a+3}")
        for r in range(4): k(f"v_min_u32 v{T+4*q+r}, -2, v{T+4*q+r}")
        k(f"buffer_store_dwordx4 {vr(T+4*q,4)}, v15, {WL}, s{66+q} offen offset:{pp*512}{fl}")

N7 = 76; ROW6 = 14*N7; LATE0 = 1792; N6 = 64; N4 = 16; ROW2 = LATE0 + 8*N4; N2 = (2048 - ROW2)//4
BQL = 0; BOL = 16384; BST = (BOL + 16*912 + 512 + 255)//256*256; BMX = BST + 1024; BFL = BMX + 4096; BRED = BFL + 256
B_LDS = BRED + 4*7*4096

def body_attnB(k, QT, abort, gemm_label=None):
    big = QT > 4; R = 2*QT; ROW0 = {7: 0, 6: ROW6, 4: LATE0, 2: ROW2}[QT]
    XB = 16
    k("v_lshlrev_b32 v1, 4, v0"); k("v_and_b32 v2, 15, v0"); k("v_lshrrev_b32 v3, 4, v0")
    qreg = lambda o: 256 + 4*o if o < 64 else 120 + 4*(o-64)
    k(f"s_mul_i32 s46, s{S_WAVE}, {7*14*1024}"); k(f"s_add_u32 s46, s46, {L.WBQ}")
    loads(k, [qreg(o) for o in range(98)], 1, 46, 46, " sc1", WS)
    k(f"s_mul_i32 s61, s60, {R}")
    if ROW0: k(f"s_add_u32 s61, s61, {ROW0}")
    k(f"v_min_u32 v4, {R-1}, v2"); k("v_add_u32 v4, s61, v4")
    if QT == 6: k(f"v_min_u32 v4, {LATE0-1}, v4")
    def tiled(vd, vt):
        k(f"v_lshrrev_b32 v{vd}, 4, v{vt}"); k(f"v_mul_u32_u24 v{vd}, {14*1024}, v{vd}"); k(f"v_and_b32 v6, 15, v{vt}")
        k(f"v_lshl_add_u32 v{vd}, v6, 4, v{vd}"); k(f"v_lshl_add_u32 v{vd}, v3, 8, v{vd}")
    tiled(5, 4)
    k("v_mov_b64 v[8:9], 0"); k("v_mov_b64 v[10:11], 0"); k(f"s_lshl_b32 s46, s{S_WAVE}, 12"); k("v_add_u32 v7, s46, v1")
    for i in range(4): k(f"ds_write_b128 v7, v[8:11] offset:{BQL+i*1024}")
    k(f"v_mov_b32 v7, {BFL}"); k("ds_write_b32 v7, v8")
    k("v_lshrrev_b32 v12, 5, v4"); k("v_lshlrev_b32 v12, 7, v12"); k(f"s_mov_b32 s49, {L.SC(0)}")
    k("s_lshr_b32 s50, s61, 5"); k("s_min_u32 s50, s50, 61"); k("s_waitcnt vmcnt(0)")
    if big: wait_words(k, "s49", 12, 13, 4, abort, nap=1, far="s50")
    else:
        k(f"s_mov_b32 s49, {L.PROG(0)}"); k("v_mov_b32 v12, 0")
        wait_words(k, "s49", 12, 13, "s50", abort, ge=True, nap=24)
        k("s_mov_b32 s96, 0"); k("s_lshr_b32 s98, s61, 5")
        if QT == 2: k("s_sub_u32 s98, s98, 1")
        gate(k, L.SC(0), 1, 4, "s98", 96, "v_lshlrev_b32 v8, 3, v1", 8, abort, nap=1, napfar=8)
    k(f"s_mov_b32 s48, {L.XTB[0]}"); k(f"s_mov_b32 s70, {TIMEOUT}")
    k("s_waitcnt lgkmcnt(0)"); k("s_barrier")
    k(f"s_mul_i32 s63, s{S_WAVE}, 112")
    k("v_lshlrev_b32 v6, 2, v3"); k("v_add_u32 v6, s63, v6"); k("v_lshlrev_b32 v7, 10, v2")
    for i in range(7):
        k(f"v_add_u32 v8, {16*i}, v6"); k("v_mul_u32_u24 v9, 2341, v8"); k("v_lshrrev_b32 v9, 16, v9")
        k("v_lshl_add_u32 v8, v8, 1, v7"); k(f"v_lshl_add_u32 v{100+i}, v9, 3, v8")
    k(f"s_mov_b32 s64, {hx(f2u(L.LOG2E/28**0.5))}")
    A0 = 72
    lx = k.label("Lx"); k.place(lx)
    if QT == 2:
        assert ROW2 == 32*L.DIRX
        l1 = k.label("Lx"); k.place(l1)
        k(f"s_add_u32 s47, s48, {13*1024}"); k(f"buffer_load_dword v8, v5, {WL}, s47 offen sc1")
        k("s_sub_u32 s70, s70, 1"); k(f"s_cbranch_scc1 {abort}")
        k("s_waitcnt vmcnt(0)"); k("v_cmp_eq_u32 vcc, -1, v8"); k(f"s_cbranch_vccnz {l1}")
    loads(k, [XB+4*ks for ks in range(14)], 5, 48, 47, " sc1")
    for ks in range(14):
        k(f"s_waitcnt vmcnt({13-ks})")
        for i in range(7):
            k(mf16(A0+4*i, qreg(i*14+ks), XB+4*ks, None if ks == 0 else A0+4*i))
            if QT == 2 and i < 2: k(f"v_max3_u32 v8, v{XB+4*ks+2*i}, v{XB+4*ks+2*i+1}, {'v8' if ks or i else f'v{XB}'}")
    if QT == 2:
        k("v_cmp_eq_u32 vcc, -1, v8"); k(f"s_cbranch_vccnz {lx}")
    QO = 16; KV = [72, 88] if big else [208, 224, 240]; SS = [104, 120]; PP = 136; O = 144; MX = SS[1]
    def kvl(b):
        return [f"buffer_load_dwordx4 {vr(KV[b],4)}, v1, {WL}, s67 offen sc1", f"buffer_load_dwordx4 {vr(KV[b]+4,4)}, v1, {WL}, s67 offen offset:1024 sc1",
                f"buffer_load_dwordx4 {vr(KV[b]+8,4)}, v1, {WL}, s68 offen sc1", f"buffer_load_dwordx4 {vr(KV[b]+12,4)}, v1, {WL}, s68 offen offset:1024 sc1",
                "s_add_u32 s67, s67, 8192", "s_add_u32 s68, s68, 8192"]
    def kvload(b):
        for x in kvl(b): k(x)
    k(f"s_lshl_b32 s65, s{S_WAVE}, 11"); k(f"s_add_u32 s66, s65, {L.VI[0]}"); k(f"s_add_u32 s65, s65, {L.KI[0]}")
    k("s_mov_b32 s67, s65"); k("s_mov_b32 s68, s66"); k("s_mov_b32 s78, 0")
    if big: k("s_mov_b32 s96, 0"); k(f"s_mov_b32 s98, s{S_WAVE}")
    def sgate(): gate(k, L.SC(0), 1, 4, "s98", 96, "v_lshlrev_b32 v8, 3, v1", 8, abort, nap=(2 if big else 1))
    def kv_direct(b, issued=False):
        lp_ = k.label("Lkd"); chk = k.label("Lkc"); k(f"s_mov_b32 s70, {TIMEOUT}")
        if issued: k(f"s_branch {chk}")
        else:
            k("s_sub_u32 s98, s98, 1"); sgate(); k("s_add_u32 s98, s98, 1"); k(f"s_mov_b32 s70, {TIMEOUT}")
        k.place(lp_)
        for x in kvl(b)[:4]: k(x)
        k("s_sub_u32 s70, s70, 1"); k(f"s_cbranch_scc1 {abort}")
        k.place(chk)
        k("s_waitcnt vmcnt(0)")
        k(f"v_max3_u32 v8, v{KV[b]}, v{KV[b]+1}, v{KV[b]+2}")
        for i in range(3, 15, 2): k(f"v_max3_u32 v8, v8, v{KV[b]+i}, v{KV[b]+i+1}")
        k(f"v_max_u32 v8, v8, v{KV[b]+15}"); k("v_cmp_eq_u32 vcc, -1, v8"); k(f"s_cbranch_vccnz {lp_}")
    if not big:
        k(f"s_add_u32 s98, s{S_WAVE}, 48")
        kvload(0); kvload(1); kvload(2)
    for i in range(7):
        a = A0 + 4*i
        for r in range(4): k(f"v_mul_f32 v{a+r}, s64, v{a+r}")
        k(f"v_cvt_pk_bf16_f32 v{a}, v{a}, v{a+1}"); k(f"v_cvt_pk_bf16_f32 v{a+1}, v{a+2}, v{a+3}")
        k(f"ds_write_b64 v{100+i}, {vr(a,2)} offset:{BQL}")
    oreg = lambda o: 256 + 4*o if o < 64 else (160 + 4*(o-64) if o < 88 else 256 + 4*(o-88))
    def wl(o): return [f"s_add_u32 s46, s62, {(o//4)*4096}"]*(o % 4 == 0) + [f"buffer_load_dwordx4 {vr(oreg(o),4)}, v1, {WS}, s46 offen offset:{(o%4)*1024} sc1"]
    if big:
        k(f"s_lshl_b32 s69, s{S_WAVE}, 2"); k(f"s_cmp_eq_u32 s{S_WAVE}, 3"); k("s_cselect_b32 s69, 11, s69")
        k(f"s_mul_i32 s62, s69, {28*1024}"); k(f"s_add_u32 s62, s62, {L.WBO}")
        for o in range(64):
            for x in wl(o): k(x)
    k("s_waitcnt lgkmcnt(0)"); k("s_barrier")
    k("v_bfe_u32 v6, v0, 4, 1"); k("v_lshlrev_b32 v6, 10, v6"); k("v_lshl_add_u32 v6, v2, 6, v6"); k("v_lshrrev_b32 v7, 5, v0"); k("v_lshl_add_u32 v6, v7, 4, v6")
    def qread():
        for q in range(QT):
            for kk in range(2): k(f"ds_read_b128 {vr(QO+8*q+4*kk,4)}, v6 offset:{BQL+q*2048+kk*32}")
    qread()
    for i in range(8*QT): k(f"v_mov_b64 {vr(O+2*i,2)}, 0")
    gen.tl(k, 4, 12)
    if big:
        def sgate_wg():
            ok = k.label(); oth = k.label()
            k("s_cmp_lt_u32 s98, s96"); k(f"s_cbranch_scc1 {ok}")
            k(f"v_mov_b32 v10, {BFL + 64}")
            k(f"s_cmp_lg_u32 s{S_WAVE}, 0"); k(f"s_cbranch_scc1 {oth}")
            gate(k, L.SC(0), 1, 4, "s98", 96, "v_lshlrev_b32 v8, 3, v1", 8, abort, nap=1, napfar=16)
            k("v_mov_b32 v8, s96"); k("ds_write_b32 v10, v8"); k("s_waitcnt lgkmcnt(0)")
            k.place(oth)
            k("s_barrier")
            k("ds_read_b32 v8, v10"); k("s_waitcnt lgkmcnt(0)"); k("v_readfirstlane_b32 s96, v8")
            k("s_barrier")
            k.place(ok)
        def follow(nq, qo, oo, kv, ss, pp, stride, limit, touch, sgate=sgate):
            def kvl2(b_):
                for j, (sr_, of) in enumerate(((67, 0), (67, 1024), (68, 0), (68, 1024))):
                    k(f"buffer_load_dwordx4 {vr(kv[b_]+4*j,4)}, v1, {WL}, s{sr_} offen offset:{of} sc1")
                k(f"s_add_u32 s67, s67, {2048*stride}"); k(f"s_add_u32 s68, s68, {2048*stride}")
            sgate(); kvl2(0); k(f"s_add_u32 s98, s98, {stride}")
            k("s_waitcnt lgkmcnt(0)")
            loop = k.label("LK"); lend = k.label("LKe"); k.place(loop)
            for b in range(2):
                nopf = k.label(); go = k.label(); havek = k.label()
                k("s_cmp_lt_u32 s98, s96"); k("s_cselect_b32 s79, 1, 0"); k(f"s_cmp_lt_u32 s98, {limit}"); k("s_cselect_b32 s79, s79, 0")
                k("s_cmp_eq_u32 s79, 0"); k(f"s_cbranch_scc1 {nopf}")
                kvl2(1-b); k("s_waitcnt vmcnt(4)"); k(f"s_branch {go}")
                k.place(nopf); k("s_waitcnt vmcnt(0)")
                k.place(go)
                k(mf32(ss[0], kv[b], qo, None)); k(mf32(ss[0], kv[b]+4, qo+4, ss[0]))
                for q in range(nq):
                    s_ = ss[q & 1]; sn = ss[(q+1) & 1]; last = q + 1 == nq
                    ex = lambda a_, n: [f"v_exp_f32 v{s_+r}, v{s_+r}" for r in range(a_, a_+n)]
                    cv = lambda h: [f"v_cvt_pk_bf16_f32 v{pp+4*h+j}, v{s_+8*h+2*j}, v{s_+8*h+2*j+1}" for j in range(4)]
                    if not last: k(mf32(sn, kv[b], qo+8*(q+1), None))
                    for x in ex(0, 4): k(x)
                    if q: k(mf32(oo+16*(q-1), kv[b]+12, pp+4, oo+16*(q-1)))
                    for x in ex(4, 4): k(x)
                    if not last: k(mf32(sn, kv[b]+4, qo+8*(q+1)+4, sn))
                    for x in cv(0) + ex(8, 4): k(x)
                    k(mf32(oo+16*q, kv[b]+8, pp, oo+16*q))
                    for x in ex(12, 4) + cv(1): k(x)
                k(mf32(oo+16*(nq-1), kv[b]+12, pp+4, oo+16*(nq-1)))
                if b == 1:
                    k(f"s_cmp_ge_u32 s98, {limit}"); k(f"s_cbranch_scc1 {lend}")
                k("s_cmp_eq_u32 s79, 1"); k(f"s_cbranch_scc1 {havek}")
                if b == 0 and touch:
                    nt = k.label()
                    k(f"s_cmp_lt_u32 s98, {64-stride}"); k(f"s_cbranch_scc1 {nt}")
                    k("v_lshlrev_b32 v8, 3, v1")
                    code_touch(k, lend, 8192, True, 8, 9)
                    code_touch(k, gemm_label, 8192, False, 8, 9)
                    k.place(nt)
                sgate(); kvl2(1-b)
                k.place(havek)
                k(f"s_add_u32 s98, s98, {stride}")
            k(f"s_branch {loop}")
            k.place(lend)
        follow(QT, QO, O, KV, SS, PP, 4, 56 if QT == 7 else 64, QT != 7)
    else:
        k("s_waitcnt vmcnt(8) lgkmcnt(0)")
        k(mf32(SS[0], KV[0], QO, None)); k(mf32(SS[0], KV[0]+4, QO+4, SS[0]))
        nstep = 16*QT
        for i in range(nstep):
            t, q = divmod(i, QT); s_ = SS[i & 1]; sn = SS[(i+1) & 1]; tn, qn = divmod(i+1, QT); last = i + 1 == nstep
            ex = lambda a_, n: [f"v_exp_f32 v{s_+r}, v{s_+r}" for r in range(a_, a_+n)]
            cv = lambda h: [f"v_cvt_pk_bf16_f32 v{PP+4*h+j}, v{s_+8*h+2*j}, v{s_+8*h+2*j+1}" for j in range(4)]
            if not last:
                if qn == 0:
                    if tn <= 14: k("s_waitcnt vmcnt(4)")
                    else: kv_direct(15 % 3, True)
                k(mf32(sn, KV[tn % 3], QO+8*qn, None))
            for x in ex(0, 4): k(x)
            if i:
                tp, qp = divmod(i-1, QT)
                k(mf32(O+16*qp, KV[tp % 3]+12, PP+4, O+16*qp))
            if q == 0 and 1 <= t <= 13:
                if t == 13:
                    for x in kvl(15 % 3)[:4]: k(x)
                else:
                    if t >= 10:
                        sgate(); k("s_add_u32 s98, s98, 4")
                    kvload((t+2) % 3)
            for x in ex(4, 4): k(x)
            if not last: k(mf32(sn, KV[tn % 3]+4, QO+8*qn+4, sn))
            for x in cv(0) + ex(8, 4): k(x)
            k(mf32(O+16*q, KV[t % 3]+8, PP, O+16*q))
            for x in ex(12, 4) + cv(1): k(x)
        k(mf32(O+16*(QT-1), KV[15 % 3]+12, PP+4, O+16*(QT-1)))
    if QT != 7: gen.tl(k, 12, 12, 2)
    redo = k.label("LBr"); slow = k.label("LBs"); fin = k.label("LBf")
    k.place(redo)
    k(f"s_mul_i32 s46, s{S_WAVE}, {QT*4096}"); k(f"s_add_u32 s46, s46, {BRED}"); k("v_add_u32 v7, s46, v1")
    for q in range(QT):
        for j in range(4): k(f"ds_write_b128 v7, {vr(O+16*q+4*j,4)} offset:{q*4096+j*1024}")
    OUT = 96; XRS = 80
    if big:
        k("v_add_u32 v9, s61, v2")
        if QT == 6:
            k(f"v_mov_b32 v8, 4096"); k(f"v_cmp_gt_u32 vcc, {LATE0}, v9"); k("v_cndmask_b32 v9, v8, v9, vcc")
            k(f"s_lshl_b32 s46, s60, 2"); k(f"s_add_u32 s46, s46, {LATE0 - 12}"); k("v_add_u32 v8, s46, v2")
        else: k("v_mov_b32 v8, 4096")
        k(f"v_cmp_gt_u32 vcc, {R}, v2"); k("v_cndmask_b32 v4, v8, v9, vcc"); k("v_mov_b32 v8, 2048"); k("v_cmp_lt_u32 s[72:73], v4, v8"); k("v_min_u32 v4, 2047, v4")
        k("v_mul_u32_u24 v14, 896, v4"); k("v_lshl_add_u32 v14, v3, 4, v14"); k("s_lshl_b32 s46, s69, 6"); k("v_add_u32 v14, s46, v14")
    k("s_waitcnt lgkmcnt(0)")
    if big:
        for o in range(64, 88):
            for x in wl(o): k(x)
    k("s_barrier")
    def gather(T, dst):
        k("s_lshl_b32 s47, s46, 12"); k(f"s_add_u32 s47, s47, {BRED}"); k("v_add_u32 v7, s47, v1")
        for w in range(4):
            if w: k(f"v_add_u32 v7, {QT*4096}, v7")
            for j in range(4): k(f"ds_read_b128 {vr(T+16*w+4*j,4)}, v7 offset:{j*1024}")
            if w == 2: k("s_waitcnt lgkmcnt(4)")
        for i in range(8): k(f"v_pk_add_f32 {vr(T+2*i,2)}, {vr(T+2*i,2)}, {vr(T+16+2*i,2)}")
        k("s_waitcnt lgkmcnt(0)")
        for i in range(8): k(f"v_pk_add_f32 {vr(T+32+2*i,2)}, {vr(T+32+2*i,2)}, {vr(T+48+2*i,2)}")
        for i in range(8): k(f"v_pk_add_f32 {vr(dst+2*i,2)}, {vr(T+2*i,2)}, {vr(T+32+2*i,2)}")
    def finish(T):
        k(f"v_mov_b32 v12, v{T+12}"); k(f"v_mov_b32 v13, v{T+12}")
        k("v_permlane32_swap_b32 v12, v13")
        k(f"v_cmp_nle_f32 vcc, {hx(f2u(2.0**-60))}, v13"); k(f"v_mov_b32 v12, {hx(f2u(2.0**60))}")
        k("v_cmp_nle_f32 s[76:77], v13, v12"); k("s_or_b64 vcc, vcc, s[76:77]")
        ok = k.label()
        k(f"s_cbranch_vccz {ok}")
        k(f"v_mov_b32 v12, {BFL}"); k("v_mov_b32 v15, 1"); k("ds_write_b32 v12, v15")
        k.place(ok)
        k("v_rcp_f32 v13, v13")
        k("s_mul_i32 s47, s46, 1824"); k(f"s_add_u32 s47, s47, {BOL}"); k("v_add_u32 v10, s47, v5")
        for j in range(4):
            for r in range(4): k(f"v_mul_f32 v{T+4*j+r}, v{T+4*j+r}, v13")
            k(f"v_cvt_pk_bf16_f32 v{T+4*j}, v{T+4*j}, v{T+4*j+1}"); k(f"v_cvt_pk_bf16_f32 v{T+4*j+1}, v{T+4*j+2}, v{T+4*j+3}")
            if j == 3:
                k("v_add_u32 v10, 48, v10"); k("v_cndmask_b32 v10, v10, v11, s[74:75]")
                k(f"ds_write_b64 v10, {vr(T+12,2)}")
            else: k(f"ds_write_b64 v10, {vr(T+4*j,2)} offset:{16*j}")
    k("v_lshrrev_b32 v8, 5, v0")
    k("v_bfe_u32 v5, v0, 4, 1"); k("v_mul_u32_u24 v5, 912, v5"); k("v_mul_u32_u24 v10, 56, v2"); k("v_add_u32 v5, v5, v10"); k("v_lshl_add_u32 v5, v8, 3, v5")
    k(f"v_mov_b32 v11, {BOL + 16*912}"); k("v_cmp_eq_u32 s[74:75], 1, v8")
    if QT == 6:
        k(f"s_mov_b32 s48, {L.XRA[0]}")
        for pp in range(4): k(f"buffer_load_dwordx4 {vr(XRS+4*pp,4)}, v14, {WL}, s48 offen offset:{pp*64} sc1")
        skip = k.label()
        k(f"s_mov_b32 s46, s{S_WAVE}"); gather(16, 16); finish(16)
        k(f"s_add_u32 s46, s{S_WAVE}, 4"); k(f"s_cmp_ge_u32 s46, {QT}"); k(f"s_cbranch_scc1 {skip}")
        gather(16, 16); finish(16)
        k.place(skip)
    elif big:
        k(f"s_add_u32 s80, s{S_WAVE}, 4"); k(f"s_cmp_lt_u32 s80, {QT}"); k(f"s_cselect_b32 s80, s80, s{S_WAVE}")
        for j, sq in enumerate((f"s{S_WAVE}", "s80")):
            k(f"s_mov_b32 s46, {sq}"); gather(64, 32+16*j)
            k("s_lshl_b32 s47, s46, 11"); k("v_add_u32 v7, s47, v6")
            for kk in range(2): k(f"ds_read_b128 {vr(16+8*j+4*kk,4)}, v7 offset:{BQL+kk*32}")
        nop2 = k.label()
        k("s_cmp_eq_u32 s78, 1"); k(f"s_cbranch_scc1 {nop2}")
        k("s_mov_b32 s98, 56"); k(f"s_mov_b32 s67, {L.KI[0] + 56*2048}"); k(f"s_mov_b32 s68, {L.VI[0] + 56*2048}")
        k("v_lshlrev_b32 v8, 3, v1")
        for j in range(3):
            k(f"s_add_u32 s46, s62, {88*1024 + j*8192}"); k(f"buffer_load_dword v9, v8, {WS}, s46 offen")
        slab_address(k, 100)
        k(f"buffer_load_dword v9, v8, {WS}, s57 offen"); k("s_add_u32 s57, s57, 6144"); k(f"buffer_load_dword v9, v8, {WS}, s57 offen")
        k("s_mov_b32 s96, 56")
        follow(2, 16, 32, [64, 80], [96, 112], 128, 1, 64, True, sgate_wg)
        k.place(nop2)
        gen.tl(k, 12, 12, 2)
        k(f"s_mov_b32 s48, {L.XRA[0]}")
        for pp in range(4): k(f"buffer_load_dwordx4 {vr(XRS+4*pp,4)}, v14, {WL}, s48 offen offset:{pp*64} sc1")
        for j, sq in enumerate((f"s{S_WAVE}", "s80")):
            k(f"s_mov_b32 s46, {sq}"); finish(32+16*j)
    else:
        skip = k.label()
        k(f"s_mov_b32 s46, s{S_WAVE}")
        if QT < 4:
            k(f"s_cmp_ge_u32 s46, {QT}"); k(f"s_cbranch_scc1 {skip}")
        gather(16, 16); finish(16)
        k.place(skip)
    k("s_waitcnt lgkmcnt(0)"); k("s_barrier")
    k(f"v_mov_b32 v12, {BFL}"); k("ds_read_b32 v12, v12"); k("s_waitcnt lgkmcnt(0)")
    k("v_readfirstlane_b32 s46, v12")
    k("s_andn2_b32 s46, s46, s78")
    k("s_cmp_eq_u32 s46, 1"); k(f"s_cbranch_scc1 {slow}")
    if not big:
        k(f"s_mul_i32 s46, s{S_WAVE}, 912"); k(f"s_add_u32 s46, s46, {BOL}"); k("v_add_u32 v7, s46, v1")
        for j in range(R//4): k(f"ds_read_b128 {vr(16+4*j,4)}, v7 offset:{j*4*912}")
        k(f"s_sub_u32 s46, s61, {LATE0}"); k(f"s_add_u32 s47, s46, s{S_WAVE}"); k("s_mul_i32 s47, s47, 896"); k(f"s_add_u32 s47, s47, {L.OLATE[0]}")
        k("v_mov_b32 v8, 0x7fffffff"); k("v_cmp_gt_u32 vcc, 56, v0"); k("v_cndmask_b32 v8, v8, v1, vcc")
        k("s_waitcnt lgkmcnt(0)")
        for j in range(R//4): k(f"buffer_store_dwordx4 {vr(16+4*j,4)}, v8, {WL}, s47 offen offset:{j*3584} sc1")
        k("s_waitcnt vmcnt(0)"); k("s_barrier")
        k(f"s_cmp_lg_u32 s{S_WAVE}, 0"); k(f"s_cbranch_scc1 {fin}")
        k("s_lshl_b32 s46, s46, 5"); k(f"s_add_u32 s46, s46, {L.OF(0)}"); k("v_lshlrev_b32 v12, 7, v0"); k("v_mov_b32 v13, 1")
        k(f"s_mov_b64 exec, {(1 << (R//4)) - 1}"); k(f"buffer_store_dword v13, v12, {WL}, s46 offen sc1"); k("s_mov_b64 exec, -1")
        k(f"s_branch {fin}")
    else:
        k(f"s_add_u32 s8, s{P_WS}, {L.XR1}"); k(f"s_addc_u32 s9, s{P_WS+1}, 0"); k(f"s_cmp_eq_u32 s{S_LAYER}, 0")
        k(f"s_cselect_b32 s8, s8, s{P_OUT}"); k(f"s_cselect_b32 s9, s9, s{P_OUT+1}"); k("s_and_b32 s9, s9, 0xffff")
        k(f"s_mov_b32 s10, {L.XSZ}"); k("s_mov_b32 s11, 0x20000")
        k("v_mul_u32_u24 v7, 912, v2"); k("v_lshl_add_u32 v7, v3, 4, v7")
        for ks in range(14): k(f"ds_read_b128 {vr(XB+4*ks,4)}, v7 offset:{BOL+ks*64}")
        if QT == 6:
            k("s_lshl_b32 s49, s60, 7"); k(f"s_add_u32 s49, s49, {L.OF(0)}"); k("v_mov_b32 v12, 0")
            wait_words(k, "s49", 12, 13, 1, abort, nap=1, wg=False)
            k(f"v_subrev_u32 v12, {LATE0}, v4"); k("v_mul_u32_u24 v12, 896, v12"); k("v_lshl_add_u32 v12, v3, 4, v12"); k(f"s_mov_b32 s49, {L.OLATE[0]}")
            k("s_waitcnt lgkmcnt(0)")
            k("s_mov_b32 exec_lo, 0xf000f000"); k("s_mov_b32 exec_hi, 0xf000f000")
            for ks in range(14): k(f"buffer_load_dwordx4 {vr(XB+4*ks,4)}, v12, {WL}, s49 offen offset:{ks*64} sc1")
            k("s_mov_b64 exec, -1")
        k("s_waitcnt vmcnt(0) lgkmcnt(0)")
        gen.tl(k, 11, 12, 2)
        short = k.label()
        for i in range(8):
            if i == 6:
                k(f"s_cmp_ge_u32 s{S_WAVE}, 2"); k(f"s_cbranch_scc1 {short}")
                k("s_waitcnt vmcnt(0)")
            a = OUT + 4*i
            for ks in range(14): k(mf16(a, oreg(i*14+ks), XB+4*ks, None if ks == 0 else a))
            if i == 1:
                for o in range(88, 112):
                    for x in wl(o): k(x)
        k.place(short)
        slab_request(k, 100)
        k("v_mov_b32 v9, 0x7fffffff"); k("v_cndmask_b32 v8, v9, v14, s[72:73]")
        tiled(5, 4)
        k("s_lshl_b32 s46, s69, 10"); k("v_add_u32 v5, s46, v5"); k("v_cndmask_b32 v5, v9, v5, s[72:73]")
        k(f"s_lshl_b32 s46, s{S_WAVE}, 2"); k("v_lshlrev_b32 v11, 4, v2"); k("v_add_u32 v10, s46, v11")
        k(f"s_mov_b32 s49, {L.XTA[1]}")
        def res_store(pp, q, r): k(f"buffer_store_dwordx4 {vr(r,4)}, v8, s[8:11], 0 offen offset:{pp*64} sc1")
        def xn_store(pp, q, r): k(f"buffer_store_dwordx4 {vr(r,4)}, v5, {WS}, s49 offen offset:{pp*1024} sc1")
        ln_epilogue(k, lambda pp, q, t: OUT + (2*pp+t)*4, 1, lambda pp, q: XRS+4*pp, 16, 24, 10, BST, res_store, xn_store, fin)
        slab_stage(k, 6)
        k("s_waitcnt vmcnt(0)"); k("s_barrier")
        k(f"s_cmp_lg_u32 s{S_WAVE}, 0"); k(f"s_cbranch_scc1 {fin}")
        lim = ROW6 if QT == 7 else LATE0
        k(f"s_add_u32 s47, s61, {R}"); k(f"s_min_u32 s47, s47, {lim}"); k(f"s_min_u32 s46, s61, {lim}")
        k("s_lshr_b32 s48, s46, 5"); k("s_add_u32 s49, s48, 1"); k("s_lshl_b32 s50, s49, 5"); k("s_min_u32 s50, s50, s47")
        k("s_sub_u32 s51, s50, s46"); k("s_sub_u32 s52, s47, s50")
        k("v_mov_b32 v12, s48"); k("v_mov_b32 v13, s51")
        k("v_writelane_b32 v12, s49, 1"); k("v_writelane_b32 v13, s52, 1")
        if QT == 6:
            k("s_lshr_b32 s48, s60, 3"); k(f"s_add_u32 s48, s48, {LATE0//32}"); k("v_writelane_b32 v12, s48, 2"); k("v_writelane_b32 v13, 4, 2")
        k("v_lshlrev_b32 v12, 7, v12"); k(f"s_mov_b32 s46, {L.RC(1)}")
        signal(k, "s46", 12, 13, WS, lanes=7 if QT == 6 else 3)
        k(f"s_branch {fin}")
    k.place(slow)
    k("s_waitcnt vmcnt(0) lgkmcnt(0)"); k("s_barrier")
    k("s_mov_b32 s78, 1")
    qread()
    for q in range(QT): k(f"v_mov_b32 v{MX+q}, {NINF}")
    k("s_mov_b32 s67, s65"); k("s_mov_b32 s68, s66"); k("s_mov_b32 s70, 16")
    lm = k.label("LM"); k.place(lm)
    kvload(0)
    k("s_waitcnt vmcnt(0) lgkmcnt(0)")
    for q in range(QT):
        s_ = SS[0]
        k(mf32(s_, KV[0], QO+8*q, None)); k(mf32(s_, KV[0]+4, QO+8*q+4, s_))
        for r in range(0, 16, 2): k(f"v_max3_f32 v{MX+q}, v{MX+q}, v{s_+r}, v{s_+r+1}")
    k("s_sub_u32 s70, s70, 1"); k("s_cmp_lg_u32 s70, 0"); k(f"s_cbranch_scc1 {lm}")
    k("v_and_b32 v7, 31, v0"); k("v_lshlrev_b32 v7, 2, v7"); k(f"s_lshl_b32 s46, s{S_WAVE}, 10"); k("v_add_u32 v12, s46, v7")
    for q in range(QT):
        k(f"v_mov_b32 v13, v{MX+q}"); k(f"v_permlane32_swap_b32 v{MX+q}, v13"); k(f"v_max_f32 v{MX+q}, v{MX+q}, v13")
        k(f"ds_write_b32 v12, v{MX+q} offset:{BMX+q*128}")
    k("s_waitcnt lgkmcnt(0)"); k("s_barrier")
    for q in range(QT):
        for w in range(4): k(f"ds_read_b32 v{SS[0]+w}, v7 offset:{BMX+w*1024+q*128}")
        k("s_waitcnt lgkmcnt(0)")
        k(f"v_max3_f32 v{MX+q}, v{SS[0]}, v{SS[0]+1}, v{SS[0]+2}"); k(f"v_max_f32 v{MX+q}, v{MX+q}, v{SS[0]+3}")
    for i in range(8*QT): k(f"v_mov_b64 {vr(O+2*i,2)}, 0")
    k("s_mov_b32 s67, s65"); k("s_mov_b32 s68, s66"); k("s_mov_b32 s70, 16")
    lp = k.label("LK"); k.place(lp)
    kvload(0)
    k("s_waitcnt vmcnt(0)")
    for q in range(QT):
        s_ = SS[0]
        for r in range(16): k(f"v_sub_f32 v{s_+r}, 0, v{MX+q}")
        k(mf32(s_, KV[0], QO+8*q, s_)); k(mf32(s_, KV[0]+4, QO+8*q+4, s_))
        for h in range(2):
            for r in range(8*h, 8*h+8): k(f"v_exp_f32 v{s_+r}, v{s_+r}")
            for j in range(4): k(f"v_cvt_pk_bf16_f32 v{PP+4*h+j}, v{s_+8*h+2*j}, v{s_+8*h+2*j+1}")
            k(mf32(O+16*q, KV[0]+8+4*h, PP+4*h, O+16*q))
    k("s_sub_u32 s70, s70, 1"); k("s_cmp_lg_u32 s70, 0"); k(f"s_cbranch_scc1 {lp}")
    k(f"s_branch {redo}")
    k.place(fin)
    if not big:
        slab_request(k, 100); slab_stage(k, 0)
```

```python
from gen import *
import gen

ASL = 0
WNT = 0
PMODE = 0
NE1 = 2
VMPOS = [(1,1),(1,6),(2,1),(2,5),(3,1),(3,4),(4,1),(5,1),(6,1),(6,6),(7,1)]
BPOLL = 0
BPS = 2
APOLL = 1
UV = 0
XPK = 0
BSL = 0
PSL = 0
XSIG = 0
XNOU = 0
XACK = 0
XSLEEP = 0
XNOEXP = 0
XPOLL = 0
NB = 9
PFD = 2

DIAG = False
DBGOFF = 0xF000000
def stamp(k, i):
    if DIAG == 3: k(f"s_memrealtime s[{72+2*i}:{73+2*i}]")
    elif DIAG: k(f"s_memtime s[{72+2*i}:{73+2*i}]")
def stamp_acc(k, n):
    if not DIAG: return
    k("s_waitcnt lgkmcnt(0)")
    if DIAG == 3:
        for i in range(1, n): k(f"s_add_u32 s{87+i}, s{87+i}, s{72+2*i}")
        return
    for i in range(n-1):
        k(f"s_sub_u32 s71, s{72+2*(i+1)}, s{72+2*i}"); k(f"s_add_u32 s{88+i}, s{88+i}, s71")
T0 = 0
def stamp_init(k):
    if DIAG or T0:
        for i in range(8): k(f"s_mov_b32 s{88+i}, 0")
        k("s_memtime s[72:73]"); k("s_waitcnt lgkmcnt(0)"); k("s_mov_b32 s95, s72")
def stamp_out(k):
    if not (DIAG or T0): return
    k("s_memtime s[72:73]"); k("s_waitcnt lgkmcnt(0)"); k("s_sub_u32 s95, s72, s95")
    for i in range(8): k(f"v_mov_b32 v{16+i}, s{88+i}")
    k(f"s_lshl_b32 s46, s59, 2"); k(f"s_add_u32 s46, s46, s{S_WAVE}"); k("s_lshl_b32 s46, s46, 5"); k(f"s_add_u32 s46, s46, {DBGOFF}")
    k("v_mov_b32 v24, 0")
    k(f"buffer_store_dwordx4 v[16:19], v24, {WS}, s46 offen"); k(f"buffer_store_dwordx4 v[20:23], v24, {WS}, s46 offen offset:16")

def tl0(k, ix, vt):
    if gen.TL != 4: return
    lz = k.label(); k("s_or_b32 s46, s67, s0"); k("s_cmp_lg_u32 s46, 0"); k(f"s_cbranch_scc1 {lz}"); gen.tl(k, ix, vt, 0); k.place(lz)

def publish(k, store):
    k(store)
    lz = k.label("Lpub")
    k("s_cmp_eq_u32 s1, 0"); k(f"s_cbranch_scc1 {lz}")
    k(store + " sc1")
    k.place(lz)

def interleave(k, main, side):
    for i, m in enumerate(main):
        k(m)
        for s in side.get(i, []): k(s)

def ugate_parts(k, need, v128, vt):
    def request():
        k(v128); k(f"v_and_b32 v{vt+1}, 0x780, v{vt}"); k(f"v_lshrrev_b32 v{vt}, 11, v{vt}"); k(f"v_lshl_add_u32 v{vt}, v{vt}, 13, v{vt+1}")
        k("s_min_u32 s96, s96, 48"); k("s_lshl_b32 s97, s96, 7"); k(f"s_add_u32 s97, s97, {L.UC(0)}")
        k(f"buffer_load_dword v{vt+1}, v{vt}, {WL}, s97 offen sc1")
    def evaluate():
        k(f"v_cmp_ne_u32 vcc, 28, v{vt+1}")
        k("s_or_b32 s97, vcc_lo, vcc_hi"); k("s_lshr_b32 vcc_lo, s97, 16"); k("s_or_b32 s97, s97, vcc_lo"); k("s_or_b32 s97, s97, 0x10000")
        k("s_ff1_i32_b32 s97, s97"); k("s_add_u32 s96, s96, s97"); k("s_cmp_ge_u32 s96, 64"); k("s_cselect_b32 s96, 0x100, s96")
    return request, evaluate

def ugate(k, need, v128, vt, abort):
    ok = k.label("Lgo"); lp = k.label("Lgl")
    req, ev = ugate_parts(k, need, v128, vt)
    k(f"s_cmp_lt_u32 {need}, s96"); k(f"s_cbranch_scc1 {ok}")
    k(f"s_mov_b32 s70, {TIMEOUT}")
    k.place(lp)
    req()
    k("s_sub_u32 s70, s70, 1"); k(f"s_cbranch_scc1 {abort}")
    k("s_waitcnt vmcnt(0)")
    ev()
    k(f"s_cmp_lt_u32 {need}, s96"); k(f"s_cbranch_scc0 {lp}")
    k.place(ok)

def poll_rot(k, loads, tmp, abort, pre_issued=False):
    from itertools import permutations
    n = len(loads)
    done = k.label("Lrd")
    lab = {}
    def L_(st):
        if st not in lab: lab[st] = k.label("Lr")
        return lab[st]
    def check(j):
        r = loads[j][1]
        if len(r) == 1: k(f"v_cmp_eq_u32 vcc, -1, v{r[0]}")
        else:
            k(f"v_max3_u32 v{tmp}, v{r[0]}, v{r[1]}, v{r[2]}"); k(f"v_max_u32 v{tmp}, v{tmp}, v{r[3]}"); k(f"v_cmp_eq_u32 vcc, -1, v{tmp}")
    k(f"s_mov_b32 s70, {TIMEOUT}")
    if not pre_issued:
        for j in range(n): k(loads[j][0])
    emitted = set(); deferred = []
    def spin(st):
        m = len(st)
        rots = [st[i:] + st[:i] for i in range(m)]
        for i, r in enumerate(rots):
            emitted.add(r); k.place(L_(r))
            j = r[0]
            k(f"s_waitcnt vmcnt({m-1})")
            check(j)
            hit = ("hit", r)
            k(f"s_cbranch_vccz {L_(hit)}"); deferred.append(r)
            k(loads[j][0])
            if i == m - 1:
                k("s_sub_u32 s70, s70, 1"); k(f"s_cbranch_scc0 {L_(rots[0])}"); k(f"s_branch {abort}")
    def hit(r):
        k.place(L_(("hit", r)))
        while True:
            for x in loads[r[0]][2]: k(x)
            r = r[1:]
            if not r:
                k(f"s_branch {done}"); return
            k(f"s_waitcnt vmcnt({len(r)-1})")
            check(r[0])
            miss = ("miss", r)
            k(f"s_cbranch_vccnz {L_(miss)}"); pend.append(r)
    spin(tuple(range(n)))
    pend = []; seen_hit = set(); seen_miss = set()
    while deferred or pend:
        while deferred:
            r = deferred.pop(0)
            if r not in seen_hit: seen_hit.add(r); hit(r)
        while pend:
            r = pend.pop(0)
            if r in seen_miss: continue
            seen_miss.add(r)
            k.place(L_(("miss", r)))
            k(loads[r[0]][0])
            nr = r[1:] + r[:1]
            if nr in emitted: k(f"s_branch {L_(nr)}")
            else: spin(nr)
    k.place(done)

def poll_mem(k, s_addr, abort, t=44, filler=()):
    lp = k.label("Lpm")
    k(f"s_mov_b32 s70, {TIMEOUT}")
    k.place(lp)
    k(f"buffer_load_dword v{t}, v4, {WL}, s{s_addr} offen sc1")
    k(f"buffer_load_dwordx4 v3, {WL}, s{s_addr} offen sc1 lds")
    k(f"buffer_load_dwordx4 v3, {WL}, s{s_addr} offen offset:1024 sc1 lds")
    k("s_sub_u32 s70, s70, 1")
    k(f"s_cbranch_scc1 {abort}")
    for x in filler: k(x)
    k("s_waitcnt vmcnt(2)")
    k(f"v_cmp_eq_u32 vcc, -1, v{t}")
    k(f"s_cbranch_vccnz {lp}")
    k("s_waitcnt vmcnt(0)")

def poll_mem2(k, s_addr, abort, R0, R1, t):
    lp = k.label("Lpm"); got = [k.label("Lpg"), k.label("Lpg")]; join = k.label("Lpj")
    R = [R0, R1]
    def iss(d):
        k(f"buffer_load_dwordx4 {vr(R[d],4)}, v3, {WL}, s{s_addr} offen sc1"); k(f"buffer_load_dwordx4 {vr(R[d]+4,4)}, v4, {WL}, s{s_addr} offen sc1")
    k(f"s_mov_b32 s70, {TIMEOUT}")
    iss(0)
    k("s_nop 15")
    k.place(lp)
    for d in range(2):
        iss(1-d)
        if d == 0:
            k("s_sub_u32 s70, s70, 1"); k(f"s_cbranch_scc1 {abort}")
        k("s_waitcnt vmcnt(2)")
        k(f"v_max_u32 v{t}, v{R[d]}, v{R[d]+4}"); k(f"v_cmp_eq_u32 vcc, -1, v{t}")
        k(f"s_cbranch_vccz {got[0]}" if d == 0 else f"s_cbranch_vccnz {lp}")
    for d in (1, 0):
        k.place(got[d])
        k(f"ds_write_b128 v3, {vr(R[d],4)}"); k(f"ds_write_b128 v4, {vr(R[d]+4,4)}")
        if d == 1: k(f"s_branch {join}")
    k.place(join)
    k("s_waitcnt lgkmcnt(0)")

def mem_full_check(M, t):
    r = list(range(M, M+28))
    out = [f"v_max3_u32 v{t}, v{r[0]}, v{r[1]}, v{r[2]}"]
    r = r[3:]
    while len(r) >= 2:
        out.append(f"v_max3_u32 v{t}, v{t}, v{r[0]}, v{r[1]}"); r = r[2:]
    out.append(f"v_max_u32 v{t}, v{t}, v{r[0]}")
    return out

def mem_common_setup(k):
    k("v_lshlrev_b32 v1, 4, v0")
    k("v_and_b32 v2, 8, v0")
    k("v_cmp_eq_u32 vcc, 0, v2")
    k("v_mov_b32 v2, 0xeeee")
    k("v_mov_b32 v3, 0x4444")
    k("v_cndmask_b32 v2, v2, v3, vcc")
    k(f"s_lshl_b32 s46, s{S_WAVE}, 11"); k("s_mov_b32 m0, s46")
    k("v_add_u32 v3, s46, v1")
    k(f"s_cmp_eq_u32 s{S_WAVE}, 3"); k("s_cselect_b32 s47, 7, 15")
    k("v_and_b32 v4, s47, v0"); k("v_lshlrev_b32 v4, 7, v4"); k("v_add_u32 v4, s46, v4")

M = 16
SPW = 8*176
def gen_chain_A(k, st, abort, w):
    TT = 8192; SP = TT + 4*3584
    def W(i, p):
        o = i*7 + p
        return vr(256 + 8*o, 8) if o < 32 else vr(120 + 8*(o-32), 8)
    ACC = [52, 56, 60]; CV = 114; TB = [64, 68]; XK = 72; MK = 100; SX0, SX1, SM = 44, 48, 116
    def xk(pair, t): return XK + (pair*2 + t)*4
    XS = XK + 24
    def loadx():
        for t in range(2):
            if t == 1: k(f"s_add_u32 s64, s62, {14*1024}")
            so = "s62" if t == 0 else "s64"
            for pr in range(3):
                k(f"buffer_load_dwordx4 {vr(xk(pr,t),4)}, v6, {WL}, {so} offen offset:{pr*1024} sc1")
            k(f"buffer_load_dwordx2 {vr(XS+2*t,2)}, v14, {WL}, {so} offen sc1")
        k(f"s_add_u32 s62, s62, {28*1024}")
    loop = k.label("LA")
    k(f"s_mov_b32 s61, {L.MEM[0]}")
    k(f"s_mul_i32 s65, s60, 640"); k(f"s_add_u32 s65, s65, {L.PIM[0]}")
    k(f"s_mov_b32 s62, {L.XTA[0]}")
    k("s_mov_b32 s96, 0"); k("s_mov_b32 s98, 0")
    ugate(k, "s98", "v_lshlrev_b32 v16, 3, v1", 16, abort)
    loadx()
    k("s_mov_b32 s67, 63")
    gen.tl(k, 1, 16)
    for r in range(2): k(f"v_mov_b64 {vr(ACC[1]+2*r,2)}, 0")
    stamp_init(k)
    redo = k.label("LAr")
    own = [2*w, (2*w+1) % 7]; rest = [p for p in range(7) if p not in own]
    TAc = [ACC[0], ACC[1], ACC[2], TB[0], SM, ACC[0], ACC[1]]
    NE = 5
    k.place(loop)
    for i in range(NE):
        for r in range(2): k(f"v_mov_b64 {vr(TAc[i]+2*r,2)}, 0")
    stamp(k, 0)
    sm = lambda i, reg, p: f"v_smfmac_f32_16x16x64_bf16 {vr(TAc[i],4)}, {vr(reg,4)}, {W(i,p)}, v2"
    lp = k.label("Lpm"); got = [k.label("Lpg"), k.label("Lpg")]; join = k.label("Lpj")
    PR = [44, 100]
    def iss(d):
        for e in range(2): k(f"buffer_load_dwordx4 {vr(PR[d]+4*e,4)}, v{3+e}, {WL}, s61 offen sc1")
    k(f"s_mov_b32 s70, {TIMEOUT}")
    iss(0)
    k("s_nop 15")
    k.place(lp)
    for d in range(2):
        iss(1-d)
        if d == 0:
            k("s_sub_u32 s70, s70, 1"); k(f"s_cbranch_scc1 {abort}")
        k("s_waitcnt vmcnt(2)")
        if w < 3: k(f"v_max_u32 v{CV}, v{PR[d]}, v{PR[d]+4}")
        else:
            k(f"v_max3_u32 v{CV}, v{PR[d]}, v{PR[d]+4}, v{PR[d]+5}"); k(f"v_max3_u32 v{CV}, v{CV}, v{PR[d]+6}, v{PR[d]+7}")
        k(f"v_cmp_eq_u32 vcc, -1, v{CV}")
        k(f"s_cbranch_vccz {got[0]}" if d == 0 else f"s_cbranch_vccnz {lp}")
    for d in (1, 0):
        k.place(got[d])
        stamp(k, 1)
        k(f"ds_write_b128 v3, {vr(PR[d],4)}")
        if w < 3: k(f"ds_write_b128 v4, {vr(PR[d]+4,4)}")
        for i in range(NE1):
            for e in range(2): k(sm(i, PR[d]+4*e, own[e]))
        k("s_waitcnt lgkmcnt(0)")
        k("s_barrier")
        stamp(k, 2)
        for p in rest: k(f"ds_read_b128 {vr(M+4*p,4)}, v1 offset:{p*1024}")
        for i in range(NE1, NE):
            for e in range(2): k(sm(i, PR[d]+4*e, own[e]))
        if d == 1: k(f"s_branch {join}")
    k.place(join)
    mk = [f"ds_read2_b32 {vr(MK,2)}, v7 offset0:0 offset1:32", f"ds_read2_b32 {vr(MK+2,2)}, v7 offset0:1 offset1:33",
          f"ds_read2_b32 {vr(MK+4,2)}, v7 offset0:128 offset1:160", f"ds_read2_b32 {vr(MK+6,2)}, v7 offset0:129 offset1:161",
          f"ds_read2_b32 {vr(MK+8,2)}, v15 offset0:0 offset1:32", f"ds_read2_b32 {vr(MK+10,2)}, v15 offset0:1 offset1:33",
          f"ds_read2_b32 {vr(MK+12,2)}, v5 offset0:0 offset1:32"]
    T0R = ACC[2]
    tr = lambda j: f"ds_read_b64_tr_b16 {vr(TB[(j >> 1) & 1] + 2*(j & 1),2)}, v9 offset:{j*512}"
    for i in range(7):
        ps = rest if i < NE else rest + own
        main = [sm(i, M+4*p, p) for p in ps]
        side = {g: [] for g in range(7)}
        if i == 0:
            for q in range(5): main[q] = f"s_waitcnt lgkmcnt({4-q})\n" + main[q]
        else:
            pa = TAc[i-1]
            side[2] = [f"v_cvt_pk_bf16_f32 v{CV}, v{pa}, v{pa+1}"]
            side[3] = [f"v_cvt_pk_bf16_f32 v{CV+1}, v{pa+2}, v{pa+3}"]
            side[4] = [f"ds_write_b64 v8, {vr(CV,2)} offset:{(i-1)*512}"]
        if i == 1: side[0] = [f"ds_read_b128 {vr(M+4*own[0],4)}, v1 offset:{own[0]*1024}"]; side[1] = [f"ds_read_b128 {vr(M+4*own[1],4)}, v1 offset:{own[1]*1024}"]
        if i == 2: side[0] = [f"v_mov_b64 {vr(ACC[0],2)}, 0"]; side[1] = [f"v_mov_b64 {vr(ACC[0]+2,2)}, 0"]
        if i == 3: side[0] = [mk[6], f"v_mov_b64 {vr(ACC[1],2)}, 0"]; side[1] = [mk[5], f"v_mov_b64 {vr(ACC[1]+2,2)}, 0"]
        if i == 4: side[0] = [tr(2)]; side[1] = ["s_waitcnt vmcnt(0)", mk[0]]; side[2] = [mk[1]] + side[2]; side[3] = [mk[2]] + side[3]
        if i == 5: main[5] = "s_waitcnt lgkmcnt(6)\n" + main[5]
        if i == 5: side[0] = [tr(3)]; side[1] = [mk[3]]; side[2] = [mk[4]] + side[2]; side[5] = [tr(4)]; side[6] = [f"ds_read_b64_tr_b16 {vr(T0R,2)}, v9"]
        if i == 6: side[0] = [f"ds_read_b64_tr_b16 {vr(T0R+2,2)}, v9 offset:512"]; side[5] = [tr(5)]
        interleave(k, main, side)
    a = TAc[6]
    stamp(k, 3)
    fc = mem_full_check(M, a)
    def smm(pr, tb, first=False):
        c = (lambda r: "0") if first else (lambda r: vr(r,4))
        return [f"v_mfma_f32_16x16x32_bf16 {vr(SX0,4)}, {vr(xk(pr,0),4)}, {vr(tb,4)}, {c(SX0)}",
                f"v_mfma_f32_16x16x32_bf16 {vr(SX1,4)}, {vr(xk(pr,1),4)}, {vr(tb,4)}, {c(SX1)}",
                f"v_mfma_f32_16x16x32_bf16 {vr(SM,4)}, {vr(MK+4*pr,4)}, {vr(tb,4)}, {c(SM)}"]
    k("s_waitcnt lgkmcnt(2)")
    t1 = smm(1, TB[1], True); t0 = smm(0, T0R); t2 = smm(2, TB[0])
    k(t1[0]); k(t1[1])
    k(f"v_cvt_pk_bf16_f32 v{CV}, v{a}, v{a+1}")
    k(f"v_cvt_pk_bf16_f32 v{CV+1}, v{a+2}, v{a+3}")
    k(t1[2])
    k(f"ds_write_b64 v8, {vr(CV,2)} offset:{6*512}")
    k(f"ds_read_b64_tr_b16 {vr(CV,2)}, v9 offset:{6*512}")
    interleave(k, t0, {0: fc[0:2], 1: fc[2:4], 2: fc[4:6] + ["s_waitcnt lgkmcnt(2)"]})
    interleave(k, t2, {0: fc[6:8], 1: fc[8:10], 2: fc[10:12] + ["s_waitcnt lgkmcnt(0)"]})
    k(f"v_mfma_f32_16x16x16_bf16 {vr(SX0,4)}, {vr(XS,2)}, {vr(CV,2)}, {vr(SX0,4)}")
    k(f"v_mfma_f32_16x16x16_bf16 {vr(SX1,4)}, {vr(XS+2,2)}, {vr(CV,2)}, {vr(SX1,4)}")
    k(fc[12])
    k(f"v_mfma_f32_16x16x16_bf16 {vr(SM,4)}, {vr(MK+12,2)}, {vr(CV,2)}, {vr(SM,4)}")
    k(fc[13])
    k(f"v_cmp_eq_u32 vcc, -1, v{a}")
    Y = TB[0]
    for r in range(4): k(f"v_add_f32_dpp v{Y+r}, v{SX0+r}, v{SX0+r} row_ror:8 row_mask:0xf bank_mask:0x3")
    for r in range(4): k(f"v_add_f32_dpp v{Y+r}, v{SX1+r}, v{SX1+r} row_ror:8 row_mask:0xf bank_mask:0xc")
    k(f"ds_write_b128 v10, {vr(Y,4)}")
    for r in range(4): k(f"v_add_f32_dpp v{Y+4}, v{SM+r}, v{SM+r} row_ror:8 row_mask:{'0x3' if r<2 else '0xc'} bank_mask:{'0xc' if r&1 else '0x3'}")
    k(f"ds_write_b32 v11, v{Y+4}")
    k(f"s_cbranch_vccnz {redo}")
    k("s_waitcnt lgkmcnt(0)")
    k("s_barrier")
    stamp(k, 4)
    R = 16
    for q in range(4): k(f"ds_read_b64 {vr(R+2*q,2)}, v12 offset:{q*SPW}")
    k("s_waitcnt lgkmcnt(2)"); k(f"v_pk_add_f32 {vr(R,2)}, {vr(R,2)}, {vr(R+2,2)}")
    k("s_waitcnt lgkmcnt(0)"); k(f"v_pk_add_f32 {vr(R+4,2)}, {vr(R+4,2)}, {vr(R+6,2)}")
    k(f"v_pk_add_f32 {vr(R,2)}, {vr(R,2)}, {vr(R+4,2)}")
    def allred32(v, t, op):
        for sh in (8, 4, 2, 1):
            k(f"{op}_dpp v{v}, v{v}, v{v} row_ror:{sh} row_mask:0xf bank_mask:0xf")
        k(f"v_mov_b32 v{t}, v{v}")
        k(f"v_permlane16_swap_b32 v{v}, v{t}")
        k(f"{op} v{v}, v{v}, v{t}")
    slowmax = k.label("LAm"); lpub = k.label("LAp")
    def normalise(check):
        k(f"v_exp_f32 v{R+4}, v{R}"); k(f"v_exp_f32 v{R+5}, v{R+1}")
        k(f"v_add_f32 v{R+2}, v{R+4}, v{R+5}")
        allred32(R+2, R+3, "v_add_f32")
        if check:
            k(f"v_med3_f32 v{R+3}, v{R+2}, s56, v0"); k(f"v_cmp_neq_f32 vcc, v{R+3}, v{R+2}")
        k(f"v_rcp_f32 v{R+2}, v{R+2}")
        k(f"v_mul_f32 v{R+4}, v{R+4}, v{R+2}"); k(f"v_mul_f32 v{R+5}, v{R+5}, v{R+2}")
        k(f"v_cvt_pk_bf16_f32 v{R+4}, v{R+4}, v{R+5}")
        k(f"v_min_u32 v{R+4}, -2, v{R+4}")
    normalise(True)
    k(f"s_cbranch_vccnz {slowmax}")
    k.place(lpub)
    publish(k, f"buffer_store_dword v{R+4}, v13, {WL}, s65 offen")
    stamp(k, 5)
    if XACK:
        k("s_waitcnt vmcnt(0)"); stamp(k, 6)
    k("s_barrier")
    k("s_add_u32 s98, s98, 1")
    ugate(k, "s98", "v_lshlrev_b32 v24, 3, v1", 24, abort)
    loadx()
    if ASL: k(f"s_sleep {ASL}")
    if not XACK: stamp(k, 6)
    stamp_acc(k, 7)
    k(f"s_add_u32 s65, s65, {L.PSZ}"); k(f"s_add_u32 s61, s61, {L.MSTEP}")
    if gen.TL:
        for (n, ix) in ((53, 2), (33, 3)) + (((63, 10), (62, 11), (61, 12), (60, 13), (58, 14)) if gen.TL == 4 else ()):
            lz = k.label(); k(f"s_cmp_lg_u32 s67, {n}"); k(f"s_cbranch_scc1 {lz}")
            if ix >= 10: k(f"s_cmp_lg_u32 s{S_LAYER}, 0"); k(f"s_cbranch_scc1 {lz}")
            gen.tl(k, ix, 20, 5 if ix < 10 else 0); k.place(lz)
    k("s_sub_u32 s67, s67, 1"); k("s_cmp_lg_u32 s67, 0"); k(f"s_cbranch_scc1 {loop}")
    gen.tl(k, 4, 16)
    stamp_out(k)
    out = k.label("LAo"); k(f"s_branch {out}")
    k.place(slowmax)
    k(f"v_max_f32 v{R+2}, v{R}, v{R+1}")
    allred32(R+2, R+3, "v_max_f32")
    k(f"v_sub_f32 v{R}, v{R}, v{R+2}"); k(f"v_sub_f32 v{R+1}, v{R+1}, v{R+2}")
    normalise(False)
    k(f"s_branch {lpub}")
    k.place(redo)
    k("s_waitcnt lgkmcnt(0)"); k("s_barrier")
    k(f"s_branch {loop}")
    k.place(out)

def setup_A(k, abort):
    TT = 8192; SP = TT + 4*3584
    mem_common_setup(k)
    k(f"s_cmp_eq_u32 s{S_WAVE}, 3"); k("s_cselect_b32 s46, 0, 1024"); k("v_add_u32 v4, s46, v3"); k("s_cselect_b64 vcc, -1, 0"); k("v_cndmask_b32 v4, v4, v1, vcc")
    k(f"s_lshr_b32 s46, s{S_WAVE}, 1"); k("s_mul_i32 s46, s46, 7")
    k(f"s_and_b32 s69, s{S_WAVE}, 1")
    k("s_lshl_b32 s66, s69, 2"); k("s_add_u32 s66, s66, s46")
    k("s_add_u32 s68, s46, 3")
    k("v_min_u32 v16, 27, v0"); k("v_lshrrev_b32 v17, 2, v16"); k("v_and_b32 v16, 3, v16"); k("v_lshlrev_b32 v16, 2, v16"); k("v_lshl_add_u32 v16, v17, 7, v16")
    k(f"s_mul_i32 s54, s60, {7*128}"); k(f"s_add_u32 s54, s54, {L.SF(0)}"); k("s_mov_b32 s55, 0")
    k(f"s_mul_i32 s47, s60, 28"); k("s_lshl_b32 s48, s66, 1"); k("s_add_u32 s48, s48, s47")
    k(f"s_mul_i32 s48, s48, {14*1024}"); k(f"s_add_u32 s48, s48, {L.WQ}")
    k("s_lshl_b32 s49, s68, 1"); k("s_add_u32 s49, s49, s69"); k("s_add_u32 s49, s49, s47")
    k(f"s_mul_i32 s49, s49, {14*1024}"); k(f"s_add_u32 s49, s49, {L.WQ}")
    for r in range(4):
        slab_round_wait(k, r, "s54", 16, 17, abort)
        for i in range(7):
            k(f"s_add_u32 s50, s{48 if i < 6 else 49}, {(i*14*1024 if i < 6 else 0) + r*4096}")
            for ks in range(4*r, min(4*r+4, 14)):
                n = i*14 + ks; reg = 256 + 4*n if n < 64 else 120 + 4*(n-64)
                k(f"buffer_load_dwordx4 {vr(reg,4)}, v1, {WS}, s50 offen offset:{(ks%4)*1024} sc1{' nt' if WNT else ''}")
    k("v_and_b32 v16, 15, v0")
    k("v_lshrrev_b32 v17, 4, v0")
    k("v_bfe_u32 v18, v0, 1, 1"); k("v_lshlrev_b32 v18, 2, v18")
    k("v_bfe_u32 v19, v0, 2, 1"); k("v_lshl_add_u32 v18, v19, 1, v18")
    k("v_and_b32 v19, 1, v0"); k("v_add_u32 v18, v18, v19")
    k("v_lshlrev_b32 v18, 4, v18")
    k("v_lshrrev_b32 v19, 1, v17"); k("v_lshl_add_u32 v18, v19, 8, v18")
    k("v_and_b32 v19, 1, v17"); k("v_lshl_add_u32 v18, v19, 3, v18")
    k("s_lshl_b32 s46, s66, 9"); k("v_add_u32 v7, s46, v18")
    k("v_add_u32 v15, 1024, v7")
    k("s_lshl_b32 s46, s68, 9"); k("s_lshl_b32 s47, s69, 2"); k("s_add_u32 s46, s46, s47")
    k("v_add_u32 v5, s46, v18")
    k(f"s_mul_i32 s46, s{S_WAVE}, 3584"); k(f"s_add_u32 s46, s46, {TT}")
    k("v_lshlrev_b32 v8, 5, v16"); k("v_lshl_add_u32 v8, v17, 3, v8"); k("v_add_u32 v8, s46, v8")
    k("v_lshlrev_b32 v9, 3, v0"); k("v_add_u32 v9, s46, v9")
    k(f"s_mul_i32 s46, s{S_WAVE}, {SPW}"); k(f"s_add_u32 s46, s46, {SP}")
    k("v_and_b32 v19, 7, v0"); k("v_mul_u32_u24 v18, 176, v19"); k("v_add_u32 v18, s46, v18")
    k("v_lshrrev_b32 v19, 3, v16")
    k("v_lshl_add_u32 v10, v17, 5, v18"); k("v_lshl_add_u32 v10, v19, 4, v10")
    k("v_and_b32 v20, 1, v17"); k("v_lshl_add_u32 v11, v20, 4, v18")
    k("v_lshrrev_b32 v20, 1, v17"); k("v_lshl_add_u32 v11, v20, 3, v11")
    k("v_lshl_add_u32 v11, v19, 2, v11"); k("v_add_u32 v11, 128, v11")
    k(f"v_mov_b32 v20, {hx(f2u(-1e30))}"); k("v_mov_b32 v21, v20")
    k("ds_write_b64 v18, v[20:21] offset:160")
    k("v_and_b32 v19, 31, v0"); k("v_lshrrev_b32 v20, 5, v0")
    k(f"s_lshl_b32 s46, s{S_WAVE}, 1"); k("v_add_u32 v20, s46, v20")
    k("v_lshlrev_b32 v21, 3, v19"); k("v_cmp_gt_u32 vcc, 20, v19"); k("v_mov_b32 v22, 160")
    k("v_cndmask_b32 v21, v22, v21, vcc")
    k("v_mul_u32_u24 v22, 176, v20"); k("v_add_u32 v12, v21, v22"); k(f"v_add_u32 v12, {SP}, v12")
    k("v_lshrrev_b32 v21, 2, v19"); k("v_lshl_add_u32 v21, v21, 3, v20"); k("v_lshlrev_b32 v21, 4, v21")
    k("v_and_b32 v22, 3, v19"); k("v_lshl_add_u32 v21, v22, 2, v21")
    k("v_mov_b32 v22, 0x7fffffff"); k("v_cndmask_b32 v13, v22, v21, vcc")
    k("s_lshl_b32 s46, s68, 10"); k("s_lshl_b32 s47, s69, 3"); k("s_add_u32 s46, s46, s47")
    k("v_add_u32 v14, s46, v1")
    k("s_lshl_b32 s46, s66, 10"); k("v_add_u32 v6, s46, v1")
    k(f"s_mov_b32 s56, {hx(f2u(2.0**-60))}"); k(f"v_mov_b32 v0, {hx(f2u(2.0**60))}")
    k("s_waitcnt vmcnt(0) lgkmcnt(0)")

B_TB = 8192
B_OUT = B_TB + 8192
B_LW = B_OUT + 8192
CHAIN_LDS = B_LW + 4*28*1024

def setup_B(k, abort):
    mem_common_setup(k)
    k("v_lshrrev_b32 v131, 2, v0"); k(f"v_mul_u32_u24 v131, {7*128}, v131"); k("v_and_b32 v130, 3, v0"); k("v_lshl_add_u32 v130, v130, 2, v131")
    k("s_lshr_b32 s54, s60, 1"); k("s_lshl_b32 s54, s54, 7"); k(f"s_add_u32 s54, s54, {L.SF(0) + 112*128}"); k("s_mov_b32 s55, 0")
    k(f"s_lshl_b32 s46, s{S_WAVE}, 2"); k("s_mul_i32 s46, s46, 28"); k("s_lshl_b32 s47, s60, 1"); k("s_add_u32 s46, s46, s47")
    k(f"s_mul_i32 s46, s46, {14*1024}"); k(f"s_add_u32 s46, s46, {L.WV}")
    k(f"s_mul_i32 s47, s{S_WAVE}, {28*1024}"); k(f"s_add_u32 s47, s47, {B_LW}")
    k("v_add_u32 v15, s47, v1")
    for r in range(4):
        slab_round_wait(k, r, "s54", 130, 131, abort)
        for hh in range(4):
            for t in range(2):
                k(f"s_add_u32 s48, s46, {(hh*28 + t)*14*1024 + r*4096}")
                for ks in range(4*r, min(4*r+4, 14)):
                    n = t*14 + ks; q = hh*28 + n
                    reg = 16 + 4*n if hh == 3 else (256 + 4*q if q < 64 else 176 + 4*(q-64))
                    k(f"buffer_load_dwordx4 {vr(reg,4)}, v1, {WS}, s48 offen offset:{(ks%4)*1024} sc1{' nt' if WNT else ''}")
    req, ev = ugate_parts(k, "0", "v_lshlrev_b32 v130, 3, v1", 130)
    k("s_mov_b32 s96, 0"); req(); k(f"s_mov_b32 s48, {L.MEM[0]}"); k(f"buffer_load_dword v132, v4, {WL}, s48 offen sc1")
    k("s_waitcnt vmcnt(0)")
    ev()
    for n in range(28): k(f"ds_write_b128 v15, {vr(16+4*n,4)} offset:{n*1024}")
    k("s_waitcnt lgkmcnt(0)")
    k("v_and_b32 v16, 15, v0"); k("v_lshrrev_b32 v17, 4, v0"); k("v_and_b32 v18, 7, v0")
    k(f"s_mul_i32 s46, s{S_WAVE}, 2560")
    k("v_lshl_add_u32 v7, v17, 3, v18"); k("v_lshlrev_b32 v7, 4, v7"); k("v_add_u32 v7, s46, v7")
    k("v_lshrrev_b32 v19, 3, v16"); k("v_mul_u32_u24 v19, 640, v19"); k("v_add_u32 v7, v7, v19")
    k("v_mul_u32_u24 v8, 640, v17"); k("v_lshl_add_u32 v8, v18, 4, v8"); k("v_add_u32 v8, s46, v8"); k("v_add_u32 v8, 512, v8")
    k(f"v_mul_u32_u24 v19, {28*1024}, v17"); k("v_lshl_add_u32 v19, v16, 7, v19"); k("v_mov_b32 v20, 0x7fffffff")
    k(f"v_cmp_gt_u32 vcc, {NB}, v16"); k("v_cndmask_b32 v5, v20, v19, vcc")
    k(f"s_lshl_b32 s46, s{S_WAVE}, 11"); k(f"s_add_u32 s47, s46, {B_TB}")
    k("v_lshlrev_b32 v9, 4, v16"); k("v_lshl_add_u32 v9, v17, 2, v9"); k("v_add_u32 v9, s47, v9")
    k("v_add_u32 v10, s47, v1")
    k(f"s_lshl_b32 s46, s{S_WAVE}, 10"); k(f"s_add_u32 s47, s46, {B_OUT}"); k("v_add_u32 v11, s47, v1")
    k("v_bfe_u32 v19, v0, 2, 3"); k("v_lshrrev_b32 v20, 5, v0"); k("v_bfe_u32 v21, v0, 1, 1"); k("v_and_b32 v22, 1, v0")
    k(f"s_lshl_b32 s46, s{S_WAVE}, 1"); k("s_and_b32 s46, s46, 2"); k("v_add_u32 v21, s46, v21")
    k("v_lshl_add_u32 v12, v21, 4, v19"); k("v_lshlrev_b32 v12, 4, v12"); k("v_lshl_add_u32 v12, v22, 7, v12")
    k("v_lshl_add_u32 v12, v20, 3, v12"); k(f"v_add_u32 v12, {B_OUT}, v12")
    k("s_lshl_b32 s47, s60, 9"); k("s_lshl_b32 s48, s46, 7"); k("s_add_u32 s48, s48, s47")
    k("v_lshlrev_b32 v13, 2, v0"); k("v_add_u32 v13, s48, v13")
    k("v_lshlrev_b32 v14, 7, v21"); k("v_lshl_add_u32 v14, v19, 4, v14"); k("v_lshl_add_u32 v14, v22, 3, v14")
    k("v_lshl_add_u32 v14, v20, 2, v14"); k("v_add_u32 v14, s47, v14")
    k("v_mov_b32 v19, 0x7fffffff"); k(f"s_cmp_ge_u32 s{S_WAVE}, 2"); k("s_cselect_b64 vcc, -1, 0"); k("v_cndmask_b32 v14, v14, v19, vcc"); k("v_cndmask_b32 v13, v13, v19, vcc")
    lane0_addr(k, 6, 19); k("v_mov_b32 v0, 1")
    k("s_waitcnt vmcnt(0)")

def gen_chain_B(k, st, abort):
    ACC = [52, 56, 60]; FT = 64; HOLD = 67; ZA = 68; U = 76; P = 108; LW = 108; DUM = 66
    def W(hh, t, p):
        o = (hh*2 + t)*7 + p
        return vr(256 + 8*o, 8) if o < 32 else vr(176 + 8*(o-32), 8)
    loop = k.label("LB"); done = k.label("LBd"); first = k.label("LBf"); nofin = k.label("LBn")
    k(f"s_mov_b32 s61, {L.MEM[0]}"); k(f"s_mov_b32 s65, {L.PIM[0]}")
    k(f"s_lshl_b32 s62, s{S_WAVE}, 2"); k("s_mul_i32 s62, s62, 28"); k("s_lshl_b32 s46, s60, 1"); k("s_add_u32 s62, s62, s46")
    k("s_lshl_b32 s62, s62, 10"); k(f"s_add_u32 s62, s62, {L.UU[0]}")
    k(f"s_mul_i32 s63, s{S_WAVE}, 28"); k("s_add_u32 s63, s63, s46"); k("s_lshl_b32 s63, s63, 10"); k(f"s_add_u32 s63, s63, {L.VM[0] - L.VMSZ}")
    k(f"s_mov_b32 s66, {L.MEMN[0]}")
    k("s_mov_b32 s67, 0")
    gen.tl(k, 1, 44)
    stamp_init(k)
    k.place(loop)
    if True:
        k("s_add_u32 s98, s67, 1")
        ugate(k, "s98", "v_lshlrev_b32 v108, 3, v1", 108, abort)
    tl0(k, 10, 108)
    k("s_cmp_eq_u32 s67, 0"); k(f"s_cselect_b32 s57, {L.SPARE[0]}, s63"); k(f"s_cselect_b32 s58, {L.SPARE[0]}, s66")
    again = k.label("LBa"); k.place(again)
    TA = [52, 56, 60, 164, 168, 172, 44, 48]
    zero = [f"v_mov_b64 {vr(a_+2*h,2)}, 0" for a_ in TA for h in range(2)]
    stamp(k, 0)
    poll_mem(k, 61, abort, FT, zero)
    stamp(k, 1)
    k("s_barrier")
    stamp(k, 2)
    tl0(k, 11, 108)
    for p in range(7): k(f"ds_read_b128 {vr(M+4*p,4)}, v1 offset:{p*1024}")
    if NB:
        k(f"s_add_u32 s64, s62, {16*28*1024}")
        k(f"buffer_load_dword v{DUM}, v5, {WL}, s64 offen")
    exports = [f"buffer_store_dwordx4 {vr(ZA,4)}, v1, {WL}, s57 offen sc1", f"buffer_store_dwordx4 {vr(ZA+4,4)}, v1, {WL}, s57 offen offset:1024 sc1",
               f"buffer_store_dword v{HOLD}, v14, {WL}, s58 offen sc1"]
    uload = []
    for hh in range(4):
        for t in range(2):
            pre = [f"s_add_u32 s64, s62, {hh*28*1024}"] if (hh and t == 0) else []
            uload.append(pre + [f"buffer_load_dwordx4 {vr(U+(hh*2+t)*4,4)}, v1, {WL}, {'s64' if hh else 's62'} offen offset:{t*1024} sc1"])
    order = [(0,0),(0,1),(1,0),(3,0),(1,1),(2,0),(2,1),(3,1)]
    def fold(j):
        pa = TA[j]; hh, t = order[j]
        return [f"v_permlane32_swap_b32 v{pa}, v{pa+2}", f"v_permlane32_swap_b32 v{pa+1}, v{pa+3}",
                f"v_add_f32 v{pa}, v{pa}, v{pa+2}", f"v_add_f32 v{pa+1}, v{pa+1}, v{pa+3}",
                f"v_cvt_pk_bf16_f32 v{pa}, v{pa}, v{pa+1}", f"v_min_u32 v{pa}, -2, v{pa}\nds_write_b32 v9, v{pa} offset:{t*1024+hh*256}"]
    lw = [[f"ds_read_b128 {vr(LW+4*(n%14),4)}, v15 offset:{n*1024}" for n in range(14*u, 14*u+14)] for u in range(2)]
    vm = exports + uload
    plan = {i: [[] for _ in range(7)] for i in range(8)}
    for p in range(7): plan[0][p].append(lw[0][p])
    for n, (ti, g) in zip(range(7, 14), [(1,0),(1,2),(1,3),(1,4),(1,5),(2,2),(2,3)]): plan[ti][g].append(lw[0][n])
    for n, (ti, g) in enumerate([(4,2),(4,3),(4,4),(4,5),(4,6),(5,2),(5,3),(5,4),(5,5),(5,6),(6,2),(6,3),(6,4),(6,5)]): plan[ti][g].append(lw[1][n])
    for e, (ti, g) in zip(vm, VMPOS): plan[ti][g] += (e if isinstance(e, list) else [e])
    for i in range(1, 8):
        f = fold(i-1)
        for q in range(5): plan[i][2+q].append(f[q])
        if i < 7: plan[i+1][0].insert(0, f[5])
    for i, (hh, t) in enumerate(order):
        a = TA[i]
        if hh == 3: k("s_waitcnt lgkmcnt(0)")
        main = [f"v_smfmac_f32_16x16x64_bf16 {vr(a,4)}, {vr(M+4*p,4)}, {W(hh,t,p) if hh<3 else vr(LW+8*p,8)}, v2" for p in range(7)]
        if i == 0:
            for p in range(7): main[p] = "s_waitcnt lgkmcnt(6)\n" + main[p]
        if DIAG == 2 and i == 0: stamp(k, 3)
        interleave(k, main, dict(enumerate(plan[i])))
        if DIAG == 2 and i == 2: stamp(k, 4)
        if DIAG == 2 and i == 5: stamp(k, 5)
    fc = mem_full_check(M, FT)
    k(fold(6)[5])
    for x in fc[:6]: k(x)
    for x in fold(7): k(x)
    k(f"ds_read_b128 {vr(ZA,4)}, v10"); k(f"ds_read_b128 {vr(ZA+4,4)}, v10 offset:1024")
    for x in fc[6:]: k(x)
    redo = k.label("LBr")
    k(f"v_cmp_eq_u32 vcc, -1, v{FT}"); k(f"s_cbranch_vccnz {redo}")
    k(f"s_add_u32 s62, s62, {16*28*1024}"); k(f"s_add_u32 s61, s61, {L.MSTEP}")
    k(f"s_add_u32 s63, s63, {L.VMSZ}"); k(f"s_add_u32 s66, s66, {L.MEMSZ}")
    stamp(k, 3 if DIAG != 2 else 6)
    k("s_cmp_eq_u32 s67, 63"); k(f"s_cbranch_scc1 {done}")
    lp = k.label("Lpp")
    Q = P; OUT = P + 24
    k("s_waitcnt lgkmcnt(0)")
    tl0(k, 12, 108)
    k(f"s_mov_b32 s70, {TIMEOUT}")
    if BPS: k(f"s_sleep {BPS}")
    k.place(lp)
    for r in range(8): k(f"v_mov_b64 {vr(OUT+2*r,2)}, 0")
    def pv(heads, q):
        o = []
        for hh in heads:
            for t in range(2):
                d = OUT + 8*(hh & 1) + 4*t
                o.append(f"v_mfma_f32_16x16x32_bf16 {vr(d,4)}, {vr(U+(hh*2+t)*4,4)}, {vr(q,4)}, {vr(d,4)}")
        o.insert(1, f"v_max3_u32 v{FT+1}, v{FT+1}, v{q+1}, v{q+2}"); o.insert(3, f"v_max_u32 v{FT+1}, v{FT+1}, v{q+3}")
        return o
    mm = [f"v_mfma_f32_16x16x32_bf16 {vr(OUT,4)}, {vr(ZA,4)}, {vr(Q+8,4)}, {vr(OUT,4)}", f"v_max3_u32 v{FT+1}, v{FT+1}, v{Q+9}, v{Q+10}",
          f"v_mfma_f32_16x16x32_bf16 {vr(OUT+4,4)}, {vr(ZA+4,4)}, {vr(Q+8,4)}, {vr(OUT+4,4)}", f"v_max_u32 v{FT+1}, v{FT+1}, v{Q+11}"]
    k(f"v_mov_b32 v{FT+1}, 0")
    lds_ = [(f"buffer_load_dwordx4 {vr(Q,4)}, v7, {WL}, s65 offen sc1", [Q], pv((0, 1), Q)),
            (f"buffer_load_dwordx4 {vr(Q+4,4)}, v7, {WL}, s65 offen offset:1280 sc1", [Q+4], pv((2, 3), Q+4)),
            (f"buffer_load_dwordx4 {vr(Q+8,4)}, v8, {WL}, s65 offen sc1", [Q+8], mm)]
    if PMODE == 0: poll_rot(k, lds_, FT, abort)
    else:
        l1 = k.label("Lp1")
        k.place(l1)
        for x in lds_: k(x[0])
        k("s_sub_u32 s70, s70, 1"); k(f"s_cbranch_scc1 {abort}")
        k("s_waitcnt vmcnt(2)")
        if PMODE == 1:
            k(f"v_cmp_eq_u32 vcc, -1, v{Q}"); k(f"s_cbranch_vccnz {l1}")
        for j, x in enumerate(lds_):
            if j: k(f"s_waitcnt vmcnt({2-j})")
            for n, y in enumerate(x[2]):
                k(y)
                if n == 0 and (j or PMODE == 2): k(f"v_max_u32 v{FT+1}, v{FT+1}, v{x[1][0]}")
    if DIAG != 2: stamp(k, 4)
    if DIAG == 1:
        k(f"s_sub_u32 s71, {TIMEOUT}, s70"); k("s_add_u32 s94, s94, s71")
    k(f"v_cmp_eq_u32 vcc, -1, v{FT+1}")
    Y = ACC[0]
    for r in range(4): k(f"v_add_f32_dpp v{Y+r}, v{OUT+8+r}, v{OUT+r} row_ror:8 row_mask:0xf bank_mask:0x3")
    for r in range(4): k(f"v_add_f32_dpp v{Y+r}, v{OUT+4+r}, v{OUT+12+r} row_ror:8 row_mask:0xf bank_mask:0xc")
    k(f"ds_write_b128 v11, {vr(Y,4)}")
    k(f"s_cbranch_vccnz {lp}")
    tl0(k, 13, 108)
    k(f"s_add_u32 s65, s65, {L.PSZ}")
    k("s_add_u32 s67, s67, 1")
    k("s_waitcnt lgkmcnt(0)")
    k("s_barrier")
    if DIAG != 2: stamp(k, 5)
    for q in range(4): k(f"ds_read_b64 {vr(U+2*q,2)}, v12 offset:{q*1024}")
    k("s_waitcnt lgkmcnt(2)"); k(f"v_pk_add_f32 {vr(U,2)}, {vr(U,2)}, {vr(U+2,2)}")
    k("s_waitcnt lgkmcnt(0)"); k(f"v_pk_add_f32 {vr(U+4,2)}, {vr(U+4,2)}, {vr(U+6,2)}")
    k(f"v_pk_add_f32 {vr(U,2)}, {vr(U,2)}, {vr(U+4,2)}")
    k(f"v_cvt_pk_bf16_f32 v{HOLD}, v{U}, v{U+1}")
    k(f"v_min_u32 v{HOLD}, -2, v{HOLD}")
    publish(k, f"buffer_store_dword v{HOLD}, v13, {WL}, s61 offen")
    k("s_cmp_lg_u32 s67, 63"); k(f"s_cbranch_scc1 {nofin}")
    k(f"buffer_store_dword v{HOLD}, v14, {WL}, s66 offen sc1")
    k.place(nofin)
    if DIAG != 2: stamp(k, 6)
    stamp_acc(k, 7)
    if BSL: k(f"s_sleep {BSL}")
    k(f"s_branch {loop}")
    k.place(redo)
    k("s_waitcnt vmcnt(0) lgkmcnt(0)"); k("s_barrier"); k(f"s_mov_b32 s57, {L.SPARE[0]}"); k("s_mov_b32 s58, s57"); k(f"s_branch {again}")
    k.place(done)
    k("s_waitcnt lgkmcnt(0)")
    k(f"buffer_store_dwordx4 {vr(ZA,4)}, v1, {WL}, s63 offen sc1")
    k(f"buffer_store_dwordx4 {vr(ZA+4,4)}, v1, {WL}, s63 offen offset:1024 sc1")
    k("s_mov_b32 s96, 0")
    stamp_out(k)

def gen_chain_P(k, abort):
    k(f"s_lshl_b32 s46, s60, 2"); k(f"s_add_u32 s46, s46, s{S_WAVE}")
    k("s_mov_b32 s94, s46")
    k("v_lshlrev_b32 v1, 7, v0"); k("v_mov_b32 v20, 0x7fffffff")
    k(f"s_mul_i32 s47, s46, {448*128}"); k("v_add_u32 v2, s47, v1")
    k("v_and_b32 v3, 15, v0"); k(f"v_cmp_le_u32 vcc, {NB}, v3"); k("v_cndmask_b32 v3, v20, v2, vcc")
    k(f"s_mul_i32 s47, s46, {28*128}"); k("v_add_u32 v4, s47, v1"); k("v_cmp_gt_u32 vcc, 28, v0"); k("v_cndmask_b32 v4, v20, v4, vcc")
    k(f"s_mul_i32 s47, s46, {7*L.NMC*128}"); k("v_add_u32 v5, s47, v1"); k(f"v_cmp_gt_u32 vcc, {7*L.NMC}, v0"); k("v_cndmask_b32 v5, v20, v5, vcc")
    k(f"s_mul_i32 s47, s46, {10*L.NPC*128}"); k("v_add_u32 v6, s47, v1"); k(f"v_cmp_gt_u32 vcc, {10*L.NPC}, v0"); k("v_cndmask_b32 v6, v20, v6, vcc")
    k("v_min_u32 v7, 27, v0"); k("v_lshlrev_b32 v7, 8, v7")
    k("v_mov_b32 v12, 0"); k(f"s_mov_b32 s99, {L.PROG(0)}"); k("s_mov_b32 s95, 1")
    k(f"s_mov_b32 s62, {L.UU[0]}"); k(f"s_mov_b32 s63, {L.XTA[0]}")
    k(f"s_mov_b32 s64, {L.MEM[0]+L.MSTEP}"); k(f"s_mov_b32 s65, {L.PIM[0]}")
    k(f"s_mov_b32 s61, {L.MEM[0]}")
    def touch(v, mid=None):
        k(f"buffer_load_dword v8, v5, {WL}, s64 offen"); k(f"buffer_load_dword v8, v6, {WL}, s65 offen")
        k(f"buffer_load_dword v8, v4, {WL}, s63 offen")
        for j in range(7):
            if j == 3 and mid: mid()
            k(f"s_add_u32 s66, s62, {j*8192}")
            k(f"buffer_load_dword v8, v{v}, {WL}, s66 offen")
        k(f"s_add_u32 s62, s62, {16*28*1024}"); k(f"s_add_u32 s63, s63, {28*1024}")
        k(f"s_add_u32 s64, s64, {L.MSTEP}"); k(f"s_add_u32 s65, s65, {L.PSZ}")
    def probe(): k(f"buffer_load_dword v9, v7, {WL}, s61 offen sc1")
    k("s_mov_b32 s96, 0"); k("s_mov_b32 s98, 0")
    def pgate():
        ugate(k, "s98", "v_mov_b32 v24, v1", 24, abort); k("s_add_u32 s98, s98, 1")
    pgate(); touch(2)
    for i in range(1, PFD):
        pgate(); touch(3)
    k(f"s_add_u32 s61, s61, {L.MSTEP}")
    loop = k.label("LP"); lp = k.label("LPp"); go = k.label("LPg"); pend = k.label("LPe"); nt = k.label("LPn"); np_ = k.label("LPq")
    k.place(loop)
    k(f"s_cmp_ge_u32 s98, 63"); k(f"s_cbranch_scc1 {nt}")
    pgate()
    touch(3, probe)
    k("s_waitcnt vmcnt(4)")
    k("v_cmp_eq_u32 vcc, -1, v9"); k(f"s_cbranch_vccz {go}")
    k.place(nt)
    k(f"s_mov_b32 s70, {TIMEOUT}")
    k.place(lp)
    if PSL: k(f"s_sleep {PSL}")
    probe()
    k("s_sub_u32 s70, s70, 1"); k(f"s_cbranch_scc1 {abort}")
    k("s_waitcnt vmcnt(0)")
    k("v_cmp_eq_u32 vcc, -1, v9"); k(f"s_cbranch_vccnz {lp}")
    k.place(go)
    if True:
        k("s_cmp_lg_u32 s94, 0"); k(f"s_cbranch_scc1 {np_}")
        k("v_mov_b32 v13, s95"); k("s_mov_b64 exec, 1")
        k(f"buffer_store_dword v13, v12, {WL}, s99 offen sc1")
        k("s_mov_b64 exec, -1")
        k.place(np_)
    k(f"s_add_u32 s61, s61, {L.MSTEP}")
    k("s_add_u32 s95, s95, 1"); k("s_cmp_le_u32 s95, 63"); k(f"s_cbranch_scc1 {loop}")
    k.place(pend)

def chain_roles(k, ex):
    lP = k.label("LroleP")
    k("s_getreg_b32 s58, hwreg(HW_REG_XCC_ID)"); k("s_and_b32 s58, s58, 15"); k("s_add_u32 s58, s58, 1")
    body_init(k, ex)
    gen.tl(k, 15, 16, 0)
    k("s_cmp_ge_u32 s59, 30"); k(f"s_cbranch_scc1 {lP}")
    lB = k.label("LroleB")
    def agree(slow):
        lp = k.label("Lx")
        k("v_lshrrev_b32 v16, 2, v1"); k("v_min_u32 v16, 124, v16")
        k(f"s_mov_b32 s70, {TIMEOUT}")
        k.place(lp)
        k("buffer_load_dword v17, v16, s[8:11], 0 offen offset:128 sc1")
        k("s_sub_u32 s70, s70, 1"); k(f"s_cbranch_scc1 {ex}")
        k("s_waitcnt vmcnt(0)")
        k("v_cmp_eq_u32 vcc, 0, v17"); k(f"s_cbranch_vccnz {lp}")
        k("v_cmp_ne_u32 vcc, s58, v17"); k("s_cmp_lg_u64 vcc, 0"); k("s_cselect_b32 s1, 1, 0")
    k("s_cmp_ge_u32 s59, 16"); k(f"s_cbranch_scc1 {lB}")
    k("s_mov_b32 s60, s59")
    lA0 = k.label("LA0"); lB0 = k.label("LB0")
    k("v_lshlrev_b32 v16, 7, v0"); code_touch(k, lA0, 16384, True, 16, 17)
    setup_A(k, ex)
    sl = k.label("LslowA"); agree(sl)
    def per_wave(st):
        labs = [k.label("LAw") for _ in range(4)]
        for w in range(1, 4):
            k(f"s_cmp_eq_u32 s{S_WAVE}, {w}"); k(f"s_cbranch_scc1 {labs[w]}")
        for w in range(4):
            k.place(labs[w])
            top = k.label("Ltop"); k.place(top); gen_chain_A(k, st, ex, w); layer_next(k, top)
            k("s_endpgm")
    k.place(lA0)
    per_wave("")
    k.place(lB)
    k("s_sub_u32 s60, s59, 16")
    k("v_lshlrev_b32 v132, 7, v0"); code_touch(k, lB0, 8192, True, 132, 133)
    setup_B(k, ex)
    sl = k.label("LslowB"); agree(sl)
    k.place(lB0)
    top = k.label("Ltop"); k.place(top); gen_chain_B(k, "", ex); layer_next(k, top)
    k("s_endpgm")
    k.place(lP)
    k("s_sub_u32 s60, s59, 30")
    top = k.label("Ltop"); k.place(top); gen_chain_P(k, ex); layer_next(k, top)
    k("s_endpgm")
```

```python
import struct, sys
from asmlib import *
import layout as L

def f2u(x): return struct.unpack("<I", struct.pack("<f", x))[0]
def hx(x): return hex(x & 0xffffffff)

S_WS = 4
P_X, P_MEM0, P_WQ, P_WK, P_WV, P_WO = 16, 18, 20, 22, 24, 26
P_BQ, P_BK, P_BV, P_BO = 32, 34, 36, 38
P_OUT, P_DBG, P_WS = 40, 42, 44
S_WAVE = 3

def srd(k, d, base, nbytes):
    k(f"s_mov_b32 s{d}, s{base}")
    k(f"s_and_b32 s{d+1}, s{base+1}, 0xffff")
    k(f"s_mov_b32 s{d+2}, {hx(nbytes)}")
    k(f"s_mov_b32 s{d+3}, 0x20000")

def prologue(k, nwg):
    k(f"s_cmp_lt_u32 s2, {nwg}")
    k(f"s_cbranch_scc1 Lgo_{k.name}")
    k("s_endpgm")
    k.place(f"Lgo_{k.name}")
    k("s_load_dwordx16 s[16:31], s[0:1], 0")
    k("s_load_dwordx8 s[32:39], s[0:1], 64")
    k("s_load_dwordx4 s[40:43], s[0:1], 96")
    k("s_load_dwordx2 s[44:45], s[0:1], 112")
    k("v_lshrrev_b32 v1, 6, v0")
    k(f"v_readfirstlane_b32 s{S_WAVE}, v1")
    k("v_and_b32 v0, 63, v0")
    k("s_waitcnt lgkmcnt(0)")
    srd(k, S_WS, P_WS, L.WS_BYTES)

def epilogue(k):
    k.place(f"Lexit_{k.name}")
    k("s_endpgm")

WS = "s[4:7]"
WL = "s[12:15]"
S_LAYER = 0

def xreduce_g(k, v, tmp, op):
    k(f"v_mov_b32 v{tmp}, v{v}")
    k(f"v_permlane16_swap_b32 v{v}, v{tmp}")
    k(f"{op} v{v}, v{v}, v{tmp}")
    k(f"v_mov_b32 v{tmp}, v{v}")
    k(f"v_permlane32_swap_b32 v{v}, v{tmp}")
    k(f"{op} v{v}, v{v}, v{tmp}")

def div7(k, sq, srem, sx):
    k(f"s_mul_i32 s{sq}, s{sx}, 9363")
    k(f"s_lshr_b32 s{sq}, s{sq}, 16")
    k(f"s_mul_i32 s{srem}, s{sq}, 7")
    k(f"s_sub_u32 s{srem}, s{sx}, s{srem}")

TLBW = 0
QDELAY = 0
SLAB_LDS = 32768
DBG_INIT = 64

def lane_parts(k):
    k("v_and_b32 v2, 15, v0"); k("v_lshrrev_b32 v3, 4, v0")
    k("v_lshrrev_b32 v4, 2, v2"); k("v_lshlrev_b32 v4, 3, v4"); k("v_and_b32 v5, 3, v2"); k("v_add_u32 v4, v4, v5")
    k("v_lshlrev_b32 v6, 4, v0")

def wait_init(k, abort, vt):
    srd(k, 8, P_DBG, 256)
    k(f"v_mov_b32 v{vt}, {DBG_INIT}")
    wait_words(k, "0", vt, vt+1, 32, abort, nap=1, srd_="s[8:11]")

RING_LDS = SLAB_LDS + 56*1024
SLAB_END = RING_LDS + 4*16384

def body_slab(k, sb, abort):
    lane_parts(k)
    div7(k, 47, 48, sb)
    k("s_and_b32 s49, s47, 15"); k("s_lshr_b32 s50, s47, 4")
    k("s_cmp_eq_u32 s50, 0")
    k(f"s_cselect_b32 s8, s{P_WQ}, s{P_WV}"); k(f"s_cselect_b32 s9, s{P_WQ+1}, s{P_WV+1}"); k("s_and_b32 s9, s9, 0xffff")
    k(f"s_mov_b32 s10, {448*8192}"); k("s_mov_b32 s11, 0x20000")
    k("s_lshl_b32 s51, s49, 9")
    if TLBW:
        k("v_lshlrev_b32 v9, 16, v0"); k("buffer_load_dword v59, v9, s[8:11], s51 offen")
    k("v_lshrrev_b32 v9, 2, v0"); k("v_lshlrev_b32 v9, 13, v9"); k("v_and_b32 v10, 3, v0"); k("v_lshl_add_u32 v9, v10, 7, v9")
    k("s_lshl_b32 s54, s48, 2"); k(f"s_add_u32 s54, s54, s{S_WAVE}"); k("s_lshl_b32 s54, s54, 17"); k("s_add_u32 s54, s54, s51")
    k("buffer_load_dword v58, v9, s[8:11], s54 offen")
    k("v_lshrrev_b32 v9, 3, v0"); k("v_and_b32 v10, 7, v0"); k("v_xor_b32 v10, v10, v9")
    k("v_lshrrev_b32 v11, 5, v0"); k("v_and_b32 v9, 3, v9"); k("v_lshl_add_u32 v9, v11, 3, v9"); k("v_lshlrev_b32 v8, 13, v9"); k("v_lshl_add_u32 v8, v10, 4, v8")
    k("v_and_b32 v9, 7, v0"); k("v_xor_b32 v10, v3, v9"); k("v_lshl_add_u32 v10, v9, 3, v10"); k("v_lshlrev_b32 v10, 4, v10")
    k("v_bfe_u32 v9, v0, 3, 1"); k("v_lshl_add_u32 v10, v9, 12, v10")
    k(f"s_lshl_b32 s60, s{S_WAVE}, 14"); k(f"s_add_u32 s60, s60, {RING_LDS}")
    k("v_add_u32 v56, s60, v10"); k("v_xor_b32 v57, 64, v56")
    def dma_tile(srd_, sbase, ldsreg, ldsoff):
        k(f"s_add_u32 s55, s{sbase}, {16*8192}")
        for rh in range(2):
            for ln in range(4):
                k(f"s_add_u32 m0, s{ldsreg}, {ldsoff + (rh*4+ln)*1024 - ln*128}")
                k(f"buffer_load_dwordx4 v8, {srd_}, s{sbase if rh == 0 else 55} offen offset:{ln*128} lds")
    BA = 64
    lvt = k.label(); lbd = k.label()
    k(f"s_lshl_b32 s61, s{S_WAVE}, 13")
    srd(k, 64, P_WK, 448*8192)
    k("s_cmp_eq_u32 s50, 1"); k(f"s_cbranch_scc1 {lvt}")
    k(f"s_lshr_b32 s53, s{S_WAVE}, 1"); k("s_lshl_b32 s53, s53, 5")
    k(f"s_and_b32 s54, s{S_WAVE}, 1"); k("s_lshl_b32 s54, s54, 2"); k("s_add_u32 s53, s53, s54")
    k("s_lshl_b32 s54, s48, 6"); k("s_add_u32 s53, s53, s54")
    k("s_lshl_b32 s54, s53, 13"); k("s_add_u32 s54, s54, s51")
    dma_tile("s[64:67]", 54, 61, 0)
    k(f"s_branch {lbd}")
    k.place(lvt)
    srd(k, 64, P_WO, 16*229376)
    k("v_lshrrev_b32 v9, 3, v0"); k("v_mul_u32_u24 v9, 896, v9"); k("v_and_b32 v11, 7, v0"); k("v_lshl_add_u32 v9, v11, 4, v9")
    k("s_mul_i32 s54, s49, 229376"); k("s_lshl_b32 s55, s48, 7"); k("s_add_u32 s54, s54, s55"); k(f"s_mul_i32 s55, s{S_WAVE}, {64*896}"); k("s_add_u32 s54, s54, s55")
    for i in range(8):
        k(f"s_add_u32 m0, s61, {i*1024}")
        k(f"buffer_load_dwordx4 v9, s[64:67], s54 offen lds")
        if i < 7: k(f"s_add_u32 s54, s54, {8*896}")
    k.place(lbd)
    def atile(j):
        i, t = j >> 1, j & 1
        k(f"s_add_u32 s54, s{S_WAVE}, {4*i}"); k("s_lshl_b32 s54, s54, 18"); k("s_add_u32 s54, s54, s51")
        if t: k(f"s_add_u32 s54, s54, {4*8192}")
        dma_tile("s[8:11]", 54, 60, (j & 1)*8192)
    def aread(j):
        for ks in range(8): k(f"ds_read_b128 {vr(256+j*32+ks*4,4)}, v{56+(ks&1)} offset:{(j&1)*8192 + (ks>>1)*1024}")
    if TL == 2: k("s_memrealtime s[70:71]")
    atile(0); atile(1)
    if TL == 2: k("s_memrealtime s[72:73]")
    k(f"s_lshl_b32 s46, s{sb}, 2"); k(f"s_add_u32 s46, s46, s{S_WAVE}")
    lo = k.label(); lk = k.label(); lv = k.label(); lj = k.label()
    def blk(base):
        k(f"s_sub_u32 s52, s46, {base}"); k("s_mul_i32 s53, s52, 4682"); k("s_lshr_b32 s53, s53, 16"); k("s_mul_i32 s54, s53, 14"); k("s_sub_u32 s54, s52, s54")
        k("s_lshl_b32 s52, s52, 10")
    k("s_cmp_ge_u32 s46, 812"); k(f"s_cbranch_scc1 {lv}")
    k("s_cmp_ge_u32 s46, 784"); k(f"s_cbranch_scc1 {lk}")
    k("s_cmp_ge_u32 s46, 392"); k(f"s_cbranch_scc1 {lo}")
    blk(0); srd(k, 64, P_BQ, 448*896); k("s_mov_b32 s55, 896"); k("s_lshl_b32 s53, s53, 4"); k("v_add_u32 v7, s53, v2"); k(f"s_add_u32 s52, s52, {L.WBQ}"); k(f"s_branch {lj}")
    k.place(lo)
    blk(392); srd(k, 64, P_BO, 448*896); k("s_mov_b32 s55, 896")
    k("s_and_b32 s56, s53, 1"); k("s_lshr_b32 s53, s53, 1"); k("s_lshl_b32 s53, s53, 5"); k("s_lshl_b32 s56, s56, 2"); k("s_add_u32 s53, s53, s56")
    k("v_add_u32 v7, s53, v4"); k(f"s_add_u32 s52, s52, {L.WBO}"); k(f"s_branch {lj}")
    k.place(lk)
    blk(784); srd(k, 64, P_BK, 448*56); k("s_mov_b32 s55, 56"); k("s_lshl_b32 s53, s53, 2"); k("v_add_u32 v7, s53, v4"); k(f"s_add_u32 s52, s52, {L.WBK}"); k(f"s_branch {lj}")
    k.place(lv)
    blk(812); srd(k, 64, P_BV, 448*56); k("s_mov_b32 s55, 56"); k("s_lshl_b32 s53, s53, 4"); k("v_add_u32 v7, s53, v2"); k(f"s_add_u32 s52, s52, {L.WBV}")
    k("s_cmp_ge_u32 s46, 840"); k(f"s_cselect_b32 s52, {L.SPARE[0]}, s52")
    k.place(lj)
    k("s_lshl_b32 s53, s54, 5"); k("v_lshlrev_b32 v12, 3, v3"); k("v_add_u32 v12, s53, v12"); k("v_mul_lo_u32 v12, v12, s55")
    k("v_lshlrev_b32 v11, 1, v7"); k("v_cmp_le_u32 vcc, s55, v11"); k("v_add_u32 v12, v12, v11"); k("v_mov_b32 v11, 0x7fffffff"); k("v_cndmask_b32 v12, v12, v11, vcc")
    k("s_mov_b32 s53, 0")
    for j in range(8):
        k(f"buffer_load_ushort v{48+j}, v12, s[64:67], s53 offen")
        if j < 7: k("s_add_u32 s53, s53, s55")
    k("s_waitcnt vmcnt(24)"); k("s_barrier")
    srd(k, 64, P_DBG, 256); k(f"v_mov_b32 v13, {DBG_INIT}")
    if TL == 2: k("s_memrealtime s[74:75]")
    lq2 = k.label(); lr2 = k.label()
    k("s_cmp_eq_u32 s50, 0"); k(f"s_cbranch_scc1 {lq2}")
    k("v_bfe_u32 v9, v0, 2, 2"); k("v_lshl_add_u32 v9, v3, 3, v9"); k("v_lshlrev_b32 v9, 7, v9"); k("v_and_b32 v11, 3, v0"); k("v_lshl_add_u32 v9, v11, 4, v9")
    for tt in range(4):
        for ks in range(8):
            for h in range(2):
                k(f"ds_read_b64_tr_b16 {vr(BA+(tt*8+ks)*4+2*h,2)}, v9 offset:{(32*ks+4*h)*128 + (32*(tt>>1)+4*(tt&1))*2}")
            if ks % 4 == 3: k("s_waitcnt lgkmcnt(4)")
    k(f"s_branch {lr2}")
    k.place(lq2)
    k("v_xor_b32 v11, 64, v10")
    for tt in range(4):
        for ks in range(8): k(f"ds_read_b128 {vr(BA+(tt*8+ks)*4,4)}, v{10+(ks&1)} offset:{tt*8192 + (ks>>1)*1024}")
        k("s_waitcnt lgkmcnt(4)")
    k.place(lr2)
    k("s_cmp_eq_u32 s50, 0")
    k(f"s_cselect_b32 s56, {hx(f2u(L.LOG2E/16))}, {hx(f2u(1.0))}")
    k(f"s_cselect_b32 s57, {L.WQ}, {L.WV}")
    k("s_mul_i32 s58, s49, 28"); k("s_lshl_b32 s59, s48, 2"); k("s_add_u32 s58, s58, s59")
    k(f"s_mul_i32 s58, s58, {14*1024}"); k("s_add_u32 s57, s57, s58")
    k(f"s_lshl_b32 s58, s{S_WAVE}, 10"); k(f"s_add_u32 s58, s58, {SLAB_LDS}"); k("v_add_u32 v9, s58, v6")
    ACC = [192, 16]; OB = 224
    fin = k.label()
    k(f"s_lshl_b32 s62, s{sb}, 7"); k(f"s_add_u32 s62, s62, {L.SF(0)}"); k(f"s_lshl_b32 s63, s{S_WAVE}, 2"); k("v_mov_b32 v60, s63")
    k(f"s_lshl_b32 s58, s{S_WAVE}, 10"); k("s_add_u32 s57, s57, s58")
    k("s_mov_b32 s56, s56"); k("v_mov_b32 v62, s56"); k("v_mov_b32 v63, s56")
    def epi(i):
        o_ = []
        for tt in range(4):
            o = OB + tt*4
            for t in range(2):
                d = ACC[i & 1] + (t*4+tt)*4
                o_ += [f"v_mul_f32 v{d+r}, s56, v{d+r}" for r in range(4)]
                o_ += [f"v_cvt_pk_bf16_f32 v{o+2*t}, v{d}, v{d+1}", f"v_cvt_pk_bf16_f32 v{o+2*t+1}, v{d+2}, v{d+3}"]
            o_ += [f"s_add_u32 s58, s57, {tt*14*1024 + i*4096}", f"buffer_store_dwordx4 {vr(o,4)}, v6, {WS}, s58 offen sc1", f"ds_write_b128 v9, {vr(o,4)} offset:{tt*14*1024 + i*4096}"]
        return o_
    def flag(n):
        k(f"v_mov_b32 v61, {n}"); k("s_mov_b64 exec, 1"); k(f"buffer_store_dword v61, v60, {WS}, s62 offen sc1"); k("s_mov_b64 exec, -1")
    def capture(fn):
        n0 = len(k.lines); fn(); o_ = k.lines[n0:]; del k.lines[n0:]; return o_
    for i in range(4):
        if i == 3:
            k(f"s_cmp_ge_u32 s{S_WAVE}, 2"); k(f"s_cbranch_scc1 {fin}")
        if TL == 2 and i == 0: k("s_memrealtime s[76:77]")
        younger = [8, 1, 4, 4][i]
        k(f"s_waitcnt vmcnt({8+younger})"); aread(2*i)
        k(f"s_waitcnt vmcnt({younger})"); aread(2*i+1)
        if i == 2:
            okz = k.label()
            k("v_cmp_ne_u32 vcc, 32, v14"); k(f"s_cbranch_vccz {okz}")
            wait_words(k, "0", 13, 14, 32, abort, nap=2, srd_="s[64:67]", wg=False)
            k.place(okz)
        if i == 3: flag(1)
        k("s_waitcnt lgkmcnt(0)")
        if TL == 2 and i in (0, 2): k(f"s_memrealtime s[{78+i}:{79+i}]")
        side = (capture(lambda: (atile(2*i+2), atile(2*i+3))) if i < 3 else []) + (epi(i-1) if i else ["buffer_load_dword v14, v13, s[64:67], 0 offen sc1"])
        main = [f"v_mfma_f32_16x16x32_bf16 {vr(ACC[i&1]+(t*4+tt)*4,4)}, {vr(256+i*64+t*32+ks*4,4)}, {vr(BA+(tt*8+ks)*4,4)}, {'0' if ks == 0 else vr(ACC[i&1]+(t*4+tt)*4,4)}"
                for ks in range(8) for t in range(2) for tt in range(4)]
        per = -(-len(side)//60)
        for n, m_ in enumerate(main):
            k(m_)
            if n >= 3:
                for x in side[(n-3)*per:(n-2)*per]: k(x)
    k("s_waitcnt vmcnt(4)"); flag(2)
    for x in epi(3): k(x)
    j3 = k.label(); k(f"s_branch {j3}")
    k.place(fin)
    k("s_waitcnt vmcnt(20)"); flag(1)
    for x in epi(2): k(x)
    k.place(j3)
    if TL == 2: k("s_memrealtime s[82:83]")
    for j in range(4): k(f"v_lshl_or_b32 v{12+j}, v{49+2*j}, 16, v{48+2*j}")
    k(f"buffer_store_dwordx4 v[12:15], v6, {WS}, s52 offen sc1")
    k("s_waitcnt vmcnt(0) lgkmcnt(0)")
    flag(4)
    tl(k, 14, 12, 0)
    if TL == 2:
        for j in range(7):
            k(f"v_mov_b32 v12, s{70+2*j}"); k(f"s_sub_u32 s46, s101, {4*(14-1-j)}"); k(f"buffer_store_dword v12, v13, {WS}, s46 offen")
        k("s_endpgm")
    nc = k.label()
    k("s_cmp_eq_u32 s50, 0"); k(f"s_cbranch_scc1 {nc}")
    for r in range(4): k(f"v_mov_b32 v{16+r}, -1")
    k(f"s_sub_u32 s46, s{sb}, 112"); k("s_lshl_b32 s46, s46, 2"); k(f"s_add_u32 s46, s46, s{S_WAVE}"); k("v_lshl_add_u32 v9, s46, 10, v6")
    full, rest = divmod(L.CLR_BYTES, 448*1024)
    k(f"v_cmp_gt_u32 vcc, {rest}, v9"); k("v_mov_b32 v10, 0x7fffffff"); k("v_cndmask_b32 v10, v10, v9, vcc")
    for l in range(2):
        for it in range(full + (1 if rest else 0)):
            k(f"s_mov_b32 s53, {L.HO[l] + L.MSTEP + it*448*1024}")
            k(f"buffer_store_dwordx4 v[16:19], v{9 if it < full else 10}, {WS}, s53 offen sc1")
    for base, size in ((L.MEMN[0] + L.DIRM*L.MEMSZ, (64-L.DIRM)*L.MEMSZ), (L.VM[0] + L.DIRM*L.VMSZ, (64-L.DIRM)*L.VMSZ), (L.PARTS[0] + 62*131072, 2*131072),
                       (L.XTB[0] + L.DIRX*28672, (64-L.DIRX)*28672), (L.KI[0] + L.DIRX*2048, (64-L.DIRX)*2048), (L.VI[0] + L.DIRX*2048, (64-L.DIRX)*2048)):
        while size > 0:
            if size < 448*1024:
                k(f"v_cmp_gt_u32 vcc, {size}, v9"); k("v_mov_b32 v10, 0x7fffffff"); k("v_cndmask_b32 v10, v10, v9, vcc")
            for l in range(2):
                k(f"s_mov_b32 s53, {base + l*L.LSTRIDE}"); k(f"buffer_store_dwordx4 v[16:19], v{10 if size < 448*1024 else 9}, {WS}, s53 offen sc1")
            base += 448*1024; size -= 448*1024
    k.place(nc)

def body_init(k, abort):
    lane_parts(k)
    srd(k, 8, P_X, L.XSZ)
    k("s_lshl_b32 s47, s59, 2"); k(f"s_add_u32 s47, s47, s{S_WAVE}")
    k("v_mul_u32_u24 v8, 896, v2"); k("v_lshl_add_u32 v8, v3, 4, v8")
    k(f"s_mul_i32 s48, s47, {16*896}")
    XP = 16; F = 72
    k("s_mov_b32 s49, s48")
    k("v_lshlrev_b32 v9, 7, v0"); k("s_lshl_b32 s48, s47, 10"); k("v_add_u32 v9, s48, v9"); k("v_mov_b64 v[12:13], 0"); k("v_mov_b64 v[14:15], 0")
    k("s_mov_b64 exec, 0xff")
    for l in range(2):
        k(f"s_mov_b32 s53, {L.CNT[l]}"); k(f"buffer_store_dwordx4 v[12:15], v9, {WS}, s53 offen sc1")
    k("s_mov_b64 exec, -1")
    for ks in range(14): k(f"buffer_load_dwordx4 {vr(XP+4*ks,4)}, v8, s[8:11], s49 offen offset:{ks*64}")
    k("s_waitcnt vmcnt(14)"); k("s_barrier")
    if TL == 2: tl(k, 1, 12, 0)
    srd(k, 64, P_DBG, 256)
    lz = k.label(); k(f"s_cmp_lg_u32 s{S_WAVE}, 0"); k(f"s_cbranch_scc1 {lz}")
    k(f"v_mov_b32 v12, {DBG_INIT}"); k("v_mov_b32 v13, 1"); signal(k, "0", 12, 13, "s[64:67]")
    k.place(lz)
    nom = k.label()
    k("s_cmp_lg_u32 s59, 31"); k(f"s_cbranch_scc1 {nom}")
    srd(k, 8, P_MEM0, 7168)
    k(f"s_lshl_b32 s48, s{S_WAVE}, 6"); k("v_add_u32 v8, s48, v0")
    k("v_and_b32 v9, 3, v8"); k("v_bfe_u32 v10, v8, 2, 3"); k("v_bfe_u32 v11, v8, 5, 1"); k("v_lshrrev_b32 v12, 6, v8")
    k("v_mul_u32_u24 v10, 896, v10"); k("v_lshl_add_u32 v10, v12, 5, v10"); k("v_lshl_add_u32 v10, v9, 3, v10"); k("v_lshl_add_u32 v10, v11, 2, v10")
    k("v_lshlrev_b32 v13, 2, v8")
    for p in range(7): k(f"buffer_load_dword v{76+p}, v10, s[8:11], 0 offen offset:{p*128}")
    k("v_and_b32 v9, 7, v8"); k("v_mul_u32_u24 v9, 896, v9"); k("v_lshrrev_b32 v11, 3, v8"); k("v_lshl_add_u32 v9, v11, 4, v9"); k("v_lshlrev_b32 v14, 4, v8")
    k("buffer_load_dwordx4 v[84:87], v9, s[8:11], 0 offen"); k("buffer_load_dwordx4 v[88:91], v9, s[8:11], 0 offen offset:512")
    k("v_add_u32 v15, 4096, v14"); k("v_cmp_gt_u32 vcc, 7168, v15"); k("v_mov_b32 v11, 0x7fffffff"); k("v_cndmask_b32 v15, v11, v15, vcc")
    k("s_waitcnt vmcnt(0)")
    for p in list(range(7)) + list(range(8, 16)): k(f"v_min_u32 v{76+p}, -2, v{76+p}")
    for l in range(2):
        k(f"s_mov_b32 s48, {L.MEM[l]}")
        for p in range(7):
            if p == 4: k("s_add_u32 s48, s48, 4096")
            k(f"buffer_store_dword v{76+p}, v13, {WS}, s48 offen offset:{(p%4)*1024} sc1")
        k(f"s_mov_b32 s48, {L.MEMN[l]}")
        k(f"buffer_store_dwordx4 v[84:87], v14, {WS}, s48 offen sc1"); k(f"buffer_store_dwordx4 v[88:91], v15, {WS}, s48 offen sc1")
    k.place(nom)
    k("s_waitcnt vmcnt(0)"); k("s_barrier")
    k("v_mov_b32 v12, s58"); k("s_lshl_b32 s46, s59, 2"); k("v_mov_b32 v13, s46")
    k("buffer_store_dword v12, v13, s[64:67], 0 offen offset:128 sc1")
    for i in range(56):
        k(f"v_lshlrev_b32 v{F+2*i}, 16, v{XP+i}"); k(f"v_and_b32 v{F+2*i+1}, 0xffff0000, v{XP+i}")
    k(f"v_add_f32 v9, v{F}, v{F+1}"); k(f"v_add_f32 v10, v{F+2}, v{F+3}")
    for i in range(4, 112, 2):
        k(f"v_add_f32 v9, v9, v{F+i}"); k(f"v_add_f32 v10, v10, v{F+i+1}")
    k("v_add_f32 v9, v9, v10")
    xreduce_g(k, 9, 10, "v_add_f32")
    k(f"v_mul_f32 v9, {hx(f2u(1/448))}, v9")
    for i in range(112): k(f"v_sub_f32 v{F+i}, v{F+i}, v9")
    k(f"v_mul_f32 v10, v{F}, v{F}"); k(f"v_mul_f32 v11, v{F+1}, v{F+1}")
    for i in range(2, 112, 2):
        k(f"v_fmac_f32 v10, v{F+i}, v{F+i}"); k(f"v_fmac_f32 v11, v{F+i+1}, v{F+i+1}")
    k("v_add_f32 v10, v10, v11")
    xreduce_g(k, 10, 11, "v_add_f32")
    k(f"v_mov_b32 v11, {hx(f2u(1e-5))}"); k(f"v_fmac_f32 v11, {hx(f2u(1/448))}, v10"); k("v_rsq_f32 v11, v11")
    for i in range(112): k(f"v_mul_f32 v{F+i}, v{F+i}, v11")
    for i in range(56): k(f"v_cvt_pk_bf16_f32 v{XP+i}, v{F+2*i}, v{F+2*i+1}")
    k(f"s_mul_i32 s48, s47, {14*1024}"); k(f"s_add_u32 s48, s48, {L.XTA[0]}")
    for ks in range(14):
        if ks % 4 == 0 and ks: k("s_add_u32 s48, s48, 4096")
        k(f"buffer_store_dwordx4 {vr(XP+4*ks,4)}, v6, {WS}, s48 offen offset:{(ks%4)*1024} sc1")
    k("s_waitcnt vmcnt(0)")
    if TL == 2:
        tl(k, 2, 12, 0); k("s_endpgm")
    k("s_mov_b32 s48, s47")
    wait_init(k, abort, 12)
    k("s_lshr_b32 s46, s48, 1"); k("s_lshl_b32 s46, s46, 7"); k(f"s_add_u32 s46, s46, {L.RC(0)}"); k("v_mov_b32 v12, 0"); k("v_mov_b32 v13, 16")
    signal(k, "s46", 12, 13, WS)

TIMEOUT = 1 << 21
SLEEP = 8

def wait_words(k, soff, vaddr, vt, target, abort, ge=False, nap=None, srd_=WL, wg=True, far=None):
    lp = k.label("Lwc"); ok = k.label("Lwo")
    if wg:
        k(f"s_cmp_lg_u32 s{S_WAVE}, 0"); k(f"s_cbranch_scc1 {ok}")
    k(f"s_mov_b32 s47, {TIMEOUT}")
    if far is not None:
        lf = k.label("Lwf"); near = k.label("Lwn")
        k(f"s_mov_b32 s46, {L.PROG(0)}")
        k.place(lf)
        k(f"v_mov_b32 v{vt}, 0")
        k(f"buffer_load_dword v{vt}, v{vt}, {WL}, s46 offen sc1")
        k("s_sub_u32 s47, s47, 1"); k(f"s_cbranch_scc1 {abort}")
        k("s_waitcnt vmcnt(0)")
        k(f"v_cmp_gt_i32 vcc, {far}, v{vt}")
        k(f"s_cbranch_vccz {near}")
        k("s_sleep 48")
        k(f"s_branch {lf}")
        k.place(near)
    k.place(lp)
    k(f"buffer_load_dword v{vt}, v{vaddr}, {srd_}, {soff} offen sc1")
    k("s_sub_u32 s47, s47, 1"); k(f"s_cbranch_scc1 {abort}")
    k("s_waitcnt vmcnt(0)")
    k(f"v_cmp_{'gt' if ge else 'ne'}_u32 vcc, {target}, v{vt}")
    k(f"s_cbranch_vccz {ok}")
    k(f"s_sleep {SLEEP if nap is None else nap}")
    k(f"s_branch {lp}")
    k.place(ok)
    if wg: k("s_barrier")

def gate(k, base, nshard, target, need, mark, v128, vt, abort, nap=0, napfar=40, greedy=True):
    ok = k.label("Lgo"); lp = k.label("Lgl")
    k(f"s_cmp_lt_u32 {need}, s{mark}"); k(f"s_cbranch_scc1 {ok}")
    k(f"s_mov_b32 s70, {TIMEOUT}")
    k(v128); k(f"v_and_b32 v{vt}, 0x780, v{vt}")
    k.place(lp)
    k(f"s_min_u32 s{mark}, s{mark}, 48"); k(f"s_lshl_b32 s{mark+1}, s{mark}, 7"); k(f"s_add_u32 s{mark+1}, s{mark+1}, {base}")
    k("s_mov_b64 exec, 0xffff")
    k(f"buffer_load_dword v{vt+1}, v{vt}, {WL}, s{mark+1} offen sc1")
    k("s_mov_b64 exec, -1")
    k("s_sub_u32 s70, s70, 1"); k(f"s_cbranch_scc1 {abort}")
    k("s_waitcnt vmcnt(0)")
    k(f"v_cmp_ne_u32 vcc, {target}, v{vt+1}")
    k(f"s_or_b32 s{mark+1}, vcc_lo, 0x10000"); k(f"s_ff1_i32_b32 s{mark+1}, s{mark+1}"); k(f"s_add_u32 s{mark}, s{mark}, s{mark+1}")
    k(f"s_cmp_eq_u32 s{mark+1}, 16"); k(f"s_cselect_b32 s{mark+1}, 1, 0")
    k(f"s_cmp_ge_u32 s{mark}, 64"); k(f"s_cselect_b32 s{mark}, 0x100, s{mark}"); k(f"s_cbranch_scc1 {ok}")
    if greedy:
        k(f"s_cmp_eq_u32 s{mark+1}, 1"); k(f"s_cbranch_scc1 {lp}")
    else:
        k(f"s_cmp_lt_u32 {need}, s{mark}"); k(f"s_cbranch_scc1 {ok}")
        k(f"s_cmp_eq_u32 s{mark+1}, 1"); k(f"s_cbranch_scc1 {lp}")
    if nap:
        k(f"s_cmp_lt_u32 {need}, s{mark}"); k(f"s_cbranch_scc1 {ok}")
        far = k.label("Lgf")
        k(f"s_add_u32 s{mark+1}, s{mark}, 1"); k(f"s_cmp_gt_u32 {need}, s{mark+1}"); k(f"s_cbranch_scc1 {far}")
        k(f"s_sleep {nap}"); k(f"s_branch {lp}")
        k.place(far); k(f"s_sleep {napfar}"); k(f"s_branch {lp}")
    else:
        k(f"s_cmp_lt_u32 {need}, s{mark}"); k(f"s_cbranch_scc0 {lp}")
    k.place(ok)

def signal(k, soff, vz, vone, srd_=WL, lanes=1):
    k(f"s_mov_b64 exec, {lanes}")
    k(f"buffer_atomic_add v{vone}, v{vz}, {srd_}, {soff} offen sc1")
    k("s_mov_b64 exec, -1")

TL = 0
TLROLE = ['t']
TLWG = 242
TLOFF = 0xF100000
def tl(k, idx, vt, per_layer=5):
    if not TL: return
    if TL == 5:
        tab = {('t', 0): 0, ('t', 15): 1, ('t', 1): 2, ('t', 2): 3, ('t', 4): 4, ('b', 15): 8, ('b', 5): 9}
        key = (TLROLE[0], idx)
        if key not in tab: return
        lz = k.label()
        k(f"s_cmp_lg_u32 s2, {0 if key[0] == 't' else TLWG}"); k(f"s_cbranch_scc1 {lz}")
        k("s_memrealtime s[84:85]"); srd(k, 88, P_DBG, 256); k("s_waitcnt lgkmcnt(0)")
        k(f"s_mul_i32 s85, s{S_LAYER}, {0 if idx in (0, 15) else (12 if key[0] == 't' else 4)}"); k(f"s_add_u32 s85, s85, {4*tab[key]}")
        k(f"v_mov_b32 v{vt}, s84"); k(f"v_mov_b32 v{vt+1}, 0"); k(f"buffer_store_dword v{vt}, v{vt+1}, s[88:91], s85 offen")
        k.place(lz); return
    k("s_memrealtime s[84:85]"); k("s_lshl_b32 s101, s2, 2"); k(f"s_add_u32 s101, s101, s{S_WAVE}"); k("s_lshl_b32 s101, s101, 6")
    k(f"s_add_u32 s101, s101, {TLOFF + 4*idx}"); k("s_waitcnt lgkmcnt(0)")
    k(f"s_mul_i32 s85, s{S_LAYER}, {4*per_layer}"); k("s_add_u32 s101, s101, s85")
    k(f"v_mov_b32 v{vt}, s84"); k(f"v_mov_b32 v{vt+1}, 0")
    k(f"buffer_store_dword v{vt}, v{vt+1}, {WS}, s101 offen")
    if TL == 3:
        k("s_memtime s[84:85]"); k("s_waitcnt lgkmcnt(0)"); k(f"v_mov_b32 v{vt}, s84"); k("s_add_u32 s101, s101, 0x10000")
        k(f"buffer_store_dword v{vt}, v{vt+1}, {WS}, s101 offen")

def code_touch(k, lab, nbytes, forward, v128, vd):
    h = k.label("Lpc")
    k("s_getpc_b64 s[82:83]"); k.place(h)
    k(f"s_add_u32 s82, s82, {lab}-{h}"); k(f"s_addc_u32 s83, s83, {0 if forward else -1}")
    if nbytes < 8192:
        k(f"v_min_u32 v{vd}, {nbytes-128}, v{v128}"); k(f"global_load_dword v{vd}, v{vd}, s[82:83]"); return
    for j in range(nbytes//8192):
        if j: k("s_add_u32 s82, s82, 8192"); k("s_addc_u32 s83, s83, 0")
        k(f"global_load_dword v{vd}, v{v128}, s[82:83]")

def slab_round_wait(k, r, soff, vaddr, vt, abort):
    ok = k.label("Lsr"); lp = k.label("Lsl")
    k(f"s_cmp_gt_u32 s55, {r}"); k(f"s_cbranch_scc1 {ok}")
    k(f"s_mov_b32 s70, {TIMEOUT}")
    k.place(lp)
    k(f"buffer_load_dword v{vt}, v{vaddr}, {WS}, {soff} offen sc1")
    k("s_sub_u32 s70, s70, 1"); k(f"s_cbranch_scc1 {abort}")
    k("s_waitcnt vmcnt(0)")
    k(f"v_cmp_gt_u32 vcc, 4, v{vt}"); k("s_cmp_eq_u64 vcc, 0"); k("s_cselect_b32 s55, 4, s55")
    k(f"v_cmp_ge_u32 vcc, {r}, v{vt}"); k(f"s_cbranch_vccz {ok}")
    k("s_sleep 2"); k(f"s_branch {lp}")
    k.place(ok)

def lane0_addr(k, vz, vone):
    k(f"v_mov_b32 v{vz}, 0"); k(f"v_mov_b32 v{vone}, 1")

def layer_begin(k):
    srd(k, 12, P_WS, L.WS_BYTES); k(f"s_mov_b32 s{S_LAYER}, 0")
def layer_next(k, top):
    k(f"s_add_u32 s12, s{P_WS}, {L.LSTRIDE}"); k(f"s_addc_u32 s13, s{P_WS+1}, 0"); k("s_and_b32 s13, s13, 0xffff")
    k(f"s_mov_b32 s14, {L.WS_BYTES - L.LSTRIDE}")
    k(f"s_add_u32 s{S_LAYER}, s{S_LAYER}, 1"); k(f"s_cmp_lt_u32 s{S_LAYER}, 2"); k(f"s_cbranch_scc1 {top}")

def slab_address(k, sb):
    div7(k, 53, 54, sb)
    k("s_and_b32 s55, s53, 15"); k("s_lshr_b32 s53, s53, 4"); k("s_cmp_eq_u32 s53, 0"); k(f"s_cselect_b32 s57, {L.WQ}, {L.WV}")
    k("s_mul_i32 s58, s55, 28"); k("s_lshl_b32 s59, s54, 2"); k("s_add_u32 s58, s58, s59"); k(f"s_add_u32 s58, s58, s{S_WAVE}")
    k(f"s_mul_i32 s58, s58, {14*1024}"); k("s_add_u32 s57, s57, s58")

def slab_request(k, sb):
    no = k.label(); k(f"s_cmp_eq_u32 s{S_LAYER}, 1"); k(f"s_cbranch_scc1 {no}")
    slab_address(k, sb)
    for i in range(14):
        if i % 4 == 0 and i: k("s_add_u32 s57, s57, 4096")
        k(f"buffer_load_dwordx4 {vr(128+4*i,4)}, v1, {WS}, s57 offen offset:{(i%4)*1024} sc1")
    k.place(no)

def slab_stage(k, younger, first=False):
    no = k.label()
    if not first:
        k(f"s_cmp_eq_u32 s{S_LAYER}, 1"); k(f"s_cbranch_scc1 {no}")
        k(f"s_mul_i32 s58, s{S_WAVE}, {14*1024}"); k(f"s_add_u32 s58, s58, {SLAB_LDS}"); k("v_add_u32 v2, s58, v1")
        k(f"s_waitcnt vmcnt({younger})"); k("s_barrier")
        for i in range(14): k(f"ds_write_b128 v2, {vr(128+4*i,4)} offset:{i*1024}")
    else: k("v_lshlrev_b32 v1, 4, v0")
    k(f"v_add_u32 v2, {SLAB_LDS}, v1")
    k("s_waitcnt lgkmcnt(0)"); k("s_barrier")
    for i in range(56):
        k(f"ds_read_b128 {vr(256+4*i,4)}, v2 offset:{i*1024}")
        if i % 12 == 11: k("s_waitcnt lgkmcnt(4)")
    k.place(no)

def body_gemm(k, sb, abort):
    div7(k, 47, 48, sb)
    k("s_and_b32 s49, s47, 15")
    k("s_lshr_b32 s50, s47, 4")
    k("v_lshlrev_b32 v1, 4, v0")
    k("s_cmp_eq_u32 s50, 0")
    k(f"s_mov_b32 s56, {L.UC(0)}"); k(f"s_cselect_b32 s56, {L.QC(0)}, s56")
    lane0_addr(k, 4, 5)
    k(f"s_lshl_b32 s58, s{S_WAVE}, 7"); k("s_add_u32 s56, s56, s58")
    k(f"s_and_b32 s58, s{sb}, 3"); k("s_lshl_b32 s58, s58, 13"); k("s_add_u32 s56, s56, s58")
    k("s_mov_b32 s96, 0"); k(f"s_mov_b32 s98, s{S_WAVE}")
    def xreg(buf, i):
        if buf == 0: return 16 + 4*i
        return 128 + 4*i if i < 20 else 256 + 224 + 4*(i-20)
    def loadx(buf):
        k("s_min_u32 s99, s98, 63")
        gate(k, L.RC(0), 1, 32, "s99", 96, "v_lshlrev_b32 v6, 3, v1", 6, abort, nap=3, napfar=3, greedy=False)
        k("s_add_u32 s98, s98, 4")
        for ks in range(14):
            if ks % 4 == 0:
                k(f"s_add_u32 s53, s52, {ks*1024}"); k(f"s_add_u32 s57, s52, {(14+ks)*1024}")
            for t in range(2):
                k(f"buffer_load_dwordx4 {vr(xreg(buf,t*14+ks),4)}, v1, {WL}, s{57 if t else 53} offen offset:{(ks%4)*1024} sc1")
        k(f"s_add_u32 s52, s52, {4*28*1024}")
    k(f"s_mul_i32 s52, s{S_WAVE}, {28*1024}"); k(f"s_add_u32 s52, s52, {L.XTA[0]}")
    if QDELAY:
        nq = k.label()
        k("s_cmp_lg_u32 s50, 0"); k(f"s_cbranch_scc1 {nq}")
        k(f"s_mov_b32 s46, {L.PROG(0)}"); wait_words(k, "s46", 4, 6, QDELAY, abort, ge=True, nap=32)
        k.place(nq)
    loadx(0)
    k("s_waitcnt vmcnt(28) lgkmcnt(0)"); k("s_barrier")
    tl(k, 2, 6)
    ACC = 208; O = 240
    lq = k.label(); end = k.label()
    k("s_cmp_eq_u32 s50, 0")
    k(f"s_cbranch_scc1 {lq}")
    for typ in (1, 0):
        if typ == 0: k.place(lq)
        k(f"s_lshl_b32 s54, s{S_WAVE}, 4"); k("s_add_u32 s54, s54, s49"); k(f"s_mul_i32 s54, s54, {28*1024}")
        if typ == 1:
            k("s_lshl_b32 s55, s48, 12"); k("s_add_u32 s54, s54, s55"); k(f"s_add_u32 s54, s54, {L.UU[0]}")
        else:
            k("s_lshl_b32 s55, s48, 11"); k("s_add_u32 s54, s54, s55"); k(f"s_add_u32 s54, s54, {L.QP[0]}")
        k("s_mov_b32 s51, 8")
        lp = k.label(); k.place(lp)
        for buf in range(2):
            for ks in range(14):
                for t in range(2):
                    k(f"s_waitcnt vmcnt({27 - 2*ks - t})")
                    for tt in range(4):
                        d = ACC + (t*4+tt)*4
                        c = "0" if ks == 0 else vr(d,4)
                        x = vr(xreg(buf, t*14+ks),4); w = vr(256+(tt*14+ks)*4,4)
                        if typ == 1: k(f"v_mfma_f32_16x16x32_bf16 {vr(d,4)}, {x}, {w}, {c}")
                        else:        k(f"v_mfma_f32_16x16x32_bf16 {vr(d,4)}, {w}, {x}, {c}")
            for u in range(4):
                if typ == 1: d0, d1 = ACC + u*4, ACC + (4+u)*4; off = u*1024; so = "s54"
                else:
                    t, pp = u >> 1, u & 1
                    d0, d1 = ACC + (t*4+2*pp)*4, ACC + (t*4+2*pp+1)*4; off = pp*1024; so = "s54" if t == 0 else "s55"
                    if u == 2: k(f"s_add_u32 s55, s54, {14*1024}")
                o = O + 4*u
                k(f"v_cvt_pk_bf16_f32 v{o}, v{d0}, v{d0+1}"); k(f"v_cvt_pk_bf16_f32 v{o+1}, v{d0+2}, v{d0+3}")
                k(f"v_cvt_pk_bf16_f32 v{o+2}, v{d1}, v{d1+1}"); k(f"v_cvt_pk_bf16_f32 v{o+3}, v{d1+2}, v{d1+3}")
                k(f"buffer_store_dwordx4 {vr(o,4)}, v1, {WL}, {so} offen offset:{off} sc1")
            k(f"s_add_u32 s54, s54, {4*16*28*1024}")
            k("s_waitcnt vmcnt(0)")
            signal(k, "s56", 4, 5)
            loadx(1-buf)
            if TL and buf == 0:
                lz = k.label(); k("s_cmp_lg_u32 s51, 8"); k(f"s_cbranch_scc1 {lz}"); tl(k, 3, 6); k.place(lz)
            k("s_add_u32 s56, s56, 512")
        k("s_sub_u32 s51, s51, 1"); k("s_cmp_lg_u32 s51, 0"); k(f"s_cbranch_scc1 {lp}")
        if typ == 1: k(f"s_branch {end}")
    k.place(end)
    k("s_waitcnt vmcnt(0)")

def gen_empty():
    k = K("empty_kernel", 32, 32, 48)
    k("s_endpgm")
    return k
```

```python
from gen import *
import gen

NEG = hx(f2u(-1e9*L.LOG2E))
NINF = hx(f2u(-3.0e38))
OOB = 0x40000000

def mf16(d, a, b, c): return f"v_mfma_f32_16x16x32_bf16 {vr(d,4)}, {vr(a,4)}, {vr(b,4)}, {'0' if c is None else vr(c,4)}"
def mf32(d, a, b, c): return f"v_mfma_f32_32x32x16_bf16 {vr(d,16)}, {vr(a,4)}, {vr(b,4)}, {'0' if c is None else vr(c,16)}"

def loads(k, regs, vaddr, sbase, stmp, flags=""):
    cur = sbase
    for n, r in enumerate(regs):
        if n % 4 == 0 and n:
            k(f"s_add_u32 s{stmp}, s{cur}, 4096"); cur = stmp
        k(f"buffer_load_dwordx4 {vr(r,4)}, v{vaddr}, {WS}, s{cur} offen offset:{(n%4)*1024}{flags}")

def ln_epilogue(k, acc, nq, XRES, TMP, PK, V_ST, STATS, res_store, xn_store, skip_sreg, last=False):
    def pairs(body):
        for pp in range(4):
            lab = None
            if pp == 3:
                lab = k.label(); k(f"s_cmp_ge_u32 s{S_WAVE}, 2"); k(f"s_cbranch_scc1 {lab}")
            body(pp)
            if lab: k.place(lab)
    SUM = TMP; T = TMP + 4
    for q in range(nq): k(f"v_mov_b32 v{SUM+q}, 0")
    def b1(pp):
        for q in range(nq):
            x = XRES(pp, q)
            for t in range(2):
                a = acc(pp, q, t)
                for h in range(2):
                    k(f"v_lshlrev_b32 v{T}, 16, v{x+2*t+h}"); k(f"v_and_b32 v{T+1}, 0xffff0000, v{x+2*t+h}")
                    k(f"v_add_f32 v{a+2*h}, v{a+2*h}, v{T}"); k(f"v_add_f32 v{a+2*h+1}, v{a+2*h+1}, v{T+1}")
                    k(f"v_cvt_pk_bf16_f32 v{x+2*t+h}, v{a+2*h}, v{a+2*h+1}")
                if not last:
                    k(f"v_add_f32 v{T}, v{a}, v{a+1}"); k(f"v_add_f32 v{T+1}, v{a+2}, v{a+3}")
                    k(f"v_add_f32 v{SUM+q}, v{SUM+q}, v{T}"); k(f"v_add_f32 v{SUM+q}, v{SUM+q}, v{T+1}")
            res_store(pp, q, x)
    pairs(b1)
    if last: return
    def exchange(off):
        for q in range(nq): xreduce_g(k, SUM+q, T, "v_add_f32")
        for q in range(nq): k(f"ds_write_b32 v{V_ST}, v{SUM+q} offset:{STATS+off+q*256}")
        k("s_waitcnt lgkmcnt(0)"); k("s_barrier")
        for q in range(nq): k(f"ds_read_b128 {vr(PK+4*q,4)}, v{V_ST+1} offset:{STATS+off+q*256}")
        k("s_waitcnt lgkmcnt(0)")
        for q in range(nq):
            k(f"v_add_f32 v{PK+4*q}, v{PK+4*q}, v{PK+4*q+1}"); k(f"v_add_f32 v{PK+4*q+2}, v{PK+4*q+2}, v{PK+4*q+3}")
            k(f"v_add_f32 v{SUM+q}, v{PK+4*q}, v{PK+4*q+2}")
    exchange(0)
    MU = TMP + 2
    for q in range(nq):
        k(f"v_mul_f32 v{MU+q}, {hx(f2u(1/448))}, v{SUM+q}"); k(f"v_mov_b32 v{SUM+q}, 0")
    def b2(pp):
        for q in range(nq):
            for t in range(2):
                a = acc(pp, q, t)
                for r in range(4):
                    k(f"v_sub_f32 v{a+r}, v{a+r}, v{MU+q}"); k(f"v_fmac_f32 v{SUM+q}, v{a+r}, v{a+r}")
    pairs(b2)
    exchange(512)
    for q in range(nq):
        k(f"v_mov_b32 v{MU+q}, {hx(f2u(1e-5))}"); k(f"v_fmac_f32 v{MU+q}, {hx(f2u(1/448))}, v{SUM+q}"); k(f"v_rsq_f32 v{MU+q}, v{MU+q}")
    def b3(pp):
        for q in range(nq):
            o = PK + 4*((pp*nq + q) & 1)
            for t in range(2):
                a = acc(pp, q, t)
                for r in range(4): k(f"v_mul_f32 v{a+r}, v{a+r}, v{MU+q}")
                k(f"v_cvt_pk_bf16_f32 v{o+2*t}, v{a}, v{a+1}"); k(f"v_cvt_pk_bf16_f32 v{o+2*t+1}, v{a+2}, v{a+3}")
            xn_store(pp, q, o)
    pairs(b3)

A3_PX = 0; A3_PM = 16384; A3_DUM = 20480; A3_ST = 21504; A3_XL = 22528; A3_LDS = A3_XL + 28*1024

def body_attnA(k, layer, fused=False, abort=None):
    sc = " sc1" if fused else ""
    XK = 256; MK = 256+112; U1 = 256+168; Q = 64; U2 = 64; XRS = 144; S = 16; P = 16; OUT = 192
    k("v_lshlrev_b32 v1, 4, v0"); k("v_and_b32 v2, 15, v0"); k("v_lshrrev_b32 v3, 4, v0")
    k("v_lshlrev_b32 v4, 2, v3")
    for r in range(4):
        k(f"v_add_u32 v5, {r}, v4"); k(f"v_cmp_le_u32 s[{72+2*r}:{73+2*r}], v5, v2")
    k("v_cmp_gt_u32 s[80:81], 2, v3")
    k("v_bfe_u32 v5, v0, 1, 1"); k("v_lshlrev_b32 v5, 2, v5"); k("v_and_b32 v6, 1, v0"); k("v_lshl_add_u32 v5, v6, 1, v5")
    k("v_bfe_u32 v6, v0, 2, 1"); k("v_add_u32 v5, v5, v6"); k("v_lshlrev_b32 v5, 4, v5"); k("v_lshl_add_u32 v5, v3, 7, v5")
    k(f"s_lshl_b32 s46, s{S_WAVE}, 11"); k("v_add_u32 v6, s46, v1")
    k(f"s_lshl_b32 s46, s{S_WAVE}, 8"); k(f"s_add_u32 s46, s46, {A3_PM}")
    k("v_lshlrev_b32 v7, 4, v2"); k("v_lshl_add_u32 v7, v3, 3, v7"); k("v_add_u32 v7, s46, v7")
    k(f"v_mov_b32 v8, {A3_DUM - 3072}"); k("v_add_u32 v8, 3072, v8"); k("v_cndmask_b32 v7, v8, v7, s[80:81]")
    k(f"s_lshl_b32 s61, s{S_WAVE}, 2"); k(f"s_cmp_eq_u32 s{S_WAVE}, 3"); k("s_cselect_b32 s61, 11, s61")
    if layer == 0: srd(k, 8, P_X, L.XSZ)
    k("v_mul_u32_u24 v8, 896, v2"); k("v_lshl_add_u32 v8, v3, 4, v8")
    k(f"s_mul_i32 s62, s60, {32*896}"); k("s_lshl_b32 s46, s61, 6"); k("s_add_u32 s62, s62, s46")
    k(f"s_lshl_b32 s46, s{S_WAVE}, 2"); k("v_lshlrev_b32 v10, 4, v2"); k("v_add_u32 v9, s46, v10")
    if fused:
        k("s_lshl_b32 s48, s60, 7"); k(f"s_add_u32 s49, s48, {L.UC(layer)}"); wait_counter(k, "s49", 112, abort, 12)
        k(f"s_add_u32 s49, s48, {L.QC(layer)}"); wait_counter(k, "s49", 112, abort, 12)
    k(f"s_mul_i32 s46, s60, {28*1024}"); k(f"s_add_u32 s46, s46, {L.XTA[layer]}")
    loads(k, [XK+4*i for i in range(28)], 1, 46, 47, sc)
    k(f"s_lshl_b32 s63, s60, 4"); k(f"s_add_u32 s63, s63, s{S_WAVE}"); k(f"s_mul_i32 s63, s63, {28*1024}"); k(f"s_add_u32 s63, s63, {L.QP[layer]}")
    loads(k, [Q+4*i for i in range(28)], 1, 63, 47, sc)
    k(f"s_mul_i32 s64, s60, {16*28*1024}"); k("s_lshl_b32 s46, s61, 11"); k("s_add_u32 s64, s64, s46"); k(f"s_add_u32 s64, s64, {L.UU[layer]}")
    k(f"s_mul_i32 s65, s60, {L.VMSZ}"); k("s_add_u32 s65, s65, s46"); k(f"s_add_u32 s65, s65, {L.VM[layer]}")
    if fused:
        k("s_cmp_ge_u32 s60, 62"); k(f"s_mov_b32 s49, {L.PROG(layer)}"); k(f"s_cselect_b32 s49, {L.FIN(layer)}, s49")
        k("s_add_u32 s50, s60, 2"); k("s_cmp_ge_u32 s60, 62"); k("s_cselect_b32 s50, 14, s50")
        wait_counter(k, "s49", "s50", abort, 12, ge=True)
        gen.tl(k, 2+5*layer, 12)
    k(f"s_mul_i32 s46, s60, {L.MEMSZ}"); k(f"s_add_u32 s46, s46, {L.MEMN[layer]}")
    for ks in range(14):
        if ks == 8: k("s_add_u32 s46, s46, 4096")
        k(f"buffer_load_dwordx4 {vr(MK+4*ks,4)}, v5, {WS}, s46 offen offset:{(ks%8)*512} sc1")
    for i in range(32): k(f"v_mov_b64 {vr(OUT+2*i,2)}, 0")
    def uloads(base, half):
        for hh in range(5):
            if hh < 4: k(f"s_add_u32 s46, s64, {hh*28*1024 + half*4096}")
            else: k(f"s_add_u32 s46, s65, {half*4096}")
            for i in range(4):
                so = "s46"
                k(f"buffer_load_dwordx4 {vr(base+(hh*4+i)*4,4)}, v1, {WS}, {so} offen offset:{i*1024}{' sc1' if (hh==4 or fused) else ''}")
    k("s_mov_b32 s66, 0")
    loop = k.label("LR"); k.place(loop)
    uloads(U1, 0)
    k("s_waitcnt vmcnt(20)")
    for ks in range(14):
        c = lambda i: None if ks == 0 else S+4*i
        k(mf16(S+0, XK+4*ks, Q+4*ks, c(0)))
        k(mf16(S+8, XK+4*ks, Q+4*(14+ks), c(2)))
        k(mf16(S+12, XK+4*(14+ks), Q+4*(14+ks), c(3)))
        k(mf16(S+4, MK+4*ks, Q+4*ks, c(1)))
        k(mf16(S+16, MK+4*ks, Q+4*(14+ks), c(4)))
    uloads(U2, 1)
    k(f"v_mov_b32 v11, {NEG}"); k(f"v_mov_b32 v12, {NINF}")
    for r in range(4):
        k(f"v_cndmask_b32 v{S+r}, v11, v{S+r}, s[{72+2*r}:{73+2*r}]")
        k(f"v_cndmask_b32 v{S+12+r}, v11, v{S+12+r}, s[{72+2*r}:{73+2*r}]")
        k(f"v_cndmask_b32 v{S+4+r}, v12, v{S+4+r}, s[80:81]")
        k(f"v_cndmask_b32 v{S+16+r}, v12, v{S+16+r}, s[80:81]")
    grp = [list(range(S, S+8)), list(range(S+8, S+20))]
    MX = [36, 37]; T = 38
    for q in range(2):
        g = grp[q]
        k(f"v_max3_f32 v{MX[q]}, v{g[0]}, v{g[1]}, v{g[2]}")
        rest = g[3:]
        while len(rest) >= 2:
            k(f"v_max3_f32 v{MX[q]}, v{MX[q]}, v{rest[0]}, v{rest[1]}"); rest = rest[2:]
        if rest: k(f"v_max_f32 v{MX[q]}, v{MX[q]}, v{rest[0]}")
    for q in range(2): xreduce_g(k, MX[q], T+q, "v_max_f32")
    for q in range(2):
        for x in grp[q]: k(f"v_sub_f32 v{x}, v{x}, v{MX[q]}")
        for x in grp[q]: k(f"v_exp_f32 v{x}, v{x}")
    for q in range(2):
        g = grp[q]
        k(f"v_add_f32 v{MX[q]}, v{g[0]}, v{g[1]}")
        for x in g[2:]: k(f"v_add_f32 v{MX[q]}, v{MX[q]}, v{x}")
    for q in range(2): xreduce_g(k, MX[q], T+q, "v_add_f32")
    for q in range(2): k(f"v_rcp_f32 v{MX[q]}, v{MX[q]}")
    for q in range(2):
        for x in grp[q]: k(f"v_mul_f32 v{x}, v{x}, v{MX[q]}")
    W = 40
    k(f"v_cvt_pk_bf16_f32 v{W}, v{S}, v{S+1}"); k(f"v_cvt_pk_bf16_f32 v{W+1}, v{S+2}, v{S+3}"); k(f"v_mov_b64 {vr(W+2,2)}, 0")
    k(f"v_cvt_pk_bf16_f32 v{W+4}, v{S+8}, v{S+9}"); k(f"v_cvt_pk_bf16_f32 v{W+5}, v{S+10}, v{S+11}")
    k(f"v_cvt_pk_bf16_f32 v{W+6}, v{S+12}, v{S+13}"); k(f"v_cvt_pk_bf16_f32 v{W+7}, v{S+14}, v{S+15}")
    k(f"v_cvt_pk_bf16_f32 v{W+8}, v{S+4}, v{S+5}"); k(f"v_cvt_pk_bf16_f32 v{W+9}, v{S+6}, v{S+7}")
    k(f"v_cvt_pk_bf16_f32 v{W+10}, v{S+16}, v{S+17}"); k(f"v_cvt_pk_bf16_f32 v{W+11}, v{S+18}, v{S+19}")
    k(f"ds_write_b128 v6, {vr(W,4)}"); k(f"ds_write_b128 v6, {vr(W+4,4)} offset:1024")
    k(f"ds_write_b64 v7, {vr(W+8,2)}"); k(f"ds_write_b64 v7, {vr(W+10,2)} offset:1024")
    k("s_and_b32 s46, s66, 1"); k("s_lshl_b32 s47, s46, 13"); k("v_add_u32 v11, s47, v1")
    k("s_lshl_b32 s47, s46, 11"); k("v_add_u32 v12, s47, v1")
    k("v_xor_b32 v6, 8192, v6"); k("v_xor_b32 v7, 2048, v7")
    k("s_waitcnt lgkmcnt(0)"); k("s_barrier")
    for i in range(8): k(f"ds_read_b128 {vr(P+4*i,4)}, v11 offset:{A3_PX+i*1024}")
    for q in range(2): k(f"ds_read_b128 {vr(P+32+4*q,4)}, v12 offset:{A3_PM+q*1024}")
    k("s_waitcnt vmcnt(20) lgkmcnt(0)")
    def pv(base, half):
        for hh in range(5):
            for i in range(4):
                for q in range(2):
                    o = OUT + ((half*4+i)*2 + q)*4
                    k(mf16(o, base+(hh*4+i)*4, P + (hh*2+q)*4, o))
    pv(U1, 0)
    k("s_waitcnt vmcnt(0)")
    pv(U2, 1)
    k(f"s_add_u32 s63, s63, {4*28*1024}"); k(f"s_add_u32 s64, s64, {4*28*1024}"); k(f"s_add_u32 s65, s65, {28*1024}")
    k("s_add_u32 s66, s66, 1")
    fin = k.label("LRf")
    k("s_cmp_eq_u32 s66, 4"); k(f"s_cbranch_scc1 {fin}")
    loads(k, [Q+4*i for i in range(28)], 1, 63, 47, sc)
    k(f"s_branch {loop}")
    k.place(fin)
    rsrd = "s[8:11]" if layer == 0 else WS
    k(f"s_add_u32 s46, s62, {0 if layer == 0 else L.XR[1]}")
    k(f"s_add_u32 s47, s46, {16*896}")
    for pp in range(4):
        for q in range(2):
            k(f"buffer_load_dwordx4 {vr(XRS+(pp*2+q)*4,4)}, v8, {rsrd}, s{46+q} offen offset:{pp*64}{sc if layer else ''}")
    k(f"s_cmp_ge_u32 s{S_WAVE}, 2")
    k(f"s_and_b32 s46, s{S_WAVE}, 1"); k(f"s_mul_i32 s46, s46, {14*1024}"); k(f"s_add_u32 s46, s46, {L.WBV}")
    k(f"s_cmp_ge_u32 s{S_WAVE}, 2"); k(f"s_cselect_b32 s46, s46, {L.WBK}")
    loads(k, [XK+4*i for i in range(28)], 1, 46, 47)
    k("s_waitcnt vmcnt(28)")
    k(f"s_add_u32 s67, s62, {L.XR[2*layer]}"); k(f"s_add_u32 s68, s67, {16*896}")
    k(f"s_mul_i32 s69, s60, 28"); k("s_add_u32 s69, s69, s61"); k("s_lshl_b32 s69, s69, 10"); k(f"s_add_u32 s69, s69, {L.XTB[layer]}")
    k(f"s_add_u32 s70, s69, {14*1024}")
    k("s_lshl_b32 s46, s61, 10"); k(f"s_add_u32 s46, s46, {A3_XL}"); k("v_add_u32 v11, s46, v1")
    def res_store(pp, q, r): k(f"buffer_store_dwordx4 {vr(r,4)}, v8, {WS}, s{67+q} offen offset:{pp*64} sc1")
    def xn_store(pp, q, r):
        k(f"buffer_store_dwordx4 {vr(r,4)}, v1, {WS}, s{69+q} offen offset:{pp*1024} sc1")
        k(f"ds_write_b128 v11, {vr(r,4)} offset:{q*14*1024+pp*1024}")
    ln_epilogue(k, lambda pp, q, t: OUT + ((2*pp+t)*2+q)*4, 2, lambda pp, q: XRS+(pp*2+q)*4, 16, 24, 9, A3_ST, res_store, xn_store, None)
    k("s_waitcnt lgkmcnt(0)"); k("s_barrier")
    X = 64
    lv = k.label("LV"); le = k.label("LE")
    k(f"s_lshl_b32 s48, s60, 11")
    k(f"s_cmp_ge_u32 s{S_WAVE}, 2"); k(f"s_cbranch_scc1 {lv}")
    k(f"s_mul_i32 s46, s{S_WAVE}, {14*1024}"); k(f"s_add_u32 s46, s46, {A3_XL}"); k("v_add_u32 v11, s46, v1")
    for ks in range(14): k(f"ds_read_b128 {vr(X+4*ks,4)}, v11 offset:{ks*1024}")
    k("s_waitcnt vmcnt(0) lgkmcnt(0)")
    for ks in range(14):
        for t in range(2): k(mf16(16+4*t, XK+4*(t*14+ks), X+4*ks, None if ks == 0 else 16+4*t))
    k("v_lshrrev_b32 v11, 1, v3"); k("v_lshlrev_b32 v11, 10, v11"); k("v_and_b32 v12, 1, v3"); k("v_lshl_add_u32 v11, v12, 9, v11")
    k("v_lshl_add_u32 v11, v2, 4, v11"); k(f"s_lshl_b32 s46, s{S_WAVE}, 8"); k("s_add_u32 s46, s46, s48"); k(f"s_add_u32 s46, s46, {L.KI[layer]}")
    for j in range(4): k(f"v_cvt_pk_bf16_f32 v{24+j}, v{16+2*j}, v{17+2*j}")
    k(f"buffer_store_dwordx4 v[24:27], v11, {WS}, s46 offen sc1")
    k(f"s_branch {le}")
    k.place(lv)
    k(f"v_add_u32 v11, {A3_XL}, v1")
    for i in range(28): k(f"ds_read_b128 {vr(X+4*i,4)}, v11 offset:{i*1024}")
    k("s_waitcnt vmcnt(0) lgkmcnt(0)")
    for ks in range(14):
        for q in range(2): k(mf16(16+4*q, X+4*(q*14+ks), XK+4*ks, None if ks == 0 else 16+4*q))
    k("v_lshrrev_b32 v11, 1, v3"); k("v_lshlrev_b32 v11, 3, v11"); k("v_and_b32 v12, 1, v3"); k("v_lshl_add_u32 v11, v12, 9, v11")
    k("v_lshl_add_u32 v11, v2, 4, v11"); k(f"s_and_b32 s46, s{S_WAVE}, 1"); k("s_lshl_b32 s46, s46, 8"); k("s_add_u32 s46, s46, s48"); k(f"s_add_u32 s46, s46, {L.VI[layer]}")
    k(f"s_cmp_eq_u32 s{S_WAVE}, 3"); k("s_cselect_b32 s47, 12, 99"); k("v_cmp_eq_u32 vcc, s47, v2"); k("v_mov_b32 v12, 0x3f803f80")
    for j in range(4):
        k(f"v_cvt_pk_bf16_f32 v{24+j}, v{16+2*j}, v{17+2*j}"); k(f"v_cndmask_b32 v{24+j}, v{24+j}, v12, vcc")
    k(f"buffer_store_dwordx2 v[24:25], v11, {WS}, s46 offen sc1")
    k(f"buffer_store_dwordx2 v[26:27], v11, {WS}, s46 offen offset:1024 sc1")
    k.place(le)
    if fused:
        k("s_waitcnt vmcnt(0)"); k("s_barrier")
        lz = k.label(); k(f"s_cmp_lg_u32 s{S_WAVE}, 0"); k(f"s_cbranch_scc1 {lz}")
        lane0_addr(k, 4, 5); k(f"s_mov_b32 s46, {L.A3C(layer)}"); signal(k, "s46", 4, 5)
        k.place(lz)

def gen_attnA(layer):
    k = K(f"attna{layer}_kernel")
    prologue(k, 64)
    k("s_mov_b32 s60, s2")
    body_attnA(k, layer)
    k.lines = [l for l in k.lines if not l.startswith("FLAGWAIT")]
    epilogue(k)
    return k

def B_lds(R):
    QT = R//2
    QL = 0
    OL = QL + 16*1024
    ST = OL + 16*912 + 512
    ST = (ST + 255)//256*256
    MXL = ST + 1024
    FL = MXL + 4*8*128
    RED = FL + 256
    return dict(QL=QL, OL=OL, ST=ST, MXL=MXL, FL=FL, RED=RED, SIZE=RED + 4*QT*4096)

def stream_gemm(k, ntile, sbase, bop, acc, RING, dummy_from=None):
    pass

def body_attnB(k, layer, R, fused=False, abort=None):
    QT = R//2; D = B_lds(R)
    last = layer == 1
    RING = 256
    XB = 16
    k("v_lshlrev_b32 v1, 4, v0"); k("v_and_b32 v2, 15, v0"); k("v_lshrrev_b32 v3, 4, v0")
    def wtile(i, sreg):
        k(f"s_add_u32 s46, s{sreg}, {i*14*1024}")
        loads(k, [RING + ((i % 3)*14 + ks)*4 for ks in range(14)], 1, 46, 47)
    k(f"s_mul_i32 s62, s{S_WAVE}, {7*14*1024}"); k(f"s_add_u32 s62, s62, {L.WBQ}")
    wtile(0, 62); wtile(1, 62)
    k(f"s_mul_i32 s61, s60, {R}")
    k(f"v_min_u32 v4, {R-1}, v2"); k("v_add_u32 v4, s61, v4"); k("v_min_u32 v4, 2047, v4")
    k("v_add_u32 v5, s61, v2"); k(f"v_cmp_gt_u32 vcc, {R}, v2"); k("v_mov_b32 v6, 2048")
    k("v_cmp_lt_u32 s[72:73], v5, v6"); k("s_and_b64 s[72:73], s[72:73], vcc")
    k("v_lshrrev_b32 v5, 4, v4"); k(f"v_mul_u32_u24 v5, {14*1024}, v5"); k("v_and_b32 v6, 15, v4"); k("v_lshl_add_u32 v5, v6, 4, v5"); k("v_lshl_add_u32 v5, v3, 8, v5")
    k("v_mov_b64 v[8:9], 0"); k("v_mov_b64 v[10:11], 0"); k(f"s_lshl_b32 s46, s{S_WAVE}, 12"); k("v_add_u32 v7, s46, v1")
    for i in range(4): k(f"ds_write_b128 v7, v[8:11] offset:{D['QL']+i*1024}")
    k(f"v_mov_b32 v7, {D['FL']}"); k("ds_write_b32 v7, v8")
    if fused:
        wait_counter(k, L.A3C(layer), 256, abort, 12, nap=2)
        gen.tl(k, 4+5*layer, 12)
    k(f"s_mov_b32 s48, {L.XTB[layer]}")
    loads(k, [XB+4*ks for ks in range(14)], 5, 48, 47, " sc1")
    k("s_waitcnt lgkmcnt(0)"); k("s_barrier")
    k(f"s_mul_i32 s63, s{S_WAVE}, 112")
    k("v_lshlrev_b32 v6, 2, v3"); k("v_add_u32 v6, s63, v6")
    k("v_lshlrev_b32 v7, 10, v2")
    k(f"s_mov_b32 s64, {hx(f2u(L.LOG2E/28**0.5))}")
    A0 = 72
    for i in range(7):
        if i + 2 < 7: wtile(i+2, 62)
        k(f"s_waitcnt vmcnt({[14,28,28,28,28,14,0][i]})")
        a = A0 + 4*(i & 1)
        for ks in range(14): k(mf16(a, RING + ((i % 3)*14+ks)*4, XB+4*ks, None if ks == 0 else a))
        k(f"v_add_u32 v8, {16*i}, v6"); k("v_mul_u32_u24 v9, 2341, v8"); k("v_lshrrev_b32 v9, 16, v9")
        k("v_lshl_add_u32 v8, v8, 1, v7"); k("v_lshl_add_u32 v8, v9, 3, v8")
        for r in range(4): k(f"v_mul_f32 v{a+r}, s64, v{a+r}")
        k(f"v_cvt_pk_bf16_f32 v10, v{a}, v{a+1}"); k(f"v_cvt_pk_bf16_f32 v11, v{a+2}, v{a+3}")
        k(f"ds_write_b64 v8, v[10:11] offset:{D['QL']}")
    QO = 16; KV = [QO+8*QT, QO+8*QT+16]; SS = [KV[1]+16, KV[1]+32]; PP = SS[1]+16; O = PP + 8; MX = O + 16*QT
    assert MX + QT + 2 <= 256
    k(f"s_lshl_b32 s65, s{S_WAVE}, 15"); k(f"s_add_u32 s66, s65, {L.VI[layer]}"); k(f"s_add_u32 s65, s65, {L.KI[layer]}")
    def kvload(b, sk, sv):
        k(f"buffer_load_dwordx4 {vr(KV[b],4)}, v1, {WS}, s{sk} offen sc1"); k(f"buffer_load_dwordx4 {vr(KV[b]+4,4)}, v1, {WS}, s{sk} offen offset:1024 sc1")
        k(f"buffer_load_dwordx4 {vr(KV[b]+8,4)}, v1, {WS}, s{sv} offen sc1"); k(f"buffer_load_dwordx4 {vr(KV[b]+12,4)}, v1, {WS}, s{sv} offen offset:1024 sc1")
        k(f"s_add_u32 s{sk}, s{sk}, 2048"); k(f"s_add_u32 s{sv}, s{sv}, 2048")
    k("s_mov_b32 s67, s65"); k("s_mov_b32 s68, s66")
    kvload(0, 67, 68)
    k(f"s_lshl_b32 s69, s{S_WAVE}, 2"); k(f"s_cmp_eq_u32 s{S_WAVE}, 3"); k("s_cselect_b32 s69, 11, s69")
    k(f"s_mul_i32 s62, s69, {28*1024}"); k(f"s_add_u32 s62, s62, {L.WBO}")
    k("s_waitcnt lgkmcnt(0)"); k("s_barrier")
    k("v_bfe_u32 v6, v0, 4, 1"); k("v_lshlrev_b32 v6, 10, v6"); k("v_lshl_add_u32 v6, v2, 6, v6"); k("v_lshrrev_b32 v7, 5, v0"); k("v_lshl_add_u32 v6, v7, 4, v6")
    for q in range(QT):
        for kk in range(2): k(f"ds_read_b128 {vr(QO+8*q+4*kk,4)}, v6 offset:{D['QL']+q*2048+kk*32}")
    def main_loop(bias):
        for i in range(8*QT): k(f"v_mov_b64 {vr(O+2*i,2)}, 0")
        k("s_mov_b32 s70, 8")
        lp = k.label("LK"); k.place(lp)
        for b in range(2):
            kvload(1-b, 67, 68)
            k("s_waitcnt vmcnt(4) lgkmcnt(0)")
            def smm(q):
                s = SS[q & 1]
                if bias:
                    for r in range(16): k(f"v_sub_f32 v{s+r}, 0, v{MX+q}")
                k(mf32(s, KV[b], QO+8*q, s if bias else None)); k(mf32(s, KV[b]+4, QO+8*q+4, s))
            smm(0)
            for q in range(QT):
                s = SS[q & 1]
                if q + 1 < QT: smm(q+1)
                for h in range(2):
                    for r in range(8*h, 8*h+8): k(f"v_exp_f32 v{s+r}, v{s+r}")
                    for j in range(4): k(f"v_cvt_pk_bf16_f32 v{PP+4*h+j}, v{s+8*h+2*j}, v{s+8*h+2*j+1}")
                    k(mf32(O+16*q, KV[b]+8+4*h, PP+4*h, O+16*q))
        k("s_sub_u32 s70, s70, 1"); k("s_cmp_lg_u32 s70, 0"); k(f"s_cbranch_scc1 {lp}")
    k("s_mov_b32 s78, 0")
    gen.tl(k, 11+2*layer, 12)
    main_loop(False)
    gen.tl(k, 12+2*layer, 12)
    redo = k.label("LBr"); slow = k.label("LBs"); fin = k.label("LBf")
    k.place(redo)
    k("s_waitcnt vmcnt(0)")
    wtile(0, 62); wtile(1, 62)
    k(f"s_mul_i32 s46, s{S_WAVE}, {QT*4096}"); k(f"s_add_u32 s46, s46, {D['RED']}"); k("v_add_u32 v7, s46, v1")
    for q in range(QT):
        for j in range(4): k(f"ds_write_b128 v7, {vr(O+16*q+4*j,4)} offset:{q*4096+j*1024}")
    k("s_waitcnt lgkmcnt(0)"); k("s_barrier")
    T = 16
    k("v_lshrrev_b32 v8, 5, v0")
    k("v_bfe_u32 v9, v0, 4, 1"); k("v_mul_u32_u24 v9, 912, v9"); k("v_mul_u32_u24 v10, 56, v2"); k("v_add_u32 v9, v9, v10"); k("v_lshl_add_u32 v9, v8, 3, v9")
    k(f"v_mov_b32 v11, {D['OL'] + 16*912}"); k("v_cmp_eq_u32 s[74:75], 1, v8")
    for rep in range((QT+3)//4):
        skip = k.label()
        if rep == 1:
            k(f"s_cmp_ge_u32 s{S_WAVE}, {QT-4}"); k(f"s_cbranch_scc1 {skip}")
        k(f"s_add_u32 s46, s{S_WAVE}, {4*rep}"); k("s_lshl_b32 s47, s46, 12"); k(f"s_add_u32 s47, s47, {D['RED']}"); k("v_add_u32 v7, s47, v1")
        for w in range(4):
            if w: k(f"v_add_u32 v7, {QT*4096}, v7")
            for j in range(4): k(f"ds_read_b128 {vr(T+16*w+4*j,4)}, v7 offset:{j*1024}")
        k("s_waitcnt lgkmcnt(0)")
        for i in range(8):
            k(f"v_pk_add_f32 {vr(T+2*i,2)}, {vr(T+2*i,2)}, {vr(T+16+2*i,2)}"); k(f"v_pk_add_f32 {vr(T+32+2*i,2)}, {vr(T+32+2*i,2)}, {vr(T+48+2*i,2)}")
        for i in range(8): k(f"v_pk_add_f32 {vr(T+2*i,2)}, {vr(T+2*i,2)}, {vr(T+32+2*i,2)}")
        k(f"v_mov_b32 v12, v{T+12}"); k(f"v_mov_b32 v13, v{T+12}")
        k("v_permlane32_swap_b32 v12, v13")
        k(f"v_cmp_nle_f32 vcc, {hx(f2u(2.0**-60))}, v13"); k(f"v_mov_b32 v12, {hx(f2u(2.0**60))}")
        k("v_cmp_nle_f32 s[76:77], v13, v12"); k("s_or_b64 vcc, vcc, s[76:77]")
        ok = k.label()
        k(f"s_cbranch_vccz {ok}")
        k(f"v_mov_b32 v12, {D['FL']}"); k("v_mov_b32 v14, 1"); k("ds_write_b32 v12, v14")
        k.place(ok)
        k("v_rcp_f32 v13, v13")
        k("s_mul_i32 s47, s46, 1824"); k(f"s_add_u32 s47, s47, {D['OL']}"); k("v_add_u32 v10, s47, v9")
        for j in range(4):
            for r in range(4): k(f"v_mul_f32 v{T+4*j+r}, v{T+4*j+r}, v13")
            k(f"v_cvt_pk_bf16_f32 v{T+4*j}, v{T+4*j}, v{T+4*j+1}"); k(f"v_cvt_pk_bf16_f32 v{T+4*j+1}, v{T+4*j+2}, v{T+4*j+3}")
            if j == 3:
                k("v_add_u32 v10, 48, v10"); k("v_cndmask_b32 v10, v10, v11, s[74:75]")
                k(f"ds_write_b64 v10, {vr(T+12,2)}")
            else: k(f"ds_write_b64 v10, {vr(T+4*j,2)} offset:{16*j}")
        k.place(skip)
    k("s_waitcnt lgkmcnt(0)"); k("s_barrier")
    k(f"v_mov_b32 v12, {D['FL']}"); k("ds_read_b32 v12, v12")
    k(f"v_min_u32 v7, {R-1}, v2"); k("v_mul_u32_u24 v7, 912, v7"); k("v_lshl_add_u32 v7, v3, 4, v7")
    for ks in range(14): k(f"ds_read_b128 {vr(XB+4*ks,4)}, v7 offset:{D['OL']+ks*64}")
    k("s_waitcnt lgkmcnt(14)")
    k("v_readfirstlane_b32 s46, v12")
    k("s_andn2_b32 s46, s46, s78")
    k("s_cmp_eq_u32 s46, 1"); k(f"s_cbranch_scc1 {slow}")
    OUT = 72; XRS = 104
    k("v_mul_u32_u24 v8, 896, v4"); k("v_lshl_add_u32 v8, v3, 4, v8"); k("s_lshl_b32 s46, s69, 6"); k("v_add_u32 v8, s46, v8")
    k(f"s_mov_b32 s48, {L.XR[2*layer]}")
    k("s_waitcnt lgkmcnt(0)")
    for i in range(8):
        if i == 6:
            pass
        if i + 2 < 8:
            wtile(i+2, 62)
        if i == 5:
            for pp in range(4): k(f"buffer_load_dwordx4 {vr(XRS+4*pp,4)}, v8, {WS}, s48 offen offset:{pp*64} sc1")
        k(f"s_waitcnt vmcnt({[28,28,28,28,28,32,18,4][i]})")
        a = OUT + 4*i
        for ks in range(14): k(mf16(a, RING + ((i % 3)*14+ks)*4, XB+4*ks, None if ks == 0 else a))
    k("v_mov_b32 v9, 0x7fffffff"); k("v_cndmask_b32 v8, v9, v8, s[72:73]")
    k("s_lshl_b32 s46, s69, 10"); k("v_add_u32 v5, s46, v5"); k("v_cndmask_b32 v5, v9, v5, s[72:73]")
    k(f"s_lshl_b32 s46, s{S_WAVE}, 2"); k("v_lshlrev_b32 v11, 4, v2"); k("v_add_u32 v10, s46, v11")
    if last: srd(k, 8, P_OUT, L.XSZ)
    k(f"s_mov_b32 s48, {0 if last else L.XR[1]}"); k(f"s_mov_b32 s49, {L.XTA[1]}")
    k("s_waitcnt vmcnt(0)")
    def res_store(pp, q, r): k(f"buffer_store_dwordx4 {vr(r,4)}, v8, {'s[8:11]' if last else WS}, s48 offen offset:{pp*64}{'' if last else ' sc1'}")
    def xn_store(pp, q, r): k(f"buffer_store_dwordx4 {vr(r,4)}, v5, {WS}, s49 offen offset:{pp*1024} sc1")
    ln_epilogue(k, lambda pp, q, t: OUT + (2*pp+t)*4, 1, lambda pp, q: XRS+4*pp, 16, 24, 10, D['ST'], res_store, xn_store, None, last)
    k(f"s_branch {fin}")
    k.place(slow)
    k("s_waitcnt vmcnt(0) lgkmcnt(0)"); k("s_barrier")
    k("s_mov_b32 s78, 1")
    for q in range(QT):
        for kk in range(2): k(f"ds_read_b128 {vr(QO+8*q+4*kk,4)}, v6 offset:{D['QL']+q*2048+kk*32}")
    for q in range(QT): k(f"v_mov_b32 v{MX+q}, {NINF}")
    k("s_mov_b32 s67, s65"); k("s_mov_b32 s68, s66"); k("s_mov_b32 s70, 16")
    lm = k.label("LM"); k.place(lm)
    kvload(0, 67, 68)
    k("s_waitcnt vmcnt(0) lgkmcnt(0)")
    for q in range(QT):
        s = SS[0]
        k(mf32(s, KV[0], QO+8*q, None)); k(mf32(s, KV[0]+4, QO+8*q+4, s))
        for r in range(0, 16, 2): k(f"v_max3_f32 v{MX+q}, v{MX+q}, v{s+r}, v{s+r+1}")
    k("s_sub_u32 s70, s70, 1"); k("s_cmp_lg_u32 s70, 0"); k(f"s_cbranch_scc1 {lm}")
    k("v_and_b32 v7, 31, v0"); k("v_lshlrev_b32 v7, 2, v7"); k(f"s_lshl_b32 s46, s{S_WAVE}, 10"); k("v_add_u32 v12, s46, v7")
    for q in range(QT):
        k(f"v_mov_b32 v13, v{MX+q}"); k(f"v_permlane32_swap_b32 v{MX+q}, v13"); k(f"v_max_f32 v{MX+q}, v{MX+q}, v13")
        k(f"ds_write_b32 v12, v{MX+q} offset:{D['MXL']+q*128}")
    k("s_waitcnt lgkmcnt(0)"); k("s_barrier")
    for q in range(QT):
        for w in range(4): k(f"ds_read_b32 v{SS[0]+w}, v7 offset:{D['MXL']+w*1024+q*128}")
        k("s_waitcnt lgkmcnt(0)")
        k(f"v_max3_f32 v{MX+q}, v{SS[0]}, v{SS[0]+1}, v{SS[0]+2}"); k(f"v_max_f32 v{MX+q}, v{MX+q}, v{SS[0]+3}")
    k("s_mov_b32 s67, s65"); k("s_mov_b32 s68, s66")
    kvload(0, 67, 68)
    main_loop(True)
    k(f"s_branch {redo}")
    k.place(fin)
    if fused and not last:
        k("s_waitcnt vmcnt(0)"); k("s_barrier")
        lz = k.label(); k(f"s_cmp_lg_u32 s{S_WAVE}, 0"); k(f"s_cbranch_scc1 {lz}")
        lane0_addr(k, 4, 5); k(f"s_mov_b32 s46, {L.B3C(layer)}"); signal(k, "s46", 4, 5)
        k.place(lz)

def gen_attnB(layer, R=8):
    k = K(f"attnb{layer}_kernel")
    prologue(k, (2048 + R - 1)//R)
    k("s_mov_b32 s60, s2")
    body_attnB(k, layer, R)
    k.lines = [l for l in k.lines if not (l.startswith("FLAGWAIT") or l.startswith("GUARDED"))]
    epilogue(k)
    return k

A4_PX = 0; A4_PM = 8192; A4_DUM = 10240; A4_ST = 12288; A4_XL = 13312; A4_LDS = A4_XL + 8192

def softmax_seg(k, S):
    k(f"v_mov_b32 v11, {NEG}"); k(f"v_mov_b32 v12, {NINF}")
    for r in range(4):
        k(f"v_cndmask_b32 v{S+4+r}, v12, v{S+4+r}, s[80:81]")
        k(f"v_cndmask_b32 v{S+16+r}, v12, v{S+16+r}, s[80:81]")
    grp = [list(range(S, S+8)), list(range(S+8, S+20))]
    MX = [36, 37]; T = 38
    for q in range(2):
        m = S+4 if q == 0 else S+16
        k(f"v_max3_f32 v{MX[q]}, v{52+q}, v{m}, v{m+1}"); k(f"v_max3_f32 v{MX[q]}, v{MX[q]}, v{m+2}, v{m+3}")
    for q in range(2):
        k(f"v_mov_b32 v{T+q}, v{MX[q]}")
    for q in range(2): k(f"v_permlane16_swap_b32 v{MX[q]}, v{T+q}")
    for q in range(2): k(f"v_max_f32 v{MX[q]}, v{MX[q]}, v{T+q}")
    for q in range(2): k(f"v_mov_b32 v{T+q}, v{MX[q]}")
    for q in range(2): k(f"v_permlane32_swap_b32 v{MX[q]}, v{T+q}")
    for q in range(2): k(f"v_max_f32 v{MX[q]}, v{MX[q]}, v{T+q}")
    for q in range(2):
        for x in grp[q]: k(f"v_sub_f32 v{x}, v{x}, v{MX[q]}")
        for x in grp[q]: k(f"v_exp_f32 v{x}, v{x}")
    for q in range(2):
        g = grp[q]
        k(f"v_add_f32 v{MX[q]}, v{g[0]}, v{g[1]}"); k(f"v_add_f32 v{T+q}, v{g[2]}, v{g[3]}")
        for i in range(4, len(g), 2):
            k(f"v_add_f32 v{MX[q]}, v{MX[q]}, v{g[i]}"); k(f"v_add_f32 v{T+q}, v{T+q}, v{g[i+1]}")
        k(f"v_add_f32 v{MX[q]}, v{MX[q]}, v{T+q}")
    for q in range(2): k(f"v_mov_b32 v{T+q}, v{MX[q]}")
    for q in range(2): k(f"v_permlane16_swap_b32 v{MX[q]}, v{T+q}")
    for q in range(2): k(f"v_add_f32 v{MX[q]}, v{MX[q]}, v{T+q}")
    for q in range(2): k(f"v_mov_b32 v{T+q}, v{MX[q]}")
    for q in range(2): k(f"v_permlane32_swap_b32 v{MX[q]}, v{T+q}")
    for q in range(2): k(f"v_add_f32 v{MX[q]}, v{MX[q]}, v{T+q}")
    for q in range(2): k(f"v_rcp_f32 v{MX[q]}, v{MX[q]}")
    for q in range(2):
        for x in grp[q]: k(f"v_mul_f32 v{x}, v{x}, v{MX[q]}")
    W = 40
    k(f"v_cvt_pk_bf16_f32 v{W}, v{S}, v{S+1}"); k(f"v_cvt_pk_bf16_f32 v{W+1}, v{S+2}, v{S+3}"); k(f"v_mov_b64 {vr(W+2,2)}, 0")
    k(f"v_cvt_pk_bf16_f32 v{W+4}, v{S+8}, v{S+9}"); k(f"v_cvt_pk_bf16_f32 v{W+5}, v{S+10}, v{S+11}")
    k(f"v_cvt_pk_bf16_f32 v{W+6}, v{S+12}, v{S+13}"); k(f"v_cvt_pk_bf16_f32 v{W+7}, v{S+14}, v{S+15}")
    k(f"v_cvt_pk_bf16_f32 v{W+8}, v{S+4}, v{S+5}"); k(f"v_cvt_pk_bf16_f32 v{W+9}, v{S+6}, v{S+7}")
    k(f"v_cvt_pk_bf16_f32 v{W+10}, v{S+16}, v{S+17}"); k(f"v_cvt_pk_bf16_f32 v{W+11}, v{S+18}, v{S+19}")

def body_attnA4(k, layer, abort):
    U = 256; XK = 256+128; VMR = 256+128; MK = 256+160; Q = 64; XRS = 176; S = 16; P = 16; OUT = 192
    k("v_lshlrev_b32 v1, 4, v0"); k("v_and_b32 v2, 15, v0"); k("v_lshrrev_b32 v3, 4, v0")
    k("v_lshlrev_b32 v4, 2, v3")
    for r in range(4):
        k(f"v_add_u32 v5, {r}, v4"); k(f"v_cmp_le_u32 s[{72+2*r}:{73+2*r}], v5, v2")
    k("v_cmp_gt_u32 s[80:81], 2, v3")
    k("v_bfe_u32 v5, v0, 1, 1"); k("v_lshlrev_b32 v5, 2, v5"); k("v_and_b32 v6, 1, v0"); k("v_lshl_add_u32 v5, v6, 1, v5")
    k("v_bfe_u32 v6, v0, 2, 1"); k("v_add_u32 v5, v5, v6"); k("v_lshlrev_b32 v5, 4, v5"); k("v_lshl_add_u32 v5, v3, 7, v5")
    k(f"s_lshl_b32 s46, s{S_WAVE}, 11"); k("v_add_u32 v6, s46, v1")
    k(f"s_lshl_b32 s46, s{S_WAVE}, 8"); k(f"s_add_u32 s46, s46, {A4_PM}")
    k("v_lshlrev_b32 v7, 4, v2"); k("v_lshl_add_u32 v7, v3, 3, v7"); k("v_add_u32 v7, s46, v7")
    k(f"v_mov_b32 v8, {A4_DUM}"); k("v_cndmask_b32 v7, v8, v7, s[80:81]")
    k(f"s_lshl_b32 s61, s{S_WAVE}, 2"); k(f"s_cmp_eq_u32 s{S_WAVE}, 3"); k("s_cselect_b32 s61, 11, s61")
    k("s_lshl_b32 s48, s60, 7"); k(f"s_add_u32 s49, s48, {L.UC(layer)}"); wait_counter(k, "s49", 112, abort, 12)
    k(f"s_add_u32 s49, s48, {L.QC(layer)}"); wait_counter(k, "s49", 112, abort, 12)
    k(f"s_mul_i32 s46, s60, {28*1024}"); k(f"s_add_u32 s46, s46, {L.XTA[layer]}")
    loads(k, [XK+4*i for i in range(28)], 1, 46, 47, " sc1")
    k("s_lshl_b32 s63, s60, 2"); k("s_add_u32 s63, s63, s71"); k("s_lshl_b32 s63, s63, 2")
    k(f"s_add_u32 s46, s63, s{S_WAVE}"); k(f"s_mul_i32 s46, s46, {28*1024}"); k(f"s_add_u32 s46, s46, {L.QP[layer]}")
    loads(k, [Q+4*i for i in range(28)], 1, 46, 47, " sc1")
    k(f"s_mul_i32 s64, s63, {28*1024}"); k("s_lshl_b32 s46, s61, 11"); k("s_add_u32 s64, s64, s46"); k(f"s_add_u32 s64, s64, {L.UU[layer]}")
    k(f"s_mul_i32 s65, s63, {7*1024}"); k("s_add_u32 s65, s65, s46"); k(f"s_add_u32 s65, s65, {L.VM[layer]}")
    k("v_and_b32 v11, 7, v0"); k("v_bfe_u32 v12, v0, 3, 1")
    k("v_mul_u32_u24 v8, 896, v11"); k("v_lshl_add_u32 v8, v3, 4, v8"); k("v_lshl_add_u32 v8, v12, 6, v8")
    k("v_lshlrev_b32 v13, 4, v11"); k("v_lshl_add_u32 v13, v3, 7, v13"); k("v_lshl_add_u32 v15, v12, 15, v13"); k("v_lshl_add_u32 v13, v12, 9, v13")
    k("v_lshlrev_b32 v14, 4, v11"); k("v_lshl_add_u32 v14, v3, 8, v14"); k("v_lshl_add_u32 v14, v12, 10, v14")
    k(f"s_lshl_b32 s46, s{S_WAVE}, 2"); k("v_lshlrev_b32 v10, 4, v11"); k("v_add_u32 v9, s46, v10")
    k(f"s_cmp_ge_u32 s{S_WAVE}, 2"); k("s_cselect_b32 s46, 1, 2"); k("v_cmp_ne_u32 s[82:83], s46, v12")
    k("s_lshl_b32 s62, s60, 2"); k("s_add_u32 s62, s62, s71"); k(f"s_mul_i32 s62, s62, {8*896}"); k("s_lshl_b32 s46, s61, 6"); k("s_add_u32 s62, s62, s46")
    if layer == 0: srd(k, 8, P_X, L.XSZ)
    k("s_waitcnt vmcnt(28)")
    for hh in range(4):
        k(f"s_add_u32 s46, s64, {hh*28*1024}")
        loads(k, [U+(hh*8+i)*4 for i in range(8)], 1, 46, 47, " sc1")
    k(f"s_add_u32 s46, s62, {0 if layer == 0 else L.XR[1]}")
    for j in range(2):
        k(f"buffer_load_dwordx4 {vr(XRS+4*j,4)}, v8, {'s[8:11]' if layer == 0 else WS}, s46 offen offset:{j*128}{' sc1' if layer else ''}")
    k("s_waitcnt vmcnt(34)")
    for ks in range(14):
        c = lambda i: None if ks == 0 else S+4*i
        k(mf16(S+0, XK+4*ks, Q+4*ks, c(0)))
        k(mf16(S+8, XK+4*ks, Q+4*(14+ks), c(2)))
        k(mf16(S+12, XK+4*(14+ks), Q+4*(14+ks), c(3)))
    for i in range(32): k(f"v_mov_b64 {vr(OUT+2*i,2)}, 0")
    k(f"v_mov_b32 v11, {NEG}")
    for r in range(4):
        k(f"v_cndmask_b32 v{S+r}, v11, v{S+r}, s[{72+2*r}:{73+2*r}]")
        k(f"v_cndmask_b32 v{S+12+r}, v11, v{S+12+r}, s[{72+2*r}:{73+2*r}]")
    k(f"v_max3_f32 v52, v{S}, v{S+1}, v{S+2}"); k(f"v_max_f32 v52, v52, v{S+3}")
    k(f"v_max3_f32 v53, v{S+8}, v{S+9}, v{S+10}")
    for i in (11, 13): k(f"v_max3_f32 v53, v53, v{S+i}, v{S+i+1}")
    k(f"v_max_f32 v53, v53, v{S+15}")
    k("s_cmp_ge_u32 s60, 62"); k(f"s_mov_b32 s49, {L.PROG(layer)}"); k(f"s_cselect_b32 s49, {L.FIN(layer)}, s49")
    k("s_add_u32 s50, s60, 2"); k("s_cmp_ge_u32 s60, 62"); k("s_cselect_b32 s50, 14, s50")
    wait_counter(k, "s49", "s50", abort, 54, ge=True)
    gen.tl(k, 2+5*layer, 54)
    k(f"s_mul_i32 s46, s60, {L.MEMSZ}"); k(f"s_add_u32 s46, s46, {L.MEMN[layer]}")
    for ks in range(14):
        if ks == 8: k("s_add_u32 s46, s46, 4096")
        k(f"buffer_load_dwordx4 {vr(MK+4*ks,4)}, v5, {WS}, s46 offen offset:{(ks%8)*512} sc1")
    loads(k, [VMR+4*i for i in range(8)], 1, 65, 47, " sc1")
    for ks in range(14):
        k(f"s_waitcnt vmcnt({21-ks + (1 if gen.TL else 0)*0})")
        c = lambda i: None if ks == 0 else S+4*i
        k(mf16(S+4, MK+4*ks, Q+4*ks, c(1)))
        k(mf16(S+16, MK+4*ks, Q+4*(14+ks), c(4)))
    k(f"s_mul_i32 s46, s{S_WAVE}, {14*1024}"); k(f"s_add_u32 s46, s46, {L.WBK}")
    assert L.WBV == L.WBK + 28*1024
    loads(k, [Q+4*i for i in range(14)], 1, 46, 47)
    softmax_seg(k, S)
    W = 40
    k(f"ds_write_b128 v6, {vr(W,4)}"); k(f"ds_write_b128 v6, {vr(W+4,4)} offset:1024")
    k(f"ds_write_b64 v7, {vr(W+8,2)}"); k(f"ds_write_b64 v7, {vr(W+10,2)} offset:1024")
    k("s_waitcnt lgkmcnt(0)"); k("s_barrier")
    for i in range(8): k(f"ds_read_b128 {vr(P+4*i,4)}, v1 offset:{A4_PX+i*1024}")
    for q in range(2): k(f"ds_read_b128 {vr(P+32+4*q,4)}, v1 offset:{A4_PM+q*1024}")
    k("s_lshl_b32 s66, s60, 17"); k("s_lshl_b32 s46, s71, 13"); k("s_add_u32 s66, s66, s46"); k("s_lshl_b32 s46, s61, 9"); k("s_add_u32 s66, s66, s46")
    k(f"s_add_u32 s66, s66, {L.PARTS[layer]}"); k("s_add_u32 s67, s66, 65536")
    k("s_waitcnt vmcnt(14) lgkmcnt(0)")
    skip = k.label()
    for pp in range(4):
        if pp == 3:
            k(f"s_cmp_ge_u32 s{S_WAVE}, 2"); k(f"s_cbranch_scc1 {skip}")
        for hh in range(5):
            for t in range(2):
                for q in range(2):
                    i = 2*pp + t
                    o = OUT + (i*2 + q)*4
                    k(mf16(o, (U+(hh*8+i)*4) if hh < 4 else VMR+4*i, P + (hh*2+q)*4, o))
        if pp:
            pack_store(k, OUT, pp-1, 56)
        if pp == 3: pack_store(k, OUT, 3, 56)
    j2 = k.label(); k(f"s_branch {j2}")
    k.place(skip); pack_store(k, OUT, 2, 56)
    k.place(j2)
    k("s_waitcnt vmcnt(0)"); k("s_barrier")
    lz = k.label(); k(f"s_cmp_lg_u32 s{S_WAVE}, 0"); k(f"s_cbranch_scc1 {lz}")
    lane0_addr(k, 56, 57); k(f"s_add_u32 s46, s48, {L.PC(layer)}"); signal(k, "s46", 56, 57)
    k.place(lz)
    k(f"s_add_u32 s49, s48, {L.PC(layer)}"); wait_counter(k, "s49", 4, abort, 54, nap=1)
    k("s_lshl_b32 s66, s60, 17"); k("s_lshl_b32 s46, s71, 15"); k("s_add_u32 s66, s66, s46"); k("s_lshl_b32 s46, s61, 9"); k("s_add_u32 s66, s66, s46")
    k(f"s_add_u32 s66, s66, {L.PARTS[layer]}")
    PT = 16; F = 192
    for src in range(4):
        if src: k("s_add_u32 s66, s66, 8192")
        for j in range(2): k(f"buffer_load_dwordx4 {vr(PT+(src*2+j)*4,4)}, v13, {WS}, s66 offen offset:{j*1024} sc1")
    for i in range(8):
        k(f"v_lshlrev_b32 v{F+2*i}, 16, v{XRS+i}"); k(f"v_and_b32 v{F+2*i+1}, 0xffff0000, v{XRS+i}")
    for src in range(4):
        k(f"s_waitcnt vmcnt({6-2*src})")
        for i in range(8):
            k(f"v_lshlrev_b32 v54, 16, v{PT+src*8+i}"); k(f"v_and_b32 v55, 0xffff0000, v{PT+src*8+i}")
            k(f"v_pk_add_f32 {vr(F+2*i,2)}, {vr(F+2*i,2)}, v[54:55]")
    for i in range(8): k(f"v_cvt_pk_bf16_f32 v{XRS+i}, v{F+2*i}, v{F+2*i+1}")
    k("v_mov_b32 v11, 0x7fffffff"); k("v_cndmask_b32 v12, v11, v8, s[82:83]")
    k(f"s_add_u32 s46, s62, {L.XR[2*layer]}")
    k(f"buffer_store_dwordx4 {vr(XRS,4)}, v8, {WS}, s46 offen sc1"); k(f"buffer_store_dwordx4 {vr(XRS+4,4)}, v12, {WS}, s46 offen offset:128 sc1")
    def rowsum(off, sq):
        for j in range(2):
            b = F + 8*j
            if sq:
                k(f"v_mul_f32 v{54+j}, v{b}, v{b}")
                for i in range(1, 8): k(f"v_fmac_f32 v{54+j}, v{b+i}, v{b+i}")
            else:
                k(f"v_add_f32 v{54+j}, v{b}, v{b+1}")
                for i in range(2, 8): k(f"v_add_f32 v{54+j}, v{54+j}, v{b+i}")
        k("v_cndmask_b32 v55, 0, v55, s[82:83]"); k("v_add_f32 v54, v54, v55")
        k("v_add_f32_dpp v54, v54, v54 row_ror:8 row_mask:0xf bank_mask:0xf")
        xreduce_g(k, 54, 55, "v_add_f32")
        k(f"ds_write_b32 v9, v54 offset:{A4_ST+off}"); k("s_waitcnt lgkmcnt(0)"); k("s_barrier")
        k(f"ds_read_b128 v[56:59], v10 offset:{A4_ST+off}"); k("s_waitcnt lgkmcnt(0)")
        k("v_add_f32 v56, v56, v57"); k("v_add_f32 v58, v58, v59"); k("v_add_f32 v54, v56, v58")
    rowsum(0, False)
    k(f"v_mul_f32 v54, {hx(f2u(1/448))}, v54")
    for i in range(16): k(f"v_sub_f32 v{F+i}, v{F+i}, v54")
    rowsum(256, True)
    k(f"v_mov_b32 v55, {hx(f2u(1e-5))}"); k(f"v_fmac_f32 v55, {hx(f2u(1/448))}, v54"); k("v_rsq_f32 v55, v55")
    for i in range(16): k(f"v_mul_f32 v{F+i}, v{F+i}, v55")
    for i in range(8): k(f"v_cvt_pk_bf16_f32 v{PT+i}, v{F+2*i}, v{F+2*i+1}")
    k("s_lshl_b32 s46, s61, 9"); k(f"s_add_u32 s46, s46, {A4_XL}"); k("v_add_u32 v12, s46, v13")
    k(f"v_mov_b32 v54, {A4_DUM - 1024}"); k("v_cndmask_b32 v54, v54, v12, s[82:83]")
    k(f"ds_write_b128 v12, {vr(PT,4)}"); k(f"ds_write_b128 v54, {vr(PT+4,4)} offset:1024")
    k("s_lshr_b32 s46, s71, 1"); k("s_lshl_b32 s47, s60, 1"); k("s_add_u32 s46, s46, s47"); k("s_mul_i32 s46, s46, 14"); k("s_add_u32 s46, s46, s61")
    k("s_lshl_b32 s46, s46, 10"); k("s_and_b32 s47, s71, 1"); k("s_lshl_b32 s47, s47, 7"); k("s_add_u32 s46, s46, s47"); k(f"s_add_u32 s46, s46, {L.XTB[layer]}")
    k("v_cndmask_b32 v12, v11, v14, s[82:83]")
    k(f"buffer_store_dwordx4 {vr(PT,4)}, v14, {WS}, s46 offen sc1"); k(f"buffer_store_dwordx4 {vr(PT+4,4)}, v12, {WS}, s46 offen offset:2048 sc1")
    k("s_waitcnt lgkmcnt(0)"); k("s_barrier")
    X = 192
    k("v_and_b32 v12, 7, v0"); k("v_lshlrev_b32 v12, 4, v12"); k("v_lshl_add_u32 v12, v3, 7, v12")
    for ks in range(14): k(f"ds_read_b128 {vr(X+4*ks,4)}, v12 offset:{A4_XL+ks*512}")
    lv = k.label("LV"); le = k.label("LE")
    k("s_lshl_b32 s49, s60, 11")
    k(f"s_cmp_ge_u32 s{S_WAVE}, 2"); k(f"s_cbranch_scc1 {lv}")
    k("v_lshrrev_b32 v12, 1, v3"); k("v_lshlrev_b32 v12, 10, v12"); k("v_and_b32 v54, 1, v3"); k("v_lshl_add_u32 v12, v54, 9, v12")
    k("v_lshl_add_u32 v12, v2, 4, v12"); k("v_cmp_gt_u32 vcc, 8, v2"); k("v_cndmask_b32 v12, v11, v12, vcc")
    k("s_lshl_b32 s46, s71, 7"); k(f"s_lshl_b32 s47, s{S_WAVE}, 3"); k("s_add_u32 s46, s46, s47"); k("s_add_u32 s46, s46, s49"); k(f"s_add_u32 s46, s46, {L.KI[layer]}")
    k("s_waitcnt lgkmcnt(0)")
    for ks in range(14): k(mf16(16, Q+4*ks, X+4*ks, None if ks == 0 else 16))
    k("v_cvt_pk_bf16_f32 v24, v16, v17"); k("v_cvt_pk_bf16_f32 v25, v18, v19")
    k(f"s_branch {le}")
    k.place(lv)
    k("v_lshlrev_b32 v12, 9, v3"); k("v_lshl_add_u32 v12, v2, 4, v12"); k("v_cndmask_b32 v12, v11, v12, s[80:81]")
    k("s_lshr_b32 s46, s71, 1"); k("s_lshl_b32 s46, s46, 10"); k("s_and_b32 s47, s71, 1"); k("s_lshl_b32 s47, s47, 3"); k("s_add_u32 s46, s46, s47")
    k(f"s_and_b32 s47, s{S_WAVE}, 1"); k("s_lshl_b32 s47, s47, 8"); k("s_add_u32 s46, s46, s47"); k("s_add_u32 s46, s46, s49"); k(f"s_add_u32 s46, s46, {L.VI[layer]}")
    k(f"s_cmp_eq_u32 s{S_WAVE}, 3"); k("s_cselect_b32 s47, 12, 99"); k("v_cmp_eq_u32 vcc, s47, v2"); k("v_mov_b32 v54, 0x3f803f80")
    k("s_waitcnt lgkmcnt(0)")
    for ks in range(14): k(mf16(16, X+4*ks, Q+4*ks, None if ks == 0 else 16))
    k("v_cvt_pk_bf16_f32 v24, v16, v17"); k("v_cvt_pk_bf16_f32 v25, v18, v19")
    k("v_cndmask_b32 v24, v24, v54, vcc"); k("v_cndmask_b32 v25, v25, v54, vcc")
    k.place(le)
    k(f"buffer_store_dwordx2 v[24:25], v12, {WS}, s46 offen sc1")
    k("s_waitcnt vmcnt(0)"); k("s_barrier")
    lz = k.label(); k(f"s_cmp_lg_u32 s{S_WAVE}, 0"); k(f"s_cbranch_scc1 {lz}")
    lane0_addr(k, 4, 5); k(f"s_mov_b32 s46, {L.A3C(layer)}"); signal(k, "s46", 4, 5)
    k.place(lz)

def pack_store(k, OUT, pp, T):
    for q in range(2):
        for t in range(2):
            a = OUT + ((2*pp+t)*2 + q)*4
            k(f"v_cvt_pk_bf16_f32 v{T+4*q+2*t}, v{a}, v{a+1}"); k(f"v_cvt_pk_bf16_f32 v{T+4*q+2*t+1}, v{a+2}, v{a+3}")
        k(f"buffer_store_dwordx4 {vr(T+4*q,4)}, v15, {WS}, s{66+q} offen offset:{pp*512} sc1")
```

```python
import sys
import chain, gen, attn
from chain import *
from attn import *

NAW = 36
assert NAW + N7 == 112 and N6 + N4 + N2 == 112
def gen_main():
    k = K("main_kernel", nsgpr=102)
    prologue(k, 256)
    layer_begin(k)
    ex = f"Lexit_{k.name}"
    bulk = k.label("Lbulk")
    gen.tl(k, 0, 2)
    k("s_and_b32 s46, s2, 7"); k("s_lshr_b32 s59, s2, 3"); k("s_cmp_lg_u32 s46, 0"); k(f"s_cbranch_scc1 {bulk}")
    chain_roles(k, "Lexit_team")
    k.place("Lexit_team"); k("s_endpgm")
    k.place(bulk)
    gen.TLROLE[0] = 'b'
    k("s_sub_u32 s100, s46, 1"); k("s_lshl_b32 s100, s100, 5"); k("s_add_u32 s100, s100, s59")
    body_slab(k, 100, ex)
    gen.tl(k, 15, 16, 0)
    slab_stage(k, 0, True)
    top = k.label("Ltop"); k.place(top)
    body_gemm(k, 100, ex)
    gen.tl(k, 1, 2)
    nxt = k.label("Lnx"); again = k.label("Lag"); l7 = k.label("L7"); lq = k.label("Lq"); l4 = k.label("L4"); l2 = k.label("L2")
    k("s_cmp_lt_u32 s100, 112"); k(f"s_cbranch_scc1 {lq}")
    k("s_sub_u32 s46, s100, 112"); k("s_mul_i32 s47, s46, 5462"); k("s_lshr_b32 s47, s47, 16"); k("s_mul_i32 s48, s47, 12"); k("s_sub_u32 s48, s46, s48")
    k("s_add_u32 s49, s47, 1"); k("s_min_u32 s49, s49, 9"); k("s_lshl_b32 s49, s49, 2"); k("s_sub_u32 s60, s46, s49")
    k("s_cmp_ge_u32 s48, 4"); k(f"s_cbranch_scc1 {l7}")
    k("s_cmp_ge_u32 s47, 9"); k(f"s_cbranch_scc1 {l7}")
    k("s_lshl_b32 s93, s47, 2"); k("s_add_u32 s93, s93, s48")
    group_same_die(k, ex)
    k.place(again)
    k("s_lshr_b32 s60, s93, 2"); k("s_and_b32 s71, s93, 3")
    body_attnA4(k, ex)
    gen.tl(k, 3, 2)
    k(f"s_add_u32 s93, s93, {NAW}"); k("s_cmp_lt_u32 s93, 256"); k(f"s_cbranch_scc1 {again}")
    slab_request(k, 100); slab_stage(k, 0)
    k(f"s_branch {nxt}")
    k.place(l7); body_attnB(k, 7, ex, top); gen.tl(k, 5, 2); k(f"s_branch {nxt}")
    k.place(lq)
    k(f"s_cmp_ge_u32 s100, {N6+N4}"); k(f"s_cbranch_scc1 {l2}")
    k(f"s_cmp_ge_u32 s100, {N6}"); k(f"s_cbranch_scc1 {l4}")
    k("s_mov_b32 s60, s100"); body_attnB(k, 6, ex, top); gen.tl(k, 5, 2); k(f"s_branch {nxt}")
    k.place(l4); k(f"s_sub_u32 s60, s100, {N6}"); body_attnB(k, 4, ex, top); gen.tl(k, 5, 2); k(f"s_branch {nxt}")
    k.place(l2); k(f"s_sub_u32 s60, s100, {N6+N4}"); body_attnB(k, 2, ex, top); gen.tl(k, 5, 2)
    k.place(nxt)
    layer_next(k, top)
    epilogue(k)
    return k

if __name__ == "__main__":
    for a in sys.argv[2:]:
        n, v = a.split('='); setattr(attn if n in ('ATCH','LASTD') else gen if n in ('TL','SLEEP','TLBW','QDELAY') else chain, n, int(v))
    hdr = open('interleave_layers__memory_aug_recurrent_mem_tr__grouped_kv_mqa__prompt.s.ref').read().split("; Override launch")[0]
    ks = [gen_main()]
    lds = max(SLAB_END, CHAIN_LDS, A4_LDS, B_LDS)
    launches = [("main_kernel",256,256,lds)]
    open(sys.argv[1], "w").write(emit_file(ks, launches, hdr))
```

```python
from gen import *
import gen

ATCH = 0
LASTD = 0
NEG = hx(f2u(-1e9*L.LOG2E))
NINF = hx(f2u(-3.0e38))
OOB = 0x40000000

def mf16(d, a, b, c): return f"v_mfma_f32_16x16x32_bf16 {vr(d,4)}, {vr(a,4)}, {vr(b,4)}, {'0' if c is None else vr(c,4)}"
def mf32(d, a, b, c): return f"v_mfma_f32_32x32x16_bf16 {vr(d,16)}, {vr(a,4)}, {vr(b,4)}, {'0' if c is None else vr(c,16)}"

def loads(k, regs, vaddr, sbase, stmp, flags="", WS=WL):
    cur = sbase
    for n, r in enumerate(regs):
        if n % 4 == 0 and n:
            k(f"s_add_u32 s{stmp}, s{cur}, 4096"); cur = stmp
        k(f"buffer_load_dwordx4 {vr(r,4)}, v{vaddr}, {WS}, s{cur} offen offset:{(n%4)*1024}{flags}")

def ln_epilogue(k, acc, nq, XRES, TMP, PK, V_ST, STATS, res_store, xn_store, done_label):
    def pairs(body):
        for pp in range(4):
            lab = None
            if pp == 3:
                lab = k.label(); k(f"s_cmp_ge_u32 s{S_WAVE}, 2"); k(f"s_cbranch_scc1 {lab}")
            body(pp)
            if lab: k.place(lab)
    SUM = TMP; T = TMP + 4
    for q in range(nq): k(f"v_mov_b32 v{SUM+q}, 0")
    def b1(pp):
        for q in range(nq):
            x = XRES(pp, q)
            for t in range(2):
                a = acc(pp, q, t)
                for h in range(2):
                    k(f"v_lshlrev_b32 v{T}, 16, v{x+2*t+h}"); k(f"v_and_b32 v{T+1}, 0xffff0000, v{x+2*t+h}")
                    k(f"v_add_f32 v{a+2*h}, v{a+2*h}, v{T}"); k(f"v_add_f32 v{a+2*h+1}, v{a+2*h+1}, v{T+1}")
                    k(f"v_cvt_pk_bf16_f32 v{x+2*t+h}, v{a+2*h}, v{a+2*h+1}")
                if True:
                    k(f"v_add_f32 v{T}, v{a}, v{a+1}"); k(f"v_add_f32 v{T+1}, v{a+2}, v{a+3}")
                    k(f"v_add_f32 v{SUM+q}, v{SUM+q}, v{T}"); k(f"v_add_f32 v{SUM+q}, v{SUM+q}, v{T+1}")
            res_store(pp, q, x)
    pairs(b1)
    k(f"s_cmp_eq_u32 s{S_LAYER}, 1"); k(f"s_cbranch_scc1 {done_label}")
    def exchange(off):
        for q in range(nq): xreduce_g(k, SUM+q, T, "v_add_f32")
        for q in range(nq): k(f"ds_write_b32 v{V_ST}, v{SUM+q} offset:{STATS+off+q*256}")
        k("s_waitcnt lgkmcnt(0)"); k("s_barrier")
        for q in range(nq): k(f"ds_read_b128 {vr(PK+4*q,4)}, v{V_ST+1} offset:{STATS+off+q*256}")
        k("s_waitcnt lgkmcnt(0)")
        for q in range(nq):
            k(f"v_add_f32 v{PK+4*q}, v{PK+4*q}, v{PK+4*q+1}"); k(f"v_add_f32 v{PK+4*q+2}, v{PK+4*q+2}, v{PK+4*q+3}")
            k(f"v_add_f32 v{SUM+q}, v{PK+4*q}, v{PK+4*q+2}")
    exchange(0)
    MU = TMP + 2
    for q in range(nq):
        k(f"v_mul_f32 v{MU+q}, {hx(f2u(1/448))}, v{SUM+q}"); k(f"v_mov_b32 v{SUM+q}, 0")
    def b2(pp):
        for q in range(nq):
            for t in range(2):
                a = acc(pp, q, t)
                for r in range(4):
                    k(f"v_sub_f32 v{a+r}, v{a+r}, v{MU+q}"); k(f"v_fmac_f32 v{SUM+q}, v{a+r}, v{a+r}")
    pairs(b2)
    exchange(512)
    for q in range(nq):
        k(f"v_mov_b32 v{MU+q}, {hx(f2u(1e-5))}"); k(f"v_fmac_f32 v{MU+q}, {hx(f2u(1/448))}, v{SUM+q}"); k(f"v_rsq_f32 v{MU+q}, v{MU+q}")
    def b3(pp):
        for q in range(nq):
            o = PK + 4*((pp*nq + q) & 1)
            for t in range(2):
                a = acc(pp, q, t)
                for r in range(4): k(f"v_mul_f32 v{a+r}, v{a+r}, v{MU+q}")
                k(f"v_cvt_pk_bf16_f32 v{o+2*t}, v{a}, v{a+1}"); k(f"v_cvt_pk_bf16_f32 v{o+2*t+1}, v{a+2}, v{a+3}")
            xn_store(pp, q, o)
    pairs(b3)

A4_PX = 0; A4_PM = 8192; A4_DUM = 10240; A4_ST = 12288; A4_XL = 13312; A4_LDS = A4_XL + 8192

def softmax_seg(k, S):
    k(f"v_mov_b32 v11, {NEG}"); k(f"v_mov_b32 v12, {NINF}")
    for r in range(4):
        k(f"v_cndmask_b32 v{S+4+r}, v12, v{S+4+r}, s[80:81]")
        k(f"v_cndmask_b32 v{S+16+r}, v12, v{S+16+r}, s[80:81]")
    grp = [list(range(S, S+8)), list(range(S+8, S+20))]
    MX = [36, 37]; T = 38
    for q in range(2):
        m = S+4 if q == 0 else S+16
        k(f"v_max3_f32 v{MX[q]}, v{52+q}, v{m}, v{m+1}"); k(f"v_max3_f32 v{MX[q]}, v{MX[q]}, v{m+2}, v{m+3}")
    for q in range(2):
        k(f"v_mov_b32 v{T+q}, v{MX[q]}")
    for q in range(2): k(f"v_permlane16_swap_b32 v{MX[q]}, v{T+q}")
    for q in range(2): k(f"v_max_f32 v{MX[q]}, v{MX[q]}, v{T+q}")
    for q in range(2): k(f"v_mov_b32 v{T+q}, v{MX[q]}")
    for q in range(2): k(f"v_permlane32_swap_b32 v{MX[q]}, v{T+q}")
    for q in range(2): k(f"v_max_f32 v{MX[q]}, v{MX[q]}, v{T+q}")
    for q in range(2):
        for x in grp[q]: k(f"v_sub_f32 v{x}, v{x}, v{MX[q]}")
        for x in grp[q]: k(f"v_exp_f32 v{x}, v{x}")
    for q in range(2):
        g = grp[q]
        k(f"v_add_f32 v{MX[q]}, v{g[0]}, v{g[1]}"); k(f"v_add_f32 v{T+q}, v{g[2]}, v{g[3]}")
        for i in range(4, len(g), 2):
            k(f"v_add_f32 v{MX[q]}, v{MX[q]}, v{g[i]}"); k(f"v_add_f32 v{T+q}, v{T+q}, v{g[i+1]}")
        k(f"v_add_f32 v{MX[q]}, v{MX[q]}, v{T+q}")
    for q in range(2): k(f"v_mov_b32 v{T+q}, v{MX[q]}")
    for q in range(2): k(f"v_permlane16_swap_b32 v{MX[q]}, v{T+q}")
    for q in range(2): k(f"v_add_f32 v{MX[q]}, v{MX[q]}, v{T+q}")
    for q in range(2): k(f"v_mov_b32 v{T+q}, v{MX[q]}")
    for q in range(2): k(f"v_permlane32_swap_b32 v{MX[q]}, v{T+q}")
    for q in range(2): k(f"v_add_f32 v{MX[q]}, v{MX[q]}, v{T+q}")
    for q in range(2): k(f"v_rcp_f32 v{MX[q]}, v{MX[q]}")
    for q in range(2):
        for x in grp[q]: k(f"v_mul_f32 v{x}, v{x}, v{MX[q]}")
    W = 40
    k(f"v_cvt_pk_bf16_f32 v{W}, v{S}, v{S+1}"); k(f"v_cvt_pk_bf16_f32 v{W+1}, v{S+2}, v{S+3}"); k(f"v_mov_b64 {vr(W+2,2)}, 0")
    k(f"v_cvt_pk_bf16_f32 v{W+4}, v{S+8}, v{S+9}"); k(f"v_cvt_pk_bf16_f32 v{W+5}, v{S+10}, v{S+11}")
    k(f"v_cvt_pk_bf16_f32 v{W+6}, v{S+12}, v{S+13}"); k(f"v_cvt_pk_bf16_f32 v{W+7}, v{S+14}, v{S+15}")
    k(f"v_cvt_pk_bf16_f32 v{W+8}, v{S+4}, v{S+5}"); k(f"v_cvt_pk_bf16_f32 v{W+9}, v{S+6}, v{S+7}")
    k(f"v_cvt_pk_bf16_f32 v{W+10}, v{S+16}, v{S+17}"); k(f"v_cvt_pk_bf16_f32 v{W+11}, v{S+18}, v{S+19}")

def group_same_die(k, abort):
    k("s_getreg_b32 s94, hwreg(HW_REG_XCC_ID)"); k("s_and_b32 s94, s94, 15"); k("s_add_u32 s94, s94, 1")
    k("s_lshr_b32 s49, s93, 2"); k("s_lshl_b32 s49, s49, 7"); k(f"s_add_u32 s49, s49, {L.AX(0)}")
    k("s_and_b32 s46, s93, 3"); k("s_lshl_b32 s46, s46, 2"); k("v_mov_b32 v2, s46"); k("v_mov_b32 v3, s94")
    k("s_mov_b64 exec, 1"); k(f"buffer_store_dword v3, v2, {WL}, s49 offen sc1"); k("s_mov_b64 exec, -1")
    k("v_and_b32 v2, 3, v0"); k("v_lshlrev_b32 v2, 2, v2")
    wait_words(k, "s49", 2, 3, 1, abort, ge=True, nap=4, wg=False)
    k("v_cmp_ne_u32 vcc, s94, v3"); k("s_cmp_eq_u64 vcc, 0"); k("s_cselect_b32 s94, 1, 0")

def body_attnA4(k, abort):
    U = 256; XK = 256+128; VMR = 256+128; MK = 256+160; Q = 64; XRS = 176; S = 16; P = 16; OUT = 192
    k("v_lshlrev_b32 v1, 4, v0"); k("v_and_b32 v2, 15, v0"); k("v_lshrrev_b32 v3, 4, v0")
    k("v_lshlrev_b32 v4, 2, v3")
    for r in range(4):
        k(f"v_add_u32 v5, {r}, v4"); k(f"v_cmp_le_u32 s[{72+2*r}:{73+2*r}], v5, v2")
    k("v_cmp_gt_u32 s[80:81], 2, v3")
    k("v_bfe_u32 v5, v0, 1, 1"); k("v_lshlrev_b32 v5, 2, v5"); k("v_bfe_u32 v6, v0, 2, 1"); k("v_lshl_add_u32 v5, v6, 1, v5")
    k("v_and_b32 v6, 1, v0"); k("v_add_u32 v5, v5, v6"); k("v_lshlrev_b32 v5, 4, v5"); k("v_lshl_add_u32 v5, v3, 7, v5")
    k(f"s_lshl_b32 s46, s{S_WAVE}, 11"); k("v_add_u32 v6, s46, v1")
    k(f"s_lshl_b32 s46, s{S_WAVE}, 8"); k(f"s_add_u32 s46, s46, {A4_PM}")
    k("v_lshlrev_b32 v7, 4, v2"); k("v_lshl_add_u32 v7, v3, 3, v7"); k("v_add_u32 v7, s46, v7")
    k(f"v_mov_b32 v8, {A4_DUM}"); k("v_cndmask_b32 v7, v8, v7, s[80:81]")
    k(f"s_lshl_b32 s61, s{S_WAVE}, 2"); k(f"s_cmp_eq_u32 s{S_WAVE}, 3"); k("s_cselect_b32 s61, 11, s61")
    k("s_lshl_b32 s48, s60, 7"); k(f"s_add_u32 s49, s48, {L.UC(0)}")
    k("v_and_b32 v12, 7, v0"); k("v_lshlrev_b32 v12, 13, v12")
    wait_words(k, "s49", 12, 13, 28, abort)
    k("s_lshl_b32 s63, s60, 2"); k("s_add_u32 s63, s63, s71"); k("s_lshl_b32 s63, s63, 2")
    k(f"s_add_u32 s46, s63, s{S_WAVE}"); k(f"s_mul_i32 s52, s46, {28*1024}"); k("v_lshlrev_b32 v12, 7, v0"); k("v_min_u32 v13, 4096-128, v12")
    for base in ((L.QP[0], L.UU[0]) if ATCH else ()):
        for j in range(4):
            k(f"s_add_u32 s46, s52, {base + j*8192}"); k(f"buffer_load_dword v14, v{12 if j < 3 else 13}, {WL}, s46 offen sc1")
    k(f"s_mul_i32 s46, s60, {28*1024}"); k(f"s_add_u32 s46, s46, {L.XTA[0]}")
    loads(k, [XK+4*i for i in range(28)], 1, 46, 47, " sc1")
    k(f"s_add_u32 s46, s52, {L.QP[0]}"); k("s_waitcnt vmcnt(28)")
    loads(k, [Q+4*i for i in range(28)], 1, 46, 47, " sc1")
    k(f"s_mul_i32 s64, s63, {28*1024}"); k("s_lshl_b32 s46, s61, 11"); k("s_add_u32 s64, s64, s46"); k(f"s_add_u32 s64, s64, {L.UU[0]}")
    k(f"s_mul_i32 s65, s63, {7*1024}"); k("s_add_u32 s65, s65, s46"); k(f"s_add_u32 s65, s65, {L.VM[0]}")
    k("v_and_b32 v11, 7, v0"); k("v_bfe_u32 v12, v0, 3, 1")
    k("v_mul_u32_u24 v8, 896, v11"); k("v_lshl_add_u32 v8, v3, 4, v8"); k("v_lshl_add_u32 v8, v12, 6, v8")
    k("v_lshlrev_b32 v13, 4, v11"); k("v_lshl_add_u32 v13, v3, 7, v13"); k("v_lshl_add_u32 v15, v12, 15, v13"); k("v_lshl_add_u32 v13, v12, 9, v13")
    k("v_lshlrev_b32 v14, 4, v11"); k("v_lshl_add_u32 v14, v3, 8, v14"); k("v_lshl_add_u32 v14, v12, 10, v14")
    k(f"s_lshl_b32 s46, s{S_WAVE}, 2"); k("v_lshlrev_b32 v10, 4, v11"); k("v_add_u32 v9, s46, v10")
    k(f"s_cmp_ge_u32 s{S_WAVE}, 2"); k("s_cselect_b32 s46, 1, 2"); k("v_cmp_ne_u32 s[82:83], s46, v12")
    k("s_lshl_b32 s62, s60, 2"); k("s_add_u32 s62, s62, s71"); k(f"s_mul_i32 s62, s62, {8*896}"); k("s_lshl_b32 s46, s61, 6"); k("s_add_u32 s62, s62, s46")
    k(f"s_add_u32 s8, s{P_WS}, {L.XR1}"); k(f"s_addc_u32 s9, s{P_WS+1}, 0"); k(f"s_cmp_eq_u32 s{S_LAYER}, 0")
    k(f"s_cselect_b32 s8, s{P_X}, s8"); k(f"s_cselect_b32 s9, s{P_X+1}, s9"); k("s_and_b32 s9, s9, 0xffff")
    k(f"s_mov_b32 s10, {L.XSZ}"); k("s_mov_b32 s11, 0x20000")
    k("s_waitcnt vmcnt(28)")
    for hh in range(4):
        k(f"s_add_u32 s46, s64, {hh*28*1024}")
        loads(k, [U+(hh*8+i)*4 for i in range(8)], 1, 46, 47, " sc1")
    for j in range(2):
        k(f"buffer_load_dwordx4 {vr(XRS+4*j,4)}, v8, s[8:11], s62 offen offset:{j*128} sc1")
    k("s_waitcnt vmcnt(34)")
    for ks in range(14):
        c = lambda i: None if ks == 0 else S+4*i
        k(mf16(S+0, XK+4*ks, Q+4*ks, c(0)))
        k(mf16(S+8, XK+4*ks, Q+4*(14+ks), c(2)))
        k(mf16(S+12, XK+4*(14+ks), Q+4*(14+ks), c(3)))
    k(f"v_mov_b32 v11, {NEG}")
    for r in range(4):
        k(f"v_cndmask_b32 v{S+r}, v11, v{S+r}, s[{72+2*r}:{73+2*r}]")
        k(f"v_cndmask_b32 v{S+12+r}, v11, v{S+12+r}, s[{72+2*r}:{73+2*r}]")
    k(f"v_max3_f32 v52, v{S}, v{S+1}, v{S+2}"); k(f"v_max_f32 v52, v52, v{S+3}")
    k(f"v_max3_f32 v53, v{S+8}, v{S+9}, v{S+10}")
    for i in (11, 13): k(f"v_max3_f32 v53, v53, v{S+i}, v{S+i+1}")
    k(f"v_max_f32 v53, v53, v{S+15}")
    ntch = k.label()
    k("s_cmp_lt_u32 s60, 62"); k(f"s_cbranch_scc1 {ntch}")
    k("s_lshl_b32 s46, s60, 17"); k("s_lshl_b32 s47, s71, 15"); k("s_add_u32 s46, s46, s47"); k(f"s_lshl_b32 s47, s{S_WAVE}, 13"); k("s_add_u32 s46, s46, s47")
    k(f"s_add_u32 s46, s46, {L.PARTS[0]}"); k("v_lshlrev_b32 v54, 7, v0"); k(f"buffer_load_dword v55, v54, {WL}, s46 offen sc1")
    k.place(ntch)
    k(f"s_mov_b32 s49, {L.PROG(0)}"); k("s_add_u32 s50, s60, 2"); k("s_sub_u32 s51, s60, 1"); k(f"s_cmp_ge_u32 s60, {L.DIRM}"); k("s_cselect_b32 s50, s51, s50")
    k("v_mov_b32 v54, 0"); k("s_waitcnt vmcnt(0)"); k("s_sub_u32 s51, s50, 2")
    wait_words(k, "s49", 54, 55, "s50", abort, ge=True, nap=1, far="s51")
    k(f"s_mul_i32 s52, s60, {L.MEMSZ}"); k(f"s_add_u32 s52, s52, {L.MEMN[0]}"); k("s_add_u32 s53, s52, 4096"); k(f"s_mov_b32 s70, {TIMEOUT}")
    MV = 192
    lmk = k.label("Lmk"); k.place(lmk)
    for ks in range(14): k(f"buffer_load_dwordx4 {vr(MV+4*ks,4)}, v5, {WL}, s{52 if ks < 8 else 53} offen offset:{(ks%8)*512} sc1")
    k("s_sub_u32 s70, s70, 1"); k(f"s_cbranch_scc1 {abort}")
    for ks in range(14):
        k(f"s_waitcnt vmcnt({13-ks})")
        c = lambda i: None if ks == 0 else S+4*i
        k(mf16(S+4, MV+4*ks, Q+4*ks, c(1)))
        k(f"v_max3_u32 v54, v{MV+4*ks}, v{MV+4*ks+1}, {'v54' if ks else f'v{MV}'}")
        k(mf16(S+16, MV+4*ks, Q+4*(14+ks), c(4)))
        k(f"v_max3_u32 v54, v{MV+4*ks+2}, v{MV+4*ks+3}, v54")
    k("v_cmp_eq_u32 vcc, -1, v54"); k(f"s_cbranch_vccnz {lmk}")
    gen.tl(k, 2, 54)
    VV = 120
    loads(k, [VV+4*i for i in range(8)], 1, 65, 47, " sc1")
    for i in range(32): k(f"v_mov_b64 {vr(OUT+2*i,2)}, 0")
    k(f"s_mul_i32 s46, s{S_WAVE}, {14*1024}"); k(f"s_add_u32 s46, s46, {L.WBK}")
    assert L.WBV == L.WBK + 28*1024
    loads(k, [Q+4*i for i in range(14)], 1, 46, 47, " sc1", WS)
    softmax_seg(k, S)
    W = 40
    k(f"ds_write_b128 v6, {vr(W,4)}"); k(f"ds_write_b128 v6, {vr(W+4,4)} offset:1024")
    k(f"ds_write_b64 v7, {vr(W+8,2)}"); k(f"ds_write_b64 v7, {vr(W+10,2)} offset:1024")
    k("s_waitcnt lgkmcnt(0)"); k("s_barrier")
    for i in range(8): k(f"ds_read_b128 {vr(P+4*i,4)}, v1 offset:{A4_PX+i*1024}")
    for q in range(2): k(f"ds_read_b128 {vr(P+32+4*q,4)}, v1 offset:{A4_PM+q*1024}")
    k("s_lshl_b32 s66, s60, 17"); k("s_lshl_b32 s46, s71, 13"); k("s_add_u32 s66, s66, s46"); k("s_lshl_b32 s46, s61, 9"); k("s_add_u32 s66, s66, s46")
    k(f"s_add_u32 s66, s66, {L.PARTS[0]}"); k("s_add_u32 s67, s66, 65536")
    k("s_waitcnt lgkmcnt(0)")
    gen.tl(k, 4, 56)
    skip = k.label()
    for pp in range(4):
        if pp == 3:
            k(f"s_cmp_ge_u32 s{S_WAVE}, 2"); k(f"s_cbranch_scc1 {skip}")
        for hh in range(4):
            for t in range(2):
                for q in range(2):
                    i = 2*pp + t; o = OUT + (i*2 + q)*4
                    k(mf16(o, U+(hh*8+i)*4, P + (hh*2+q)*4, o))
    k.place(skip)
    lvm = k.label("Lvm"); lvk = k.label("Lvk")
    k.place(lvm)
    k("s_waitcnt vmcnt(0)")
    k(f"v_max3_u32 v56, v{VV}, v{VV+1}, v{VV+2}")
    for i in range(3, 23, 2): k(f"v_max3_u32 v56, v56, v{VV+i}, v{VV+i+1}")
    k(f"v_max_u32 v56, v56, v{VV+23}"); k(f"v_max3_u32 v57, v{VV+24}, v{VV+25}, v{VV+26}")
    for i in (27, 29): k(f"v_max3_u32 v57, v57, v{VV+i}, v{VV+i+1}")
    k(f"v_max_u32 v57, v57, v{VV+31}")
    k(f"s_cmp_ge_u32 s{S_WAVE}, 2"); k("s_cselect_b32 s46, 0, -1"); k("v_and_b32 v57, s46, v57"); k("v_max_u32 v56, v56, v57")
    k("v_cmp_eq_u32 vcc, -1, v56"); k(f"s_cbranch_vccz {lvk}")
    k("s_sub_u32 s70, s70, 1"); k(f"s_cbranch_scc1 {abort}")
    loads(k, [VV+4*i for i in range(8)], 1, 65, 47, " sc1")
    k(f"s_branch {lvm}")
    k.place(lvk)
    gen.tl(k, 5, 56)
    for i in range(8):
        for q in range(2):
            o = OUT + (i*2 + q)*4
            k(mf16(o, VV+4*i, P + (8+q)*4, o))
    skip = k.label(); wide = k.label()
    k("s_cmp_ge_u32 s60, 62"); k("s_cselect_b32 s46, s94, 0"); k("s_cmp_eq_u32 s46, 0"); k(f"s_cbranch_scc1 {wide}")
    for fl in ("", " sc1"):
        if fl: k.place(wide)
        for pp in range(4):
            if pp == 3:
                k(f"s_cmp_ge_u32 s{S_WAVE}, 2"); k(f"s_cbranch_scc1 {skip}")
            pack_store(k, OUT, pp, 56 if pp & 1 else 128, fl)
        if not fl: k(f"s_branch {skip}")
    k.place(skip)
    gen.tl(k, 11, 56, 2)
    direct = k.label("Ldir")
    k("s_cmp_ge_u32 s60, 62"); k(f"s_cbranch_scc1 {direct}")
    k("s_waitcnt vmcnt(0)"); k("s_barrier")
    lz = k.label(); k(f"s_cmp_lg_u32 s{S_WAVE}, 0"); k(f"s_cbranch_scc1 {lz}")
    lane0_addr(k, 56, 57); k(f"s_add_u32 s46, s48, {L.PC(0)}"); signal(k, "s46", 56, 57)
    k.place(lz)
    k(f"s_add_u32 s49, s48, {L.PC(0)}"); k("v_mov_b32 v54, 0"); wait_words(k, "s49", 54, 55, 4, abort, nap=1)
    k.place(direct)
    k("s_lshl_b32 s66, s60, 17"); k("s_lshl_b32 s46, s71, 15"); k("s_add_u32 s66, s66, s46"); k("s_lshl_b32 s46, s61, 9"); k("s_add_u32 s66, s66, s46")
    k(f"s_add_u32 s66, s66, {L.PARTS[0]}")
    PT = 16; F = 192
    lpt = k.label("Lpt"); k.place(lpt)
    for src in range(4):
        k(f"s_add_u32 s67, s66, {src*8192}")
        for j in range(2): k(f"buffer_load_dwordx4 {vr(PT+(src*2+j)*4,4)}, v13, {WL}, s67 offen offset:{j*1024} sc1")
    k("s_sub_u32 s70, s70, 1"); k(f"s_cbranch_scc1 {abort}")
    for i in range(8):
        k(f"v_lshlrev_b32 v{F+2*i}, 16, v{XRS+i}"); k(f"v_and_b32 v{F+2*i+1}, 0xffff0000, v{XRS+i}")
    k("v_mov_b32 v56, 0"); k("v_mov_b32 v57, 0")
    for src in range(4):
        k(f"s_waitcnt vmcnt({6-2*src})")
        for j in range(2):
            b_ = PT + src*8 + 4*j
            k(f"v_max3_u32 v{56+j}, v{56+j}, v{b_}, v{b_+1}"); k(f"v_max3_u32 v{56+j}, v{56+j}, v{b_+2}, v{b_+3}")
        for i in range(8):
            k(f"v_lshlrev_b32 v54, 16, v{PT+src*8+i}"); k(f"v_and_b32 v55, 0xffff0000, v{PT+src*8+i}")
            k(f"v_pk_add_f32 {vr(F+2*i,2)}, {vr(F+2*i,2)}, v[54:55]")
    k("v_cndmask_b32 v57, 0, v57, s[82:83]"); k("v_max_u32 v56, v56, v57"); k("v_cmp_eq_u32 vcc, -1, v56"); k(f"s_cbranch_vccnz {lpt}")
    gen.tl(k, 12, 56, 2)
    for i in range(8): k(f"v_cvt_pk_bf16_f32 v{XRS+i}, v{F+2*i}, v{F+2*i+1}")
    k("v_mov_b32 v11, 0x7fffffff"); k("v_cndmask_b32 v12, v11, v8, s[82:83]")
    k(f"s_add_u32 s46, s62, {L.XRA[0]}")
    k(f"buffer_store_dwordx4 {vr(XRS,4)}, v8, {WL}, s46 offen sc1"); k(f"buffer_store_dwordx4 {vr(XRS+4,4)}, v12, {WL}, s46 offen offset:128 sc1")
    def rowsum(off, sq):
        for j in range(2):
            b = F + 8*j
            if sq:
                k(f"v_mul_f32 v{54+j}, v{b}, v{b}")
                for i in range(1, 8): k(f"v_fmac_f32 v{54+j}, v{b+i}, v{b+i}")
            else:
                k(f"v_add_f32 v{54+j}, v{b}, v{b+1}")
                for i in range(2, 8): k(f"v_add_f32 v{54+j}, v{54+j}, v{b+i}")
        k("v_cndmask_b32 v55, 0, v55, s[82:83]"); k("v_add_f32 v54, v54, v55")
        k("v_add_f32_dpp v54, v54, v54 row_ror:8 row_mask:0xf bank_mask:0xf")
        xreduce_g(k, 54, 55, "v_add_f32")
        k(f"ds_write_b32 v9, v54 offset:{A4_ST+off}"); k("s_waitcnt lgkmcnt(0)"); k("s_barrier")
        k(f"ds_read_b128 v[56:59], v10 offset:{A4_ST+off}"); k("s_waitcnt lgkmcnt(0)")
        k("v_add_f32 v56, v56, v57"); k("v_add_f32 v58, v58, v59"); k("v_add_f32 v54, v56, v58")
    rowsum(0, False)
    k(f"v_mul_f32 v54, {hx(f2u(1/448))}, v54")
    for i in range(16): k(f"v_sub_f32 v{F+i}, v{F+i}, v54")
    rowsum(256, True)
    k(f"v_mov_b32 v55, {hx(f2u(1e-5))}"); k(f"v_fmac_f32 v55, {hx(f2u(1/448))}, v54"); k("v_rsq_f32 v55, v55")
    for i in range(16): k(f"v_mul_f32 v{F+i}, v{F+i}, v55")
    for i in range(8): k(f"v_cvt_pk_bf16_f32 v{PT+i}, v{F+2*i}, v{F+2*i+1}")
    for i in range(8): k(f"v_min_u32 v{PT+i}, -2, v{PT+i}")
    k("s_lshl_b32 s46, s61, 9"); k(f"s_add_u32 s46, s46, {A4_XL}"); k("v_add_u32 v12, s46, v13")
    k(f"v_mov_b32 v54, {A4_DUM - 1024}"); k("v_cndmask_b32 v54, v54, v12, s[82:83]")
    k(f"ds_write_b128 v12, {vr(PT,4)}"); k(f"ds_write_b128 v54, {vr(PT+4,4)} offset:1024")
    k("s_lshr_b32 s46, s71, 1"); k("s_lshl_b32 s47, s60, 1"); k("s_add_u32 s46, s46, s47"); k("s_mul_i32 s46, s46, 14"); k("s_add_u32 s46, s46, s61")
    k("s_lshl_b32 s46, s46, 10"); k("s_and_b32 s47, s71, 1"); k("s_lshl_b32 s47, s47, 7"); k("s_add_u32 s46, s46, s47"); k(f"s_add_u32 s46, s46, {L.XTB[0]}")
    k("v_cndmask_b32 v12, v11, v14, s[82:83]")
    k(f"buffer_store_dwordx4 {vr(PT,4)}, v14, {WL}, s46 offen sc1"); k(f"buffer_store_dwordx4 {vr(PT+4,4)}, v12, {WL}, s46 offen offset:2048 sc1")
    k("s_waitcnt lgkmcnt(0)"); k("s_barrier")
    X = 192
    k("v_and_b32 v12, 7, v0"); k("v_lshlrev_b32 v12, 4, v12"); k("v_lshl_add_u32 v12, v3, 7, v12")
    for ks in range(14): k(f"ds_read_b128 {vr(X+4*ks,4)}, v12 offset:{A4_XL+ks*512}")
    lv = k.label("LV"); le = k.label("LE")
    k("s_lshl_b32 s49, s60, 11")
    k(f"s_cmp_ge_u32 s{S_WAVE}, 2"); k(f"s_cbranch_scc1 {lv}")
    k("v_lshrrev_b32 v12, 1, v3"); k("v_lshlrev_b32 v12, 10, v12"); k("v_and_b32 v54, 1, v3"); k("v_lshl_add_u32 v12, v54, 9, v12")
    k("v_lshl_add_u32 v12, v2, 4, v12"); k("v_cmp_gt_u32 vcc, 8, v2"); k("v_cndmask_b32 v12, v11, v12, vcc")
    k("s_lshl_b32 s46, s71, 7"); k(f"s_lshl_b32 s47, s{S_WAVE}, 3"); k("s_add_u32 s46, s46, s47"); k("s_add_u32 s46, s46, s49"); k(f"s_add_u32 s46, s46, {L.KI[0]}")
    k("s_waitcnt lgkmcnt(0)")
    for ks in range(14): k(mf16(16, Q+4*ks, X+4*ks, None if ks == 0 else 16))
    k("v_cvt_pk_bf16_f32 v24, v16, v17"); k("v_cvt_pk_bf16_f32 v25, v18, v19")
    k(f"s_branch {le}")
    k.place(lv)
    k("v_lshlrev_b32 v12, 9, v3"); k("v_lshl_add_u32 v12, v2, 4, v12"); k("v_cndmask_b32 v12, v11, v12, s[80:81]")
    k("s_lshr_b32 s46, s71, 1"); k("s_lshl_b32 s46, s46, 10"); k("s_and_b32 s47, s71, 1"); k("s_lshl_b32 s47, s47, 3"); k("s_add_u32 s46, s46, s47")
    k(f"s_and_b32 s47, s{S_WAVE}, 1"); k("s_lshl_b32 s47, s47, 8"); k("s_add_u32 s46, s46, s47"); k("s_add_u32 s46, s46, s49"); k(f"s_add_u32 s46, s46, {L.VI[0]}")
    k(f"s_cmp_eq_u32 s{S_WAVE}, 3"); k("s_cselect_b32 s47, 12, 99"); k("v_cmp_eq_u32 vcc, s47, v2"); k("v_mov_b32 v54, 0x3f803f80")
    k("s_waitcnt lgkmcnt(0)")
    for ks in range(14): k(mf16(16, X+4*ks, Q+4*ks, None if ks == 0 else 16))
    k("v_cvt_pk_bf16_f32 v24, v16, v17"); k("v_cvt_pk_bf16_f32 v25, v18, v19")
    k("v_cndmask_b32 v24, v24, v54, vcc"); k("v_cndmask_b32 v25, v25, v54, vcc")
    k.place(le)
    k("v_min_u32 v24, -2, v24"); k("v_min_u32 v25, -2, v25")
    k(f"buffer_store_dwordx2 v[24:25], v12, {WL}, s46 offen sc1")
    k("s_waitcnt vmcnt(0)"); k("s_barrier")
    lz = k.label(); k(f"s_cmp_lg_u32 s{S_WAVE}, 0"); k(f"s_cbranch_scc1 {lz}")
    k(f"s_add_u32 s47, s48, {L.SC(0)}"); lane0_addr(k, 4, 5); signal(k, "s47", 4, 5)
    k.place(lz)

def pack_store(k, OUT, pp, T, fl):
    for q in range(2):
        for t in range(2):
            a = OUT + ((2*pp+t)*2 + q)*4
            k(f"v_cvt_pk_bf16_f32 v{T+4*q+2*t}, v{a}, v{a+1}"); k(f"v_cvt_pk_bf16_f32 v{T+4*q+2*t+1}, v{a+2}, v{a+3}")
        for r in range(4): k(f"v_min_u32 v{T+4*q+r}, -2, v{T+4*q+r}")
        k(f"buffer_store_dwordx4 {vr(T+4*q,4)}, v15, {WL}, s{66+q} offen offset:{pp*512}{fl}")

N7 = 76; ROW6 = 14*N7; LATE0 = 1792; N6 = 64; N4 = 16; ROW2 = LATE0 + 8*N4; N2 = (2048 - ROW2)//4
BQL = 0; BOL = 16384; BST = (BOL + 16*912 + 512 + 255)//256*256; BMX = BST + 1024; BFL = BMX + 4096; BRED = BFL + 256
B_LDS = BRED + 4*7*4096

def body_attnB(k, QT, abort, gemm_label=None):
    big = QT > 4; R = 2*QT; ROW0 = {7: 0, 6: ROW6, 4: LATE0, 2: ROW2}[QT]
    XB = 16
    k("v_lshlrev_b32 v1, 4, v0"); k("v_and_b32 v2, 15, v0"); k("v_lshrrev_b32 v3, 4, v0")
    qreg = lambda o: 256 + 4*o if o < 64 else 120 + 4*(o-64)
    k(f"s_mul_i32 s46, s{S_WAVE}, {7*14*1024}"); k(f"s_add_u32 s46, s46, {L.WBQ}")
    loads(k, [qreg(o) for o in range(98)], 1, 46, 46, " sc1", WS)
    k(f"s_mul_i32 s61, s60, {R}")
    if ROW0: k(f"s_add_u32 s61, s61, {ROW0}")
    k(f"v_min_u32 v4, {R-1}, v2"); k("v_add_u32 v4, s61, v4")
    if QT == 6: k(f"v_min_u32 v4, {LATE0-1}, v4")
    def tiled(vd, vt):
        k(f"v_lshrrev_b32 v{vd}, 4, v{vt}"); k(f"v_mul_u32_u24 v{vd}, {14*1024}, v{vd}"); k(f"v_and_b32 v6, 15, v{vt}")
        k(f"v_lshl_add_u32 v{vd}, v6, 4, v{vd}"); k(f"v_lshl_add_u32 v{vd}, v3, 8, v{vd}")
    tiled(5, 4)
    k("v_mov_b64 v[8:9], 0"); k("v_mov_b64 v[10:11], 0"); k(f"s_lshl_b32 s46, s{S_WAVE}, 12"); k("v_add_u32 v7, s46, v1")
    for i in range(4): k(f"ds_write_b128 v7, v[8:11] offset:{BQL+i*1024}")
    k(f"v_mov_b32 v7, {BFL}"); k("ds_write_b32 v7, v8")
    k("v_lshrrev_b32 v12, 5, v4"); k("v_lshlrev_b32 v12, 7, v12"); k(f"s_mov_b32 s49, {L.SC(0)}")
    k("s_lshr_b32 s50, s61, 5"); k("s_min_u32 s50, s50, 61"); k("s_waitcnt vmcnt(0)")
    if big: wait_words(k, "s49", 12, 13, 4, abort, nap=1, far="s50")
    else:
        k(f"s_mov_b32 s49, {L.PROG(0)}"); k("v_mov_b32 v12, 0")
        wait_words(k, "s49", 12, 13, "s50", abort, ge=True, nap=24)
        k("s_mov_b32 s96, 0"); k("s_lshr_b32 s98, s61, 5")
        if QT == 2: k("s_sub_u32 s98, s98, 1")
        gate(k, L.SC(0), 1, 4, "s98", 96, "v_lshlrev_b32 v8, 3, v1", 8, abort, nap=1, napfar=8)
    k(f"s_mov_b32 s48, {L.XTB[0]}"); k(f"s_mov_b32 s70, {TIMEOUT}")
    k("s_waitcnt lgkmcnt(0)"); k("s_barrier")
    k(f"s_mul_i32 s63, s{S_WAVE}, 112")
    k("v_lshlrev_b32 v6, 2, v3"); k("v_add_u32 v6, s63, v6"); k("v_lshlrev_b32 v7, 10, v2")
    for i in range(7):
        k(f"v_add_u32 v8, {16*i}, v6"); k("v_mul_u32_u24 v9, 2341, v8"); k("v_lshrrev_b32 v9, 16, v9")
        k("v_lshl_add_u32 v8, v8, 1, v7"); k(f"v_lshl_add_u32 v{100+i}, v9, 3, v8")
    k(f"s_mov_b32 s64, {hx(f2u(L.LOG2E/28**0.5))}")
    A0 = 72
    lx = k.label("Lx"); k.place(lx)
    if QT == 2:
        assert ROW2 == 32*L.DIRX
        l1 = k.label("Lx"); k.place(l1)
        k(f"s_add_u32 s47, s48, {13*1024}"); k(f"buffer_load_dword v8, v5, {WL}, s47 offen sc1")
        k("s_sub_u32 s70, s70, 1"); k(f"s_cbranch_scc1 {abort}")
        k("s_waitcnt vmcnt(0)"); k("v_cmp_eq_u32 vcc, -1, v8"); k(f"s_cbranch_vccnz {l1}")
    loads(k, [XB+4*ks for ks in range(14)], 5, 48, 47, " sc1")
    for ks in range(14):
        k(f"s_waitcnt vmcnt({13-ks})")
        for i in range(7):
            k(mf16(A0+4*i, qreg(i*14+ks), XB+4*ks, None if ks == 0 else A0+4*i))
            if QT == 2 and i < 2: k(f"v_max3_u32 v8, v{XB+4*ks+2*i}, v{XB+4*ks+2*i+1}, {'v8' if ks or i else f'v{XB}'}")
    if QT == 2:
        k("v_cmp_eq_u32 vcc, -1, v8"); k(f"s_cbranch_vccnz {lx}")
    QO = 16; KV = [72, 88] if big else [208, 224, 240]; SS = [104, 120]; PP = 136; O = 144; MX = SS[1]
    def kvl(b):
        return [f"buffer_load_dwordx4 {vr(KV[b],4)}, v1, {WL}, s67 offen sc1", f"buffer_load_dwordx4 {vr(KV[b]+4,4)}, v1, {WL}, s67 offen offset:1024 sc1",
                f"buffer_load_dwordx4 {vr(KV[b]+8,4)}, v1, {WL}, s68 offen sc1", f"buffer_load_dwordx4 {vr(KV[b]+12,4)}, v1, {WL}, s68 offen offset:1024 sc1",
                "s_add_u32 s67, s67, 8192", "s_add_u32 s68, s68, 8192"]
    def kvload(b):
        for x in kvl(b): k(x)
    k(f"s_lshl_b32 s65, s{S_WAVE}, 11"); k(f"s_add_u32 s66, s65, {L.VI[0]}"); k(f"s_add_u32 s65, s65, {L.KI[0]}")
    k("s_mov_b32 s67, s65"); k("s_mov_b32 s68, s66"); k("s_mov_b32 s78, 0")
    if big: k("s_mov_b32 s96, 0"); k(f"s_mov_b32 s98, s{S_WAVE}")
    def sgate(): gate(k, L.SC(0), 1, 4, "s98", 96, "v_lshlrev_b32 v8, 3, v1", 8, abort, nap=(2 if big else 1))
    def kv_direct(b, issued=False, kv=None):
        kv = kv or KV
        lp_ = k.label("Lkd"); chk = k.label("Lkc"); k(f"s_mov_b32 s70, {TIMEOUT}")
        if issued: k(f"s_branch {chk}")
        k.place(lp_)
        for j, (sr_, of) in enumerate(((67, 0), (67, 1024), (68, 0), (68, 1024))):
            k(f"buffer_load_dwordx4 {vr(kv[b]+4*j,4)}, v1, {WL}, s{sr_} offen offset:{of} sc1")
        k("s_sub_u32 s70, s70, 1"); k(f"s_cbranch_scc1 {abort}")
        k.place(chk)
        k("s_waitcnt vmcnt(0)")
        k(f"v_max3_u32 v8, v{kv[b]}, v{kv[b]+1}, v{kv[b]+2}")
        for i in range(3, 15, 2): k(f"v_max3_u32 v8, v8, v{kv[b]+i}, v{kv[b]+i+1}")
        k(f"v_max_u32 v8, v8, v{kv[b]+15}"); k("v_cmp_eq_u32 vcc, -1, v8"); k(f"s_cbranch_vccnz {lp_}")
    if not big:
        k(f"s_add_u32 s98, s{S_WAVE}, 48")
        kvload(0); kvload(1); kvload(2)
    for i in range(7):
        a = A0 + 4*i
        for r in range(4): k(f"v_mul_f32 v{a+r}, s64, v{a+r}")
        k(f"v_cvt_pk_bf16_f32 v{a}, v{a}, v{a+1}"); k(f"v_cvt_pk_bf16_f32 v{a+1}, v{a+2}, v{a+3}")
        k(f"ds_write_b64 v{100+i}, {vr(a,2)} offset:{BQL}")
    oreg = lambda o: 256 + 4*o if o < 64 else (160 + 4*(o-64) if o < 88 else 256 + 4*(o-88))
    def wl(o): return [f"s_add_u32 s46, s62, {(o//4)*4096}"]*(o % 4 == 0) + [f"buffer_load_dwordx4 {vr(oreg(o),4)}, v1, {WS}, s46 offen offset:{(o%4)*1024} sc1"]
    if big:
        k(f"s_lshl_b32 s69, s{S_WAVE}, 2"); k(f"s_cmp_eq_u32 s{S_WAVE}, 3"); k("s_cselect_b32 s69, 11, s69")
        k(f"s_mul_i32 s62, s69, {28*1024}"); k(f"s_add_u32 s62, s62, {L.WBO}")
        for o in range(64):
            for x in wl(o): k(x)
    k("s_waitcnt lgkmcnt(0)"); k("s_barrier")
    k("v_bfe_u32 v6, v0, 4, 1"); k("v_lshlrev_b32 v6, 10, v6"); k("v_lshl_add_u32 v6, v2, 6, v6"); k("v_lshrrev_b32 v7, 5, v0"); k("v_lshl_add_u32 v6, v7, 4, v6")
    def qread():
        for q in range(QT):
            for kk in range(2): k(f"ds_read_b128 {vr(QO+8*q+4*kk,4)}, v6 offset:{BQL+q*2048+kk*32}")
    qread()
    for i in range(8*QT): k(f"v_mov_b64 {vr(O+2*i,2)}, 0")
    gen.tl(k, 4, 12)
    if big:
        def sgate_wg():
            ok = k.label(); oth = k.label()
            k("s_cmp_lt_u32 s98, s96"); k(f"s_cbranch_scc1 {ok}")
            k(f"v_mov_b32 v10, {BFL + 64}")
            k(f"s_cmp_lg_u32 s{S_WAVE}, 0"); k(f"s_cbranch_scc1 {oth}")
            gate(k, L.SC(0), 1, 4, "s98", 96, "v_lshlrev_b32 v8, 3, v1", 8, abort, nap=1, napfar=16)
            k("v_mov_b32 v8, s96"); k("ds_write_b32 v10, v8"); k("s_waitcnt lgkmcnt(0)")
            k.place(oth)
            k("s_barrier")
            k("ds_read_b32 v8, v10"); k("s_waitcnt lgkmcnt(0)"); k("v_readfirstlane_b32 s96, v8")
            k("s_barrier")
            k.place(ok)
        def follow(nq, qo, oo, kv, ss, pp, stride, limit, touch, sgate=sgate, lastdirect=False):
            def kvl2(b_):
                for j, (sr_, of) in enumerate(((67, 0), (67, 1024), (68, 0), (68, 1024))):
                    k(f"buffer_load_dwordx4 {vr(kv[b_]+4*j,4)}, v1, {WL}, s{sr_} offen offset:{of} sc1")
                k(f"s_add_u32 s67, s67, {2048*stride}"); k(f"s_add_u32 s68, s68, {2048*stride}")
            sgate(); kvl2(0); k(f"s_add_u32 s98, s98, {stride}")
            k("s_waitcnt lgkmcnt(0)")
            loop = k.label("LK"); lend = k.label("LKe")
            warm = [k.label("LKw"), k.label("LKw")]; wdec = [k.label("LKd"), k.label("LKd")]
            def decide():
                k("s_cmp_lt_u32 s98, s96"); k("s_cselect_b32 s79, 1, 0"); k(f"s_cmp_lt_u32 s98, {limit}"); k("s_cselect_b32 s79, s79, 0")
                k("s_cmp_eq_u32 s79, 0")
            def step(b, q, nxt):
                par = (b*nq) & 1
                s_ = ss[(q+par) & 1]; sn = ss[(q+par+1) & 1]
                ex = lambda a_, n: [f"v_exp_f32 v{s_+r}, v{s_+r}" for r in range(a_, a_+n)]
                cv = lambda h: [f"v_cvt_pk_bf16_f32 v{pp+4*h+j}, v{s_+8*h+2*j}, v{s_+8*h+2*j+1}" for j in range(4)]
                if nxt: k(mf32(sn, kv[nxt[0]], qo+8*nxt[1], None))
                for x in ex(0, 4): k(x)
                if q: k(mf32(oo+16*(q-1), kv[b]+12, pp+4, oo+16*(q-1)))
                for x in ex(4, 4): k(x)
                if nxt: k(mf32(sn, kv[nxt[0]]+4, qo+8*nxt[1]+4, sn))
                for x in cv(0) + ex(8, 4): k(x)
                k(mf32(oo+16*q, kv[b]+8, pp, oo+16*q))
                for x in ex(12, 4) + cv(1): k(x)
                if q == nq - 1: k(mf32(oo+16*q, kv[b]+12, pp+4, oo+16*q))
            k.place(loop)
            for b in range(2):
                nopf = k.label(); go = k.label(); havek = k.label(); cold = k.label()
                s0 = ss[(b*nq) & 1]
                decide(); k(f"s_cbranch_scc1 {nopf}")
                kvl2(1-b); k("s_waitcnt vmcnt(4)"); k(f"s_branch {go}")
                k.place(wdec[b])
                decide(); k(f"s_cbranch_scc1 {warm[b]}")
                kvl2(1-b); k(f"s_branch {warm[b]}")
                k.place(nopf); k("s_waitcnt vmcnt(0)")
                k.place(go)
                k(mf32(s0, kv[b], qo, None)); k(mf32(s0, kv[b]+4, qo+4, s0))
                k.place(warm[b])
                for q in range(nq-1): step(b, q, (b, q+1))
                k("s_cmp_eq_u32 s79, 0"); k(f"s_cbranch_scc1 {cold}")
                k("s_waitcnt vmcnt(0)")
                step(b, nq-1, (1-b, 0))
                k(f"s_add_u32 s98, s98, {stride}"); k(f"s_branch {wdec[1-b]}")
                k.place(cold)
                step(b, nq-1, None)
                if b == 1:
                    k(f"s_cmp_ge_u32 s98, {limit}"); k(f"s_cbranch_scc1 {lend}")
                if b == 0 and touch:
                    nt = k.label()
                    k("s_lshr_b32 s46, s98, 2"); k("s_cmp_lg_u32 s46, 13"); k(f"s_cbranch_scc1 {nt}")
                    k("v_lshlrev_b32 v8, 3, v1")
                    code_touch(k, lend, 8192, True, 8, 9)
                    code_touch(k, gemm_label, 8192, False, 8, 9)
                    k.place(nt)
                if b == 0 and lastdirect:
                    nd = k.label(); oth = k.label()
                    k("s_cmp_lt_u32 s98, 63"); k(f"s_cbranch_scc1 {nd}")
                    k(f"s_cmp_lg_u32 s{S_WAVE}, 0"); k(f"s_cbranch_scc1 {oth}")
                    k("v_and_b32 v8, 3, v0"); k("v_bfe_u32 v9, v0, 2, 1"); k("v_lshlrev_b32 v10, 7, v8"); k("v_lshl_add_u32 v10, v9, 3, v10")
                    k("v_lshrrev_b32 v12, 1, v8"); k("v_lshlrev_b32 v12, 10, v12"); k("v_and_b32 v8, 1, v8"); k("v_lshl_add_u32 v12, v8, 3, v12"); k("v_lshl_add_u32 v12, v9, 8, v12")
                    k(f"v_add_u32 v12, {L.VI[0] - L.KI[0]}, v12"); k("v_bfe_u32 v9, v0, 3, 1"); k("v_cmp_eq_u32 vcc, 1, v9"); k("v_cndmask_b32 v10, v10, v12, vcc")
                    w1 = k.label(); w2 = k.label(); k(f"s_mov_b32 s70, {TIMEOUT}")
                    k.place(w1)
                    k("s_mov_b64 exec, 0xffff"); k(f"buffer_load_dword v8, v10, {WL}, s67 offen sc1"); k("s_mov_b64 exec, -1")
                    k("s_sub_u32 s70, s70, 1"); k(f"s_cbranch_scc1 {abort}")
                    k("s_waitcnt vmcnt(0)"); k("v_cmp_eq_u32 vcc, -1, v8"); k("s_and_b32 s46, vcc_lo, 0xffff"); k(f"s_cbranch_scc0 {w2}")
                    k("s_sleep 1"); k(f"s_branch {w1}")
                    k.place(w2)
                    k.place(oth); k("s_barrier")
                    kv_direct(1, kv=kv); k(f"s_branch {havek}")
                    k.place(nd)
                sgate(); kvl2(1-b)
                k.place(havek)
                k(f"s_add_u32 s98, s98, {stride}")
            k(f"s_branch {loop}")
            k.place(lend)
        follow(QT, QO, O, KV, SS, PP, 4, 56 if QT == 7 else 64, QT != 7)
    else:
        k("s_waitcnt vmcnt(8) lgkmcnt(0)")
        k(mf32(SS[0], KV[0], QO, None)); k(mf32(SS[0], KV[0]+4, QO+4, SS[0]))
        nstep = 16*QT
        for i in range(nstep):
            t, q = divmod(i, QT); s_ = SS[i & 1]; sn = SS[(i+1) & 1]; tn, qn = divmod(i+1, QT); last = i + 1 == nstep
            ex = lambda a_, n: [f"v_exp_f32 v{s_+r}, v{s_+r}" for r in range(a_, a_+n)]
            cv = lambda h: [f"v_cvt_pk_bf16_f32 v{PP+4*h+j}, v{s_+8*h+2*j}, v{s_+8*h+2*j+1}" for j in range(4)]
            if not last:
                if qn == 0:
                    if tn <= 14: k("s_waitcnt vmcnt(4)")
                    else: kv_direct(15 % 3, True)
                k(mf32(sn, KV[tn % 3], QO+8*qn, None))
            for x in ex(0, 4): k(x)
            if i:
                tp, qp = divmod(i-1, QT)
                k(mf32(O+16*qp, KV[tp % 3]+12, PP+4, O+16*qp))
            if q == 0 and 1 <= t <= 13:
                if t == 13:
                    for x in kvl(15 % 3)[:4]: k(x)
                else:
                    if t >= 10:
                        sgate(); k("s_add_u32 s98, s98, 4")
                    kvload((t+2) % 3)
            for x in ex(4, 4): k(x)
            if not last: k(mf32(sn, KV[tn % 3]+4, QO+8*qn+4, sn))
            for x in cv(0) + ex(8, 4): k(x)
            k(mf32(O+16*q, KV[t % 3]+8, PP, O+16*q))
            for x in ex(12, 4) + cv(1): k(x)
        k(mf32(O+16*(QT-1), KV[15 % 3]+12, PP+4, O+16*(QT-1)))
    if QT != 7: gen.tl(k, 12, 12, 2)
    redo = k.label("LBr"); slow = k.label("LBs"); fin = k.label("LBf")
    k.place(redo)
    k(f"s_mul_i32 s46, s{S_WAVE}, {QT*4096}"); k(f"s_add_u32 s46, s46, {BRED}"); k("v_add_u32 v7, s46, v1")
    for q in range(QT):
        for j in range(4): k(f"ds_write_b128 v7, {vr(O+16*q+4*j,4)} offset:{q*4096+j*1024}")
    OUT = 96; XRS = 80
    if big:
        k("v_add_u32 v9, s61, v2")
        if QT == 6:
            k(f"v_mov_b32 v8, 4096"); k(f"v_cmp_gt_u32 vcc, {LATE0}, v9"); k("v_cndmask_b32 v9, v8, v9, vcc")
            k(f"s_lshl_b32 s46, s60, 2"); k(f"s_add_u32 s46, s46, {LATE0 - 12}"); k("v_add_u32 v8, s46, v2")
        else: k("v_mov_b32 v8, 4096")
        k(f"v_cmp_gt_u32 vcc, {R}, v2"); k("v_cndmask_b32 v4, v8, v9, vcc"); k("v_mov_b32 v8, 2048"); k("v_cmp_lt_u32 s[72:73], v4, v8"); k("v_min_u32 v4, 2047, v4")
        k("v_mul_u32_u24 v14, 896, v4"); k("v_lshl_add_u32 v14, v3, 4, v14"); k("s_lshl_b32 s46, s69, 6"); k("v_add_u32 v14, s46, v14")
    k("s_waitcnt lgkmcnt(0)")
    if big:
        for o in range(64, 88):
            for x in wl(o): k(x)
    k("s_barrier")
    def gather(T, dst):
        k("s_lshl_b32 s47, s46, 12"); k(f"s_add_u32 s47, s47, {BRED}"); k("v_add_u32 v7, s47, v1")
        for w in range(4):
            if w: k(f"v_add_u32 v7, {QT*4096}, v7")
            for j in range(4): k(f"ds_read_b128 {vr(T+16*w+4*j,4)}, v7 offset:{j*1024}")
            if w == 2: k("s_waitcnt lgkmcnt(4)")
        for i in range(8): k(f"v_pk_add_f32 {vr(T+2*i,2)}, {vr(T+2*i,2)}, {vr(T+16+2*i,2)}")
        k("s_waitcnt lgkmcnt(0)")
        for i in range(8): k(f"v_pk_add_f32 {vr(T+32+2*i,2)}, {vr(T+32+2*i,2)}, {vr(T+48+2*i,2)}")
        for i in range(8): k(f"v_pk_add_f32 {vr(dst+2*i,2)}, {vr(T+2*i,2)}, {vr(T+32+2*i,2)}")
    def finish(T):
        k(f"v_mov_b32 v12, v{T+12}"); k(f"v_mov_b32 v13, v{T+12}")
        k("v_permlane32_swap_b32 v12, v13")
        k(f"v_cmp_nle_f32 vcc, {hx(f2u(2.0**-60))}, v13"); k(f"v_mov_b32 v12, {hx(f2u(2.0**60))}")
        k("v_cmp_nle_f32 s[76:77], v13, v12"); k("s_or_b64 vcc, vcc, s[76:77]")
        ok = k.label()
        k(f"s_cbranch_vccz {ok}")
        k(f"v_mov_b32 v12, {BFL}"); k("v_mov_b32 v15, 1"); k("ds_write_b32 v12, v15")
        k.place(ok)
        k("v_rcp_f32 v13, v13")
        k("s_mul_i32 s47, s46, 1824"); k(f"s_add_u32 s47, s47, {BOL}"); k("v_add_u32 v10, s47, v5")
        for j in range(4):
            for r in range(4): k(f"v_mul_f32 v{T+4*j+r}, v{T+4*j+r}, v13")
            k(f"v_cvt_pk_bf16_f32 v{T+4*j}, v{T+4*j}, v{T+4*j+1}"); k(f"v_cvt_pk_bf16_f32 v{T+4*j+1}, v{T+4*j+2}, v{T+4*j+3}")
            if j == 3:
                k("v_add_u32 v10, 48, v10"); k("v_cndmask_b32 v10, v10, v11, s[74:75]")
                k(f"ds_write_b64 v10, {vr(T+12,2)}")
            else: k(f"ds_write_b64 v10, {vr(T+4*j,2)} offset:{16*j}")
    k("v_lshrrev_b32 v8, 5, v0")
    k("v_bfe_u32 v5, v0, 4, 1"); k("v_mul_u32_u24 v5, 912, v5"); k("v_mul_u32_u24 v10, 56, v2"); k("v_add_u32 v5, v5, v10"); k("v_lshl_add_u32 v5, v8, 3, v5")
    k(f"v_mov_b32 v11, {BOL + 16*912}"); k("v_cmp_eq_u32 s[74:75], 1, v8")
    if QT == 6:
        k(f"s_mov_b32 s48, {L.XRA[0]}")
        for pp in range(4): k(f"buffer_load_dwordx4 {vr(XRS+4*pp,4)}, v14, {WL}, s48 offen offset:{pp*64} sc1")
        skip = k.label()
        k(f"s_mov_b32 s46, s{S_WAVE}"); gather(16, 16); finish(16)
        k(f"s_add_u32 s46, s{S_WAVE}, 4"); k(f"s_cmp_ge_u32 s46, {QT}"); k(f"s_cbranch_scc1 {skip}")
        gather(16, 16); finish(16)
        k.place(skip)
    elif big:
        k(f"s_add_u32 s80, s{S_WAVE}, 4"); k(f"s_cmp_lt_u32 s80, {QT}"); k(f"s_cselect_b32 s80, s80, s{S_WAVE}")
        for j, sq in enumerate((f"s{S_WAVE}", "s80")):
            k(f"s_mov_b32 s46, {sq}"); gather(64, 32+16*j)
            k("s_lshl_b32 s47, s46, 11"); k("v_add_u32 v7, s47, v6")
            for kk in range(2): k(f"ds_read_b128 {vr(16+8*j+4*kk,4)}, v7 offset:{BQL+kk*32}")
        nop2 = k.label()
        k("s_cmp_eq_u32 s78, 1"); k(f"s_cbranch_scc1 {nop2}")
        k("s_mov_b32 s98, 56"); k(f"s_mov_b32 s67, {L.KI[0] + 56*2048}"); k(f"s_mov_b32 s68, {L.VI[0] + 56*2048}")
        k("v_lshlrev_b32 v8, 3, v1")
        for j in range(3):
            k(f"s_add_u32 s46, s62, {88*1024 + j*8192}"); k(f"buffer_load_dword v9, v8, {WS}, s46 offen")
        slab_address(k, 100)
        k(f"buffer_load_dword v9, v8, {WS}, s57 offen"); k("s_add_u32 s57, s57, 6144"); k(f"buffer_load_dword v9, v8, {WS}, s57 offen")
        code_touch(k, nop2, 8192, True, 8, 9); code_touch(k, gemm_label, 8192, False, 8, 9)
        k("s_mov_b32 s96, 56")
        follow(2, 16, 32, [64, 80], [96, 112], 128, 1, 64, False, sgate_wg, LASTD)
        k.place(nop2)
        gen.tl(k, 12, 12, 2)
        k(f"s_mov_b32 s48, {L.XRA[0]}")
        for pp in range(4): k(f"buffer_load_dwordx4 {vr(XRS+4*pp,4)}, v14, {WL}, s48 offen offset:{pp*64} sc1")
        for j, sq in enumerate((f"s{S_WAVE}", "s80")):
            k(f"s_mov_b32 s46, {sq}"); finish(32+16*j)
    else:
        skip = k.label()
        k(f"s_mov_b32 s46, s{S_WAVE}")
        if QT < 4:
            k(f"s_cmp_ge_u32 s46, {QT}"); k(f"s_cbranch_scc1 {skip}")
        gather(16, 16); finish(16)
        k.place(skip)
    k("s_waitcnt lgkmcnt(0)"); k("s_barrier")
    k(f"v_mov_b32 v12, {BFL}"); k("ds_read_b32 v12, v12"); k("s_waitcnt lgkmcnt(0)")
    k("v_readfirstlane_b32 s46, v12")
    k("s_andn2_b32 s46, s46, s78")
    k("s_cmp_eq_u32 s46, 1"); k(f"s_cbranch_scc1 {slow}")
    if not big:
        k(f"s_mul_i32 s46, s{S_WAVE}, 912"); k(f"s_add_u32 s46, s46, {BOL}"); k("v_add_u32 v7, s46, v1")
        for j in range(R//4): k(f"ds_read_b128 {vr(16+4*j,4)}, v7 offset:{j*4*912}")
        k(f"s_sub_u32 s46, s61, {LATE0}"); k(f"s_add_u32 s47, s46, s{S_WAVE}"); k("s_mul_i32 s47, s47, 896"); k(f"s_add_u32 s47, s47, {L.OLATE[0]}")
        k("v_mov_b32 v8, 0x7fffffff"); k("v_cmp_gt_u32 vcc, 56, v0"); k("v_cndmask_b32 v8, v8, v1, vcc")
        k("s_waitcnt lgkmcnt(0)")
        for j in range(R//4): k(f"buffer_store_dwordx4 {vr(16+4*j,4)}, v8, {WL}, s47 offen offset:{j*3584} sc1")
        k("s_waitcnt vmcnt(0)"); k("s_barrier")
        k(f"s_cmp_lg_u32 s{S_WAVE}, 0"); k(f"s_cbranch_scc1 {fin}")
        k("s_lshl_b32 s46, s46, 5"); k(f"s_add_u32 s46, s46, {L.OF(0)}"); k("v_lshlrev_b32 v12, 7, v0"); k("v_mov_b32 v13, 1")
        k(f"s_mov_b64 exec, {(1 << (R//4)) - 1}"); k(f"buffer_store_dword v13, v12, {WL}, s46 offen sc1"); k("s_mov_b64 exec, -1")
        k(f"s_branch {fin}")
    else:
        k(f"s_add_u32 s8, s{P_WS}, {L.XR1}"); k(f"s_addc_u32 s9, s{P_WS+1}, 0"); k(f"s_cmp_eq_u32 s{S_LAYER}, 0")
        k(f"s_cselect_b32 s8, s8, s{P_OUT}"); k(f"s_cselect_b32 s9, s9, s{P_OUT+1}"); k("s_and_b32 s9, s9, 0xffff")
        k(f"s_mov_b32 s10, {L.XSZ}"); k("s_mov_b32 s11, 0x20000")
        k("v_mul_u32_u24 v7, 912, v2"); k("v_lshl_add_u32 v7, v3, 4, v7")
        for ks in range(14): k(f"ds_read_b128 {vr(XB+4*ks,4)}, v7 offset:{BOL+ks*64}")
        if QT == 6:
            k("s_lshl_b32 s49, s60, 7"); k(f"s_add_u32 s49, s49, {L.OF(0)}"); k("v_mov_b32 v12, 0")
            wait_words(k, "s49", 12, 13, 1, abort, nap=1, wg=False)
            k(f"v_subrev_u32 v12, {LATE0}, v4"); k("v_mul_u32_u24 v12, 896, v12"); k("v_lshl_add_u32 v12, v3, 4, v12"); k(f"s_mov_b32 s49, {L.OLATE[0]}")
            k("s_waitcnt lgkmcnt(0)")
            k("s_mov_b32 exec_lo, 0xf000f000"); k("s_mov_b32 exec_hi, 0xf000f000")
            for ks in range(14): k(f"buffer_load_dwordx4 {vr(XB+4*ks,4)}, v12, {WL}, s49 offen offset:{ks*64} sc1")
            k("s_mov_b64 exec, -1")
        k("s_waitcnt vmcnt(0) lgkmcnt(0)")
        gen.tl(k, 11, 12, 2)
        short = k.label()
        for i in range(8):
            if i == 6:
                k(f"s_cmp_ge_u32 s{S_WAVE}, 2"); k(f"s_cbranch_scc1 {short}")
                k("s_waitcnt vmcnt(0)")
            a = OUT + 4*i
            for ks in range(14): k(mf16(a, oreg(i*14+ks), XB+4*ks, None if ks == 0 else a))
            if i == 1:
                for o in range(88, 112):
                    for x in wl(o): k(x)
        k.place(short)
        slab_request(k, 100)
        k("v_mov_b32 v9, 0x7fffffff"); k("v_cndmask_b32 v8, v9, v14, s[72:73]")
        tiled(5, 4)
        k("s_lshl_b32 s46, s69, 10"); k("v_add_u32 v5, s46, v5"); k("v_cndmask_b32 v5, v9, v5, s[72:73]")
        k(f"s_lshl_b32 s46, s{S_WAVE}, 2"); k("v_lshlrev_b32 v11, 4, v2"); k("v_add_u32 v10, s46, v11")
        k(f"s_mov_b32 s49, {L.XTA[1]}")
        def res_store(pp, q, r): k(f"buffer_store_dwordx4 {vr(r,4)}, v8, s[8:11], 0 offen offset:{pp*64} sc1")
        def xn_store(pp, q, r): k(f"buffer_store_dwordx4 {vr(r,4)}, v5, {WS}, s49 offen offset:{pp*1024} sc1")
        ln_epilogue(k, lambda pp, q, t: OUT + (2*pp+t)*4, 1, lambda pp, q: XRS+4*pp, 16, 24, 10, BST, res_store, xn_store, fin)
        k("s_waitcnt vmcnt(0)"); k("s_barrier")
        stg = k.label()
        k(f"s_cmp_lg_u32 s{S_WAVE}, 0"); k(f"s_cbranch_scc1 {stg}")
        lim = ROW6 if QT == 7 else LATE0
        k(f"s_add_u32 s47, s61, {R}"); k(f"s_min_u32 s47, s47, {lim}"); k(f"s_min_u32 s46, s61, {lim}")
        k("s_lshr_b32 s48, s46, 5"); k("s_add_u32 s49, s48, 1"); k("s_lshl_b32 s50, s49, 5"); k("s_min_u32 s50, s50, s47")
        k("s_sub_u32 s51, s50, s46"); k("s_sub_u32 s52, s47, s50")
        k("v_mov_b32 v12, s48"); k("v_mov_b32 v13, s51")
        k("v_writelane_b32 v12, s49, 1"); k("v_writelane_b32 v13, s52, 1")
        if QT == 6:
            k("s_lshr_b32 s48, s60, 3"); k(f"s_add_u32 s48, s48, {LATE0//32}"); k("v_writelane_b32 v12, s48, 2"); k("v_writelane_b32 v13, 4, 2")
        k("v_lshlrev_b32 v12, 7, v12"); k(f"s_mov_b32 s46, {L.RC(1)}")
        signal(k, "s46", 12, 13, WS, lanes=7 if QT == 6 else 3)
        k.place(stg)
        slab_stage(k, 1)
        k(f"s_branch {fin}")
    k.place(slow)
    k("s_waitcnt vmcnt(0) lgkmcnt(0)"); k("s_barrier")
    k("s_mov_b32 s78, 1")
    qread()
    for q in range(QT): k(f"v_mov_b32 v{MX+q}, {NINF}")
    k("s_mov_b32 s67, s65"); k("s_mov_b32 s68, s66"); k("s_mov_b32 s70, 16")
    lm = k.label("LM"); k.place(lm)
    kvload(0)
    k("s_waitcnt vmcnt(0) lgkmcnt(0)")
    for q in range(QT):
        s_ = SS[0]
        k(mf32(s_, KV[0], QO+8*q, None)); k(mf32(s_, KV[0]+4, QO+8*q+4, s_))
        for r in range(0, 16, 2): k(f"v_max3_f32 v{MX+q}, v{MX+q}, v{s_+r}, v{s_+r+1}")
    k("s_sub_u32 s70, s70, 1"); k("s_cmp_lg_u32 s70, 0"); k(f"s_cbranch_scc1 {lm}")
    k("v_and_b32 v7, 31, v0"); k("v_lshlrev_b32 v7, 2, v7"); k(f"s_lshl_b32 s46, s{S_WAVE}, 10"); k("v_add_u32 v12, s46, v7")
    for q in range(QT):
        k(f"v_mov_b32 v13, v{MX+q}"); k(f"v_permlane32_swap_b32 v{MX+q}, v13"); k(f"v_max_f32 v{MX+q}, v{MX+q}, v13")
        k(f"ds_write_b32 v12, v{MX+q} offset:{BMX+q*128}")
    k("s_waitcnt lgkmcnt(0)"); k("s_barrier")
    for q in range(QT):
        for w in range(4): k(f"ds_read_b32 v{SS[0]+w}, v7 offset:{BMX+w*1024+q*128}")
        k("s_waitcnt lgkmcnt(0)")
        k(f"v_max3_f32 v{MX+q}, v{SS[0]}, v{SS[0]+1}, v{SS[0]+2}"); k(f"v_max_f32 v{MX+q}, v{MX+q}, v{SS[0]+3}")
    for i in range(8*QT): k(f"v_mov_b64 {vr(O+2*i,2)}, 0")
    k("s_mov_b32 s67, s65"); k("s_mov_b32 s68, s66"); k("s_mov_b32 s70, 16")
    lp = k.label("LK"); k.place(lp)
    kvload(0)
    k("s_waitcnt vmcnt(0)")
    for q in range(QT):
        s_ = SS[0]
        for r in range(16): k(f"v_sub_f32 v{s_+r}, 0, v{MX+q}")
        k(mf32(s_, KV[0], QO+8*q, s_)); k(mf32(s_, KV[0]+4, QO+8*q+4, s_))
        for h in range(2):
            for r in range(8*h, 8*h+8): k(f"v_exp_f32 v{s_+r}, v{s_+r}")
            for j in range(4): k(f"v_cvt_pk_bf16_f32 v{PP+4*h+j}, v{s_+8*h+2*j}, v{s_+8*h+2*j+1}")
            k(mf32(O+16*q, KV[0]+8+4*h, PP+4*h, O+16*q))
    k("s_sub_u32 s70, s70, 1"); k("s_cmp_lg_u32 s70, 0"); k(f"s_cbranch_scc1 {lp}")
    k(f"s_branch {redo}")
    k.place(fin)
    if not big:
        slab_request(k, 100); slab_stage(k, 0)
```

```python
from gen import *
import gen

ASL = 0
TSC = 1
UPL = 0
WT = 0
WNT = 0
PMODE = 0
NE1 = 2
VMPOS = [(1,1),(1,6),(2,1),(2,5),(3,1),(3,4),(4,1),(5,1),(6,1),(6,6),(7,1)]
BPOLL = 0
BPS = 2
APOLL = 1
UV = 0
XPK = 0
BSL = 0
PSL = 0
XSIG = 0
XNOU = 0
XACK = 0
XSLEEP = 0
XNOEXP = 0
XPOLL = 0
NB = 9
PFD = 2

DIAG = False
DBGOFF = 0xF000000
def stamp(k, i):
    if DIAG == 3: k(f"s_memrealtime s[{72+2*i}:{73+2*i}]")
    elif DIAG: k(f"s_memtime s[{72+2*i}:{73+2*i}]")
def stamp_acc(k, n):
    if not DIAG: return
    k("s_waitcnt lgkmcnt(0)")
    if DIAG == 3:
        for i in range(1, n): k(f"s_add_u32 s{87+i}, s{87+i}, s{72+2*i}")
        return
    for i in range(n-1):
        k(f"s_sub_u32 s71, s{72+2*(i+1)}, s{72+2*i}"); k(f"s_add_u32 s{88+i}, s{88+i}, s71")
T0 = 0
def stamp_init(k):
    if DIAG or T0:
        for i in range(8): k(f"s_mov_b32 s{88+i}, 0")
        k("s_memtime s[72:73]"); k("s_waitcnt lgkmcnt(0)"); k("s_mov_b32 s95, s72")
def stamp_out(k):
    if not (DIAG or T0): return
    k("s_memtime s[72:73]"); k("s_waitcnt lgkmcnt(0)"); k("s_sub_u32 s95, s72, s95")
    for i in range(8): k(f"v_mov_b32 v{16+i}, s{88+i}")
    k(f"s_lshl_b32 s46, s59, 2"); k(f"s_add_u32 s46, s46, s{S_WAVE}"); k("s_lshl_b32 s46, s46, 5"); k(f"s_add_u32 s46, s46, {DBGOFF}")
    k("v_mov_b32 v24, 0")
    k(f"buffer_store_dwordx4 v[16:19], v24, {WS}, s46 offen"); k(f"buffer_store_dwordx4 v[20:23], v24, {WS}, s46 offen offset:16")

def tl0(k, ix, vt):
    if gen.TL != 4: return
    lz = k.label(); k("s_or_b32 s46, s67, s0"); k("s_cmp_lg_u32 s46, 0"); k(f"s_cbranch_scc1 {lz}"); gen.tl(k, ix, vt, 0); k.place(lz)

def publish(k, store):
    k(store)
    lz = k.label("Lpub")
    k("s_cmp_eq_u32 s1, 0"); k(f"s_cbranch_scc1 {lz}")
    k(store + " sc1")
    k.place(lz)

def interleave(k, main, side):
    for i, m in enumerate(main):
        k(m)
        for s in side.get(i, []): k(s)

def ugate_parts(k, need, v128, vt):
    def request():
        k(v128); k(f"v_and_b32 v{vt+1}, 0x780, v{vt}"); k(f"v_lshrrev_b32 v{vt}, 11, v{vt}"); k(f"v_lshl_add_u32 v{vt}, v{vt}, 13, v{vt+1}")
        k("s_min_u32 s96, s96, 48"); k("s_lshl_b32 s97, s96, 7"); k(f"s_add_u32 s97, s97, {L.UC(0)}")
        k(f"buffer_load_dword v{vt+1}, v{vt}, {WL}, s97 offen sc1")
    def evaluate():
        k(f"v_cmp_ne_u32 vcc, 28, v{vt+1}")
        k("s_or_b32 s97, vcc_lo, vcc_hi"); k("s_lshr_b32 vcc_lo, s97, 16"); k("s_or_b32 s97, s97, vcc_lo"); k("s_or_b32 s97, s97, 0x10000")
        k("s_ff1_i32_b32 s97, s97"); k("s_add_u32 s96, s96, s97"); k("s_cmp_ge_u32 s96, 64"); k("s_cselect_b32 s96, 0x100, s96")
    return request, evaluate

def ugate(k, need, v128, vt, abort):
    ok = k.label("Lgo"); lp = k.label("Lgl")
    req, ev = ugate_parts(k, need, v128, vt)
    k(f"s_cmp_lt_u32 {need}, s96"); k(f"s_cbranch_scc1 {ok}")
    k(f"s_mov_b32 s70, {TIMEOUT}")
    k.place(lp)
    req()
    k("s_sub_u32 s70, s70, 1"); k(f"s_cbranch_scc1 {abort}")
    k("s_waitcnt vmcnt(0)")
    ev()
    k(f"s_cmp_lt_u32 {need}, s96"); k(f"s_cbranch_scc0 {lp}")
    k.place(ok)

def poll_rot(k, loads, tmp, abort, pre_issued=False):
    from itertools import permutations
    n = len(loads)
    done = k.label("Lrd")
    lab = {}
    def L_(st):
        if st not in lab: lab[st] = k.label("Lr")
        return lab[st]
    def check(j):
        r = loads[j][1]
        if len(r) == 1: k(f"v_cmp_eq_u32 vcc, -1, v{r[0]}")
        else:
            k(f"v_max3_u32 v{tmp}, v{r[0]}, v{r[1]}, v{r[2]}"); k(f"v_max_u32 v{tmp}, v{tmp}, v{r[3]}"); k(f"v_cmp_eq_u32 vcc, -1, v{tmp}")
    k(f"s_mov_b32 s70, {TIMEOUT}")
    if not pre_issued:
        for j in range(n): k(loads[j][0])
    emitted = set(); deferred = []
    def spin(st):
        m = len(st)
        rots = [st[i:] + st[:i] for i in range(m)]
        for i, r in enumerate(rots):
            emitted.add(r); k.place(L_(r))
            j = r[0]
            k(f"s_waitcnt vmcnt({m-1})")
            check(j)
            hit = ("hit", r)
            k(f"s_cbranch_vccz {L_(hit)}"); deferred.append(r)
            k(loads[j][0])
            if i == m - 1:
                k("s_sub_u32 s70, s70, 1"); k(f"s_cbranch_scc0 {L_(rots[0])}"); k(f"s_branch {abort}")
    def hit(r):
        k.place(L_(("hit", r)))
        while True:
            for x in loads[r[0]][2]: k(x)
            r = r[1:]
            if not r:
                k(f"s_branch {done}"); return
            k(f"s_waitcnt vmcnt({len(r)-1})")
            check(r[0])
            miss = ("miss", r)
            k(f"s_cbranch_vccnz {L_(miss)}"); pend.append(r)
    spin(tuple(range(n)))
    pend = []; seen_hit = set(); seen_miss = set()
    while deferred or pend:
        while deferred:
            r = deferred.pop(0)
            if r not in seen_hit: seen_hit.add(r); hit(r)
        while pend:
            r = pend.pop(0)
            if r in seen_miss: continue
            seen_miss.add(r)
            k.place(L_(("miss", r)))
            k(loads[r[0]][0])
            nr = r[1:] + r[:1]
            if nr in emitted: k(f"s_branch {L_(nr)}")
            else: spin(nr)
    k.place(done)

def poll_mem(k, s_addr, abort, t=44, filler=()):
    lp = k.label("Lpm")
    k(f"s_mov_b32 s70, {TIMEOUT}")
    k.place(lp)
    k(f"buffer_load_dword v{t}, v4, {WL}, s{s_addr} offen sc1")
    k(f"buffer_load_dwordx4 v3, {WL}, s{s_addr} offen sc1 lds")
    k(f"buffer_load_dwordx4 v3, {WL}, s{s_addr} offen offset:1024 sc1 lds")
    k("s_sub_u32 s70, s70, 1")
    k(f"s_cbranch_scc1 {abort}")
    for x in filler: k(x)
    k("s_waitcnt vmcnt(2)")
    k(f"v_cmp_eq_u32 vcc, -1, v{t}")
    k(f"s_cbranch_vccnz {lp}")
    k("s_waitcnt vmcnt(0)")

def poll_mem2(k, s_addr, abort, R0, R1, t):
    lp = k.label("Lpm"); got = [k.label("Lpg"), k.label("Lpg")]; join = k.label("Lpj")
    R = [R0, R1]
    def iss(d):
        k(f"buffer_load_dwordx4 {vr(R[d],4)}, v3, {WL}, s{s_addr} offen sc1"); k(f"buffer_load_dwordx4 {vr(R[d]+4,4)}, v4, {WL}, s{s_addr} offen sc1")
    k(f"s_mov_b32 s70, {TIMEOUT}")
    iss(0)
    k("s_nop 15")
    k.place(lp)
    for d in range(2):
        iss(1-d)
        if d == 0:
            k("s_sub_u32 s70, s70, 1"); k(f"s_cbranch_scc1 {abort}")
        k("s_waitcnt vmcnt(2)")
        k(f"v_max_u32 v{t}, v{R[d]}, v{R[d]+4}"); k(f"v_cmp_eq_u32 vcc, -1, v{t}")
        k(f"s_cbranch_vccz {got[0]}" if d == 0 else f"s_cbranch_vccnz {lp}")
    for d in (1, 0):
        k.place(got[d])
        k(f"ds_write_b128 v3, {vr(R[d],4)}"); k(f"ds_write_b128 v4, {vr(R[d]+4,4)}")
        if d == 1: k(f"s_branch {join}")
    k.place(join)
    k("s_waitcnt lgkmcnt(0)")

def mem_full_check(M, t):
    r = list(range(M, M+28))
    out = [f"v_max3_u32 v{t}, v{r[0]}, v{r[1]}, v{r[2]}"]
    r = r[3:]
    while len(r) >= 2:
        out.append(f"v_max3_u32 v{t}, v{t}, v{r[0]}, v{r[1]}"); r = r[2:]
    out.append(f"v_max_u32 v{t}, v{t}, v{r[0]}")
    return out

def mem_common_setup(k):
    k("v_lshlrev_b32 v1, 4, v0")
    k("v_and_b32 v2, 8, v0")
    k("v_cmp_eq_u32 vcc, 0, v2")
    k("v_mov_b32 v2, 0xeeee")
    k("v_mov_b32 v3, 0x4444")
    k("v_cndmask_b32 v2, v2, v3, vcc")
    k(f"s_lshl_b32 s46, s{S_WAVE}, 11"); k("s_mov_b32 m0, s46")
    k("v_add_u32 v3, s46, v1")
    k(f"s_cmp_eq_u32 s{S_WAVE}, 3"); k("s_cselect_b32 s47, 7, 15")
    k("v_and_b32 v4, s47, v0"); k("v_lshlrev_b32 v4, 7, v4"); k("v_add_u32 v4, s46, v4")

M = 16
SPW = 8*176
def gen_chain_A(k, st, abort, w):
    TT = 8192; SP = TT + 4*3584
    def W(i, p):
        o = i*7 + p
        return vr(256 + 8*o, 8) if o < 32 else vr(120 + 8*(o-32), 8)
    ACC = [52, 56, 60]; CV = 114; TB = [64, 68]; XK = 72; MK = 100; SX0, SX1, SM = 44, 48, 116
    def xk(pair, t): return XK + (pair*2 + t)*4
    XS = XK + 24
    def loadx():
        for t in range(2):
            if t == 1: k(f"s_add_u32 s64, s62, {14*1024}")
            so = "s62" if t == 0 else "s64"
            for pr in range(3):
                k(f"buffer_load_dwordx4 {vr(xk(pr,t),4)}, v6, {WL}, {so} offen offset:{pr*1024} sc1")
            k(f"buffer_load_dwordx2 {vr(XS+2*t,2)}, v14, {WL}, {so} offen sc1")
        k(f"s_add_u32 s62, s62, {28*1024}")
    loop = k.label("LA")
    k(f"s_mov_b32 s61, {L.MEM[0]}")
    k(f"s_mul_i32 s65, s60, 640"); k(f"s_add_u32 s65, s65, {L.PIM[0]}")
    k(f"s_mov_b32 s62, {L.XTA[0]}")
    k("s_mov_b32 s96, 0"); k("s_mov_b32 s98, 0")
    ugate(k, "s98", "v_lshlrev_b32 v16, 3, v1", 16, abort)
    loadx()
    k("s_mov_b32 s67, 63")
    gen.tl(k, 1, 16)
    for r in range(2): k(f"v_mov_b64 {vr(ACC[1]+2*r,2)}, 0")
    stamp_init(k)
    redo = k.label("LAr")
    own = [2*w, (2*w+1) % 7]; rest = [p for p in range(7) if p not in own]
    TAc = [ACC[0], ACC[1], ACC[2], TB[0], SM, ACC[0], ACC[1]]
    NE = 5
    k.place(loop)
    for i in range(NE):
        for r in range(2): k(f"v_mov_b64 {vr(TAc[i]+2*r,2)}, 0")
    stamp(k, 0)
    sm = lambda i, reg, p: f"v_smfmac_f32_16x16x64_bf16 {vr(TAc[i],4)}, {vr(reg,4)}, {W(i,p)}, v2"
    lp = k.label("Lpm"); got = [k.label("Lpg"), k.label("Lpg")]; join = k.label("Lpj")
    PR = [44, 100]
    def iss(d):
        for e in range(2): k(f"buffer_load_dwordx4 {vr(PR[d]+4*e,4)}, v{3+e}, {WL}, s61 offen sc1")
    k(f"s_mov_b32 s70, {TIMEOUT}")
    iss(0)
    k("s_nop 15")
    k.place(lp)
    for d in range(2):
        iss(1-d)
        if d == 0:
            k("s_sub_u32 s70, s70, 1"); k(f"s_cbranch_scc1 {abort}")
        k("s_waitcnt vmcnt(2)")
        if w < 3: k(f"v_max_u32 v{CV}, v{PR[d]}, v{PR[d]+4}")
        else:
            k(f"v_max3_u32 v{CV}, v{PR[d]}, v{PR[d]+4}, v{PR[d]+5}"); k(f"v_max3_u32 v{CV}, v{CV}, v{PR[d]+6}, v{PR[d]+7}")
        k(f"v_cmp_eq_u32 vcc, -1, v{CV}")
        k(f"s_cbranch_vccz {got[0]}" if d == 0 else f"s_cbranch_vccnz {lp}")
    for d in (1, 0):
        k.place(got[d])
        stamp(k, 1)
        k(f"ds_write_b128 v3, {vr(PR[d],4)}")
        if w < 3: k(f"ds_write_b128 v4, {vr(PR[d]+4,4)}")
        for i in range(NE1):
            for e in range(2): k(sm(i, PR[d]+4*e, own[e]))
        k("s_waitcnt lgkmcnt(0)")
        k("s_barrier")
        stamp(k, 2)
        for p in rest: k(f"ds_read_b128 {vr(M+4*p,4)}, v1 offset:{p*1024}")
        for i in range(NE1, NE):
            for e in range(2): k(sm(i, PR[d]+4*e, own[e]))
        if d == 1: k(f"s_branch {join}")
    k.place(join)
    mk = [f"ds_read2_b32 {vr(MK,2)}, v7 offset0:0 offset1:32", f"ds_read2_b32 {vr(MK+2,2)}, v7 offset0:1 offset1:33",
          f"ds_read2_b32 {vr(MK+4,2)}, v7 offset0:128 offset1:160", f"ds_read2_b32 {vr(MK+6,2)}, v7 offset0:129 offset1:161",
          f"ds_read2_b32 {vr(MK+8,2)}, v15 offset0:0 offset1:32", f"ds_read2_b32 {vr(MK+10,2)}, v15 offset0:1 offset1:33",
          f"ds_read2_b32 {vr(MK+12,2)}, v5 offset0:0 offset1:32"]
    T0R = ACC[2]
    tr = lambda j: f"ds_read_b64_tr_b16 {vr(TB[(j >> 1) & 1] + 2*(j & 1),2)}, v9 offset:{j*512}"
    for i in range(7):
        ps = rest if i < NE else rest + own
        main = [sm(i, M+4*p, p) for p in ps]
        side = {g: [] for g in range(7)}
        if i == 0:
            for q in range(5): main[q] = f"s_waitcnt lgkmcnt({4-q})\n" + main[q]
        else:
            pa = TAc[i-1]
            side[2] = [f"v_cvt_pk_bf16_f32 v{CV}, v{pa}, v{pa+1}"]
            side[3] = [f"v_cvt_pk_bf16_f32 v{CV+1}, v{pa+2}, v{pa+3}"]
            side[4] = [f"ds_write_b64 v8, {vr(CV,2)} offset:{(i-1)*512}"]
        if i == 1: side[0] = [f"ds_read_b128 {vr(M+4*own[0],4)}, v1 offset:{own[0]*1024}"]; side[1] = [f"ds_read_b128 {vr(M+4*own[1],4)}, v1 offset:{own[1]*1024}"]
        if i == 2: side[0] = [f"v_mov_b64 {vr(ACC[0],2)}, 0"]; side[1] = [f"v_mov_b64 {vr(ACC[0]+2,2)}, 0"]
        if i == 3: side[0] = [mk[6], f"v_mov_b64 {vr(ACC[1],2)}, 0"]; side[1] = [mk[5], f"v_mov_b64 {vr(ACC[1]+2,2)}, 0"]
        if i == 4: side[0] = [tr(2)]; side[1] = ["s_waitcnt vmcnt(0)", mk[0]]; side[2] = [mk[1]] + side[2]; side[3] = [mk[2]] + side[3]
        if i == 5: main[5] = "s_waitcnt lgkmcnt(6)\n" + main[5]
        if i == 5: side[0] = [tr(3)]; side[1] = [mk[3]]; side[2] = [mk[4]] + side[2]; side[5] = [tr(4)]; side[6] = [f"ds_read_b64_tr_b16 {vr(T0R,2)}, v9"]
        if i == 6: side[0] = [f"ds_read_b64_tr_b16 {vr(T0R+2,2)}, v9 offset:512"]; side[5] = [tr(5)]
        interleave(k, main, side)
    a = TAc[6]
    stamp(k, 3)
    fc = mem_full_check(M, a)
    def smm(pr, tb, first=False):
        c = (lambda r: "0") if first else (lambda r: vr(r,4))
        return [f"v_mfma_f32_16x16x32_bf16 {vr(SX0,4)}, {vr(xk(pr,0),4)}, {vr(tb,4)}, {c(SX0)}",
                f"v_mfma_f32_16x16x32_bf16 {vr(SX1,4)}, {vr(xk(pr,1),4)}, {vr(tb,4)}, {c(SX1)}",
                f"v_mfma_f32_16x16x32_bf16 {vr(SM,4)}, {vr(MK+4*pr,4)}, {vr(tb,4)}, {c(SM)}"]
    k("s_waitcnt lgkmcnt(2)")
    t1 = smm(1, TB[1], True); t0 = smm(0, T0R); t2 = smm(2, TB[0])
    k(t1[0]); k(t1[1])
    k(f"v_cvt_pk_bf16_f32 v{CV}, v{a}, v{a+1}")
    k(f"v_cvt_pk_bf16_f32 v{CV+1}, v{a+2}, v{a+3}")
    k(t1[2])
    k(f"ds_write_b64 v8, {vr(CV,2)} offset:{6*512}")
    k(f"ds_read_b64_tr_b16 {vr(CV,2)}, v9 offset:{6*512}")
    interleave(k, t0, {0: fc[0:2], 1: fc[2:4], 2: fc[4:6] + ["s_waitcnt lgkmcnt(2)"]})
    interleave(k, t2, {0: fc[6:8], 1: fc[8:10], 2: fc[10:12] + ["s_waitcnt lgkmcnt(0)"]})
    k(f"v_mfma_f32_16x16x16_bf16 {vr(SX0,4)}, {vr(XS,2)}, {vr(CV,2)}, {vr(SX0,4)}")
    k(f"v_mfma_f32_16x16x16_bf16 {vr(SX1,4)}, {vr(XS+2,2)}, {vr(CV,2)}, {vr(SX1,4)}")
    k(fc[12])
    k(f"v_mfma_f32_16x16x16_bf16 {vr(SM,4)}, {vr(MK+12,2)}, {vr(CV,2)}, {vr(SM,4)}")
    k(fc[13])
    k(f"v_cmp_eq_u32 vcc, -1, v{a}")
    Y = TB[0]
    for r in range(4): k(f"v_add_f32_dpp v{Y+r}, v{SX0+r}, v{SX0+r} row_ror:8 row_mask:0xf bank_mask:0x3")
    for r in range(4): k(f"v_add_f32_dpp v{Y+r}, v{SX1+r}, v{SX1+r} row_ror:8 row_mask:0xf bank_mask:0xc")
    k(f"ds_write_b128 v10, {vr(Y,4)}")
    for r in range(4): k(f"v_add_f32_dpp v{Y+4}, v{SM+r}, v{SM+r} row_ror:8 row_mask:{'0x3' if r<2 else '0xc'} bank_mask:{'0xc' if r&1 else '0x3'}")
    k(f"ds_write_b32 v11, v{Y+4}")
    k(f"s_cbranch_vccnz {redo}")
    k("s_waitcnt lgkmcnt(0)")
    k("s_barrier")
    stamp(k, 4)
    R = 16
    for q in range(4): k(f"ds_read_b64 {vr(R+2*q,2)}, v12 offset:{q*SPW}")
    k("s_waitcnt lgkmcnt(2)"); k(f"v_pk_add_f32 {vr(R,2)}, {vr(R,2)}, {vr(R+2,2)}")
    k("s_waitcnt lgkmcnt(0)"); k(f"v_pk_add_f32 {vr(R+4,2)}, {vr(R+4,2)}, {vr(R+6,2)}")
    k(f"v_pk_add_f32 {vr(R,2)}, {vr(R,2)}, {vr(R+4,2)}")
    def allred32(v, t, op):
        for sh in (8, 4, 2, 1):
            k(f"{op}_dpp v{v}, v{v}, v{v} row_ror:{sh} row_mask:0xf bank_mask:0xf")
        k(f"v_mov_b32 v{t}, v{v}")
        k(f"v_permlane16_swap_b32 v{v}, v{t}")
        k(f"{op} v{v}, v{v}, v{t}")
    slowmax = k.label("LAm"); lpub = k.label("LAp")
    def normalise(check):
        k(f"v_exp_f32 v{R+4}, v{R}"); k(f"v_exp_f32 v{R+5}, v{R+1}")
        k(f"v_add_f32 v{R+2}, v{R+4}, v{R+5}")
        allred32(R+2, R+3, "v_add_f32")
        if check:
            k(f"v_med3_f32 v{R+3}, v{R+2}, s56, v0"); k(f"v_cmp_neq_f32 vcc, v{R+3}, v{R+2}")
        k(f"v_rcp_f32 v{R+2}, v{R+2}")
        k(f"v_mul_f32 v{R+4}, v{R+4}, v{R+2}"); k(f"v_mul_f32 v{R+5}, v{R+5}, v{R+2}")
        k(f"v_cvt_pk_bf16_f32 v{R+4}, v{R+4}, v{R+5}")
        k(f"v_min_u32 v{R+4}, -2, v{R+4}")
    normalise(True)
    k(f"s_cbranch_vccnz {slowmax}")
    k.place(lpub)
    publish(k, f"buffer_store_dword v{R+4}, v13, {WL}, s65 offen")
    stamp(k, 5)
    if XACK:
        k("s_waitcnt vmcnt(0)"); stamp(k, 6)
    k("s_barrier")
    k("s_add_u32 s98, s98, 1")
    ugate(k, "s98", "v_lshlrev_b32 v24, 3, v1", 24, abort)
    loadx()
    if ASL: k(f"s_sleep {ASL}")
    if not XACK: stamp(k, 6)
    stamp_acc(k, 7)
    k(f"s_add_u32 s65, s65, {L.PSZ}"); k(f"s_add_u32 s61, s61, {L.MSTEP}")
    if gen.TL:
        for (n, ix) in ((53, 2), (33, 3)) + (((63, 10), (62, 11), (61, 12), (60, 13), (58, 14)) if gen.TL == 4 else ()):
            lz = k.label(); k(f"s_cmp_lg_u32 s67, {n}"); k(f"s_cbranch_scc1 {lz}")
            if ix >= 10: k(f"s_cmp_lg_u32 s{S_LAYER}, 0"); k(f"s_cbranch_scc1 {lz}")
            gen.tl(k, ix, 20, 5 if ix < 10 else 0); k.place(lz)
    k("s_sub_u32 s67, s67, 1"); k("s_cmp_lg_u32 s67, 0"); k(f"s_cbranch_scc1 {loop}")
    gen.tl(k, 4, 16)
    stamp_out(k)
    out = k.label("LAo"); k(f"s_branch {out}")
    k.place(slowmax)
    k(f"v_max_f32 v{R+2}, v{R}, v{R+1}")
    allred32(R+2, R+3, "v_max_f32")
    k(f"v_sub_f32 v{R}, v{R}, v{R+2}"); k(f"v_sub_f32 v{R+1}, v{R+1}, v{R+2}")
    normalise(False)
    k(f"s_branch {lpub}")
    k.place(redo)
    k("s_waitcnt lgkmcnt(0)"); k("s_barrier")
    k(f"s_branch {loop}")
    k.place(out)

def setup_A(k, abort):
    TT = 8192; SP = TT + 4*3584
    mem_common_setup(k)
    k(f"s_cmp_eq_u32 s{S_WAVE}, 3"); k("s_cselect_b32 s46, 0, 1024"); k("v_add_u32 v4, s46, v3"); k("s_cselect_b64 vcc, -1, 0"); k("v_cndmask_b32 v4, v4, v1, vcc")
    k(f"s_lshr_b32 s46, s{S_WAVE}, 1"); k("s_mul_i32 s46, s46, 7")
    k(f"s_and_b32 s69, s{S_WAVE}, 1")
    k("s_lshl_b32 s66, s69, 2"); k("s_add_u32 s66, s66, s46")
    k("s_add_u32 s68, s46, 3")
    k("v_min_u32 v16, 27, v0"); k("v_lshrrev_b32 v17, 2, v16"); k("v_and_b32 v16, 3, v16"); k("v_lshlrev_b32 v16, 2, v16"); k("v_lshl_add_u32 v16, v17, 7, v16")
    k(f"s_mul_i32 s54, s60, {7*128}"); k(f"s_add_u32 s54, s54, {L.SF(0)}"); k("s_mov_b32 s55, 0")
    k(f"s_mul_i32 s47, s60, 28"); k("s_lshl_b32 s48, s66, 1"); k("s_add_u32 s48, s48, s47")
    k(f"s_mul_i32 s48, s48, {14*1024}"); k(f"s_add_u32 s48, s48, {L.WQ}")
    k("s_lshl_b32 s49, s68, 1"); k("s_add_u32 s49, s49, s69"); k("s_add_u32 s49, s49, s47")
    k(f"s_mul_i32 s49, s49, {14*1024}"); k(f"s_add_u32 s49, s49, {L.WQ}")
    k("v_lshrrev_b32 v18, 5, v0"); k(f"v_mul_u32_u24 v18, {14*1024}, v18"); k("v_and_b32 v19, 31, v0"); k("v_lshl_add_u32 v18, v19, 7, v18")
    for r in range(4):
        slab_round_wait(k, r, "s54", 16, 17, abort)
        if WT & 1:
            for j in range(4):
                k(f"s_add_u32 s50, s{48 if j < 3 else 49}, {(2*j*14*1024 if j < 3 else 0) + r*4096}")
                lo = 0xffffffff if r < 3 else 0xffff
                k(f"s_mov_b32 exec_lo, {hex(lo)}"); k(f"s_mov_b32 exec_hi, {hex(lo) if j < 3 else 0}")
                k(f"buffer_load_dword v19, v18, {WS}, s50 offen sc1")
                k("s_mov_b64 exec, -1")
        for i in range(7):
            k(f"s_add_u32 s50, s{48 if i < 6 else 49}, {(i*14*1024 if i < 6 else 0) + r*4096}")
            for ks in range(4*r, min(4*r+4, 14)):
                n = i*14 + ks; reg = 256 + 4*n if n < 64 else 120 + 4*(n-64)
                k(f"buffer_load_dwordx4 {vr(reg,4)}, v1, {WS}, s50 offen offset:{(ks%4)*1024} sc1{' nt' if WNT else ''}")
    k("v_and_b32 v16, 15, v0")
    k("v_lshrrev_b32 v17, 4, v0")
    k("v_bfe_u32 v18, v0, 1, 1"); k("v_lshlrev_b32 v18, 2, v18")
    k("v_bfe_u32 v19, v0, 2, 1"); k("v_lshl_add_u32 v18, v19, 1, v18")
    k("v_and_b32 v19, 1, v0"); k("v_add_u32 v18, v18, v19")
    k("v_lshlrev_b32 v18, 4, v18")
    k("v_lshrrev_b32 v19, 1, v17"); k("v_lshl_add_u32 v18, v19, 8, v18")
    k("v_and_b32 v19, 1, v17"); k("v_lshl_add_u32 v18, v19, 3, v18")
    k("s_lshl_b32 s46, s66, 9"); k("v_add_u32 v7, s46, v18")
    k("v_add_u32 v15, 1024, v7")
    k("s_lshl_b32 s46, s68, 9"); k("s_lshl_b32 s47, s69, 2"); k("s_add_u32 s46, s46, s47")
    k("v_add_u32 v5, s46, v18")
    k(f"s_mul_i32 s46, s{S_WAVE}, 3584"); k(f"s_add_u32 s46, s46, {TT}")
    k("v_lshlrev_b32 v8, 5, v16"); k("v_lshl_add_u32 v8, v17, 3, v8"); k("v_add_u32 v8, s46, v8")
    k("v_lshlrev_b32 v9, 3, v0"); k("v_add_u32 v9, s46, v9")
    k(f"s_mul_i32 s46, s{S_WAVE}, {SPW}"); k(f"s_add_u32 s46, s46, {SP}")
    k("v_and_b32 v19, 7, v0"); k("v_mul_u32_u24 v18, 176, v19"); k("v_add_u32 v18, s46, v18")
    k("v_lshrrev_b32 v19, 3, v16")
    k("v_lshl_add_u32 v10, v17, 5, v18"); k("v_lshl_add_u32 v10, v19, 4, v10")
    k("v_and_b32 v20, 1, v17"); k("v_lshl_add_u32 v11, v20, 4, v18")
    k("v_lshrrev_b32 v20, 1, v17"); k("v_lshl_add_u32 v11, v20, 3, v11")
    k("v_lshl_add_u32 v11, v19, 2, v11"); k("v_add_u32 v11, 128, v11")
    k(f"v_mov_b32 v20, {hx(f2u(-1e30))}"); k("v_mov_b32 v21, v20")
    k("ds_write_b64 v18, v[20:21] offset:160")
    k("v_and_b32 v19, 31, v0"); k("v_lshrrev_b32 v20, 5, v0")
    k(f"s_lshl_b32 s46, s{S_WAVE}, 1"); k("v_add_u32 v20, s46, v20")
    k("v_lshlrev_b32 v21, 3, v19"); k("v_cmp_gt_u32 vcc, 20, v19"); k("v_mov_b32 v22, 160")
    k("v_cndmask_b32 v21, v22, v21, vcc")
    k("v_mul_u32_u24 v22, 176, v20"); k("v_add_u32 v12, v21, v22"); k(f"v_add_u32 v12, {SP}, v12")
    k("v_lshrrev_b32 v21, 2, v19"); k("v_lshl_add_u32 v21, v21, 3, v20"); k("v_lshlrev_b32 v21, 4, v21")
    k("v_and_b32 v22, 3, v19"); k("v_lshl_add_u32 v21, v22, 2, v21")
    k("v_mov_b32 v22, 0x7fffffff"); k("v_cndmask_b32 v13, v22, v21, vcc")
    k("s_lshl_b32 s46, s68, 10"); k("s_lshl_b32 s47, s69, 3"); k("s_add_u32 s46, s46, s47")
    k("v_add_u32 v14, s46, v1")
    k("s_lshl_b32 s46, s66, 10"); k("v_add_u32 v6, s46, v1")
    k(f"s_mov_b32 s56, {hx(f2u(2.0**-60))}"); k(f"v_mov_b32 v0, {hx(f2u(2.0**60))}")
    k("s_waitcnt vmcnt(0) lgkmcnt(0)")

B_TB = 8192
B_OUT = B_TB + 8192
B_LW = B_OUT + 8192
CHAIN_LDS = B_LW + 4*28*1024

def setup_B(k, abort):
    mem_common_setup(k)
    k("v_lshrrev_b32 v131, 2, v0"); k(f"v_mul_u32_u24 v131, {7*128}, v131"); k("v_and_b32 v130, 3, v0"); k("v_lshl_add_u32 v130, v130, 2, v131")
    k("s_lshr_b32 s54, s60, 1"); k("s_lshl_b32 s54, s54, 7"); k(f"s_add_u32 s54, s54, {L.SF(0) + 112*128}"); k("s_mov_b32 s55, 0")
    k(f"s_lshl_b32 s46, s{S_WAVE}, 2"); k("s_mul_i32 s46, s46, 28"); k("s_lshl_b32 s47, s60, 1"); k("s_add_u32 s46, s46, s47")
    k(f"s_mul_i32 s46, s46, {14*1024}"); k(f"s_add_u32 s46, s46, {L.WV}")
    k(f"s_mul_i32 s47, s{S_WAVE}, {28*1024}"); k(f"s_add_u32 s47, s47, {B_LW}")
    k("v_add_u32 v15, s47, v1")
    k("v_lshrrev_b32 v134, 5, v0"); k(f"v_mul_u32_u24 v134, {14*1024}, v134"); k("v_and_b32 v135, 31, v0"); k("v_lshl_add_u32 v134, v135, 7, v134")
    for r in range(4):
        slab_round_wait(k, r, "s54", 130, 131, abort)
        if WT & 2:
            for hh in range(4):
                k(f"s_add_u32 s48, s46, {hh*28*14*1024 + r*4096}")
                if r == 3: k("s_mov_b32 exec_lo, 0xffff"); k("s_mov_b32 exec_hi, 0xffff")
                k(f"buffer_load_dword v135, v134, {WS}, s48 offen sc1")
                if r == 3: k("s_mov_b64 exec, -1")
        for hh in range(4):
            for t in range(2):
                k(f"s_add_u32 s48, s46, {(hh*28 + t)*14*1024 + r*4096}")
                for ks in range(4*r, min(4*r+4, 14)):
                    n = t*14 + ks; q = hh*28 + n
                    reg = 16 + 4*n if hh == 3 else (256 + 4*q if q < 64 else 176 + 4*(q-64))
                    k(f"buffer_load_dwordx4 {vr(reg,4)}, v1, {WS}, s48 offen offset:{(ks%4)*1024} sc1{' nt' if WNT else ''}")
    req, ev = ugate_parts(k, "0", "v_lshlrev_b32 v130, 3, v1", 130)
    k("s_mov_b32 s96, 0"); req(); k(f"s_mov_b32 s48, {L.MEM[0]}"); k(f"buffer_load_dword v132, v4, {WL}, s48 offen sc1")
    k("s_waitcnt vmcnt(0)")
    ev()
    for n in range(28): k(f"ds_write_b128 v15, {vr(16+4*n,4)} offset:{n*1024}")
    k("s_waitcnt lgkmcnt(0)")
    k("v_and_b32 v16, 15, v0"); k("v_lshrrev_b32 v17, 4, v0"); k("v_and_b32 v18, 7, v0")
    k(f"s_mul_i32 s46, s{S_WAVE}, 2560")
    k("v_lshl_add_u32 v7, v17, 3, v18"); k("v_lshlrev_b32 v7, 4, v7"); k("v_add_u32 v7, s46, v7")
    k("v_lshrrev_b32 v19, 3, v16"); k("v_mul_u32_u24 v19, 640, v19"); k("v_add_u32 v7, v7, v19")
    k("v_mul_u32_u24 v8, 640, v17"); k("v_lshl_add_u32 v8, v18, 4, v8"); k("v_add_u32 v8, s46, v8"); k("v_add_u32 v8, 512, v8")
    k(f"v_mul_u32_u24 v19, {28*1024}, v17"); k("v_lshl_add_u32 v19, v16, 7, v19"); k("v_mov_b32 v20, 0x7fffffff")
    k(f"v_cmp_gt_u32 vcc, {NB}, v16"); k("v_cndmask_b32 v5, v20, v19, vcc")
    k(f"s_lshl_b32 s46, s{S_WAVE}, 11"); k(f"s_add_u32 s47, s46, {B_TB}")
    k("v_lshlrev_b32 v9, 4, v16"); k("v_lshl_add_u32 v9, v17, 2, v9"); k("v_add_u32 v9, s47, v9")
    k("v_add_u32 v10, s47, v1")
    k(f"s_lshl_b32 s46, s{S_WAVE}, 10"); k(f"s_add_u32 s47, s46, {B_OUT}"); k("v_add_u32 v11, s47, v1")
    k("v_bfe_u32 v19, v0, 2, 3"); k("v_lshrrev_b32 v20, 5, v0"); k("v_bfe_u32 v21, v0, 1, 1"); k("v_and_b32 v22, 1, v0")
    k(f"s_lshl_b32 s46, s{S_WAVE}, 1"); k("s_and_b32 s46, s46, 2"); k("v_add_u32 v21, s46, v21")
    k("v_lshl_add_u32 v12, v21, 4, v19"); k("v_lshlrev_b32 v12, 4, v12"); k("v_lshl_add_u32 v12, v22, 7, v12")
    k("v_lshl_add_u32 v12, v20, 3, v12"); k(f"v_add_u32 v12, {B_OUT}, v12")
    k("s_lshl_b32 s47, s60, 9"); k("s_lshl_b32 s48, s46, 7"); k("s_add_u32 s48, s48, s47")
    k("v_lshlrev_b32 v13, 2, v0"); k("v_add_u32 v13, s48, v13")
    k("v_lshlrev_b32 v14, 7, v21"); k("v_lshl_add_u32 v14, v19, 4, v14"); k("v_lshl_add_u32 v14, v22, 3, v14")
    k("v_lshl_add_u32 v14, v20, 2, v14"); k("v_add_u32 v14, s47, v14")
    k("v_mov_b32 v19, 0x7fffffff"); k(f"s_cmp_ge_u32 s{S_WAVE}, 2"); k("s_cselect_b64 vcc, -1, 0"); k("v_cndmask_b32 v14, v14, v19, vcc"); k("v_cndmask_b32 v13, v13, v19, vcc")
    lane0_addr(k, 6, 19); k("v_mov_b32 v0, 1")
    k("s_waitcnt vmcnt(0)")

def gen_chain_B(k, st, abort):
    ACC = [52, 56, 60]; FT = 64; HOLD = 67; ZA = 68; U = 76; P = 108; LW = 108; DUM = 66
    def W(hh, t, p):
        o = (hh*2 + t)*7 + p
        return vr(256 + 8*o, 8) if o < 32 else vr(176 + 8*(o-32), 8)
    loop = k.label("LB"); done = k.label("LBd"); first = k.label("LBf"); nofin = k.label("LBn")
    k(f"s_mov_b32 s61, {L.MEM[0]}"); k(f"s_mov_b32 s65, {L.PIM[0]}")
    k(f"s_lshl_b32 s62, s{S_WAVE}, 2"); k("s_mul_i32 s62, s62, 28"); k("s_lshl_b32 s46, s60, 1"); k("s_add_u32 s62, s62, s46")
    k("s_lshl_b32 s62, s62, 10"); k(f"s_add_u32 s62, s62, {L.UU[0]}")
    k(f"s_mul_i32 s63, s{S_WAVE}, 28"); k("s_add_u32 s63, s63, s46"); k("s_lshl_b32 s63, s63, 10"); k(f"s_add_u32 s63, s63, {L.VM[0] - L.VMSZ}")
    k(f"s_mov_b32 s66, {L.MEMN[0]}")
    k("s_mov_b32 s67, 0")
    gen.tl(k, 1, 44)
    stamp_init(k)
    k.place(loop)
    if True:
        k("s_add_u32 s98, s67, 1")
        ugate(k, "s98", "v_lshlrev_b32 v108, 3, v1", 108, abort)
    tl0(k, 10, 108)
    k("s_cmp_eq_u32 s67, 0"); k(f"s_cselect_b32 s57, {L.SPARE[0]}, s63"); k(f"s_cselect_b32 s58, {L.SPARE[0]}, s66")
    again = k.label("LBa"); k.place(again)
    TA = [52, 56, 60, 164, 168, 172, 44, 48]
    zero = [f"v_mov_b64 {vr(a_+2*h,2)}, 0" for a_ in TA for h in range(2)]
    stamp(k, 0)
    poll_mem(k, 61, abort, FT, zero)
    stamp(k, 1)
    k("s_barrier")
    stamp(k, 2)
    tl0(k, 11, 108)
    for p in range(7): k(f"ds_read_b128 {vr(M+4*p,4)}, v1 offset:{p*1024}")
    if NB:
        k(f"s_add_u32 s64, s62, {16*28*1024}")
        k(f"buffer_load_dword v{DUM}, v5, {WL}, s64 offen{' sc1' if TSC else ''}")
    exports = [f"buffer_store_dwordx4 {vr(ZA,4)}, v1, {WL}, s57 offen sc1", f"buffer_store_dwordx4 {vr(ZA+4,4)}, v1, {WL}, s57 offen offset:1024 sc1",
               f"buffer_store_dword v{HOLD}, v14, {WL}, s58 offen sc1"]
    uload = []
    for hh in range(4):
        for t in range(2):
            pre = [f"s_add_u32 s64, s62, {hh*28*1024}"] if (hh and t == 0) else []
            uload.append(pre + [f"buffer_load_dwordx4 {vr(U+(hh*2+t)*4,4)}, v1, {WL}, {'s64' if hh else 's62'} offen offset:{t*1024}{'' if UPL else ' sc1'}"])
    order = [(0,0),(0,1),(1,0),(3,0),(1,1),(2,0),(2,1),(3,1)]
    def fold(j):
        pa = TA[j]; hh, t = order[j]
        return [f"v_permlane32_swap_b32 v{pa}, v{pa+2}", f"v_permlane32_swap_b32 v{pa+1}, v{pa+3}",
                f"v_add_f32 v{pa}, v{pa}, v{pa+2}", f"v_add_f32 v{pa+1}, v{pa+1}, v{pa+3}",
                f"v_cvt_pk_bf16_f32 v{pa}, v{pa}, v{pa+1}", f"v_min_u32 v{pa}, -2, v{pa}\nds_write_b32 v9, v{pa} offset:{t*1024+hh*256}"]
    lw = [[f"ds_read_b128 {vr(LW+4*(n%14),4)}, v15 offset:{n*1024}" for n in range(14*u, 14*u+14)] for u in range(2)]
    vm = exports + uload
    plan = {i: [[] for _ in range(7)] for i in range(8)}
    for p in range(7): plan[0][p].append(lw[0][p])
    for n, (ti, g) in zip(range(7, 14), [(1,0),(1,2),(1,3),(1,4),(1,5),(2,2),(2,3)]): plan[ti][g].append(lw[0][n])
    for n, (ti, g) in enumerate([(4,2),(4,3),(4,4),(4,5),(4,6),(5,2),(5,3),(5,4),(5,5),(5,6),(6,2),(6,3),(6,4),(6,5)]): plan[ti][g].append(lw[1][n])
    for e, (ti, g) in zip(vm, VMPOS): plan[ti][g] += (e if isinstance(e, list) else [e])
    for i in range(1, 8):
        f = fold(i-1)
        for q in range(5): plan[i][2+q].append(f[q])
        if i < 7: plan[i+1][0].insert(0, f[5])
    for i, (hh, t) in enumerate(order):
        a = TA[i]
        if hh == 3: k("s_waitcnt lgkmcnt(0)")
        main = [f"v_smfmac_f32_16x16x64_bf16 {vr(a,4)}, {vr(M+4*p,4)}, {W(hh,t,p) if hh<3 else vr(LW+8*p,8)}, v2" for p in range(7)]
        if i == 0:
            for p in range(7): main[p] = "s_waitcnt lgkmcnt(6)\n" + main[p]
        if DIAG == 2 and i == 0: stamp(k, 3)
        interleave(k, main, dict(enumerate(plan[i])))
        if DIAG == 2 and i == 2: stamp(k, 4)
        if DIAG == 2 and i == 5: stamp(k, 5)
    fc = mem_full_check(M, FT)
    k(fold(6)[5])
    for x in fc[:6]: k(x)
    for x in fold(7): k(x)
    k(f"ds_read_b128 {vr(ZA,4)}, v10"); k(f"ds_read_b128 {vr(ZA+4,4)}, v10 offset:1024")
    for x in fc[6:]: k(x)
    redo = k.label("LBr")
    k(f"v_cmp_eq_u32 vcc, -1, v{FT}"); k(f"s_cbranch_vccnz {redo}")
    k(f"s_add_u32 s62, s62, {16*28*1024}"); k(f"s_add_u32 s61, s61, {L.MSTEP}")
    k(f"s_add_u32 s63, s63, {L.VMSZ}"); k(f"s_add_u32 s66, s66, {L.MEMSZ}")
    stamp(k, 3 if DIAG != 2 else 6)
    k("s_cmp_eq_u32 s67, 63"); k(f"s_cbranch_scc1 {done}")
    lp = k.label("Lpp")
    Q = P; OUT = P + 24
    k("s_waitcnt lgkmcnt(0)")
    tl0(k, 12, 108)
    k(f"s_mov_b32 s70, {TIMEOUT}")
    if BPS: k(f"s_sleep {BPS}")
    k.place(lp)
    for r in range(8): k(f"v_mov_b64 {vr(OUT+2*r,2)}, 0")
    def pv(heads, q):
        o = []
        for hh in heads:
            for t in range(2):
                d = OUT + 8*(hh & 1) + 4*t
                o.append(f"v_mfma_f32_16x16x32_bf16 {vr(d,4)}, {vr(U+(hh*2+t)*4,4)}, {vr(q,4)}, {vr(d,4)}")
        o.insert(1, f"v_max3_u32 v{FT+1}, v{FT+1}, v{q+1}, v{q+2}"); o.insert(3, f"v_max_u32 v{FT+1}, v{FT+1}, v{q+3}")
        return o
    mm = [f"v_mfma_f32_16x16x32_bf16 {vr(OUT,4)}, {vr(ZA,4)}, {vr(Q+8,4)}, {vr(OUT,4)}", f"v_max3_u32 v{FT+1}, v{FT+1}, v{Q+9}, v{Q+10}",
          f"v_mfma_f32_16x16x32_bf16 {vr(OUT+4,4)}, {vr(ZA+4,4)}, {vr(Q+8,4)}, {vr(OUT+4,4)}", f"v_max_u32 v{FT+1}, v{FT+1}, v{Q+11}"]
    k(f"v_mov_b32 v{FT+1}, 0")
    lds_ = [(f"buffer_load_dwordx4 {vr(Q,4)}, v7, {WL}, s65 offen sc1", [Q], pv((0, 1), Q)),
            (f"buffer_load_dwordx4 {vr(Q+4,4)}, v7, {WL}, s65 offen offset:1280 sc1", [Q+4], pv((2, 3), Q+4)),
            (f"buffer_load_dwordx4 {vr(Q+8,4)}, v8, {WL}, s65 offen sc1", [Q+8], mm)]
    if PMODE == 0: poll_rot(k, lds_, FT, abort)
    else:
        l1 = k.label("Lp1")
        k.place(l1)
        for x in lds_: k(x[0])
        k("s_sub_u32 s70, s70, 1"); k(f"s_cbranch_scc1 {abort}")
        k("s_waitcnt vmcnt(2)")
        if PMODE == 1:
            k(f"v_cmp_eq_u32 vcc, -1, v{Q}"); k(f"s_cbranch_vccnz {l1}")
        for j, x in enumerate(lds_):
            if j: k(f"s_waitcnt vmcnt({2-j})")
            for n, y in enumerate(x[2]):
                k(y)
                if n == 0 and (j or PMODE == 2): k(f"v_max_u32 v{FT+1}, v{FT+1}, v{x[1][0]}")
    if DIAG != 2: stamp(k, 4)
    if DIAG == 1:
        k(f"s_sub_u32 s71, {TIMEOUT}, s70"); k("s_add_u32 s94, s94, s71")
    k(f"v_cmp_eq_u32 vcc, -1, v{FT+1}")
    Y = ACC[0]
    for r in range(4): k(f"v_add_f32_dpp v{Y+r}, v{OUT+8+r}, v{OUT+r} row_ror:8 row_mask:0xf bank_mask:0x3")
    for r in range(4): k(f"v_add_f32_dpp v{Y+r}, v{OUT+4+r}, v{OUT+12+r} row_ror:8 row_mask:0xf bank_mask:0xc")
    k(f"ds_write_b128 v11, {vr(Y,4)}")
    k(f"s_cbranch_vccnz {lp}")
    tl0(k, 13, 108)
    k(f"s_add_u32 s65, s65, {L.PSZ}")
    k("s_add_u32 s67, s67, 1")
    k("s_waitcnt lgkmcnt(0)")
    k("s_barrier")
    if DIAG != 2: stamp(k, 5)
    for q in range(4): k(f"ds_read_b64 {vr(U+2*q,2)}, v12 offset:{q*1024}")
    k("s_waitcnt lgkmcnt(2)"); k(f"v_pk_add_f32 {vr(U,2)}, {vr(U,2)}, {vr(U+2,2)}")
    k("s_waitcnt lgkmcnt(0)"); k(f"v_pk_add_f32 {vr(U+4,2)}, {vr(U+4,2)}, {vr(U+6,2)}")
    k(f"v_pk_add_f32 {vr(U,2)}, {vr(U,2)}, {vr(U+4,2)}")
    k(f"v_cvt_pk_bf16_f32 v{HOLD}, v{U}, v{U+1}")
    k(f"v_min_u32 v{HOLD}, -2, v{HOLD}")
    publish(k, f"buffer_store_dword v{HOLD}, v13, {WL}, s61 offen")
    k("s_cmp_lg_u32 s67, 63"); k(f"s_cbranch_scc1 {nofin}")
    k(f"buffer_store_dword v{HOLD}, v14, {WL}, s66 offen sc1")
    k.place(nofin)
    if DIAG != 2: stamp(k, 6)
    stamp_acc(k, 7)
    if BSL: k(f"s_sleep {BSL}")
    k(f"s_branch {loop}")
    k.place(redo)
    k("s_waitcnt vmcnt(0) lgkmcnt(0)"); k("s_barrier"); k(f"s_mov_b32 s57, {L.SPARE[0]}"); k("s_mov_b32 s58, s57"); k(f"s_branch {again}")
    k.place(done)
    k("s_waitcnt lgkmcnt(0)")
    k(f"buffer_store_dwordx4 {vr(ZA,4)}, v1, {WL}, s63 offen sc1")
    k(f"buffer_store_dwordx4 {vr(ZA+4,4)}, v1, {WL}, s63 offen offset:1024 sc1")
    k("s_mov_b32 s96, 0")
    stamp_out(k)

def gen_chain_P(k, abort):
    k(f"s_lshl_b32 s46, s60, 2"); k(f"s_add_u32 s46, s46, s{S_WAVE}")
    k("s_mov_b32 s94, s46")
    k("v_lshlrev_b32 v1, 7, v0"); k("v_mov_b32 v20, 0x7fffffff")
    k(f"s_mul_i32 s47, s46, {448*128}"); k("v_add_u32 v2, s47, v1")
    k("v_and_b32 v3, 15, v0"); k(f"v_cmp_le_u32 vcc, {NB}, v3"); k("v_cndmask_b32 v3, v20, v2, vcc")
    k(f"s_mul_i32 s47, s46, {28*128}"); k("v_add_u32 v4, s47, v1"); k("v_cmp_gt_u32 vcc, 28, v0"); k("v_cndmask_b32 v4, v20, v4, vcc")
    k(f"s_mul_i32 s47, s46, {7*L.NMC*128}"); k("v_add_u32 v5, s47, v1"); k(f"v_cmp_gt_u32 vcc, {7*L.NMC}, v0"); k("v_cndmask_b32 v5, v20, v5, vcc")
    k(f"s_mul_i32 s47, s46, {10*L.NPC*128}"); k("v_add_u32 v6, s47, v1"); k(f"v_cmp_gt_u32 vcc, {10*L.NPC}, v0"); k("v_cndmask_b32 v6, v20, v6, vcc")
    k("v_min_u32 v7, 27, v0"); k("v_lshlrev_b32 v7, 8, v7")
    k("v_mov_b32 v12, 0"); k(f"s_mov_b32 s99, {L.PROG(0)}"); k("s_mov_b32 s95, 1")
    k(f"s_mov_b32 s62, {L.UU[0]}"); k(f"s_mov_b32 s63, {L.XTA[0]}")
    k(f"s_mov_b32 s64, {L.MEM[0]+L.MSTEP}"); k(f"s_mov_b32 s65, {L.PIM[0]}")
    k(f"s_mov_b32 s61, {L.MEM[0]}")
    def touch(v, mid=None):
        k(f"buffer_load_dword v8, v5, {WL}, s64 offen sc1"); k(f"buffer_load_dword v8, v6, {WL}, s65 offen sc1")
        k(f"buffer_load_dword v8, v4, {WL}, s63 offen sc1")
        for j in range(7):
            if j == 3 and mid: mid()
            k(f"s_add_u32 s66, s62, {j*8192}")
            k(f"buffer_load_dword v8, v{v}, {WL}, s66 offen{' sc1' if TSC else ''}")
        k(f"s_add_u32 s62, s62, {16*28*1024}"); k(f"s_add_u32 s63, s63, {28*1024}")
        k(f"s_add_u32 s64, s64, {L.MSTEP}"); k(f"s_add_u32 s65, s65, {L.PSZ}")
    def probe(): k(f"buffer_load_dword v9, v7, {WL}, s61 offen sc1")
    k("s_mov_b32 s96, 0"); k("s_mov_b32 s98, 0")
    def pgate():
        ugate(k, "s98", "v_mov_b32 v24, v1", 24, abort); k("s_add_u32 s98, s98, 1")
    pgate(); touch(2)
    for i in range(1, PFD):
        pgate(); touch(3)
    k(f"s_add_u32 s61, s61, {L.MSTEP}")
    loop = k.label("LP"); lp = k.label("LPp"); go = k.label("LPg"); pend = k.label("LPe"); nt = k.label("LPn"); np_ = k.label("LPq")
    k.place(loop)
    k(f"s_cmp_ge_u32 s98, 63"); k(f"s_cbranch_scc1 {nt}")
    pgate()
    touch(3, probe)
    k("s_waitcnt vmcnt(4)")
    k("v_cmp_eq_u32 vcc, -1, v9"); k(f"s_cbranch_vccz {go}")
    k.place(nt)
    k(f"s_mov_b32 s70, {TIMEOUT}")
    k.place(lp)
    if PSL: k(f"s_sleep {PSL}")
    probe()
    k("s_sub_u32 s70, s70, 1"); k(f"s_cbranch_scc1 {abort}")
    k("s_waitcnt vmcnt(0)")
    k("v_cmp_eq_u32 vcc, -1, v9"); k(f"s_cbranch_vccnz {lp}")
    k.place(go)
    if True:
        k("s_cmp_lg_u32 s94, 0"); k(f"s_cbranch_scc1 {np_}")
        k("v_mov_b32 v13, s95"); k("s_mov_b64 exec, 1")
        k(f"buffer_store_dword v13, v12, {WL}, s99 offen sc1")
        k("s_mov_b64 exec, -1")
        k.place(np_)
    k(f"s_add_u32 s61, s61, {L.MSTEP}")
    k("s_add_u32 s95, s95, 1"); k("s_cmp_le_u32 s95, 63"); k(f"s_cbranch_scc1 {loop}")
    k.place(pend)

def chain_roles(k, ex):
    lP = k.label("LroleP")
    k("s_getreg_b32 s58, hwreg(HW_REG_XCC_ID)"); k("s_and_b32 s58, s58, 15"); k("s_add_u32 s58, s58, 1")
    body_init(k, ex)
    gen.tl(k, 15, 16, 0)
    k("s_cmp_ge_u32 s59, 30"); k(f"s_cbranch_scc1 {lP}")
    lB = k.label("LroleB")
    def agree(slow):
        lp = k.label("Lx")
        k("v_lshrrev_b32 v16, 2, v1"); k("v_min_u32 v16, 124, v16")
        k(f"s_mov_b32 s70, {TIMEOUT}")
        k.place(lp)
        k("buffer_load_dword v17, v16, s[8:11], 0 offen offset:128 sc1")
        k("s_sub_u32 s70, s70, 1"); k(f"s_cbranch_scc1 {ex}")
        k("s_waitcnt vmcnt(0)")
        k("v_cmp_eq_u32 vcc, 0, v17"); k(f"s_cbranch_vccnz {lp}")
        k("v_cmp_ne_u32 vcc, s58, v17"); k("s_cmp_lg_u64 vcc, 0"); k("s_cselect_b32 s1, 1, 0")
    k("s_cmp_ge_u32 s59, 16"); k(f"s_cbranch_scc1 {lB}")
    k("s_mov_b32 s60, s59")
    lA0 = k.label("LA0"); lB0 = k.label("LB0")
    k("v_lshlrev_b32 v16, 7, v0"); code_touch(k, lA0, 16384, True, 16, 17)
    setup_A(k, ex)
    sl = k.label("LslowA"); agree(sl)
    def per_wave(st):
        labs = [k.label("LAw") for _ in range(4)]
        for w in range(1, 4):
            k(f"s_cmp_eq_u32 s{S_WAVE}, {w}"); k(f"s_cbranch_scc1 {labs[w]}")
        for w in range(4):
            k.place(labs[w])
            top = k.label("Ltop"); k.place(top); gen_chain_A(k, st, ex, w); layer_next(k, top)
            k("s_endpgm")
    k.place(lA0)
    per_wave("")
    k.place(lB)
    k("s_sub_u32 s60, s59, 16")
    k("v_lshlrev_b32 v132, 7, v0"); code_touch(k, lB0, 8192, True, 132, 133)
    setup_B(k, ex)
    sl = k.label("LslowB"); agree(sl)
    k.place(lB0)
    top = k.label("Ltop"); k.place(top); gen_chain_B(k, "", ex); layer_next(k, top)
    k("s_endpgm")
    k.place(lP)
    k("s_sub_u32 s60, s59, 30")
    top = k.label("Ltop"); k.place(top); gen_chain_P(k, ex); layer_next(k, top)
    k("s_endpgm")
```

```python
import struct, sys
from asmlib import *
import layout as L

def f2u(x): return struct.unpack("<I", struct.pack("<f", x))[0]
def hx(x): return hex(x & 0xffffffff)

S_WS = 4
P_X, P_MEM0, P_WQ, P_WK, P_WV, P_WO = 16, 18, 20, 22, 24, 26
P_BQ, P_BK, P_BV, P_BO = 32, 34, 36, 38
P_OUT, P_DBG, P_WS = 40, 42, 44
S_WAVE = 3

def srd(k, d, base, nbytes):
    k(f"s_mov_b32 s{d}, s{base}")
    k(f"s_and_b32 s{d+1}, s{base+1}, 0xffff")
    k(f"s_mov_b32 s{d+2}, {hx(nbytes)}")
    k(f"s_mov_b32 s{d+3}, 0x20000")

def prologue(k, nwg):
    k(f"s_cmp_lt_u32 s2, {nwg}")
    k(f"s_cbranch_scc1 Lgo_{k.name}")
    k("s_endpgm")
    k.place(f"Lgo_{k.name}")
    k("s_load_dwordx16 s[16:31], s[0:1], 0")
    k("s_load_dwordx8 s[32:39], s[0:1], 64")
    k("s_load_dwordx4 s[40:43], s[0:1], 96")
    k("s_load_dwordx2 s[44:45], s[0:1], 112")
    k("v_lshrrev_b32 v1, 6, v0")
    k(f"v_readfirstlane_b32 s{S_WAVE}, v1")
    k("v_and_b32 v0, 63, v0")
    k("s_waitcnt lgkmcnt(0)")
    srd(k, S_WS, P_WS, L.WS_BYTES)

def epilogue(k):
    k.place(f"Lexit_{k.name}")
    k("s_endpgm")

WS = "s[4:7]"
WL = "s[12:15]"
S_LAYER = 0

def xreduce_g(k, v, tmp, op):
    k(f"v_mov_b32 v{tmp}, v{v}")
    k(f"v_permlane16_swap_b32 v{v}, v{tmp}")
    k(f"{op} v{v}, v{v}, v{tmp}")
    k(f"v_mov_b32 v{tmp}, v{v}")
    k(f"v_permlane32_swap_b32 v{v}, v{tmp}")
    k(f"{op} v{v}, v{v}, v{tmp}")

def div7(k, sq, srem, sx):
    k(f"s_mul_i32 s{sq}, s{sx}, 9363")
    k(f"s_lshr_b32 s{sq}, s{sq}, 16")
    k(f"s_mul_i32 s{srem}, s{sq}, 7")
    k(f"s_sub_u32 s{srem}, s{sx}, s{srem}")

TLBW = 0
QDELAY = 0
SLAB_LDS = 32768
DBG_INIT = 64

def lane_parts(k):
    k("v_and_b32 v2, 15, v0"); k("v_lshrrev_b32 v3, 4, v0")
    k("v_lshrrev_b32 v4, 2, v2"); k("v_lshlrev_b32 v4, 3, v4"); k("v_and_b32 v5, 3, v2"); k("v_add_u32 v4, v4, v5")
    k("v_lshlrev_b32 v6, 4, v0")

def wait_init(k, abort, vt):
    srd(k, 8, P_DBG, 256)
    k(f"v_mov_b32 v{vt}, {DBG_INIT}")
    wait_words(k, "0", vt, vt+1, 32, abort, nap=1, srd_="s[8:11]")

RING_LDS = SLAB_LDS + 56*1024
SLAB_END = RING_LDS + 4*16384

def body_slab(k, sb, abort):
    lane_parts(k)
    div7(k, 47, 48, sb)
    k("s_and_b32 s49, s47, 15"); k("s_lshr_b32 s50, s47, 4")
    k("s_cmp_eq_u32 s50, 0")
    k(f"s_cselect_b32 s8, s{P_WQ}, s{P_WV}"); k(f"s_cselect_b32 s9, s{P_WQ+1}, s{P_WV+1}"); k("s_and_b32 s9, s9, 0xffff")
    k(f"s_mov_b32 s10, {448*8192}"); k("s_mov_b32 s11, 0x20000")
    k("s_lshl_b32 s51, s49, 9")
    if TLBW:
        k("v_lshlrev_b32 v9, 16, v0"); k("buffer_load_dword v59, v9, s[8:11], s51 offen")
    k("v_lshrrev_b32 v9, 2, v0"); k("v_lshlrev_b32 v9, 13, v9"); k("v_and_b32 v10, 3, v0"); k("v_lshl_add_u32 v9, v10, 7, v9")
    k("s_lshl_b32 s54, s48, 2"); k(f"s_add_u32 s54, s54, s{S_WAVE}"); k("s_lshl_b32 s54, s54, 17"); k("s_add_u32 s54, s54, s51")
    k("buffer_load_dword v58, v9, s[8:11], s54 offen")
    k("v_lshrrev_b32 v9, 3, v0"); k("v_and_b32 v10, 7, v0"); k("v_xor_b32 v10, v10, v9")
    k("v_lshrrev_b32 v11, 5, v0"); k("v_and_b32 v9, 3, v9"); k("v_lshl_add_u32 v9, v11, 3, v9"); k("v_lshlrev_b32 v8, 13, v9"); k("v_lshl_add_u32 v8, v10, 4, v8")
    k("v_and_b32 v9, 7, v0"); k("v_xor_b32 v10, v3, v9"); k("v_lshl_add_u32 v10, v9, 3, v10"); k("v_lshlrev_b32 v10, 4, v10")
    k("v_bfe_u32 v9, v0, 3, 1"); k("v_lshl_add_u32 v10, v9, 12, v10")
    k(f"s_lshl_b32 s60, s{S_WAVE}, 14"); k(f"s_add_u32 s60, s60, {RING_LDS}")
    k("v_add_u32 v56, s60, v10"); k("v_xor_b32 v57, 64, v56")
    def dma_tile(srd_, sbase, ldsreg, ldsoff):
        k(f"s_add_u32 s55, s{sbase}, {16*8192}")
        for rh in range(2):
            for ln in range(4):
                k(f"s_add_u32 m0, s{ldsreg}, {ldsoff + (rh*4+ln)*1024 - ln*128}")
                k(f"buffer_load_dwordx4 v8, {srd_}, s{sbase if rh == 0 else 55} offen offset:{ln*128} lds")
    BA = 64
    lvt = k.label(); lbd = k.label()
    k(f"s_lshl_b32 s61, s{S_WAVE}, 13")
    srd(k, 64, P_WK, 448*8192)
    k("s_cmp_eq_u32 s50, 1"); k(f"s_cbranch_scc1 {lvt}")
    k(f"s_lshr_b32 s53, s{S_WAVE}, 1"); k("s_lshl_b32 s53, s53, 5")
    k(f"s_and_b32 s54, s{S_WAVE}, 1"); k("s_lshl_b32 s54, s54, 2"); k("s_add_u32 s53, s53, s54")
    k("s_lshl_b32 s54, s48, 6"); k("s_add_u32 s53, s53, s54")
    k("s_lshl_b32 s54, s53, 13"); k("s_add_u32 s54, s54, s51")
    dma_tile("s[64:67]", 54, 61, 0)
    k(f"s_branch {lbd}")
    k.place(lvt)
    srd(k, 64, P_WO, 16*229376)
    k("v_lshrrev_b32 v9, 3, v0"); k("v_mul_u32_u24 v9, 896, v9"); k("v_and_b32 v11, 7, v0"); k("v_lshl_add_u32 v9, v11, 4, v9")
    k("s_mul_i32 s54, s49, 229376"); k("s_lshl_b32 s55, s48, 7"); k("s_add_u32 s54, s54, s55"); k(f"s_mul_i32 s55, s{S_WAVE}, {64*896}"); k("s_add_u32 s54, s54, s55")
    for i in range(8):
        k(f"s_add_u32 m0, s61, {i*1024}")
        k(f"buffer_load_dwordx4 v9, s[64:67], s54 offen lds")
        if i < 7: k(f"s_add_u32 s54, s54, {8*896}")
    k.place(lbd)
    def atile(j):
        i, t = j >> 1, j & 1
        k(f"s_add_u32 s54, s{S_WAVE}, {4*i}"); k("s_lshl_b32 s54, s54, 18"); k("s_add_u32 s54, s54, s51")
        if t: k(f"s_add_u32 s54, s54, {4*8192}")
        dma_tile("s[8:11]", 54, 60, (j & 1)*8192)
    def aread(j):
        for ks in range(8): k(f"ds_read_b128 {vr(256+j*32+ks*4,4)}, v{56+(ks&1)} offset:{(j&1)*8192 + (ks>>1)*1024}")
    if TL == 2: k("s_memrealtime s[70:71]")
    atile(0); atile(1)
    if TL == 2: k("s_memrealtime s[72:73]")
    k(f"s_lshl_b32 s46, s{sb}, 2"); k(f"s_add_u32 s46, s46, s{S_WAVE}")
    lo = k.label(); lk = k.label(); lv = k.label(); lj = k.label()
    def blk(base):
        k(f"s_sub_u32 s52, s46, {base}"); k("s_mul_i32 s53, s52, 4682"); k("s_lshr_b32 s53, s53, 16"); k("s_mul_i32 s54, s53, 14"); k("s_sub_u32 s54, s52, s54")
        k("s_lshl_b32 s52, s52, 10")
    k("s_cmp_ge_u32 s46, 812"); k(f"s_cbranch_scc1 {lv}")
    k("s_cmp_ge_u32 s46, 784"); k(f"s_cbranch_scc1 {lk}")
    k("s_cmp_ge_u32 s46, 392"); k(f"s_cbranch_scc1 {lo}")
    blk(0); srd(k, 64, P_BQ, 448*896); k("s_mov_b32 s55, 896"); k("s_lshl_b32 s53, s53, 4"); k("v_add_u32 v7, s53, v2"); k(f"s_add_u32 s52, s52, {L.WBQ}"); k(f"s_branch {lj}")
    k.place(lo)
    blk(392); srd(k, 64, P_BO, 448*896); k("s_mov_b32 s55, 896")
    k("s_and_b32 s56, s53, 1"); k("s_lshr_b32 s53, s53, 1"); k("s_lshl_b32 s53, s53, 5"); k("s_lshl_b32 s56, s56, 2"); k("s_add_u32 s53, s53, s56")
    k("v_add_u32 v7, s53, v4"); k(f"s_add_u32 s52, s52, {L.WBO}"); k(f"s_branch {lj}")
    k.place(lk)
    blk(784); srd(k, 64, P_BK, 448*56); k("s_mov_b32 s55, 56"); k("s_lshl_b32 s53, s53, 2"); k("v_add_u32 v7, s53, v4"); k(f"s_add_u32 s52, s52, {L.WBK}"); k(f"s_branch {lj}")
    k.place(lv)
    blk(812); srd(k, 64, P_BV, 448*56); k("s_mov_b32 s55, 56"); k("s_lshl_b32 s53, s53, 4"); k("v_add_u32 v7, s53, v2"); k(f"s_add_u32 s52, s52, {L.WBV}")
    k("s_cmp_ge_u32 s46, 840"); k(f"s_cselect_b32 s52, {L.SPARE[0]}, s52")
    k.place(lj)
    k("s_lshl_b32 s53, s54, 5"); k("v_lshlrev_b32 v12, 3, v3"); k("v_add_u32 v12, s53, v12"); k("v_mul_lo_u32 v12, v12, s55")
    k("v_lshlrev_b32 v11, 1, v7"); k("v_cmp_le_u32 vcc, s55, v11"); k("v_add_u32 v12, v12, v11"); k("v_mov_b32 v11, 0x7fffffff"); k("v_cndmask_b32 v12, v12, v11, vcc")
    k("s_mov_b32 s53, 0")
    for j in range(8):
        k(f"buffer_load_ushort v{48+j}, v12, s[64:67], s53 offen")
        if j < 7: k("s_add_u32 s53, s53, s55")
    k("s_waitcnt vmcnt(24)"); k("s_barrier")
    srd(k, 64, P_DBG, 256); k(f"v_mov_b32 v13, {DBG_INIT}")
    if TL == 2: k("s_memrealtime s[74:75]")
    lq2 = k.label(); lr2 = k.label()
    k("s_cmp_eq_u32 s50, 0"); k(f"s_cbranch_scc1 {lq2}")
    k("v_bfe_u32 v9, v0, 2, 2"); k("v_lshl_add_u32 v9, v3, 3, v9"); k("v_lshlrev_b32 v9, 7, v9"); k("v_and_b32 v11, 3, v0"); k("v_lshl_add_u32 v9, v11, 4, v9")
    for tt in range(4):
        for ks in range(8):
            for h in range(2):
                k(f"ds_read_b64_tr_b16 {vr(BA+(tt*8+ks)*4+2*h,2)}, v9 offset:{(32*ks+4*h)*128 + (32*(tt>>1)+4*(tt&1))*2}")
            if ks % 4 == 3: k("s_waitcnt lgkmcnt(4)")
    k(f"s_branch {lr2}")
    k.place(lq2)
    k("v_xor_b32 v11, 64, v10")
    for tt in range(4):
        for ks in range(8): k(f"ds_read_b128 {vr(BA+(tt*8+ks)*4,4)}, v{10+(ks&1)} offset:{tt*8192 + (ks>>1)*1024}")
        k("s_waitcnt lgkmcnt(4)")
    k.place(lr2)
    k("s_cmp_eq_u32 s50, 0")
    k(f"s_cselect_b32 s56, {hx(f2u(L.LOG2E/16))}, {hx(f2u(1.0))}")
    k(f"s_cselect_b32 s57, {L.WQ}, {L.WV}")
    k("s_mul_i32 s58, s49, 28"); k("s_lshl_b32 s59, s48, 2"); k("s_add_u32 s58, s58, s59")
    k(f"s_mul_i32 s58, s58, {14*1024}"); k("s_add_u32 s57, s57, s58")
    k(f"s_lshl_b32 s58, s{S_WAVE}, 10"); k(f"s_add_u32 s58, s58, {SLAB_LDS}"); k("v_add_u32 v9, s58, v6")
    ACC = [192, 16]; OB = 224
    fin = k.label()
    k(f"s_lshl_b32 s62, s{sb}, 7"); k(f"s_add_u32 s62, s62, {L.SF(0)}"); k(f"s_lshl_b32 s63, s{S_WAVE}, 2"); k("v_mov_b32 v60, s63")
    k(f"s_lshl_b32 s58, s{S_WAVE}, 10"); k("s_add_u32 s57, s57, s58")
    k("s_mov_b32 s56, s56"); k("v_mov_b32 v62, s56"); k("v_mov_b32 v63, s56")
    def epi(i):
        o_ = []
        for tt in range(4):
            o = OB + tt*4
            for t in range(2):
                d = ACC[i & 1] + (t*4+tt)*4
                o_ += [f"v_mul_f32 v{d+r}, s56, v{d+r}" for r in range(4)]
                o_ += [f"v_cvt_pk_bf16_f32 v{o+2*t}, v{d}, v{d+1}", f"v_cvt_pk_bf16_f32 v{o+2*t+1}, v{d+2}, v{d+3}"]
            o_ += [f"s_add_u32 s58, s57, {tt*14*1024 + i*4096}", f"buffer_store_dwordx4 {vr(o,4)}, v6, {WS}, s58 offen sc1", f"ds_write_b128 v9, {vr(o,4)} offset:{tt*14*1024 + i*4096}"]
        return o_
    def flag(n):
        k(f"v_mov_b32 v61, {n}"); k("s_mov_b64 exec, 1"); k(f"buffer_store_dword v61, v60, {WS}, s62 offen sc1"); k("s_mov_b64 exec, -1")
    def capture(fn):
        n0 = len(k.lines); fn(); o_ = k.lines[n0:]; del k.lines[n0:]; return o_
    for i in range(4):
        if i == 3:
            k(f"s_cmp_ge_u32 s{S_WAVE}, 2"); k(f"s_cbranch_scc1 {fin}")
        if TL == 2 and i == 0: k("s_memrealtime s[76:77]")
        younger = [8, 1, 4, 4][i]
        k(f"s_waitcnt vmcnt({8+younger})"); aread(2*i)
        k(f"s_waitcnt vmcnt({younger})"); aread(2*i+1)
        if i == 2:
            okz = k.label()
            k("v_cmp_ne_u32 vcc, 32, v14"); k(f"s_cbranch_vccz {okz}")
            wait_words(k, "0", 13, 14, 32, abort, nap=2, srd_="s[64:67]", wg=False)
            k.place(okz)
        if i == 3: flag(1)
        k("s_waitcnt lgkmcnt(0)")
        if TL == 2 and i in (0, 2): k(f"s_memrealtime s[{78+i}:{79+i}]")
        side = (capture(lambda: (atile(2*i+2), atile(2*i+3))) if i < 3 else []) + (epi(i-1) if i else ["buffer_load_dword v14, v13, s[64:67], 0 offen sc1"])
        main = [f"v_mfma_f32_16x16x32_bf16 {vr(ACC[i&1]+(t*4+tt)*4,4)}, {vr(256+i*64+t*32+ks*4,4)}, {vr(BA+(tt*8+ks)*4,4)}, {'0' if ks == 0 else vr(ACC[i&1]+(t*4+tt)*4,4)}"
                for ks in range(8) for t in range(2) for tt in range(4)]
        per = -(-len(side)//60)
        for n, m_ in enumerate(main):
            k(m_)
            if n >= 3:
                for x in side[(n-3)*per:(n-2)*per]: k(x)
    k("s_waitcnt vmcnt(4)"); flag(2)
    for x in epi(3): k(x)
    j3 = k.label(); k(f"s_branch {j3}")
    k.place(fin)
    k("s_waitcnt vmcnt(4)"); flag(1)
    for x in epi(2): k(x)
    k.place(j3)
    if TL == 2: k("s_memrealtime s[82:83]")
    for j in range(4): k(f"v_lshl_or_b32 v{12+j}, v{49+2*j}, 16, v{48+2*j}")
    k(f"buffer_store_dwordx4 v[12:15], v6, {WS}, s52 offen sc1")
    k("s_waitcnt vmcnt(0) lgkmcnt(0)")
    flag(4)
    tl(k, 14, 12, 0)
    if TL == 2:
        for j in range(7):
            k(f"v_mov_b32 v12, s{70+2*j}"); k(f"s_sub_u32 s46, s101, {4*(14-1-j)}"); k(f"buffer_store_dword v12, v13, {WS}, s46 offen")
        k("s_endpgm")
    nc = k.label()
    k("s_cmp_eq_u32 s50, 0"); k(f"s_cbranch_scc1 {nc}")
    for r in range(4): k(f"v_mov_b32 v{16+r}, -1")
    k(f"s_sub_u32 s46, s{sb}, 112"); k("s_lshl_b32 s46, s46, 2"); k(f"s_add_u32 s46, s46, s{S_WAVE}"); k("v_lshl_add_u32 v9, s46, 10, v6")
    full, rest = divmod(L.CLR_BYTES, 448*1024)
    k(f"v_cmp_gt_u32 vcc, {rest}, v9"); k("v_mov_b32 v10, 0x7fffffff"); k("v_cndmask_b32 v10, v10, v9, vcc")
    for l in range(2):
        for it in range(full + (1 if rest else 0)):
            k(f"s_mov_b32 s53, {L.HO[l] + L.MSTEP + it*448*1024}")
            k(f"buffer_store_dwordx4 v[16:19], v{9 if it < full else 10}, {WS}, s53 offen sc1")
    for base, size in ((L.MEMN[0] + L.DIRM*L.MEMSZ, (64-L.DIRM)*L.MEMSZ), (L.VM[0] + L.DIRM*L.VMSZ, (64-L.DIRM)*L.VMSZ), (L.PARTS[0] + 62*131072, 2*131072),
                       (L.XTB[0] + L.DIRX*28672, (64-L.DIRX)*28672), (L.KI[0] + L.DIRX*2048, (64-L.DIRX)*2048), (L.VI[0] + L.DIRX*2048, (64-L.DIRX)*2048)):
        while size > 0:
            if size < 448*1024:
                k(f"v_cmp_gt_u32 vcc, {size}, v9"); k("v_mov_b32 v10, 0x7fffffff"); k("v_cndmask_b32 v10, v10, v9, vcc")
            for l in range(2):
                k(f"s_mov_b32 s53, {base + l*L.LSTRIDE}"); k(f"buffer_store_dwordx4 v[16:19], v{10 if size < 448*1024 else 9}, {WS}, s53 offen sc1")
            base += 448*1024; size -= 448*1024
    k.place(nc)

def body_init(k, abort):
    lane_parts(k)
    srd(k, 8, P_X, L.XSZ)
    k("s_lshl_b32 s47, s59, 2"); k(f"s_add_u32 s47, s47, s{S_WAVE}")
    k("v_mul_u32_u24 v8, 896, v2"); k("v_lshl_add_u32 v8, v3, 4, v8")
    k(f"s_mul_i32 s48, s47, {16*896}")
    XP = 16; F = 72
    k("s_mov_b32 s49, s48")
    k("v_lshlrev_b32 v9, 7, v0"); k("s_lshl_b32 s48, s47, 10"); k("v_add_u32 v9, s48, v9"); k("v_mov_b64 v[12:13], 0"); k("v_mov_b64 v[14:15], 0")
    k("s_mov_b64 exec, 0xff")
    for l in range(2):
        k(f"s_mov_b32 s53, {L.CNT[l]}"); k(f"buffer_store_dwordx4 v[12:15], v9, {WS}, s53 offen sc1")
    k("s_mov_b64 exec, -1")
    k("s_waitcnt vmcnt(0)")
    for ks in range(14): k(f"buffer_load_dwordx4 {vr(XP+4*ks,4)}, v8, s[8:11], s49 offen offset:{ks*64}")
    k("s_barrier")
    if TL == 2: tl(k, 1, 12, 0)
    srd(k, 64, P_DBG, 256)
    lz = k.label(); k(f"s_cmp_lg_u32 s{S_WAVE}, 0"); k(f"s_cbranch_scc1 {lz}")
    k(f"v_mov_b32 v12, {DBG_INIT}"); k("v_mov_b32 v13, 1"); signal(k, "0", 12, 13, "s[64:67]")
    k.place(lz)
    nom = k.label()
    k("s_cmp_lg_u32 s59, 31"); k(f"s_cbranch_scc1 {nom}")
    srd(k, 8, P_MEM0, 7168)
    k(f"s_lshl_b32 s48, s{S_WAVE}, 6"); k("v_add_u32 v8, s48, v0")
    k("v_and_b32 v9, 3, v8"); k("v_bfe_u32 v10, v8, 2, 3"); k("v_bfe_u32 v11, v8, 5, 1"); k("v_lshrrev_b32 v12, 6, v8")
    k("v_mul_u32_u24 v10, 896, v10"); k("v_lshl_add_u32 v10, v12, 5, v10"); k("v_lshl_add_u32 v10, v9, 3, v10"); k("v_lshl_add_u32 v10, v11, 2, v10")
    k("v_lshlrev_b32 v13, 2, v8")
    for p in range(7): k(f"buffer_load_dword v{76+p}, v10, s[8:11], 0 offen offset:{p*128}")
    k("v_and_b32 v9, 7, v8"); k("v_mul_u32_u24 v9, 896, v9"); k("v_lshrrev_b32 v11, 3, v8"); k("v_lshl_add_u32 v9, v11, 4, v9"); k("v_lshlrev_b32 v14, 4, v8")
    k("buffer_load_dwordx4 v[84:87], v9, s[8:11], 0 offen"); k("buffer_load_dwordx4 v[88:91], v9, s[8:11], 0 offen offset:512")
    k("v_add_u32 v15, 4096, v14"); k("v_cmp_gt_u32 vcc, 7168, v15"); k("v_mov_b32 v11, 0x7fffffff"); k("v_cndmask_b32 v15, v11, v15, vcc")
    k("s_waitcnt vmcnt(0)")
    for p in list(range(7)) + list(range(8, 16)): k(f"v_min_u32 v{76+p}, -2, v{76+p}")
    for l in range(2):
        k(f"s_mov_b32 s48, {L.MEM[l]}")
        for p in range(7):
            if p == 4: k("s_add_u32 s48, s48, 4096")
            k(f"buffer_store_dword v{76+p}, v13, {WS}, s48 offen offset:{(p%4)*1024} sc1")
        k(f"s_mov_b32 s48, {L.MEMN[l]}")
        k(f"buffer_store_dwordx4 v[84:87], v14, {WS}, s48 offen sc1"); k(f"buffer_store_dwordx4 v[88:91], v15, {WS}, s48 offen sc1")
    k.place(nom)
    k("s_waitcnt vmcnt(0)"); k("s_barrier")
    k("v_mov_b32 v12, s58"); k("s_lshl_b32 s46, s59, 2"); k("v_mov_b32 v13, s46")
    k("buffer_store_dword v12, v13, s[64:67], 0 offen offset:128 sc1")
    for i in range(56):
        k(f"v_lshlrev_b32 v{F+2*i}, 16, v{XP+i}"); k(f"v_and_b32 v{F+2*i+1}, 0xffff0000, v{XP+i}")
    k(f"v_add_f32 v9, v{F}, v{F+1}"); k(f"v_add_f32 v10, v{F+2}, v{F+3}")
    for i in range(4, 112, 2):
        k(f"v_add_f32 v9, v9, v{F+i}"); k(f"v_add_f32 v10, v10, v{F+i+1}")
    k("v_add_f32 v9, v9, v10")
    xreduce_g(k, 9, 10, "v_add_f32")
    k(f"v_mul_f32 v9, {hx(f2u(1/448))}, v9")
    for i in range(112): k(f"v_sub_f32 v{F+i}, v{F+i}, v9")
    k(f"v_mul_f32 v10, v{F}, v{F}"); k(f"v_mul_f32 v11, v{F+1}, v{F+1}")
    for i in range(2, 112, 2):
        k(f"v_fmac_f32 v10, v{F+i}, v{F+i}"); k(f"v_fmac_f32 v11, v{F+i+1}, v{F+i+1}")
    k("v_add_f32 v10, v10, v11")
    xreduce_g(k, 10, 11, "v_add_f32")
    k(f"v_mov_b32 v11, {hx(f2u(1e-5))}"); k(f"v_fmac_f32 v11, {hx(f2u(1/448))}, v10"); k("v_rsq_f32 v11, v11")
    for i in range(112): k(f"v_mul_f32 v{F+i}, v{F+i}, v11")
    for i in range(56): k(f"v_cvt_pk_bf16_f32 v{XP+i}, v{F+2*i}, v{F+2*i+1}")
    k(f"s_mul_i32 s48, s47, {14*1024}"); k(f"s_add_u32 s48, s48, {L.XTA[0]}")
    for ks in range(14):
        if ks % 4 == 0 and ks: k("s_add_u32 s48, s48, 4096")
        k(f"buffer_store_dwordx4 {vr(XP+4*ks,4)}, v6, {WS}, s48 offen offset:{(ks%4)*1024} sc1")
    k("s_waitcnt vmcnt(0)")
    if TL == 2:
        tl(k, 2, 12, 0); k("s_endpgm")
    k("s_mov_b32 s48, s47")
    wait_init(k, abort, 12)
    k("s_lshr_b32 s46, s48, 1"); k("s_lshl_b32 s46, s46, 7"); k(f"s_add_u32 s46, s46, {L.RC(0)}"); k("v_mov_b32 v12, 0"); k("v_mov_b32 v13, 16")
    signal(k, "s46", 12, 13, WS)

TIMEOUT = 1 << 21
SLEEP = 8

def wait_words(k, soff, vaddr, vt, target, abort, ge=False, nap=None, srd_=WL, wg=True, far=None):
    lp = k.label("Lwc"); ok = k.label("Lwo")
    if wg:
        k(f"s_cmp_lg_u32 s{S_WAVE}, 0"); k(f"s_cbranch_scc1 {ok}")
    k(f"s_mov_b32 s47, {TIMEOUT}")
    if far is not None:
        lf = k.label("Lwf"); near = k.label("Lwn")
        k(f"s_mov_b32 s46, {L.PROG(0)}")
        k.place(lf)
        k(f"v_mov_b32 v{vt}, 0")
        k(f"buffer_load_dword v{vt}, v{vt}, {WL}, s46 offen sc1")
        k("s_sub_u32 s47, s47, 1"); k(f"s_cbranch_scc1 {abort}")
        k("s_waitcnt vmcnt(0)")
        k(f"v_cmp_gt_i32 vcc, {far}, v{vt}")
        k(f"s_cbranch_vccz {near}")
        k("s_sleep 48")
        k(f"s_branch {lf}")
        k.place(near)
    k.place(lp)
    k(f"buffer_load_dword v{vt}, v{vaddr}, {srd_}, {soff} offen sc1")
    k("s_sub_u32 s47, s47, 1"); k(f"s_cbranch_scc1 {abort}")
    k("s_waitcnt vmcnt(0)")
    k(f"v_cmp_{'gt' if ge else 'ne'}_u32 vcc, {target}, v{vt}")
    k(f"s_cbranch_vccz {ok}")
    k(f"s_sleep {SLEEP if nap is None else nap}")
    k(f"s_branch {lp}")
    k.place(ok)
    if wg: k("s_barrier")

def gate(k, base, nshard, target, need, mark, v128, vt, abort, nap=0, napfar=40, greedy=True):
    ok = k.label("Lgo"); lp = k.label("Lgl")
    k(f"s_cmp_lt_u32 {need}, s{mark}"); k(f"s_cbranch_scc1 {ok}")
    k(f"s_mov_b32 s70, {TIMEOUT}")
    k(v128); k(f"v_and_b32 v{vt}, 0x780, v{vt}")
    k.place(lp)
    k(f"s_min_u32 s{mark}, s{mark}, 48"); k(f"s_lshl_b32 s{mark+1}, s{mark}, 7"); k(f"s_add_u32 s{mark+1}, s{mark+1}, {base}")
    k("s_mov_b64 exec, 0xffff")
    k(f"buffer_load_dword v{vt+1}, v{vt}, {WL}, s{mark+1} offen sc1")
    k("s_mov_b64 exec, -1")
    k("s_sub_u32 s70, s70, 1"); k(f"s_cbranch_scc1 {abort}")
    k("s_waitcnt vmcnt(0)")
    k(f"v_cmp_ne_u32 vcc, {target}, v{vt+1}")
    k(f"s_or_b32 s{mark+1}, vcc_lo, 0x10000"); k(f"s_ff1_i32_b32 s{mark+1}, s{mark+1}"); k(f"s_add_u32 s{mark}, s{mark}, s{mark+1}")
    k(f"s_cmp_eq_u32 s{mark+1}, 16"); k(f"s_cselect_b32 s{mark+1}, 1, 0")
    k(f"s_cmp_ge_u32 s{mark}, 64"); k(f"s_cselect_b32 s{mark}, 0x100, s{mark}"); k(f"s_cbranch_scc1 {ok}")
    if greedy:
        k(f"s_cmp_eq_u32 s{mark+1}, 1"); k(f"s_cbranch_scc1 {lp}")
    else:
        k(f"s_cmp_lt_u32 {need}, s{mark}"); k(f"s_cbranch_scc1 {ok}")
        k(f"s_cmp_eq_u32 s{mark+1}, 1"); k(f"s_cbranch_scc1 {lp}")
    if nap:
        k(f"s_cmp_lt_u32 {need}, s{mark}"); k(f"s_cbranch_scc1 {ok}")
        far = k.label("Lgf")
        k(f"s_add_u32 s{mark+1}, s{mark}, 1"); k(f"s_cmp_gt_u32 {need}, s{mark+1}"); k(f"s_cbranch_scc1 {far}")
        k(f"s_sleep {nap}"); k(f"s_branch {lp}")
        k.place(far); k(f"s_sleep {napfar}"); k(f"s_branch {lp}")
    else:
        k(f"s_cmp_lt_u32 {need}, s{mark}"); k(f"s_cbranch_scc0 {lp}")
    k.place(ok)

def signal(k, soff, vz, vone, srd_=WL, lanes=1):
    k(f"s_mov_b64 exec, {lanes}")
    k(f"buffer_atomic_add v{vone}, v{vz}, {srd_}, {soff} offen sc1")
    k("s_mov_b64 exec, -1")

TL = 0
TLROLE = ['t']
TLWG = 242
TLOFF = 0xF100000
def tl(k, idx, vt, per_layer=5):
    if not TL: return
    if TL == 5:
        tab = {('t', 0): 0, ('t', 15): 1, ('t', 1): 2, ('t', 2): 3, ('t', 4): 4, ('b', 15): 8, ('b', 5): 9}
        key = (TLROLE[0], idx)
        if key not in tab: return
        lz = k.label()
        k(f"s_cmp_lg_u32 s2, {0 if key[0] == 't' else TLWG}"); k(f"s_cbranch_scc1 {lz}")
        k("s_memrealtime s[84:85]"); srd(k, 88, P_DBG, 256); k("s_waitcnt lgkmcnt(0)")
        k(f"s_mul_i32 s85, s{S_LAYER}, {0 if idx in (0, 15) else (12 if key[0] == 't' else 4)}"); k(f"s_add_u32 s85, s85, {4*tab[key]}")
        k(f"v_mov_b32 v{vt}, s84"); k(f"v_mov_b32 v{vt+1}, 0"); k(f"buffer_store_dword v{vt}, v{vt+1}, s[88:91], s85 offen")
        k.place(lz); return
    k("s_memrealtime s[84:85]"); k("s_lshl_b32 s101, s2, 2"); k(f"s_add_u32 s101, s101, s{S_WAVE}"); k("s_lshl_b32 s101, s101, 6")
    k(f"s_add_u32 s101, s101, {TLOFF + 4*idx}"); k("s_waitcnt lgkmcnt(0)")
    k(f"s_mul_i32 s85, s{S_LAYER}, {4*per_layer}"); k("s_add_u32 s101, s101, s85")
    k(f"v_mov_b32 v{vt}, s84"); k(f"v_mov_b32 v{vt+1}, 0")
    k(f"buffer_store_dword v{vt}, v{vt+1}, {WS}, s101 offen")
    if TL == 3:
        k("s_memtime s[84:85]"); k("s_waitcnt lgkmcnt(0)"); k(f"v_mov_b32 v{vt}, s84"); k("s_add_u32 s101, s101, 0x10000")
        k(f"buffer_store_dword v{vt}, v{vt+1}, {WS}, s101 offen")

def code_touch(k, lab, nbytes, forward, v128, vd):
    h = k.label("Lpc")
    k("s_getpc_b64 s[82:83]"); k.place(h)
    k(f"s_add_u32 s82, s82, {lab}-{h}"); k(f"s_addc_u32 s83, s83, {0 if forward else -1}")
    if nbytes < 8192:
        k(f"v_min_u32 v{vd}, {nbytes-128}, v{v128}"); k(f"global_load_dword v{vd}, v{vd}, s[82:83]"); return
    for j in range(nbytes//8192):
        if j: k("s_add_u32 s82, s82, 8192"); k("s_addc_u32 s83, s83, 0")
        k(f"global_load_dword v{vd}, v{v128}, s[82:83]")

def slab_round_wait(k, r, soff, vaddr, vt, abort):
    ok = k.label("Lsr"); lp = k.label("Lsl")
    k(f"s_cmp_gt_u32 s55, {r}"); k(f"s_cbranch_scc1 {ok}")
    k(f"s_mov_b32 s70, {TIMEOUT}")
    k.place(lp)
    k(f"buffer_load_dword v{vt}, v{vaddr}, {WS}, {soff} offen sc1")
    k("s_sub_u32 s70, s70, 1"); k(f"s_cbranch_scc1 {abort}")
    k("s_waitcnt vmcnt(0)")
    k(f"v_cmp_gt_u32 vcc, 4, v{vt}"); k("s_cmp_eq_u64 vcc, 0"); k("s_cselect_b32 s55, 4, s55")
    k(f"v_cmp_ge_u32 vcc, {r}, v{vt}"); k(f"s_cbranch_vccz {ok}")
    k("s_sleep 2"); k(f"s_branch {lp}")
    k.place(ok)

def lane0_addr(k, vz, vone):
    k(f"v_mov_b32 v{vz}, 0"); k(f"v_mov_b32 v{vone}, 1")

def layer_begin(k):
    srd(k, 12, P_WS, L.WS_BYTES); k(f"s_mov_b32 s{S_LAYER}, 0")
def layer_next(k, top):
    k(f"s_add_u32 s12, s{P_WS}, {L.LSTRIDE}"); k(f"s_addc_u32 s13, s{P_WS+1}, 0"); k("s_and_b32 s13, s13, 0xffff")
    k(f"s_mov_b32 s14, {L.WS_BYTES - L.LSTRIDE}")
    k(f"s_add_u32 s{S_LAYER}, s{S_LAYER}, 1"); k(f"s_cmp_lt_u32 s{S_LAYER}, 2"); k(f"s_cbranch_scc1 {top}")

def slab_address(k, sb):
    div7(k, 53, 54, sb)
    k("s_and_b32 s55, s53, 15"); k("s_lshr_b32 s53, s53, 4"); k("s_cmp_eq_u32 s53, 0"); k(f"s_cselect_b32 s57, {L.WQ}, {L.WV}")
    k("s_mul_i32 s58, s55, 28"); k("s_lshl_b32 s59, s54, 2"); k("s_add_u32 s58, s58, s59"); k(f"s_add_u32 s58, s58, s{S_WAVE}")
    k(f"s_mul_i32 s58, s58, {14*1024}"); k("s_add_u32 s57, s57, s58")

def slab_request(k, sb):
    no = k.label(); k(f"s_cmp_eq_u32 s{S_LAYER}, 1"); k(f"s_cbranch_scc1 {no}")
    slab_address(k, sb)
    for i in range(14):
        if i % 4 == 0 and i: k("s_add_u32 s57, s57, 4096")
        k(f"buffer_load_dwordx4 {vr(128+4*i,4)}, v1, {WS}, s57 offen offset:{(i%4)*1024} sc1")
    k.place(no)

def slab_stage(k, younger, first=False):
    no = k.label()
    if not first:
        k(f"s_cmp_eq_u32 s{S_LAYER}, 1"); k(f"s_cbranch_scc1 {no}")
        k(f"s_mul_i32 s58, s{S_WAVE}, {14*1024}"); k(f"s_add_u32 s58, s58, {SLAB_LDS}"); k("v_add_u32 v2, s58, v1")
        k(f"s_waitcnt vmcnt({younger})"); k("s_barrier")
        for i in range(14): k(f"ds_write_b128 v2, {vr(128+4*i,4)} offset:{i*1024}")
    else: k("v_lshlrev_b32 v1, 4, v0")
    k(f"v_add_u32 v2, {SLAB_LDS}, v1")
    k("s_waitcnt lgkmcnt(0)"); k("s_barrier")
    for i in range(56):
        k(f"ds_read_b128 {vr(256+4*i,4)}, v2 offset:{i*1024}")
        if i % 12 == 11: k("s_waitcnt lgkmcnt(4)")
    k.place(no)

def body_gemm(k, sb, abort):
    div7(k, 47, 48, sb)
    k("s_and_b32 s49, s47, 15")
    k("s_lshr_b32 s50, s47, 4")
    k("v_lshlrev_b32 v1, 4, v0")
    k("s_cmp_eq_u32 s50, 0")
    k(f"s_mov_b32 s56, {L.UC(0)}"); k(f"s_cselect_b32 s56, {L.QC(0)}, s56")
    lane0_addr(k, 4, 5)
    k(f"s_lshl_b32 s58, s{S_WAVE}, 7"); k("s_add_u32 s56, s56, s58")
    k(f"s_and_b32 s58, s{sb}, 3"); k("s_lshl_b32 s58, s58, 13"); k("s_add_u32 s56, s56, s58")
    k("s_mov_b32 s96, 0"); k(f"s_mov_b32 s98, s{S_WAVE}")
    def xreg(buf, i):
        if buf == 0: return 16 + 4*i
        return 128 + 4*i if i < 20 else 256 + 224 + 4*(i-20)
    def loadx(buf, first=False):
        k("s_min_u32 s99, s98, 63")
        gate(k, L.RC(0), 1, 32, "s99", 96, "v_lshlrev_b32 v6, 3, v1", 6, abort, nap=2, napfar=2, greedy=False)
        if first:
            lz = k.label(); k(f"s_cmp_lt_u32 s{S_WAVE}, 2"); k(f"s_cbranch_scc1 {lz}"); k("s_sleep 12"); k.place(lz)
        k("s_add_u32 s98, s98, 4")
        for ks in range(14):
            if ks % 4 == 0:
                k(f"s_add_u32 s53, s52, {ks*1024}"); k(f"s_add_u32 s57, s52, {(14+ks)*1024}")
            for t in range(2):
                k(f"buffer_load_dwordx4 {vr(xreg(buf,t*14+ks),4)}, v1, {WL}, s{57 if t else 53} offen offset:{(ks%4)*1024} sc1")
        k(f"s_add_u32 s52, s52, {4*28*1024}"); k(f"s_min_u32 s52, s52, {L.XTA[0] + 63*28*1024}")
    k(f"s_mul_i32 s52, s{S_WAVE}, {28*1024}"); k(f"s_add_u32 s52, s52, {L.XTA[0]}")
    if QDELAY:
        nq = k.label()
        k("s_cmp_lg_u32 s50, 0"); k(f"s_cbranch_scc1 {nq}")
        k(f"s_mov_b32 s46, {L.PROG(0)}"); wait_words(k, "s46", 4, 6, QDELAY, abort, ge=True, nap=32)
        k.place(nq)
    k("s_waitcnt vmcnt(0) lgkmcnt(0)"); k("s_barrier")
    loadx(0, True)
    tl(k, 2, 6)
    ACC = 208; O = 240
    lq = k.label(); end = k.label()
    k("s_cmp_eq_u32 s50, 0")
    k(f"s_cbranch_scc1 {lq}")
    for typ in (1, 0):
        if typ == 0: k.place(lq)
        k(f"s_lshl_b32 s54, s{S_WAVE}, 4"); k("s_add_u32 s54, s54, s49"); k(f"s_mul_i32 s54, s54, {28*1024}")
        if typ == 1:
            k("s_lshl_b32 s55, s48, 12"); k("s_add_u32 s54, s54, s55"); k(f"s_add_u32 s54, s54, {L.UU[0]}")
        else:
            k("s_lshl_b32 s55, s48, 11"); k("s_add_u32 s54, s54, s55"); k(f"s_add_u32 s54, s54, {L.QP[0]}")
        k("s_mov_b32 s51, 8")
        lp = k.label(); k.place(lp)
        for buf in range(2):
            for ks in range(14):
                for t in range(2):
                    k(f"s_waitcnt vmcnt({27 - 2*ks - t})")
                    for tt in range(4):
                        d = ACC + (t*4+tt)*4
                        c = "0" if ks == 0 else vr(d,4)
                        x = vr(xreg(buf, t*14+ks),4); w = vr(256+(tt*14+ks)*4,4)
                        if typ == 1: k(f"v_mfma_f32_16x16x32_bf16 {vr(d,4)}, {x}, {w}, {c}")
                        else:        k(f"v_mfma_f32_16x16x32_bf16 {vr(d,4)}, {w}, {x}, {c}")
            for u in range(4):
                if typ == 1: d0, d1 = ACC + u*4, ACC + (4+u)*4; off = u*1024; so = "s54"
                else:
                    t, pp = u >> 1, u & 1
                    d0, d1 = ACC + (t*4+2*pp)*4, ACC + (t*4+2*pp+1)*4; off = pp*1024; so = "s54" if t == 0 else "s55"
                    if u == 2: k(f"s_add_u32 s55, s54, {14*1024}")
                o = O + 4*u
                k(f"v_cvt_pk_bf16_f32 v{o}, v{d0}, v{d0+1}"); k(f"v_cvt_pk_bf16_f32 v{o+1}, v{d0+2}, v{d0+3}")
                k(f"v_cvt_pk_bf16_f32 v{o+2}, v{d1}, v{d1+1}"); k(f"v_cvt_pk_bf16_f32 v{o+3}, v{d1+2}, v{d1+3}")
                k(f"buffer_store_dwordx4 {vr(o,4)}, v1, {WL}, {so} offen offset:{off} sc1")
            k(f"s_add_u32 s54, s54, {4*16*28*1024}")
            k("s_waitcnt vmcnt(0)")
            signal(k, "s56", 4, 5)
            loadx(1-buf)
            if TL and buf == 0:
                lz = k.label(); k("s_cmp_lg_u32 s51, 8"); k(f"s_cbranch_scc1 {lz}"); tl(k, 3, 6); k.place(lz)
            k("s_add_u32 s56, s56, 512")
        k("s_sub_u32 s51, s51, 1"); k("s_cmp_lg_u32 s51, 0"); k(f"s_cbranch_scc1 {lp}")
        if typ == 1: k(f"s_branch {end}")
    k.place(end)
    k("s_waitcnt vmcnt(0)")

def gen_empty():
    k = K("empty_kernel", 32, 32, 48)
    k("s_endpgm")
    return k
```

```python
def desc(name, nv=128):
    return f"""
.p2align 6
.amdhsa_kernel {name}
  .amdhsa_next_free_vgpr {nv}
  .amdhsa_next_free_sgpr 48
  .amdhsa_accum_offset {min(nv,256)}
  .amdhsa_group_segment_fixed_size 0
  .amdhsa_kernarg_size 16
  .amdhsa_user_sgpr_count 2
  .amdhsa_user_sgpr_kernarg_segment_ptr 1
  .amdhsa_system_sgpr_workgroup_id_x 1
.end_amdhsa_kernel
"""
def pro(name):
    return f"""
.globl {name}
.p2align 8
.type {name},@function
{name}:
    s_load_dwordx2 s[4:5], s[0:1], 0
    s_load_dwordx2 s[6:7], s[0:1], 8
    s_waitcnt lgkmcnt(0)
    s_mov_b32 s8, s4
    s_mov_b32 s9, s5
    s_mov_b32 s10, 0x10000000
    s_mov_b32 s11, 0x00020000
    s_mov_b32 s12, s6
    s_mov_b32 s13, s7
    s_mov_b32 s14, 65536
    s_mov_b32 s15, 0x00020000
"""
def stream(name, nx, iters, U=16, pollwave=False, nstream=4):
    s = pro(name)
    s += f"""
    s_and_b32 s16, s2, 7
    s_cmp_ge_u32 s16, {nx}
    s_cbranch_scc1 Lend_{name}
    s_lshr_b32 s17, s2, 3
    v_lshrrev_b32 v2, 6, v0
    s_nop 0
    v_readfirstlane_b32 s18, v2     ; wave
    s_nop 3
    v_and_b32 v1, 63, v0
    v_lshlrev_b32 v1, 4, v1
    s_lshl_b32 s19, s17, 2
    s_add_u32 s19, s19, s18
    s_mul_i32 s20, s16, {iters*128}
    s_add_u32 s19, s19, s20
    s_mul_i32 s19, s19, {U*1024}
    s_mov_b32 s31, {iters}
    s_barrier
    s_memtime s[20:21]
    s_waitcnt lgkmcnt(0)
"""
    if pollwave:
        s += f"""
    s_cmp_eq_u32 s18, 0
    s_cbranch_scc1 Lpoll_{name}
    s_cmp_gt_u32 s18, {nstream}
    s_cbranch_scc1 Lend_{name}
"""
    s += f"Li_{name}:\n"
    for j in range(U):
        s += f"    s_add_u32 s24, s19, {j*1024}\n    buffer_load_dwordx4 v[{8+4*j}:{11+4*j}], v1, s[8:11], s24 offen\n"
    s += f"""
    s_waitcnt vmcnt({U//2})
    s_add_u32 s19, s19, {128*U*1024}
    s_sub_u32 s31, s31, 1
    s_cmp_lg_u32 s31, 0
    s_cbranch_scc1 Li_{name}
    s_waitcnt vmcnt(0)
    s_branch Lout_{name}
"""
    if pollwave:
        s += f"""
Lpoll_{name}:
    s_mov_b32 s31, 100
    s_lshl_b32 s24, s2, 10
    s_add_u32 s24, s24, 0xF000000
Lp_{name}:
    buffer_load_dwordx4 v[8:11], v1, s[8:11], s24 offen sc1
    s_waitcnt vmcnt(0)
    s_sub_u32 s31, s31, 1
    s_cmp_lg_u32 s31, 0
    s_cbranch_scc1 Lp_{name}
"""
    s += f"""
Lout_{name}:
    s_memtime s[22:23]
    s_waitcnt lgkmcnt(0)
    s_sub_u32 s22, s22, s20
    v_mov_b32 v4, s22
    s_lshl_b32 s3, s2, 4
    s_lshl_b32 s18, s18, 2
    s_add_u32 s3, s3, s18
    v_mov_b32 v2, s3
    buffer_store_dword v4, v2, s[12:15], 0 offen
    s_waitcnt vmcnt(0)
Lend_{name}:
    s_endpgm
"""
    return s
ks = {
 "x1": stream("x1_kernel",1,30,16),
 "x2": stream("x2_kernel",2,30,16),
 "x8": stream("x8_kernel",8,14,16),
 "p0": stream("p0_kernel",1,30,16,True,0),
 "p1": stream("p1_kernel",1,30,16,True,1),
 "p3": stream("p3_kernel",1,30,16,True,3),
 "p1u4": stream("p1u4_kernel",1,100,4,True,1),
 "p1u2": stream("p1u2_kernel",1,200,2,True,1),
}
out = "".join(f"; @launch kernel={n}_kernel grid=(256,1,1) block=(256,1,1) lds=81920\n" for n in ks)
out += '.amdgcn_target "amdgcn-amd-amdhsa--gfx950"\n.text\n'
for n,bd in ks.items(): out += bd
out += '.section .rodata,"a"\n'
for n in ks: out += desc(n+"_kernel")
open("t_bw.s","w").write(out)
```

```python
from gen_bw import pro, desc
def kern(name, ntouch, same_wave):
    s = pro(name)
    s += f"""
    s_cmp_eq_u32 s2, 0
    s_cbranch_scc1 Lgo_{name}
    s_cmp_eq_u32 s2, 8
    s_cbranch_scc0 Lend_{name}
Lgo_{name}:
    v_lshrrev_b32 v2, 6, v0
    s_nop 0
    v_readfirstlane_b32 s18, v2
    s_nop 3
    v_and_b32 v0, 63, v0
    v_lshlrev_b32 v1, 7, v0
    v_lshlrev_b32 v3, 2, v0
    s_mov_b32 s24, 0xF000000
    s_mov_b32 s19, 0
    s_mov_b32 s30, 1
    s_mov_b32 s34, 0
    buffer_load_dword v8, v3, s[8:11], s24 offen sc1
    s_waitcnt vmcnt(0)
    s_cmp_eq_u32 s2, 8
    s_cbranch_scc1 Lrecv_{name}
    s_mul_i32 s19, s18, 0x1000000
    s_sleep 127
Ls_{name}:
    s_barrier
"""
    t = "".join(f"    buffer_load_dword v9, v1, s[8:11], s19 offen\n    s_add_u32 s19, s19, 8192\n" for _ in range(ntouch))
    if same_wave:
        s += f"    s_cmp_lg_u32 s18, 0\n    s_cbranch_scc1 Lw_{name}\n" + t
    else:
        s += f"    s_cmp_eq_u32 s18, 0\n    s_cbranch_scc1 Lz_{name}\n" + t + f"    s_branch Lw_{name}\nLz_{name}:\n"
    s += f"""
    s_sleep 4
    v_mov_b32 v4, s30
    s_memrealtime s[20:21]
    s_waitcnt lgkmcnt(0)
    buffer_store_dword v4, v3, s[8:11], s24 offen
    s_add_u32 s34, s34, s20
Lw_{name}:
    s_waitcnt vmcnt(0)
    s_sleep 60
    s_add_u32 s30, s30, 1
    s_cmp_le_u32 s30, 40
    s_cbranch_scc1 Ls_{name}
    s_branch Lout_{name}
Lrecv_{name}:
    s_cmp_lg_u32 s18, 0
    s_cbranch_scc1 Lend_{name}
    s_mov_b32 s33, 400000
Lr_{name}:
    buffer_load_dword v8, v3, s[8:11], s24 offen sc1
    s_sub_u32 s33, s33, 1
    s_cbranch_scc1 Lout_{name}
    s_waitcnt vmcnt(0)
    v_cmp_ne_u32 vcc, s30, v8
    s_cbranch_vccnz Lr_{name}
    s_memrealtime s[20:21]
    s_waitcnt lgkmcnt(0)
    s_add_u32 s34, s34, s20
    s_add_u32 s30, s30, 1
    s_cmp_le_u32 s30, 40
    s_cbranch_scc1 Lr_{name}
Lout_{name}:
    s_cmp_lg_u32 s18, 0
    s_cbranch_scc1 Lend_{name}
    v_mov_b32 v4, s34
    v_mov_b32 v2, s2
    buffer_store_dword v4, v2, s[12:15], 0 offen
    s_waitcnt vmcnt(0)
Lend_{name}:
    s_endpgm
"""
    return s
ks = {f"t{n}{'s' if sw else 'o'}": kern(f"t{n}{'s' if sw else 'o'}_kernel", n, sw) for n, sw in ((0,0),(1,1),(1,0),(2,0),(4,0))}
out = "".join(f"; @launch kernel={n}_kernel grid=(256,1,1) block=(256,1,1) lds=81920\n" for n in ks)
out += '.amdgcn_target "amdgcn-amd-amdhsa--gfx950"\n.text\n'
for n,bd in ks.items(): out += bd
out += '.section .rodata,"a"\n'
for n in ks: out += desc(n+"_kernel")
open("t_sb.s","w").write(out)
```
